```python
import torch

def _softmax(x, axis=-1):
    return torch.softmax(x, dim=axis)

def _gelu(x):
    return torch.nn.functional.gelu(x, approximate='tanh')

def _silu(x):
    return torch.nn.functional.silu(x)

def _sigmoid(x):
    return torch.sigmoid(x)

def _layernorm(x, axis=-1, eps=1e-05):
    m = x.mean(dim=axis, keepdim=True)
    v = x.var(dim=axis, keepdim=True, unbiased=False)
    return (x - m) / torch.sqrt(v + eps)

def _scatter_add(tgt, idx, src, axis=0):
    return tgt.clone().index_add_(axis, idx, src)

def _segment_sum(src, seg, n):
    out = torch.zeros((n,) + src.shape[1:], dtype=src.dtype)
    return out.index_add_(0, seg, src)

def _pad(x, pw):
    flat = tuple((v for pair in reversed(pw) for v in pair))
    return torch.nn.functional.pad(x, flat)
kernel_name = 'parallel_sum__ssm_conv_s4__mixer_gmlp__prompt'

def setup_inputs():

    _w = lambda a: (lambda t: t.to(torch.bfloat16) if t.is_floating_point() else t)(torch.as_tensor(a))

    def _A_setup():
        B, L, D, N = (1, 2048, 576, 128)
        A_re = -(lambda _x: torch.exp(torch.as_tensor(_x)))((lambda *s: torch.randn(*s, dtype=torch.bfloat16) * 3.2)(D, N))
        A_im = torch.pi * (lambda *s: torch.randn(*s, dtype=torch.bfloat16) * 0.2)(D, N)
        B_re = (lambda *s: torch.randn(*s, dtype=torch.bfloat16) * 0.8)(D, N)
        B_im = (lambda *s: torch.randn(*s, dtype=torch.bfloat16) * 0.8)(D, N)
        C_re = (lambda *s: torch.randn(*s, dtype=torch.bfloat16) * 0.8)(D, N)
        C_im = (lambda *s: torch.randn(*s, dtype=torch.bfloat16) * 0.8)(D, N)
        log_dt = (lambda *s: torch.randn(*s, dtype=torch.bfloat16) * 0.2)(D) * 0.5 - 4.0
        Dskip = (lambda *s: torch.randn(*s, dtype=torch.bfloat16) * 1.6)(D)
        return {'u': _w((lambda *s: torch.randn(*s, dtype=torch.bfloat16) * 0.05)(B, L, D)), 'A_re': _w(A_re), 'A_im': _w(A_im), 'B_re': _w(B_re), 'B_im': _w(B_im), 'C_re': _w(C_re), 'C_im': _w(C_im), 'log_dt': _w(log_dt), 'Dskip': _w(Dskip)}
    _A_in = _A_setup()

    def _B_setup():
        B, S, D, F = (1, 2048, 576, 4608)
        Fh = F // 2
        return {'x': _w((lambda *s: torch.randn(*s, dtype=torch.bfloat16) * 0.05)(B, S, D)), 'w_in': _w((lambda *s: torch.randn(*s, dtype=torch.bfloat16) * 0.4)(D, 2 * Fh)), 'w_sp': _w(0.01 * (lambda *s: torch.randn(*s, dtype=torch.bfloat16) * 0.4)(S, S)), 'b_sp': _w(1.0 + 0.01 * (lambda *s: torch.randn(*s, dtype=torch.bfloat16) * 0.05)(S)), 'w_out': _w((lambda *s: torch.randn(*s, dtype=torch.bfloat16) * 0.05)(Fh, D))}
    _B_in = _B_setup()
    return {'A_u': _A_in['u'], 'A_A_re': _A_in['A_re'], 'A_A_im': _A_in['A_im'], 'A_B_re': _A_in['B_re'], 'A_B_im': _A_in['B_im'], 'A_C_re': _A_in['C_re'], 'A_C_im': _A_in['C_im'], 'A_log_dt': _A_in['log_dt'], 'A_Dskip': _A_in['Dskip'], 'B_x': _B_in['x'], 'B_w_in': _B_in['w_in'], 'B_w_sp': _B_in['w_sp'], 'B_b_sp': _B_in['b_sp'], 'B_w_out': _B_in['w_out']}

def reference(A_u, A_A_re, A_A_im, A_B_re, A_B_im, A_C_re, A_C_im, A_log_dt, A_Dskip, B_x, B_w_in, B_w_sp, B_b_sp, B_w_out):

    def _A_ref(u, A_re, A_im, B_re, B_im, C_re, C_im, log_dt, Dskip):
        Bsz, L, D = u.shape
        dt = torch.exp(log_dt)[:, None]
        A = A_re + 1j * A_im
        Bc = B_re + 1j * B_im
        Cc = C_re + 1j * C_im
        logdA = dt * A
        dB = dt * Bc
        l = (lambda x, dt: x.to(dt))(torch.arange(L), A_re.dtype)
        P = torch.exp(logdA[:, :, None] * l[None, None, :])
        K = torch.einsum('dn,dnl,dn->dl', Cc, P, dB).real
        L2 = 2 * L
        Kp = _pad(K, ((0, 0), (0, L)))
        up = (lambda x, *d: x.permute(*d))(u, 0, 2, 1)
        up = _pad(up, ((0, 0), (0, 0), (0, L)))
        Kf = (lambda x, axes=(-2, -1): torch.fft.rfft2(x.float(), dim=axes))(Kp[:, None, :], axes=(-2, -1))
        Uf = (lambda x, axes=(-2, -1): torch.fft.rfft2(x.float(), dim=axes))(up[:, :, None, :], axes=(-2, -1))
        Yf = Uf * Kf[None, :, :, :]
        y = (lambda x, s, axes=(-2, -1): torch.fft.irfft2(x, s=s, dim=axes).to(torch.bfloat16))(Yf, (1, L2), axes=(-2, -1))[:, :, 0, :L]
        y = (lambda x, *d: x.permute(*d))(y, 0, 2, 1) + u * Dskip[None, None, :]
        return y

    def _B_ref(x, w_in, w_sp, b_sp, w_out):
        B, S, D = x.shape
        F = w_in.shape[-1]
        Fh = F // 2
        z = _gelu(torch.einsum('bsd,df->bsf', x, w_in))
        z1 = z[..., :Fh].clone()
        z2 = _layernorm(z[..., Fh:], axis=-1)
        g = torch.einsum('ts,bsf->btf', w_sp, z2) + b_sp[None, :, None]
        return torch.einsum('bsf,fd->bsd', z1 * g, w_out)
    x = A_u
    xn = _layernorm(x, axis=-1)
    return x + _A_ref(xn, A_A_re, A_A_im, A_B_re, A_B_im, A_C_re, A_C_im, A_log_dt, A_Dskip) + _B_ref(xn, B_w_in, B_w_sp, B_b_sp, B_w_out)
```

```python
NAME = "parallel_sum__ssm_conv_s4__mixer_gmlp__prompt"
ARG = dict(x=0, A_re=8, A_im=16, B_re=24, B_im=32, C_re=40, C_im=48, log_dt=56, Dskip=64, Bx=72, w_in=80, w_sp=88, b_sp=96, w_out=104, out=112, dbg=120, ws=128)

class Kern:
    def __init__(self, name, grid, block, lds):
        self.name = name; self.grid = grid; self.block = block; self.lds = lds
        self.lines = []; self.vg = 256; self.acc_off = 256; self.sg = 102
        self._lab = 0
    def __call__(self, s):
        for l in s.split("\n"):
            l = l.strip()
            if l: self.lines.append(("    " + l) if not l.endswith(":") else l)
    def label(self, base="L"):
        self._lab += 1
        return f"{self.name}_{base}{self._lab}"
    def srd(self, d, base, nbytes, add=0):
        if add:
            self(f"s_add_u32 s{d}, s{base}, {add & 0xffffffff}\ns_addc_u32 s{d+1}, s{base+1}, {add >> 32}")
        else:
            self(f"s_mov_b32 s{d}, s{base}\ns_mov_b32 s{d+1}, s{base+1}")
        self(f"s_mov_b32 s{d+2}, {nbytes}\ns_mov_b32 s{d+3}, 0x20000")
    def text(self):
        from hazard import fix
        lines = fix(self.lines + ["    s_endpgm"])
        return (f".globl {self.name}\n.p2align 8\n.type {self.name},@function\n{self.name}:\n" + "\n".join(lines) + "\n")
    def desc(self):
        return f""".p2align 6
.amdhsa_kernel {self.name}
  .amdhsa_next_free_vgpr {self.vg}
  .amdhsa_next_free_sgpr {self.sg}
  .amdhsa_accum_offset {self.acc_off}
  .amdhsa_group_segment_fixed_size 0
  .amdhsa_kernarg_size 136
  .amdhsa_user_sgpr_count 2
  .amdhsa_user_sgpr_kernarg_segment_ptr 1
  .amdhsa_system_sgpr_workgroup_id_x 1
.end_amdhsa_kernel
"""

def emit(kerns, path, header=""):
    s = header
    for k in kerns:
        s += f"; @launch kernel={k.name} grid=({k.grid},1,1) block=({k.block},1,1) lds={k.lds}\n"
    s += '.amdgcn_target "amdgcn-amd-amdhsa--gfx950"\n.text\n'
    seen = []
    for k in kerns:
        if k.name in seen: continue
        seen.append(k.name); s += k.text()
    s += '.section .rodata,"a"\n'
    seen = []
    for k in kerns:
        if k.name in seen: continue
        seen.append(k.name); s += k.desc()
    open(path, "w").write(s)
```

```python
import sys; sys.path.insert(0, "dev")
from asmgen import *
WS_Z2 = 0
WS_Z1 = 0x900000
WS_H = 0x1200000
FRAG9 = 9437184

def wg_map(k, s_p, s_c):
    k(f"""
    s_and_b32 s90, s2, 7
    s_lshr_b32 s91, s2, 3
    s_and_b32 s{s_p}, s90, 1
    s_lshl_b32 s{s_p}, s{s_p}, 3
    s_lshr_b32 s92, s91, 2
    s_add_u32 s{s_p}, s{s_p}, s92
    s_lshr_b32 s{s_c}, s90, 1
    s_lshl_b32 s{s_c}, s{s_c}, 2
    s_and_b32 s92, s91, 3
    s_add_u32 s{s_c}, s{s_c}, s92
    """)

def interleave(mf, other, start=0, every=1):
    out = []; oi = 0
    for i, m in enumerate(mf):
        out.append(m)
        if i >= start and (i - start) % every == 0 and oi < len(other):
            out.append(other[oi]); oi += 1
    out += other[oi:]
    return out

def gen_g2(NS=4, no_mfma=False, no_reads=False, no_dma=False, stamp=False, prio=0, nstage=32):
    SLOT = 34816
    k = Kern("g2_kernel", 256, 512, NS * SLOT)
    end = "g2_end"
    P, C, W = 20, 21, 22
    k(f"""
    s_cmp_ge_u32 s2, 256
    s_cbranch_scc1 {end}
    s_load_dwordx2 s[4:5], s[0:1], {ARG['ws']}
    s_load_dwordx2 s[6:7], s[0:1], {ARG['w_sp']}
    s_load_dwordx2 s[8:9], s[0:1], {ARG['b_sp']}
    s_load_dwordx2 s[10:11], s[0:1], {ARG['dbg']}
    v_lshrrev_b32 v1, 6, v0
    v_and_b32 v2, 63, v0
    v_readfirstlane_b32 s{W}, v1
    """)
    wg_map(k, P, C)
    if stamp: k("s_memtime s[60:61]")
    k(f"""
    s_waitcnt lgkmcnt(0)
    s_cmp_ge_u32 s{W}, 4
    s_cbranch_scc1 g2_loader
    """)
    ACC = 0
    FX = 72; FY = 116
    Z1 = 160
    VA, VB0, VB1, VAb, VB0b, VB1b = 196, 197, 198, 199, 200, 201
    VL, VT, VBS = 202, 203, 204
    VO = 206
    k(f"v_mov_b32 v{VL}, v2")
    k.srd(12, 4, FRAG9, add=WS_Z1)
    k.srd(16, 4, FRAG9, add=WS_H)
    k.srd(24, 8, 4096)
    k(f"""
    s_lshl_b32 s30, s{P}, 3
    s_lshl_b32 s31, s{W}, 1
    s_add_u32 s30, s30, s31          ; tt0
    s_lshl_b32 s31, s30, 4
    s_add_u32 s31, s31, s{C}
    s_mul_i32 s31, s31, 4608
    s_add_u32 s32, s31, {16*4608}    ; tb=1
    v_lshlrev_b32 v{VO}, 4, v{VL}    ; lane*16
    v_lshlrev_b32 v{VO+1}, 3, v{VL}  ; lane*8
    """)
    for tb in range(2):
        for q in range(4):
            r = Z1 + tb * 18 + q * 4
            k(f"buffer_load_dwordx4 v[{r}:{r+3}], v{VO}, s[12:15], s{31+tb} offen offset:{q*1024}")
        r = Z1 + tb * 18 + 16
        k(f"s_add_u32 s33, s{31+tb}, 4096\nbuffer_load_dwordx2 v[{r}:{r+1}], v{VO+1}, s[12:15], s33 offen")
    k(f"""
    v_and_b32 v{VT}, 15, v{VL}
    s_lshl_b32 s33, s30, 4
    v_add_u32 v{VT}, s33, v{VT}
    v_lshlrev_b32 v{VT}, 1, v{VT}
    buffer_load_ushort v{VBS}, v{VT}, s[24:27], 0 offen
    buffer_load_ushort v{VBS+1}, v{VT}, s[24:27], 0 offen offset:32
    """)
    k(f"""
    v_mov_b32 v{VAb}, v{VO}
    v_and_b32 v{VT}, 15, v{VL}              ; j
    v_lshrrev_b32 v{VB0b}, 4, v{VL}         ; g
    v_lshrrev_b32 v{VB1b}, 1, v{VT}         ; f0 = j>>1
    v_xor_b32 v{VB0b}, v{VB0b}, v{VB1b}
    v_lshlrev_b32 v{VB0b}, 4, v{VB0b}
    v_lshl_add_u32 v{VB0b}, v{VT}, 7, v{VB0b}
    s_lshl_b32 s33, s{W}, 12
    s_add_u32 s33, s33, 18432
    v_add_u32 v{VB0b}, s33, v{VB0b}
    v_xor_b32 v{VB1b}, 64, v{VB0b}
    v_mov_b32 v{VA}, v{VAb}
    v_mov_b32 v{VB0}, v{VB0b}
    v_mov_b32 v{VB1}, v{VB1b}
    s_mov_b32 s34, 0
    s_mov_b32 s35, 1
    """)
    for i in range(72): k(f"v_mov_b32 v{ACC+i}, 0")
    if prio: k(f"s_setprio {prio}")
    def reads(F, half):
        if no_reads: return []
        vb = VB0 if half == 0 else VB1
        r = [f"ds_read_b128 v[{F+4*tb}:{F+4*tb+3}], v{vb} offset:{tb*2048}" for tb in range(2)]
        r += [f"ds_read_b128 v[{F+8+4*ft}:{F+8+4*ft+3}], v{VA} offset:{(ft*2+half)*1024}" for ft in range(9)]
        return r
    def mfmas(F):
        if no_mfma: return []
        return [f"v_mfma_f32_16x16x32_bf16 v[{ACC+(ft*2+tb)*4}:{ACC+(ft*2+tb)*4+3}], v[{F+8+4*ft}:{F+8+4*ft+3}], v[{F+4*tb}:{F+4*tb+3}], v[{ACC+(ft*2+tb)*4}:{ACC+(ft*2+tb)*4+3}]"
                for ft in range(9) for tb in range(2)]
    adv = [f"s_add_u32 s34, s34, {SLOT}", f"s_cmp_ge_u32 s34, {SLOT*NS}", "s_cselect_b32 s34, 0, s34",
           f"v_add_u32 v{VA}, s34, v{VAb}", f"v_add_u32 v{VB0}, s34, v{VB0b}", f"v_add_u32 v{VB1}, s34, v{VB1b}"]
    k("s_barrier")
    k("\n".join(reads(FX, 0)))
    k("s_waitcnt lgkmcnt(0)")
    k("\n".join(interleave(mfmas(FX), reads(FY, 1) + adv)))
    k("s_waitcnt lgkmcnt(0)")
    k("g2_cloop:")
    k("s_barrier")
    k("\n".join(interleave(mfmas(FY), reads(FX, 0))))
    k("s_waitcnt lgkmcnt(0)")
    k("\n".join(interleave(mfmas(FX), reads(FY, 1) + adv + ["s_add_u32 s35, s35, 1"])))
    k(f"s_cmp_lt_u32 s35, {nstage}")
    k("s_waitcnt lgkmcnt(0)")
    k("s_cbranch_scc1 g2_cloop")
    k("\n".join(mfmas(FY)))
    if prio: k("s_setprio 0")
    k(f"""
    s_waitcnt vmcnt(0)
    v_lshlrev_b32 v{VBS}, 16, v{VBS}
    v_lshlrev_b32 v{VBS+2}, 16, v{VBS+1}
    v_mov_b32 v{VBS+1}, v{VBS}
    v_mov_b32 v{VBS+3}, v{VBS+2}
    s_nop 4
    """)
    VO2 = 210
    k(f"v_lshlrev_b32 v{VO2}, 4, v{VL}\nv_lshlrev_b32 v{VO2+1}, 3, v{VL}")
    T = FX
    for tb in range(2):
        b = VBS + 2 * tb
        for q in range(5):
            nt = 2 if q < 4 else 1
            zr = Z1 + tb * 18 + q * 4
            o = T + (tb * 5 + q) % 4 * 12
            for t in range(nt):
                a = ACC + ((2 * q + t) * 2 + tb) * 4
                for hh in range(2):
                    z = zr + t * 2 + hh
                    k(f"""
                    v_pk_add_f32 v[{a+2*hh}:{a+2*hh+1}], v[{a+2*hh}:{a+2*hh+1}], v[{b}:{b+1}]
                    v_lshlrev_b32 v{o+4}, 16, v{z}
                    v_and_b32 v{o+5}, 0xffff0000, v{z}
                    v_pk_mul_f32 v[{a+2*hh}:{a+2*hh+1}], v[{a+2*hh}:{a+2*hh+1}], v[{o+4}:{o+5}]
                    v_cvt_pk_bf16_f32 v{o+t*2+hh}, v{a+2*hh}, v{a+2*hh+1}
                    """)
            if q < 4:
                k(f"buffer_store_dwordx4 v[{o}:{o+3}], v{VO2}, s[16:19], s{31+tb} offen offset:{q*1024}")
            else:
                k(f"s_add_u32 s33, s{31+tb}, 4096\nbuffer_store_dwordx2 v[{o}:{o+1}], v{VO2+1}, s[16:19], s33 offen")
    if stamp:
        k(f"""
        s_waitcnt vmcnt(0)
        s_memtime s[62:63]
        s_waitcnt lgkmcnt(0)
        s_sub_u32 s62, s62, s60
        s_cmp_ge_u32 s2, 64
        s_cbranch_scc1 {end}
        s_cmp_lg_u32 s{W}, 0
        s_cbranch_scc1 {end}
        v_mov_b32 v1, s62
        s_lshl_b32 s30, s2, 2
        v_mov_b32 v2, s30
        v_cmp_eq_u32 vcc, 0, v{VL}
        s_and_saveexec_b64 s[30:31], vcc
        global_store_dword v2, v1, s[10:11]
        """)
    k(f"s_branch {end}")
    k("g2_loader:")
    k(f"s_cmp_ge_u32 s{W}, 6\ns_cbranch_scc1 g2_loaderB")
    def loader(tag, n, setup, issue_one, kstep):
        setup()
        k("s_mov_b32 s40, 0\ns_mov_b32 s41, 0\ns_mov_b32 s35, 0")
        def issue():
            if not no_dma:
                for j in range(n): issue_one(j)
            k(f"""
            s_add_u32 s40, s40, {kstep}
            s_add_u32 s41, s41, {SLOT}
            s_cmp_ge_u32 s41, {SLOT*NS}
            s_cselect_b32 s41, 0, s41
            """)
        for _ in range(NS - 1): issue()
        k(f"g2_l{tag}:")
        k(f"s_waitcnt vmcnt({n*(NS-2)})\ns_barrier")
        issue()
        k(f"s_add_u32 s35, s35, 1\ns_cmp_lt_u32 s35, {nstage-(NS-1)}\ns_cbranch_scc1 g2_l{tag}")
        for r in range(NS - 2, -1, -1):
            k(f"s_waitcnt vmcnt({n*r})\ns_barrier")
        k(f"s_branch {end}")
    def setupA():
        k.srd(12, 4, FRAG9, add=WS_Z2)
        k(f"s_sub_u32 s30, s{W}, 4\ns_mul_i32 s30, s30, 9\ns_mul_i32 s31, s{C}, 9\nv_lshlrev_b32 v3, 4, v2")
        for j in range(9):
            k(f"""
            s_add_u32 s32, s30, {j}
            s_lshl_b32 s{44+j}, s32, 10
            s_lshr_b32 s33, s32, 1
            s_add_u32 s33, s33, s31
            s_lshl_b32 s33, s33, 6
            s_and_b32 s32, s32, 1
            s_add_u32 s33, s33, s32
            s_lshl_b32 s33, s33, 10
            v_add_u32 v{10+j}, s33, v3
            """)
    def issueA(j):
        k(f"s_add_u32 m0, s41, s{44+j}\ns_nop 0\nbuffer_load_dwordx4 v{10+j}, s[12:15], s40 offen lds")
    loader("A", 9, setupA, issueA, 2048)
    k("g2_loaderB:")
    def setupB():
        k.srd(12, 6, 2048 * 4096)
        k(f"""
        s_sub_u32 s30, s{W}, 6
        s_lshl_b32 s30, s30, 3            ; gi0
        v_lshrrev_b32 v3, 3, v2
        v_and_b32 v4, 7, v2               ; pos
        v_lshrrev_b32 v5, 4, v2
        v_xor_b32 v4, v4, v5
        v_and_b32 v5, 1, v4
        v_lshlrev_b32 v5, 1, v5
        v_bfe_u32 v6, v4, 1, 1
        v_and_b32 v4, 4, v4
        v_or_b32 v4, v4, v5
        v_or_b32 v4, v4, v6
        v_lshlrev_b32 v4, 4, v4
        v_lshl_add_u32 v4, v3, 12, v4
        v_xor_b32 v5, 64, v4
        s_lshl_b32 s31, s{P}, 19          ; p*128*4096
        """)
        for j in range(8):
            k(f"""
            s_add_u32 s32, s30, {j}
            s_lshl_b32 s33, s32, 10
            s_add_u32 s{44+j}, s33, 18432
            s_lshl_b32 s33, s32, 15
            s_add_u32 s33, s33, s31
            v_add_u32 v{10+j}, s33, v{4 + (j & 1)}
            """)
    def issueB(j):
        k(f"s_add_u32 m0, s41, s{44+j}\ns_nop 0\nbuffer_load_dwordx4 v{10+j}, s[12:15], s40 offen lds")
    loader("B", 8, setupB, issueB, 128)
    k(f"{end}:")
    return k

if __name__ == "__main__":
    opts = dict(a.split("=") for a in sys.argv[2:])
    opts = {a: int(b) for a, b in opts.items()}
    emit([gen_g2(**opts)], sys.argv[1])
```

```python
import re
TRANS = ("v_exp_f32", "v_log_f32", "v_rcp_f32", "v_rsq_f32", "v_sqrt_f32", "v_sin_f32", "v_cos_f32", "v_rcp_iflag_f32")
def regs_of(op):
    op = op.strip()
    op = re.sub(r"^-?(abs\()?\|?", "", op).rstrip(")|")
    m = re.fullmatch(r"([vsa])\[(\d+):(\d+)\]", op)
    if m: return {(m.group(1), i) for i in range(int(m.group(2)), int(m.group(3)) + 1)}
    m = re.fullmatch(r"([vsa])(\d+)", op)
    if m: return {(m.group(1), int(m.group(2)))}
    if op in ("vcc", "vcc_lo", "vcc_hi"): return {("s", "vcc")}
    if op in ("exec", "exec_lo", "exec_hi"): return {("s", "exec")}
    if op == "m0": return {("s", "m0")}
    return set()
class Ins:
    def __init__(self, text):
        self.text = text
        t = text.split(";")[0].strip()
        self.label = t.endswith(":")
        self.mn = "" if self.label or not t else t.split()[0]
        rest = t[len(self.mn):].strip() if self.mn else ""
        ops = []; cur = ""; depth = 0
        for ch in rest:
            if ch == "[": depth += 1
            if ch == "]": depth -= 1
            if ch == "," and depth == 0: ops.append(cur.strip()); cur = ""
            else: cur += ch
        if cur.strip(): ops.append(cur.strip())
        self.mods = ""
        if ops:
            parts = ops[-1].split()
            ops[-1] = parts[0]; self.mods = " ".join(parts[1:])
        self.ops = ops
        mn = self.mn
        base = re.sub(r"_(e32|e64|dpp|sdwa)$", "", mn)
        self.base = base
        self.is_mfma = base.startswith("v_mfma")
        self.is_valu = base.startswith("v_") and not self.is_mfma
        self.is_trans = base in TRANS
        self.is_dpp = mn.endswith("_dpp") or any(x in self.mods for x in ("row_", "quad_perm", "wave_"))
        self.is_perm = base.startswith("v_permlane")
        self.is_rdlane = base in ("v_readfirstlane_b32", "v_readlane_b32")
        self.is_vmem = base.startswith(("buffer_", "global_", "flat_")) and base not in ("buffer_inv", "buffer_wbl2")
        self.is_ds = base.startswith("ds_")
        self.is_salu = base.startswith("s_")
        self.is_branch = base.startswith(("s_cbranch", "s_branch"))
        self.lds_dma = self.is_vmem and (" lds" in " " + self.mods or "load_lds" in base)
        R = [regs_of(o) for o in ops]
        w = set(); r = set()
        if self.is_mfma:
            w = R[0]; self.A = R[1]; self.B = R[2]; self.C = R[3]; r = R[1] | R[2] | R[3]
            self.passes = 8 if "32x32" in base else 4
        elif self.is_valu:
            if base.startswith("v_cmp"):
                w = R[0]; r = set().union(*R[1:])
                if base.startswith("v_cmpx"): w = w | {("s", "exec")}
            elif self.is_perm and "swap" in base:
                w = R[0] | R[1]; r = R[0] | R[1]
            elif base in ("v_add_co_u32", "v_sub_co_u32", "v_subrev_co_u32", "v_addc_co_u32", "v_subb_co_u32", "v_div_scale_f32", "v_mad_u64_u32"):
                w = R[0] | R[1]; r = set().union(*R[2:])
            elif base == "v_nop": pass
            else:
                w = R[0]; r = set().union(*R[1:]) if len(R) > 1 else set()
                if base in ("v_fmac_f32", "v_dot2c_f32_bf16", "v_pk_fmac_f16", "v_writelane_b32") or self.is_dpp or "sdwa" in mn: r = r | R[0]
                if base == "v_cndmask_b32" and len(ops) == 3: r = r | {("s", "vcc")}
        elif self.is_vmem:
            if "store" in base or ("atomic" in base and "sc0" not in self.mods) or self.lds_dma:
                r = set().union(*R)
            else:
                w = R[0]; r = set().union(*R[1:])
            if self.lds_dma: r = r | {("s", "m0")}
            self.wide_store = "store" in base and base.endswith(("x3", "x4"))
            if "store" in base:
                self.sdata = R[0] if base.startswith("buffer_") else R[1]
        elif self.is_ds:
            if base.startswith(("ds_write", "ds_add", "ds_max", "ds_min")) and "rtn" not in base: r = set().union(*R)
            else:
                w = R[0]; r = set().union(*R[1:])
                if "d16" in base: r = r | R[0]
        elif self.is_salu and ops and not self.is_branch:
            if base.startswith(("s_cmp", "s_waitcnt", "s_nop", "s_barrier", "s_setprio", "s_sleep", "s_endpgm", "s_bitcmp")): r = set().union(*R) if R else set()
            else:
                w = R[0]; r = set().union(*R[1:]) if len(R) > 1 else set()
                if "saveexec" in base: w = w | {("s", "exec")}
        self.w = w; self.r = r
        self.states = 1
        if base == "s_nop": self.states = int(ops[0], 0) + 1
        if self.label or not mn: self.states = 0

def need(prev, cur):
    n = 0
    vw = {x for x in prev.w if x[0] in "va"}; sw = {x for x in prev.w if x[0] == "s"}
    if prev.is_valu:
        if cur.is_mfma and vw & cur.r: n = max(n, 2)
        if prev.is_trans and cur.is_valu and not cur.is_trans and vw & cur.r: n = max(n, 1)
        if prev.is_trans and cur.is_trans and vw & cur.r: n = max(n, 1)
        if cur.is_valu and (cur.is_dpp or cur.is_perm) and vw & cur.r: n = max(n, 2)
        if cur.is_rdlane and vw & cur.r: n = max(n, 1)
        if sw:
            if cur.is_valu and sw & cur.r: n = max(n, 4 if cur.base in ("v_readlane_b32", "v_writelane_b32") else 2)
            if cur.is_vmem and sw & cur.r: n = max(n, 5)
            if cur.is_salu and sw & cur.r: n = max(n, 1)
            if ("s", "exec") in sw and (cur.is_mfma or cur.is_dpp or cur.is_perm or cur.is_rdlane): n = max(n, 5)
        if "sdwa" in prev.mn and cur.is_valu and vw & (cur.r | cur.w): n = max(n, 1)
    if prev.is_mfma:
        p4 = prev.passes == 4
        if cur.is_mfma:
            if prev.w & (cur.A | cur.B): n = max(n, 8 if p4 else 12)
            if prev.w & cur.C and not (prev.w == cur.C and prev.passes == cur.passes): n = max(n, 6 if p4 else 10)
            if prev.w & cur.w and not (prev.w == cur.C): n = max(n, 8 if p4 else 12)
        elif cur.is_valu or cur.is_vmem or cur.is_ds:
            if prev.w & (cur.r | cur.w): n = max(n, 8 if p4 else 12)
            if cur.is_valu and prev.C & cur.w: n = max(n, 3 if p4 else 7)
    if prev.is_salu and ("s", "m0") in prev.w and cur.lds_dma: n = max(n, 1)
    if prev.is_vmem and getattr(prev, "wide_store", False) and (cur.w & prev.sdata): n = max(n, 2 if cur.is_valu else 1)
    return n

def fix(lines, verbose=False):
    ins = [Ins(l) for l in lines]
    labels = {i.text.strip()[:-1]: idx for idx, i in enumerate(ins) if i.label}
    out = []; hist = []
    added = 0
    def deficit(hist, cur, extra=0):
        d = 0; dist = extra
        for p in reversed(hist):
            nn = need(p, cur)
            if nn > dist: d = max(d, nn - dist)
            dist += p.states
            if dist >= 20: break
        return d
    def pad(d):
        nonlocal added
        while d > 0:
            n = min(d, 16); i = Ins(f"    s_nop {n-1}"); out.append(i); hist.append(i); d -= n; added += 1
    for idx, cur in enumerate(ins):
        if cur.label or not cur.mn:
            out.append(cur); continue
        pad(deficit(hist, cur))
        if cur.is_branch:
            tgt = labels.get(cur.ops[0])
            if tgt is not None:
                dist = 1; j = tgt; d = 0
                while j < len(ins) and dist < 20:
                    c = ins[j]; j += 1
                    if c.label or not c.mn: continue
                    d = max(d, deficit(hist, c, dist))
                    dist += c.states
                    if c.base in ("s_branch", "s_endpgm"): break
                pad(d)
        out.append(cur); hist.append(cur)
        if cur.base == "s_branch": hist = []
    if verbose: print("hazard nops added:", added)
    return [i.text for i in out]
```

```python
import sys; sys.path.insert(0, "dev")
from asmgen import *
from layout import *

def dpp_sum16(k, regs):
    for sh in (8, 4, 2, 1):
        for r in regs:
            k(f"v_add_f32_dpp v{r}, v{r}, v{r} row_ror:{sh} row_mask:0xf bank_mask:0xf")

def bf16_round(k, r):
    k(f"v_cvt_pk_bf16_f32 v{r}, v{r}, v{r}\nv_lshlrev_b32 v{r}, 16, v{r}")

def gen_k0():
    k = Kern("k0_kernel", 256, 256, 24576)
    k.vg = 96; k.acc_off = 96; k.sg = 48
    k(f"""
    s_cmp_ge_u32 s2, 256
    s_cbranch_scc1 k0_end
    s_load_dwordx2 s[4:5], s[0:1], {ARG['ws']}
    s_load_dwordx2 s[6:7], s[0:1], {ARG['x']}
    s_load_dwordx2 s[8:9], s[0:1], {ARG['w_out']}
    v_lshrrev_b32 v1, 6, v0
    v_and_b32 v2, 63, v0
    v_readfirstlane_b32 s22, v1
    s_cmp_ge_u32 s2, 128
    s_waitcnt lgkmcnt(0)
    s_cbranch_scc1 k0_repack
    """)
    k.srd(12, 6, XBYTES)
    k.srd(16, 4, XBYTES, add=WS_XN)
    k.srd(24, 4, XBYTES, add=WS_XT)
    k(f"""
    v_lshrrev_b32 v3, 4, v0
    v_and_b32 v4, 15, v0             ; e
    s_lshl_b32 s30, s2, 4
    v_add_u32 v5, s30, v3
    v_mul_u32_u24 v5, 1152, v5
    v_lshl_add_u32 v5, v4, 3, v5
    v_mul_u32_u24 v6, 1216, v3
    v_lshl_add_u32 v6, v4, 3, v6
    """)
    RAW = 10; X = 30
    for i in range(9):
        k(f"buffer_load_dwordx2 v[{RAW+2*i}:{RAW+2*i+1}], v5, s[12:15], 0 offen offset:{i*128}")
    k(f"""
    s_cmp_lg_u32 s2, 0
    s_cbranch_scc1 k0_nz
    """)
    k.srd(32, 4, 4096, add=WS_FL)
    k("""
    v_lshlrev_b32 v7, 2, v0
    v_mov_b32 v8, 0
    buffer_store_dword v8, v7, s[32:35], 0 offen
    buffer_store_dword v8, v7, s[32:35], 0 offen offset:1024
    buffer_store_dword v8, v7, s[32:35], 0 offen offset:2048
    buffer_store_dword v8, v7, s[32:35], 0 offen offset:3072
    k0_nz:
    s_waitcnt vmcnt(0)
    """)
    for i in range(18):
        k(f"v_lshlrev_b32 v{X+2*i}, 16, v{RAW+i}\nv_and_b32 v{X+2*i+1}, 0xffff0000, v{RAW+i}")
    S = 70
    k(f"v_pk_add_f32 v[{S}:{S+1}], v[{X}:{X+1}], v[{X+2}:{X+3}]")
    for i in range(2, 18):
        k(f"v_pk_add_f32 v[{S}:{S+1}], v[{S}:{S+1}], v[{X+2*i}:{X+2*i+1}]")
    k(f"v_add_f32 v{S}, v{S}, v{S+1}")
    dpp_sum16(k, [S])
    k(f"""
    v_mul_f32 v{S}, {1.0/576!r}, v{S}
    v_mov_b32 v{S+1}, v{S}
    v_mov_b32 v{S+2}, 0
    v_mov_b32 v{S+3}, 0
    """)
    for i in range(18):
        k(f"""
        v_pk_add_f32 v[{S+4}:{S+5}], v[{X+2*i}:{X+2*i+1}], v[{S}:{S+1}] neg_lo:[0,1] neg_hi:[0,1]
        v_pk_fma_f32 v[{S+2}:{S+3}], v[{S+4}:{S+5}], v[{S+4}:{S+5}], v[{S+2}:{S+3}]
        """)
    k(f"v_add_f32 v{S+2}, v{S+2}, v{S+3}")
    dpp_sum16(k, [S + 2])
    k(f"v_mul_f32 v{S+2}, {1.0/576!r}, v{S+2}")
    bf16_round(k, S + 2)
    k(f"v_add_f32 v{S+2}, {1e-5!r}, v{S+2}")
    bf16_round(k, S + 2)
    k(f"v_sqrt_f32 v{S+2}, v{S+2}")
    bf16_round(k, S + 2)
    k(f"v_rcp_f32 v{S+2}, v{S+2}")
    bf16_round(k, S)
    k(f"v_mov_b32 v{S+1}, v{S}\nv_mov_b32 v{S+3}, v{S+2}")
    for i in range(18):
        a = X + 2 * i
        k(f"""
        v_pk_add_f32 v[{a}:{a+1}], v[{a}:{a+1}], v[{S}:{S+1}] neg_lo:[0,1] neg_hi:[0,1]
        v_cvt_pk_bf16_f32 v{S+6}, v{a}, v{a+1}
        v_lshlrev_b32 v{a}, 16, v{S+6}
        v_and_b32 v{a+1}, 0xffff0000, v{S+6}
        v_pk_mul_f32 v[{a}:{a+1}], v[{a}:{a+1}], v[{S+2}:{S+3}]
        v_cvt_pk_bf16_f32 v{RAW+i}, v{a}, v{a+1}
        """)
    for i in range(9):
        k(f"buffer_store_dwordx2 v[{RAW+2*i}:{RAW+2*i+1}], v5, s[16:19], 0 offen offset:{i*128}")
        k(f"ds_write_b64 v6, v[{RAW+2*i}:{RAW+2*i+1}] offset:{i*128}")
    k(f"""
    s_waitcnt lgkmcnt(0)
    s_barrier
    v_bfe_u32 v3, v2, 2, 2           ; r
    v_and_b32 v4, 3, v2              ; cc
    v_lshrrev_b32 v7, 4, v2          ; group
    v_mul_u32_u24 v3, 1216, v3
    v_lshl_add_u32 v3, v4, 3, v3
    v_lshl_add_u32 v3, v7, 5, v3     ; + group*32B
    s_lshl_b32 s31, s22, 7           ; wave*128B (64 d)
    v_add_u32 v3, s31, v3
    s_mul_i32 s30, s2, {576*32}
    s_lshl_b32 s31, s22, 11          ; wave*64*32
    s_add_u32 s30, s30, s31
    v_lshlrev_b32 v4, 5, v2
    v_add_u32 v4, s30, v4
    """)
    def tpass(ps):
        b = X + 8 * ps
        for rd in range(4):
            k(f"ds_read_b64_tr_b16 v[{b+2*rd}:{b+2*rd+1}], v3 offset:{rd*4*1216 + ps*512}")
    def tstore(ps):
        b = X + 8 * ps
        k(f"s_mov_b32 s31, {ps*256*32}")
        k(f"buffer_store_dwordx4 v[{b}:{b+3}], v4, s[24:27], s31 offen")
        k(f"buffer_store_dwordx4 v[{b+4}:{b+7}], v4, s[24:27], s31 offen offset:16")
    tpass(0); tpass(1)
    k("s_waitcnt lgkmcnt(0)")
    tstore(0); tstore(1)
    k("s_cmp_lg_u32 s22, 0\ns_cbranch_scc1 k0_end")
    tpass(2)
    k("s_waitcnt lgkmcnt(0)")
    tstore(2)
    k("s_branch k0_end")
    k("k0_repack:")
    k.srd(12, 8, WOBYTES)
    k.srd(16, 4, WOBYTES, add=WS_WO)
    k(f"""
    s_sub_u32 s30, s2, 128
    s_lshr_b32 s31, s30, 4           ; e
    s_and_b32 s32, s30, 15           ; c'
    s_mul_i32 s33, s32, {144*1152}
    s_mul_i32 s34, s31, 144
    s_add_u32 s33, s33, s34
    s_mul_i32 s35, s30, 20736
    s_mov_b32 s36, {(1 << 16) // 9 + 1}
    """)
    for i in range(6):
        k(f"""
        v_add_u32 v3, {256*i}, v0
        v_mul_lo_u32 v4, v3, s36
        v_lshrrev_b32 v4, 16, v4     ; row
        v_mul_u32_u24 v5, 9, v4
        v_sub_u32 v5, v3, v5         ; cu
        v_mul_u32_u24 v6, 1152, v4
        v_lshl_add_u32 v6, v5, 4, v6
        v_mul_u32_u24 v{40+i}, 160, v4
        v_lshl_add_u32 v{40+i}, v5, 4, v{40+i}
        """)
        if i == 5:
            k("v_cmp_gt_u32 vcc, 16, v0\ns_and_saveexec_b64 s[38:39], vcc")
        k(f"buffer_load_dwordx4 v[{10+4*i}:{13+4*i}], v6, s[12:15], s33 offen")
        if i == 5: k("s_mov_b64 exec, s[38:39]")
    k("s_waitcnt vmcnt(0)")
    for i in range(6):
        if i == 5: k("s_and_saveexec_b64 s[38:39], vcc")
        k(f"ds_write_b128 v{40+i}, v[{10+4*i}:{13+4*i}]")
        if i == 5: k("s_mov_b64 exec, s[38:39]")
    k(f"""
    s_waitcnt lgkmcnt(0)
    s_barrier
    v_bfe_u32 v3, v2, 2, 2           ; r
    v_and_b32 v4, 3, v2              ; cc
    v_lshrrev_b32 v7, 4, v2          ; g
    v_lshl_add_u32 v3, v7, 2, v3     ; row = 4g + r
    v_mul_u32_u24 v3, 160, v3
    v_lshl_add_u32 v3, v4, 3, v3
    s_mul_i32 s30, s22, {32*160}
    v_add_u32 v5, s30, v3            ; q = wave
    s_lshl_b32 s30, s22, 5
    v_add_u32 v6, s30, v3
    """)
    for dt in range(5):
        k(f"ds_read_b64_tr_b16 v[{10+4*dt}:{11+4*dt}], v5 offset:{dt*32}")
        k(f"ds_read_b64_tr_b16 v[{12+4*dt}:{13+4*dt}], v5 offset:{dt*32 + 16*160}")
    k(f"ds_read_b64_tr_b16 v[30:31], v6 offset:{128*160}")
    k(f"ds_read_b64_tr_b16 v[32:33], v3 offset:{128*160 + 4*32}")
    k(f"""
    v_lshlrev_b32 v8, 4, v2          ; lane*16
    v_lshlrev_b32 v9, 3, v2          ; lane*8
    v_and_b32 v34, 7, v2
    v_lshl_add_u32 v34, v7, 3, v34
    v_lshlrev_b32 v35, 4, v34
    v_lshlrev_b32 v34, 3, v34
    v_and_b32 v36, 8, v2
    v_cmp_eq_u32 vcc, 0, v36
    s_mul_i32 s30, s22, 4608
    s_add_u32 s30, s30, s35
    s_lshl_b32 s31, s22, 9
    s_add_u32 s31, s31, s35
    s_add_u32 s31, s31, 18432
    s_add_u32 s32, s35, {18432 + 2048}
    s_add_u32 s33, s30, 4096
    s_waitcnt lgkmcnt(0)
    """)
    for dt in range(4):
        k(f"buffer_store_dwordx4 v[{10+4*dt}:{13+4*dt}], v8, s[16:19], s30 offen offset:{dt*1024}")
    k("buffer_store_dwordx2 v[30:31], v9, s[16:19], s31 offen")
    k("s_and_saveexec_b64 s[38:39], vcc")
    k("buffer_store_dwordx4 v[26:29], v35, s[16:19], s33 offen")
    k("s_cmp_lg_u32 s22, 0\ns_cbranch_scc1 k0_end")
    k("buffer_store_dwordx2 v[32:33], v34, s[16:19], s32 offen")
    k("k0_end:")
    return k

if __name__ == "__main__":
    emit([gen_k0()], sys.argv[1])
```

```python
import sys, math; sys.path.insert(0, "dev")
from asmgen import *
from layout import *
from g2 import wg_map, interleave
from k0 import dpp_sum16, bf16_round
import struct
def fbits(x): return "0x%08x" % struct.unpack("<I", struct.pack("<f", x))[0]
C1 = -2.0 * math.sqrt(2.0 / math.pi) * math.log2(math.e)
C2 = C1 * 0.044715

def gelu_group(k, pairs, T, SC2, VC1, VONE):
    n = len(pairs)
    for i, a in enumerate(pairs): k(f"v_pk_mul_f32 v[{T+2*i}:{T+2*i+1}], v[{a}:{a+1}], v[{a}:{a+1}]")
    for i, a in enumerate(pairs): k(f"v_pk_fma_f32 v[{T+2*i}:{T+2*i+1}], v[{T+2*i}:{T+2*i+1}], s[{SC2}:{SC2+1}], v[{VC1}:{VC1+1}]")
    for i, a in enumerate(pairs): k(f"v_pk_mul_f32 v[{T+2*i}:{T+2*i+1}], v[{T+2*i}:{T+2*i+1}], v[{a}:{a+1}]")
    for i in range(2 * n): k(f"v_exp_f32 v{T+i}, v{T+i}")
    for i, a in enumerate(pairs): k(f"v_pk_add_f32 v[{T+2*i}:{T+2*i+1}], v[{T+2*i}:{T+2*i+1}], v[{VONE}:{VONE+1}]")
    for i in range(2 * n): k(f"v_rcp_f32 v{T+i}, v{T+i}")
    for i, a in enumerate(pairs): k(f"v_pk_mul_f32 v[{a}:{a+1}], v[{a}:{a+1}], v[{T+2*i}:{T+2*i+1}]")

def gen_k1(stamp=False):
    SLOT = 53248; NS = 3; NST = 9
    SCR = NS * SLOT
    k = Kern("k1_kernel", 256, 512, SCR + 1024)
    end = "k1_end"
    P, C, W = 20, 21, 22
    k(f"""
    s_cmp_ge_u32 s2, 256
    s_cbranch_scc1 {end}
    s_load_dwordx2 s[4:5], s[0:1], {ARG['ws']}
    s_load_dwordx2 s[6:7], s[0:1], {ARG['w_in']}
    s_load_dwordx2 s[10:11], s[0:1], {ARG['dbg']}
    v_lshrrev_b32 v1, 6, v0
    v_and_b32 v2, 63, v0
    v_readfirstlane_b32 s{W}, v1
    """)
    wg_map(k, P, C)
    if stamp: k("s_memtime s[60:61]")
    k("s_waitcnt lgkmcnt(0)")
    k.srd(12, 4, XBYTES, add=WS_XN)
    k.srd(16, 6, 576 * 9216)
    ACC = 0; FX = 72; FY = 116
    VD = 160
    VX0, VX1, VWe, VWo = 168, 169, 170, 171
    VX0b, VX1b, VWeb, VWob = 172, 173, 174, 175
    VL, VTID = 176, 177
    T = 180
    k(f"v_mov_b32 v{VL}, v2\nv_mov_b32 v{VTID}, v0")
    k(f"""
    v_lshrrev_b32 v3, 3, v2
    v_and_b32 v4, 7, v2
    v_lshrrev_b32 v5, 4, v2
    v_xor_b32 v4, v4, v5
    v_mul_u32_u24 v3, 1152, v3
    v_lshl_add_u32 v3, v4, 4, v3
    s_lshl_b32 s30, s{P}, 7
    s_lshl_b32 s31, s{W}, 4
    s_add_u32 s30, s30, s31
    s_mul_i32 s30, s30, 1152
    v_add_u32 v{VD}, s30, v3
    v_xor_b32 v3, 64, v3
    s_add_u32 s30, s30, {8*1152}
    v_add_u32 v{VD+1}, s30, v3
    s_lshl_b32 s44, s{W}, 11
    s_add_u32 s45, s44, 1024
    """)
    k(f"""
    s_mul_i32 s30, s{W}, 5
    s_lshl_b32 s31, s{W}, 2
    s_add_u32 s31, s31, 4
    s_cmp_lt_u32 s{W}, 4
    s_cselect_b32 s30, s30, s31      ; n0
    s_mul_i32 s32, s{C}, 576
    s_mov_b32 s33, 1821
    """)
    for j in range(5):
        k(f"""
        s_add_u32 s31, s30, {j}
        s_lshl_b32 s{46+j}, s31, 10
        s_add_u32 s{46+j}, s{46+j}, 16384
        s_lshl_b32 s31, s31, 6
        v_add_u32 v3, s31, v2
        v_mul_lo_u32 v4, v3, s33
        v_lshrrev_b32 v4, 16, v4         ; pos
        v_mul_u32_u24 v5, 36, v4
        v_sub_u32 v5, v3, v5             ; cu
        v_lshrrev_b32 v6, 2, v4
        v_and_b32 v6, 2, v6              ; b<<1
        v_xor_b32 v5, v5, v6
        v_mul_u32_u24 v4, 9216, v4
        v_lshl_add_u32 v4, v5, 4, v4
        v_add_u32 v{VD+2+j}, s32, v4
        """)
    k(f"""
    s_cmp_lt_u32 s{W}, 4
    s_cbranch_scc1 k1_nodummy
    v_mov_b32 v{VD+6}, 0x7ffffff0
    k1_nodummy:
    s_cselect_b32 s51, 1, 0
    """)
    k(f"""
    s_and_b32 s30, s{W}, 3           ; tq
    s_lshr_b32 s31, s{W}, 2          ; h
    v_and_b32 v3, 15, v2             ; j
    v_lshrrev_b32 v4, 4, v2          ; g
    v_lshrrev_b32 v5, 1, v3
    v_xor_b32 v5, v5, v4
    v_lshlrev_b32 v5, 4, v5
    v_lshl_add_u32 v5, v3, 7, v5
    s_lshl_b32 s32, s30, 12
    v_add_u32 v{VX0b}, s32, v5
    v_xor_b32 v{VX1b}, 64, v{VX0b}
    v_bfe_u32 v5, v2, 2, 2           ; r
    v_lshl_add_u32 v5, v4, 3, v5     ; 8g + r
    v_mul_u32_u24 v5, 576, v5
    v_and_b32 v6, 3, v2
    v_lshl_add_u32 v5, v6, 3, v5
    s_mul_i32 s32, s31, 288
    s_add_u32 s32, s32, 16384
    v_add_u32 v5, s32, v5
    v_and_b32 v6, 1, v4
    v_lshlrev_b32 v6, 5, v6          ; (g&1)*32
    v_sub_u32 v7, 0, v6
    s_cmp_eq_u32 s31, 0
    s_cselect_b64 vcc, -1, 0
    v_cndmask_b32 v8, v7, v6, vcc    ; h==0 ? +32b : -32b
    v_add_u32 v{VWeb}, v5, v8
    v_sub_u32 v{VWob}, v5, v8
    v_mov_b32 v{VX0}, v{VX0b}
    v_mov_b32 v{VX1}, v{VX1b}
    v_mov_b32 v{VWe}, v{VWeb}
    v_mov_b32 v{VWo}, v{VWob}
    s_mov_b32 s40, 0                 ; A soffset
    s_mov_b32 s41, 0
    s_mov_b32 s42, 0                 ; B soffset
    s_mov_b32 s34, 0
    """)
    def dma_list():
        L = []
        for j in range(2):
            L.append(f"s_add_u32 m0, s41, s{44+j}\nbuffer_load_dwordx4 v{VD+j}, s[12:15], s40 offen lds")
        for j in range(4):
            L.append(f"s_add_u32 m0, s41, s{46+j}\nbuffer_load_dwordx4 v{VD+2+j}, s[16:19], s42 offen lds")
        L.append(f"s_add_u32 s52, s41, s50\ns_cmp_eq_u32 s51, 1\ns_cselect_b32 m0, s52, {SCR}\nbuffer_load_dwordx4 v{VD+6}, s[16:19], s42 offen lds")
        L.append(f"s_add_u32 s40, s40, 128\ns_add_u32 s42, s42, {64*9216}\ns_add_u32 s41, s41, {SLOT}\ns_cmp_ge_u32 s41, {SLOT*NS}\ns_cselect_b32 s41, 0, s41")
        return L
    k("\n".join(dma_list())); k("\n".join(dma_list()))
    for i in range(72): k(f"v_mov_b32 v{ACC+i}, 0")
    def reads(F, half):
        vx = VX0 if half == 0 else VX1
        r = [f"ds_read_b128 v[{F+4*tb}:{F+4*tb+3}], v{vx} offset:{tb*2048}" for tb in range(2)]
        for i in range(9):
            vw = VWe if i % 2 == 0 else VWo
            for rd in range(2):
                b = F + 8 + 4 * i + 2 * rd
                r.append(f"ds_read_b64_tr_b16 v[{b}:{b+1}], v{vw} offset:{half*32*576 + rd*4*576 + i*32}")
        return r
    def mfmas(F, z2):
        out = []
        for i in range(9):
            for tb in range(2):
                a = ACC + (i * 2 + tb) * 4
                wf = f"v[{F+8+4*i}:{F+8+4*i+3}]"; xf = f"v[{F+4*tb}:{F+4*tb+3}]"
                A, B = (xf, wf) if z2 else (wf, xf)
                out.append(f"v_mfma_f32_16x16x32_bf16 v[{a}:{a+3}], {A}, {B}, v[{a}:{a+3}]")
        return out
    adv = [f"s_add_u32 s34, s34, {SLOT}", f"s_cmp_ge_u32 s34, {SLOT*NS}", "s_cselect_b32 s34, 0, s34",
           f"v_add_u32 v{VX0}, s34, v{VX0b}", f"v_add_u32 v{VX1}, s34, v{VX1b}", f"v_add_u32 v{VWe}, s34, v{VWeb}", f"v_add_u32 v{VWo}, s34, v{VWob}"]
    def mix(mf, other):
        out = []; n = len(mf); m = len(other); oi = 0
        for i, x in enumerate(mf):
            out.append(x)
            want = (i + 1) * m // n
            while oi < want: out.append(other[oi]); oi += 1
        return out + other[oi:]
    def mainloop(tag, z2):
        k("s_waitcnt vmcnt(7)\ns_barrier")
        k("\n".join(reads(FX, 0) + dma_list()))
        k("s_waitcnt lgkmcnt(0)")
        k("\n".join(mix(mfmas(FX, z2), reads(FY, 1) + adv)))
        k("s_mov_b32 s35, 1\ns_waitcnt lgkmcnt(0)")
        k(f"k1_loop{tag}:")
        k("s_waitcnt vmcnt(7)\ns_barrier")
        k("\n".join(mix(mfmas(FY, z2), reads(FX, 0) + dma_list())))
        k("s_waitcnt lgkmcnt(0)")
        k("\n".join(mix(mfmas(FX, z2), reads(FY, 1) + adv + ["s_add_u32 s35, s35, 1"])))
        k(f"s_cmp_lt_u32 s35, {NST-2}\ns_waitcnt lgkmcnt(0)\ns_cbranch_scc1 k1_loop{tag}")
        for r in (7, 0):
            k(f"s_waitcnt vmcnt({r})\ns_barrier")
            k("\n".join(mix(mfmas(FY, z2), reads(FX, 0))))
            k("s_waitcnt lgkmcnt(0)")
            k("\n".join(mix(mfmas(FX, z2), reads(FY, 1) + adv)))
            k("s_waitcnt lgkmcnt(0)")
        k("\n".join(mfmas(FY, z2)))
    VC1 = 178 + 40; VONE = VC1 + 2
    consts = f"""
    s_mov_b32 s56, {fbits(C2)}
    s_mov_b32 s57, {fbits(C2)}
    v_mov_b32 v{VC1}, {fbits(C1)}
    v_mov_b32 v{VC1+1}, {fbits(C1)}
    v_mov_b32 v{VONE}, 1.0
    v_mov_b32 v{VONE+1}, 1.0
    s_and_b32 s30, s{W}, 3
    s_lshr_b32 s31, s{W}, 2
    v_lshlrev_b32 v{VD}, 4, v{VL}
    v_lshlrev_b32 v{VD+1}, 3, v{VL}
    """
    k(f"s_cmp_ge_u32 s{C}, 8\ns_cbranch_scc1 k1_z2")
    mainloop("a", False)
    k(consts)
    k.srd(24, 4, FRAG9, add=WS_Z1)
    k(f"""
    s_lshl_b32 s32, s{P}, 3
    s_lshl_b32 s33, s30, 1
    s_add_u32 s32, s32, s33          ; tt0
    s_lshl_b32 s32, s32, 4
    s_lshl_b32 s33, s{C}, 1
    s_add_u32 s33, s33, s31          ; c'
    s_add_u32 s32, s32, s33
    s_mul_i32 s32, s32, 4608
    s_add_u32 s33, s32, {16*4608}
    """)
    for tb in range(2):
        for q in range(5):
            nt = 2 if q < 4 else 1
            pairs = []
            for t in range(nt):
                a = ACC + ((2 * q + t) * 2 + tb) * 4
                pairs += [a, a + 2]
            gelu_group(k, pairs, T, 56, VC1, VONE)
            o = FX + (tb * 5 + q) % 4 * 4
            for i, a in enumerate(pairs): k(f"v_cvt_pk_bf16_f32 v{o+i}, v{a}, v{a+1}")
            if q < 4: k(f"buffer_store_dwordx4 v[{o}:{o+3}], v{VD}, s[24:27], s{32+tb} offen offset:{q*1024}")
            else: k(f"s_add_u32 s36, s{32+tb}, 4096\nbuffer_store_dwordx2 v[{o}:{o+1}], v{VD+1}, s[24:27], s36 offen")
    k("s_branch k1_fin")
    k("k1_z2:")
    mainloop("b", True)
    k(consts)
    SU = FX; SQ = FX + 8
    for i in range(9):
        pairs = [ACC + (i * 2) * 4, ACC + (i * 2) * 4 + 2, ACC + (i * 2 + 1) * 4, ACC + (i * 2 + 1) * 4 + 2]
        gelu_group(k, pairs, T, 56, VC1, VONE)
        for n, a in enumerate(pairs):
            if i == 0:
                k(f"v_pk_mul_f32 v[{SQ+2*n}:{SQ+2*n+1}], v[{a}:{a+1}], v[{a}:{a+1}]\nv_mov_b32 v{SU+2*n}, v{a}\nv_mov_b32 v{SU+2*n+1}, v{a+1}")
            else:
                k(f"v_pk_fma_f32 v[{SQ+2*n}:{SQ+2*n+1}], v[{a}:{a+1}], v[{a}:{a+1}], v[{SQ+2*n}:{SQ+2*n+1}]\nv_pk_add_f32 v[{SU+2*n}:{SU+2*n+1}], v[{SU+2*n}:{SU+2*n+1}], v[{a}:{a+1}]")
    dpp_sum16(k, list(range(SU, SU + 16)))
    k(f"""
    s_barrier
    v_lshrrev_b32 v{T}, 4, v{VL}
    v_lshlrev_b32 v{T}, 4, v{T}      ; g*16 bytes
    s_lshl_b32 s32, s31, 10          ; h*1024
    s_lshl_b32 s33, s30, 7           ; tq*32*4
    s_add_u32 s32, s32, s33
    v_add_u32 v{T}, s32, v{T}
    v_and_b32 v{T+1}, 15, v{VL}
    v_cmp_eq_u32 vcc, 0, v{T+1}
    s_and_saveexec_b64 s[38:39], vcc
    ds_write_b128 v{T}, v[{SU}:{SU+3}]
    ds_write_b128 v{T}, v[{SU+4}:{SU+7}] offset:64
    ds_write_b128 v{T}, v[{SQ}:{SQ+3}] offset:512
    ds_write_b128 v{T}, v[{SQ+4}:{SQ+7}] offset:576
    s_mov_b64 exec, s[38:39]
    s_waitcnt lgkmcnt(0)
    s_barrier
    s_cmp_lg_u32 s{W}, 0
    s_cbranch_scc1 k1_wait3
    """)
    k.srd(24, 4, 131072, add=WS_ST)
    k(f"""
    s_add_u32 s28, s4, {WS_FL}
    s_addc_u32 s29, s5, 0
    v_lshlrev_b32 v{T}, 3, v{VL}
    ds_read_b64 v[{T+2}:{T+3}], v{T}
    ds_read_b64 v[{T+4}:{T+5}], v{T} offset:512
    ds_read_b64 v[{T+6}:{T+7}], v{T} offset:1024
    ds_read_b64 v[{T+8}:{T+9}], v{T} offset:1536
    s_lshl_b32 s32, s{P}, 13
    s_sub_u32 s33, s{C}, 8
    s_lshl_b32 s33, s33, 10
    s_add_u32 s33, s33, s32
    s_waitcnt lgkmcnt(0)
    v_pk_add_f32 v[{T+2}:{T+3}], v[{T+2}:{T+3}], v[{T+6}:{T+7}]
    v_pk_add_f32 v[{T+4}:{T+5}], v[{T+4}:{T+5}], v[{T+8}:{T+9}]
    buffer_store_dwordx4 v[{T+2}:{T+5}], v{VD}, s[24:27], s33 offen sc1
    s_lshl_b32 s33, s{P}, 7
    v_mov_b32 v{T+6}, s33
    v_mov_b32 v{T+7}, 1
    v_cmp_eq_u32 vcc, 0, v{VL}
    s_waitcnt vmcnt(0)
    s_and_saveexec_b64 s[38:39], vcc
    global_atomic_add v{T+6}, v{T+7}, s[28:29] sc1
    s_mov_b32 s36, 0
    k1_poll:
    global_load_dword v{T+7}, v{T+6}, s[28:29] sc1
    s_waitcnt vmcnt(0)
    v_readfirstlane_b32 s37, v{T+7}
    s_add_u32 s36, s36, 1
    s_cmp_ge_u32 s37, 8
    s_cbranch_scc1 k1_polled
    s_cmp_lt_u32 s36, 0x100000
    s_cbranch_scc1 k1_poll
    k1_polled:
    s_mov_b64 exec, s[38:39]
    """)
    Q = FY
    for c2 in range(8):
        k(f"s_add_u32 s33, s32, {c2*1024}\nbuffer_load_dwordx4 v[{Q+4*c2}:{Q+3+4*c2}], v{VD}, s[24:27], s33 offen sc1")
    k("s_waitcnt vmcnt(0)")
    for c2 in range(1, 8):
        k(f"v_pk_add_f32 v[{Q}:{Q+1}], v[{Q}:{Q+1}], v[{Q+4*c2}:{Q+1+4*c2}]\nv_pk_add_f32 v[{Q+2}:{Q+3}], v[{Q+2}:{Q+3}], v[{Q+2+4*c2}:{Q+3+4*c2}]")
    for e in range(2):
        m, v = Q + e, Q + 2 + e
        k(f"""
        v_mul_f32 v{m}, {1.0/2304!r}, v{m}
        v_mul_f32 v{v}, {1.0/2304!r}, v{v}
        v_fma_f32 v{v}, -v{m}, v{m}, v{v}
        v_max_f32 v{v}, 0, v{v}
        """)
        bf16_round(k, v)
        k(f"v_add_f32 v{v}, {1e-5!r}, v{v}")
        bf16_round(k, v)
        k(f"v_sqrt_f32 v{v}, v{v}")
        bf16_round(k, v)
        k(f"v_rcp_f32 v{v}, v{v}")
        bf16_round(k, m)
        k(f"v_mul_f32 v{m}, -v{m}, v{v}")
    k(f"""
    ds_write_b64 v{T}, v[{Q}:{Q+1}] offset:2048
    ds_write_b64 v{T}, v[{Q+2}:{Q+3}] offset:2560
    s_waitcnt lgkmcnt(0)
    k1_wait3:
    s_barrier
    v_lshrrev_b32 v{T}, 4, v{VL}
    v_lshlrev_b32 v{T}, 4, v{T}
    s_lshl_b32 s33, s30, 7
    v_add_u32 v{T}, s33, v{T}
    ds_read_b128 v[{SU}:{SU+3}], v{T} offset:2048
    ds_read_b128 v[{SU+4}:{SU+7}], v{T} offset:{2048+64}
    ds_read_b128 v[{SQ}:{SQ+3}], v{T} offset:2560
    ds_read_b128 v[{SQ+4}:{SQ+7}], v{T} offset:{2560+64}
    """)
    k.srd(24, 4, FRAG9, add=WS_Z2)
    k(f"""
    s_sub_u32 s32, s{C}, 8
    s_mul_i32 s32, s32, 18
    s_mul_i32 s33, s31, 9
    s_add_u32 s32, s32, s33          ; ft0
    s_lshl_b32 s32, s32, 6
    s_lshl_b32 s33, s{P}, 2
    s_add_u32 s33, s33, s30          ; kb
    s_add_u32 s32, s32, s33
    s_lshl_b32 s32, s32, 10
    s_waitcnt lgkmcnt(0)
    """)
    for i in range(9):
        o = FY + (i % 4) * 4
        for sb in range(2):
            a = ACC + (i * 2 + sb) * 4
            for hh in range(2):
                k(f"v_pk_fma_f32 v[{a+2*hh}:{a+2*hh+1}], v[{a+2*hh}:{a+2*hh+1}], v[{SQ+4*sb+2*hh}:{SQ+4*sb+2*hh+1}], v[{SU+4*sb+2*hh}:{SU+4*sb+2*hh+1}]")
            for hh in range(2):
                k(f"v_cvt_pk_bf16_f32 v{o+2*sb+hh}, v{a+2*hh}, v{a+2*hh+1}")
        k(f"v_permlane16_swap_b32 v{o}, v{o+2}\nv_permlane16_swap_b32 v{o+1}, v{o+3}")
        k(f"buffer_store_dwordx4 v[{o}:{o+3}], v{VD}, s[24:27], s32 offen\ns_add_u32 s32, s32, 65536")
    k("k1_fin:")
    if stamp:
        k(f"""
        s_waitcnt vmcnt(0)
        s_memtime s[62:63]
        s_waitcnt lgkmcnt(0)
        s_sub_u32 s62, s62, s60
        s_cmp_ge_u32 s2, 64
        s_cbranch_scc1 {end}
        s_cmp_lg_u32 s{W}, 0
        s_cbranch_scc1 {end}
        v_mov_b32 v1, s62
        s_lshl_b32 s30, s2, 2
        v_mov_b32 v2, s30
        v_cmp_eq_u32 vcc, 0, v{VL}
        s_and_saveexec_b64 s[30:31], vcc
        global_store_dword v2, v1, s[10:11]
        """)
    k(f"{end}:")
    return k

if __name__ == "__main__":
    from k0 import gen_k0
    emit([gen_k0(), gen_k1(stamp=True)], sys.argv[1])
```

```python
import sys, math; sys.path.insert(0, "dev")
from asmgen import *
from layout import *

def stamp_end(k, end, W, VL, dbg=10):
    k(f"""
    s_waitcnt vmcnt(0)
    s_memtime s[62:63]
    s_waitcnt lgkmcnt(0)
    s_sub_u32 s62, s62, s60
    s_cmp_ge_u32 s2, 64
    s_cbranch_scc1 {end}
    s_cmp_lg_u32 s{W}, 0
    s_cbranch_scc1 {end}
    v_mov_b32 v1, s62
    s_lshl_b32 s30, s2, 2
    v_mov_b32 v2, s30
    v_cmp_eq_u32 vcc, 0, v{VL}
    s_and_saveexec_b64 s[30:31], vcc
    global_store_dword v2, v1, s[{dbg}:{dbg+1}]
    """)

def gen_k3(stamp=False):
    RS = 336; RED = 4 * 64 * RS
    YL = RED
    k = Kern("k3_kernel", 256, 256, RED + 9216)
    end = "k3_end"
    TP, E, W = 20, 21, 22
    k(f"""
    s_cmp_ge_u32 s2, 256
    s_cbranch_scc1 {end}
    s_load_dwordx2 s[4:5], s[0:1], {ARG['ws']}
    s_load_dwordx2 s[6:7], s[0:1], {ARG['x']}
    s_load_dwordx2 s[8:9], s[0:1], {ARG['out']}
    s_load_dwordx2 s[10:11], s[0:1], {ARG['dbg']}
    v_lshrrev_b32 v1, 6, v0
    v_and_b32 v2, 63, v0
    v_readfirstlane_b32 s{W}, v1
    s_and_b32 s30, s2, 7
    s_lshr_b32 s31, s2, 3
    s_lshr_b32 s{TP}, s30, 1
    s_lshl_b32 s{TP}, s{TP}, 3
    s_lshr_b32 s32, s31, 2
    s_add_u32 s{TP}, s{TP}, s32
    s_and_b32 s{E}, s30, 1
    s_lshl_b32 s{E}, s{E}, 2
    s_and_b32 s32, s31, 3
    s_add_u32 s{E}, s{E}, s32
    """)
    if stamp: k("s_memtime s[60:61]")
    k("s_waitcnt lgkmcnt(0)")
    k.srd(12, 4, FRAG9, add=WS_H)
    k.srd(16, 4, WOBYTES, add=WS_WO)
    k.srd(24, 4, XBYTES, add=WS_YT)
    k.srd(40, 6, XBYTES)
    k.srd(44, 8, XBYTES)
    ACC = 0; RING = 80
    V16, V8, VH16, VH8, VL = 242, 243, 244, 245, 246
    XR = 247
    k(f"""
    v_mov_b32 v{VL}, v2
    v_lshlrev_b32 v{V16}, 4, v2
    v_lshlrev_b32 v{V8}, 3, v2
    v_lshrrev_b32 v3, 4, v2
    v_and_b32 v4, 7, v2
    v_lshl_add_u32 v4, v3, 3, v4
    v_and_b32 v5, 8, v2
    v_cmp_eq_u32 vcc, 0, v5
    v_lshlrev_b32 v5, 4, v4
    v_lshlrev_b32 v6, 3, v4
    v_mov_b32 v7, 0x7ff00000
    v_cndmask_b32 v{VH16}, v7, v5, vcc
    v_cndmask_b32 v{VH8}, v7, v6, vcc
    s_lshl_b32 s30, s{TP}, 6
    s_lshl_b32 s31, s{W}, 2
    s_add_u32 s30, s30, s31
    s_mul_i32 s50, s30, 4608
    s_add_u32 s51, s50, {16*4608}
    s_add_u32 s52, s50, {32*4608}
    s_add_u32 s53, s50, {48*4608}
    s_lshl_b32 s30, s{E}, 4
    s_add_u32 s30, s30, s31
    s_mul_i32 s54, s30, 20736
    """)
    def loads(q):
        b = RING + 36 * q
        L = []
        if q < 4:
            for tb in range(4): L.append(f"buffer_load_dwordx4 v[{b+4*tb}:{b+4*tb+3}], v{V16}, s[12:15], s{50+tb} offen offset:{q*1024}")
            L.append(f"s_add_u32 s55, s54, {q*4608}")
            for dt in range(4): L.append(f"buffer_load_dwordx4 v[{b+16+4*dt}:{b+19+4*dt}], v{V16}, s[16:19], s55 offen offset:{dt*1024}")
            L.append(f"s_add_u32 s55, s55, 4096")
            L.append(f"buffer_load_dwordx4 v[{b+32}:{b+35}], v{VH16}, s[16:19], s55 offen")
        else:
            for tb in range(4): L.append(f"s_add_u32 s55, s{50+tb}, 4096\nbuffer_load_dwordx2 v[{b+2*tb}:{b+2*tb+1}], v{V8}, s[12:15], s55 offen")
            L.append(f"s_add_u32 s55, s54, 18432")
            for dt in range(4): L.append(f"buffer_load_dwordx2 v[{b+8+2*dt}:{b+9+2*dt}], v{V8}, s[16:19], s55 offen offset:{dt*512}")
            L.append(f"buffer_load_dwordx2 v[{b+16}:{b+17}], v{VH8}, s[16:19], s55 offen offset:2048")
        return L
    def mf(q):
        b = RING + 36 * q
        out = []
        for dt in range(5):
            for tb in range(4):
                a = ACC + (dt * 4 + tb) * 4
                if q < 4: out.append(f"v_mfma_f32_16x16x32_bf16 v[{a}:{a+3}], v[{b+16+4*dt}:{b+19+4*dt}], v[{b+4*tb}:{b+4*tb+3}], v[{a}:{a+3}]")
                else: out.append(f"v_mfma_f32_16x16x16_bf16 v[{a}:{a+3}], v[{b+8+2*dt}:{b+9+2*dt}], v[{b+2*tb}:{b+2*tb+1}], v[{a}:{a+3}]")
        return out
    adv = "\n".join(f"s_add_u32 s{50+i}, s{50+i}, 4608" for i in range(4)) + "\ns_add_u32 s54, s54, 20736"
    for q in range(5): k("\n".join(loads(q)))
    k(adv)
    k(f"""
    v_lshrrev_b32 v3, 3, v2
    v_and_b32 v4, 7, v2
    v_lshlrev_b32 v3, 12, v3
    v_lshl_add_u32 v3, v4, 4, v3
    s_mul_i32 s30, s{E}, {72*4096}
    s_lshl_b32 s31, s{TP}, 7
    s_add_u32 s30, s30, s31
    s_lshl_b32 s31, s{W}, 15
    s_add_u32 s30, s30, s31
    s_lshl_b32 s31, s{W}, 10
    s_add_u32 m0, s31, {YL}
    buffer_load_dwordx4 v3, s[24:27], s30 offen lds
    s_add_u32 s30, s30, {4*32768}
    s_add_u32 m0, s31, {YL+4096}
    buffer_load_dwordx4 v3, s[24:27], s30 offen lds
    s_add_u32 s30, s30, {4*32768}
    s_cmp_eq_u32 s{W}, 0
    s_cselect_b32 s30, s30, 0x7ff00000
    s_cselect_b32 m0, {YL+8192}, 0
    buffer_load_dwordx4 v3, s[24:27], s30 offen lds
    """)
    for i in range(80): k(f"v_mov_b32 v{ACC+i}, 0")
    k("s_mov_b32 s35, 0")
    k("k3_loop:")
    k(f"""
    s_cmp_eq_u32 s35, 3
    s_cbranch_scc0 k3_nl
    s_mov_b32 s50, 0x7ff00000
    s_mov_b32 s51, 0x7ff00000
    s_mov_b32 s52, 0x7ff00000
    s_mov_b32 s53, 0x7ff00000
    s_mov_b32 s54, 0x7ff00000
    k3_nl:
    """)
    for q in range(5):
        k("s_waitcnt vmcnt(36)")
        k("\n".join(mf(q)))
        k("\n".join(loads(q)))
    k(adv)
    k("s_add_u32 s35, s35, 1\ns_cmp_lt_u32 s35, 4\ns_cbranch_scc1 k3_loop")
    XB = RING
    k(f"""
    s_waitcnt vmcnt(0)
    s_lshl_b32 s30, s{TP}, 6
    v_add_u32 v{V8}, s30, v{VL}
    v_mul_u32_u24 v{V8}, 1152, v{V8}
    s_mul_i32 s30, s{E}, 144
    s_lshl_b32 s31, s{W}, 4
    s_add_u32 s30, s30, s31
    v_add_u32 v{V8}, s30, v{V8}
    buffer_load_dwordx4 v[{XB}:{XB+3}], v{V8}, s[40:43], 0 offen
    buffer_load_dwordx4 v[{XB+4}:{XB+7}], v{V8}, s[40:43], 0 offen offset:64
    buffer_load_dwordx4 v[{XB+8}:{XB+11}], v{V8}, s[40:43], 0 offen offset:128
    v_and_b32 v{VH16}, 15, v{VL}
    v_mul_u32_u24 v{VH16}, {RS}, v{VH16}
    v_lshrrev_b32 v{VH8}, 4, v{VL}
    v_lshl_add_u32 v{VH16}, v{VH8}, 4, v{VH16}
    s_mul_i32 s30, s{W}, {64*RS}
    v_add_u32 v{VH16}, s30, v{VH16}
    s_barrier
    """)
    for dt in range(5):
        for tb in range(4):
            a = ACC + (dt * 4 + tb) * 4
            k(f"ds_write_b128 v{VH16}, v[{a}:{a+3}] offset:{tb*16*RS + dt*64}")
    k(f"""
    s_waitcnt lgkmcnt(0)
    s_barrier
    v_mul_u32_u24 v{VH16}, {RS}, v{VL}
    s_lshl_b32 s30, s{W}, 5
    v_add_u32 v{VH16}, s30, v{VH16}
    v_lshlrev_b32 v{VH8}, 1, v{VL}
    s_lshl_b32 s30, s{W}, 10
    s_add_u32 s30, s30, {YL}
    v_add_u32 v{VH8}, s30, v{VH8}
    """)
    def fin(ps):
        Pp = 0; Y = 40; Tm = 48
        for w in range(4):
            for hh in range(2):
                k(f"ds_read_b128 v[{Pp+8*w+4*hh}:{Pp+8*w+4*hh+3}], v{VH16} offset:{w*64*RS + ps*128 + hh*16}")
        for i in range(8):
            k(f"ds_read_u16 v{Y+i}, v{VH8} offset:{ps*4096 + i*128}")
        k("s_waitcnt vmcnt(0) lgkmcnt(0)")
        for i in range(4):
            a = Pp + 2 * i
            k(f"""
            v_pk_add_f32 v[{a}:{a+1}], v[{a}:{a+1}], v[{a+8}:{a+9}]
            v_pk_add_f32 v[{a+16}:{a+17}], v[{a+16}:{a+17}], v[{a+24}:{a+25}]
            v_pk_add_f32 v[{a}:{a+1}], v[{a}:{a+1}], v[{a+16}:{a+17}]
            v_cvt_pk_bf16_f32 v{Tm}, v{a}, v{a+1}
            v_lshlrev_b32 v{a}, 16, v{Tm}
            v_and_b32 v{a+1}, 0xffff0000, v{Tm}
            v_lshlrev_b32 v{Tm+2}, 16, v{XB+4*ps+i}
            v_and_b32 v{Tm+3}, 0xffff0000, v{XB+4*ps+i}
            v_lshlrev_b32 v{Tm+4}, 16, v{Y+2*i}
            v_lshlrev_b32 v{Tm+5}, 16, v{Y+2*i+1}
            v_pk_add_f32 v[{Tm+2}:{Tm+3}], v[{Tm+2}:{Tm+3}], v[{Tm+4}:{Tm+5}]
            v_cvt_pk_bf16_f32 v{Tm}, v{Tm+2}, v{Tm+3}
            v_lshlrev_b32 v{Tm+2}, 16, v{Tm}
            v_and_b32 v{Tm+3}, 0xffff0000, v{Tm}
            v_pk_add_f32 v[{a}:{a+1}], v[{a}:{a+1}], v[{Tm+2}:{Tm+3}]
            v_cvt_pk_bf16_f32 v{56+4*ps+i}, v{a}, v{a+1}
            """)
        k(f"buffer_store_dwordx4 v[{56+4*ps}:{59+4*ps}], v{V8}, s[44:47], 0 offen offset:{ps*64}")
    fin(0); fin(1)
    k(f"s_cmp_lg_u32 s{W}, 0\ns_cbranch_scc1 k3_fin")
    fin(2)
    k("k3_fin:")
    if stamp: stamp_end(k, end, W, VL)
    k(f"{end}:")
    return k
```

```python
import sys, math; sys.path.insert(0, "dev")
from asmgen import *
from layout import *
from k0 import bf16_round
from k1 import fbits
from k3 import stamp_end
import numpy as np
def f32(x): return float(np.float32(x))
L2E = math.log2(math.e); L2E_HI = f32(L2E); L2E_LO = L2E - L2E_HI
I2P = 1.0 / (2 * math.pi); I2P_HI = f32(I2P); I2P_LO = I2P - I2P_HI
def rne(x, kk):
    q = x / (1 << kk); return int(round(q)) << kk
def rrow(v): return v if v <= 16 else 12 + v // 4

def gen_ks(stamp=False, dump=False):
    UB = 0
    TB = 4608
    RT = TB; WT = TB + 29 * 256
    CBASE = TB + 64
    LDS = TB + 29 * 256 + 56 * 256 + 8 * 256
    assert LDS >= CBASE + 4 * 4160
    k = Kern("ks_kernel", 576, 64, LDS)
    k.vg = 208; k.acc_off = 208; k.sg = 72
    end = "ks_end"
    k(f"""
    s_cmp_ge_u32 s2, 576
    s_cbranch_scc1 {end}
    s_load_dwordx4 s[4:7], s[0:1], {ARG['A_re']}
    s_load_dwordx4 s[8:11], s[0:1], {ARG['B_re']}
    s_load_dwordx4 s[12:15], s[0:1], {ARG['C_re']}
    s_load_dwordx4 s[16:19], s[0:1], {ARG['log_dt']}
    s_load_dwordx2 s[20:21], s[0:1], {ARG['ws']}
    s_load_dwordx2 s[58:59], s[0:1], {ARG['dbg']}
    s_mov_b32 s22, 0
    """)
    if stamp: k("s_memtime s[60:61]")
    k(f"""
    v_lshlrev_b32 v1, 1, v0
    s_lshl_b32 s30, s2, 8
    v_add_u32 v1, s30, v1            ; (d*128 + lane)*2
    s_lshl_b32 s30, s2, 1
    v_mov_b32 v2, s30
    s_waitcnt lgkmcnt(0)
    """)
    PRM = 170
    for hf in range(2):
        for i in range(6):
            k(f"global_load_ushort v{PRM+6*hf+i}, v1, s[{4+2*i}:{5+2*i}] offset:{hf*128}")
    k("global_load_ushort v196, v2, s[16:17]\nglobal_load_ushort v197, v2, s[18:19]\nv_mov_b32 v206, v0")
    k.srd(24, 20, XBYTES, add=WS_XT)
    k.srd(44, 20, XBYTES, add=WS_YT)
    k(f"""
    v_lshrrev_b32 v6, 1, v0
    v_mul_u32_u24 v6, {576*32}, v6
    v_and_b32 v7, 1, v0
    v_lshl_add_u32 v6, v7, 4, v6
    s_lshl_b32 s30, s2, 5
    """)
    for i in range(4):
        k(f"s_mov_b32 m0, {UB+480+i*1024}\nbuffer_load_dwordx4 v6, s[24:27], s30 offen lds\ns_add_u32 s30, s30, {32*576*32}")
    k(f"""
    v_mov_b32 v8, 0
    v_mov_b32 v9, 0
    v_mov_b32 v10, 0
    v_mov_b32 v11, 0
    v_lshlrev_b32 v7, 4, v0
    v_cmp_gt_u32 vcc, 30, v0
    s_and_saveexec_b64 s[38:39], vcc
    ds_write_b128 v7, v[8:11] offset:{UB}
    s_mov_b64 exec, s[38:39]
    """)
    WAD = 150
    k("v_lshrrev_b32 v6, 2, v0\nv_and_b32 v7, 3, v0\nv_lshlrev_b32 v7, 2, v7\nv_lshl_add_u32 v6, v6, 4, v7")
    for i in range(16): k(f"v_xor_b32 v{WAD+i}, {i<<4}, v6")
    VJ, VG = 166, 167
    k(f"v_and_b32 v{VJ}, 15, v0\nv_lshrrev_b32 v{VG}, 4, v0")
    RW = 140
    for m in range(4):
        k(f"v_add_u32 v6, {4*m}, v{VG}\nv_xor_b32 v6, v6, v{VJ}\nv_lshlrev_b32 v6, 4, v6\nv_lshl_add_u32 v{RW+m}, v{VJ}, 8, v6")
    pats = [[b for b in range(16)], [rne(b, 1) for b in range(16)]]
    pats += [[rne(16 * nt + b, 2) for b in range(16)] for nt in range(4)]
    pats += [[rne(16 * nt + b, 3) for b in range(16)] for nt in range(4)]
    RS_ = 182
    for pi_, pat in enumerate(pats):
        rows = [rrow(v) for v in pat]
        if pi_ == 0:
            k(f"v_mov_b32 v6, v{VJ}")
        else:
            kk = 1 if pi_ == 1 else (2 if pi_ < 6 else 3)
            nt = 0 if pi_ == 1 else (pi_ - 2) % 4
            c0 = 16 * nt + (1 << (kk - 1)) - 1
            k(f"""
            v_add_u32 v6, {16*nt}, v{VJ}
            v_bfe_u32 v6, v6, {kk}, 1
            v_add3_u32 v6, v6, v{VJ}, {c0}
            v_and_b32 v6, {0xff & ~((1 << kk) - 1)}, v6
            """)
            if pi_ > 1:
                k("v_lshrrev_b32 v7, 2, v6\nv_add_u32 v7, 12, v7\nv_min_u32 v6, v6, v7")
            chk = []
            for j in range(16):
                v = (((((j + 16 * nt) >> kk) & 1) + j + c0) & (0xff & ~((1 << kk) - 1)))
                chk.append(min(v, 12 + (v >> 2)) if pi_ > 1 else v)
            assert chk == rows, (pi_, chk, rows)
        k(f"""
        v_and_b32 v7, 15, v6
        v_xor_b32 v7, v7, v{VG}
        v_lshlrev_b32 v7, 4, v7
        v_lshl_add_u32 v{RS_+pi_}, v6, 8, v7
        """)
    ACC = 0
    for i in range(40): k(f"v_mov_b32 v{ACC+i}, 0")
    k(f"""
    s_waitcnt vmcnt(4)
    v_lshlrev_b32 v44, 16, v196
    v_lshlrev_b32 v168, 16, v197           ; Dskip
    v_mul_f32 v45, {fbits(L2E_HI)}, v44
    s_mov_b32 s30, {fbits(L2E_HI)}
    v_fma_f32 v46, v44, s30, -v45
    v_fmac_f32 v46, {fbits(L2E_LO)}, v44
    v_exp_f32 v45, v45
    v_mul_f32 v46, {fbits(math.log(2.0))}, v46
    v_fma_f32 v169, v45, v46, v45
    """)
    bf16_round(k, 169)
    k(f"s_mov_b32 s40, {fbits(L2E_HI)}\ns_mov_b32 s41, {fbits(I2P_HI)}\ns_mov_b32 s35, 0")
    k("ks_half:")
    A_, B_, BR, BI, CR, CI = 44, 45, 46, 47, 48, 49
    for i in range(6): k(f"v_lshlrev_b32 v{44+i}, 16, v{PRM+i}")
    for i in range(4): k(f"v_mul_f32 v{44+i}, v169, v{44+i}")
    CB = 50
    k(f"""
    v_mul_f32 v{CB}, v{CR}, v{BR}
    v_mul_f32 v{CB+1}, v{CR}, v{BI}
    v_fma_f32 v{CB}, -v{CI}, v{BI}, v{CB}
    v_fma_f32 v{CB+1}, v{CI}, v{BR}, v{CB+1}
    """)
    W1, W16, W64, W512 = 52, 54, 56, 58
    for li, (l, r) in enumerate(((1, W1), (16, W16), (64, W64), (512, W512))):
        t = 60 + 6 * li
        k(f"""
        v_mul_f32 v{t}, {float(l)!r}, v{A_}
        v_mul_f32 v{t+1}, {float(l)!r}, v{B_}
        v_mul_f32 v{t}, s40, v{t}
        v_mul_f32 v{t+2}, s41, v{t+1}
        v_exp_f32 v{t}, v{t}
        v_fma_f32 v{t+3}, v{t+1}, s41, -v{t+2}
        v_fmac_f32 v{t+3}, {fbits(I2P_LO)}, v{t+1}
        v_fract_f32 v{t+2}, v{t+2}
        v_add_f32 v{t+2}, v{t+2}, v{t+3}
        v_cos_f32 v{r}, v{t+2}
        v_sin_f32 v{r+1}, v{t+2}
        v_mul_f32 v{r}, v{t}, v{r}
        v_mul_f32 v{r+1}, v{t}, v{r+1}
        """)
    def cmul(d, x, w):
        return [f"v_pk_mul_f32 v[{d}:{d+1}], v[{x}:{x+1}], v[{w}:{w+1}] op_sel_hi:[0,1]",
                f"v_pk_fma_f32 v[{d}:{d+1}], v[{x}:{x+1}], v[{w}:{w+1}], v[{d}:{d+1}] op_sel:[1,1,0] op_sel_hi:[1,0,1] neg_lo:[1,0,0]"]
    tmpc = [0]
    def put(x, base, row, neg):
        t = 108 + (x - 44) // 2
        return [f"v_cvt_pk_bf16_f32 v{t}, v{x}, {'-' if neg else ''}v{x+1}", f"ds_write_b32 v{WAD + (row & 15)}, v{t} offset:{base + row*256}"]
    def chain(start, w, n, regs, emit_row):
        steps = []; cur = start
        for i in range(n):
            d = regs[i & 1]
            steps.append(cmul(d, cur, w) + emit_row(d, i)); cur = d
        return steps
    k(f"v_mov_b32 v84, 1.0\nv_mov_b32 v85, 0")
    pre = put(84, RT, 0, True) + put(W1, RT, 1, True) + put(W16, RT, 16, True) + put(W64, RT, 28, True) + put(CB, WT, 0, False)
    k("\n".join(pre))
    W4 = 86
    c1 = chain(W1, W1, 14, [88, 90], lambda d, i: put(d, RT, i + 2, True) + ([f"v_mov_b32 v{W4}, v{d}", f"v_mov_b32 v{W4+1}, v{d+1}"] if i == 2 else []))
    c2 = chain(W16, W4, 11, [92, 94], lambda d, i: put(d, RT, 17 + i, True))
    c3 = chain(CB, W16, 31, [96, 98], lambda d, i: put(d, WT, i + 1, False))
    def wrow(d, i):
        return put(d, WT + 32 * 256, i, False) if i < 8 else put(d, WT + 40 * 256, i - 8, False)
    c4 = [cmul(100, CB, W512) + wrow(100, 0)] + chain(100, W64, 23, [102, 104], lambda d, i: wrow(d, i + 1))
    seqs = [c3, c4, c1]
    out = []; idx = [0, 0, 0, 0]; chains = [c3, c4, c1, c2]
    while any(idx[i] < len(chains[i]) for i in range(4)):
        group = []
        for i in range(4):
            if i == 3 and idx[2] < 4: continue
            if idx[i] < len(chains[i]): group.append(chains[i][idx[i]]); idx[i] += 1
        for pos in range(max(len(g) for g in group)):
            for g in group:
                if pos < len(g): out.append(g[pos])
    k("\n".join(out))
    k("s_waitcnt lgkmcnt(0)")
    wt = [WT, WT + 16 * 256, WT + 32 * 256, WT + 40 * 256]
    tile_w = [0, 1, 2, 2, 2, 2, 3, 3, 3, 3]
    WB_ = 44
    for wi in range(4):
        for m in range(4):
            b = WB_ + (wi * 4 + m) * 4
            k(f"ds_read_b128 v[{b}:{b+3}], v{RW+m} offset:{wt[wi]}")
    RB = 108
    def rreads(t):
        L = []
        for m in range(4):
            b = RB + (t & 1) * 16 + 4 * m
            if m: L.append(f"v_xor_b32 v{192+m}, {(4*m) << 4}, v{RS_+t}")
            L.append(f"ds_read_b128 v[{b}:{b+3}], v{RS_+t if m == 0 else 192+m} offset:{RT}")
        return L
    k("\n".join(rreads(0)))
    for t in range(10):
        if t < 9:
            k("\n".join(rreads(t + 1))); k("s_waitcnt lgkmcnt(4)")
        else: k("s_waitcnt lgkmcnt(0)")
        for m in range(4):
            b = RB + (t & 1) * 16 + 4 * m; w = WB_ + (tile_w[t] * 4 + m) * 4
            k(f"v_mfma_f32_16x16x32_bf16 v[{ACC+4*t}:{ACC+4*t+3}], v[{b}:{b+3}], v[{w}:{w+3}], v[{ACC+4*t}:{ACC+4*t+3}]")
    for i in range(6): k(f"v_mov_b32 v{PRM+i}, v{PRM+6+i}")
    k("s_add_u32 s35, s35, 1\ns_cmp_lt_u32 s35, 2\ns_cbranch_scc1 ks_half")
    k(f"""
    v_mul_u32_u24 v44, 26, v206
    v_lshrrev_b32 v44, 8, v44
    v_mul_u32_u24 v45, 10, v44
    v_sub_u32 v45, v206, v45
    v_mul_u32_u24 v44, 4160, v44
    v_lshl_add_u32 v44, v45, 2, v44
    v_mov_b32 v46, 0
    v_cmp_gt_u32 vcc, 40, v206
    s_and_saveexec_b64 s[38:39], vcc
    ds_write_b32 v44, v46 offset:{CBASE + 4088}
    s_mov_b64 exec, s[38:39]
    v_lshlrev_b32 v44, 3, v{VG}          ; 8g
    v_lshl_add_u32 v45, v{VJ}, 5, v44    ; 2*(16j+4g)
    v_sub_u32 v47, {CBASE + 2*(2044-256) - 6}, v45
    v_lshl_add_u32 v45, v{VJ}, 7, v44    ; 2*(64j+4g)
    v_sub_u32 v48, {CBASE + 2*(2044-1072) - 6}, v45
    v_cmp_gt_u32 vcc, 8, v{VJ}
    """)
    for t in range(10):
        if t < 2: va, off = 47, 2 * (256 - 256 * t)
        else:
            tb = (512 if t < 6 else 1024) + 16 * ((t - 2) % 4); va, off = 48, 2 * (1072 - tb)
        a = ACC + 4 * t; p = 50 + 4 * (t % 4)
        if t == 2: k("s_and_saveexec_b64 s[38:39], vcc")
        if t == 6: k("s_mov_b64 exec, s[38:39]")
        k(f"""
        v_cvt_pk_bf16_f32 v{p}, v{a+3}, v{a+2}
        v_cvt_pk_bf16_f32 v{p+1}, v{a+1}, v{a}
        v_alignbit_b32 v{p+2}, v{p+1}, v{p}, 16
        ds_write_b64 v{va}, v[{p}:{p+1}] offset:{off + 6}
        ds_write_b32 v{va}, v{p} offset:{off + 6 + 2*4160 - 4}
        ds_write_b32 v{va}, v{p+1} offset:{off + 6 + 2*4160}
        ds_write_b16 v{va}, v{p} offset:{off + 6 + 4160 - 2}
        ds_write_b32 v{va}, v{p+2} offset:{off + 6 + 4160}
        ds_write_b16_d16_hi v{va}, v{p+1} offset:{off + 6 + 4160 + 4}
        ds_write_b16 v{va}, v{p} offset:{off + 6 + 3*4160 - 6}
        ds_write_b32 v{va}, v{p+2} offset:{off + 6 + 3*4160 - 4}
        ds_write_b16_d16_hi v{va}, v{p+1} offset:{off + 6 + 3*4160}
        """)
    if dump:
        k.srd(48, 20, 576 * 32768, add=0x4000000)
        k("s_waitcnt lgkmcnt(0)\nv_lshlrev_b32 v44, 4, v206\ns_lshl_b32 s30, s2, 15")
        for i in range(LDS // 1024):
            k(f"ds_read_b128 v[52:55], v44 offset:{i*1024}\ns_waitcnt lgkmcnt(0)\nbuffer_store_dwordx4 v[52:55], v44, s[48:51], s30 offen\ns_add_u32 s30, s30, 1024\ns_waitcnt vmcnt(0)")
    VF, VGa = 140, 141
    k(f"""
    v_sub_u32 v44, 3, v{VJ}
    v_and_b32 v44, 3, v44
    v_mul_u32_u24 v44, 4160, v44
    v_lshrrev_b32 v45, 2, v{VJ}
    v_lshlrev_b32 v45, 3, v45            ; 2*4*(r>>2)
    v_sub_u32 v44, v44, v45
    v_lshl_add_u32 v44, v{VG}, 4, v44
    v_add_u32 v{VF}, {CBASE + 2*(2028-2016)}, v44
    v_lshlrev_b32 v45, 5, v{VJ}
    v_lshl_add_u32 v{VGa}, v{VG}, 4, v45
    """)
    for i in range(32): k(f"v_mov_b32 v{ACC+i}, 0")
    S0, S1 = 32, 96 - 0
    SETS = [32, 142]
    def creads(s, rho_off):
        b = SETS[s]; L = []
        for m in range(8):
            g = b + 32 + 4 * m
            L.append(f"ds_read_b128 v[{g}:{g+3}], v{VGa} offset:{UB + 64*(8*m + 7 - rho_off)}")
            f = b + 4 * m
            L.append(f"ds_read_b64 v[{f}:{f+1}], v{VF} offset:{64*(63 - 8*m - rho_off)}")
            L.append(f"ds_read_b64 v[{f+2}:{f+3}], v{VF} offset:{64*(63 - 8*m - rho_off) + 8}")
        return L
    def cm(s):
        b = SETS[s]; L = []
        for m in range(8):
            for I in range(m, 8):
                g = b + 32 + 4 * (I - m); f = b + 4 * m
                L.append(f"v_mfma_f32_16x16x32_bf16 v[{ACC+4*I}:{ACC+4*I+3}], v[{f}:{f+3}], v[{g}:{g+3}], v[{ACC+4*I}:{ACC+4*I+3}]")
        return L
    def mix(mf, other):
        out = []; n = len(mf); m = len(other); oi = 0
        for i, x in enumerate(mf):
            out.append(x)
            if oi < m: out.append(other[oi]); oi += 1
        return out + other[oi:]
    k(f"v_mov_b32 v100, v168\nv_mov_b32 v101, v{VJ}\nv_mov_b32 v102, v{VG}")
    k("s_waitcnt vmcnt(0) lgkmcnt(0)")
    k("\n".join(creads(0, 0)))
    for rho in range(8):
        k("s_waitcnt lgkmcnt(0)")
        k("\n".join(mix(cm(rho & 1), creads((rho + 1) & 1, rho + 1) if rho < 7 else [])))
    k(f"""
    v_lshlrev_b32 v103, 5, v101
    v_lshl_add_u32 v103, v102, 3, v103   ; 2*(16j+4g)
    v_mov_b32 v104, v100
    v_mov_b32 v105, v100
    s_lshl_b32 s30, s2, 12
    """)
    for I in range(8): k(f"ds_read_b64 v[{32+2*I}:{33+2*I}], v103 offset:{UB + 480 + 512*I}")
    k("s_waitcnt lgkmcnt(0)")
    for I in range(8):
        a = ACC + 4 * I; o = 64 + 2 * I
        for hh in range(2):
            u = 32 + 2 * I + hh
            k(f"""
            v_lshlrev_b32 v50, 16, v{u}
            v_and_b32 v51, 0xffff0000, v{u}
            v_pk_mul_f32 v[50:51], v[50:51], v[104:105]
            v_cvt_pk_bf16_f32 v52, v50, v51
            v_cvt_pk_bf16_f32 v53, v{a+2*hh}, v{a+2*hh+1}
            v_lshlrev_b32 v50, 16, v52
            v_and_b32 v51, 0xffff0000, v52
            v_lshlrev_b32 v54, 16, v53
            v_and_b32 v55, 0xffff0000, v53
            v_pk_add_f32 v[50:51], v[50:51], v[54:55]
            v_cvt_pk_bf16_f32 v{o+hh}, v50, v51
            """)
        k(f"buffer_store_dwordx2 v[{o}:{o+1}], v103, s[44:47], s30 offen offset:{512*I}")
    if stamp:
        stamp_end(k, end, 22, 206, dbg=58)
    k(f"{end}:")
    return k
```

```python
WS_Z2 = 0
WS_Z1 = 0x0900000
WS_H = 0x1200000
WS_XN = 0x1B00000
WS_XT = 0x1D40000
WS_YT = 0x1F80000
WS_WO = 0x21C0000
WS_ST = 0x2460000
WS_FL = 0x2480000
FRAG9 = 9437184
XBYTES = 2048 * 576 * 2
WOBYTES = 2304 * 576 * 2
```

```python
import sys; sys.path.insert(0, "dev")
from asmgen import *
from k0 import gen_k0
from k1 import gen_k1
from g2 import gen_g2
from k3 import gen_k3
from ks import gen_ks
def header():
    ref = open("cdna_kernels/" + NAME + ".s.ref").read().split("\n")
    out = []
    for l in ref:
        if l.startswith("; Override") or not l.startswith(";"): break
        out.append(l)
    return "\n".join(out) + "\n"
if __name__ == "__main__":
    st = "stamp" in sys.argv
    if "prof" in sys.argv:
        emit([gen_k0(prof=0), gen_ks(prof=1), gen_k1(prof=2), gen_g2(prof=3), gen_k3(prof=4)], sys.argv[1]); sys.exit(0)
    ks = [gen_k0(), gen_ks(stamp=st), gen_k1(stamp=st), gen_g2(stamp=st), gen_k3(stamp=st)]
    emit(ks, sys.argv[1], header=header() if "nohdr" not in sys.argv else "")
```

```python
import sys; sys.path.insert(0, "dev")
from gen import *
def empty(i):
    k = Kern(f"e{i}_kernel", 256, 256, 0); k.vg = 8; k.acc_off = 8; k.sg = 16
    k("s_nop 0"); return k
base = lambda: [gen_k0(), gen_ks(), gen_k1(), gen_g2(), gen_k3()]
emit(base(), "p0.s", header=header())
emit(base() + [empty(i) for i in range(4)], "p1.s", header=header())
emit([empty(i) for i in range(4)] + base(), "p2.s", header=header())
```

```python
import os
NAME = "parallel_sum__ssm_conv_s4__mixer_gmlp__prompt"
ARG = dict(x=0, A_re=8, A_im=16, B_re=24, B_im=32, C_re=40, C_im=48, log_dt=56, Dskip=64, Bx=72, w_in=80, w_sp=88, b_sp=96, w_out=104, out=112, dbg=120, ws=128)

class Kern:
    def __init__(self, name, grid, block, lds):
        self.name = name; self.grid = grid; self.block = block; self.lds = lds
        self.lines = []; self.vg = 256; self.acc_off = 256; self.sg = 102
        self._lab = 0
    def __call__(self, s):
        for l in s.split("\n"):
            l = l.strip()
            if l: self.lines.append(("    " + l) if not l.endswith(":") else l)
    def label(self, base="L"):
        self._lab += 1
        return f"{self.name}_{base}{self._lab}"
    def srd(self, d, base, nbytes, add=0):
        if add:
            self(f"s_add_u32 s{d}, s{base}, {add & 0xffffffff}\ns_addc_u32 s{d+1}, s{base+1}, {add >> 32}")
        else:
            self(f"s_mov_b32 s{d}, s{base}\ns_mov_b32 s{d+1}, s{base+1}")
        self(f"s_mov_b32 s{d+2}, {nbytes}\ns_mov_b32 s{d+3}, 0x20000")
    PS = 64
    prof = False
    allreal = False
    def stamp(self, i, real=False):
        if self.prof and os.environ.get("DUR") and i not in (0, 15): return
        if self.prof: self(f"{'s_memrealtime' if (real or self.allreal) else 's_memtime'} s[{self.PS+2*i}:{self.PS+2*i+1}]")
    def prof_dump(self, kidx, ws, wave, n, tmpv=(0, 1)):
        if not self.prof: return
        a, b = tmpv
        self(f"s_waitcnt lgkmcnt(0)\ns_mov_b64 exec, -1\nv_mov_b32 v{b}, 0\ns_lshl_b32 s96, s2, 4\ns_add_u32 s96, s96, s{wave}\ns_lshl_b32 s96, s96, 6\ns_add_u32 s96, s96, {0x8000000 + kidx * 0x100000}")
        self(f"v_mbcnt_lo_u32_b32 v{a}, -1, 0\nv_lshlrev_b32 v{a}, 2, v{a}\nv_add_u32 v{a}, s96, v{a}")
        for i in range(n): self(f"v_writelane_b32 v{b}, s{self.PS+2*i}, {i}")
        self(f"s_mov_b64 exec, 0xffff\nglobal_store_dword v{a}, v{b}, s[{ws}:{ws+1}]")
    def text(self):
        from hazard import fix
        lines = fix(self.lines + ["    s_endpgm"])
        return (f".globl {self.name}\n.p2align 8\n.type {self.name},@function\n{self.name}:\n" + "\n".join(lines) + "\n")
    def desc(self):
        return f""".p2align 6
.amdhsa_kernel {self.name}
  .amdhsa_next_free_vgpr {self.vg}
  .amdhsa_next_free_sgpr {self.sg}
  .amdhsa_accum_offset {self.acc_off}
  .amdhsa_group_segment_fixed_size 0
  .amdhsa_kernarg_size 136
  .amdhsa_user_sgpr_count 2
  .amdhsa_user_sgpr_kernarg_segment_ptr 1
  .amdhsa_system_sgpr_workgroup_id_x 1
.end_amdhsa_kernel
"""

def emit(kerns, path, header=""):
    s = header
    for k in kerns:
        s += f"; @launch kernel={k.name} grid=({k.grid},1,1) block=({k.block},1,1) lds={k.lds}\n"
    s += '.amdgcn_target "amdgcn-amd-amdhsa--gfx950"\n.text\n'
    seen = []
    for k in kerns:
        if k.name in seen: continue
        seen.append(k.name); s += k.text()
    s += '.section .rodata,"a"\n'
    seen = []
    for k in kerns:
        if k.name in seen: continue
        seen.append(k.name); s += k.desc()
    open(path, "w").write(s)
```

```python
import sys, math; sys.path.insert(0, "dev")
from asmgen import *
from layout import *
import struct
import numpy as np
def fbits(x): return "0x%08x" % struct.unpack("<I", struct.pack("<f", x))[0]
def f32(x): return float(np.float32(x))
C1 = -2.0 * math.sqrt(2.0 / math.pi) * math.log2(math.e)
C2 = C1 * 0.044715
L2E = math.log2(math.e); L2E_HI = f32(L2E); L2E_LO = L2E - L2E_HI
I2P = 1.0 / (2 * math.pi); I2P_HI = f32(I2P); I2P_LO = I2P - I2P_HI
def rne(x, kk): return int(round(x / (1 << kk))) << kk
def rrow(v): return v if v <= 16 else 12 + v // 4
OOB = 0x7ff00000
P, C, W, NON = 20, 21, 22, 23
FLS = 16
VL = 255
SPIN = 0x4000
OPT = dict(sleep=0, sc1ld=1, nokgen=0)

def dpp_sum16(k, regs):
    for sh in (8, 4, 2, 1):
        for r in regs: k(f"v_add_f32_dpp v{r}, v{r}, v{r} row_ror:{sh} row_mask:0xf bank_mask:0xf")
def bf16_round(k, r): k(f"v_cvt_pk_bf16_f32 v{r}, v{r}, v{r}\nv_lshlrev_b32 v{r}, 16, v{r}")
def xsum_rows(k, r, t, both=True):
    k(f"v_mov_b32 v{t}, v{r}\nv_permlane16_swap_b32 v{r}, v{t}\nv_add_f32 v{r}, v{r}, v{t}")
    k(f"v_mov_b32 v{t}, v{r}\nv_permlane32_swap_b32 v{r}, v{t}\nv_add_f32 v{r}, v{r}, v{t}")
def mix(mf, other):
    out = []; n = len(mf); m = len(other); oi = 0
    for i, x in enumerate(mf):
        out.append(x)
        want = (i + 1) * m // n
        while oi < want: out.append(other[oi]); oi += 1
    return out + other[oi:]
def front2(mf, other, per=2):
    out = []; oi = 0
    for x in mf:
        out.append(x)
        for _ in range(per):
            if oi < len(other): out.append(other[oi]); oi += 1
    return out + other[oi:]
def front(mf, other):
    out = []; oi = 0
    for x in mf:
        out.append(x)
        if oi < len(other): out.append(other[oi]); oi += 1
    return out + other[oi:]

def xm(mask):
    return f"s_mov_b32 exec_lo, {hex(mask & 0xffffffff)}\ns_mov_b32 exec_hi, {hex(mask >> 32)}"
def set_flag(k, va, vd, off_s):
    k(f"""
    v_mov_b32 v{va}, 0
    v_mov_b32 v{vd}, s{NON}
    s_waitcnt vmcnt(0)
    s_mov_b64 exec, 1
    buffer_store_dword v{vd}, v{va}, s[{FLS}:{FLS+3}], s{off_s} offen sc1
    s_mov_b64 exec, -1
    """)
def poll(k, va, vd, off_s, nlanes, ndw=1, pre=False, mask=None):
    L = k.label("poll"); D = k.label("polld")
    ld = {1: "dword", 2: "dwordx2", 4: "dwordx4"}[ndw]
    dst = f"v{vd}" if ndw == 1 else f"v[{vd}:{vd+ndw-1}]"
    if not pre: k(f"v_lshlrev_b32 v{va}, { {1: 2, 2: 3, 4: 4}[ndw] }, v{VL}")
    k("s_mov_b32 s62, 0")
    if nlanes < 64: k(xm(mask if mask else (1 << nlanes) - 1))
    k(f"{L}:\nbuffer_load_{ld} {dst}, v{va}, s[{FLS}:{FLS+3}], {'0' if pre else 's%d' % off_s} offen sc1\ns_add_u32 s62, s62, 1\ns_waitcnt vmcnt(0)")
    k(f"v_cmp_ne_u32 vcc, s{NON}, v{vd}")
    for i in range(1, ndw): k(f"v_cmp_ne_u32 s[60:61], s{NON}, v{vd+i}\ns_or_b64 vcc, vcc, s[60:61]")
    sl = f"s_sleep {OPT['sleep']}\n" if OPT['sleep'] else ""
    k(f"s_cbranch_vccz {D}\n{sl}s_cmp_lt_u32 s62, {SPIN}\ns_cbranch_scc1 {L}\n{D}:")
    if nlanes < 64: k("s_mov_b64 exec, -1")

def gelu_group(k, pairs, T, SC2, VC1, VONE):
    n = len(pairs)
    for i, a in enumerate(pairs): k(f"v_pk_mul_f32 v[{T+2*i}:{T+2*i+1}], v[{a}:{a+1}], v[{a}:{a+1}]")
    for i, a in enumerate(pairs): k(f"v_pk_fma_f32 v[{T+2*i}:{T+2*i+1}], v[{T+2*i}:{T+2*i+1}], s[{SC2}:{SC2+1}], v[{VC1}:{VC1+1}]")
    for i, a in enumerate(pairs): k(f"v_pk_mul_f32 v[{T+2*i}:{T+2*i+1}], v[{T+2*i}:{T+2*i+1}], v[{a}:{a+1}]")
    for i in range(2 * n): k(f"v_exp_f32 v{T+i}, v{T+i}")
    for i, a in enumerate(pairs): k(f"v_pk_add_f32 v[{T+2*i}:{T+2*i+1}], v[{T+2*i}:{T+2*i+1}], v[{VONE}:{VONE+1}]")
    for i in range(2 * n): k(f"v_rcp_f32 v{T+i}, v{T+i}")
    for i, a in enumerate(pairs): k(f"v_pk_mul_f32 v[{a}:{a+1}], v[{a}:{a+1}], v[{T+2*i}:{T+2*i+1}]")

def ln_finish(k, m, v):
    bf16_round(k, v)
    k(f"v_add_f32 v{v}, {1e-5!r}, v{v}")
    bf16_round(k, v)
    k(f"v_sqrt_f32 v{v}, v{v}")
    bf16_round(k, v)
    k(f"v_rcp_f32 v{v}, v{v}")
    bf16_round(k, m)


KG = dict(ACC=0, WF=44, RB=108, RW=140, WAD=150, VJ=166, VG=167, DSK=168, DT=169, PRM=170, RS=182, XT3=192, VDMA=210)

def kgen_setup(k, o):
    g = KG
    k(f"""
    s_load_dwordx4 s[24:27], s[0:1], {ARG['A_re']}
    s_load_dwordx4 s[28:31], s[0:1], {ARG['B_re']}
    s_load_dwordx4 s[32:35], s[0:1], {ARG['C_re']}
    s_load_dwordx4 s[36:39], s[0:1], {ARG['log_dt']}
    s_min_u32 s42, s58, 575
    v_lshlrev_b32 v1, 1, v{VL}
    s_lshl_b32 s43, s42, 8
    v_add_u32 v1, s43, v1
    s_lshl_b32 s43, s42, 1
    v_mov_b32 v2, s43
    s_waitcnt lgkmcnt(0)
    """)
    for hf in range(2):
        for i in range(6):
            k(f"global_load_ushort v{g['PRM']+6*hf+i}, v1, s[{24+2*i}:{25+2*i}] offset:{hf*128}")
    k("global_load_ushort v196, v2, s[36:37]\nglobal_load_ushort v197, v2, s[38:39]")

def kgen_addr(k, o):
    g = KG; WAD, VJ, VG, RW, RS_ = g['WAD'], g['VJ'], g['VG'], g['RW'], g['RS']
    A = []
    A.append(f"v_lshrrev_b32 v46, 2, v{VL}\nv_and_b32 v47, 3, v{VL}\nv_lshlrev_b32 v47, 2, v47\nv_lshl_add_u32 v46, v46, 4, v47\nv_add_u32 v46, s59, v46")
    for i in range(16): A.append(f"v_xor_b32 v{WAD+i}, {i<<4}, v46")
    A.append(f"v_and_b32 v{VJ}, 15, v{VL}\nv_lshrrev_b32 v{VG}, 4, v{VL}")
    for m in range(4):
        A.append(f"v_add_u32 v46, {4*m}, v{VG}\nv_xor_b32 v46, v46, v{VJ}\nv_lshlrev_b32 v46, 4, v46\nv_lshl_add_u32 v46, v{VJ}, 8, v46\nv_add_u32 v{RW+m}, s59, v46")
    pats = [[b for b in range(16)], [rne(b, 1) for b in range(16)]]
    pats += [[rne(16 * nt + b, 2) for b in range(16)] for nt in range(4)]
    pats += [[rne(16 * nt + b, 3) for b in range(16)] for nt in range(4)]
    for pi_, pat in enumerate(pats):
        rows = [rrow(v) for v in pat]
        s = ""
        if pi_ == 0: s += f"v_mov_b32 v46, v{VJ}\n"
        else:
            kk = 1 if pi_ == 1 else (2 if pi_ < 6 else 3)
            nt = 0 if pi_ == 1 else (pi_ - 2) % 4
            c0 = 16 * nt + (1 << (kk - 1)) - 1
            s += f"v_add_u32 v46, {16*nt}, v{VJ}\nv_bfe_u32 v46, v46, {kk}, 1\nv_add3_u32 v46, v46, v{VJ}, {c0}\nv_and_b32 v46, {0xff & ~((1 << kk) - 1)}, v46\n"
            if pi_ > 1: s += "v_lshrrev_b32 v47, 2, v46\nv_add_u32 v47, 12, v47\nv_min_u32 v46, v46, v47\n"
            chk = []
            for j in range(16):
                v = (((((j + 16 * nt) >> kk) & 1) + j + c0) & (0xff & ~((1 << kk) - 1)))
                chk.append(min(v, 12 + (v >> 2)) if pi_ > 1 else v)
            assert chk == rows
        s += f"v_and_b32 v47, 15, v46\nv_xor_b32 v47, v47, v{VG}\nv_lshlrev_b32 v47, 4, v47\nv_lshl_add_u32 v46, v46, 8, v47\nv_add_u32 v{RS_+pi_}, s59, v46"
        A.append(s)
    for i in range(40): A.append(f"v_mov_b32 v{i}, 0")
    return A

def kgen_dt():
    g = KG
    return [f"""v_lshlrev_b32 v44, 16, v196
    v_lshlrev_b32 v{g['DSK']}, 16, v197
    v_mul_f32 v45, {fbits(L2E_HI)}, v44
    v_fma_f32 v46, v44, s54, -v45
    v_fmac_f32 v46, {fbits(L2E_LO)}, v44
    v_exp_f32 v45, v45
    v_mul_f32 v46, {fbits(math.log(2.0))}, v46
    v_fma_f32 v{g['DT']}, v45, v46, v45
    v_cvt_pk_bf16_f32 v{g['DT']}, v{g['DT']}, v{g['DT']}
    v_lshlrev_b32 v{g['DT']}, 16, v{g['DT']}"""]

def kgen_half():
    g = KG; PRM, WAD, RW, RS_, WF, RB, DT = g['PRM'], g['WAD'], g['RW'], g['RS'], g['WF'], g['RB'], g['DT']
    A = []
    S = 220
    A_, B_, BR, BI, CR, CI = S, S + 1, S + 2, S + 3, S + 4, S + 5
    CB, W1, W16, W64, W512, W4, ONE = S + 6, S + 8, S + 10, S + 12, S + 14, S + 16, S + 18
    PA, PB, PC = [S + 20, S + 22], [S + 24, S + 26], S + 28
    TA, TB_ = S + 30, S + 31
    for i in range(6): A.append(f"v_lshlrev_b32 v{S+i}, 16, v{PRM+i}")
    for i in range(4): A.append(f"v_mul_f32 v{S+i}, v{DT}, v{S+i}")
    A += [f"v_mul_f32 v{CB}, v{CR}, v{BR}", f"v_mul_f32 v{CB+1}, v{CR}, v{BI}", f"v_fma_f32 v{CB}, -v{CI}, v{BI}, v{CB}", f"v_fma_f32 v{CB+1}, v{CI}, v{BR}, v{CB+1}"]
    ev = []
    for li, (l, r) in enumerate(((16, W16), (512, W512), (64, W64), (1, W1))):
        t = RB + 4 * li
        ev.append([f"v_mul_f32 v{t}, {float(l)!r}, v{A_}", f"v_mul_f32 v{t+1}, {float(l)!r}, v{B_}", f"v_mul_f32 v{t}, s54, v{t}", f"v_mul_f32 v{t+2}, s55, v{t+1}",
                   f"v_exp_f32 v{t}, v{t}", f"v_fma_f32 v{t+3}, v{t+1}, s55, -v{t+2}", f"v_fmac_f32 v{t+3}, {fbits(I2P_LO)}, v{t+1}", f"v_fract_f32 v{t+2}, v{t+2}",
                   f"v_add_f32 v{t+2}, v{t+2}, v{t+3}", f"v_cos_f32 v{r}, v{t+2}", f"v_sin_f32 v{r+1}, v{t+2}", f"v_mul_f32 v{r}, v{t}, v{r}", f"v_mul_f32 v{r+1}, v{t}, v{r+1}"])
    for pos in range(13):
        for e in ev: A.append(e[pos])
    def cmul(d, x, w):
        return [f"v_pk_mul_f32 v[{d}:{d+1}], v[{x}:{x+1}], v[{w}:{w+1}] op_sel_hi:[0,1]",
                f"v_pk_fma_f32 v[{d}:{d+1}], v[{x}:{x+1}], v[{w}:{w+1}], v[{d}:{d+1}] op_sel:[1,1,0] op_sel_hi:[1,0,1] neg_lo:[1,0,0]"]
    def put(x, t, base, row, neg):
        return [f"v_cvt_pk_bf16_f32 v{t}, v{x}, {'-' if neg else ''}v{x+1}", f"ds_write_b32 v{WAD + (row & 15)}, v{t} offset:{base + row*256}"]
    def wreads(wi, base):
        return [f"ds_read_b128 v[{WF+(wi*4+m)*4}:{WF+(wi*4+m)*4+3}], v{RW+m} offset:{base}" for m in range(4)]
    def pipe2(ca, cb):
        out = []; pa = []; pb = []
        for i in range(max(len(ca), len(cb)) + 1):
            sa = ca[i] if i < len(ca) else (None, None, []); sb = cb[i] if i < len(cb) else (None, None, [])
            q = [sa[0], sb[0]] + pa[:1] + pb[:1] + [sa[1], sb[1]] + pa[1:] + pb[1:]
            out += [x for x in q if x]
            pa = sa[2]; pb = sb[2]
        return out
    PA = [S + 20, S + 22, S + 32]; PB = [S + 24, S + 26, S + 28]
    ca = [(None, None, put(CB, TA, 0, 0, False))]; cur = CB
    for i in range(1, 32):
        d = PA[i % 3]; m = cmul(d, cur, W16); post = put(d, TA, 0, i & 15, False); cur = d
        if i in (15, 31): post = post + wreads(i // 16, 0)
        ca.append((m[0], m[1], post))
    cb = []; cur = CB
    for i in range(24):
        d = PB[i % 3]; m = cmul(d, cur, W512 if i == 0 else W64); post = put(d, TB_, 4096, i if i < 8 else i - 8, False); cur = d
        if i == 7: post = post + wreads(2, 4096)
        if i == 23: post = post + wreads(3, 4096)
        cb.append((m[0], m[1], post))
    W2, W3 = BR, CR
    for d, x in ((W2, W1), (W3, W2), (W4, W3)):
        m = cmul(d, x, W1); cb.append((m[0], m[1], [])); cb.append((None, None, []))
    A += pipe2(ca, cb)
    r1 = [(f"v_mov_b32 v{ONE}, 1.0", f"v_mov_b32 v{ONE+1}, 0", put(ONE, TA, 0, 0, True))]
    r2 = [(None, None, put(W16, TB_, 0, 16, True))]
    cur = W4
    for v in range(5, 16):
        d = PA[v % 3]; m = cmul(d, cur, W1); r1.append((m[0], m[1], put(d, TA, 0, v, True))); cur = d
    r1 += [(None, None, put(W1, TA, 0, 1, True)), (None, None, put(W2, TA, 0, 2, True))]
    cur = W16
    for i in range(11):
        d = PB[i % 3]; m = cmul(d, cur, W4); r2.append((m[0], m[1], put(d, TB_, 0, 17 + i, True))); cur = d
    r2 += [(None, None, put(W64, TB_, 0, 28, True)), (None, None, put(W3, TB_, 0, 3, True)), (None, None, put(W4, TB_, 0, 4, True))]
    A += pipe2(r1, r2)
    RBS = [RB, RB + 16, S]
    def rreads(t):
        L = []
        for m in range(4):
            b = RBS[t % 3] + 4 * m
            if m: L.append(f"v_xor_b32 v{g['XT3']+m}, {(4*m) << 4}, v{RS_+t}")
            L.append(f"ds_read_b128 v[{b}:{b+3}], v{RS_+t if m == 0 else g['XT3']+m}")
        return L
    tile_w = [0, 1, 2, 2, 2, 2, 3, 3, 3, 3]
    A += rreads(0) + rreads(1)
    for t in range(10):
        mf = []
        for m in range(4):
            b = RBS[t % 3] + 4 * m; w = WF + (tile_w[t] * 4 + m) * 4
            mf.append(f"v_mfma_f32_16x16x32_bf16 v[{4*t}:{4*t+3}], v[{b}:{b+3}], v[{w}:{w+3}], v[{4*t}:{4*t+3}]")
        A.append(f"s_waitcnt lgkmcnt({4 if t < 9 else 0})")
        A += front2(mf, rreads(t + 2) if t < 8 else [], 2)
    for i in range(6): A.append(f"v_mov_b32 v{PRM+i}, v{PRM+6+i}")
    return [a for a in A if a != "s_nop 0"]

def split(atoms, n):
    tot = sum(a.count("\n") + 1 for a in atoms); out = [[] for _ in range(n)]; acc = 0
    for a in atoms:
        out[min(n - 1, acc * n // tot)].append(a); acc += a.count("\n") + 1
    return out


REG = 21504
def conv_pre(k, o):
    k.srd(24, 4, XBYTES, add=WS_XT)
    k.srd(44, 4, XBYTES, add=WS_YT)
    k(f"s_mul_i32 s59, s57, {REG}\ns_mov_b32 s30, {FL_T}")
    k(f"s_cmp_ge_u32 s58, 288\ns_cselect_b32 s33, 4, 0\nv_lshlrev_b32 v44, 3, v{VL}\ns_add_u32 s30, s30, s33\nv_add_u32 v44, s30, v44")
    L = k.label("ft"); D = k.label("ftd")
    k(f"s_mov_b32 s62, 0\n{L}:")
    for i in range(4): k(f"buffer_load_dword v{48+i}, v44, s[{FLS}:{FLS+3}], 0 offen offset:{i*512} sc1")
    k(f"s_add_u32 s62, s62, 1\ns_waitcnt vmcnt(0)\nv_cmp_ne_u32 vcc, s{NON}, v48")
    for i in range(1, 4): k(f"v_cmp_ne_u32 s[60:61], s{NON}, v{48+i}\ns_or_b64 vcc, vcc, s[60:61]")
    k(f"s_cbranch_vccz {D}\ns_cmp_lt_u32 s62, {SPIN}\ns_cbranch_scc1 {L}\n{D}:")
    k(f"v_mul_u32_u24 v46, 9216, v{VL}\ns_lshl_b32 s30, s58, 4")
    for i in range(4):
        k(f"s_add_u32 m0, s59, {480+i*1024}\nbuffer_load_dwordx4 v46, s[24:27], s30 offen sc1 lds\ns_add_u32 s30, s30, {64*9216}")

def conv(k, o):
    g = KG; VJ, VG = g['VJ'], g['VG']
    CB = 4608 + 64
    k(f"""
    v_mov_b32 v48, 0
    v_mov_b32 v49, 0
    v_mov_b32 v50, 0
    v_mov_b32 v51, 0
    v_lshlrev_b32 v47, 4, v{VL}
    v_add_u32 v47, s59, v47
    {xm((1 << 30) - 1)}
    ds_write_b128 v47, v[48:51]
    {xm(3)}
    ds_write_b128 v47, v[48:51] offset:{CB + 4096}
    s_mov_b64 exec, -1
    v_lshlrev_b32 v44, 3, v{VG}
    v_lshl_add_u32 v45, v{VJ}, 5, v44
    v_sub_u32 v52, {CB + 2*(2044-256)}, v45
    v_add_u32 v52, s59, v52
    v_lshl_add_u32 v45, v{VJ}, 7, v44
    v_sub_u32 v53, {CB + 2*(2044-1072)}, v45
    v_add_u32 v53, s59, v53
    """)
    for t in range(10):
        if t < 2: va, off = 52, 2 * (256 - 256 * t)
        else:
            tb = (512 if t < 6 else 1024) + 16 * ((t - 2) % 4); va, off = 53, 2 * (1072 - tb)
        a = 4 * t; p = 54 + 2 * (t % 4)
        if t == 2: k(xm(0x00ff00ff00ff00ff))
        if t == 6: k("s_mov_b64 exec, -1")
        k(f"v_cvt_pk_bf16_f32 v{p}, v{a+3}, v{a+2}\nv_cvt_pk_bf16_f32 v{p+1}, v{a+1}, v{a}\nds_write_b64 v{va}, v[{p}:{p+1}] offset:{off}")
    for it in range(5):
        b = 64 + 20 * (it % 2) if False else 64 + 6 * it
        if it == 4: k(xm(3))
        k(f"ds_read_b128 v[{b}:{b+3}], v47 offset:{CB + it*1024}\nds_read_b64 v[{b+4}:{b+5}], v47 offset:{CB + it*1024 + 16}")
    k("s_mov_b64 exec, -1")
    for it in range(5):
        b = 64 + 6 * it; e = 96 + 12 * (it % 2)
        k(f"s_waitcnt lgkmcnt({min(15, 2*(4-it) + 3*min(it, 1))})" if False else "s_waitcnt lgkmcnt(0)" if it == 0 else "")
        if it == 4: k(xm(3))
        for i in range(4): k(f"v_alignbit_b32 v{e+i}, v{b+i+1}, v{b+i}, 16")
        for i in range(4): k(f"v_mov_b32 v{e+4+i}, v{b+i+1}")
        for i in range(3): k(f"v_mov_b32 v{e+8+i}, v{e+1+i}")
        k(f"v_alignbit_b32 v{e+11}, v{b+5}, v{b+4}, 16")
        for s_ in range(3): k(f"ds_write_b128 v47, v[{e+4*s_}:{e+4*s_+3}] offset:{CB + (s_+1)*4160 + it*1024}")
    k("s_mov_b64 exec, -1")
    VF, VGa = 140, 141
    k(f"""
    v_sub_u32 v44, 3, v{VJ}
    v_and_b32 v44, 3, v44
    v_mul_u32_u24 v44, 4160, v44
    v_lshrrev_b32 v45, 2, v{VJ}
    v_lshlrev_b32 v45, 3, v45
    v_sub_u32 v44, v44, v45
    v_lshl_add_u32 v44, v{VG}, 4, v44
    v_add_u32 v44, {CB + 2*(2028-2016)}, v44
    v_add_u32 v{VF}, s59, v44
    v_lshlrev_b32 v45, 5, v{VJ}
    v_lshl_add_u32 v{VGa}, v{VG}, 4, v45
    v_add_u32 v{VGa}, s59, v{VGa}
    v_lshl_add_u32 v130, v{VG}, 3, v45       ; 2*(16j+4g)
    v_add_u32 v131, s59, v130
    v_mov_b32 v132, v{g['DSK']}
    v_mov_b32 v133, v{g['DSK']}
    """)
    for i in range(32): k(f"v_mov_b32 v{i}, 0")
    SETS = [32, 142]
    def creads(s, rho):
        b = SETS[s]; L = []
        for m in range(8):
            gg = b + 32 + 4 * m; f = b + 4 * m
            L.append(f"ds_read_b128 v[{gg}:{gg+3}], v{VGa} offset:{64*(8*m + 7 - rho)}")
            L.append(f"ds_read_b64 v[{f}:{f+1}], v{VF} offset:{64*(63 - 8*m - rho)}")
            L.append(f"ds_read_b64 v[{f+2}:{f+3}], v{VF} offset:{64*(63 - 8*m - rho) + 8}")
        return L
    def cm(s):
        b = SETS[s]; L = []
        for m in range(8):
            for I in range(m, 8):
                gg = b + 32 + 4 * (I - m); f = b + 4 * m
                L.append(f"v_mfma_f32_16x16x32_bf16 v[{4*I}:{4*I+3}], v[{f}:{f+3}], v[{gg}:{gg+3}], v[{4*I}:{4*I+3}]")
        return L
    k("s_waitcnt vmcnt(0) lgkmcnt(0)")
    k.stamp(13)
    k("\n".join(creads(0, 0)))
    k(f"s_mov_b32 s35, 0\nfz_cv:\ns_waitcnt lgkmcnt(0)")
    k("\n".join(front(cm(0), creads(1, 1))))
    k(f"v_subrev_u32 v{VF}, 128, v{VF}\nv_subrev_u32 v{VGa}, 128, v{VGa}\ns_waitcnt lgkmcnt(0)")
    k("\n".join(front(cm(1), creads(0, 0))))
    k("s_add_u32 s35, s35, 1\ns_cmp_lt_u32 s35, 4\ns_cbranch_scc1 fz_cv")
    if o.get('p3'): k.stamp(2)
    k(f"s_lshl_b32 s30, s58, 12\ns_lshl_b32 s31, s58, 2\ns_add_u32 s31, s31, {FL_Y}\ns_waitcnt lgkmcnt(0)")
    for I in range(8): k(f"ds_read_b64 v[{32+2*I}:{33+2*I}], v131 offset:{480 + 512*I}")
    k("s_waitcnt lgkmcnt(0)")
    for I in range(8):
        a = 4 * I; oo = 64 + 2 * I
        for hh in range(2):
            u = 32 + 2 * I + hh; t = 100 + 8 * hh
            k(f"""
            v_lshlrev_b32 v{t}, 16, v{u}
            v_and_b32 v{t+1}, 0xffff0000, v{u}
            v_pk_mul_f32 v[{t}:{t+1}], v[{t}:{t+1}], v[132:133]
            v_cvt_pk_bf16_f32 v{t+2}, v{t}, v{t+1}
            v_cvt_pk_bf16_f32 v{t+3}, v{a+2*hh}, v{a+2*hh+1}
            v_lshlrev_b32 v{t}, 16, v{t+2}
            v_and_b32 v{t+1}, 0xffff0000, v{t+2}
            v_lshlrev_b32 v{t+4}, 16, v{t+3}
            v_and_b32 v{t+5}, 0xffff0000, v{t+3}
            v_pk_add_f32 v[{t}:{t+1}], v[{t}:{t+1}], v[{t+4}:{t+5}]
            v_cvt_pk_bf16_f32 v{oo+hh}, v{t}, v{t+1}
            """)
        k(f"buffer_store_dwordx2 v[{oo}:{oo+1}], v130, s[44:47], s30 offen offset:{512*I} sc1")
    if o.get('p3'): k.stamp(4)
    set_flag(k, 0, 1, 31)
    k.stamp(14)
    k("s_branch fz_fin")

class Gemm3:
  def __init__(self, k, o):
    self.g = self.run(k, o)
  def pre(self): next(self.g)
  def wcheck(self): next(self.g)
  def wregs(self): next(self.g)
  def main(self): next(self.g, None)
  def run(self, k, o):
    RS = 336; RED = 65536; YL = RED + 4 * 64 * RS
    TP, E = 20, 21
    k(f"""
    s_load_dwordx2 s[6:7], s[0:1], {ARG['x']}
    s_load_dwordx2 s[8:9], s[0:1], {ARG['out']}
    s_add_u32 s29, s{C}, s{W}
    s_and_b32 s29, s29, 15
    s_lshl_b32 s{TP}, s{P}, 1
    s_lshr_b32 s10, s{C}, 3
    s_add_u32 s{TP}, s{TP}, s10
    s_and_b32 s{E}, s{C}, 7
    """)
    k.srd(24, 4, WOBYTES, add=WS_WO)
    k.srd(36, 4, XBYTES, add=WS_YT)
    ACC = 0; RING = 80
    V16, V8, VH16, VH8 = 242, 243, 244, 245
    k(f"""
    v_lshlrev_b32 v{V16}, 4, v{VL}
    v_lshlrev_b32 v{V8}, 3, v{VL}
    v_lshrrev_b32 v232, 4, v{VL}
    v_and_b32 v233, 7, v{VL}
    v_lshl_add_u32 v233, v232, 3, v233
    v_and_b32 v234, 8, v{VL}
    v_cmp_eq_u32 vcc, 0, v234
    v_lshlrev_b32 v234, 4, v233
    v_lshlrev_b32 v235, 3, v233
    v_mov_b32 v236, {OOB}
    v_cndmask_b32 v{VH16}, v236, v234, vcc
    v_cndmask_b32 v{VH8}, v236, v235, vcc
    s_mul_i32 s57, s{TP}, {64*4608}
    s_mul_i32 s58, s{E}, {16*20736}
    v_lshrrev_b32 v232, 3, v{VL}
    v_lshl_add_u32 v232, v232, 2, s29
    v_and_b32 v232, 15, v232
    v_lshlrev_b32 v237, 5, v232
    v_and_b32 v233, 7, v{VL}
    v_lshl_add_u32 v237, v233, 2, v237
    s_lshl_b32 s10, s{E}, 9
    s_add_u32 s10, s10, {FL_W}
    v_add_u32 v237, s10, v237
    v_lshrrev_b32 v232, 1, v{VL}
    v_lshl_add_u32 v232, v232, 2, s29
    v_and_b32 v232, 15, v232
    v_and_b32 v233, 1, v{VL}
    v_lshlrev_b32 v233, 2, v233
    v_lshl_add_u32 v250, v232, 3, v233
    s_lshl_b32 s11, s{TP}, 7
    s_add_u32 s11, s11, {FL_H}
    v_add_u32 v250, s11, v250
    s_waitcnt lgkmcnt(0)
    """)
    def setgrp(dW):
        k(f"s_mul_i32 s50, s29, 4608\ns_add_u32 s50, s50, s57\ns_add_u32 s51, s50, {16*4608}\ns_add_u32 s52, s50, {32*4608}\ns_add_u32 s63, s50, {48*4608}")
        k(f"s_mul_i32 s54, s29, 20736\ns_add_u32 s54, s54, s58")
    def nextgrp(): k("s_add_u32 s29, s29, 4\ns_and_b32 s29, s29, 15"); setgrp(0)
    def hcheck(i):
        L = k.label("hc"); D = k.label("hd")
        k(f"""
        {L}:
        s_and_b32 s33, s59, {3 << (2*i)}
        s_cbranch_scc0 {D}
        s_add_u32 s62, s62, 1
        s_cmp_ge_u32 s62, {SPIN}
        s_cbranch_scc1 {D}
        {xm(0xff)}
        buffer_load_dword v251, v250, s[{FLS}:{FLS+3}], 0 offen sc1
        s_waitcnt vmcnt(0)
        v_cmp_ne_u32 vcc, s{NON}, v251
        s_mov_b64 exec, -1
        s_mov_b32 s59, vcc_lo
        s_branch {L}
        {D}:
        """)
    k.srd(40, 6, XBYTES)
    k.srd(44, 8, XBYTES)
    def loadsW(q):
        b = RING + 36 * q; L = []
        if q < 4:
            L.append(f"s_add_u32 s55, s54, {q*4608}")
            for dt in range(4): L.append(f"buffer_load_dwordx4 v[{b+16+4*dt}:{b+19+4*dt}], v{V16}, s[24:27], s55 offen offset:{dt*1024} sc1")
            L.append(f"s_add_u32 s55, s55, 4096")
            L.append(f"buffer_load_dwordx4 v[{b+32}:{b+35}], v{VH16}, s[24:27], s55 offen sc1")
        else:
            L.append(f"s_add_u32 s55, s54, 18432")
            for dt in range(4): L.append(f"buffer_load_dwordx2 v[{b+8+2*dt}:{b+9+2*dt}], v{V8}, s[24:27], s55 offen offset:{dt*512} sc1")
            L.append(f"buffer_load_dwordx2 v[{b+16}:{b+17}], v{VH8}, s[24:27], s55 offen offset:2048 sc1")
        return L
    def loadsH(q):
        b = RING + 36 * q; L = []
        if q < 4:
            for tb in range(4): L.append(f"buffer_load_dwordx4 v[{b+4*tb}:{b+4*tb+3}], v{V16}, s[12:15], s{[50, 51, 52, 63][tb]} offen offset:{q*1024} sc1")
        else:
            for tb in range(4): L.append(f"s_add_u32 s55, s{[50, 51, 52, 63][tb]}, 4096\nbuffer_load_dwordx2 v[{b+2*tb}:{b+2*tb+1}], v{V8}, s[12:15], s55 offen sc1")
        return L
    def mf(q):
        b = RING + 36 * q; out = []
        for dt in range(5):
            for tb in range(4):
                a = ACC + (dt * 4 + tb) * 4
                if q < 4: out.append(f"v_mfma_f32_16x16x32_bf16 v[{a}:{a+3}], v[{b+16+4*dt}:{b+19+4*dt}], v[{b+4*tb}:{b+4*tb+3}], v[{a}:{a+3}]")
                else: out.append(f"v_mfma_f32_16x16x16_bf16 v[{a}:{a+3}], v[{b+8+2*dt}:{b+9+2*dt}], v[{b+2*tb}:{b+2*tb+1}], v[{a}:{a+3}]")
        return out
    setgrp(0)
    yield
    L = k.label("wf"); D = k.label("wfd")
    k(f"""
    s_mov_b32 s62, 0
    {xm(0x1f1f1f1f)}
    {L}:
    s_waitcnt vmcnt(0)
    v_cmp_ne_u32 vcc, s{NON}, v238
    s_cbranch_vccz {D}
    s_add_u32 s62, s62, 1
    s_cmp_ge_u32 s62, {SPIN}
    s_cbranch_scc1 {D}
    buffer_load_dword v238, v237, s[{FLS}:{FLS+3}], 0 offen sc1
    s_branch {L}
    {D}:
    s_mov_b64 exec, -1
    """)
    yield
    if o.get('p3'): k.stamp(2)
    k("s_setprio 0")
    for q in range(5): k("\n".join(loadsW(q)))
    k(f"s_mul_i32 s56, s{W}, {64*RS}\ns_add_u32 s56, s56, {RED}\ns_add_u32 s55, s29, 4\ns_and_b32 s55, s55, 15\ns_mul_i32 s55, s55, 20736\ns_add_u32 s55, s55, s58")
    for i in range(21):
        if i == 20: k(xm(0xffff))
        k(f"s_add_u32 m0, s56, {i*1024}\nbuffer_load_dwordx4 v{V16}, s[24:27], s55 offen sc1 lds\ns_add_u32 s55, s55, 1024")
    k("s_mov_b64 exec, -1")
    yield
    k("s_mov_b64 exec, -1")
    k(f"v_add_u32 v246, s56, v{V16}\nv_add_u32 v247, s56, v{V8}\nv_and_b32 v248, 0x1ff, v{VH16}\nv_add_u32 v248, s56, v248\nv_and_b32 v249, 0xff, v{VH8}\nv_add_u32 v249, s56, v249")
    for i in range(80): k(f"v_mov_b32 v{ACC+i}, 0")
    k("s_mov_b32 s59, 0xff\ns_mov_b32 s62, 0")
    hcheck(0)
    k.stamp(14)
    def ldsW(q):
        b = RING + 36 * q; L = []
        if q < 4:
            for dt in range(4): L.append(f"ds_read_b128 v[{b+16+4*dt}:{b+19+4*dt}], v246 offset:{q*4608 + dt*1024}")
            L.append(f"ds_read_b128 v[{b+32}:{b+35}], v248 offset:{q*4608 + 4096}")
        else:
            for dt in range(4): L.append(f"ds_read_b64 v[{b+8+2*dt}:{b+9+2*dt}], v247 offset:{18432 + dt*512}")
            L.append(f"ds_read_b64 v[{b+16}:{b+17}], v249 offset:{18432 + 2048}")
        return L
    for q in range(5): k("\n".join(loadsH(q)))
    nextgrp(); hcheck(1)
    for q in range(5):
        k("s_waitcnt vmcnt(16)")
        k("\n".join(mf(q)))
        k("\n".join(loadsH(q) + ldsW(q)))
    nextgrp(); hcheck(2)
    for q in range(5):
        k(f"s_waitcnt vmcnt({4*(4-q) + 9*q}) lgkmcnt(0)")
        k("\n".join(mf(q)))
        k("\n".join(loadsH(q) + loadsW(q)))
    nextgrp(); hcheck(3)
    for q in range(5):
        k("s_waitcnt vmcnt(36)")
        k("\n".join(mf(q)))
        k("\n".join(loadsH(q) + loadsW(q)))
    for q in range(5):
        k(f"s_waitcnt vmcnt({9*(4-q)})")
        k("\n".join(mf(q)))
    XB = RING
    if o.get('p3'): k.stamp(3)
    k(f"""
    s_waitcnt vmcnt(0)
    s_lshl_b32 s30, s{TP}, 6
    v_add_u32 v{V8}, s30, v{VL}
    v_mul_u32_u24 v{V8}, 1152, v{V8}
    s_mul_i32 s30, s{E}, 144
    s_lshl_b32 s31, s{W}, 4
    s_add_u32 s30, s30, s31
    v_add_u32 v{V8}, s30, v{V8}
    buffer_load_dwordx4 v[{XB}:{XB+3}], v{V8}, s[40:43], 0 offen
    buffer_load_dwordx4 v[{XB+4}:{XB+7}], v{V8}, s[40:43], 0 offen offset:64
    buffer_load_dwordx4 v[{XB+8}:{XB+11}], v{V8}, s[40:43], 0 offen offset:128
    v_and_b32 v{VH16}, 15, v{VL}
    v_mul_u32_u24 v{VH16}, {RS}, v{VH16}
    v_lshrrev_b32 v{VH8}, 4, v{VL}
    v_lshl_add_u32 v{VH16}, v{VH8}, 4, v{VH16}
    s_mul_i32 s30, s{W}, {64*RS}
    s_add_u32 s30, s30, {RED}
    v_add_u32 v{VH16}, s30, v{VH16}
    """)
    for dt in range(5):
        for tb in range(4):
            a = ACC + (dt * 4 + tb) * 4
            k(f"ds_write_b128 v{VH16}, v[{a}:{a+3}] offset:{tb*16*RS + dt*64}")
    k(f"s_mul_i32 s30, s{E}, 288\ns_add_u32 s30, s30, {FL_Y}")
    if o.get('p3'): k.stamp(4)
    poll(k, 100, 102, 30, 36, 2)
    if o.get('p3'): k.stamp(5)
    k(f"""
    v_lshrrev_b32 v3, 3, v{VL}
    v_and_b32 v4, 7, v{VL}
    v_lshlrev_b32 v3, 12, v3
    v_lshl_add_u32 v3, v4, 4, v3
    s_mul_i32 s30, s{E}, {72*4096}
    s_lshl_b32 s31, s{TP}, 7
    s_add_u32 s30, s30, s31
    s_lshl_b32 s31, s{W}, 15
    s_add_u32 s30, s30, s31
    s_lshl_b32 s31, s{W}, 10
    s_add_u32 m0, s31, {YL}
    buffer_load_dwordx4 v3, s[36:39], s30 offen sc1 lds
    s_add_u32 s30, s30, {4*32768}
    s_add_u32 m0, s31, {YL+4096}
    buffer_load_dwordx4 v3, s[36:39], s30 offen sc1 lds
    s_cmp_lg_u32 s{W}, 0
    s_cbranch_scc1 fz_y2
    s_add_u32 s30, s30, {4*32768}
    s_mov_b32 m0, {YL+8192}
    buffer_load_dwordx4 v3, s[36:39], s30 offen sc1 lds
    fz_y2:
    s_waitcnt lgkmcnt(0)
    s_barrier
    v_mul_u32_u24 v{VH16}, {RS}, v{VL}
    s_lshl_b32 s30, s{W}, 5
    s_add_u32 s30, s30, {RED}
    v_add_u32 v{VH16}, s30, v{VH16}
    v_lshlrev_b32 v{VH8}, 1, v{VL}
    s_lshl_b32 s30, s{W}, 10
    s_add_u32 s30, s30, {YL}
    v_add_u32 v{VH8}, s30, v{VH8}
    """)
    def fin(ps):
        Pp = 0; Y = 40; Tm = 48
        for w in range(4):
            for hh in range(2):
                k(f"ds_read_b128 v[{Pp+8*w+4*hh}:{Pp+8*w+4*hh+3}], v{VH16} offset:{w*64*RS + ps*128 + hh*16}")
        if ps == 0: k("s_waitcnt vmcnt(0)")
        for i in range(8): k(f"ds_read_u16 v{Y+i}, v{VH8} offset:{ps*4096 + i*128}")
        k("s_waitcnt lgkmcnt(0)")
        for i in range(4):
            a = Pp + 2 * i
            k(f"""
            v_pk_add_f32 v[{a}:{a+1}], v[{a}:{a+1}], v[{a+8}:{a+9}]
            v_pk_add_f32 v[{a+16}:{a+17}], v[{a+16}:{a+17}], v[{a+24}:{a+25}]
            v_pk_add_f32 v[{a}:{a+1}], v[{a}:{a+1}], v[{a+16}:{a+17}]
            v_cvt_pk_bf16_f32 v{Tm}, v{a}, v{a+1}
            v_lshlrev_b32 v{a}, 16, v{Tm}
            v_and_b32 v{a+1}, 0xffff0000, v{Tm}
            v_lshlrev_b32 v{Tm+2}, 16, v{XB+4*ps+i}
            v_and_b32 v{Tm+3}, 0xffff0000, v{XB+4*ps+i}
            v_lshlrev_b32 v{Tm+4}, 16, v{Y+2*i}
            v_lshlrev_b32 v{Tm+5}, 16, v{Y+2*i+1}
            v_pk_add_f32 v[{Tm+2}:{Tm+3}], v[{Tm+2}:{Tm+3}], v[{Tm+4}:{Tm+5}]
            v_cvt_pk_bf16_f32 v{Tm}, v{Tm+2}, v{Tm+3}
            v_lshlrev_b32 v{Tm+2}, 16, v{Tm}
            v_and_b32 v{Tm+3}, 0xffff0000, v{Tm}
            v_pk_add_f32 v[{a}:{a+1}], v[{a}:{a+1}], v[{Tm+2}:{Tm+3}]
            v_cvt_pk_bf16_f32 v{56+4*ps+i}, v{a}, v{a+1}
            """)
        k(f"buffer_store_dwordx4 v[{56+4*ps}:{59+4*ps}], v{V8}, s[44:47], 0 offen offset:{ps*64}")
    if o.get('p3'): k.stamp(6)
    fin(0); fin(1)
    if o.get('p3'): k.stamp(7)
    k(f"s_cmp_lg_u32 s{W}, 0\ns_cbranch_scc1 fz_fin")
    fin(2)
    k(f"""
    s_cmp_lg_u32 s2, 0
    s_cbranch_scc1 fz_fin
    v_mov_b32 v0, 0
    v_mov_b32 v1, s{NON}
    s_mov_b64 exec, 1
    buffer_store_dword v1, v0, s[{FLS}:{FLS+3}], 0 offen
    s_mov_b64 exec, -1
    s_branch fz_fin
    """)
```

```python
import sys; sys.path.insert(0, "dev")
from asmgen import *
WS_Z2 = 0
WS_Z1 = 0x900000
WS_H = 0x1200000
FRAG9 = 9437184

def wg_map(k, s_p, s_c):
    k(f"""
    s_and_b32 s90, s2, 7
    s_lshr_b32 s91, s2, 3
    s_and_b32 s{s_p}, s90, 1
    s_lshl_b32 s{s_p}, s{s_p}, 3
    s_lshr_b32 s92, s91, 2
    s_add_u32 s{s_p}, s{s_p}, s92
    s_lshr_b32 s{s_c}, s90, 1
    s_lshl_b32 s{s_c}, s{s_c}, 2
    s_and_b32 s92, s91, 3
    s_add_u32 s{s_c}, s{s_c}, s92
    """)

def interleave(mf, other, start=0, every=1):
    out = []; oi = 0
    for i, m in enumerate(mf):
        out.append(m)
        if i >= start and (i - start) % every == 0 and oi < len(other):
            out.append(other[oi]); oi += 1
    out += other[oi:]
    return out

def gen_g2(NS=4, no_mfma=False, no_reads=False, no_dma=False, stamp=False, prio=0, nstage=32, prof=None):
    SLOT = 34816
    k = Kern("g2_kernel", 256, 512, NS * SLOT)
    if prof is not None: k.prof = True
    k.stamp(0, True); k.stamp(1)
    end = "g2_end"
    P, C, W = 20, 21, 22
    k(f"""
    s_cmp_ge_u32 s2, 256
    s_cbranch_scc1 {end}
    s_load_dwordx2 s[4:5], s[0:1], {ARG['ws']}
    s_load_dwordx2 s[6:7], s[0:1], {ARG['w_sp']}
    s_load_dwordx2 s[8:9], s[0:1], {ARG['b_sp']}
    s_load_dwordx2 s[10:11], s[0:1], {ARG['dbg']}
    v_lshrrev_b32 v1, 6, v0
    v_and_b32 v2, 63, v0
    v_readfirstlane_b32 s{W}, v1
    """)
    wg_map(k, P, C)
    if stamp: k("s_memtime s[60:61]")
    k(f"""
    s_waitcnt lgkmcnt(0)
    s_cmp_ge_u32 s{W}, 4
    s_cbranch_scc1 g2_loader
    """)
    ACC = 0
    FX = 72; FY = 116
    Z1 = 160
    VA, VB0, VB1, VAb, VB0b, VB1b = 196, 197, 198, 199, 200, 201
    VL, VT, VBS = 202, 203, 204
    VO = 206
    k(f"v_mov_b32 v{VL}, v2")
    k.srd(12, 4, FRAG9, add=WS_Z1)
    k.srd(16, 4, FRAG9, add=WS_H)
    k.srd(24, 8, 4096)
    k(f"""
    s_lshl_b32 s30, s{P}, 3
    s_lshl_b32 s31, s{W}, 1
    s_add_u32 s30, s30, s31          ; tt0
    s_lshl_b32 s31, s30, 4
    s_add_u32 s31, s31, s{C}
    s_mul_i32 s31, s31, 4608
    s_add_u32 s32, s31, {16*4608}    ; tb=1
    v_lshlrev_b32 v{VO}, 4, v{VL}    ; lane*16
    v_lshlrev_b32 v{VO+1}, 3, v{VL}  ; lane*8
    """)
    for tb in range(2):
        for q in range(4):
            r = Z1 + tb * 18 + q * 4
            k(f"buffer_load_dwordx4 v[{r}:{r+3}], v{VO}, s[12:15], s{31+tb} offen offset:{q*1024}")
        r = Z1 + tb * 18 + 16
        k(f"s_add_u32 s33, s{31+tb}, 4096\nbuffer_load_dwordx2 v[{r}:{r+1}], v{VO+1}, s[12:15], s33 offen")
    k(f"""
    v_and_b32 v{VT}, 15, v{VL}
    s_lshl_b32 s33, s30, 4
    v_add_u32 v{VT}, s33, v{VT}
    v_lshlrev_b32 v{VT}, 1, v{VT}
    buffer_load_ushort v{VBS}, v{VT}, s[24:27], 0 offen
    buffer_load_ushort v{VBS+1}, v{VT}, s[24:27], 0 offen offset:32
    """)
    k(f"""
    v_mov_b32 v{VAb}, v{VO}
    v_and_b32 v{VT}, 15, v{VL}              ; j
    v_lshrrev_b32 v{VB0b}, 4, v{VL}         ; g
    v_lshrrev_b32 v{VB1b}, 1, v{VT}         ; f0 = j>>1
    v_xor_b32 v{VB0b}, v{VB0b}, v{VB1b}
    v_lshlrev_b32 v{VB0b}, 4, v{VB0b}
    v_lshl_add_u32 v{VB0b}, v{VT}, 7, v{VB0b}
    s_lshl_b32 s33, s{W}, 12
    s_add_u32 s33, s33, 18432
    v_add_u32 v{VB0b}, s33, v{VB0b}
    v_xor_b32 v{VB1b}, 64, v{VB0b}
    v_mov_b32 v{VA}, v{VAb}
    v_mov_b32 v{VB0}, v{VB0b}
    v_mov_b32 v{VB1}, v{VB1b}
    s_mov_b32 s34, 0
    s_mov_b32 s35, 1
    """)
    for i in range(72): k(f"v_mov_b32 v{ACC+i}, 0")
    if prio: k(f"s_setprio {prio}")
    def reads(F, half):
        if no_reads: return []
        vb = VB0 if half == 0 else VB1
        r = [f"ds_read_b128 v[{F+4*tb}:{F+4*tb+3}], v{vb} offset:{tb*2048}" for tb in range(2)]
        r += [f"ds_read_b128 v[{F+8+4*ft}:{F+8+4*ft+3}], v{VA} offset:{(ft*2+half)*1024}" for ft in range(9)]
        return r
    def mfmas(F):
        if no_mfma: return []
        return [f"v_mfma_f32_16x16x32_bf16 v[{ACC+(ft*2+tb)*4}:{ACC+(ft*2+tb)*4+3}], v[{F+8+4*ft}:{F+8+4*ft+3}], v[{F+4*tb}:{F+4*tb+3}], v[{ACC+(ft*2+tb)*4}:{ACC+(ft*2+tb)*4+3}]"
                for ft in range(9) for tb in range(2)]
    adv = [f"s_add_u32 s34, s34, {SLOT}", f"s_cmp_ge_u32 s34, {SLOT*NS}", "s_cselect_b32 s34, 0, s34",
           f"v_add_u32 v{VA}, s34, v{VAb}", f"v_add_u32 v{VB0}, s34, v{VB0b}", f"v_add_u32 v{VB1}, s34, v{VB1b}"]
    k.stamp(2)
    k("s_barrier")
    k.stamp(3)
    k("\n".join(reads(FX, 0)))
    k("s_waitcnt lgkmcnt(0)")
    k("\n".join(interleave(mfmas(FX), reads(FY, 1) + adv)))
    k("s_waitcnt lgkmcnt(0)")
    k("g2_cloop:")
    k("s_barrier")
    k("\n".join(interleave(mfmas(FY), reads(FX, 0))))
    k("s_waitcnt lgkmcnt(0)")
    k("\n".join(interleave(mfmas(FX), reads(FY, 1) + adv + ["s_add_u32 s35, s35, 1"])))
    k(f"s_cmp_lt_u32 s35, {nstage}")
    k("s_waitcnt lgkmcnt(0)")
    k("s_cbranch_scc1 g2_cloop")
    k("\n".join(mfmas(FY)))
    k.stamp(4)
    if prio: k("s_setprio 0")
    k(f"""
    s_waitcnt vmcnt(0)
    v_lshlrev_b32 v{VBS}, 16, v{VBS}
    v_lshlrev_b32 v{VBS+2}, 16, v{VBS+1}
    v_mov_b32 v{VBS+1}, v{VBS}
    v_mov_b32 v{VBS+3}, v{VBS+2}
    s_nop 4
    """)
    VO2 = 210
    k(f"v_lshlrev_b32 v{VO2}, 4, v{VL}\nv_lshlrev_b32 v{VO2+1}, 3, v{VL}")
    T = FX
    for tb in range(2):
        b = VBS + 2 * tb
        for q in range(5):
            nt = 2 if q < 4 else 1
            zr = Z1 + tb * 18 + q * 4
            o = T + (tb * 5 + q) % 4 * 12
            for t in range(nt):
                a = ACC + ((2 * q + t) * 2 + tb) * 4
                for hh in range(2):
                    z = zr + t * 2 + hh
                    k(f"""
                    v_pk_add_f32 v[{a+2*hh}:{a+2*hh+1}], v[{a+2*hh}:{a+2*hh+1}], v[{b}:{b+1}]
                    v_lshlrev_b32 v{o+4}, 16, v{z}
                    v_and_b32 v{o+5}, 0xffff0000, v{z}
                    v_pk_mul_f32 v[{a+2*hh}:{a+2*hh+1}], v[{a+2*hh}:{a+2*hh+1}], v[{o+4}:{o+5}]
                    v_cvt_pk_bf16_f32 v{o+t*2+hh}, v{a+2*hh}, v{a+2*hh+1}
                    """)
            if q < 4:
                k(f"buffer_store_dwordx4 v[{o}:{o+3}], v{VO2}, s[16:19], s{31+tb} offen offset:{q*1024}")
            else:
                k(f"s_add_u32 s33, s{31+tb}, 4096\nbuffer_store_dwordx2 v[{o}:{o+1}], v{VO2+1}, s[16:19], s33 offen")
    k.stamp(5); k("s_waitcnt vmcnt(0)"); k.stamp(6); k.stamp(7, True)
    k.prof_dump(prof, 4, W, 8)
    if stamp:
        k(f"""
        s_waitcnt vmcnt(0)
        s_memtime s[62:63]
        s_waitcnt lgkmcnt(0)
        s_sub_u32 s62, s62, s60
        s_cmp_ge_u32 s2, 64
        s_cbranch_scc1 {end}
        s_cmp_lg_u32 s{W}, 0
        s_cbranch_scc1 {end}
        v_mov_b32 v1, s62
        s_lshl_b32 s30, s2, 2
        v_mov_b32 v2, s30
        v_cmp_eq_u32 vcc, 0, v{VL}
        s_and_saveexec_b64 s[30:31], vcc
        global_store_dword v2, v1, s[10:11]
        """)
    k(f"s_branch {end}")
    k("g2_loader:")
    k(f"s_cmp_ge_u32 s{W}, 6\ns_cbranch_scc1 g2_loaderB")
    def loader(tag, n, setup, issue_one, kstep):
        setup()
        k("s_mov_b32 s40, 0\ns_mov_b32 s41, 0\ns_mov_b32 s35, 0")
        def issue():
            if not no_dma:
                for j in range(n): issue_one(j)
            k(f"""
            s_add_u32 s40, s40, {kstep}
            s_add_u32 s41, s41, {SLOT}
            s_cmp_ge_u32 s41, {SLOT*NS}
            s_cselect_b32 s41, 0, s41
            """)
        for _ in range(NS - 1): issue()
        k(f"g2_l{tag}:")
        k(f"s_waitcnt vmcnt({n*(NS-2)})\ns_barrier")
        issue()
        k(f"s_add_u32 s35, s35, 1\ns_cmp_lt_u32 s35, {nstage-(NS-1)}\ns_cbranch_scc1 g2_l{tag}")
        for r in range(NS - 2, -1, -1):
            k(f"s_waitcnt vmcnt({n*r})\ns_barrier")
        k(f"s_branch {end}")
    def setupA():
        k.srd(12, 4, FRAG9, add=WS_Z2)
        k(f"s_sub_u32 s30, s{W}, 4\ns_mul_i32 s30, s30, 9\ns_mul_i32 s31, s{C}, 9\nv_lshlrev_b32 v3, 4, v2")
        for j in range(9):
            k(f"""
            s_add_u32 s32, s30, {j}
            s_lshl_b32 s{44+j}, s32, 10
            s_lshr_b32 s33, s32, 1
            s_add_u32 s33, s33, s31
            s_lshl_b32 s33, s33, 6
            s_and_b32 s32, s32, 1
            s_add_u32 s33, s33, s32
            s_lshl_b32 s33, s33, 10
            v_add_u32 v{10+j}, s33, v3
            """)
    def issueA(j):
        k(f"s_add_u32 m0, s41, s{44+j}\ns_nop 0\nbuffer_load_dwordx4 v{10+j}, s[12:15], s40 offen lds")
    loader("A", 9, setupA, issueA, 2048)
    k("g2_loaderB:")
    def setupB():
        k.srd(12, 6, 2048 * 4096)
        k(f"""
        s_sub_u32 s30, s{W}, 6
        s_lshl_b32 s30, s30, 3            ; gi0
        v_lshrrev_b32 v3, 3, v2
        v_and_b32 v4, 7, v2               ; pos
        v_lshrrev_b32 v5, 4, v2
        v_xor_b32 v4, v4, v5
        v_and_b32 v5, 1, v4
        v_lshlrev_b32 v5, 1, v5
        v_bfe_u32 v6, v4, 1, 1
        v_and_b32 v4, 4, v4
        v_or_b32 v4, v4, v5
        v_or_b32 v4, v4, v6
        v_lshlrev_b32 v4, 4, v4
        v_lshl_add_u32 v4, v3, 12, v4
        v_xor_b32 v5, 64, v4
        s_lshl_b32 s31, s{P}, 19          ; p*128*4096
        """)
        for j in range(8):
            k(f"""
            s_add_u32 s32, s30, {j}
            s_lshl_b32 s33, s32, 10
            s_add_u32 s{44+j}, s33, 18432
            s_lshl_b32 s33, s32, 15
            s_add_u32 s33, s33, s31
            v_add_u32 v{10+j}, s33, v{4 + (j & 1)}
            """)
    def issueB(j):
        k(f"s_add_u32 m0, s41, s{44+j}\ns_nop 0\nbuffer_load_dwordx4 v{10+j}, s[12:15], s40 offen lds")
    loader("B", 8, setupB, issueB, 128)
    k(f"{end}:")
    return k

if __name__ == "__main__":
    opts = dict(a.split("=") for a in sys.argv[2:])
    opts = {a: int(b) for a, b in opts.items()}
    emit([gen_g2(**opts)], sys.argv[1])
```

```python
import sys; sys.path.insert(0, "dev")
from asmgen import *
from layout import *

def dpp_sum16(k, regs):
    for sh in (8, 4, 2, 1):
        for r in regs:
            k(f"v_add_f32_dpp v{r}, v{r}, v{r} row_ror:{sh} row_mask:0xf bank_mask:0xf")

def bf16_round(k, r):
    k(f"v_cvt_pk_bf16_f32 v{r}, v{r}, v{r}\nv_lshlrev_b32 v{r}, 16, v{r}")

def gen_k0(prof=None):
    k = Kern("k0_kernel", 256, 256, 24576)
    k.vg = 96; k.acc_off = 96; k.sg = 48
    if prof is not None: k.prof = True; k.sg = 102
    k.stamp(0, True); k.stamp(1)
    k(f"""
    s_cmp_ge_u32 s2, 256
    s_cbranch_scc1 k0_end
    s_load_dwordx2 s[4:5], s[0:1], {ARG['ws']}
    s_load_dwordx2 s[6:7], s[0:1], {ARG['x']}
    s_load_dwordx2 s[8:9], s[0:1], {ARG['w_out']}
    v_lshrrev_b32 v1, 6, v0
    v_and_b32 v2, 63, v0
    v_readfirstlane_b32 s22, v1
    s_cmp_ge_u32 s2, 128
    s_waitcnt lgkmcnt(0)
    s_cbranch_scc1 k0_repack
    """)
    k.srd(12, 6, XBYTES)
    k.srd(16, 4, XBYTES, add=WS_XN)
    k.srd(24, 4, XBYTES, add=WS_XT)
    k(f"""
    v_lshrrev_b32 v3, 4, v0
    v_and_b32 v4, 15, v0             ; e
    s_lshl_b32 s30, s2, 4
    v_add_u32 v5, s30, v3
    v_mul_u32_u24 v5, 1152, v5
    v_lshl_add_u32 v5, v4, 3, v5
    v_mul_u32_u24 v6, 1216, v3
    v_lshl_add_u32 v6, v4, 3, v6
    """)
    RAW = 10; X = 30
    for i in range(9):
        k(f"buffer_load_dwordx2 v[{RAW+2*i}:{RAW+2*i+1}], v5, s[12:15], 0 offen offset:{i*128}")
    k(f"""
    s_cmp_lg_u32 s2, 0
    s_cbranch_scc1 k0_nz
    """)
    k.srd(32, 4, 4096, add=WS_FL)
    k("""
    v_lshlrev_b32 v7, 2, v0
    v_mov_b32 v8, 0
    buffer_store_dword v8, v7, s[32:35], 0 offen
    buffer_store_dword v8, v7, s[32:35], 0 offen offset:1024
    buffer_store_dword v8, v7, s[32:35], 0 offen offset:2048
    buffer_store_dword v8, v7, s[32:35], 0 offen offset:3072
    k0_nz:
    s_waitcnt vmcnt(0)
    """)
    for i in range(18):
        k(f"v_lshlrev_b32 v{X+2*i}, 16, v{RAW+i}\nv_and_b32 v{X+2*i+1}, 0xffff0000, v{RAW+i}")
    S = 70
    k(f"v_pk_add_f32 v[{S}:{S+1}], v[{X}:{X+1}], v[{X+2}:{X+3}]")
    for i in range(2, 18):
        k(f"v_pk_add_f32 v[{S}:{S+1}], v[{S}:{S+1}], v[{X+2*i}:{X+2*i+1}]")
    k(f"v_add_f32 v{S}, v{S}, v{S+1}")
    dpp_sum16(k, [S])
    k(f"""
    v_mul_f32 v{S}, {1.0/576!r}, v{S}
    v_mov_b32 v{S+1}, v{S}
    v_mov_b32 v{S+2}, 0
    v_mov_b32 v{S+3}, 0
    """)
    for i in range(18):
        k(f"""
        v_pk_add_f32 v[{S+4}:{S+5}], v[{X+2*i}:{X+2*i+1}], v[{S}:{S+1}] neg_lo:[0,1] neg_hi:[0,1]
        v_pk_fma_f32 v[{S+2}:{S+3}], v[{S+4}:{S+5}], v[{S+4}:{S+5}], v[{S+2}:{S+3}]
        """)
    k(f"v_add_f32 v{S+2}, v{S+2}, v{S+3}")
    dpp_sum16(k, [S + 2])
    k(f"v_mul_f32 v{S+2}, {1.0/576!r}, v{S+2}")
    bf16_round(k, S + 2)
    k(f"v_add_f32 v{S+2}, {1e-5!r}, v{S+2}")
    bf16_round(k, S + 2)
    k(f"v_sqrt_f32 v{S+2}, v{S+2}")
    bf16_round(k, S + 2)
    k(f"v_rcp_f32 v{S+2}, v{S+2}")
    bf16_round(k, S)
    k(f"v_mov_b32 v{S+1}, v{S}\nv_mov_b32 v{S+3}, v{S+2}")
    for i in range(18):
        a = X + 2 * i
        k(f"""
        v_pk_add_f32 v[{a}:{a+1}], v[{a}:{a+1}], v[{S}:{S+1}] neg_lo:[0,1] neg_hi:[0,1]
        v_cvt_pk_bf16_f32 v{S+6}, v{a}, v{a+1}
        v_lshlrev_b32 v{a}, 16, v{S+6}
        v_and_b32 v{a+1}, 0xffff0000, v{S+6}
        v_pk_mul_f32 v[{a}:{a+1}], v[{a}:{a+1}], v[{S+2}:{S+3}]
        v_cvt_pk_bf16_f32 v{RAW+i}, v{a}, v{a+1}
        """)
    for i in range(9):
        k(f"buffer_store_dwordx2 v[{RAW+2*i}:{RAW+2*i+1}], v5, s[16:19], 0 offen offset:{i*128}")
        k(f"ds_write_b64 v6, v[{RAW+2*i}:{RAW+2*i+1}] offset:{i*128}")
    k(f"""
    s_waitcnt lgkmcnt(0)
    s_barrier
    v_bfe_u32 v3, v2, 2, 2           ; r
    v_and_b32 v4, 3, v2              ; cc
    v_lshrrev_b32 v7, 4, v2          ; group
    v_mul_u32_u24 v3, 1216, v3
    v_lshl_add_u32 v3, v4, 3, v3
    v_lshl_add_u32 v3, v7, 5, v3     ; + group*32B
    s_lshl_b32 s31, s22, 7           ; wave*128B (64 d)
    v_add_u32 v3, s31, v3
    s_mul_i32 s30, s2, {576*32}
    s_lshl_b32 s31, s22, 11          ; wave*64*32
    s_add_u32 s30, s30, s31
    v_lshlrev_b32 v4, 5, v2
    v_add_u32 v4, s30, v4
    """)
    def tpass(ps):
        b = X + 8 * ps
        for rd in range(4):
            k(f"ds_read_b64_tr_b16 v[{b+2*rd}:{b+2*rd+1}], v3 offset:{rd*4*1216 + ps*512}")
    def tstore(ps):
        b = X + 8 * ps
        k(f"s_mov_b32 s31, {ps*256*32}")
        k(f"buffer_store_dwordx4 v[{b}:{b+3}], v4, s[24:27], s31 offen")
        k(f"buffer_store_dwordx4 v[{b+4}:{b+7}], v4, s[24:27], s31 offen offset:16")
    tpass(0); tpass(1)
    k("s_waitcnt lgkmcnt(0)")
    tstore(0); tstore(1)
    k("s_cmp_lg_u32 s22, 0\ns_cbranch_scc1 k0_fin")
    tpass(2)
    k("s_waitcnt lgkmcnt(0)")
    tstore(2)
    k("s_branch k0_fin")
    k("k0_repack:")
    k.srd(12, 8, WOBYTES)
    k.srd(16, 4, WOBYTES, add=WS_WO)
    k(f"""
    s_sub_u32 s30, s2, 128
    s_lshr_b32 s31, s30, 4           ; e
    s_and_b32 s32, s30, 15           ; c'
    s_mul_i32 s33, s32, {144*1152}
    s_mul_i32 s34, s31, 144
    s_add_u32 s33, s33, s34
    s_mul_i32 s35, s30, 20736
    s_mov_b32 s36, {(1 << 16) // 9 + 1}
    """)
    for i in range(6):
        k(f"""
        v_add_u32 v3, {256*i}, v0
        v_mul_lo_u32 v4, v3, s36
        v_lshrrev_b32 v4, 16, v4     ; row
        v_mul_u32_u24 v5, 9, v4
        v_sub_u32 v5, v3, v5         ; cu
        v_mul_u32_u24 v6, 1152, v4
        v_lshl_add_u32 v6, v5, 4, v6
        v_mul_u32_u24 v{40+i}, 160, v4
        v_lshl_add_u32 v{40+i}, v5, 4, v{40+i}
        """)
        if i == 5:
            k("v_cmp_gt_u32 vcc, 16, v0\ns_and_saveexec_b64 s[38:39], vcc")
        k(f"buffer_load_dwordx4 v[{10+4*i}:{13+4*i}], v6, s[12:15], s33 offen")
        if i == 5: k("s_mov_b64 exec, s[38:39]")
    k("s_waitcnt vmcnt(0)")
    for i in range(6):
        if i == 5: k("s_and_saveexec_b64 s[38:39], vcc")
        k(f"ds_write_b128 v{40+i}, v[{10+4*i}:{13+4*i}]")
        if i == 5: k("s_mov_b64 exec, s[38:39]")
    k(f"""
    s_waitcnt lgkmcnt(0)
    s_barrier
    v_bfe_u32 v3, v2, 2, 2           ; r
    v_and_b32 v4, 3, v2              ; cc
    v_lshrrev_b32 v7, 4, v2          ; g
    v_lshl_add_u32 v3, v7, 2, v3     ; row = 4g + r
    v_mul_u32_u24 v3, 160, v3
    v_lshl_add_u32 v3, v4, 3, v3
    s_mul_i32 s30, s22, {32*160}
    v_add_u32 v5, s30, v3            ; q = wave
    s_lshl_b32 s30, s22, 5
    v_add_u32 v6, s30, v3
    """)
    for dt in range(5):
        k(f"ds_read_b64_tr_b16 v[{10+4*dt}:{11+4*dt}], v5 offset:{dt*32}")
        k(f"ds_read_b64_tr_b16 v[{12+4*dt}:{13+4*dt}], v5 offset:{dt*32 + 16*160}")
    k(f"ds_read_b64_tr_b16 v[30:31], v6 offset:{128*160}")
    k(f"ds_read_b64_tr_b16 v[32:33], v3 offset:{128*160 + 4*32}")
    k(f"""
    v_lshlrev_b32 v8, 4, v2          ; lane*16
    v_lshlrev_b32 v9, 3, v2          ; lane*8
    v_and_b32 v34, 7, v2
    v_lshl_add_u32 v34, v7, 3, v34
    v_lshlrev_b32 v35, 4, v34
    v_lshlrev_b32 v34, 3, v34
    v_and_b32 v36, 8, v2
    v_cmp_eq_u32 vcc, 0, v36
    s_mul_i32 s30, s22, 4608
    s_add_u32 s30, s30, s35
    s_lshl_b32 s31, s22, 9
    s_add_u32 s31, s31, s35
    s_add_u32 s31, s31, 18432
    s_add_u32 s32, s35, {18432 + 2048}
    s_add_u32 s33, s30, 4096
    s_waitcnt lgkmcnt(0)
    """)
    for dt in range(4):
        k(f"buffer_store_dwordx4 v[{10+4*dt}:{13+4*dt}], v8, s[16:19], s30 offen offset:{dt*1024}")
    k("buffer_store_dwordx2 v[30:31], v9, s[16:19], s31 offen")
    k("s_and_saveexec_b64 s[38:39], vcc")
    k("buffer_store_dwordx4 v[26:29], v35, s[16:19], s33 offen")
    k("s_cmp_lg_u32 s22, 0\ns_cbranch_scc1 k0_fin")
    k("buffer_store_dwordx2 v[32:33], v34, s[16:19], s32 offen")
    k("k0_fin:")
    k.stamp(2); k("s_waitcnt vmcnt(0)"); k.stamp(3); k.stamp(4, True)
    k.prof_dump(prof, 4, 22, 5)
    k("k0_end:")
    return k

if __name__ == "__main__":
    emit([gen_k0()], sys.argv[1])
```

```python
import sys, math; sys.path.insert(0, "dev")
from asmgen import *
from layout import *
from g2 import wg_map, interleave
from k0 import dpp_sum16, bf16_round
import struct
def fbits(x): return "0x%08x" % struct.unpack("<I", struct.pack("<f", x))[0]
C1 = -2.0 * math.sqrt(2.0 / math.pi) * math.log2(math.e)
C2 = C1 * 0.044715

def gelu_group(k, pairs, T, SC2, VC1, VONE):
    n = len(pairs)
    for i, a in enumerate(pairs): k(f"v_pk_mul_f32 v[{T+2*i}:{T+2*i+1}], v[{a}:{a+1}], v[{a}:{a+1}]")
    for i, a in enumerate(pairs): k(f"v_pk_fma_f32 v[{T+2*i}:{T+2*i+1}], v[{T+2*i}:{T+2*i+1}], s[{SC2}:{SC2+1}], v[{VC1}:{VC1+1}]")
    for i, a in enumerate(pairs): k(f"v_pk_mul_f32 v[{T+2*i}:{T+2*i+1}], v[{T+2*i}:{T+2*i+1}], v[{a}:{a+1}]")
    for i in range(2 * n): k(f"v_exp_f32 v{T+i}, v{T+i}")
    for i, a in enumerate(pairs): k(f"v_pk_add_f32 v[{T+2*i}:{T+2*i+1}], v[{T+2*i}:{T+2*i+1}], v[{VONE}:{VONE+1}]")
    for i in range(2 * n): k(f"v_rcp_f32 v{T+i}, v{T+i}")
    for i, a in enumerate(pairs): k(f"v_pk_mul_f32 v[{a}:{a+1}], v[{a}:{a+1}], v[{T+2*i}:{T+2*i+1}]")

def gen_k1(stamp=False, prof=None):
    SLOT = 53248; NS = 3; NST = 9
    SCR = NS * SLOT
    k = Kern("k1_kernel", 256, 512, SCR + 1024)
    if prof is not None: k.prof = True
    k.stamp(0, True); k.stamp(1)
    end = "k1_end"
    P, C, W = 20, 21, 22
    k(f"""
    s_cmp_ge_u32 s2, 256
    s_cbranch_scc1 {end}
    s_load_dwordx2 s[4:5], s[0:1], {ARG['ws']}
    s_load_dwordx2 s[6:7], s[0:1], {ARG['w_in']}
    s_load_dwordx2 s[10:11], s[0:1], {ARG['dbg']}
    v_lshrrev_b32 v1, 6, v0
    v_and_b32 v2, 63, v0
    v_readfirstlane_b32 s{W}, v1
    """)
    wg_map(k, P, C)
    if stamp: k("s_memtime s[60:61]")
    k("s_waitcnt lgkmcnt(0)")
    k.srd(12, 4, XBYTES, add=WS_XN)
    k.srd(16, 6, 576 * 9216)
    ACC = 0; FX = 72; FY = 116
    VD = 160
    VX0, VX1, VWe, VWo = 168, 169, 170, 171
    VX0b, VX1b, VWeb, VWob = 172, 173, 174, 175
    VL, VTID = 176, 177
    T = 180
    k(f"v_mov_b32 v{VL}, v2\nv_mov_b32 v{VTID}, v0")
    k(f"""
    v_lshrrev_b32 v3, 3, v2
    v_and_b32 v4, 7, v2
    v_lshrrev_b32 v5, 4, v2
    v_xor_b32 v4, v4, v5
    v_mul_u32_u24 v3, 1152, v3
    v_lshl_add_u32 v3, v4, 4, v3
    s_lshl_b32 s30, s{P}, 7
    s_lshl_b32 s31, s{W}, 4
    s_add_u32 s30, s30, s31
    s_mul_i32 s30, s30, 1152
    v_add_u32 v{VD}, s30, v3
    v_xor_b32 v3, 64, v3
    s_add_u32 s30, s30, {8*1152}
    v_add_u32 v{VD+1}, s30, v3
    s_lshl_b32 s44, s{W}, 11
    s_add_u32 s45, s44, 1024
    """)
    k(f"""
    s_mul_i32 s30, s{W}, 5
    s_lshl_b32 s31, s{W}, 2
    s_add_u32 s31, s31, 4
    s_cmp_lt_u32 s{W}, 4
    s_cselect_b32 s30, s30, s31      ; n0
    s_mul_i32 s32, s{C}, 576
    s_mov_b32 s33, 1821
    """)
    for j in range(5):
        k(f"""
        s_add_u32 s31, s30, {j}
        s_lshl_b32 s{46+j}, s31, 10
        s_add_u32 s{46+j}, s{46+j}, 16384
        s_lshl_b32 s31, s31, 6
        v_add_u32 v3, s31, v2
        v_mul_lo_u32 v4, v3, s33
        v_lshrrev_b32 v4, 16, v4         ; pos
        v_mul_u32_u24 v5, 36, v4
        v_sub_u32 v5, v3, v5             ; cu
        v_lshrrev_b32 v6, 2, v4
        v_and_b32 v6, 2, v6              ; b<<1
        v_xor_b32 v5, v5, v6
        v_mul_u32_u24 v4, 9216, v4
        v_lshl_add_u32 v4, v5, 4, v4
        v_add_u32 v{VD+2+j}, s32, v4
        """)
    k(f"""
    s_cmp_lt_u32 s{W}, 4
    s_cbranch_scc1 k1_nodummy
    v_mov_b32 v{VD+6}, 0x7ffffff0
    k1_nodummy:
    s_cselect_b32 s51, 1, 0
    """)
    k(f"""
    s_and_b32 s30, s{W}, 3           ; tq
    s_lshr_b32 s31, s{W}, 2          ; h
    v_and_b32 v3, 15, v2             ; j
    v_lshrrev_b32 v4, 4, v2          ; g
    v_lshrrev_b32 v5, 1, v3
    v_xor_b32 v5, v5, v4
    v_lshlrev_b32 v5, 4, v5
    v_lshl_add_u32 v5, v3, 7, v5
    s_lshl_b32 s32, s30, 12
    v_add_u32 v{VX0b}, s32, v5
    v_xor_b32 v{VX1b}, 64, v{VX0b}
    v_bfe_u32 v5, v2, 2, 2           ; r
    v_lshl_add_u32 v5, v4, 3, v5     ; 8g + r
    v_mul_u32_u24 v5, 576, v5
    v_and_b32 v6, 3, v2
    v_lshl_add_u32 v5, v6, 3, v5
    s_mul_i32 s32, s31, 288
    s_add_u32 s32, s32, 16384
    v_add_u32 v5, s32, v5
    v_and_b32 v6, 1, v4
    v_lshlrev_b32 v6, 5, v6          ; (g&1)*32
    v_sub_u32 v7, 0, v6
    s_cmp_eq_u32 s31, 0
    s_cselect_b64 vcc, -1, 0
    v_cndmask_b32 v8, v7, v6, vcc    ; h==0 ? +32b : -32b
    v_add_u32 v{VWeb}, v5, v8
    v_sub_u32 v{VWob}, v5, v8
    v_mov_b32 v{VX0}, v{VX0b}
    v_mov_b32 v{VX1}, v{VX1b}
    v_mov_b32 v{VWe}, v{VWeb}
    v_mov_b32 v{VWo}, v{VWob}
    s_mov_b32 s40, 0                 ; A soffset
    s_mov_b32 s41, 0
    s_mov_b32 s42, 0                 ; B soffset
    s_mov_b32 s34, 0
    """)
    def dma_list():
        L = []
        for j in range(2):
            L.append(f"s_add_u32 m0, s41, s{44+j}\nbuffer_load_dwordx4 v{VD+j}, s[12:15], s40 offen lds")
        for j in range(4):
            L.append(f"s_add_u32 m0, s41, s{46+j}\nbuffer_load_dwordx4 v{VD+2+j}, s[16:19], s42 offen lds")
        L.append(f"s_add_u32 s52, s41, s50\ns_cmp_eq_u32 s51, 1\ns_cselect_b32 m0, s52, {SCR}\nbuffer_load_dwordx4 v{VD+6}, s[16:19], s42 offen lds")
        L.append(f"s_add_u32 s40, s40, 128\ns_add_u32 s42, s42, {64*9216}\ns_add_u32 s41, s41, {SLOT}\ns_cmp_ge_u32 s41, {SLOT*NS}\ns_cselect_b32 s41, 0, s41")
        return L
    k("\n".join(dma_list())); k("\n".join(dma_list()))
    for i in range(72): k(f"v_mov_b32 v{ACC+i}, 0")
    def reads(F, half):
        vx = VX0 if half == 0 else VX1
        r = [f"ds_read_b128 v[{F+4*tb}:{F+4*tb+3}], v{vx} offset:{tb*2048}" for tb in range(2)]
        for i in range(9):
            vw = VWe if i % 2 == 0 else VWo
            for rd in range(2):
                b = F + 8 + 4 * i + 2 * rd
                r.append(f"ds_read_b64_tr_b16 v[{b}:{b+1}], v{vw} offset:{half*32*576 + rd*4*576 + i*32}")
        return r
    def mfmas(F, z2):
        out = []
        for i in range(9):
            for tb in range(2):
                a = ACC + (i * 2 + tb) * 4
                wf = f"v[{F+8+4*i}:{F+8+4*i+3}]"; xf = f"v[{F+4*tb}:{F+4*tb+3}]"
                A, B = (xf, wf) if z2 else (wf, xf)
                out.append(f"v_mfma_f32_16x16x32_bf16 v[{a}:{a+3}], {A}, {B}, v[{a}:{a+3}]")
        return out
    adv = [f"s_add_u32 s34, s34, {SLOT}", f"s_cmp_ge_u32 s34, {SLOT*NS}", "s_cselect_b32 s34, 0, s34",
           f"v_add_u32 v{VX0}, s34, v{VX0b}", f"v_add_u32 v{VX1}, s34, v{VX1b}", f"v_add_u32 v{VWe}, s34, v{VWeb}", f"v_add_u32 v{VWo}, s34, v{VWob}"]
    def mix(mf, other):
        out = []; n = len(mf); m = len(other); oi = 0
        for i, x in enumerate(mf):
            out.append(x)
            want = (i + 1) * m // n
            while oi < want: out.append(other[oi]); oi += 1
        return out + other[oi:]
    def mainloop(tag, z2):
        k.stamp(2)
        k("s_waitcnt vmcnt(7)\ns_barrier")
        k.stamp(3)
        k("\n".join(reads(FX, 0) + dma_list()))
        k("s_waitcnt lgkmcnt(0)")
        k("\n".join(mix(mfmas(FX, z2), reads(FY, 1) + adv)))
        k("s_mov_b32 s35, 1\ns_waitcnt lgkmcnt(0)")
        k(f"k1_loop{tag}:")
        k("s_waitcnt vmcnt(7)\ns_barrier")
        k("\n".join(mix(mfmas(FY, z2), reads(FX, 0) + dma_list())))
        k("s_waitcnt lgkmcnt(0)")
        k("\n".join(mix(mfmas(FX, z2), reads(FY, 1) + adv + ["s_add_u32 s35, s35, 1"])))
        k(f"s_cmp_lt_u32 s35, {NST-2}\ns_waitcnt lgkmcnt(0)\ns_cbranch_scc1 k1_loop{tag}")
        for r in (7, 0):
            k(f"s_waitcnt vmcnt({r})\ns_barrier")
            k("\n".join(mix(mfmas(FY, z2), reads(FX, 0))))
            k("s_waitcnt lgkmcnt(0)")
            k("\n".join(mix(mfmas(FX, z2), reads(FY, 1) + adv)))
            k("s_waitcnt lgkmcnt(0)")
        k("\n".join(mfmas(FY, z2)))
        k.stamp(4)
    VC1 = 178 + 40; VONE = VC1 + 2
    consts = f"""
    s_mov_b32 s56, {fbits(C2)}
    s_mov_b32 s57, {fbits(C2)}
    v_mov_b32 v{VC1}, {fbits(C1)}
    v_mov_b32 v{VC1+1}, {fbits(C1)}
    v_mov_b32 v{VONE}, 1.0
    v_mov_b32 v{VONE+1}, 1.0
    s_and_b32 s30, s{W}, 3
    s_lshr_b32 s31, s{W}, 2
    v_lshlrev_b32 v{VD}, 4, v{VL}
    v_lshlrev_b32 v{VD+1}, 3, v{VL}
    """
    k(f"s_cmp_ge_u32 s{C}, 8\ns_cbranch_scc1 k1_z2")
    mainloop("a", False)
    k(consts)
    k.srd(24, 4, FRAG9, add=WS_Z1)
    k(f"""
    s_lshl_b32 s32, s{P}, 3
    s_lshl_b32 s33, s30, 1
    s_add_u32 s32, s32, s33          ; tt0
    s_lshl_b32 s32, s32, 4
    s_lshl_b32 s33, s{C}, 1
    s_add_u32 s33, s33, s31          ; c'
    s_add_u32 s32, s32, s33
    s_mul_i32 s32, s32, 4608
    s_add_u32 s33, s32, {16*4608}
    """)
    for tb in range(2):
        for q in range(5):
            nt = 2 if q < 4 else 1
            pairs = []
            for t in range(nt):
                a = ACC + ((2 * q + t) * 2 + tb) * 4
                pairs += [a, a + 2]
            gelu_group(k, pairs, T, 56, VC1, VONE)
            o = FX + (tb * 5 + q) % 4 * 4
            for i, a in enumerate(pairs): k(f"v_cvt_pk_bf16_f32 v{o+i}, v{a}, v{a+1}")
            if q < 4: k(f"buffer_store_dwordx4 v[{o}:{o+3}], v{VD}, s[24:27], s{32+tb} offen offset:{q*1024}")
            else: k(f"s_add_u32 s36, s{32+tb}, 4096\nbuffer_store_dwordx2 v[{o}:{o+1}], v{VD+1}, s[24:27], s36 offen")
    k("s_branch k1_fin")
    k("k1_z2:")
    mainloop("b", True)
    k(consts)
    SU = FX; SQ = FX + 8
    for i in range(9):
        pairs = [ACC + (i * 2) * 4, ACC + (i * 2) * 4 + 2, ACC + (i * 2 + 1) * 4, ACC + (i * 2 + 1) * 4 + 2]
        gelu_group(k, pairs, T, 56, VC1, VONE)
        for n, a in enumerate(pairs):
            if i == 0:
                k(f"v_pk_mul_f32 v[{SQ+2*n}:{SQ+2*n+1}], v[{a}:{a+1}], v[{a}:{a+1}]\nv_mov_b32 v{SU+2*n}, v{a}\nv_mov_b32 v{SU+2*n+1}, v{a+1}")
            else:
                k(f"v_pk_fma_f32 v[{SQ+2*n}:{SQ+2*n+1}], v[{a}:{a+1}], v[{a}:{a+1}], v[{SQ+2*n}:{SQ+2*n+1}]\nv_pk_add_f32 v[{SU+2*n}:{SU+2*n+1}], v[{SU+2*n}:{SU+2*n+1}], v[{a}:{a+1}]")
    k.stamp(5)
    dpp_sum16(k, list(range(SU, SU + 16)))
    k(f"""
    s_barrier
    v_lshrrev_b32 v{T}, 4, v{VL}
    v_lshlrev_b32 v{T}, 4, v{T}      ; g*16 bytes
    s_lshl_b32 s32, s31, 10          ; h*1024
    s_lshl_b32 s33, s30, 7           ; tq*32*4
    s_add_u32 s32, s32, s33
    v_add_u32 v{T}, s32, v{T}
    v_and_b32 v{T+1}, 15, v{VL}
    v_cmp_eq_u32 vcc, 0, v{T+1}
    s_and_saveexec_b64 s[38:39], vcc
    ds_write_b128 v{T}, v[{SU}:{SU+3}]
    ds_write_b128 v{T}, v[{SU+4}:{SU+7}] offset:64
    ds_write_b128 v{T}, v[{SQ}:{SQ+3}] offset:512
    ds_write_b128 v{T}, v[{SQ+4}:{SQ+7}] offset:576
    s_mov_b64 exec, s[38:39]
    s_waitcnt lgkmcnt(0)
    s_barrier
    s_cmp_lg_u32 s{W}, 0
    s_cbranch_scc1 k1_wait3
    """)
    k.stamp(6)
    k.srd(24, 4, 131072, add=WS_ST)
    k(f"""
    s_add_u32 s28, s4, {WS_FL}
    s_addc_u32 s29, s5, 0
    v_lshlrev_b32 v{T}, 3, v{VL}
    ds_read_b64 v[{T+2}:{T+3}], v{T}
    ds_read_b64 v[{T+4}:{T+5}], v{T} offset:512
    ds_read_b64 v[{T+6}:{T+7}], v{T} offset:1024
    ds_read_b64 v[{T+8}:{T+9}], v{T} offset:1536
    s_lshl_b32 s32, s{P}, 13
    s_sub_u32 s33, s{C}, 8
    s_lshl_b32 s33, s33, 10
    s_add_u32 s33, s33, s32
    s_waitcnt lgkmcnt(0)
    v_pk_add_f32 v[{T+2}:{T+3}], v[{T+2}:{T+3}], v[{T+6}:{T+7}]
    v_pk_add_f32 v[{T+4}:{T+5}], v[{T+4}:{T+5}], v[{T+8}:{T+9}]
    buffer_store_dwordx4 v[{T+2}:{T+5}], v{VD}, s[24:27], s33 offen sc1
    s_lshl_b32 s33, s{P}, 7
    v_mov_b32 v{T+6}, s33
    v_mov_b32 v{T+7}, 1
    v_cmp_eq_u32 vcc, 0, v{VL}
    s_waitcnt vmcnt(0)
    s_and_saveexec_b64 s[38:39], vcc
    global_atomic_add v{T+6}, v{T+7}, s[28:29] sc1
    s_mov_b32 s36, 0
    k1_poll:
    global_load_dword v{T+7}, v{T+6}, s[28:29] sc1
    s_waitcnt vmcnt(0)
    v_readfirstlane_b32 s37, v{T+7}
    s_add_u32 s36, s36, 1
    s_cmp_ge_u32 s37, 8
    s_cbranch_scc1 k1_polled
    s_cmp_lt_u32 s36, 0x100000
    s_cbranch_scc1 k1_poll
    k1_polled:
    s_mov_b64 exec, s[38:39]
    """)
    k.stamp(7)
    Q = FY
    for c2 in range(8):
        k(f"s_add_u32 s33, s32, {c2*1024}\nbuffer_load_dwordx4 v[{Q+4*c2}:{Q+3+4*c2}], v{VD}, s[24:27], s33 offen sc1")
    k("s_waitcnt vmcnt(0)")
    for c2 in range(1, 8):
        k(f"v_pk_add_f32 v[{Q}:{Q+1}], v[{Q}:{Q+1}], v[{Q+4*c2}:{Q+1+4*c2}]\nv_pk_add_f32 v[{Q+2}:{Q+3}], v[{Q+2}:{Q+3}], v[{Q+2+4*c2}:{Q+3+4*c2}]")
    for e in range(2):
        m, v = Q + e, Q + 2 + e
        k(f"""
        v_mul_f32 v{m}, {1.0/2304!r}, v{m}
        v_mul_f32 v{v}, {1.0/2304!r}, v{v}
        v_fma_f32 v{v}, -v{m}, v{m}, v{v}
        v_max_f32 v{v}, 0, v{v}
        """)
        bf16_round(k, v)
        k(f"v_add_f32 v{v}, {1e-5!r}, v{v}")
        bf16_round(k, v)
        k(f"v_sqrt_f32 v{v}, v{v}")
        bf16_round(k, v)
        k(f"v_rcp_f32 v{v}, v{v}")
        bf16_round(k, m)
        k(f"v_mul_f32 v{m}, -v{m}, v{v}")
    k(f"""
    ds_write_b64 v{T}, v[{Q}:{Q+1}] offset:2048
    ds_write_b64 v{T}, v[{Q+2}:{Q+3}] offset:2560
    s_waitcnt lgkmcnt(0)
    k1_wait3:
    s_barrier
    v_lshrrev_b32 v{T}, 4, v{VL}
    v_lshlrev_b32 v{T}, 4, v{T}
    s_lshl_b32 s33, s30, 7
    v_add_u32 v{T}, s33, v{T}
    ds_read_b128 v[{SU}:{SU+3}], v{T} offset:2048
    ds_read_b128 v[{SU+4}:{SU+7}], v{T} offset:{2048+64}
    ds_read_b128 v[{SQ}:{SQ+3}], v{T} offset:2560
    ds_read_b128 v[{SQ+4}:{SQ+7}], v{T} offset:{2560+64}
    """)
    k.stamp(8)
    k.srd(24, 4, FRAG9, add=WS_Z2)
    k(f"""
    s_sub_u32 s32, s{C}, 8
    s_mul_i32 s32, s32, 18
    s_mul_i32 s33, s31, 9
    s_add_u32 s32, s32, s33          ; ft0
    s_lshl_b32 s32, s32, 6
    s_lshl_b32 s33, s{P}, 2
    s_add_u32 s33, s33, s30          ; kb
    s_add_u32 s32, s32, s33
    s_lshl_b32 s32, s32, 10
    s_waitcnt lgkmcnt(0)
    """)
    for i in range(9):
        o = FY + (i % 4) * 4
        for sb in range(2):
            a = ACC + (i * 2 + sb) * 4
            for hh in range(2):
                k(f"v_pk_fma_f32 v[{a+2*hh}:{a+2*hh+1}], v[{a+2*hh}:{a+2*hh+1}], v[{SQ+4*sb+2*hh}:{SQ+4*sb+2*hh+1}], v[{SU+4*sb+2*hh}:{SU+4*sb+2*hh+1}]")
            for hh in range(2):
                k(f"v_cvt_pk_bf16_f32 v{o+2*sb+hh}, v{a+2*hh}, v{a+2*hh+1}")
        k(f"v_permlane16_swap_b32 v{o}, v{o+2}\nv_permlane16_swap_b32 v{o+1}, v{o+3}")
        k(f"buffer_store_dwordx4 v[{o}:{o+3}], v{VD}, s[24:27], s32 offen\ns_add_u32 s32, s32, 65536")
    k("k1_fin:")
    k.stamp(9); k("s_waitcnt vmcnt(0)"); k.stamp(10); k.stamp(11, True)
    k.prof_dump(prof, 4, W, 12)
    if stamp:
        k(f"""
        s_waitcnt vmcnt(0)
        s_memtime s[62:63]
        s_waitcnt lgkmcnt(0)
        s_sub_u32 s62, s62, s60
        s_cmp_ge_u32 s2, 64
        s_cbranch_scc1 {end}
        s_cmp_lg_u32 s{W}, 0
        s_cbranch_scc1 {end}
        v_mov_b32 v1, s62
        s_lshl_b32 s30, s2, 2
        v_mov_b32 v2, s30
        v_cmp_eq_u32 vcc, 0, v{VL}
        s_and_saveexec_b64 s[30:31], vcc
        global_store_dword v2, v1, s[10:11]
        """)
    k(f"{end}:")
    return k

if __name__ == "__main__":
    from k0 import gen_k0
    emit([gen_k0(), gen_k1(stamp=True)], sys.argv[1])
```

```python
import sys, math; sys.path.insert(0, "dev")
from asmgen import *
from layout import *

def stamp_end(k, end, W, VL, dbg=10):
    k(f"""
    s_waitcnt vmcnt(0)
    s_memtime s[62:63]
    s_waitcnt lgkmcnt(0)
    s_sub_u32 s62, s62, s60
    s_cmp_ge_u32 s2, 64
    s_cbranch_scc1 {end}
    s_cmp_lg_u32 s{W}, 0
    s_cbranch_scc1 {end}
    v_mov_b32 v1, s62
    s_lshl_b32 s30, s2, 2
    v_mov_b32 v2, s30
    v_cmp_eq_u32 vcc, 0, v{VL}
    s_and_saveexec_b64 s[30:31], vcc
    global_store_dword v2, v1, s[{dbg}:{dbg+1}]
    """)

def gen_k3(stamp=False, prof=None, eps=0.0):
    RS = 336; RED = 4 * 64 * RS
    YL = RED
    k = Kern("k3_kernel", 256, 256, RED + 9216)
    if prof is not None: k.prof = True
    k.stamp(0, True); k.stamp(1)
    end = "k3_end"
    TP, E, W = 20, 21, 22
    k(f"""
    s_cmp_ge_u32 s2, 256
    s_cbranch_scc1 {end}
    s_load_dwordx2 s[4:5], s[0:1], {ARG['ws']}
    s_load_dwordx2 s[6:7], s[0:1], {ARG['x']}
    s_load_dwordx2 s[8:9], s[0:1], {ARG['out']}
    s_load_dwordx2 s[10:11], s[0:1], {ARG['dbg']}
    v_lshrrev_b32 v1, 6, v0
    v_and_b32 v2, 63, v0
    v_readfirstlane_b32 s{W}, v1
    s_and_b32 s30, s2, 7
    s_lshr_b32 s31, s2, 3
    s_lshr_b32 s{TP}, s30, 1
    s_lshl_b32 s{TP}, s{TP}, 3
    s_lshr_b32 s32, s31, 2
    s_add_u32 s{TP}, s{TP}, s32
    s_and_b32 s{E}, s30, 1
    s_lshl_b32 s{E}, s{E}, 2
    s_and_b32 s32, s31, 3
    s_add_u32 s{E}, s{E}, s32
    """)
    if stamp: k("s_memtime s[60:61]")
    k("s_waitcnt lgkmcnt(0)")
    k.srd(12, 4, FRAG9, add=WS_H)
    k.srd(16, 4, WOBYTES, add=WS_WO)
    k.srd(24, 4, XBYTES, add=WS_YT)
    k.srd(40, 6, XBYTES)
    k.srd(44, 8, XBYTES)
    ACC = 0; RING = 80
    V16, V8, VH16, VH8, VL = 242, 243, 244, 245, 246
    XR = 247
    k(f"""
    v_mov_b32 v{VL}, v2
    v_lshlrev_b32 v{V16}, 4, v2
    v_lshlrev_b32 v{V8}, 3, v2
    v_lshrrev_b32 v3, 4, v2
    v_and_b32 v4, 7, v2
    v_lshl_add_u32 v4, v3, 3, v4
    v_and_b32 v5, 8, v2
    v_cmp_eq_u32 vcc, 0, v5
    v_lshlrev_b32 v5, 4, v4
    v_lshlrev_b32 v6, 3, v4
    v_mov_b32 v7, 0x7ff00000
    v_cndmask_b32 v{VH16}, v7, v5, vcc
    v_cndmask_b32 v{VH8}, v7, v6, vcc
    s_lshl_b32 s30, s{TP}, 6
    s_lshl_b32 s31, s{W}, 2
    s_add_u32 s30, s30, s31
    s_mul_i32 s50, s30, 4608
    s_add_u32 s51, s50, {16*4608}
    s_add_u32 s52, s50, {32*4608}
    s_add_u32 s53, s50, {48*4608}
    s_lshl_b32 s30, s{E}, 4
    s_add_u32 s30, s30, s31
    s_mul_i32 s54, s30, 20736
    """)
    def loads(q):
        b = RING + 36 * q
        L = []
        if q < 4:
            for tb in range(4): L.append(f"buffer_load_dwordx4 v[{b+4*tb}:{b+4*tb+3}], v{V16}, s[12:15], s{50+tb} offen offset:{q*1024}")
            L.append(f"s_add_u32 s55, s54, {q*4608}")
            for dt in range(4): L.append(f"buffer_load_dwordx4 v[{b+16+4*dt}:{b+19+4*dt}], v{V16}, s[16:19], s55 offen offset:{dt*1024}")
            L.append(f"s_add_u32 s55, s55, 4096")
            L.append(f"buffer_load_dwordx4 v[{b+32}:{b+35}], v{VH16}, s[16:19], s55 offen")
        else:
            for tb in range(4): L.append(f"s_add_u32 s55, s{50+tb}, 4096\nbuffer_load_dwordx2 v[{b+2*tb}:{b+2*tb+1}], v{V8}, s[12:15], s55 offen")
            L.append(f"s_add_u32 s55, s54, 18432")
            for dt in range(4): L.append(f"buffer_load_dwordx2 v[{b+8+2*dt}:{b+9+2*dt}], v{V8}, s[16:19], s55 offen offset:{dt*512}")
            L.append(f"buffer_load_dwordx2 v[{b+16}:{b+17}], v{VH8}, s[16:19], s55 offen offset:2048")
        return L
    def mf(q):
        b = RING + 36 * q
        out = []
        for dt in range(5):
            for tb in range(4):
                a = ACC + (dt * 4 + tb) * 4
                if q < 4: out.append(f"v_mfma_f32_16x16x32_bf16 v[{a}:{a+3}], v[{b+16+4*dt}:{b+19+4*dt}], v[{b+4*tb}:{b+4*tb+3}], v[{a}:{a+3}]")
                else: out.append(f"v_mfma_f32_16x16x16_bf16 v[{a}:{a+3}], v[{b+8+2*dt}:{b+9+2*dt}], v[{b+2*tb}:{b+2*tb+1}], v[{a}:{a+3}]")
        return out
    adv = "\n".join(f"s_add_u32 s{50+i}, s{50+i}, 4608" for i in range(4)) + "\ns_add_u32 s54, s54, 20736"
    for q in range(5): k("\n".join(loads(q)))
    k(adv)
    k(f"""
    v_lshrrev_b32 v3, 3, v2
    v_and_b32 v4, 7, v2
    v_lshlrev_b32 v3, 12, v3
    v_lshl_add_u32 v3, v4, 4, v3
    s_mul_i32 s30, s{E}, {72*4096}
    s_lshl_b32 s31, s{TP}, 7
    s_add_u32 s30, s30, s31
    s_lshl_b32 s31, s{W}, 15
    s_add_u32 s30, s30, s31
    s_lshl_b32 s31, s{W}, 10
    s_add_u32 m0, s31, {YL}
    buffer_load_dwordx4 v3, s[24:27], s30 offen lds
    s_add_u32 s30, s30, {4*32768}
    s_add_u32 m0, s31, {YL+4096}
    buffer_load_dwordx4 v3, s[24:27], s30 offen lds
    s_add_u32 s30, s30, {4*32768}
    s_cmp_eq_u32 s{W}, 0
    s_cselect_b32 s30, s30, 0x7ff00000
    s_cselect_b32 m0, {YL+8192}, 0
    buffer_load_dwordx4 v3, s[24:27], s30 offen lds
    """)
    for i in range(80): k(f"v_mov_b32 v{ACC+i}, 0")
    k.stamp(2)
    k("s_mov_b32 s35, 0")
    k("k3_loop:")
    k(f"""
    s_cmp_eq_u32 s35, 3
    s_cbranch_scc0 k3_nl
    s_mov_b32 s50, 0x7ff00000
    s_mov_b32 s51, 0x7ff00000
    s_mov_b32 s52, 0x7ff00000
    s_mov_b32 s53, 0x7ff00000
    s_mov_b32 s54, 0x7ff00000
    k3_nl:
    """)
    for q in range(5):
        k("s_waitcnt vmcnt(36)")
        k("\n".join(mf(q)))
        k("\n".join(loads(q)))
    k(adv)
    k("s_add_u32 s35, s35, 1\ns_cmp_lt_u32 s35, 4\ns_cbranch_scc1 k3_loop")
    k.stamp(3)
    XB = RING
    k(f"""
    s_waitcnt vmcnt(0)
    s_lshl_b32 s30, s{TP}, 6
    v_add_u32 v{V8}, s30, v{VL}
    v_mul_u32_u24 v{V8}, 1152, v{V8}
    s_mul_i32 s30, s{E}, 144
    s_lshl_b32 s31, s{W}, 4
    s_add_u32 s30, s30, s31
    v_add_u32 v{V8}, s30, v{V8}
    buffer_load_dwordx4 v[{XB}:{XB+3}], v{V8}, s[40:43], 0 offen
    buffer_load_dwordx4 v[{XB+4}:{XB+7}], v{V8}, s[40:43], 0 offen offset:64
    buffer_load_dwordx4 v[{XB+8}:{XB+11}], v{V8}, s[40:43], 0 offen offset:128
    v_and_b32 v{VH16}, 15, v{VL}
    v_mul_u32_u24 v{VH16}, {RS}, v{VH16}
    v_lshrrev_b32 v{VH8}, 4, v{VL}
    v_lshl_add_u32 v{VH16}, v{VH8}, 4, v{VH16}
    s_mul_i32 s30, s{W}, {64*RS}
    v_add_u32 v{VH16}, s30, v{VH16}
    s_barrier
    """)
    for dt in range(5):
        for tb in range(4):
            a = ACC + (dt * 4 + tb) * 4
            k(f"ds_write_b128 v{VH16}, v[{a}:{a+3}] offset:{tb*16*RS + dt*64}")
    k(f"""
    s_waitcnt lgkmcnt(0)
    s_barrier
    v_mul_u32_u24 v{VH16}, {RS}, v{VL}
    s_lshl_b32 s30, s{W}, 5
    v_add_u32 v{VH16}, s30, v{VH16}
    v_lshlrev_b32 v{VH8}, 1, v{VL}
    s_lshl_b32 s30, s{W}, 10
    s_add_u32 s30, s30, {YL}
    v_add_u32 v{VH8}, s30, v{VH8}
    """)
    def fin(ps):
        Pp = 0; Y = 40; Tm = 48
        for w in range(4):
            for hh in range(2):
                k(f"ds_read_b128 v[{Pp+8*w+4*hh}:{Pp+8*w+4*hh+3}], v{VH16} offset:{w*64*RS + ps*128 + hh*16}")
        for i in range(8):
            k(f"ds_read_u16 v{Y+i}, v{VH8} offset:{ps*4096 + i*128}")
        k("s_waitcnt vmcnt(0) lgkmcnt(0)")
        for i in range(4):
            a = Pp + 2 * i
            k(f"""
            v_pk_add_f32 v[{a}:{a+1}], v[{a}:{a+1}], v[{a+8}:{a+9}]
            v_pk_add_f32 v[{a+16}:{a+17}], v[{a+16}:{a+17}], v[{a+24}:{a+25}]
            v_pk_add_f32 v[{a}:{a+1}], v[{a}:{a+1}], v[{a+16}:{a+17}]
            {'v_mul_f32 v%d, %r, v%d' % (a, 1.0 + eps, a) if eps else ''}
            {'v_mul_f32 v%d, %r, v%d' % (a + 1, 1.0 + eps, a + 1) if eps else ''}
            v_cvt_pk_bf16_f32 v{Tm}, v{a}, v{a+1}
            v_lshlrev_b32 v{a}, 16, v{Tm}
            v_and_b32 v{a+1}, 0xffff0000, v{Tm}
            v_lshlrev_b32 v{Tm+2}, 16, v{XB+4*ps+i}
            v_and_b32 v{Tm+3}, 0xffff0000, v{XB+4*ps+i}
            v_lshlrev_b32 v{Tm+4}, 16, v{Y+2*i}
            v_lshlrev_b32 v{Tm+5}, 16, v{Y+2*i+1}
            v_pk_add_f32 v[{Tm+2}:{Tm+3}], v[{Tm+2}:{Tm+3}], v[{Tm+4}:{Tm+5}]
            v_cvt_pk_bf16_f32 v{Tm}, v{Tm+2}, v{Tm+3}
            v_lshlrev_b32 v{Tm+2}, 16, v{Tm}
            v_and_b32 v{Tm+3}, 0xffff0000, v{Tm}
            v_pk_add_f32 v[{a}:{a+1}], v[{a}:{a+1}], v[{Tm+2}:{Tm+3}]
            v_cvt_pk_bf16_f32 v{56+4*ps+i}, v{a}, v{a+1}
            """)
        k(f"buffer_store_dwordx4 v[{56+4*ps}:{59+4*ps}], v{V8}, s[44:47], 0 offen offset:{ps*64}")
    k.stamp(4)
    fin(0); fin(1)
    k(f"s_cmp_lg_u32 s{W}, 0\ns_cbranch_scc1 k3_fin")
    fin(2)
    k("k3_fin:")
    k.stamp(5); k("s_waitcnt vmcnt(0)"); k.stamp(6); k.stamp(7, True)
    k.prof_dump(prof, 4, W, 8)
    if stamp: stamp_end(k, end, W, VL)
    k(f"{end}:")
    return k
```

```python
import sys, math; sys.path.insert(0, "dev")
from asmgen import *
from layout import *
from k0 import bf16_round
from k1 import fbits
from k3 import stamp_end
import numpy as np
def f32(x): return float(np.float32(x))
L2E = math.log2(math.e); L2E_HI = f32(L2E); L2E_LO = L2E - L2E_HI
I2P = 1.0 / (2 * math.pi); I2P_HI = f32(I2P); I2P_LO = I2P - I2P_HI
def rne(x, kk):
    q = x / (1 << kk); return int(round(q)) << kk
def rrow(v): return v if v <= 16 else 12 + v // 4

def gen_ks(stamp=False, dump=False, prof=None):
    UB = 0
    TB = 4608
    RT = TB; WT = TB + 29 * 256
    CBASE = TB + 64
    LDS = TB + 29 * 256 + 56 * 256 + 8 * 256
    assert LDS >= CBASE + 4 * 4160
    k = Kern("ks_kernel", 576, 64, LDS)
    k.vg = 208; k.acc_off = 208; k.sg = 72
    if prof is not None: k.prof = True; k.sg = 102
    k.stamp(0, True); k.stamp(1)
    end = "ks_end"
    k(f"""
    s_cmp_ge_u32 s2, 576
    s_cbranch_scc1 {end}
    s_load_dwordx4 s[4:7], s[0:1], {ARG['A_re']}
    s_load_dwordx4 s[8:11], s[0:1], {ARG['B_re']}
    s_load_dwordx4 s[12:15], s[0:1], {ARG['C_re']}
    s_load_dwordx4 s[16:19], s[0:1], {ARG['log_dt']}
    s_load_dwordx2 s[20:21], s[0:1], {ARG['ws']}
    s_load_dwordx2 s[58:59], s[0:1], {ARG['dbg']}
    s_mov_b32 s22, 0
    """)
    if stamp: k("s_memtime s[60:61]")
    k(f"""
    v_lshlrev_b32 v1, 1, v0
    s_lshl_b32 s30, s2, 8
    v_add_u32 v1, s30, v1            ; (d*128 + lane)*2
    s_lshl_b32 s30, s2, 1
    v_mov_b32 v2, s30
    s_waitcnt lgkmcnt(0)
    """)
    PRM = 170
    for hf in range(2):
        for i in range(6):
            k(f"global_load_ushort v{PRM+6*hf+i}, v1, s[{4+2*i}:{5+2*i}] offset:{hf*128}")
    k("global_load_ushort v196, v2, s[16:17]\nglobal_load_ushort v197, v2, s[18:19]\nv_mov_b32 v206, v0")
    k.srd(24, 20, XBYTES, add=WS_XT)
    k.srd(44, 20, XBYTES, add=WS_YT)
    k(f"""
    v_lshrrev_b32 v6, 1, v0
    v_mul_u32_u24 v6, {576*32}, v6
    v_and_b32 v7, 1, v0
    v_lshl_add_u32 v6, v7, 4, v6
    s_lshl_b32 s30, s2, 5
    """)
    for i in range(4):
        k(f"s_mov_b32 m0, {UB+480+i*1024}\nbuffer_load_dwordx4 v6, s[24:27], s30 offen lds\ns_add_u32 s30, s30, {32*576*32}")
    k(f"""
    v_mov_b32 v8, 0
    v_mov_b32 v9, 0
    v_mov_b32 v10, 0
    v_mov_b32 v11, 0
    v_lshlrev_b32 v7, 4, v0
    v_cmp_gt_u32 vcc, 30, v0
    s_and_saveexec_b64 s[38:39], vcc
    ds_write_b128 v7, v[8:11] offset:{UB}
    s_mov_b64 exec, s[38:39]
    """)
    WAD = 150
    k("v_lshrrev_b32 v6, 2, v0\nv_and_b32 v7, 3, v0\nv_lshlrev_b32 v7, 2, v7\nv_lshl_add_u32 v6, v6, 4, v7")
    for i in range(16): k(f"v_xor_b32 v{WAD+i}, {i<<4}, v6")
    VJ, VG = 166, 167
    k(f"v_and_b32 v{VJ}, 15, v0\nv_lshrrev_b32 v{VG}, 4, v0")
    RW = 140
    for m in range(4):
        k(f"v_add_u32 v6, {4*m}, v{VG}\nv_xor_b32 v6, v6, v{VJ}\nv_lshlrev_b32 v6, 4, v6\nv_lshl_add_u32 v{RW+m}, v{VJ}, 8, v6")
    pats = [[b for b in range(16)], [rne(b, 1) for b in range(16)]]
    pats += [[rne(16 * nt + b, 2) for b in range(16)] for nt in range(4)]
    pats += [[rne(16 * nt + b, 3) for b in range(16)] for nt in range(4)]
    RS_ = 182
    for pi_, pat in enumerate(pats):
        rows = [rrow(v) for v in pat]
        if pi_ == 0:
            k(f"v_mov_b32 v6, v{VJ}")
        else:
            kk = 1 if pi_ == 1 else (2 if pi_ < 6 else 3)
            nt = 0 if pi_ == 1 else (pi_ - 2) % 4
            c0 = 16 * nt + (1 << (kk - 1)) - 1
            k(f"""
            v_add_u32 v6, {16*nt}, v{VJ}
            v_bfe_u32 v6, v6, {kk}, 1
            v_add3_u32 v6, v6, v{VJ}, {c0}
            v_and_b32 v6, {0xff & ~((1 << kk) - 1)}, v6
            """)
            if pi_ > 1:
                k("v_lshrrev_b32 v7, 2, v6\nv_add_u32 v7, 12, v7\nv_min_u32 v6, v6, v7")
            chk = []
            for j in range(16):
                v = (((((j + 16 * nt) >> kk) & 1) + j + c0) & (0xff & ~((1 << kk) - 1)))
                chk.append(min(v, 12 + (v >> 2)) if pi_ > 1 else v)
            assert chk == rows, (pi_, chk, rows)
        k(f"""
        v_and_b32 v7, 15, v6
        v_xor_b32 v7, v7, v{VG}
        v_lshlrev_b32 v7, 4, v7
        v_lshl_add_u32 v{RS_+pi_}, v6, 8, v7
        """)
    ACC = 0
    for i in range(40): k(f"v_mov_b32 v{ACC+i}, 0")
    k.stamp(2)
    k(f"""
    s_waitcnt vmcnt(4)
    v_lshlrev_b32 v44, 16, v196
    v_lshlrev_b32 v168, 16, v197           ; Dskip
    v_mul_f32 v45, {fbits(L2E_HI)}, v44
    s_mov_b32 s30, {fbits(L2E_HI)}
    v_fma_f32 v46, v44, s30, -v45
    v_fmac_f32 v46, {fbits(L2E_LO)}, v44
    v_exp_f32 v45, v45
    v_mul_f32 v46, {fbits(math.log(2.0))}, v46
    v_fma_f32 v169, v45, v46, v45
    """)
    bf16_round(k, 169)
    k(f"s_mov_b32 s40, {fbits(L2E_HI)}\ns_mov_b32 s41, {fbits(I2P_HI)}\ns_mov_b32 s35, 0")
    k.stamp(3)
    k("ks_half:")
    k.stamp(4)
    A_, B_, BR, BI, CR, CI = 44, 45, 46, 47, 48, 49
    for i in range(6): k(f"v_lshlrev_b32 v{44+i}, 16, v{PRM+i}")
    for i in range(4): k(f"v_mul_f32 v{44+i}, v169, v{44+i}")
    CB = 50
    k(f"""
    v_mul_f32 v{CB}, v{CR}, v{BR}
    v_mul_f32 v{CB+1}, v{CR}, v{BI}
    v_fma_f32 v{CB}, -v{CI}, v{BI}, v{CB}
    v_fma_f32 v{CB+1}, v{CI}, v{BR}, v{CB+1}
    """)
    W1, W16, W64, W512 = 52, 54, 56, 58
    for li, (l, r) in enumerate(((1, W1), (16, W16), (64, W64), (512, W512))):
        t = 60 + 6 * li
        k(f"""
        v_mul_f32 v{t}, {float(l)!r}, v{A_}
        v_mul_f32 v{t+1}, {float(l)!r}, v{B_}
        v_mul_f32 v{t}, s40, v{t}
        v_mul_f32 v{t+2}, s41, v{t+1}
        v_exp_f32 v{t}, v{t}
        v_fma_f32 v{t+3}, v{t+1}, s41, -v{t+2}
        v_fmac_f32 v{t+3}, {fbits(I2P_LO)}, v{t+1}
        v_fract_f32 v{t+2}, v{t+2}
        v_add_f32 v{t+2}, v{t+2}, v{t+3}
        v_cos_f32 v{r}, v{t+2}
        v_sin_f32 v{r+1}, v{t+2}
        v_mul_f32 v{r}, v{t}, v{r}
        v_mul_f32 v{r+1}, v{t}, v{r+1}
        """)
    def cmul(d, x, w):
        return [f"v_pk_mul_f32 v[{d}:{d+1}], v[{x}:{x+1}], v[{w}:{w+1}] op_sel_hi:[0,1]",
                f"v_pk_fma_f32 v[{d}:{d+1}], v[{x}:{x+1}], v[{w}:{w+1}], v[{d}:{d+1}] op_sel:[1,1,0] op_sel_hi:[1,0,1] neg_lo:[1,0,0]"]
    tmpc = [0]
    def put(x, base, row, neg):
        t = 108 + (x - 44) // 2
        return [f"v_cvt_pk_bf16_f32 v{t}, v{x}, {'-' if neg else ''}v{x+1}", f"ds_write_b32 v{WAD + (row & 15)}, v{t} offset:{base + row*256}"]
    def chain(start, w, n, regs, emit_row):
        steps = []; cur = start
        for i in range(n):
            d = regs[i & 1]
            steps.append(cmul(d, cur, w) + emit_row(d, i)); cur = d
        return steps
    k.stamp(5)
    k(f"v_mov_b32 v84, 1.0\nv_mov_b32 v85, 0")
    pre = put(84, RT, 0, True) + put(W1, RT, 1, True) + put(W16, RT, 16, True) + put(W64, RT, 28, True) + put(CB, WT, 0, False)
    k("\n".join(pre))
    W4 = 86
    c1 = chain(W1, W1, 14, [88, 90], lambda d, i: put(d, RT, i + 2, True) + ([f"v_mov_b32 v{W4}, v{d}", f"v_mov_b32 v{W4+1}, v{d+1}"] if i == 2 else []))
    c2 = chain(W16, W4, 11, [92, 94], lambda d, i: put(d, RT, 17 + i, True))
    c3 = chain(CB, W16, 31, [96, 98], lambda d, i: put(d, WT, i + 1, False))
    def wrow(d, i):
        return put(d, WT + 32 * 256, i, False) if i < 8 else put(d, WT + 40 * 256, i - 8, False)
    c4 = [cmul(100, CB, W512) + wrow(100, 0)] + chain(100, W64, 23, [102, 104], lambda d, i: wrow(d, i + 1))
    seqs = [c3, c4, c1]
    out = []; idx = [0, 0, 0, 0]; chains = [c3, c4, c1, c2]
    while any(idx[i] < len(chains[i]) for i in range(4)):
        group = []
        for i in range(4):
            if i == 3 and idx[2] < 4: continue
            if idx[i] < len(chains[i]): group.append(chains[i][idx[i]]); idx[i] += 1
        for pos in range(max(len(g) for g in group)):
            for g in group:
                if pos < len(g): out.append(g[pos])
    k("\n".join(out))
    k("s_waitcnt lgkmcnt(0)")
    k.stamp(6)
    wt = [WT, WT + 16 * 256, WT + 32 * 256, WT + 40 * 256]
    tile_w = [0, 1, 2, 2, 2, 2, 3, 3, 3, 3]
    WB_ = 44
    for wi in range(4):
        for m in range(4):
            b = WB_ + (wi * 4 + m) * 4
            k(f"ds_read_b128 v[{b}:{b+3}], v{RW+m} offset:{wt[wi]}")
    RB = 108
    def rreads(t):
        L = []
        for m in range(4):
            b = RB + (t & 1) * 16 + 4 * m
            if m: L.append(f"v_xor_b32 v{192+m}, {(4*m) << 4}, v{RS_+t}")
            L.append(f"ds_read_b128 v[{b}:{b+3}], v{RS_+t if m == 0 else 192+m} offset:{RT}")
        return L
    k("\n".join(rreads(0)))
    for t in range(10):
        if t < 9:
            k("\n".join(rreads(t + 1))); k("s_waitcnt lgkmcnt(4)")
        else: k("s_waitcnt lgkmcnt(0)")
        for m in range(4):
            b = RB + (t & 1) * 16 + 4 * m; w = WB_ + (tile_w[t] * 4 + m) * 4
            k(f"v_mfma_f32_16x16x32_bf16 v[{ACC+4*t}:{ACC+4*t+3}], v[{b}:{b+3}], v[{w}:{w+3}], v[{ACC+4*t}:{ACC+4*t+3}]")
    for i in range(6): k(f"v_mov_b32 v{PRM+i}, v{PRM+6+i}")
    k("s_add_u32 s35, s35, 1\ns_cmp_lt_u32 s35, 2\ns_cbranch_scc1 ks_half")
    k.stamp(7)
    k(f"""
    v_mul_u32_u24 v44, 26, v206
    v_lshrrev_b32 v44, 8, v44
    v_mul_u32_u24 v45, 10, v44
    v_sub_u32 v45, v206, v45
    v_mul_u32_u24 v44, 4160, v44
    v_lshl_add_u32 v44, v45, 2, v44
    v_mov_b32 v46, 0
    v_cmp_gt_u32 vcc, 40, v206
    s_and_saveexec_b64 s[38:39], vcc
    ds_write_b32 v44, v46 offset:{CBASE + 4088}
    s_mov_b64 exec, s[38:39]
    v_lshlrev_b32 v44, 3, v{VG}          ; 8g
    v_lshl_add_u32 v45, v{VJ}, 5, v44    ; 2*(16j+4g)
    v_sub_u32 v47, {CBASE + 2*(2044-256) - 6}, v45
    v_lshl_add_u32 v45, v{VJ}, 7, v44    ; 2*(64j+4g)
    v_sub_u32 v48, {CBASE + 2*(2044-1072) - 6}, v45
    v_cmp_gt_u32 vcc, 8, v{VJ}
    """)
    for t in range(10):
        if t < 2: va, off = 47, 2 * (256 - 256 * t)
        else:
            tb = (512 if t < 6 else 1024) + 16 * ((t - 2) % 4); va, off = 48, 2 * (1072 - tb)
        a = ACC + 4 * t; p = 50 + 4 * (t % 4)
        if t == 2: k("s_and_saveexec_b64 s[38:39], vcc")
        if t == 6: k("s_mov_b64 exec, s[38:39]")
        k(f"""
        v_cvt_pk_bf16_f32 v{p}, v{a+3}, v{a+2}
        v_cvt_pk_bf16_f32 v{p+1}, v{a+1}, v{a}
        v_alignbit_b32 v{p+2}, v{p+1}, v{p}, 16
        ds_write_b64 v{va}, v[{p}:{p+1}] offset:{off + 6}
        ds_write_b32 v{va}, v{p} offset:{off + 6 + 2*4160 - 4}
        ds_write_b32 v{va}, v{p+1} offset:{off + 6 + 2*4160}
        ds_write_b16 v{va}, v{p} offset:{off + 6 + 4160 - 2}
        ds_write_b32 v{va}, v{p+2} offset:{off + 6 + 4160}
        ds_write_b16_d16_hi v{va}, v{p+1} offset:{off + 6 + 4160 + 4}
        ds_write_b16 v{va}, v{p} offset:{off + 6 + 3*4160 - 6}
        ds_write_b32 v{va}, v{p+2} offset:{off + 6 + 3*4160 - 4}
        ds_write_b16_d16_hi v{va}, v{p+1} offset:{off + 6 + 3*4160}
        """)
    if dump:
        k.srd(48, 20, 576 * 32768, add=0x4000000)
        k("s_waitcnt lgkmcnt(0)\nv_lshlrev_b32 v44, 4, v206\ns_lshl_b32 s30, s2, 15")
        for i in range(LDS // 1024):
            k(f"ds_read_b128 v[52:55], v44 offset:{i*1024}\ns_waitcnt lgkmcnt(0)\nbuffer_store_dwordx4 v[52:55], v44, s[48:51], s30 offen\ns_add_u32 s30, s30, 1024\ns_waitcnt vmcnt(0)")
    VF, VGa = 140, 141
    k(f"""
    v_sub_u32 v44, 3, v{VJ}
    v_and_b32 v44, 3, v44
    v_mul_u32_u24 v44, 4160, v44
    v_lshrrev_b32 v45, 2, v{VJ}
    v_lshlrev_b32 v45, 3, v45            ; 2*4*(r>>2)
    v_sub_u32 v44, v44, v45
    v_lshl_add_u32 v44, v{VG}, 4, v44
    v_add_u32 v{VF}, {CBASE + 2*(2028-2016)}, v44
    v_lshlrev_b32 v45, 5, v{VJ}
    v_lshl_add_u32 v{VGa}, v{VG}, 4, v45
    """)
    for i in range(32): k(f"v_mov_b32 v{ACC+i}, 0")
    S0, S1 = 32, 96 - 0
    SETS = [32, 142]
    def creads(s, rho_off):
        b = SETS[s]; L = []
        for m in range(8):
            g = b + 32 + 4 * m
            L.append(f"ds_read_b128 v[{g}:{g+3}], v{VGa} offset:{UB + 64*(8*m + 7 - rho_off)}")
            f = b + 4 * m
            L.append(f"ds_read_b64 v[{f}:{f+1}], v{VF} offset:{64*(63 - 8*m - rho_off)}")
            L.append(f"ds_read_b64 v[{f+2}:{f+3}], v{VF} offset:{64*(63 - 8*m - rho_off) + 8}")
        return L
    def cm(s):
        b = SETS[s]; L = []
        for m in range(8):
            for I in range(m, 8):
                g = b + 32 + 4 * (I - m); f = b + 4 * m
                L.append(f"v_mfma_f32_16x16x32_bf16 v[{ACC+4*I}:{ACC+4*I+3}], v[{f}:{f+3}], v[{g}:{g+3}], v[{ACC+4*I}:{ACC+4*I+3}]")
        return L
    def mix(mf, other):
        out = []; n = len(mf); m = len(other); oi = 0
        for i, x in enumerate(mf):
            out.append(x)
            if oi < m: out.append(other[oi]); oi += 1
        return out + other[oi:]
    k(f"v_mov_b32 v100, v168\nv_mov_b32 v101, v{VJ}\nv_mov_b32 v102, v{VG}")
    k("s_waitcnt vmcnt(0) lgkmcnt(0)")
    k.stamp(8)
    k("\n".join(creads(0, 0)))
    for rho in range(8):
        k("s_waitcnt lgkmcnt(0)")
        k("\n".join(mix(cm(rho & 1), creads((rho + 1) & 1, rho + 1) if rho < 7 else [])))
    k.stamp(9)
    k(f"""
    v_lshlrev_b32 v103, 5, v101
    v_lshl_add_u32 v103, v102, 3, v103   ; 2*(16j+4g)
    v_mov_b32 v104, v100
    v_mov_b32 v105, v100
    s_lshl_b32 s30, s2, 12
    """)
    for I in range(8): k(f"ds_read_b64 v[{32+2*I}:{33+2*I}], v103 offset:{UB + 480 + 512*I}")
    k("s_waitcnt lgkmcnt(0)")
    for I in range(8):
        a = ACC + 4 * I; o = 64 + 2 * I
        for hh in range(2):
            u = 32 + 2 * I + hh
            k(f"""
            v_lshlrev_b32 v50, 16, v{u}
            v_and_b32 v51, 0xffff0000, v{u}
            v_pk_mul_f32 v[50:51], v[50:51], v[104:105]
            v_cvt_pk_bf16_f32 v52, v50, v51
            v_cvt_pk_bf16_f32 v53, v{a+2*hh}, v{a+2*hh+1}
            v_lshlrev_b32 v50, 16, v52
            v_and_b32 v51, 0xffff0000, v52
            v_lshlrev_b32 v54, 16, v53
            v_and_b32 v55, 0xffff0000, v53
            v_pk_add_f32 v[50:51], v[50:51], v[54:55]
            v_cvt_pk_bf16_f32 v{o+hh}, v50, v51
            """)
        k(f"buffer_store_dwordx2 v[{o}:{o+1}], v103, s[44:47], s30 offen offset:{512*I}")
    k.stamp(10); k("s_waitcnt vmcnt(0)"); k.stamp(11); k.stamp(12, True)
    k.prof_dump(prof, 20, 22, 13)
    if stamp:
        stamp_end(k, end, 22, 206, dbg=58)
    k(f"{end}:")
    return k
```

```python
WS_Z2 = 0
WS_Z1 = 0x0900000
WS_H = 0x1200000
WS_XN = 0x1B00000
WS_XT = 0x1D40000
WS_YT = 0x1F80000
WS_WO = 0x21C0000
WS_ST = 0x2460000
WS_FL = 0x2500000
FRAG9 = 9437184
XBYTES = 2048 * 576 * 2
WOBYTES = 2304 * 576 * 2
FL_EP = 0
FL_X = 0x1000
FL_2 = 0x2000
FL_1 = 0x3000
FL_H = 0x4000
FL_W = 0x5000
FL_T = 0x6000
FL_Y = 0x7000
FL_BYTES = 0x9000
```

```python
import sys; sys.path.insert(0, "dev")
from common6 import *
SLOT = 34816; NS = 4
XTL = 104448; RPL = 114688
Z1 = 160
WOFF = 16384


ROWA = 139264
COLP = ROWA + 1024
WPRIV = COLP + 2 * 768
XTS = WPRIV + 1024
assert XTS + 4 * 5120 <= 163840
KTAB = 104448
WS_RS = WS_ST + 0x90000
def phase0(k, o):
    k(f"""
    s_cmp_ge_u32 s2, 256
    s_cbranch_scc1 fz_end
    s_load_dwordx2 s[4:5], s[0:1], {ARG['ws']}
    s_load_dwordx2 s[6:7], s[0:1], {ARG['x']}
    s_load_dwordx2 s[8:9], s[0:1], {ARG['w_in']}
    v_lshrrev_b32 v1, 6, v0
    v_and_b32 v{VL}, 63, v0
    v_readfirstlane_b32 s{W}, v1
    s_and_b32 s30, s2, 7
    s_lshr_b32 s31, s2, 3
    s_and_b32 s{P}, s30, 1
    s_lshl_b32 s{P}, s{P}, 3
    s_lshr_b32 s32, s31, 2
    s_add_u32 s{P}, s{P}, s32
    s_lshr_b32 s{C}, s30, 1
    s_lshl_b32 s{C}, s{C}, 2
    s_and_b32 s32, s31, 3
    s_add_u32 s{C}, s{C}, s32
    s_cmp_lt_u32 s{W}, 4
    s_cbranch_scc1 fz_c1
    s_cmp_lt_u32 s{W}, 6
    s_cbranch_scc1 fz_l1W
    """)
    p1_loader(k, o, "X")
    k("fz_l1W:")
    p1_loader(k, o, "W")
    k("fz_c1:")
    p1_consumer(k, o)

def get_nonce(k):
    k(f"s_add_u32 s10, s4, {WS_FL}\ns_addc_u32 s11, s5, 0\ns_load_dword s{NON}, s[10:11], 0")
    k.srd(FLS, 4, FL_BYTES, add=WS_FL)
def fin_nonce(k):
    k(f"s_waitcnt lgkmcnt(0)\ns_mul_i32 s{NON}, s{NON}, 0x9E3779B1\ns_add_u32 s{NON}, s{NON}, 0x7F4A7C15")

def p1_addr(k, VX0b, VX1b, VWb, tq_s):
    k(f"""
    v_and_b32 v3, 15, v{VL}
    v_lshrrev_b32 v4, 4, v{VL}
    v_lshrrev_b32 v5, 1, v3
    v_xor_b32 v5, v5, v4
    v_lshlrev_b32 v5, 4, v5
    v_lshl_add_u32 v5, v3, 7, v5
    s_lshl_b32 s32, s{tq_s}, 12
    v_add_u32 v{VX0b}, s32, v5
    v_xor_b32 v{VX1b}, 64, v{VX0b}
    v_bfe_u32 v5, v{VL}, 2, 2
    v_and_b32 v6, 1, v4
    v_lshl_add_u32 v5, v6, 2, v5
    v_lshrrev_b32 v6, 1, v4
    v_lshl_add_u32 v5, v6, 4, v5
    v_mul_u32_u24 v5, 288, v5
    v_and_b32 v6, 3, v{VL}
    v_lshl_add_u32 v5, v6, 3, v5
    v_add_u32 v{VWb}, {WOFF}, v5
    """)

def p1_loader(k, o, typ):
    VD = 200; n = 8 if typ == "X" else 9
    k(f"s_sub_u32 s57, s{W}, 4      ; lw\ns_setprio {o.get('prioL', 3)}")
    if typ == "X":
        k(f"""
        v_lshrrev_b32 v3, 3, v{VL}
        v_and_b32 v4, 7, v{VL}
        v_lshrrev_b32 v5, 4, v{VL}
        v_xor_b32 v4, v4, v5
        v_mul_u32_u24 v3, 1152, v3
        v_lshl_add_u32 v3, v4, 4, v3
        v_xor_b32 v4, 64, v3
        s_sub_u32 s31, s{W}, 6
        s_lshl_b32 s30, s{P}, 7
        s_lshl_b32 s32, s31, 6
        s_add_u32 s30, s30, s32
        s_mul_i32 s30, s30, 1152
        s_lshl_b32 s44, s31, 13
        """)
        k("s_mov_b32 s40, 0\ns_waitcnt lgkmcnt(0)")
        k.srd(12, 6, XBYTES)
        for j in range(8):
            k(f"v_add_u32 v{VD+j}, s30, v{3 + (j & 1)}\ns_add_u32 s30, s30, {8*1152}\ns_add_u32 m0, s44, {j*1024}\nbuffer_load_dwordx4 v{VD+j}, s[12:15], s40 offen lds")
        kstep, k0 = 128, 0
    else:
        k(f"s_mul_i32 s32, s{C}, 288\ns_mov_b32 s33, 3641\ns_mul_i32 s31, s57, {9*64}\ns_mul_i32 s44, s57, {9*1024}\ns_add_u32 s44, s44, {WOFF}\nv_add_u32 v2, s31, v{VL}")
        k("s_mov_b32 s40, 4608\ns_waitcnt lgkmcnt(0)")
        k.srd(12, 8, 576 * 9216)
        for j in range(9):
            k(f"""
            v_add_u32 v3, {64*j}, v2
            v_mul_lo_u32 v4, v3, s33
            v_lshrrev_b32 v4, 16, v4
            v_mul_u32_u24 v5, 18, v4
            v_sub_u32 v5, v3, v5
            v_and_b32 v6, 0x33, v4
            v_bfe_u32 v7, v4, 2, 1
            v_lshl_or_b32 v6, v7, 3, v6
            v_bfe_u32 v7, v4, 3, 1
            v_lshl_or_b32 v6, v7, 2, v6
            v_mul_u32_u24 v6, 9216, v6
            v_lshl_add_u32 v6, v5, 4, v6
            v_add_u32 v{VD+j}, s32, v6
            s_add_u32 m0, s44, {j*1024}
            buffer_load_dwordx4 v{VD+j}, s[12:15], s40 offen lds
            """)
        kstep = 64 * 9216
    k("s_mov_b32 s41, s44\ns_mov_b32 s43, 0")
    tch = 1 if (typ == "X" and o.get('touch', 1) == 1) else 0
    TV = 209
    def issue(touch=True):
        L = []
        for j in range(8 if typ == 'X' else 9):
            L.append((f"s_add_u32 m0, s41, {j*1024}\n" if j else "s_mov_b32 m0, s41\n") + f"buffer_load_dwordx4 v{VD+j}, s[12:15], s40 offen {'sc1 ' if typ == 'X' else ''}lds")
        if tch and touch: L.append(f"s_cmp_lt_u32 s49, s51\ns_cselect_b32 s52, s49, {OOB}\nbuffer_load_dword v254, v{TV}, s[28:31], s52 offen\ns_add_u32 s49, s49, s50")
        L.append(f"s_add_u32 s40, s40, {kstep}\ns_add_u32 s41, s41, {SLOT}\ns_cmp_ge_u32 s41, {SLOT*NS}\ns_cselect_b32 s41, s44, s41")
        L.append(f"s_add_u32 s43, s43, 1\ns_cmp_eq_u32 s43, 9\ns_cselect_b32 s40, 0, s40")
        return L
    k("\n".join(issue(False)[n:]))
    for _ in range(2): k("\n".join(issue(False)))
    if tch:
        k(f"""
        s_load_dwordx2 s[46:47], s[0:1], {ARG['w_sp']}
        s_load_dwordx2 s[54:55], s[0:1], {ARG['w_out']}
        v_mov_b32 v6, {OOB}
        v_and_b32 v3, 7, v{VL}
        v_lshrrev_b32 v4, 3, v{VL}
        v_lshlrev_b32 v3, 12, v3
        v_lshl_add_u32 v3, v4, 7, v3
        s_lshl_b32 s31, s2, 15
        v_add_u32 v3, s31, v3
        s_lshr_b32 s33, s2, {4 if o.get('rot') else 16}
        s_lshl_b32 s33, s33, 8
        v_lshl_add_u32 v4, v4, 7, s33
        v_and_b32 v4, 4095, v4
        v_and_b32 v3, 7, v{VL}
        v_lshl_add_u32 v3, v3, 12, v4
        v_add_u32 v3, s31, v3
        v_mov_b32 v{TV}, v3
        s_mov_b32 s49, 1000
        s_mov_b32 s50, 1
        s_mov_b32 s51, 1
        s_waitcnt lgkmcnt(0)
        """)
        k.srd(28, 46, 2048 * 4096)
        k(f"s_cmp_eq_u32 s{W}, 6\ns_cbranch_scc1 fz_t6")
        k.srd(28, 8, 576 * 9216)
        k(f"""
        s_mul_i32 s33, s2, {3*9216}
        s_cmp_lt_u32 s2, 192
        s_cselect_b32 s33, s33, {OOB}
        v_lshlrev_b32 v3, 7, v{VL}
        v_add_u32 v3, s33, v3
        v_cmp_gt_u32 vcc, 36, v{VL}
        v_cndmask_b32 v{TV}, v6, v3, vcc
        s_mov_b32 s49, {-9216 * o.get('tz1', 1)}
        s_mov_b32 s50, 9216
        s_mov_b32 s51, {3*9216}
        fz_t6:
        """)
    n0 = n; n = n + tch
    get_nonce(k)
    VX0, VX1, VW, VX0b, VX1b, VWb = 210, 211, 212, 213, 214, 215
    p1_addr(k, VX0b, VX1b, VWb, 57)
    CA = 44
    WF = 56
    ON = 108
    T = 112
    for i in range(4): k(f"v_mov_b32 v{ON+i}, 0x3f803f80")
    for i in range(12): k(f"v_mov_b32 v{CA+i}, 0")
    k(f"s_lshl_b32 s36, s57, 5\nv_add_u32 v{VWb}, s36, v{VWb}\nv_mov_b32 v{VW}, v{VWb}\ns_mov_b32 s34, 0\ns_mov_b32 s35, 0")
    k.srd(24, 4, 2048 * 16, add=WS_RS)
    k(f"s_lshl_b32 s36, s{P}, 7\ns_and_b32 s37, s57, 1\ns_lshl_b32 s37, s37, 6\ns_add_u32 s36, s36, s37\ns_lshl_b32 s36, s36, 4\nv_lshlrev_b32 v{T+8}, 4, v{VL}")
    fin_nonce(k)
    adv = f"s_add_u32 s34, s34, {SLOT}\ns_cmp_ge_u32 s34, {SLOT*NS}\ns_cselect_b32 s34, 0, s34\nv_add_u32 v{VW}, s34, v{VWb}"
    nt = 3 if typ == "W" else 2
    def stage(z2, do_issue, wait):
        k(f"s_waitcnt vmcnt({wait})\ns_barrier")
        rd_ = []; mf = []
        if z2:
            for hf in range(2):
                for t in range(nt):
                    f = WF + (hf * 3 + t) * 4
                    for rd in range(2): rd_.append(f"ds_read_b64_tr_b16 v[{f+2*rd}:{f+2*rd+1}], v{VW} offset:{hf*32*288 + rd*8*288 + t*128}")
                    mf.append(f"v_mfma_f32_16x16x32_bf16 v[{CA+4*t}:{CA+4*t+3}], v[{ON}:{ON+3}], v[{f}:{f+3}], v[{CA+4*t}:{CA+4*t+3}]")
        dm = issue() if do_issue else []
        if z2:
            k("\n".join(rd_ + dm[:2]))
            k("s_waitcnt lgkmcnt(0)")
            k("\n".join(front(dm[2:], mf)))
            k(adv)
        else: k("\n".join(dm))
        k("s_add_u32 s35, s35, 1")
    def gran_check(vd, va, so, full):
        L = k.label("rp"); D = k.label("rd")
        k(f"""
        s_mov_b32 s62, 0
        {"" if full else xm(0xffffffff)}
        {L}:
        v_cmp_ne_u32 vcc, s{NON}, v{vd+1}
        v_cmp_ne_u32 s[60:61], s{NON}, v{vd+3}
        s_or_b64 vcc, vcc, s[60:61]
        s_cbranch_vccz {D}
        s_add_u32 s62, s62, 1
        s_cmp_ge_u32 s62, {SPIN}
        s_cbranch_scc1 {D}
        buffer_load_dwordx4 v[{vd}:{vd+3}], v{va}, s[24:27], s{so} offen sc1
        s_waitcnt vmcnt(0)
        s_branch {L}
        {D}:
        """)
    k(f"fz_l1{typ}a:")
    stage(True, True, 2 * n0)
    if typ == "X":
        L = k.label("rg")
        k(f"s_cmp_eq_u32 s35, 5\ns_cbranch_scc0 {L}\nbuffer_load_dwordx4 v[{T+4}:{T+7}], v{T+8}, s[24:27], s36 offen sc1\n{L}:")
    k(f"s_cmp_lt_u32 s35, 6\ns_cbranch_scc1 fz_l1{typ}a")
    if typ == "X":
        k(f"s_waitcnt vmcnt({n})")
        gran_check(T + 4, T + 8, 36, True)
        k.srd(12, 4, XBYTES, add=WS_XN)
        k(f"""
        v_lshlrev_b32 v{T}, 2, v{VL}
        s_sub_u32 s33, s{W}, 6
        s_lshl_b32 s33, s33, 8
        s_add_u32 s33, s33, {ROWA}
        v_add_u32 v{T}, s33, v{T}
        ds_write_b32 v{T}, v{T+4}
        ds_write_b32 v{T}, v{T+6} offset:512
        """)
    k(f"fz_l1{typ}a2:")
    stage(True, True, 2 * n0)
    k(f"s_cmp_lt_u32 s35, 9\ns_cbranch_scc1 fz_l1{typ}a2")
    k(f"s_lshl_b32 s33, s57, 6\ns_add_u32 s33, s33, {COLP}\nv_lshlrev_b32 v{T}, 2, v{VL}\nv_add_u32 v{T}, s33, v{T}\n{xm(0xffff)}")
    for t in range(nt): k(f"ds_write_b32 v{T}, v{CA+4*t} offset:{t*256}")
    k("s_mov_b64 exec, -1\ns_waitcnt lgkmcnt(0)\ns_barrier")
    k.stamp(3)
    k("\n".join(issue()))
    if tch:
        L = k.label("t7")
        k(f"s_cmp_eq_u32 s{W}, 6\ns_cbranch_scc1 {L}")
        k.srd(28, 54, WOBYTES)
        k(f"s_mul_i32 s33, s2, {81*128}\nv_lshlrev_b32 v3, 7, v{VL}\nv_add_u32 v3, s33, v3\nv_mov_b32 v6, {OOB}\nv_cmp_gt_u32 vcc, 27, v{VL}\nv_cndmask_b32 v{TV}, v6, v3, vcc\ns_mov_b32 s49, 0\ns_mov_b32 s50, {27*128}\ns_mov_b32 s51, {81*128}\n{L}:")
    ex = 0
    if typ == "X":
        k.srd(24, 4, XBYTES, add=WS_XT)
        k(f"""
        v_bfe_u32 v{T}, v{VL}, 2, 2
        v_mul_u32_u24 v{T}, 1216, v{T}
        v_and_b32 v{T+1}, 3, v{VL}
        v_lshl_add_u32 v{T}, v{T+1}, 3, v{T}
        v_lshrrev_b32 v{T+1}, 4, v{VL}
        v_lshl_add_u32 v{T}, v{T+1}, 5, v{T}
        s_sub_u32 s37, s{W}, 6
        s_lshl_b32 s33, s37, 9
        s_add_u32 s33, s33, {XTS}
        v_add_u32 v{T}, s33, v{T}
        s_mul_i32 s33, s2, 9216
        s_lshl_b32 s36, s37, 12
        s_add_u32 s33, s33, s36
        s_lshl_b32 s36, s2, 1
        s_add_u32 s36, s36, s37
        s_lshl_b32 s36, s36, 2
        s_add_u32 s36, s36, {FL_T}
        """)
        for ps in range(5):
            for rd in range(2): k(f"ds_read_b64_tr_b16 v[{124+4*ps+2*rd}:{124+4*ps+2*rd+1}], v{T} offset:{rd*4*1216 + ps*128}")
        k("s_waitcnt lgkmcnt(0)")
        for ps in range(5): k(f"buffer_store_dwordx4 v[{124+4*ps}:{124+4*ps+3}], v{T+8}, s[24:27], s33 offen sc1\ns_add_u32 s33, s33, 1024")
        ex = 5
        nrow = o.get('trows', 4)
        k.srd(24, 46, 2048 * 4096)
        k(f"s_lshl_b32 s33, s2, 1\ns_add_u32 s33, s33, s37\ns_lshl_b32 s33, s33, 14\nv_lshlrev_b32 v{T+2}, 7, v{VL}")
        for i in range(2): k(f"buffer_load_dword v254, v{T+2}, s[24:27], s33 offen\ns_add_u32 s33, s33, 8192")
        ex = 7
    elif o.get('prew', 0):
        k.srd(24, 4, FRAG9, add=WS_Z2)
        k(f"s_mul_i32 s33, s{C}, {9*64}\ns_lshl_b32 s36, s{P}, 2\ns_add_u32 s33, s33, s36\ns_lshl_b32 s36, s57, 1\ns_add_u32 s33, s33, s36\ns_lshl_b32 s33, s33, 10")
        for i in range(9):
            k(f"buffer_store_dwordx4 v[{ON}:{ON+3}], v{T+8}, s[24:27], s33 offen sc1\nbuffer_store_dwordx4 v[{ON}:{ON+3}], v{T+8}, s[24:27], s33 offen offset:1024 sc1\ns_add_u32 s33, s33, 65536")
        ex = 18
    stage(False, False, 3 * n + tch + ex)
    for _ in range(3): stage(False, True, 2 * n + tch + ex)
    stage(False, True, 2 * n + tch)
    if typ == "X":
        k(f"v_mov_b32 v{T}, 0\nv_mov_b32 v{T+1}, s{NON}\ns_mov_b64 exec, 1\nbuffer_store_dword v{T+1}, v{T}, s[{FLS}:{FLS+3}], s36 offen sc1\ns_mov_b64 exec, -1")
    stage(False, True, 2 * n + tch)
    k(f"""
    s_sub_u32 s30, 7, s{W}
    s_lshl_b32 s58, s2, 1
    s_add_u32 s58, s58, s30
    s_add_u32 s59, s2, 512
    s_cmp_eq_u32 s30, 2
    s_cselect_b32 s58, s59, s58
    s_cmp_eq_u32 s30, 3
    s_cselect_b32 s58, 1000, s58
    s_mov_b32 s56, s30
    """)
    kgen_setup(k, o)
    for r in (2, 1, 0): stage(False, False, r * n + tch + 14)
    k("s_waitcnt vmcnt(0)\ns_barrier")
    k.stamp(6)
    k("s_branch fz_loader")

def p1_consumer(k, o):
    A2, A1 = 0, 72
    FX, FY = 144, 188
    VX0, VX1, VW, VX0b, VX1b, VWb = 232, 233, 234, 235, 236, 237
    NMR, RR = 238, 240
    VC1, VONE = 242, 244
    V16 = 246; VPG, VPR = 247, 248
    k(f"s_load_dwordx2 s[24:25], s[0:1], {ARG['w_sp']}\ns_load_dwordx2 s[26:27], s[0:1], {ARG['w_out']}\ns_waitcnt lgkmcnt(0)")
    k.srd(12, 6, XBYTES)
    k(f"""
    s_lshl_b32 s30, s2, 2
    s_add_u32 s30, s30, s{W}
    s_mul_i32 s31, s30, 2304
    v_lshlrev_b32 v2, 4, v{VL}
    v_mov_b32 v3, {OOB}
    v_cmp_gt_u32 vcc, 36, v{VL}
    v_cndmask_b32 v2, v3, v2, vcc
    buffer_load_dwordx4 v[8:11], v2, s[12:15], s31 offen
    buffer_load_dwordx4 v[12:15], v2, s[12:15], s31 offen offset:576
    buffer_load_dwordx4 v[16:19], v2, s[12:15], s31 offen offset:1152
    buffer_load_dwordx4 v[20:23], v2, s[12:15], s31 offen offset:1728
    """)
    get_nonce(k)
    p1_addr(k, VX0b, VX1b, VWb, W)
    k(f"""
    v_mov_b32 v{VX0}, v{VX0b}
    v_mov_b32 v{VX1}, v{VX1b}
    v_mov_b32 v{VW}, v{VWb}
    s_mov_b32 s34, 0
    s_mov_b32 s56, {fbits(C2)}
    s_mov_b32 s57, {fbits(C2)}
    v_mov_b32 v{VC1}, {fbits(C1)}
    v_mov_b32 v{VC1+1}, {fbits(C1)}
    v_mov_b32 v{VONE}, 1.0
    v_mov_b32 v{VONE+1}, 1.0
    v_lshlrev_b32 v{V16}, 4, v{VL}
    s_lshl_b32 s33, s{W}, 8
    s_add_u32 s33, s33, {WPRIV}
    v_lshrrev_b32 v3, 4, v{VL}
    v_lshlrev_b32 v3, 4, v3
    v_add_u32 v{VPG}, s33, v3
    v_and_b32 v3, 31, v{VL}
    v_lshlrev_b32 v3, 2, v3
    v_add_u32 v{VPR}, s33, v3
    s_setprio {o.get('prio1', 2)}
    """)
    fin_nonce(k)
    if o.get('touch', 1):
        k(f"""
        v_mul_u32_u24 v3, 43, v{VL}
        v_lshrrev_b32 v3, 8, v3
        v_mul_u32_u24 v4, 6, v3
        v_sub_u32 v4, v{VL}, v4
        s_lshl_b32 s31, s30, 1
        v_add_u32 v3, s31, v3
        v_mul_u32_u24 v3, 1152, v3
        v_lshl_add_u32 v3, v4, 7, v3
        s_mul_i32 s31, s30, 14
        v_add_u32 v7, s31, v{VL}
        v_min_u32 v7, 13823, v7
        s_mov_b32 s32, 29128
        v_mul_lo_u32 v4, v7, s32
        v_lshrrev_b32 v4, 20, v4
        v_mul_u32_u24 v5, 36, v4
        v_sub_u32 v5, v7, v5
        v_mul_u32_u24 v4, 9216, v4
        v_lshl_add_u32 v4, v5, 7, v4
        v_add_u32 v4, {192*9216 + 4608}, v4
        {xm(0xfff)}
        global_load_dword v254, v3, s[6:7] offset:384
        {xm((1 << 14) - 1)}
        global_load_dword v254, v4, s[8:9]
        s_mov_b64 exec, -1
        """)

    X = 32; S = 70
    k(f"v_cmp_gt_u32 vcc, 36, v{VL}\ns_waitcnt vmcnt({2 if o.get('touch', 1) else 0})")
    for i in range(16): k(f"v_lshlrev_b32 v{X+2*i}, 16, v{8+i}\nv_and_b32 v{X+2*i+1}, 0xffff0000, v{8+i}")
    for r in range(2):
        b = X + 16 * r; s_ = S + 8 * r
        k(f"v_pk_add_f32 v[{s_}:{s_+1}], v[{b}:{b+1}], v[{b+2}:{b+3}]")
    for i in range(2, 8):
        for r in range(2):
            b = X + 16 * r; s_ = S + 8 * r
            k(f"v_pk_add_f32 v[{s_}:{s_+1}], v[{s_}:{s_+1}], v[{b+2*i}:{b+2*i+1}]")
    for r in range(2): k(f"v_add_f32 v{S+8*r}, v{S+8*r}, v{S+8*r+1}")
    dpp_sum16(k, [S, S + 8])
    for r in range(2): xsum_rows(k, S + 8 * r, S + 8 * r + 1)
    for r in range(2):
        s_ = S + 8 * r
        k(f"v_mul_f32 v{s_}, {1.0/576!r}, v{s_}\nv_cndmask_b32 v{s_+6}, 0, v{s_}, vcc\nv_mov_b32 v{s_+7}, v{s_+6}")
    for i in range(8):
        for r in range(2):
            b = X + 16 * r; s_ = S + 8 * r
            k(f"v_pk_add_f32 v[{s_+4}:{s_+5}], v[{b+2*i}:{b+2*i+1}], v[{s_+6}:{s_+7}] neg_lo:[0,1] neg_hi:[0,1]")
            if i == 0: k(f"v_pk_mul_f32 v[{s_+2}:{s_+3}], v[{s_+4}:{s_+5}], v[{s_+4}:{s_+5}]")
            else: k(f"v_pk_fma_f32 v[{s_+2}:{s_+3}], v[{s_+4}:{s_+5}], v[{s_+4}:{s_+5}], v[{s_+2}:{s_+3}]")
    for r in range(2): k(f"v_add_f32 v{S+8*r+2}, v{S+8*r+2}, v{S+8*r+3}")
    dpp_sum16(k, [S + 2, S + 10])
    for r in range(2): xsum_rows(k, S + 8 * r + 2, S + 8 * r + 3)
    k.srd(36, 4, 2048 * 16, add=WS_RS)
    for r in range(2):
        s_ = S + 8 * r
        k(f"v_mul_f32 v{s_+2}, {1.0/576!r}, v{s_+2}")
        ln_finish(k, s_, s_ + 2)
        k(f"v_mul_f32 v{s_}, -v{s_}, v{s_+2}\nv_mov_b32 v{s_+1}, s{NON}\nv_mov_b32 v{s_+3}, s{NON}")
    for i in range(8):
        for r in range(2):
            a = X + 16 * r + 2 * i; s_ = S + 8 * r
            k(f"v_pk_fma_f32 v[{a}:{a+1}], v[{a}:{a+1}], v[{s_+2}:{s_+3}], v[{s_}:{s_+1}] op_sel_hi:[1,0,0]")
    for i in range(16): k(f"v_cvt_pk_bf16_f32 v{8+i}, v{X+2*i}, v{X+2*i+1}")
    k(f"s_mul_i32 s31, s{W}, {2*1216}\ns_add_u32 s31, s31, {XTS}\nv_lshlrev_b32 v3, 4, v{VL}\nv_add_u32 v3, s31, v3\n{xm((1 << 36) - 1)}")
    for i in range(4): k(f"ds_write_b128 v3, v[{8+4*i}:{11+4*i}] offset:{(i >> 1)*1216 + (i & 1)*576}")
    k("s_mov_b64 exec, -1")
    k.srd(40, 4, XBYTES, add=WS_XN)
    k(f"s_mul_i32 s31, s30, 2304")
    for i in range(4): k(f"buffer_store_dwordx4 v[{8+4*i}:{11+4*i}], v2, s[40:43], s31 offen offset:{576*i} sc1")
    def rowgran():
        k(f"""
        s_lshl_b32 s31, s30, 5
        v_mov_b32 v249, 0
        s_waitcnt vmcnt(0)
        s_mov_b64 exec, 1
        buffer_store_dwordx4 v[112:115], v249, s[36:39], s31 offen sc1
        buffer_store_dwordx4 v[116:119], v249, s[36:39], s31 offen offset:16 sc1
        s_mov_b64 exec, -1
        """)
    for i in range(4): k(f"v_mov_b32 v{112+i}, v{S+i}\nv_mov_b32 v{116+i}, v{S+8+i}")
    k("s_waitcnt lgkmcnt(0)")
    def reads(F, half):
        vx = VX0 if half == 0 else VX1
        r = [f"ds_read_b128 v[{F+4*tb}:{F+4*tb+3}], v{vx} offset:{tb*2048}" for tb in range(2)]
        if o.get('nord1') == 1: return r
        if o.get('nord1') == 2: return [f"ds_read_b128 v[{F+8+4*i}:{F+8+4*i+3}], v{V16} offset:{i*1024}" for i in range(9)] + r
        for i in range(9):
            for rd in range(2):
                b = F + 8 + 4 * i + 2 * rd
                r.append(f"ds_read_b64_tr_b16 v[{b}:{b+1}], v{VW} offset:{half*32*288 + rd*8*288 + i*32}")
        return r
    def mfmas(F, z2, first=False):
        out = []; ACC = A2 if z2 else A1
        for i in range(9):
            for tb in range(2):
                a = ACC + (i * 2 + tb) * 4
                wf = f"v[{F+8+4*i}:{F+8+4*i+3}]"; xf = f"v[{F+4*tb}:{F+4*tb+3}]"
                A, B = (xf, wf) if z2 else (wf, xf)
                out.append(f"v_mfma_f32_16x16x32_bf16 v[{a}:{a+3}], {A}, {B}, {'0' if first else 'v[%d:%d]' % (a, a+3)}")
        return out
    adv = [f"s_add_u32 s34, s34, {SLOT}\ns_cmp_ge_u32 s34, {SLOT*NS}\ns_cselect_b32 s34, 0, s34",
           f"v_add_u32 v{VX0}, s34, v{VX0b}\nv_add_u32 v{VX1}, s34, v{VX1b}\nv_add_u32 v{VW}, s34, v{VWb}"]
    def gemm(z2):
        name = f"fz_g1{'a' if z2 else 'b'}"
        k("s_barrier")
        k.stamp(2 if z2 else 5)
        k("\n".join(reads(FX, 0)))
        k("s_waitcnt lgkmcnt(0)")
        k("\n".join(front2(mfmas(FX, z2, True), reads(FY, 1) + adv, o.get('per', 2))))
        k(f"s_mov_b32 s35, 1\ns_waitcnt lgkmcnt(0)\n{name}:\ns_barrier")
        k("\n".join(front2(mfmas(FY, z2), reads(FX, 0), o.get('per', 2))))
        k("s_waitcnt lgkmcnt(0)")
        k("\n".join(front2(mfmas(FX, z2), reads(FY, 1) + adv + ["s_add_u32 s35, s35, 1"], o.get('per', 2))))
        if z2:
            k("s_cmp_eq_u32 s35, 2\ns_cbranch_scc0 fz_nrg"); rowgran(); k("fz_nrg:")
        k(f"s_cmp_lt_u32 s35, 9\ns_waitcnt lgkmcnt(0)\ns_cbranch_scc1 {name}")
        k("\n".join(mfmas(FY, z2)))
    gemm(True)
    k.stamp(3)
    SU, SQ = FX, FX + 8
    CP = FX + 16
    T = 196
    PS, PQ = 212, 220
    k(f"""
    v_and_b32 v{T}, 15, v{VL}
    v_lshlrev_b32 v{T}, 2, v{T}
    v_add_u32 v{T+1}, {COLP}, v{T}
    s_lshl_b32 s33, s{W}, 7
    s_add_u32 s33, s33, {ROWA}
    v_add_u32 v{T}, s33, v{T}
    v_lshrrev_b32 v{T+2}, 4, v{VL}
    v_lshlrev_b32 v{T+2}, 4, v{T+2}
    v_add_u32 v{T+2}, s33, v{T+2}
    s_barrier
    ds_read_b128 v[{SU}:{SU+3}], v{T+2}
    ds_read_b128 v[{SU+4}:{SU+7}], v{T+2} offset:64
    ds_read_b128 v[{SQ}:{SQ+3}], v{T+2} offset:512
    ds_read_b128 v[{SQ+4}:{SQ+7}], v{T+2} offset:576
    """)
    for i in range(9): k(f"ds_read_b32 v{CP+4*i}, v{T+1} offset:{i*64}")
    k.srd(44, 26, WOBYTES)
    k("s_waitcnt lgkmcnt(0)")
    for i in range(9):
        pairs = [A2 + (i * 2) * 4, A2 + (i * 2) * 4 + 2, A2 + (i * 2 + 1) * 4, A2 + (i * 2 + 1) * 4 + 2]
        cs = CP + 4 * i
        for n, a in enumerate(pairs): k(f"v_pk_mul_f32 v[{T+2*n}:{T+2*n+1}], v[{SU+2*n}:{SU+2*n+1}], v[{cs}:{cs+1}] op_sel_hi:[1,0]")
        for n, a in enumerate(pairs): k(f"v_pk_fma_f32 v[{a}:{a+1}], v[{a}:{a+1}], v[{SQ+2*n}:{SQ+2*n+1}], v[{T+2*n}:{T+2*n+1}]")
        gelu_group(k, pairs, T, 56, VC1, VONE)
        for n, a in enumerate(pairs):
            if i == 0: k(f"v_pk_mul_f32 v[{PQ+2*n}:{PQ+2*n+1}], v[{a}:{a+1}], v[{a}:{a+1}]\nv_mov_b32 v{PS+2*n}, v{a}\nv_mov_b32 v{PS+2*n+1}, v{a+1}")
            else: k(f"v_pk_fma_f32 v[{PQ+2*n}:{PQ+2*n+1}], v[{a}:{a+1}], v[{a}:{a+1}], v[{PQ+2*n}:{PQ+2*n+1}]\nv_pk_add_f32 v[{PS+2*n}:{PS+2*n+1}], v[{PS+2*n}:{PS+2*n+1}], v[{a}:{a+1}]")
    dpp_sum16(k, list(range(PS, PS + 16)))
    k.srd(36, 4, 16 * 16 * 2048, add=WS_ST)
    k(f"""
    {xm(0x0001000100010001)}
    ds_write_b128 v{VPG}, v[{PS}:{PS+3}]
    ds_write_b128 v{VPG}, v[{PS+4}:{PS+7}] offset:64
    ds_write_b128 v{VPG}, v[{PQ}:{PQ+3}] offset:128
    ds_write_b128 v{VPG}, v[{PQ+4}:{PQ+7}] offset:192
    s_mov_b64 exec, -1
    ds_read_b32 v{T+4}, v{VPR}
    ds_read_b32 v{T+6}, v{VPR} offset:128
    v_mov_b32 v{T+5}, s{NON}
    v_mov_b32 v{T+7}, s{NON}
    s_lshl_b32 s33, s{P}, 4
    s_add_u32 s33, s33, s{C}
    s_lshl_b32 s33, s33, 11
    s_lshl_b32 s53, s{W}, 9
    s_add_u32 s33, s33, s53
    v_and_b32 v{T+3}, 31, v{VL}
    v_lshlrev_b32 v{T+3}, 4, v{T+3}
    s_waitcnt lgkmcnt(0)
    {xm(0xffffffff)}
    buffer_store_dwordx4 v[{T+4}:{T+7}], v{T+3}, s[36:39], s33 offen sc1
    s_mov_b64 exec, -1
    """)
    k.stamp(4)
    gemm(False)
    k.stamp(6)
    Q = FX
    T = 196
    k(f"""
    v_and_b32 v249, 31, v{VL}
    v_lshlrev_b32 v249, 4, v249
    v_lshrrev_b32 v250, 5, v{VL}
    v_lshl_add_u32 v249, v250, 14, v249
    s_lshl_b32 s52, s{P}, 15
    s_lshl_b32 s53, s{W}, 9
    s_add_u32 s52, s52, s53
    s_mov_b32 s62, 0
    """)
    def sweep():
        for c2 in range(8): k(f"s_add_u32 s53, s52, {c2*2048}\nbuffer_load_dwordx4 v[{Q+4*c2}:{Q+3+4*c2}], v249, s[36:39], s53 offen sc1")
    sweep()
    k(f"s_barrier\nfz_sp:\ns_waitcnt vmcnt(0)\nv_xor_b32 v{T+5}, s{NON}, v{Q+1}")
    for c2 in range(8):
        for hh in range(2):
            if c2 == 0 and hh == 0: continue
            k(f"v_xor_b32 v{T+6+(c2+hh)%2}, s{NON}, v{Q+1+4*c2+2*hh}\nv_or_b32 v{T+5}, v{T+5}, v{T+6+(c2+hh)%2}")
    k(f"v_cmp_ne_u32 vcc, 0, v{T+5}\ns_cbranch_vccz fz_spd\ns_add_u32 s62, s62, 1\ns_cmp_ge_u32 s62, {SPIN}\ns_cbranch_scc1 fz_spd")
    sweep()
    k(f"s_branch fz_sp\nfz_spd:")
    k.stamp(7)
    for c2 in range(1, 8): k(f"v_add_f32 v{Q}, v{Q}, v{Q+4*c2}\nv_add_f32 v{Q+2}, v{Q+2}, v{Q+2+4*c2}")
    m, v = Q, Q + 2
    k(f"""
    v_mov_b32 v{Q+1}, v{m}
    v_mov_b32 v{Q+3}, v{v}
    v_permlane32_swap_b32 v{m}, v{Q+1}
    v_permlane32_swap_b32 v{v}, v{Q+3}
    v_add_f32 v{m}, v{m}, v{Q+1}
    v_add_f32 v{v}, v{v}, v{Q+3}
    v_mul_f32 v{m}, {1.0/2304!r}, v{m}
    v_mul_f32 v{v}, {1.0/2304!r}, v{v}
    v_fma_f32 v{v}, -v{m}, v{m}, v{v}
    v_max_f32 v{v}, 0, v{v}
    """)
    ln_finish(k, m, v)
    SU, SQ = 148, 156
    k(f"""
    v_mul_f32 v{m}, -v{m}, v{v}
    ds_write_b32 v{VPR}, v{m}
    ds_write_b32 v{VPR}, v{v} offset:128
    ds_read_b128 v[{SU}:{SU+3}], v{VPG}
    ds_read_b128 v[{SU+4}:{SU+7}], v{VPG} offset:64
    ds_read_b128 v[{SQ}:{SQ+3}], v{VPG} offset:128
    ds_read_b128 v[{SQ+4}:{SQ+7}], v{VPG} offset:192
    """)
    k.srd(36, 4, FRAG9, add=WS_Z2)
    k(f"""
    s_mul_i32 s32, s{C}, {9*64}
    s_lshl_b32 s33, s{P}, 2
    s_add_u32 s33, s33, s{W}         ; kb
    s_add_u32 s32, s32, s33
    s_lshl_b32 s32, s32, 10
    s_lshl_b32 s34, s{C}, 6
    s_add_u32 s34, s34, s33
    s_lshl_b32 s34, s34, 2
    s_add_u32 s34, s34, {FL_2}
    v_lshrrev_b32 v250, 4, v{VL}
    v_lshlrev_b32 v250, 4, v250
    v_add_u32 v250, {COLP + 768}, v250
    s_waitcnt lgkmcnt(0)
    """)
    for i in range(9):
        oo = 164 + (i % 4) * 4
        for sb in range(2):
            a = A2 + (i * 2 + sb) * 4
            for hh in range(2):
                k(f"v_pk_fma_f32 v[{a+2*hh}:{a+2*hh+1}], v[{a+2*hh}:{a+2*hh+1}], v[{SQ+4*sb+2*hh}:{SQ+4*sb+2*hh+1}], v[{SU+4*sb+2*hh}:{SU+4*sb+2*hh+1}]")
            for hh in range(2): k(f"v_cvt_pk_bf16_f32 v{oo+2*sb+hh}, v{a+2*hh}, v{a+2*hh+1}")
        k(f"v_permlane16_swap_b32 v{oo}, v{oo+2}\nv_permlane16_swap_b32 v{oo+1}, v{oo+3}")
        k(f"buffer_store_dwordx4 v[{oo}:{oo+3}], v{V16}, s[36:39], s32 offen sc1\ns_add_u32 s32, s32, 65536")
    k.stamp(8)
    side_issue(k, o)
    for i in range(9):
        pairs = [A1 + (i * 2) * 4, A1 + (i * 2) * 4 + 2, A1 + (i * 2 + 1) * 4, A1 + (i * 2 + 1) * 4 + 2]
        gelu_group(k, pairs, T, 56, VC1, VONE)
        for n, a in enumerate(pairs): k(f"v_cvt_pk_bf16_f32 v{Z1 + (n >> 1)*18 + 2*i + (n & 1)}, v{a}, v{a+1}")
        if i == o.get('flagpos', 3):
            k(f"v_mov_b32 v{T+10}, 0\nv_mov_b32 v{T+11}, s{NON}\ns_waitcnt vmcnt(5)\ns_mov_b64 exec, 1\nbuffer_store_dword v{T+11}, v{T+10}, s[{FLS}:{FLS+3}], s34 offen sc1\ns_mov_b64 exec, -1")
            k.stamp(9)
    side_run(k, o)
    k("s_branch fz_cons")


def side_issue(k, o):
    k(f"""
    s_lshl_b32 s53, s{W}, 8
    s_add_u32 s53, s53, s2
    s_mul_i32 s54, s53, 52429
    s_lshr_b32 s54, s54, 18
    s_mul_i32 s55, s54, 5
    s_sub_u32 s55, s53, s55          ; q
    s_lshr_b32 s33, s54, 4
    s_and_b32 s35, s54, 15
    s_mul_i32 s35, s35, 144
    s_lshl_b32 s52, s55, 5
    s_add_u32 s35, s35, s52
    s_mul_i32 s35, s35, 1152
    s_mul_i32 s33, s33, 144
    s_add_u32 s35, s35, s33
    s_cmp_lt_u32 s53, 640
    s_cselect_b32 s35, s35, {OOB}
    s_mul_i32 s52, s{W}, 5120
    s_add_u32 s52, s52, {XTS}
    s_mov_b32 s33, {(1 << 16) // 9 + 1}
    """)
    for i in range(5):
        k(f"""
        v_add_u32 v232, {64*i}, v{VL}
        v_mul_lo_u32 v233, v232, s33
        v_lshrrev_b32 v233, 16, v233
        v_mul_u32_u24 v234, 9, v233
        v_sub_u32 v234, v232, v234
        v_mul_u32_u24 v233, 1152, v233
        v_lshl_add_u32 v233, v234, 4, v233
        s_add_u32 m0, s52, {i*1024}
        buffer_load_dwordx4 v233, s[44:47], s35 offen lds
        """)

def side_run(k, o):
    k(f"s_cmp_ge_u32 s53, 640\ns_cbranch_scc1 fz_sr9")
    k.srd(36, 4, WOBYTES, add=WS_WO)
    k(f"""
    v_bfe_u32 v3, v{VL}, 2, 2
    v_and_b32 v4, 3, v{VL}
    v_lshrrev_b32 v7, 4, v{VL}
    v_lshl_add_u32 v3, v7, 2, v3
    v_mul_u32_u24 v3, 144, v3
    v_lshl_add_u32 v3, v4, 3, v3
    v_add_u32 v3, s52, v3
    s_waitcnt vmcnt(1)
    """)
    for dt in range(5):
        k(f"ds_read_b64_tr_b16 v[{10+4*dt}:{11+4*dt}], v3 offset:{dt*32}")
        k(f"ds_read_b64_tr_b16 v[{12+4*dt}:{13+4*dt}], v3 offset:{dt*32 + 16*144}")
    k(f"""
    v_lshlrev_b32 v8, 4, v{VL}
    v_lshlrev_b32 v9, 3, v{VL}
    v_and_b32 v34, 7, v{VL}
    v_lshl_add_u32 v34, v7, 3, v34
    v_lshlrev_b32 v35, 4, v34
    v_lshlrev_b32 v34, 3, v34
    s_mul_i32 s33, s54, 20736
    s_mul_i32 s35, s55, 4608
    s_add_u32 s33, s33, s35
    s_add_u32 s35, s33, 4096
    s_lshl_b32 s59, s54, 3
    s_add_u32 s59, s59, s55
    s_lshl_b32 s59, s59, 2
    s_add_u32 s59, s59, {FL_W}
    s_cmp_eq_u32 s55, 4
    s_waitcnt lgkmcnt(0)
    s_cbranch_scc1 fz_sr2
    """)
    for dt in range(4): k(f"buffer_store_dwordx4 v[{10+4*dt}:{13+4*dt}], v8, s[36:39], s33 offen offset:{dt*1024} sc1")
    k(xm(0x00ff00ff00ff00ff))
    k("buffer_store_dwordx4 v[26:29], v35, s[36:39], s35 offen sc1\ns_branch fz_sr3\nfz_sr2:")
    for dt in range(4): k(f"buffer_store_dwordx2 v[{10+4*dt}:{11+4*dt}], v9, s[36:39], s33 offen offset:{dt*512} sc1")
    k(xm(0x00ff00ff00ff00ff))
    k("buffer_store_dwordx2 v[26:27], v34, s[36:39], s33 offen offset:2048 sc1\nfz_sr3:\ns_mov_b64 exec, -1")
    k("fz_sr9:")

def phase2(k, o):
    NST = 32
    k("fz_cons:")
    k.stamp(10)
    ACC = 0; FX = 72; FY = 116
    VA, VB0, VB1, VAb, VB0b, VB1b = 196, 197, 198, 199, 200, 201
    VT, VBS, VO = 203, 204, 208
    k(f"""
    s_load_dwordx2 s[8:9], s[0:1], {ARG['b_sp']}
    s_lshl_b32 s30, s{P}, 3
    s_lshl_b32 s31, s{W}, 1
    s_add_u32 s30, s30, s31
    s_lshl_b32 s31, s30, 4
    s_add_u32 s31, s31, s{C}
    s_mul_i32 s31, s31, 4608
    s_add_u32 s32, s31, {16*4608}
    v_lshlrev_b32 v{VO}, 4, v{VL}
    v_lshlrev_b32 v{VO+1}, 3, v{VL}
    v_and_b32 v{VT}, 15, v{VL}
    v_lshrrev_b32 v{VB0b}, 4, v{VL}
    v_lshrrev_b32 v{VB1b}, 1, v{VT}
    v_xor_b32 v{VB0b}, v{VB0b}, v{VB1b}
    v_lshlrev_b32 v{VB0b}, 4, v{VB0b}
    v_lshl_add_u32 v{VB0b}, v{VT}, 7, v{VB0b}
    s_lshl_b32 s34, s{W}, 12
    s_add_u32 s34, s34, 18432
    v_add_u32 v{VB0b}, s34, v{VB0b}
    v_xor_b32 v{VB1b}, 64, v{VB0b}
    v_mov_b32 v{VAb}, v{VO}
    v_mov_b32 v{VA}, v{VO}
    v_mov_b32 v{VB0}, v{VB0b}
    v_mov_b32 v{VB1}, v{VB1b}
    s_lshl_b32 s34, s30, 4
    v_add_u32 v{VT}, s34, v{VT}
    v_lshlrev_b32 v{VT}, 1, v{VT}
    s_waitcnt lgkmcnt(0)
    global_load_ushort v{VBS}, v{VT}, s[8:9]
    global_load_ushort v{VBS+2}, v{VT}, s[8:9] offset:32
    s_mov_b32 s34, 0
    s_mov_b32 s35, 1
    s_setprio {o.get('prio', 2)}
    """)
    k(f"""
    s_lshl_b32 s28, s{P}, 1
    s_lshr_b32 s10, s{W}, 1
    s_add_u32 s28, s28, s10
    s_lshl_b32 s28, s28, 4
    s_add_u32 s28, s28, s{C}
    s_lshl_b32 s28, s28, 1
    s_and_b32 s10, s{W}, 1
    s_add_u32 s28, s28, s10
    s_lshl_b32 s28, s28, 2
    s_add_u32 s28, s28, {FL_H}
    """)
    g3 = Gemm3(k, o)
    g3.pre()
    def reads(F, half):
        vb = VB0 if half == 0 else VB1
        r = [f"ds_read_b128 v[{F+4*tb}:{F+4*tb+3}], v{vb} offset:{tb*2048}" for tb in range(2)]
        r += [f"ds_read_b128 v[{F+8+4*ft}:{F+8+4*ft+3}], v{VA} offset:{(ft*2+half)*1024}" for ft in range(9)]
        return r
    def mfmas(F, first=False):
        return [f"v_mfma_f32_16x16x32_bf16 v[{ACC+(ft*2+tb)*4}:{ACC+(ft*2+tb)*4+3}], v[{F+8+4*ft}:{F+8+4*ft+3}], v[{F+4*tb}:{F+4*tb+3}], " + ("0" if first else f"v[{ACC+(ft*2+tb)*4}:{ACC+(ft*2+tb)*4+3}]")
                for ft in range(9) for tb in range(2)]
    adv = [f"s_add_u32 s34, s34, {SLOT}", f"s_cmp_ge_u32 s34, {SLOT*NS}", "s_cselect_b32 s34, 0, s34",
           f"v_add_u32 v{VA}, s34, v{VAb}", f"v_add_u32 v{VB0}, s34, v{VB0b}", f"v_add_u32 v{VB1}, s34, v{VB1b}"]
    k("s_barrier")
    k.stamp(11)
    k("\n".join(reads(FX, 0)))
    k("s_waitcnt lgkmcnt(0)")
    k("\n".join(front(mfmas(FX, True), reads(FY, 1) + adv)))
    k(f"s_cmp_lt_u32 s53, 640\ns_cselect_b32 s53, 8, 99\ns_waitcnt lgkmcnt(0)")
    k("fz_cloop:")
    k(f"s_cmp_eq_u32 s35, s53\ns_cbranch_scc0 fz_nwf")
    set_flag(k, 210, 211, 59)
    k(f"fz_nwf:\ns_cmp_eq_u32 s35, 28\ns_cbranch_scc0 fz_nwg\nbuffer_load_dword v238, v237, s[{FLS}:{FLS+3}], 0 offen sc1\nfz_nwg:")
    k("s_barrier")
    k("\n".join(front(mfmas(FY), reads(FX, 0))))
    k("s_waitcnt lgkmcnt(0)")
    k("\n".join(front(mfmas(FX), reads(FY, 1) + adv + ["s_add_u32 s35, s35, 1"])))
    k(f"s_cmp_lt_u32 s35, {NST}\ns_waitcnt lgkmcnt(0)\ns_cbranch_scc1 fz_cloop")
    k("s_barrier")
    k("\n".join(mfmas(FY)))
    k.stamp(12)
    k.srd(12, 4, FRAG9, add=WS_H)
    g3.wcheck()
    k(f"""
    v_lshlrev_b32 v{VBS}, 16, v{VBS}
    v_lshlrev_b32 v{VBS+2}, 16, v{VBS+2}
    v_mov_b32 v{VBS+1}, v{VBS}
    v_mov_b32 v{VBS+3}, v{VBS+2}
    """)
    T = FX
    for tb in range(2):
        b = VBS + 2 * tb
        for q in range(5):
            nt = 2 if q < 4 else 1
            zr = Z1 + tb * 18 + q * 4
            oo = T + (tb * 5 + q) % 4 * 12
            for t in range(nt):
                a = ACC + ((2 * q + t) * 2 + tb) * 4
                for hh in range(2):
                    z = zr + t * 2 + hh; u = oo + 4 + 2 * ((2 * t + hh) % 4)
                    k(f"""
                    v_pk_add_f32 v[{a+2*hh}:{a+2*hh+1}], v[{a+2*hh}:{a+2*hh+1}], v[{b}:{b+1}]
                    v_lshlrev_b32 v{u}, 16, v{z}
                    v_and_b32 v{u+1}, 0xffff0000, v{z}
                    v_pk_mul_f32 v[{a+2*hh}:{a+2*hh+1}], v[{a+2*hh}:{a+2*hh+1}], v[{u}:{u+1}]
                    v_cvt_pk_bf16_f32 v{oo+t*2+hh}, v{a+2*hh}, v{a+2*hh+1}
                    """)
            if q < 4: k(f"buffer_store_dwordx4 v[{oo}:{oo+3}], v{VO}, s[12:15], s{31+tb} offen offset:{q*1024} sc1")
            else: k(f"s_add_u32 s33, s{31+tb}, 4096\nbuffer_store_dwordx2 v[{oo}:{oo+1}], v{VO+1}, s[12:15], s33 offen sc1")
    g3.wregs()
    k(f"v_mov_b32 v0, 0\nv_mov_b32 v1, s{NON}\ns_waitcnt vmcnt(46)\ns_mov_b64 exec, 1\nbuffer_store_dword v1, v0, s[{FLS}:{FLS+3}], s28 offen sc1\ns_mov_b64 exec, -1")
    k.stamp(13)
    g3.main()
    k("fz_loader:\ns_setprio 0")
    for j in range(16): k(f"v_mov_b32 v{198+j}, 0")
    VD = 220
    def kgen():
        L = k.label("nk")
        k(f"s_cmp_ge_u32 s58, 576\ns_cbranch_scc1 {L}")
        k(f"s_lshl_b32 s59, s56, 13\ns_add_u32 s59, s59, {KTAB}\ns_mov_b32 s54, {fbits(L2E_HI)}\ns_mov_b32 s55, {fbits(I2P_HI)}")
        k("\n".join(kgen_addr(k, o)))
        k("\n".join(kgen_dt()))
        k("s_mov_b32 s53, 0\nfz_kg:")
        k("\n".join(kgen_half()))
        k("s_cmp_eq_u32 s53, 1\ns_cbranch_scc1 fz_kg2")
        k(f"{L}:")
    def issue(n, kstep, sc, chk=False):
        if chk:
            L = k.label("pc"); D = k.label("pd")
            k(f"""
            {L}:
            s_lshr_b32 s33, s40, 10
            s_and_b32 s33, s33, 60
            s_lshr_b64 s[48:49], s[46:47], s33
            s_and_b32 s48, s48, 15
            s_cbranch_scc0 {D}
            s_add_u32 s62, s62, 1
            s_cmp_ge_u32 s62, {SPIN}
            s_cbranch_scc1 {D}
            buffer_load_dword v6, v4, s[{FLS}:{FLS+3}], s30 offen sc1
            s_waitcnt vmcnt(0)
            v_cmp_ne_u32 s[46:47], s{NON}, v6
            s_branch {L}
            {D}:
            """)
        for j in range(n):
            k((f"s_add_u32 m0, s41, {j*1024}\n" if j else "s_mov_b32 m0, s41\n") + f"buffer_load_dwordx4 v{VL_(j)}, s[12:15], s40 offen {sc}lds")
        k(f"s_add_u32 s40, s40, {kstep}\ns_and_b32 s40, s40, {32*kstep - 1}\ns_add_u32 s41, s41, {SLOT}\ns_cmp_ge_u32 s41, {SLOT*NS}\ns_cselect_b32 s41, s44, s41")
    VL_ = lambda j: 112 + j
    def ring(tag, n, kstep, sc):
        k(f"s_mov_b32 s35, 0\nfz_l{tag}:\ns_waitcnt vmcnt({2*n})\ns_barrier")
        issue(n, kstep, sc, tag == "A")
        k(f"s_add_u32 s35, s35, 1\ns_cmp_lt_u32 s35, {NST-3}\ns_cbranch_scc1 fz_l{tag}")
        for r in (2, 1, 0): k(f"s_waitcnt vmcnt({n*r})\ns_barrier")
        if tag == "B": k("s_barrier")
    k(f"s_cmp_lg_u32 s{W}, 4\ns_cbranch_scc1 fz_ldB")
    k.srd(12, 4, FRAG9, add=WS_Z2)
    k(f"s_lshl_b32 s40, s{P}, 12" if o.get('rot') else "s_mov_b32 s40, 0")
    k(f"s_mul_i32 s31, s{C}, {9*65536}\nv_lshlrev_b32 v3, 4, v{VL}\nv_add_u32 v3, s31, v3\ns_mov_b32 s44, 0\ns_mov_b32 s41, 0")
    for j in range(18): k(f"v_add_u32 v{VL_(j)}, {(j >> 1)*65536 + (j & 1)*1024}, v3")
    k(f"s_lshl_b32 s30, s{C}, 8\ns_add_u32 s30, s30, {FL_2}\nv_lshlrev_b32 v4, 2, v{VL}\ns_mov_b64 s[46:47], -1\ns_mov_b32 s62, 0")
    issue(18, 2048, "sc1 ", True)
    k.stamp(10)
    for _ in range(2): issue(18, 2048, "sc1 ", True)
    k.stamp(11)
    ring("A", 18, 2048, "sc1 ")
    k("s_branch fz_fin")
    k(f"fz_ldB:\ns_load_dwordx2 s[6:7], s[0:1], {ARG['w_sp']}\ns_waitcnt lgkmcnt(0)")
    k.srd(12, 6, 2048 * 4096)
    k(f"s_cmp_lg_u32 s{W}, 5\ns_cbranch_scc1 fz_kg0")
    VL_ = lambda j: 198 + j
    k(f"""
    v_lshrrev_b32 v3, 3, v{VL}
    v_and_b32 v4, 7, v{VL}
    v_lshrrev_b32 v5, 4, v{VL}
    v_xor_b32 v4, v4, v5
    v_and_b32 v5, 1, v4
    v_lshlrev_b32 v5, 1, v5
    v_bfe_u32 v6, v4, 1, 1
    v_and_b32 v4, 4, v4
    v_or_b32 v4, v4, v5
    v_or_b32 v4, v4, v6
    v_lshlrev_b32 v4, 4, v4
    v_lshl_add_u32 v4, v3, 12, v4
    s_lshl_b32 s31, s{P}, 19
    v_add_u32 v4, s31, v4
    v_xor_b32 v5, 64, v4
    {"s_lshl_b32 s40, s%d, 8" % P if o.get('rot') else "s_mov_b32 s40, 0"}
    s_mov_b32 s44, 18432
    s_mov_b32 s41, 18432
    """)
    for j in range(16): k(f"v_add_u32 v{VL_(j)}, {j*32768}, v{4 + (j & 1)}")
    for _ in range(3): issue(16, 128, "")
    k("fz_kg0:")
    kgen()
    k.stamp(11)
    k(f"s_cmp_lg_u32 s{W}, 5\ns_cbranch_scc1 fz_idle")
    ring("B", 16, 128, "")
    k(f"""
    s_branch fz_ssm
    fz_idle:
    s_mov_b32 s35, 0
    fz_idl:
    s_barrier
    s_add_u32 s35, s35, 1
    s_cmp_lt_u32 s35, 33
    s_cbranch_scc1 fz_idl
    """)
    k("fz_ssm:")
    k.stamp(12)
    k(f"s_cmp_ge_u32 s58, 576\ns_cbranch_scc1 fz_fin\ns_mov_b32 s57, s56\ns_setprio {o.get('prio3', 3)}")
    conv_pre(k, o)
    k(f"s_lshl_b32 s33, s56, 13\ns_add_u32 s33, s33, {KTAB - 4608}\ns_sub_u32 s33, s59, s33")
    for r in list(range(KG['WAD'], KG['WAD'] + 16)) + list(range(KG['RW'], KG['RW'] + 4)) + list(range(KG['RS'], KG['RS'] + 10)):
        k(f"v_add_u32 v{r}, s33, v{r}")
    k("s_mov_b32 s53, 1\ns_branch fz_kg\nfz_kg2:")
    k.stamp(8)
    conv(k, o)

def gen_fused(prof=False, **o):
    OPT.update(o)
    k = Kern(NAME + "_kernel", 256, 512, 163840)
    k.prof = prof; k.allreal = bool(o.get('real', 0))
    k.stamp(0, True); k.stamp(1)
    phase0(k, o); phase2(k, o)
    k("fz_fin:")
    if prof:
        k("s_waitcnt vmcnt(0)"); k.stamp(15, True)
        k.prof_dump(0, 4, W, 16)
    k("fz_end:")
    return k

def emit_single(k, path):
    from gen import header
    s = header() + f"; @launch grid=({k.grid},1,1) block=({k.block},1,1) lds={k.lds}\n"
    s += '.amdgcn_target "amdgcn-amd-amdhsa--gfx950"\n.text\n' + k.text() + '.section .rodata,"a"\n' + k.desc()
    open(path, "w").write(s)

if __name__ == "__main__":
    opts = {a.split("=")[0]: int(a.split("=")[1]) for a in sys.argv[2:] if "=" in a}
    emit_single(gen_fused(prof="prof" in sys.argv, **opts), sys.argv[1])
```

```python
import sys; sys.path.insert(0, "dev")
from common6 import *
SLOT = 34816; NS = 4
XTL = 104448; RPL = 114688
Z1 = 160
WOFF = 16384


ROWA = 139264
COLP = ROWA + 1024
WPRIV = COLP + 2 * 768
XTS = WPRIV + 1024
assert XTS + 4 * 5120 <= 163840
KTAB = 104448
WS_RS = WS_ST + 0x90000
def phase0(k, o):
    k(f"""
    s_cmp_ge_u32 s2, 256
    s_cbranch_scc1 fz_end
    s_load_dwordx2 s[4:5], s[0:1], {ARG['ws']}
    s_load_dwordx2 s[6:7], s[0:1], {ARG['x']}
    s_load_dwordx2 s[8:9], s[0:1], {ARG['w_in']}
    v_lshrrev_b32 v1, 6, v0
    v_and_b32 v{VL}, 63, v0
    v_readfirstlane_b32 s{W}, v1
    s_and_b32 s30, s2, 7
    s_lshr_b32 s31, s2, 3
    s_and_b32 s{P}, s30, 1
    s_lshl_b32 s{P}, s{P}, 3
    s_lshr_b32 s32, s31, 2
    s_add_u32 s{P}, s{P}, s32
    s_lshr_b32 s{C}, s30, 1
    s_lshl_b32 s{C}, s{C}, 2
    s_and_b32 s32, s31, 3
    s_add_u32 s{C}, s{C}, s32
    s_cmp_lt_u32 s{W}, 4
    s_cbranch_scc1 fz_c1
    s_cmp_lt_u32 s{W}, 6
    s_cbranch_scc1 fz_l1W
    """)
    p1_loader(k, o, "X")
    k("fz_l1W:")
    p1_loader(k, o, "W")
    k("fz_c1:")
    p1_consumer(k, o)

def get_nonce(k):
    k(f"s_add_u32 s10, s4, {WS_FL}\ns_addc_u32 s11, s5, 0\ns_load_dword s{NON}, s[10:11], 0")
    k.srd(FLS, 4, FL_BYTES, add=WS_FL)
def fin_nonce(k):
    k(f"s_waitcnt lgkmcnt(0)\ns_mul_i32 s{NON}, s{NON}, 0x9E3779B1\ns_add_u32 s{NON}, s{NON}, 0x7F4A7C15")

def p1_addr(k, VX0b, VX1b, VWb, tq_s):
    k(f"""
    v_and_b32 v3, 15, v{VL}
    v_lshrrev_b32 v4, 4, v{VL}
    v_lshrrev_b32 v5, 1, v3
    v_xor_b32 v5, v5, v4
    v_lshlrev_b32 v5, 4, v5
    v_lshl_add_u32 v5, v3, 7, v5
    s_lshl_b32 s32, s{tq_s}, 12
    v_add_u32 v{VX0b}, s32, v5
    v_xor_b32 v{VX1b}, 64, v{VX0b}
    v_bfe_u32 v5, v{VL}, 2, 2
    v_and_b32 v6, 1, v4
    v_lshl_add_u32 v5, v6, 2, v5
    v_lshrrev_b32 v6, 1, v4
    v_lshl_add_u32 v5, v6, 4, v5
    v_mul_u32_u24 v5, 288, v5
    v_and_b32 v6, 3, v{VL}
    v_lshl_add_u32 v5, v6, 3, v5
    v_add_u32 v{VWb}, {WOFF}, v5
    """)

def p1_loader(k, o, typ):
    VD = 200; n = 8 if typ == "X" else 9
    k(f"s_sub_u32 s57, s{W}, 4      ; lw\ns_setprio {o.get('prioL', 3)}")
    if typ == "X":
        k(f"""
        v_lshrrev_b32 v3, 3, v{VL}
        v_and_b32 v4, 7, v{VL}
        v_lshrrev_b32 v5, 4, v{VL}
        v_xor_b32 v4, v4, v5
        v_mul_u32_u24 v3, 1152, v3
        v_lshl_add_u32 v3, v4, 4, v3
        v_xor_b32 v4, 64, v3
        s_sub_u32 s31, s{W}, 6
        s_lshl_b32 s30, s{P}, 7
        s_lshl_b32 s32, s31, 6
        s_add_u32 s30, s30, s32
        s_mul_i32 s30, s30, 1152
        s_lshl_b32 s44, s31, 13
        """)
        k("s_mov_b32 s40, 0\ns_waitcnt lgkmcnt(0)")
        k.srd(12, 6, XBYTES)
        for j in range(8):
            k(f"v_add_u32 v{VD+j}, s30, v{3 + (j & 1)}\ns_add_u32 s30, s30, {8*1152}\ns_add_u32 m0, s44, {j*1024}\nbuffer_load_dwordx4 v{VD+j}, s[12:15], s40 offen lds")
        kstep, k0 = 128, 0
    else:
        k(f"s_mul_i32 s32, s{C}, 288\ns_mov_b32 s33, 3641\ns_mul_i32 s31, s57, {9*64}\ns_mul_i32 s44, s57, {9*1024}\ns_add_u32 s44, s44, {WOFF}\nv_add_u32 v2, s31, v{VL}")
        k("s_mov_b32 s40, 4608\ns_waitcnt lgkmcnt(0)")
        k.srd(12, 8, 576 * 9216)
        for j in range(9):
            k(f"""
            v_add_u32 v3, {64*j}, v2
            v_mul_lo_u32 v4, v3, s33
            v_lshrrev_b32 v4, 16, v4
            v_mul_u32_u24 v5, 18, v4
            v_sub_u32 v5, v3, v5
            v_and_b32 v6, 0x33, v4
            v_bfe_u32 v7, v4, 2, 1
            v_lshl_or_b32 v6, v7, 3, v6
            v_bfe_u32 v7, v4, 3, 1
            v_lshl_or_b32 v6, v7, 2, v6
            v_mul_u32_u24 v6, 9216, v6
            v_lshl_add_u32 v6, v5, 4, v6
            v_add_u32 v{VD+j}, s32, v6
            s_add_u32 m0, s44, {j*1024}
            buffer_load_dwordx4 v{VD+j}, s[12:15], s40 offen lds
            """)
        kstep = 64 * 9216
    k("s_mov_b32 s41, s44\ns_mov_b32 s43, 0")
    tch = 1 if (typ == "X" and o.get('touch', 1) == 1) else 0
    TV = 209
    def issue(touch=True):
        L = []
        for j in range(8 if typ == 'X' else 9):
            L.append((f"s_add_u32 m0, s41, {j*1024}\n" if j else "s_mov_b32 m0, s41\n") + f"buffer_load_dwordx4 v{VD+j}, s[12:15], s40 offen {'sc1 ' if typ == 'X' else ''}lds")
        if tch and touch: L.append(f"s_cmp_lt_u32 s49, s51\ns_cselect_b32 s52, s49, {OOB}\nbuffer_load_dword v254, v{TV}, s[28:31], s52 offen\ns_add_u32 s49, s49, s50")
        L.append(f"s_add_u32 s40, s40, {kstep}\ns_add_u32 s41, s41, {SLOT}\ns_cmp_ge_u32 s41, {SLOT*NS}\ns_cselect_b32 s41, s44, s41")
        L.append(f"s_add_u32 s43, s43, 1\ns_cmp_eq_u32 s43, 9\ns_cselect_b32 s40, 0, s40")
        return L
    k("\n".join(issue(False)[n:]))
    for _ in range(2): k("\n".join(issue(False)))
    if tch:
        k(f"""
        s_load_dwordx2 s[46:47], s[0:1], {ARG['w_sp']}
        s_load_dwordx2 s[54:55], s[0:1], {ARG['w_out']}
        v_mov_b32 v6, {OOB}
        v_and_b32 v3, 7, v{VL}
        v_lshrrev_b32 v4, 3, v{VL}
        v_lshlrev_b32 v3, 12, v3
        v_lshl_add_u32 v3, v4, 7, v3
        s_lshl_b32 s31, s2, 15
        v_add_u32 v3, s31, v3
        s_lshr_b32 s33, s2, {4 if o.get('rot') else 16}
        s_lshl_b32 s33, s33, 8
        v_lshl_add_u32 v4, v4, 7, s33
        v_and_b32 v4, 4095, v4
        v_and_b32 v3, 7, v{VL}
        v_lshl_add_u32 v3, v3, 12, v4
        v_add_u32 v3, s31, v3
        v_mov_b32 v{TV}, v3
        s_mov_b32 s49, 1000
        s_mov_b32 s50, 1
        s_mov_b32 s51, 1
        s_waitcnt lgkmcnt(0)
        """)
        k.srd(28, 46, 2048 * 4096)
        k(f"s_cmp_eq_u32 s{W}, 6\ns_cbranch_scc1 fz_t6")
        k.srd(28, 8, 576 * 9216)
        k(f"""
        s_mul_i32 s33, s2, {3*9216}
        s_cmp_lt_u32 s2, 192
        s_cselect_b32 s33, s33, {OOB}
        v_lshlrev_b32 v3, 7, v{VL}
        v_add_u32 v3, s33, v3
        v_cmp_gt_u32 vcc, 36, v{VL}
        v_cndmask_b32 v{TV}, v6, v3, vcc
        s_mov_b32 s49, {-9216 * o.get('tz1', 1)}
        s_mov_b32 s50, 9216
        s_mov_b32 s51, {3*9216}
        fz_t6:
        """)
    n0 = n; n = n + tch
    get_nonce(k)
    VX0, VX1, VW, VX0b, VX1b, VWb = 210, 211, 212, 213, 214, 215
    p1_addr(k, VX0b, VX1b, VWb, 57)
    CA = 44
    WF = 56
    ON = 108
    T = 112
    for i in range(4): k(f"v_mov_b32 v{ON+i}, 0x3f803f80")
    for i in range(12): k(f"v_mov_b32 v{CA+i}, 0")
    k(f"s_lshl_b32 s36, s57, 5\nv_add_u32 v{VWb}, s36, v{VWb}\nv_mov_b32 v{VW}, v{VWb}\ns_mov_b32 s34, 0\ns_mov_b32 s35, 0")
    k.srd(24, 4, 2048 * 16, add=WS_RS)
    k(f"s_lshl_b32 s36, s{P}, 7\ns_and_b32 s37, s57, 1\ns_lshl_b32 s37, s37, 6\ns_add_u32 s36, s36, s37\ns_lshl_b32 s36, s36, 4\nv_lshlrev_b32 v{T+8}, 4, v{VL}")
    fin_nonce(k)
    adv = f"s_add_u32 s34, s34, {SLOT}\ns_cmp_ge_u32 s34, {SLOT*NS}\ns_cselect_b32 s34, 0, s34\nv_add_u32 v{VW}, s34, v{VWb}"
    nt = 3 if typ == "W" else 2
    def stage(z2, do_issue, wait):
        k(f"s_waitcnt vmcnt({wait})\ns_barrier")
        rd_ = []; mf = []
        if z2:
            for hf in range(2):
                for t in range(nt):
                    f = WF + (hf * 3 + t) * 4
                    for rd in range(2): rd_.append(f"ds_read_b64_tr_b16 v[{f+2*rd}:{f+2*rd+1}], v{VW} offset:{hf*32*288 + rd*8*288 + t*128}")
                    mf.append(f"v_mfma_f32_16x16x32_bf16 v[{CA+4*t}:{CA+4*t+3}], v[{ON}:{ON+3}], v[{f}:{f+3}], v[{CA+4*t}:{CA+4*t+3}]")
        dm = issue() if do_issue else []
        if z2:
            k("\n".join(rd_ + dm[:2]))
            k("s_waitcnt lgkmcnt(0)")
            k("\n".join(front(dm[2:], mf)))
            k(adv)
        else: k("\n".join(dm))
        k("s_add_u32 s35, s35, 1")
    def gran_check(vd, va, so, full):
        L = k.label("rp"); D = k.label("rd")
        k(f"""
        s_mov_b32 s62, 0
        {"" if full else xm(0xffffffff)}
        {L}:
        v_cmp_ne_u32 vcc, s{NON}, v{vd+1}
        v_cmp_ne_u32 s[60:61], s{NON}, v{vd+3}
        s_or_b64 vcc, vcc, s[60:61]
        s_cbranch_vccz {D}
        s_add_u32 s62, s62, 1
        s_cmp_ge_u32 s62, {SPIN}
        s_cbranch_scc1 {D}
        buffer_load_dwordx4 v[{vd}:{vd+3}], v{va}, s[24:27], s{so} offen sc1
        s_waitcnt vmcnt(0)
        s_branch {L}
        {D}:
        """)
    k(f"fz_l1{typ}a:")
    stage(True, True, 2 * n0)
    if typ == "X":
        L = k.label("rg")
        k(f"s_cmp_eq_u32 s35, 5\ns_cbranch_scc0 {L}\nbuffer_load_dwordx4 v[{T+4}:{T+7}], v{T+8}, s[24:27], s36 offen sc1\n{L}:")
    k(f"s_cmp_lt_u32 s35, 6\ns_cbranch_scc1 fz_l1{typ}a")
    if typ == "X":
        k(f"s_waitcnt vmcnt({n})")
        gran_check(T + 4, T + 8, 36, True)
        k.srd(12, 4, XBYTES, add=WS_XN)
        k(f"""
        v_lshlrev_b32 v{T}, 2, v{VL}
        s_sub_u32 s33, s{W}, 6
        s_lshl_b32 s33, s33, 8
        s_add_u32 s33, s33, {ROWA}
        v_add_u32 v{T}, s33, v{T}
        ds_write_b32 v{T}, v{T+4}
        ds_write_b32 v{T}, v{T+6} offset:512
        """)
    k(f"fz_l1{typ}a2:")
    stage(True, True, 2 * n0)
    k(f"s_cmp_lt_u32 s35, 9\ns_cbranch_scc1 fz_l1{typ}a2")
    k(f"s_lshl_b32 s33, s57, 6\ns_add_u32 s33, s33, {COLP}\nv_lshlrev_b32 v{T}, 2, v{VL}\nv_add_u32 v{T}, s33, v{T}\n{xm(0xffff)}")
    for t in range(nt): k(f"ds_write_b32 v{T}, v{CA+4*t} offset:{t*256}")
    k("s_mov_b64 exec, -1\ns_waitcnt lgkmcnt(0)\ns_barrier")
    k.stamp(3)
    k("\n".join(issue()))
    if tch:
        L = k.label("t7")
        k(f"s_cmp_eq_u32 s{W}, 6\ns_cbranch_scc1 {L}")
        k.srd(28, 54, WOBYTES)
        k(f"s_mul_i32 s33, s2, {81*128}\nv_lshlrev_b32 v3, 7, v{VL}\nv_add_u32 v3, s33, v3\nv_mov_b32 v6, {OOB}\nv_cmp_gt_u32 vcc, 27, v{VL}\nv_cndmask_b32 v{TV}, v6, v3, vcc\ns_mov_b32 s49, 0\ns_mov_b32 s50, {27*128}\ns_mov_b32 s51, {81*128}\n{L}:")
    ex = 0
    if typ == "X":
        k.srd(24, 4, XBYTES, add=WS_XT)
        k(f"""
        v_bfe_u32 v{T}, v{VL}, 2, 2
        v_mul_u32_u24 v{T}, 1216, v{T}
        v_and_b32 v{T+1}, 3, v{VL}
        v_lshl_add_u32 v{T}, v{T+1}, 3, v{T}
        v_lshrrev_b32 v{T+1}, 4, v{VL}
        v_lshl_add_u32 v{T}, v{T+1}, 5, v{T}
        s_sub_u32 s37, s{W}, 6
        s_lshl_b32 s33, s37, 9
        s_add_u32 s33, s33, {XTS}
        v_add_u32 v{T}, s33, v{T}
        s_mul_i32 s33, s2, 9216
        s_lshl_b32 s36, s37, 12
        s_add_u32 s33, s33, s36
        s_lshl_b32 s36, s2, 1
        s_add_u32 s36, s36, s37
        s_lshl_b32 s36, s36, 2
        s_add_u32 s36, s36, {FL_T}
        """)
        for ps in range(5):
            for rd in range(2): k(f"ds_read_b64_tr_b16 v[{124+4*ps+2*rd}:{124+4*ps+2*rd+1}], v{T} offset:{rd*4*1216 + ps*128}")
        k("s_waitcnt lgkmcnt(0)")
        for ps in range(5): k(f"buffer_store_dwordx4 v[{124+4*ps}:{124+4*ps+3}], v{T+8}, s[24:27], s33 offen sc1\ns_add_u32 s33, s33, 1024")
        ex = 5
        nrow = o.get('trows', 4)
        k.srd(24, 46, 2048 * 4096)
        k(f"s_lshl_b32 s33, s2, 1\ns_add_u32 s33, s33, s37\ns_lshl_b32 s33, s33, 14\nv_lshlrev_b32 v{T+2}, 7, v{VL}")
        for i in range(2): k(f"buffer_load_dword v254, v{T+2}, s[24:27], s33 offen\ns_add_u32 s33, s33, 8192")
        ex = 7
    elif o.get('prew', 0):
        k.srd(24, 4, FRAG9, add=WS_Z2)
        k(f"s_mul_i32 s33, s{C}, {9*64}\ns_lshl_b32 s36, s{P}, 2\ns_add_u32 s33, s33, s36\ns_lshl_b32 s36, s57, 1\ns_add_u32 s33, s33, s36\ns_lshl_b32 s33, s33, 10")
        for i in range(9):
            k(f"buffer_store_dwordx4 v[{ON}:{ON+3}], v{T+8}, s[24:27], s33 offen sc1\nbuffer_store_dwordx4 v[{ON}:{ON+3}], v{T+8}, s[24:27], s33 offen offset:1024 sc1\ns_add_u32 s33, s33, 65536")
        ex = 18
    stage(False, False, 3 * n + tch + ex)
    for _ in range(3): stage(False, True, 2 * n + tch + ex)
    stage(False, True, 2 * n + tch)
    if typ == "X":
        k(f"v_mov_b32 v{T}, 0\nv_mov_b32 v{T+1}, s{NON}\ns_mov_b64 exec, 1\nbuffer_store_dword v{T+1}, v{T}, s[{FLS}:{FLS+3}], s36 offen sc1\ns_mov_b64 exec, -1")
    stage(False, True, 2 * n + tch)
    k(f"""
    s_sub_u32 s30, 7, s{W}
    s_lshl_b32 s58, s2, 1
    s_add_u32 s58, s58, s30
    s_add_u32 s59, s2, 512
    s_cmp_eq_u32 s30, 2
    s_cselect_b32 s58, s59, s58
    s_cmp_eq_u32 s30, 3
    s_cselect_b32 s58, 1000, s58
    s_mov_b32 s56, s30
    """)
    kgen_setup(k, o)
    for r in (2, 1, 0): stage(False, False, r * n + tch + 14)
    k("s_waitcnt vmcnt(0)\ns_barrier")
    k.stamp(6)
    k("s_branch fz_loader")

def p1_consumer(k, o):
    A2, A1 = 0, 72
    FX, FY = 144, 188
    VX0, VX1, VW, VX0b, VX1b, VWb = 232, 233, 234, 235, 236, 237
    NMR, RR = 238, 240
    VC1, VONE = 242, 244
    V16 = 246; VPG, VPR = 247, 248
    k(f"s_load_dwordx2 s[24:25], s[0:1], {ARG['w_sp']}\ns_load_dwordx2 s[26:27], s[0:1], {ARG['w_out']}\ns_waitcnt lgkmcnt(0)")
    k.srd(12, 6, XBYTES)
    k(f"""
    s_lshl_b32 s30, s2, 2
    s_add_u32 s30, s30, s{W}
    s_mul_i32 s31, s30, 2304
    v_lshlrev_b32 v2, 4, v{VL}
    v_mov_b32 v3, {OOB}
    v_cmp_gt_u32 vcc, 36, v{VL}
    v_cndmask_b32 v2, v3, v2, vcc
    buffer_load_dwordx4 v[8:11], v2, s[12:15], s31 offen
    buffer_load_dwordx4 v[12:15], v2, s[12:15], s31 offen offset:576
    buffer_load_dwordx4 v[16:19], v2, s[12:15], s31 offen offset:1152
    buffer_load_dwordx4 v[20:23], v2, s[12:15], s31 offen offset:1728
    """)
    get_nonce(k)
    p1_addr(k, VX0b, VX1b, VWb, W)
    k(f"""
    v_mov_b32 v{VX0}, v{VX0b}
    v_mov_b32 v{VX1}, v{VX1b}
    v_mov_b32 v{VW}, v{VWb}
    s_mov_b32 s34, 0
    s_mov_b32 s56, {fbits(C2)}
    s_mov_b32 s57, {fbits(C2)}
    v_mov_b32 v{VC1}, {fbits(C1)}
    v_mov_b32 v{VC1+1}, {fbits(C1)}
    v_mov_b32 v{VONE}, 1.0
    v_mov_b32 v{VONE+1}, 1.0
    v_lshlrev_b32 v{V16}, 4, v{VL}
    s_lshl_b32 s33, s{W}, 8
    s_add_u32 s33, s33, {WPRIV}
    v_lshrrev_b32 v3, 4, v{VL}
    v_lshlrev_b32 v3, 4, v3
    v_add_u32 v{VPG}, s33, v3
    v_and_b32 v3, 31, v{VL}
    v_lshlrev_b32 v3, 2, v3
    v_add_u32 v{VPR}, s33, v3
    s_setprio {o.get('prio1', 2)}
    """)
    fin_nonce(k)
    if o.get('touch', 1):
        k(f"""
        v_mul_u32_u24 v3, 43, v{VL}
        v_lshrrev_b32 v3, 8, v3
        v_mul_u32_u24 v4, 6, v3
        v_sub_u32 v4, v{VL}, v4
        s_lshl_b32 s31, s30, 1
        v_add_u32 v3, s31, v3
        v_mul_u32_u24 v3, 1152, v3
        v_lshl_add_u32 v3, v4, 7, v3
        s_mul_i32 s31, s30, 14
        v_add_u32 v7, s31, v{VL}
        v_min_u32 v7, 13823, v7
        s_mov_b32 s32, 29128
        v_mul_lo_u32 v4, v7, s32
        v_lshrrev_b32 v4, 20, v4
        v_mul_u32_u24 v5, 36, v4
        v_sub_u32 v5, v7, v5
        v_mul_u32_u24 v4, 9216, v4
        v_lshl_add_u32 v4, v5, 7, v4
        v_add_u32 v4, {192*9216 + 4608}, v4
        {xm(0xfff)}
        global_load_dword v254, v3, s[6:7] offset:384
        {xm((1 << 14) - 1)}
        global_load_dword v254, v4, s[8:9]
        s_mov_b64 exec, -1
        """)

    X = 32; S = 70
    k(f"v_cmp_gt_u32 vcc, 36, v{VL}\ns_waitcnt vmcnt({2 if o.get('touch', 1) else 0})")
    for i in range(16): k(f"v_lshlrev_b32 v{X+2*i}, 16, v{8+i}\nv_and_b32 v{X+2*i+1}, 0xffff0000, v{8+i}")
    for r in range(2):
        b = X + 16 * r; s_ = S + 8 * r
        k(f"v_pk_add_f32 v[{s_}:{s_+1}], v[{b}:{b+1}], v[{b+2}:{b+3}]")
    for i in range(2, 8):
        for r in range(2):
            b = X + 16 * r; s_ = S + 8 * r
            k(f"v_pk_add_f32 v[{s_}:{s_+1}], v[{s_}:{s_+1}], v[{b+2*i}:{b+2*i+1}]")
    for r in range(2): k(f"v_add_f32 v{S+8*r}, v{S+8*r}, v{S+8*r+1}")
    dpp_sum16(k, [S, S + 8])
    for r in range(2): xsum_rows(k, S + 8 * r, S + 8 * r + 1)
    for r in range(2):
        s_ = S + 8 * r
        k(f"v_mul_f32 v{s_}, {1.0/576!r}, v{s_}\nv_cndmask_b32 v{s_+6}, 0, v{s_}, vcc\nv_mov_b32 v{s_+7}, v{s_+6}")
    for i in range(8):
        for r in range(2):
            b = X + 16 * r; s_ = S + 8 * r
            k(f"v_pk_add_f32 v[{s_+4}:{s_+5}], v[{b+2*i}:{b+2*i+1}], v[{s_+6}:{s_+7}] neg_lo:[0,1] neg_hi:[0,1]")
            if i == 0: k(f"v_pk_mul_f32 v[{s_+2}:{s_+3}], v[{s_+4}:{s_+5}], v[{s_+4}:{s_+5}]")
            else: k(f"v_pk_fma_f32 v[{s_+2}:{s_+3}], v[{s_+4}:{s_+5}], v[{s_+4}:{s_+5}], v[{s_+2}:{s_+3}]")
    for r in range(2): k(f"v_add_f32 v{S+8*r+2}, v{S+8*r+2}, v{S+8*r+3}")
    dpp_sum16(k, [S + 2, S + 10])
    for r in range(2): xsum_rows(k, S + 8 * r + 2, S + 8 * r + 3)
    k.srd(36, 4, 2048 * 16, add=WS_RS)
    for r in range(2):
        s_ = S + 8 * r
        k(f"v_mul_f32 v{s_+2}, {1.0/576!r}, v{s_+2}")
        ln_finish(k, s_, s_ + 2)
        k(f"v_mul_f32 v{s_}, -v{s_}, v{s_+2}\nv_mov_b32 v{s_+1}, s{NON}\nv_mov_b32 v{s_+3}, s{NON}")
    for i in range(8):
        for r in range(2):
            a = X + 16 * r + 2 * i; s_ = S + 8 * r
            k(f"v_pk_fma_f32 v[{a}:{a+1}], v[{a}:{a+1}], v[{s_+2}:{s_+3}], v[{s_}:{s_+1}] op_sel_hi:[1,0,0]")
    for i in range(16): k(f"v_cvt_pk_bf16_f32 v{8+i}, v{X+2*i}, v{X+2*i+1}")
    k(f"s_mul_i32 s31, s{W}, {2*1216}\ns_add_u32 s31, s31, {XTS}\nv_lshlrev_b32 v3, 4, v{VL}\nv_add_u32 v3, s31, v3\n{xm((1 << 36) - 1)}")
    for i in range(4): k(f"ds_write_b128 v3, v[{8+4*i}:{11+4*i}] offset:{(i >> 1)*1216 + (i & 1)*576}")
    k("s_mov_b64 exec, -1")
    k.srd(40, 4, XBYTES, add=WS_XN)
    k(f"s_mul_i32 s31, s30, 2304")
    for i in range(4): k(f"buffer_store_dwordx4 v[{8+4*i}:{11+4*i}], v2, s[40:43], s31 offen offset:{576*i} sc1")
    def rowgran():
        k(f"""
        s_lshl_b32 s31, s30, 5
        v_mov_b32 v249, 0
        s_waitcnt vmcnt(0)
        s_mov_b64 exec, 1
        buffer_store_dwordx4 v[112:115], v249, s[36:39], s31 offen sc1
        buffer_store_dwordx4 v[116:119], v249, s[36:39], s31 offen offset:16 sc1
        s_mov_b64 exec, -1
        """)
    for i in range(4): k(f"v_mov_b32 v{112+i}, v{S+i}\nv_mov_b32 v{116+i}, v{S+8+i}")
    k("s_waitcnt lgkmcnt(0)")
    def reads(F, half):
        vx = VX0 if half == 0 else VX1
        r = [f"ds_read_b128 v[{F+4*tb}:{F+4*tb+3}], v{vx} offset:{tb*2048}" for tb in range(2)]
        if o.get('nord1') == 1: return r
        if o.get('nord1') == 2: return [f"ds_read_b128 v[{F+8+4*i}:{F+8+4*i+3}], v{V16} offset:{i*1024}" for i in range(9)] + r
        for i in range(9):
            for rd in range(2):
                b = F + 8 + 4 * i + 2 * rd
                r.append(f"ds_read_b64_tr_b16 v[{b}:{b+1}], v{VW} offset:{half*32*288 + rd*8*288 + i*32}")
        return r
    def mfmas(F, z2, first=False):
        out = []; ACC = A2 if z2 else A1
        for i in range(9):
            for tb in range(2):
                a = ACC + (i * 2 + tb) * 4
                wf = f"v[{F+8+4*i}:{F+8+4*i+3}]"; xf = f"v[{F+4*tb}:{F+4*tb+3}]"
                A, B = (xf, wf) if z2 else (wf, xf)
                out.append(f"v_mfma_f32_16x16x32_bf16 v[{a}:{a+3}], {A}, {B}, {'0' if first else 'v[%d:%d]' % (a, a+3)}")
        return out
    adv = [f"s_add_u32 s34, s34, {SLOT}\ns_cmp_ge_u32 s34, {SLOT*NS}\ns_cselect_b32 s34, 0, s34",
           f"v_add_u32 v{VX0}, s34, v{VX0b}\nv_add_u32 v{VX1}, s34, v{VX1b}\nv_add_u32 v{VW}, s34, v{VWb}"]
    def gemm(z2):
        name = f"fz_g1{'a' if z2 else 'b'}"
        k("s_barrier")
        k.stamp(2 if z2 else 5)
        k("\n".join(reads(FX, 0)))
        k("s_waitcnt lgkmcnt(0)")
        k("\n".join(front2(mfmas(FX, z2, True), reads(FY, 1) + adv, o.get('per', 2))))
        k(f"s_mov_b32 s35, 1\ns_waitcnt lgkmcnt(0)\n{name}:\ns_barrier")
        k("\n".join(front2(mfmas(FY, z2), reads(FX, 0), o.get('per', 2))))
        k("s_waitcnt lgkmcnt(0)")
        k("\n".join(front2(mfmas(FX, z2), reads(FY, 1) + adv + ["s_add_u32 s35, s35, 1"], o.get('per', 2))))
        if z2:
            k("s_cmp_eq_u32 s35, 2\ns_cbranch_scc0 fz_nrg"); rowgran(); k("fz_nrg:")
        k(f"s_cmp_lt_u32 s35, 9\ns_waitcnt lgkmcnt(0)\ns_cbranch_scc1 {name}")
        k("\n".join(mfmas(FY, z2)))
    gemm(True)
    k.stamp(3)
    SU, SQ = FX, FX + 8
    CP = FX + 16
    T = 196
    PS, PQ = 212, 220
    k(f"""
    v_and_b32 v{T}, 15, v{VL}
    v_lshlrev_b32 v{T}, 2, v{T}
    v_add_u32 v{T+1}, {COLP}, v{T}
    s_lshl_b32 s33, s{W}, 7
    s_add_u32 s33, s33, {ROWA}
    v_add_u32 v{T}, s33, v{T}
    v_lshrrev_b32 v{T+2}, 4, v{VL}
    v_lshlrev_b32 v{T+2}, 4, v{T+2}
    v_add_u32 v{T+2}, s33, v{T+2}
    s_barrier
    ds_read_b128 v[{SU}:{SU+3}], v{T+2}
    ds_read_b128 v[{SU+4}:{SU+7}], v{T+2} offset:64
    ds_read_b128 v[{SQ}:{SQ+3}], v{T+2} offset:512
    ds_read_b128 v[{SQ+4}:{SQ+7}], v{T+2} offset:576
    """)
    for i in range(9): k(f"ds_read_b32 v{CP+4*i}, v{T+1} offset:{i*64}")
    k.srd(44, 26, WOBYTES)
    k("s_waitcnt lgkmcnt(0)")
    for i in range(9):
        pairs = [A2 + (i * 2) * 4, A2 + (i * 2) * 4 + 2, A2 + (i * 2 + 1) * 4, A2 + (i * 2 + 1) * 4 + 2]
        cs = CP + 4 * i
        for n, a in enumerate(pairs): k(f"v_pk_mul_f32 v[{T+2*n}:{T+2*n+1}], v[{SU+2*n}:{SU+2*n+1}], v[{cs}:{cs+1}] op_sel_hi:[1,0]")
        for n, a in enumerate(pairs): k(f"v_pk_fma_f32 v[{a}:{a+1}], v[{a}:{a+1}], v[{SQ+2*n}:{SQ+2*n+1}], v[{T+2*n}:{T+2*n+1}]")
        gelu_group(k, pairs, T, 56, VC1, VONE)
        for n, a in enumerate(pairs):
            if i == 0: k(f"v_pk_mul_f32 v[{PQ+2*n}:{PQ+2*n+1}], v[{a}:{a+1}], v[{a}:{a+1}]\nv_mov_b32 v{PS+2*n}, v{a}\nv_mov_b32 v{PS+2*n+1}, v{a+1}")
            else: k(f"v_pk_fma_f32 v[{PQ+2*n}:{PQ+2*n+1}], v[{a}:{a+1}], v[{a}:{a+1}], v[{PQ+2*n}:{PQ+2*n+1}]\nv_pk_add_f32 v[{PS+2*n}:{PS+2*n+1}], v[{PS+2*n}:{PS+2*n+1}], v[{a}:{a+1}]")
    dpp_sum16(k, list(range(PS, PS + 16)))
    k.srd(36, 4, 16 * 16 * 2048, add=WS_ST)
    k(f"""
    {xm(0x0001000100010001)}
    ds_write_b128 v{VPG}, v[{PS}:{PS+3}]
    ds_write_b128 v{VPG}, v[{PS+4}:{PS+7}] offset:64
    ds_write_b128 v{VPG}, v[{PQ}:{PQ+3}] offset:128
    ds_write_b128 v{VPG}, v[{PQ+4}:{PQ+7}] offset:192
    s_mov_b64 exec, -1
    ds_read_b32 v{T+4}, v{VPR}
    ds_read_b32 v{T+6}, v{VPR} offset:128
    v_mov_b32 v{T+5}, s{NON}
    v_mov_b32 v{T+7}, s{NON}
    s_lshl_b32 s33, s{P}, 4
    s_add_u32 s33, s33, s{C}
    s_lshl_b32 s33, s33, 11
    s_lshl_b32 s53, s{W}, 9
    s_add_u32 s33, s33, s53
    v_and_b32 v{T+3}, 31, v{VL}
    v_lshlrev_b32 v{T+3}, 4, v{T+3}
    s_waitcnt lgkmcnt(0)
    {xm(0xffffffff)}
    buffer_store_dwordx4 v[{T+4}:{T+7}], v{T+3}, s[36:39], s33 offen sc1
    s_mov_b64 exec, -1
    """)
    k.stamp(4)
    gemm(False)
    k.stamp(6)
    Q = FX
    T = 196
    k(f"""
    v_and_b32 v249, 31, v{VL}
    v_lshlrev_b32 v249, 4, v249
    v_lshrrev_b32 v250, 5, v{VL}
    v_lshl_add_u32 v249, v250, 14, v249
    s_lshl_b32 s52, s{P}, 15
    s_lshl_b32 s53, s{W}, 9
    s_add_u32 s52, s52, s53
    s_mov_b32 s62, 0
    """)
    def sweep():
        for c2 in range(8): k(f"s_add_u32 s53, s52, {c2*2048}\nbuffer_load_dwordx4 v[{Q+4*c2}:{Q+3+4*c2}], v249, s[36:39], s53 offen sc1")
    sweep()
    k(f"s_barrier\nfz_sp:\ns_waitcnt vmcnt(0)\nv_xor_b32 v{T+5}, s{NON}, v{Q+1}")
    for c2 in range(8):
        for hh in range(2):
            if c2 == 0 and hh == 0: continue
            k(f"v_xor_b32 v{T+6+(c2+hh)%2}, s{NON}, v{Q+1+4*c2+2*hh}\nv_or_b32 v{T+5}, v{T+5}, v{T+6+(c2+hh)%2}")
    k(f"v_cmp_ne_u32 vcc, 0, v{T+5}\ns_cbranch_vccz fz_spd\ns_add_u32 s62, s62, 1\ns_cmp_ge_u32 s62, {SPIN}\ns_cbranch_scc1 fz_spd")
    sweep()
    k(f"s_branch fz_sp\nfz_spd:")
    k.stamp(7)
    for c2 in range(1, 8): k(f"v_add_f32 v{Q}, v{Q}, v{Q+4*c2}\nv_add_f32 v{Q+2}, v{Q+2}, v{Q+2+4*c2}")
    m, v = Q, Q + 2
    k(f"""
    v_mov_b32 v{Q+1}, v{m}
    v_mov_b32 v{Q+3}, v{v}
    v_permlane32_swap_b32 v{m}, v{Q+1}
    v_permlane32_swap_b32 v{v}, v{Q+3}
    v_add_f32 v{m}, v{m}, v{Q+1}
    v_add_f32 v{v}, v{v}, v{Q+3}
    v_mul_f32 v{m}, {1.0/2304!r}, v{m}
    v_mul_f32 v{v}, {1.0/2304!r}, v{v}
    v_fma_f32 v{v}, -v{m}, v{m}, v{v}
    v_max_f32 v{v}, 0, v{v}
    """)
    ln_finish(k, m, v)
    SU, SQ = 148, 156
    k(f"""
    v_mul_f32 v{m}, -v{m}, v{v}
    ds_write_b32 v{VPR}, v{m}
    ds_write_b32 v{VPR}, v{v} offset:128
    ds_read_b128 v[{SU}:{SU+3}], v{VPG}
    ds_read_b128 v[{SU+4}:{SU+7}], v{VPG} offset:64
    ds_read_b128 v[{SQ}:{SQ+3}], v{VPG} offset:128
    ds_read_b128 v[{SQ+4}:{SQ+7}], v{VPG} offset:192
    """)
    k.srd(36, 4, FRAG9, add=WS_Z2)
    k(f"""
    s_mul_i32 s32, s{C}, {9*64}
    s_lshl_b32 s33, s{P}, 2
    s_add_u32 s33, s33, s{W}         ; kb
    s_add_u32 s32, s32, s33
    s_lshl_b32 s32, s32, 10
    s_lshl_b32 s34, s{C}, 6
    s_add_u32 s34, s34, s33
    s_lshl_b32 s34, s34, 2
    s_add_u32 s34, s34, {FL_2}
    v_lshrrev_b32 v250, 4, v{VL}
    v_lshlrev_b32 v250, 4, v250
    v_add_u32 v250, {COLP + 768}, v250
    s_waitcnt lgkmcnt(0)
    """)
    for i in range(9):
        oo = 164 + (i % 4) * 4
        for sb in range(2):
            a = A2 + (i * 2 + sb) * 4
            for hh in range(2):
                k(f"v_pk_fma_f32 v[{a+2*hh}:{a+2*hh+1}], v[{a+2*hh}:{a+2*hh+1}], v[{SQ+4*sb+2*hh}:{SQ+4*sb+2*hh+1}], v[{SU+4*sb+2*hh}:{SU+4*sb+2*hh+1}]")
            for hh in range(2): k(f"v_cvt_pk_bf16_f32 v{oo+2*sb+hh}, v{a+2*hh}, v{a+2*hh+1}")
        k(f"v_permlane16_swap_b32 v{oo}, v{oo+2}\nv_permlane16_swap_b32 v{oo+1}, v{oo+3}")
        k(f"buffer_store_dwordx4 v[{oo}:{oo+3}], v{V16}, s[36:39], s32 offen sc1\ns_add_u32 s32, s32, 65536")
    k.stamp(8)
    side_issue(k, o)
    for i in range(9):
        pairs = [A1 + (i * 2) * 4, A1 + (i * 2) * 4 + 2, A1 + (i * 2 + 1) * 4, A1 + (i * 2 + 1) * 4 + 2]
        gelu_group(k, pairs, T, 56, VC1, VONE)
        for n, a in enumerate(pairs): k(f"v_cvt_pk_bf16_f32 v{Z1 + (n >> 1)*18 + 2*i + (n & 1)}, v{a}, v{a+1}")
        if i == o.get('flagpos', 3):
            k(f"v_mov_b32 v{T+10}, 0\nv_mov_b32 v{T+11}, s{NON}\ns_waitcnt vmcnt(5)\ns_mov_b64 exec, 1\nbuffer_store_dword v{T+11}, v{T+10}, s[{FLS}:{FLS+3}], s34 offen sc1\ns_mov_b64 exec, -1")
            k.stamp(9)
    side_run(k, o)
    k("s_branch fz_cons")


def side_issue(k, o):
    k(f"""
    s_lshl_b32 s53, s{W}, 8
    s_add_u32 s53, s53, s2
    s_mul_i32 s54, s53, 52429
    s_lshr_b32 s54, s54, 18
    s_mul_i32 s55, s54, 5
    s_sub_u32 s55, s53, s55          ; q
    s_lshr_b32 s33, s54, 4
    s_and_b32 s35, s54, 15
    s_mul_i32 s35, s35, 144
    s_lshl_b32 s52, s55, 5
    s_add_u32 s35, s35, s52
    s_mul_i32 s35, s35, 1152
    s_mul_i32 s33, s33, 144
    s_add_u32 s35, s35, s33
    s_cmp_lt_u32 s53, 640
    s_cselect_b32 s35, s35, {OOB}
    s_mul_i32 s52, s{W}, 5120
    s_add_u32 s52, s52, {XTS}
    s_mov_b32 s33, {(1 << 16) // 9 + 1}
    """)
    for i in range(5):
        k(f"""
        v_add_u32 v232, {64*i}, v{VL}
        v_mul_lo_u32 v233, v232, s33
        v_lshrrev_b32 v233, 16, v233
        v_mul_u32_u24 v234, 9, v233
        v_sub_u32 v234, v232, v234
        v_mul_u32_u24 v233, 1152, v233
        v_lshl_add_u32 v233, v234, 4, v233
        s_add_u32 m0, s52, {i*1024}
        buffer_load_dwordx4 v233, s[44:47], s35 offen lds
        """)

def side_run(k, o):
    k(f"s_cmp_ge_u32 s53, 640\ns_cbranch_scc1 fz_sr9")
    k.srd(36, 4, WOBYTES, add=WS_WO)
    k(f"""
    v_bfe_u32 v3, v{VL}, 2, 2
    v_and_b32 v4, 3, v{VL}
    v_lshrrev_b32 v7, 4, v{VL}
    v_lshl_add_u32 v3, v7, 2, v3
    v_mul_u32_u24 v3, 144, v3
    v_lshl_add_u32 v3, v4, 3, v3
    v_add_u32 v3, s52, v3
    s_waitcnt vmcnt(1)
    """)
    for dt in range(5):
        k(f"ds_read_b64_tr_b16 v[{10+4*dt}:{11+4*dt}], v3 offset:{dt*32}")
        k(f"ds_read_b64_tr_b16 v[{12+4*dt}:{13+4*dt}], v3 offset:{dt*32 + 16*144}")
    k(f"""
    v_lshlrev_b32 v8, 4, v{VL}
    v_lshlrev_b32 v9, 3, v{VL}
    v_and_b32 v34, 7, v{VL}
    v_lshl_add_u32 v34, v7, 3, v34
    v_lshlrev_b32 v35, 4, v34
    v_lshlrev_b32 v34, 3, v34
    s_mul_i32 s33, s54, 20736
    s_mul_i32 s35, s55, 4608
    s_add_u32 s33, s33, s35
    s_add_u32 s35, s33, 4096
    s_lshl_b32 s59, s54, 3
    s_add_u32 s59, s59, s55
    s_lshl_b32 s59, s59, 2
    s_add_u32 s59, s59, {FL_W}
    s_cmp_eq_u32 s55, 4
    s_waitcnt lgkmcnt(0)
    s_cbranch_scc1 fz_sr2
    """)
    for dt in range(4): k(f"buffer_store_dwordx4 v[{10+4*dt}:{13+4*dt}], v8, s[36:39], s33 offen offset:{dt*1024} sc1")
    k(xm(0x00ff00ff00ff00ff))
    k("buffer_store_dwordx4 v[26:29], v35, s[36:39], s35 offen sc1\ns_branch fz_sr3\nfz_sr2:")
    for dt in range(4): k(f"buffer_store_dwordx2 v[{10+4*dt}:{11+4*dt}], v9, s[36:39], s33 offen offset:{dt*512} sc1")
    k(xm(0x00ff00ff00ff00ff))
    k("buffer_store_dwordx2 v[26:27], v34, s[36:39], s33 offen offset:2048 sc1\nfz_sr3:\ns_mov_b64 exec, -1")
    k("fz_sr9:")

def phase2(k, o):
    NST = 32
    k("fz_cons:")
    k.stamp(10)
    ACC = 0; FX = 72; FY = 116
    VA, VB0, VB1, VAb, VB0b, VB1b = 196, 197, 198, 199, 200, 201
    VT, VBS, VO = 203, 204, 208
    k(f"""
    s_load_dwordx2 s[8:9], s[0:1], {ARG['b_sp']}
    s_lshl_b32 s30, s{P}, 3
    s_lshl_b32 s31, s{W}, 1
    s_add_u32 s30, s30, s31
    s_lshl_b32 s31, s30, 4
    s_add_u32 s31, s31, s{C}
    s_mul_i32 s31, s31, 4608
    s_add_u32 s32, s31, {16*4608}
    v_lshlrev_b32 v{VO}, 4, v{VL}
    v_lshlrev_b32 v{VO+1}, 3, v{VL}
    v_and_b32 v{VT}, 15, v{VL}
    v_lshrrev_b32 v{VB0b}, 4, v{VL}
    v_lshrrev_b32 v{VB1b}, 1, v{VT}
    v_xor_b32 v{VB0b}, v{VB0b}, v{VB1b}
    v_lshlrev_b32 v{VB0b}, 4, v{VB0b}
    v_lshl_add_u32 v{VB0b}, v{VT}, 7, v{VB0b}
    s_lshl_b32 s34, s{W}, 12
    s_add_u32 s34, s34, 18432
    v_add_u32 v{VB0b}, s34, v{VB0b}
    v_xor_b32 v{VB1b}, 64, v{VB0b}
    v_mov_b32 v{VAb}, v{VO}
    v_mov_b32 v{VA}, v{VO}
    v_mov_b32 v{VB0}, v{VB0b}
    v_mov_b32 v{VB1}, v{VB1b}
    s_lshl_b32 s34, s30, 4
    v_add_u32 v{VT}, s34, v{VT}
    v_lshlrev_b32 v{VT}, 1, v{VT}
    s_waitcnt lgkmcnt(0)
    global_load_ushort v{VBS}, v{VT}, s[8:9]
    global_load_ushort v{VBS+2}, v{VT}, s[8:9] offset:32
    s_mov_b32 s34, 0
    s_mov_b32 s35, 1
    s_setprio {o.get('prio', 2)}
    """)
    k(f"""
    s_lshl_b32 s28, s{P}, 1
    s_lshr_b32 s10, s{W}, 1
    s_add_u32 s28, s28, s10
    s_lshl_b32 s28, s28, 4
    s_add_u32 s28, s28, s{C}
    s_lshl_b32 s28, s28, 1
    s_and_b32 s10, s{W}, 1
    s_add_u32 s28, s28, s10
    s_lshl_b32 s28, s28, 2
    s_add_u32 s28, s28, {FL_H}
    """)
    g3 = Gemm3(k, o)
    g3.pre()
    def reads(F, half):
        vb = VB0 if half == 0 else VB1
        r = [f"ds_read_b128 v[{F+4*tb}:{F+4*tb+3}], v{vb} offset:{tb*2048}" for tb in range(2)]
        r += [f"ds_read_b128 v[{F+8+4*ft}:{F+8+4*ft+3}], v{VA} offset:{(ft*2+half)*1024}" for ft in range(9)]
        return r
    def mfmas(F, first=False):
        return [f"v_mfma_f32_16x16x32_bf16 v[{ACC+(ft*2+tb)*4}:{ACC+(ft*2+tb)*4+3}], v[{F+8+4*ft}:{F+8+4*ft+3}], v[{F+4*tb}:{F+4*tb+3}], " + ("0" if first else f"v[{ACC+(ft*2+tb)*4}:{ACC+(ft*2+tb)*4+3}]")
                for ft in range(9) for tb in range(2)]
    adv = [f"s_add_u32 s34, s34, {SLOT}", f"s_cmp_ge_u32 s34, {SLOT*NS}", "s_cselect_b32 s34, 0, s34",
           f"v_add_u32 v{VA}, s34, v{VAb}", f"v_add_u32 v{VB0}, s34, v{VB0b}", f"v_add_u32 v{VB1}, s34, v{VB1b}"]
    k("s_barrier")
    k.stamp(11)
    k("\n".join(reads(FX, 0)))
    k("s_waitcnt lgkmcnt(0)")
    k("\n".join(front(mfmas(FX, True), reads(FY, 1) + adv)))
    k(f"s_cmp_lt_u32 s53, 640\ns_cselect_b32 s53, 8, 99\ns_waitcnt lgkmcnt(0)")
    k("fz_cloop:")
    k(f"s_cmp_eq_u32 s35, s53\ns_cbranch_scc0 fz_nwf")
    set_flag(k, 210, 211, 59)
    k(f"fz_nwf:\ns_cmp_eq_u32 s35, 28\ns_cbranch_scc0 fz_nwg\nbuffer_load_dword v238, v237, s[{FLS}:{FLS+3}], 0 offen sc1\nfz_nwg:")
    k("s_barrier")
    k("\n".join(front(mfmas(FY), reads(FX, 0))))
    k("s_waitcnt lgkmcnt(0)")
    k("\n".join(front(mfmas(FX), reads(FY, 1) + adv + ["s_add_u32 s35, s35, 1"])))
    k(f"s_cmp_lt_u32 s35, {NST}\ns_waitcnt lgkmcnt(0)\ns_cbranch_scc1 fz_cloop")
    k("s_barrier")
    k("\n".join(mfmas(FY)))
    k.stamp(12)
    k.srd(12, 4, FRAG9, add=WS_H)
    g3.wcheck()
    k(f"""
    v_lshlrev_b32 v{VBS}, 16, v{VBS}
    v_lshlrev_b32 v{VBS+2}, 16, v{VBS+2}
    v_mov_b32 v{VBS+1}, v{VBS}
    v_mov_b32 v{VBS+3}, v{VBS+2}
    """)
    T = FX
    for tb in range(2):
        b = VBS + 2 * tb
        for q in range(5):
            nt = 2 if q < 4 else 1
            zr = Z1 + tb * 18 + q * 4
            oo = T + (tb * 5 + q) % 4 * 12
            for t in range(nt):
                a = ACC + ((2 * q + t) * 2 + tb) * 4
                for hh in range(2):
                    z = zr + t * 2 + hh; u = oo + 4 + 2 * ((2 * t + hh) % 4)
                    k(f"""
                    v_pk_add_f32 v[{a+2*hh}:{a+2*hh+1}], v[{a+2*hh}:{a+2*hh+1}], v[{b}:{b+1}]
                    v_lshlrev_b32 v{u}, 16, v{z}
                    v_and_b32 v{u+1}, 0xffff0000, v{z}
                    v_pk_mul_f32 v[{a+2*hh}:{a+2*hh+1}], v[{a+2*hh}:{a+2*hh+1}], v[{u}:{u+1}]
                    v_cvt_pk_bf16_f32 v{oo+t*2+hh}, v{a+2*hh}, v{a+2*hh+1}
                    """)
            if q < 4: k(f"buffer_store_dwordx4 v[{oo}:{oo+3}], v{VO}, s[12:15], s{31+tb} offen offset:{q*1024} sc1")
            else: k(f"s_add_u32 s33, s{31+tb}, 4096\nbuffer_store_dwordx2 v[{oo}:{oo+1}], v{VO+1}, s[12:15], s33 offen sc1")
    g3.wregs()
    k(f"v_mov_b32 v0, 0\nv_mov_b32 v1, s{NON}\ns_waitcnt vmcnt(46)\ns_mov_b64 exec, 1\nbuffer_store_dword v1, v0, s[{FLS}:{FLS+3}], s28 offen sc1\ns_mov_b64 exec, -1")
    k.stamp(13)
    g3.main()
    k("fz_loader:\ns_setprio 0")
    for j in range(16): k(f"v_mov_b32 v{198+j}, 0")
    VD = 220
    def kgen():
        L = k.label("nk")
        k(f"s_cmp_ge_u32 s58, 576\ns_cbranch_scc1 {L}")
        k(f"s_lshl_b32 s59, s56, 13\ns_add_u32 s59, s59, {KTAB}\ns_mov_b32 s54, {fbits(L2E_HI)}\ns_mov_b32 s55, {fbits(I2P_HI)}")
        k("\n".join(kgen_addr(k, o)))
        k("\n".join(kgen_dt()))
        k("s_mov_b32 s53, 0\nfz_kg:")
        k("\n".join(kgen_half()))
        k("s_cmp_eq_u32 s53, 1\ns_cbranch_scc1 fz_kg2")
        k(f"{L}:")
    def issue(n, kstep, sc, chk=False):
        if chk:
            L = k.label("pc"); D = k.label("pd")
            k(f"""
            {L}:
            s_lshr_b32 s33, s40, 10
            s_and_b32 s33, s33, 60
            s_lshr_b64 s[48:49], s[46:47], s33
            s_and_b32 s48, s48, 15
            s_cbranch_scc0 {D}
            s_add_u32 s62, s62, 1
            s_cmp_ge_u32 s62, {SPIN}
            s_cbranch_scc1 {D}
            buffer_load_dword v6, v4, s[{FLS}:{FLS+3}], s30 offen sc1
            s_waitcnt vmcnt(0)
            v_cmp_ne_u32 s[46:47], s{NON}, v6
            s_branch {L}
            {D}:
            """)
        for j in range(n):
            k((f"s_add_u32 m0, s41, {j*1024}\n" if j else "s_mov_b32 m0, s41\n") + f"buffer_load_dwordx4 v{VL_(j)}, s[12:15], s40 offen {sc}lds")
        k(f"s_add_u32 s40, s40, {kstep}\ns_and_b32 s40, s40, {32*kstep - 1}\ns_add_u32 s41, s41, {SLOT}\ns_cmp_ge_u32 s41, {SLOT*NS}\ns_cselect_b32 s41, s44, s41")
    VL_ = lambda j: 112 + j
    def ring(tag, n, kstep, sc):
        k(f"s_mov_b32 s35, 0\nfz_l{tag}:\ns_waitcnt vmcnt({2*n})\ns_barrier")
        issue(n, kstep, sc, tag == "A")
        k(f"s_add_u32 s35, s35, 1\ns_cmp_lt_u32 s35, {NST-3}\ns_cbranch_scc1 fz_l{tag}")
        for r in (2, 1, 0): k(f"s_waitcnt vmcnt({n*r})\ns_barrier")
        if tag == "B": k("s_barrier")
    k(f"s_cmp_lg_u32 s{W}, 4\ns_cbranch_scc1 fz_ldB")
    k.srd(12, 4, FRAG9, add=WS_Z2)
    k(f"s_lshl_b32 s40, s{P}, 12" if o.get('rot') else "s_mov_b32 s40, 0")
    k(f"s_mul_i32 s31, s{C}, {9*65536}\nv_lshlrev_b32 v3, 4, v{VL}\nv_add_u32 v3, s31, v3\ns_mov_b32 s44, 0\ns_mov_b32 s41, 0")
    for j in range(18): k(f"v_add_u32 v{VL_(j)}, {(j >> 1)*65536 + (j & 1)*1024}, v3")
    k(f"s_lshl_b32 s30, s{C}, 8\ns_add_u32 s30, s30, {FL_2}\nv_lshlrev_b32 v4, 2, v{VL}\ns_mov_b64 s[46:47], -1\ns_mov_b32 s62, 0")
    issue(18, 2048, "sc1 ", True)
    k.stamp(10)
    for _ in range(2): issue(18, 2048, "sc1 ", True)
    k.stamp(11)
    ring("A", 18, 2048, "sc1 ")
    k("s_branch fz_fin")
    k(f"fz_ldB:\ns_load_dwordx2 s[6:7], s[0:1], {ARG['w_sp']}\ns_waitcnt lgkmcnt(0)")
    k.srd(12, 6, 2048 * 4096)
    k(f"s_cmp_lg_u32 s{W}, 5\ns_cbranch_scc1 fz_kg0")
    VL_ = lambda j: 198 + j
    k(f"""
    v_lshrrev_b32 v3, 3, v{VL}
    v_and_b32 v4, 7, v{VL}
    v_lshrrev_b32 v5, 4, v{VL}
    v_xor_b32 v4, v4, v5
    v_and_b32 v5, 1, v4
    v_lshlrev_b32 v5, 1, v5
    v_bfe_u32 v6, v4, 1, 1
    v_and_b32 v4, 4, v4
    v_or_b32 v4, v4, v5
    v_or_b32 v4, v4, v6
    v_lshlrev_b32 v4, 4, v4
    v_lshl_add_u32 v4, v3, 12, v4
    s_lshl_b32 s31, s{P}, 19
    v_add_u32 v4, s31, v4
    v_xor_b32 v5, 64, v4
    {"s_lshl_b32 s40, s%d, 8" % P if o.get('rot') else "s_mov_b32 s40, 0"}
    s_mov_b32 s44, 18432
    s_mov_b32 s41, 18432
    """)
    for j in range(16): k(f"v_add_u32 v{VL_(j)}, {j*32768}, v{4 + (j & 1)}")
    for _ in range(3): issue(16, 128, "")
    k("fz_kg0:")
    kgen()
    k.stamp(11)
    k(f"s_cmp_lg_u32 s{W}, 5\ns_cbranch_scc1 fz_idle")
    ring("B", 16, 128, "")
    k(f"""
    s_branch fz_ssm
    fz_idle:
    s_mov_b32 s35, 0
    fz_idl:
    s_barrier
    s_add_u32 s35, s35, 1
    s_cmp_lt_u32 s35, 33
    s_cbranch_scc1 fz_idl
    """)
    k("fz_ssm:")
    k.stamp(12)
    k(f"s_cmp_ge_u32 s58, 576\ns_cbranch_scc1 fz_fin\ns_mov_b32 s57, s56\ns_setprio {o.get('prio3', 3)}")
    conv_pre(k, o)
    k(f"s_lshl_b32 s33, s56, 13\ns_add_u32 s33, s33, {KTAB - 4608}\ns_sub_u32 s33, s59, s33")
    for r in list(range(KG['WAD'], KG['WAD'] + 16)) + list(range(KG['RW'], KG['RW'] + 4)) + list(range(KG['RS'], KG['RS'] + 10)):
        k(f"v_add_u32 v{r}, s33, v{r}")
    k("s_mov_b32 s53, 1\ns_branch fz_kg\nfz_kg2:")
    k.stamp(8)
    conv(k, o)

def gen_fused(prof=False, **o):
    OPT.update(o)
    k = Kern(NAME + "_kernel", 256, 512, 163840)
    k.prof = prof; k.allreal = bool(o.get('real', 0))
    k.stamp(0, True); k.stamp(1)
    if o.get('dbgt'): k("s_memrealtime s[64:65]")
    phase0(k, o); phase2(k, o)
    k("fz_fin:")
    if o.get('dbgt'):
        k(f"""
        s_waitcnt vmcnt(0)
        s_memrealtime s[66:67]
        s_load_dwordx2 s[68:69], s[0:1], {ARG['dbg']}
        s_waitcnt lgkmcnt(0)
        s_not_b32 s64, s64
        v_mov_b32 v0, 0
        v_mov_b32 v1, s64
        v_mov_b32 v2, s66
        s_mov_b64 exec, 1
        global_atomic_umax v0, v1, s[68:69]
        global_atomic_umax v0, v2, s[68:69] offset:4
        """)
    if prof:
        k("s_waitcnt vmcnt(0)"); k.stamp(15, True)
        k.prof_dump(0, 4, W, 16)
    k("fz_end:")
    return k

def emit_single(k, path):
    from gen import header
    s = header() + f"; @launch grid=({k.grid},1,1) block=({k.block},1,1) lds={k.lds}\n"
    s += '.amdgcn_target "amdgcn-amd-amdhsa--gfx950"\n.text\n' + k.text() + '.section .rodata,"a"\n' + k.desc()
    open(path, "w").write(s)

if __name__ == "__main__":
    opts = {a.split("=")[0]: int(a.split("=")[1]) for a in sys.argv[2:] if "=" in a}
    emit_single(gen_fused(prof="prof" in sys.argv, **opts), sys.argv[1])
```

```python
import sys; sys.path.insert(0, "dev")
from common6 import *
SLOT = 34816; NS = 4
XTL = 104448; RPL = 114688
Z1 = 160
WOFF = 16384


ROWA = 139264
COLP = ROWA + 1024
WPRIV = COLP + 2 * 768
XTS = WPRIV + 1024
assert XTS + 4 * 5120 <= 163840
KTAB = 104448
WS_RS = WS_ST + 0x90000
def phase0(k, o):
    k(f"""
    s_cmp_ge_u32 s2, 256
    s_cbranch_scc1 fz_end
    s_load_dwordx2 s[4:5], s[0:1], {ARG['ws']}
    s_load_dwordx2 s[6:7], s[0:1], {ARG['x']}
    s_load_dwordx2 s[8:9], s[0:1], {ARG['w_in']}
    v_lshrrev_b32 v1, 6, v0
    v_and_b32 v{VL}, 63, v0
    v_readfirstlane_b32 s{W}, v1
    s_and_b32 s30, s2, 7
    s_lshr_b32 s31, s2, 3
    s_and_b32 s{P}, s30, 1
    s_lshl_b32 s{P}, s{P}, 3
    s_lshr_b32 s32, s31, 2
    s_add_u32 s{P}, s{P}, s32
    s_lshr_b32 s{C}, s30, 1
    s_lshl_b32 s{C}, s{C}, 2
    s_and_b32 s32, s31, 3
    s_add_u32 s{C}, s{C}, s32
    s_cmp_lt_u32 s{W}, 4
    s_cbranch_scc1 fz_c1
    s_cmp_lt_u32 s{W}, 6
    s_cbranch_scc1 fz_l1W
    """)
    p1_loader(k, o, "X")
    k("fz_l1W:")
    p1_loader(k, o, "W")
    k("fz_c1:")
    p1_consumer(k, o)

def get_nonce(k):
    k(f"s_add_u32 s10, s4, {WS_FL}\ns_addc_u32 s11, s5, 0\ns_load_dword s{NON}, s[10:11], 0")
    k.srd(FLS, 4, FL_BYTES, add=WS_FL)
def fin_nonce(k):
    k(f"s_waitcnt lgkmcnt(0)\ns_mul_i32 s{NON}, s{NON}, 0x9E3779B1\ns_add_u32 s{NON}, s{NON}, 0x7F4A7C15")

def p1_addr(k, VX0b, VX1b, VWb, tq_s):
    k(f"""
    v_and_b32 v3, 15, v{VL}
    v_lshrrev_b32 v4, 4, v{VL}
    v_lshrrev_b32 v5, 1, v3
    v_xor_b32 v5, v5, v4
    v_lshlrev_b32 v5, 4, v5
    v_lshl_add_u32 v5, v3, 7, v5
    s_lshl_b32 s32, s{tq_s}, 12
    v_add_u32 v{VX0b}, s32, v5
    v_xor_b32 v{VX1b}, 64, v{VX0b}
    v_bfe_u32 v5, v{VL}, 2, 2
    v_and_b32 v6, 1, v4
    v_lshl_add_u32 v5, v6, 2, v5
    v_lshrrev_b32 v6, 1, v4
    v_lshl_add_u32 v5, v6, 4, v5
    v_mul_u32_u24 v5, 288, v5
    v_and_b32 v6, 3, v{VL}
    v_lshl_add_u32 v5, v6, 3, v5
    v_add_u32 v{VWb}, {WOFF}, v5
    """)

def p1_loader(k, o, typ):
    VD = 200; n = 8 if typ == "X" else 9
    k(f"s_sub_u32 s57, s{W}, 4      ; lw\ns_setprio {o.get('prioL', 3)}")
    if typ == "X":
        k(f"""
        v_lshrrev_b32 v3, 3, v{VL}
        v_and_b32 v4, 7, v{VL}
        v_lshrrev_b32 v5, 4, v{VL}
        v_xor_b32 v4, v4, v5
        v_mul_u32_u24 v3, 1152, v3
        v_lshl_add_u32 v3, v4, 4, v3
        v_xor_b32 v4, 64, v3
        s_sub_u32 s31, s{W}, 6
        s_lshl_b32 s30, s{P}, 7
        s_lshl_b32 s32, s31, 6
        s_add_u32 s30, s30, s32
        s_mul_i32 s30, s30, 1152
        s_lshl_b32 s44, s31, 13
        """)
        k("s_mov_b32 s40, 0\ns_waitcnt lgkmcnt(0)")
        k.srd(12, 6, XBYTES)
        for j in range(8):
            k(f"v_add_u32 v{VD+j}, s30, v{3 + (j & 1)}\ns_add_u32 s30, s30, {8*1152}\ns_add_u32 m0, s44, {j*1024}\nbuffer_load_dwordx4 v{VD+j}, s[12:15], s40 offen lds")
        kstep, k0 = 128, 0
    else:
        k(f"s_mul_i32 s32, s{C}, 288\ns_mov_b32 s33, 3641\ns_mul_i32 s31, s57, {9*64}\ns_mul_i32 s44, s57, {9*1024}\ns_add_u32 s44, s44, {WOFF}\nv_add_u32 v2, s31, v{VL}")
        k("s_mov_b32 s40, 4608\ns_waitcnt lgkmcnt(0)")
        k.srd(12, 8, 576 * 9216)
        for j in range(9):
            k(f"""
            v_add_u32 v3, {64*j}, v2
            v_mul_lo_u32 v4, v3, s33
            v_lshrrev_b32 v4, 16, v4
            v_mul_u32_u24 v5, 18, v4
            v_sub_u32 v5, v3, v5
            v_and_b32 v6, 0x33, v4
            v_bfe_u32 v7, v4, 2, 1
            v_lshl_or_b32 v6, v7, 3, v6
            v_bfe_u32 v7, v4, 3, 1
            v_lshl_or_b32 v6, v7, 2, v6
            v_mul_u32_u24 v6, 9216, v6
            v_lshl_add_u32 v6, v5, 4, v6
            v_add_u32 v{VD+j}, s32, v6
            s_add_u32 m0, s44, {j*1024}
            buffer_load_dwordx4 v{VD+j}, s[12:15], s40 offen lds
            """)
        kstep = 64 * 9216
    k("s_mov_b32 s41, s44\ns_mov_b32 s43, 0")
    tch = 1 if (typ == "X" and o.get('touch', 1) == 1) else 0
    TV = 209
    def issue(touch=True):
        L = []
        for j in range(8 if typ == 'X' else 9):
            L.append((f"s_add_u32 m0, s41, {j*1024}\n" if j else "s_mov_b32 m0, s41\n") + f"buffer_load_dwordx4 v{VD+j}, s[12:15], s40 offen {'sc1 ' if typ == 'X' else ''}lds")
        if tch and touch: L.append(f"s_cmp_lt_u32 s49, s51\ns_cselect_b32 s52, s49, {OOB}\nbuffer_load_dword v254, v{TV}, s[28:31], s52 offen\ns_add_u32 s49, s49, s50")
        L.append(f"s_add_u32 s40, s40, {kstep}\ns_add_u32 s41, s41, {SLOT}\ns_cmp_ge_u32 s41, {SLOT*NS}\ns_cselect_b32 s41, s44, s41")
        L.append(f"s_add_u32 s43, s43, 1\ns_cmp_eq_u32 s43, 9\ns_cselect_b32 s40, 0, s40")
        return L
    k("\n".join(issue(False)[n:]))
    for _ in range(2): k("\n".join(issue(False)))
    if tch:
        k(f"""
        s_load_dwordx2 s[46:47], s[0:1], {ARG['w_sp']}
        s_load_dwordx2 s[54:55], s[0:1], {ARG['w_out']}
        v_mov_b32 v6, {OOB}
        v_and_b32 v3, 7, v{VL}
        v_lshrrev_b32 v4, 3, v{VL}
        v_lshlrev_b32 v3, 12, v3
        v_lshl_add_u32 v3, v4, 7, v3
        s_lshl_b32 s31, s2, 15
        v_add_u32 v3, s31, v3
        s_lshr_b32 s33, s2, {4 if o.get('rot') else 16}
        s_lshl_b32 s33, s33, 8
        v_lshl_add_u32 v4, v4, 7, s33
        v_and_b32 v4, 4095, v4
        v_and_b32 v3, 7, v{VL}
        v_lshl_add_u32 v3, v3, 12, v4
        v_add_u32 v3, s31, v3
        v_mov_b32 v{TV}, v3
        s_mov_b32 s49, 1000
        s_mov_b32 s50, 1
        s_mov_b32 s51, 1
        s_waitcnt lgkmcnt(0)
        """)
        k.srd(28, 46, 2048 * 4096)
        k(f"s_cmp_eq_u32 s{W}, 6\ns_cbranch_scc1 fz_t6")
        k.srd(28, 8, 576 * 9216)
        k(f"""
        s_mul_i32 s33, s2, {3*9216}
        s_cmp_lt_u32 s2, 192
        s_cselect_b32 s33, s33, {OOB}
        v_lshlrev_b32 v3, 7, v{VL}
        v_add_u32 v3, s33, v3
        v_cmp_gt_u32 vcc, 36, v{VL}
        v_cndmask_b32 v{TV}, v6, v3, vcc
        s_mov_b32 s49, {-9216 * o.get('tz1', 1)}
        s_mov_b32 s50, 9216
        s_mov_b32 s51, {3*9216}
        fz_t6:
        """)
    n0 = n; n = n + tch
    get_nonce(k)
    VX0, VX1, VW, VX0b, VX1b, VWb = 210, 211, 212, 213, 214, 215
    p1_addr(k, VX0b, VX1b, VWb, 57)
    CA = 44
    WF = 56
    ON = 108
    T = 112
    for i in range(4): k(f"v_mov_b32 v{ON+i}, 0x3f803f80")
    for i in range(12): k(f"v_mov_b32 v{CA+i}, 0")
    k(f"s_lshl_b32 s36, s57, 5\nv_add_u32 v{VWb}, s36, v{VWb}\nv_mov_b32 v{VW}, v{VWb}\ns_mov_b32 s34, 0\ns_mov_b32 s35, 0")
    k.srd(24, 4, 2048 * 16, add=WS_RS)
    k(f"s_lshl_b32 s36, s{P}, 7\ns_and_b32 s37, s57, 1\ns_lshl_b32 s37, s37, 6\ns_add_u32 s36, s36, s37\ns_lshl_b32 s36, s36, 4\nv_lshlrev_b32 v{T+8}, 4, v{VL}")
    fin_nonce(k)
    adv = f"s_add_u32 s34, s34, {SLOT}\ns_cmp_ge_u32 s34, {SLOT*NS}\ns_cselect_b32 s34, 0, s34\nv_add_u32 v{VW}, s34, v{VWb}"
    nt = 3 if typ == "W" else 2
    def stage(z2, do_issue, wait):
        k(f"s_waitcnt vmcnt({wait})\ns_barrier")
        rd_ = []; mf = []
        if z2:
            for hf in range(2):
                for t in range(nt):
                    f = WF + (hf * 3 + t) * 4
                    for rd in range(2): rd_.append(f"ds_read_b64_tr_b16 v[{f+2*rd}:{f+2*rd+1}], v{VW} offset:{hf*32*288 + rd*8*288 + t*128}")
                    mf.append(f"v_mfma_f32_16x16x32_bf16 v[{CA+4*t}:{CA+4*t+3}], v[{ON}:{ON+3}], v[{f}:{f+3}], v[{CA+4*t}:{CA+4*t+3}]")
        dm = issue() if do_issue else []
        if z2:
            k("\n".join(rd_ + dm[:2]))
            k("s_waitcnt lgkmcnt(0)")
            k("\n".join(front(dm[2:], mf)))
            k(adv)
        else: k("\n".join(dm))
        k("s_add_u32 s35, s35, 1")
    def gran_check(vd, va, so, full):
        L = k.label("rp"); D = k.label("rd")
        k(f"""
        s_mov_b32 s62, 0
        {"" if full else xm(0xffffffff)}
        {L}:
        v_cmp_ne_u32 vcc, s{NON}, v{vd+1}
        v_cmp_ne_u32 s[60:61], s{NON}, v{vd+3}
        s_or_b64 vcc, vcc, s[60:61]
        s_cbranch_vccz {D}
        s_add_u32 s62, s62, 1
        s_cmp_ge_u32 s62, {SPIN}
        s_cbranch_scc1 {D}
        buffer_load_dwordx4 v[{vd}:{vd+3}], v{va}, s[24:27], s{so} offen sc1
        s_waitcnt vmcnt(0)
        s_branch {L}
        {D}:
        """)
    k(f"fz_l1{typ}a:")
    stage(True, True, 2 * n0)
    if typ == "X":
        L = k.label("rg")
        k(f"s_cmp_eq_u32 s35, 5\ns_cbranch_scc0 {L}\nbuffer_load_dwordx4 v[{T+4}:{T+7}], v{T+8}, s[24:27], s36 offen sc1\n{L}:")
    k(f"s_cmp_lt_u32 s35, 6\ns_cbranch_scc1 fz_l1{typ}a")
    if typ == "X":
        k(f"s_waitcnt vmcnt({n})")
        gran_check(T + 4, T + 8, 36, True)
        k.srd(12, 4, XBYTES, add=WS_XN)
        k(f"""
        v_lshlrev_b32 v{T}, 2, v{VL}
        s_sub_u32 s33, s{W}, 6
        s_lshl_b32 s33, s33, 8
        s_add_u32 s33, s33, {ROWA}
        v_add_u32 v{T}, s33, v{T}
        ds_write_b32 v{T}, v{T+4}
        ds_write_b32 v{T}, v{T+6} offset:512
        """)
    k(f"fz_l1{typ}a2:")
    stage(True, True, 2 * n0)
    k(f"s_cmp_lt_u32 s35, 9\ns_cbranch_scc1 fz_l1{typ}a2")
    k(f"s_lshl_b32 s33, s57, 6\ns_add_u32 s33, s33, {COLP}\nv_lshlrev_b32 v{T}, 2, v{VL}\nv_add_u32 v{T}, s33, v{T}\n{xm(0xffff)}")
    for t in range(nt): k(f"ds_write_b32 v{T}, v{CA+4*t} offset:{t*256}")
    k("s_mov_b64 exec, -1\ns_waitcnt lgkmcnt(0)\ns_barrier")
    k.stamp(3)
    k("\n".join(issue()))
    if tch:
        L = k.label("t7")
        k(f"s_cmp_eq_u32 s{W}, 6\ns_cbranch_scc1 {L}")
        k.srd(28, 54, WOBYTES)
        k(f"s_mul_i32 s33, s2, {81*128}\nv_lshlrev_b32 v3, 7, v{VL}\nv_add_u32 v3, s33, v3\nv_mov_b32 v6, {OOB}\nv_cmp_gt_u32 vcc, 27, v{VL}\nv_cndmask_b32 v{TV}, v6, v3, vcc\ns_mov_b32 s49, 0\ns_mov_b32 s50, {27*128}\ns_mov_b32 s51, {81*128}\n{L}:")
    ex = 0
    if typ == "X":
        k.srd(24, 4, XBYTES, add=WS_XT)
        k(f"""
        v_bfe_u32 v{T}, v{VL}, 2, 2
        v_mul_u32_u24 v{T}, 1216, v{T}
        v_and_b32 v{T+1}, 3, v{VL}
        v_lshl_add_u32 v{T}, v{T+1}, 3, v{T}
        v_lshrrev_b32 v{T+1}, 4, v{VL}
        v_lshl_add_u32 v{T}, v{T+1}, 5, v{T}
        s_sub_u32 s37, s{W}, 6
        s_lshl_b32 s33, s37, 9
        s_add_u32 s33, s33, {XTS}
        v_add_u32 v{T}, s33, v{T}
        s_mul_i32 s33, s2, 9216
        s_lshl_b32 s36, s37, 12
        s_add_u32 s33, s33, s36
        s_lshl_b32 s36, s2, 1
        s_add_u32 s36, s36, s37
        s_lshl_b32 s36, s36, 2
        s_add_u32 s36, s36, {FL_T}
        """)
        for ps in range(5):
            for rd in range(2): k(f"ds_read_b64_tr_b16 v[{124+4*ps+2*rd}:{124+4*ps+2*rd+1}], v{T} offset:{rd*4*1216 + ps*128}")
        k("s_waitcnt lgkmcnt(0)")
        for ps in range(5): k(f"buffer_store_dwordx4 v[{124+4*ps}:{124+4*ps+3}], v{T+8}, s[24:27], s33 offen sc1\ns_add_u32 s33, s33, 1024")
        ex = 5
        nrow = o.get('trows', 4)
        k.srd(24, 46, 2048 * 4096)
        k(f"s_lshl_b32 s33, s2, 1\ns_add_u32 s33, s33, s37\ns_lshl_b32 s33, s33, 14\nv_lshlrev_b32 v{T+2}, 7, v{VL}")
        for i in range(2): k(f"buffer_load_dword v254, v{T+2}, s[24:27], s33 offen\ns_add_u32 s33, s33, 8192")
        ex = 7
    elif o.get('prew', 0):
        k.srd(24, 4, FRAG9, add=WS_Z2)
        k(f"s_mul_i32 s33, s{C}, {9*64}\ns_lshl_b32 s36, s{P}, 2\ns_add_u32 s33, s33, s36\ns_lshl_b32 s36, s57, 1\ns_add_u32 s33, s33, s36\ns_lshl_b32 s33, s33, 10")
        for i in range(9):
            k(f"buffer_store_dwordx4 v[{ON}:{ON+3}], v{T+8}, s[24:27], s33 offen sc1\nbuffer_store_dwordx4 v[{ON}:{ON+3}], v{T+8}, s[24:27], s33 offen offset:1024 sc1\ns_add_u32 s33, s33, 65536")
        ex = 18
    stage(False, False, 3 * n + tch + ex)
    for _ in range(3): stage(False, True, 2 * n + tch + ex)
    stage(False, True, 2 * n + tch)
    if typ == "X":
        k(f"v_mov_b32 v{T}, 0\nv_mov_b32 v{T+1}, s{NON}\ns_mov_b64 exec, 1\nbuffer_store_dword v{T+1}, v{T}, s[{FLS}:{FLS+3}], s36 offen sc1\ns_mov_b64 exec, -1")
    stage(False, True, 2 * n + tch)
    k(f"""
    s_sub_u32 s30, 7, s{W}
    s_lshl_b32 s58, s2, 1
    s_add_u32 s58, s58, s30
    s_add_u32 s59, s2, 512
    s_cmp_eq_u32 s30, 2
    s_cselect_b32 s58, s59, s58
    s_cmp_eq_u32 s30, 3
    s_cselect_b32 s58, 1000, s58
    s_mov_b32 s56, s30
    """)
    kgen_setup(k, o)
    for r in (2, 1, 0): stage(False, False, r * n + tch + 14)
    k("s_waitcnt vmcnt(0)\ns_barrier")
    k.stamp(6)
    k("s_branch fz_loader")

def p1_consumer(k, o):
    A2, A1 = 0, 72
    FX, FY = 144, 188
    VX0, VX1, VW, VX0b, VX1b, VWb = 232, 233, 234, 235, 236, 237
    NMR, RR = 238, 240
    VC1, VONE = 242, 244
    V16 = 246; VPG, VPR = 247, 248
    k(f"s_load_dwordx2 s[24:25], s[0:1], {ARG['w_sp']}\ns_load_dwordx2 s[26:27], s[0:1], {ARG['w_out']}\ns_waitcnt lgkmcnt(0)")
    k.srd(12, 6, XBYTES)
    k(f"""
    s_lshl_b32 s30, s2, 2
    s_add_u32 s30, s30, s{W}
    s_mul_i32 s31, s30, 2304
    v_lshlrev_b32 v2, 4, v{VL}
    v_mov_b32 v3, {OOB}
    v_cmp_gt_u32 vcc, 36, v{VL}
    v_cndmask_b32 v2, v3, v2, vcc
    buffer_load_dwordx4 v[8:11], v2, s[12:15], s31 offen
    buffer_load_dwordx4 v[12:15], v2, s[12:15], s31 offen offset:576
    buffer_load_dwordx4 v[16:19], v2, s[12:15], s31 offen offset:1152
    buffer_load_dwordx4 v[20:23], v2, s[12:15], s31 offen offset:1728
    """)
    get_nonce(k)
    p1_addr(k, VX0b, VX1b, VWb, W)
    k(f"""
    v_mov_b32 v{VX0}, v{VX0b}
    v_mov_b32 v{VX1}, v{VX1b}
    v_mov_b32 v{VW}, v{VWb}
    s_mov_b32 s34, 0
    s_mov_b32 s56, {fbits(C2)}
    s_mov_b32 s57, {fbits(C2)}
    v_mov_b32 v{VC1}, {fbits(C1)}
    v_mov_b32 v{VC1+1}, {fbits(C1)}
    v_mov_b32 v{VONE}, 1.0
    v_mov_b32 v{VONE+1}, 1.0
    v_lshlrev_b32 v{V16}, 4, v{VL}
    s_lshl_b32 s33, s{W}, 8
    s_add_u32 s33, s33, {WPRIV}
    v_lshrrev_b32 v3, 4, v{VL}
    v_lshlrev_b32 v3, 4, v3
    v_add_u32 v{VPG}, s33, v3
    v_and_b32 v3, 31, v{VL}
    v_lshlrev_b32 v3, 2, v3
    v_add_u32 v{VPR}, s33, v3
    s_setprio {o.get('prio1', 2)}
    """)
    fin_nonce(k)
    if o.get('touch', 1):
        k(f"""
        v_mul_u32_u24 v3, 43, v{VL}
        v_lshrrev_b32 v3, 8, v3
        v_mul_u32_u24 v4, 6, v3
        v_sub_u32 v4, v{VL}, v4
        s_lshl_b32 s31, s30, 1
        v_add_u32 v3, s31, v3
        v_mul_u32_u24 v3, 1152, v3
        v_lshl_add_u32 v3, v4, 7, v3
        s_mul_i32 s31, s30, 14
        v_add_u32 v7, s31, v{VL}
        v_min_u32 v7, 13823, v7
        s_mov_b32 s32, 29128
        v_mul_lo_u32 v4, v7, s32
        v_lshrrev_b32 v4, 20, v4
        v_mul_u32_u24 v5, 36, v4
        v_sub_u32 v5, v7, v5
        v_mul_u32_u24 v4, 9216, v4
        v_lshl_add_u32 v4, v5, 7, v4
        v_add_u32 v4, {192*9216 + 4608}, v4
        {xm(0xfff)}
        global_load_dword v254, v3, s[6:7] offset:384
        {xm((1 << 14) - 1)}
        global_load_dword v254, v4, s[8:9]
        s_mov_b64 exec, -1
        """)

    X = 32; S = 70
    k(f"v_cmp_gt_u32 vcc, 36, v{VL}\ns_waitcnt vmcnt({2 if o.get('touch', 1) else 0})")
    for i in range(16): k(f"v_lshlrev_b32 v{X+2*i}, 16, v{8+i}\nv_and_b32 v{X+2*i+1}, 0xffff0000, v{8+i}")
    for r in range(2):
        b = X + 16 * r; s_ = S + 8 * r
        k(f"v_pk_add_f32 v[{s_}:{s_+1}], v[{b}:{b+1}], v[{b+2}:{b+3}]")
    for i in range(2, 8):
        for r in range(2):
            b = X + 16 * r; s_ = S + 8 * r
            k(f"v_pk_add_f32 v[{s_}:{s_+1}], v[{s_}:{s_+1}], v[{b+2*i}:{b+2*i+1}]")
    for r in range(2): k(f"v_add_f32 v{S+8*r}, v{S+8*r}, v{S+8*r+1}")
    dpp_sum16(k, [S, S + 8])
    for r in range(2): xsum_rows(k, S + 8 * r, S + 8 * r + 1)
    for r in range(2):
        s_ = S + 8 * r
        k(f"v_mul_f32 v{s_}, {1.0/576!r}, v{s_}\nv_cndmask_b32 v{s_+6}, 0, v{s_}, vcc\nv_mov_b32 v{s_+7}, v{s_+6}")
    for i in range(8):
        for r in range(2):
            b = X + 16 * r; s_ = S + 8 * r
            k(f"v_pk_add_f32 v[{s_+4}:{s_+5}], v[{b+2*i}:{b+2*i+1}], v[{s_+6}:{s_+7}] neg_lo:[0,1] neg_hi:[0,1]")
            if i == 0: k(f"v_pk_mul_f32 v[{s_+2}:{s_+3}], v[{s_+4}:{s_+5}], v[{s_+4}:{s_+5}]")
            else: k(f"v_pk_fma_f32 v[{s_+2}:{s_+3}], v[{s_+4}:{s_+5}], v[{s_+4}:{s_+5}], v[{s_+2}:{s_+3}]")
    for r in range(2): k(f"v_add_f32 v{S+8*r+2}, v{S+8*r+2}, v{S+8*r+3}")
    dpp_sum16(k, [S + 2, S + 10])
    for r in range(2): xsum_rows(k, S + 8 * r + 2, S + 8 * r + 3)
    k.srd(36, 4, 2048 * 16, add=WS_RS)
    for r in range(2):
        s_ = S + 8 * r
        k(f"v_mul_f32 v{s_+2}, {1.0/576!r}, v{s_+2}")
        ln_finish(k, s_, s_ + 2)
        k(f"v_mul_f32 v{s_}, -v{s_}, v{s_+2}\nv_mov_b32 v{s_+1}, s{NON}\nv_mov_b32 v{s_+3}, s{NON}")
    for i in range(8):
        for r in range(2):
            a = X + 16 * r + 2 * i; s_ = S + 8 * r
            k(f"v_pk_fma_f32 v[{a}:{a+1}], v[{a}:{a+1}], v[{s_+2}:{s_+3}], v[{s_}:{s_+1}] op_sel_hi:[1,0,0]")
    for i in range(16): k(f"v_cvt_pk_bf16_f32 v{8+i}, v{X+2*i}, v{X+2*i+1}")
    k(f"s_mul_i32 s31, s{W}, {2*1216}\ns_add_u32 s31, s31, {XTS}\nv_lshlrev_b32 v3, 4, v{VL}\nv_add_u32 v3, s31, v3\n{xm((1 << 36) - 1)}")
    for i in range(4): k(f"ds_write_b128 v3, v[{8+4*i}:{11+4*i}] offset:{(i >> 1)*1216 + (i & 1)*576}")
    k("s_mov_b64 exec, -1")
    k.srd(40, 4, XBYTES, add=WS_XN)
    k(f"s_mul_i32 s31, s30, 2304")
    for i in range(4): k(f"buffer_store_dwordx4 v[{8+4*i}:{11+4*i}], v2, s[40:43], s31 offen offset:{576*i} sc1")
    def rowgran():
        k(f"""
        s_lshl_b32 s31, s30, 5
        v_mov_b32 v249, 0
        s_waitcnt vmcnt(0)
        s_mov_b64 exec, 1
        buffer_store_dwordx4 v[112:115], v249, s[36:39], s31 offen sc1
        buffer_store_dwordx4 v[116:119], v249, s[36:39], s31 offen offset:16 sc1
        s_mov_b64 exec, -1
        """)
    for i in range(4): k(f"v_mov_b32 v{112+i}, v{S+i}\nv_mov_b32 v{116+i}, v{S+8+i}")
    k("s_waitcnt lgkmcnt(0)")
    def reads(F, half):
        vx = VX0 if half == 0 else VX1
        r = [f"ds_read_b128 v[{F+4*tb}:{F+4*tb+3}], v{vx} offset:{tb*2048}" for tb in range(2)]
        if o.get('nord1') == 1: return r
        if o.get('nord1') == 2: return [f"ds_read_b128 v[{F+8+4*i}:{F+8+4*i+3}], v{V16} offset:{i*1024}" for i in range(9)] + r
        for i in range(9):
            for rd in range(2):
                b = F + 8 + 4 * i + 2 * rd
                r.append(f"ds_read_b64_tr_b16 v[{b}:{b+1}], v{VW} offset:{half*32*288 + rd*8*288 + i*32}")
        return r
    def mfmas(F, z2, first=False):
        out = []; ACC = A2 if z2 else A1
        for i in range(9):
            for tb in range(2):
                a = ACC + (i * 2 + tb) * 4
                wf = f"v[{F+8+4*i}:{F+8+4*i+3}]"; xf = f"v[{F+4*tb}:{F+4*tb+3}]"
                A, B = (xf, wf) if z2 else (wf, xf)
                out.append(f"v_mfma_f32_16x16x32_bf16 v[{a}:{a+3}], {A}, {B}, {'0' if first else 'v[%d:%d]' % (a, a+3)}")
        return out
    adv = [f"s_add_u32 s34, s34, {SLOT}\ns_cmp_ge_u32 s34, {SLOT*NS}\ns_cselect_b32 s34, 0, s34",
           f"v_add_u32 v{VX0}, s34, v{VX0b}\nv_add_u32 v{VX1}, s34, v{VX1b}\nv_add_u32 v{VW}, s34, v{VWb}"]
    def gemm(z2):
        name = f"fz_g1{'a' if z2 else 'b'}"
        k("s_barrier")
        k.stamp(2 if z2 else 5)
        k("\n".join(reads(FX, 0)))
        k("s_waitcnt lgkmcnt(0)")
        k("\n".join(front2(mfmas(FX, z2, True), reads(FY, 1) + adv, o.get('per', 2))))
        k(f"s_mov_b32 s35, 1\ns_waitcnt lgkmcnt(0)\n{name}:\ns_barrier")
        k("\n".join(front2(mfmas(FY, z2), reads(FX, 0), o.get('per', 2))))
        k("s_waitcnt lgkmcnt(0)")
        k("\n".join(front2(mfmas(FX, z2), reads(FY, 1) + adv + ["s_add_u32 s35, s35, 1"], o.get('per', 2))))
        if z2:
            k("s_cmp_eq_u32 s35, 2\ns_cbranch_scc0 fz_nrg"); rowgran(); k("fz_nrg:")
        k(f"s_cmp_lt_u32 s35, 9\ns_waitcnt lgkmcnt(0)\ns_cbranch_scc1 {name}")
        k("\n".join(mfmas(FY, z2)))
    gemm(True)
    k.stamp(3)
    SU, SQ = FX, FX + 8
    CP = FX + 16
    T = 196
    PS, PQ = 212, 220
    k(f"""
    v_and_b32 v{T}, 15, v{VL}
    v_lshlrev_b32 v{T}, 2, v{T}
    v_add_u32 v{T+1}, {COLP}, v{T}
    s_lshl_b32 s33, s{W}, 7
    s_add_u32 s33, s33, {ROWA}
    v_add_u32 v{T}, s33, v{T}
    v_lshrrev_b32 v{T+2}, 4, v{VL}
    v_lshlrev_b32 v{T+2}, 4, v{T+2}
    v_add_u32 v{T+2}, s33, v{T+2}
    s_barrier
    ds_read_b128 v[{SU}:{SU+3}], v{T+2}
    ds_read_b128 v[{SU+4}:{SU+7}], v{T+2} offset:64
    ds_read_b128 v[{SQ}:{SQ+3}], v{T+2} offset:512
    ds_read_b128 v[{SQ+4}:{SQ+7}], v{T+2} offset:576
    """)
    for i in range(9): k(f"ds_read_b32 v{CP+4*i}, v{T+1} offset:{i*64}")
    k.srd(44, 26, WOBYTES)
    k("s_waitcnt lgkmcnt(0)")
    for i in range(9):
        pairs = [A2 + (i * 2) * 4, A2 + (i * 2) * 4 + 2, A2 + (i * 2 + 1) * 4, A2 + (i * 2 + 1) * 4 + 2]
        cs = CP + 4 * i
        for n, a in enumerate(pairs): k(f"v_pk_mul_f32 v[{T+2*n}:{T+2*n+1}], v[{SU+2*n}:{SU+2*n+1}], v[{cs}:{cs+1}] op_sel_hi:[1,0]")
        for n, a in enumerate(pairs): k(f"v_pk_fma_f32 v[{a}:{a+1}], v[{a}:{a+1}], v[{SQ+2*n}:{SQ+2*n+1}], v[{T+2*n}:{T+2*n+1}]")
        gelu_group(k, pairs, T, 56, VC1, VONE)
        for n, a in enumerate(pairs):
            if i == 0: k(f"v_pk_mul_f32 v[{PQ+2*n}:{PQ+2*n+1}], v[{a}:{a+1}], v[{a}:{a+1}]\nv_mov_b32 v{PS+2*n}, v{a}\nv_mov_b32 v{PS+2*n+1}, v{a+1}")
            else: k(f"v_pk_fma_f32 v[{PQ+2*n}:{PQ+2*n+1}], v[{a}:{a+1}], v[{a}:{a+1}], v[{PQ+2*n}:{PQ+2*n+1}]\nv_pk_add_f32 v[{PS+2*n}:{PS+2*n+1}], v[{PS+2*n}:{PS+2*n+1}], v[{a}:{a+1}]")
    dpp_sum16(k, list(range(PS, PS + 16)))
    k.srd(36, 4, 16 * 16 * 2048, add=WS_ST)
    k(f"""
    {xm(0x0001000100010001)}
    ds_write_b128 v{VPG}, v[{PS}:{PS+3}]
    ds_write_b128 v{VPG}, v[{PS+4}:{PS+7}] offset:64
    ds_write_b128 v{VPG}, v[{PQ}:{PQ+3}] offset:128
    ds_write_b128 v{VPG}, v[{PQ+4}:{PQ+7}] offset:192
    s_mov_b64 exec, -1
    ds_read_b32 v{T+4}, v{VPR}
    ds_read_b32 v{T+6}, v{VPR} offset:128
    v_mov_b32 v{T+5}, s{NON}
    v_mov_b32 v{T+7}, s{NON}
    s_lshl_b32 s33, s{P}, 4
    s_add_u32 s33, s33, s{C}
    s_lshl_b32 s33, s33, 11
    s_lshl_b32 s53, s{W}, 9
    s_add_u32 s33, s33, s53
    v_and_b32 v{T+3}, 31, v{VL}
    v_lshlrev_b32 v{T+3}, 4, v{T+3}
    s_waitcnt lgkmcnt(0)
    {xm(0xffffffff)}
    buffer_store_dwordx4 v[{T+4}:{T+7}], v{T+3}, s[36:39], s33 offen sc1
    s_mov_b64 exec, -1
    """)
    k.stamp(4)
    gemm(False)
    k.stamp(6)
    Q = FX
    T = 196
    k(f"""
    v_and_b32 v249, 31, v{VL}
    v_lshlrev_b32 v249, 4, v249
    v_lshrrev_b32 v250, 5, v{VL}
    v_lshl_add_u32 v249, v250, 14, v249
    s_lshl_b32 s52, s{P}, 15
    s_lshl_b32 s53, s{W}, 9
    s_add_u32 s52, s52, s53
    s_mov_b32 s62, 0
    """)
    def sweep():
        for c2 in range(8): k(f"s_add_u32 s53, s52, {c2*2048}\nbuffer_load_dwordx4 v[{Q+4*c2}:{Q+3+4*c2}], v249, s[36:39], s53 offen sc1")
    sweep()
    k(f"s_barrier\nfz_sp:\ns_waitcnt vmcnt(0)\nv_xor_b32 v{T+5}, s{NON}, v{Q+1}")
    for c2 in range(8):
        for hh in range(2):
            if c2 == 0 and hh == 0: continue
            k(f"v_xor_b32 v{T+6+(c2+hh)%2}, s{NON}, v{Q+1+4*c2+2*hh}\nv_or_b32 v{T+5}, v{T+5}, v{T+6+(c2+hh)%2}")
    k(f"v_cmp_ne_u32 vcc, 0, v{T+5}\ns_cbranch_vccz fz_spd\ns_add_u32 s62, s62, 1\ns_cmp_ge_u32 s62, {SPIN}\ns_cbranch_scc1 fz_spd")
    sweep()
    k(f"s_branch fz_sp\nfz_spd:")
    k.stamp(7)
    for c2 in range(1, 8): k(f"v_add_f32 v{Q}, v{Q}, v{Q+4*c2}\nv_add_f32 v{Q+2}, v{Q+2}, v{Q+2+4*c2}")
    m, v = Q, Q + 2
    k(f"""
    v_mov_b32 v{Q+1}, v{m}
    v_mov_b32 v{Q+3}, v{v}
    v_permlane32_swap_b32 v{m}, v{Q+1}
    v_permlane32_swap_b32 v{v}, v{Q+3}
    v_add_f32 v{m}, v{m}, v{Q+1}
    v_add_f32 v{v}, v{v}, v{Q+3}
    v_mul_f32 v{m}, {1.0/2304!r}, v{m}
    v_mul_f32 v{v}, {1.0/2304!r}, v{v}
    v_fma_f32 v{v}, -v{m}, v{m}, v{v}
    v_max_f32 v{v}, 0, v{v}
    """)
    ln_finish(k, m, v)
    SU, SQ = 148, 156
    k(f"""
    v_mul_f32 v{m}, -v{m}, v{v}
    ds_write_b32 v{VPR}, v{m}
    ds_write_b32 v{VPR}, v{v} offset:128
    ds_read_b128 v[{SU}:{SU+3}], v{VPG}
    ds_read_b128 v[{SU+4}:{SU+7}], v{VPG} offset:64
    ds_read_b128 v[{SQ}:{SQ+3}], v{VPG} offset:128
    ds_read_b128 v[{SQ+4}:{SQ+7}], v{VPG} offset:192
    """)
    k.srd(36, 4, FRAG9, add=WS_Z2)
    k(f"""
    s_mul_i32 s32, s{C}, {9*64}
    s_lshl_b32 s33, s{P}, 2
    s_add_u32 s33, s33, s{W}         ; kb
    s_add_u32 s32, s32, s33
    s_lshl_b32 s32, s32, 10
    s_lshl_b32 s34, s{C}, 6
    s_add_u32 s34, s34, s33
    s_lshl_b32 s34, s34, 2
    s_add_u32 s34, s34, {FL_2}
    v_lshrrev_b32 v250, 4, v{VL}
    v_lshlrev_b32 v250, 4, v250
    v_add_u32 v250, {COLP + 768}, v250
    s_waitcnt lgkmcnt(0)
    """)
    for i in range(9):
        oo = 164 + (i % 4) * 4
        for sb in range(2):
            a = A2 + (i * 2 + sb) * 4
            for hh in range(2):
                k(f"v_pk_fma_f32 v[{a+2*hh}:{a+2*hh+1}], v[{a+2*hh}:{a+2*hh+1}], v[{SQ+4*sb+2*hh}:{SQ+4*sb+2*hh+1}], v[{SU+4*sb+2*hh}:{SU+4*sb+2*hh+1}]")
            for hh in range(2): k(f"v_cvt_pk_bf16_f32 v{oo+2*sb+hh}, v{a+2*hh}, v{a+2*hh+1}")
        k(f"v_permlane16_swap_b32 v{oo}, v{oo+2}\nv_permlane16_swap_b32 v{oo+1}, v{oo+3}")
        k(f"buffer_store_dwordx4 v[{oo}:{oo+3}], v{V16}, s[36:39], s32 offen sc1\ns_add_u32 s32, s32, 65536")
    k.stamp(8)
    side_issue(k, o)
    for i in range(9):
        pairs = [A1 + (i * 2) * 4, A1 + (i * 2) * 4 + 2, A1 + (i * 2 + 1) * 4, A1 + (i * 2 + 1) * 4 + 2]
        gelu_group(k, pairs, T, 56, VC1, VONE)
        for n, a in enumerate(pairs): k(f"v_cvt_pk_bf16_f32 v{Z1 + (n >> 1)*18 + 2*i + (n & 1)}, v{a}, v{a+1}")
        if i == o.get('flagpos', 3):
            k(f"v_mov_b32 v{T+10}, 0\nv_mov_b32 v{T+11}, s{NON}\ns_waitcnt vmcnt(5)\ns_mov_b64 exec, 1\nbuffer_store_dword v{T+11}, v{T+10}, s[{FLS}:{FLS+3}], s34 offen sc1\ns_mov_b64 exec, -1")
            k.stamp(9)
    side_run(k, o)
    k("s_branch fz_cons")


def side_issue(k, o):
    k(f"""
    s_lshl_b32 s53, s{W}, 8
    s_add_u32 s53, s53, s2
    s_mul_i32 s54, s53, 52429
    s_lshr_b32 s54, s54, 18
    s_mul_i32 s55, s54, 5
    s_sub_u32 s55, s53, s55          ; q
    s_lshr_b32 s33, s54, 4
    s_and_b32 s35, s54, 15
    s_mul_i32 s35, s35, 144
    s_lshl_b32 s52, s55, 5
    s_add_u32 s35, s35, s52
    s_mul_i32 s35, s35, 1152
    s_mul_i32 s33, s33, 144
    s_add_u32 s35, s35, s33
    s_cmp_lt_u32 s53, 640
    s_cselect_b32 s35, s35, {OOB}
    s_mul_i32 s52, s{W}, 5120
    s_add_u32 s52, s52, {XTS}
    s_mov_b32 s33, {(1 << 16) // 9 + 1}
    """)
    for i in range(5):
        k(f"""
        v_add_u32 v232, {64*i}, v{VL}
        v_mul_lo_u32 v233, v232, s33
        v_lshrrev_b32 v233, 16, v233
        v_mul_u32_u24 v234, 9, v233
        v_sub_u32 v234, v232, v234
        v_mul_u32_u24 v233, 1152, v233
        v_lshl_add_u32 v233, v234, 4, v233
        s_add_u32 m0, s52, {i*1024}
        buffer_load_dwordx4 v233, s[44:47], s35 offen lds
        """)

def side_run(k, o):
    k(f"s_cmp_ge_u32 s53, 640\ns_cbranch_scc1 fz_sr9")
    k.srd(36, 4, WOBYTES, add=WS_WO)
    k(f"""
    v_bfe_u32 v3, v{VL}, 2, 2
    v_and_b32 v4, 3, v{VL}
    v_lshrrev_b32 v7, 4, v{VL}
    v_lshl_add_u32 v3, v7, 2, v3
    v_mul_u32_u24 v3, 144, v3
    v_lshl_add_u32 v3, v4, 3, v3
    v_add_u32 v3, s52, v3
    s_waitcnt vmcnt(1)
    """)
    for dt in range(5):
        k(f"ds_read_b64_tr_b16 v[{10+4*dt}:{11+4*dt}], v3 offset:{dt*32}")
        k(f"ds_read_b64_tr_b16 v[{12+4*dt}:{13+4*dt}], v3 offset:{dt*32 + 16*144}")
    k(f"""
    v_lshlrev_b32 v8, 4, v{VL}
    v_lshlrev_b32 v9, 3, v{VL}
    v_and_b32 v34, 7, v{VL}
    v_lshl_add_u32 v34, v7, 3, v34
    v_lshlrev_b32 v35, 4, v34
    v_lshlrev_b32 v34, 3, v34
    s_mul_i32 s33, s54, 20736
    s_mul_i32 s35, s55, 4608
    s_add_u32 s33, s33, s35
    s_add_u32 s35, s33, 4096
    s_lshl_b32 s59, s54, 3
    s_add_u32 s59, s59, s55
    s_lshl_b32 s59, s59, 2
    s_add_u32 s59, s59, {FL_W}
    s_cmp_eq_u32 s55, 4
    s_waitcnt lgkmcnt(0)
    s_cbranch_scc1 fz_sr2
    """)
    for dt in range(4): k(f"buffer_store_dwordx4 v[{10+4*dt}:{13+4*dt}], v8, s[36:39], s33 offen offset:{dt*1024} sc1")
    k(xm(0x00ff00ff00ff00ff))
    k("buffer_store_dwordx4 v[26:29], v35, s[36:39], s35 offen sc1\ns_branch fz_sr3\nfz_sr2:")
    for dt in range(4): k(f"buffer_store_dwordx2 v[{10+4*dt}:{11+4*dt}], v9, s[36:39], s33 offen offset:{dt*512} sc1")
    k(xm(0x00ff00ff00ff00ff))
    k("buffer_store_dwordx2 v[26:27], v34, s[36:39], s33 offen offset:2048 sc1\nfz_sr3:\ns_mov_b64 exec, -1")
    k("fz_sr9:")

def phase2(k, o):
    NST = 32
    k("fz_cons:")
    k.stamp(10)
    ACC = 0; FX = 72; FY = 116
    VA, VB0, VB1, VAb, VB0b, VB1b = 196, 197, 198, 199, 200, 201
    VT, VBS, VO = 203, 204, 208
    k(f"""
    s_load_dwordx2 s[8:9], s[0:1], {ARG['b_sp']}
    s_lshl_b32 s30, s{P}, 3
    s_lshl_b32 s31, s{W}, 1
    s_add_u32 s30, s30, s31
    s_lshl_b32 s31, s30, 4
    s_add_u32 s31, s31, s{C}
    s_mul_i32 s31, s31, 4608
    s_add_u32 s32, s31, {16*4608}
    v_lshlrev_b32 v{VO}, 4, v{VL}
    v_lshlrev_b32 v{VO+1}, 3, v{VL}
    v_and_b32 v{VT}, 15, v{VL}
    v_lshrrev_b32 v{VB0b}, 4, v{VL}
    v_lshrrev_b32 v{VB1b}, 1, v{VT}
    v_xor_b32 v{VB0b}, v{VB0b}, v{VB1b}
    v_lshlrev_b32 v{VB0b}, 4, v{VB0b}
    v_lshl_add_u32 v{VB0b}, v{VT}, 7, v{VB0b}
    s_lshl_b32 s34, s{W}, 12
    s_add_u32 s34, s34, 18432
    v_add_u32 v{VB0b}, s34, v{VB0b}
    v_xor_b32 v{VB1b}, 64, v{VB0b}
    v_mov_b32 v{VAb}, v{VO}
    v_mov_b32 v{VA}, v{VO}
    v_mov_b32 v{VB0}, v{VB0b}
    v_mov_b32 v{VB1}, v{VB1b}
    s_lshl_b32 s34, s30, 4
    v_add_u32 v{VT}, s34, v{VT}
    v_lshlrev_b32 v{VT}, 1, v{VT}
    s_waitcnt lgkmcnt(0)
    global_load_ushort v{VBS}, v{VT}, s[8:9]
    global_load_ushort v{VBS+2}, v{VT}, s[8:9] offset:32
    s_mov_b32 s34, 0
    s_mov_b32 s35, 1
    s_setprio {o.get('prio', 2)}
    """)
    k(f"""
    s_lshl_b32 s28, s{P}, 1
    s_lshr_b32 s10, s{W}, 1
    s_add_u32 s28, s28, s10
    s_lshl_b32 s28, s28, 4
    s_add_u32 s28, s28, s{C}
    s_lshl_b32 s28, s28, 1
    s_and_b32 s10, s{W}, 1
    s_add_u32 s28, s28, s10
    s_lshl_b32 s28, s28, 2
    s_add_u32 s28, s28, {FL_H}
    """)
    g3 = Gemm3(k, o)
    g3.pre()
    def reads(F, half):
        vb = VB0 if half == 0 else VB1
        r = [f"ds_read_b128 v[{F+4*tb}:{F+4*tb+3}], v{vb} offset:{tb*2048}" for tb in range(2)]
        r += [f"ds_read_b128 v[{F+8+4*ft}:{F+8+4*ft+3}], v{VA} offset:{(ft*2+half)*1024}" for ft in range(9)]
        return r
    def mfmas(F, first=False):
        return [f"v_mfma_f32_16x16x32_bf16 v[{ACC+(ft*2+tb)*4}:{ACC+(ft*2+tb)*4+3}], v[{F+8+4*ft}:{F+8+4*ft+3}], v[{F+4*tb}:{F+4*tb+3}], " + ("0" if first else f"v[{ACC+(ft*2+tb)*4}:{ACC+(ft*2+tb)*4+3}]")
                for ft in range(9) for tb in range(2)]
    adv = [f"s_add_u32 s34, s34, {SLOT}", f"s_cmp_ge_u32 s34, {SLOT*NS}", "s_cselect_b32 s34, 0, s34",
           f"v_add_u32 v{VA}, s34, v{VAb}", f"v_add_u32 v{VB0}, s34, v{VB0b}", f"v_add_u32 v{VB1}, s34, v{VB1b}"]
    k("s_barrier")
    k.stamp(11)
    k("\n".join(reads(FX, 0)))
    k("s_waitcnt lgkmcnt(0)")
    k("\n".join(front(mfmas(FX, True), reads(FY, 1) + adv)))
    k(f"s_cmp_lt_u32 s53, 640\ns_cselect_b32 s53, 8, 99\ns_waitcnt lgkmcnt(0)")
    k("fz_cloop:")
    k(f"s_cmp_eq_u32 s35, s53\ns_cbranch_scc0 fz_nwf")
    set_flag(k, 210, 211, 59)
    k(f"fz_nwf:\ns_cmp_eq_u32 s35, 28\ns_cbranch_scc0 fz_nwg\nbuffer_load_dword v238, v237, s[{FLS}:{FLS+3}], 0 offen sc1\nfz_nwg:")
    k("s_barrier")
    k("\n".join(front(mfmas(FY), reads(FX, 0))))
    k("s_waitcnt lgkmcnt(0)")
    k("\n".join(front(mfmas(FX), reads(FY, 1) + adv + ["s_add_u32 s35, s35, 1"])))
    k(f"s_cmp_lt_u32 s35, {NST}\ns_waitcnt lgkmcnt(0)\ns_cbranch_scc1 fz_cloop")
    k("s_barrier")
    k("\n".join(mfmas(FY)))
    k.stamp(12)
    k.srd(12, 4, FRAG9, add=WS_H)
    g3.wcheck()
    k(f"""
    v_lshlrev_b32 v{VBS}, 16, v{VBS}
    v_lshlrev_b32 v{VBS+2}, 16, v{VBS+2}
    v_mov_b32 v{VBS+1}, v{VBS}
    v_mov_b32 v{VBS+3}, v{VBS+2}
    """)
    T = FX
    for tb in range(2):
        b = VBS + 2 * tb
        for q in range(5):
            nt = 2 if q < 4 else 1
            zr = Z1 + tb * 18 + q * 4
            oo = T + (tb * 5 + q) % 4 * 12
            for t in range(nt):
                a = ACC + ((2 * q + t) * 2 + tb) * 4
                for hh in range(2):
                    z = zr + t * 2 + hh; u = oo + 4 + 2 * ((2 * t + hh) % 4)
                    k(f"""
                    v_pk_add_f32 v[{a+2*hh}:{a+2*hh+1}], v[{a+2*hh}:{a+2*hh+1}], v[{b}:{b+1}]
                    v_lshlrev_b32 v{u}, 16, v{z}
                    v_and_b32 v{u+1}, 0xffff0000, v{z}
                    v_pk_mul_f32 v[{a+2*hh}:{a+2*hh+1}], v[{a+2*hh}:{a+2*hh+1}], v[{u}:{u+1}]
                    v_cvt_pk_bf16_f32 v{oo+t*2+hh}, v{a+2*hh}, v{a+2*hh+1}
                    """)
            if q < 4: k(f"buffer_store_dwordx4 v[{oo}:{oo+3}], v{VO}, s[12:15], s{31+tb} offen offset:{q*1024} sc1")
            else: k(f"s_add_u32 s33, s{31+tb}, 4096\nbuffer_store_dwordx2 v[{oo}:{oo+1}], v{VO+1}, s[12:15], s33 offen sc1")
    g3.wregs()
    k(f"v_mov_b32 v0, 0\nv_mov_b32 v1, s{NON}\ns_waitcnt vmcnt(46)\ns_mov_b64 exec, 1\nbuffer_store_dword v1, v0, s[{FLS}:{FLS+3}], s28 offen sc1\ns_mov_b64 exec, -1")
    k.stamp(13)
    g3.main()
    k("fz_loader:\ns_setprio 0")
    for j in range(16): k(f"v_mov_b32 v{198+j}, 0")
    VD = 220
    def kgen():
        L = k.label("nk")
        k(f"s_cmp_ge_u32 s58, 576\ns_cbranch_scc1 {L}")
        k(f"s_lshl_b32 s59, s56, 13\ns_add_u32 s59, s59, {KTAB}\ns_mov_b32 s54, {fbits(L2E_HI)}\ns_mov_b32 s55, {fbits(I2P_HI)}")
        k("\n".join(kgen_addr(k, o)))
        k("\n".join(kgen_dt()))
        k("s_mov_b32 s53, 0\nfz_kg:")
        k("\n".join(kgen_half()))
        k("s_cmp_eq_u32 s53, 1\ns_cbranch_scc1 fz_kg2")
        k(f"{L}:")
    def issue(n, kstep, sc, chk=False):
        if chk:
            L = k.label("pc"); D = k.label("pd")
            k(f"""
            {L}:
            s_lshr_b32 s33, s40, 10
            s_and_b32 s33, s33, 60
            s_lshr_b64 s[48:49], s[46:47], s33
            s_and_b32 s48, s48, 15
            s_cbranch_scc0 {D}
            s_add_u32 s62, s62, 1
            s_cmp_ge_u32 s62, {SPIN}
            s_cbranch_scc1 {D}
            buffer_load_dword v6, v4, s[{FLS}:{FLS+3}], s30 offen sc1
            s_waitcnt vmcnt(0)
            v_cmp_ne_u32 s[46:47], s{NON}, v6
            s_branch {L}
            {D}:
            """)
        for j in range(n):
            k((f"s_add_u32 m0, s41, {j*1024}\n" if j else "s_mov_b32 m0, s41\n") + f"buffer_load_dwordx4 v{VL_(j)}, s[12:15], s40 offen {sc}lds")
        k(f"s_add_u32 s40, s40, {kstep}\ns_and_b32 s40, s40, {32*kstep - 1}\ns_add_u32 s41, s41, {SLOT}\ns_cmp_ge_u32 s41, {SLOT*NS}\ns_cselect_b32 s41, s44, s41")
    VL_ = lambda j: 112 + j
    def ring(tag, n, kstep, sc):
        k(f"s_mov_b32 s35, 0\nfz_l{tag}:\ns_waitcnt vmcnt({2*n})\ns_barrier")
        issue(n, kstep, sc, tag == "A")
        k(f"s_add_u32 s35, s35, 1\ns_cmp_lt_u32 s35, {NST-3}\ns_cbranch_scc1 fz_l{tag}")
        for r in (2, 1, 0): k(f"s_waitcnt vmcnt({n*r})\ns_barrier")
        if tag == "B": k("s_barrier")
    k(f"s_cmp_lg_u32 s{W}, 4\ns_cbranch_scc1 fz_ldB")
    k.srd(12, 4, FRAG9, add=WS_Z2)
    k(f"s_lshl_b32 s40, s{P}, 12" if o.get('rot') else "s_mov_b32 s40, 0")
    k(f"s_mul_i32 s31, s{C}, {9*65536}\nv_lshlrev_b32 v3, 4, v{VL}\nv_add_u32 v3, s31, v3\ns_mov_b32 s44, 0\ns_mov_b32 s41, 0")
    for j in range(18): k(f"v_add_u32 v{VL_(j)}, {(j >> 1)*65536 + (j & 1)*1024}, v3")
    k(f"s_lshl_b32 s30, s{C}, 8\ns_add_u32 s30, s30, {FL_2}\nv_lshlrev_b32 v4, 2, v{VL}\ns_mov_b64 s[46:47], -1\ns_mov_b32 s62, 0")
    issue(18, 2048, "sc1 ", True)
    k.stamp(10)
    for _ in range(2): issue(18, 2048, "sc1 ", True)
    k.stamp(11)
    ring("A", 18, 2048, "sc1 ")
    k("s_branch fz_fin")
    k(f"fz_ldB:\ns_load_dwordx2 s[6:7], s[0:1], {ARG['w_sp']}\ns_waitcnt lgkmcnt(0)")
    k.srd(12, 6, 2048 * 4096)
    k(f"s_cmp_lg_u32 s{W}, 5\ns_cbranch_scc1 fz_kg0")
    VL_ = lambda j: 198 + j
    k(f"""
    v_lshrrev_b32 v3, 3, v{VL}
    v_and_b32 v4, 7, v{VL}
    v_lshrrev_b32 v5, 4, v{VL}
    v_xor_b32 v4, v4, v5
    v_and_b32 v5, 1, v4
    v_lshlrev_b32 v5, 1, v5
    v_bfe_u32 v6, v4, 1, 1
    v_and_b32 v4, 4, v4
    v_or_b32 v4, v4, v5
    v_or_b32 v4, v4, v6
    v_lshlrev_b32 v4, 4, v4
    v_lshl_add_u32 v4, v3, 12, v4
    s_lshl_b32 s31, s{P}, 19
    v_add_u32 v4, s31, v4
    v_xor_b32 v5, 64, v4
    {"s_lshl_b32 s40, s%d, 8" % P if o.get('rot') else "s_mov_b32 s40, 0"}
    s_mov_b32 s44, 18432
    s_mov_b32 s41, 18432
    """)
    for j in range(16): k(f"v_add_u32 v{VL_(j)}, {j*32768}, v{4 + (j & 1)}")
    for _ in range(3): issue(16, 128, "")
    k("fz_kg0:")
    kgen()
    k.stamp(11)
    k(f"s_cmp_lg_u32 s{W}, 5\ns_cbranch_scc1 fz_idle")
    ring("B", 16, 128, "")
    k(f"""
    s_branch fz_ssm
    fz_idle:
    s_mov_b32 s35, 0
    fz_idl:
    s_barrier
    s_add_u32 s35, s35, 1
    s_cmp_lt_u32 s35, 33
    s_cbranch_scc1 fz_idl
    """)
    k("fz_ssm:")
    k.stamp(12)
    k(f"s_cmp_ge_u32 s58, 576\ns_cbranch_scc1 fz_fin\ns_mov_b32 s57, s56\ns_setprio {o.get('prio3', 3)}")
    conv_pre(k, o)
    k(f"s_lshl_b32 s33, s56, 13\ns_add_u32 s33, s33, {KTAB - 4608}\ns_sub_u32 s33, s59, s33")
    for r in list(range(KG['WAD'], KG['WAD'] + 16)) + list(range(KG['RW'], KG['RW'] + 4)) + list(range(KG['RS'], KG['RS'] + 10)):
        k(f"v_add_u32 v{r}, s33, v{r}")
    k("s_mov_b32 s53, 1\ns_branch fz_kg\nfz_kg2:")
    k.stamp(8)
    conv(k, o)

def gen_fused(prof=False, **o):
    OPT.update(o)
    k = Kern(NAME + "_kernel", 256, 512, 163840)
    k.prof = prof; k.allreal = bool(o.get('real', 0))
    k.stamp(0, True); k.stamp(1)
    if o.get('dbgt'): k("s_memrealtime s[64:65]")
    phase0(k, o); phase2(k, o)
    k("fz_fin:")
    if o.get('dbgt'):
        k(f"""
        s_waitcnt vmcnt(0)
        s_memrealtime s[66:67]
        s_load_dwordx2 s[68:69], s[0:1], {ARG['dbg']}
        s_waitcnt lgkmcnt(0)
        s_cmp_ge_u32 s2, 8
        s_cbranch_scc1 fz_end
        s_cmp_lg_u32 s22, 0
        s_cbranch_scc1 fz_end
        s_lshl_b32 s70, s2, 3
        v_mov_b32 v0, s70
        v_mov_b32 v2, s64
        v_mov_b32 v3, s66
        s_mov_b64 exec, 1
        global_store_dwordx2 v0, v[2:3], s[68:69]
        """)
    if prof:
        k("s_waitcnt vmcnt(0)"); k.stamp(15, True)
        k.prof_dump(0, 4, W, 16)
    k("fz_end:")
    return k

def emit_single(k, path):
    from gen import header
    s = header() + f"; @launch grid=({k.grid},1,1) block=({k.block},1,1) lds={k.lds}\n"
    s += '.amdgcn_target "amdgcn-amd-amdhsa--gfx950"\n.text\n' + k.text() + '.section .rodata,"a"\n' + k.desc()
    open(path, "w").write(s)

if __name__ == "__main__":
    opts = {a.split("=")[0]: int(a.split("=")[1]) for a in sys.argv[2:] if "=" in a}
    emit_single(gen_fused(prof="prof" in sys.argv, **opts), sys.argv[1])
```

```python
import sys; sys.path.insert(0, "dev")
from common6 import *
SLOT = 34816; NS = 4
XTL = 104448; RPL = 114688
Z1 = 160
WOFF = 16384


ROWA = 139264
COLP = ROWA + 1024
WPRIV = COLP + 2 * 768
XTS = WPRIV + 1024
assert XTS + 4 * 5120 <= 163840
KTAB = 104448
WS_RS = WS_ST + 0x90000
def phase0(k, o):
    k(f"""
    s_cmp_ge_u32 s2, 256
    s_cbranch_scc1 fz_end
    s_load_dwordx2 s[4:5], s[0:1], {ARG['ws']}
    s_load_dwordx2 s[6:7], s[0:1], {ARG['x']}
    s_load_dwordx2 s[8:9], s[0:1], {ARG['w_in']}
    v_lshrrev_b32 v1, 6, v0
    v_and_b32 v{VL}, 63, v0
    v_readfirstlane_b32 s{W}, v1
    s_and_b32 s30, s2, 7
    s_lshr_b32 s31, s2, 3
    s_and_b32 s{P}, s30, 1
    s_lshl_b32 s{P}, s{P}, 3
    s_lshr_b32 s32, s31, 2
    s_add_u32 s{P}, s{P}, s32
    s_lshr_b32 s{C}, s30, 1
    s_lshl_b32 s{C}, s{C}, 2
    s_and_b32 s32, s31, 3
    s_add_u32 s{C}, s{C}, s32
    s_cmp_lt_u32 s{W}, 4
    s_cbranch_scc1 fz_c1
    s_cmp_lt_u32 s{W}, 6
    s_cbranch_scc1 fz_l1W
    """)
    p1_loader(k, o, "X")
    k("fz_l1W:")
    p1_loader(k, o, "W")
    k("fz_c1:")
    p1_consumer(k, o)

def get_nonce(k):
    k(f"s_add_u32 s10, s4, {WS_FL}\ns_addc_u32 s11, s5, 0\ns_load_dword s{NON}, s[10:11], 0")
    k.srd(FLS, 4, FL_BYTES, add=WS_FL)
def fin_nonce(k):
    k(f"s_waitcnt lgkmcnt(0)\ns_mul_i32 s{NON}, s{NON}, 0x9E3779B1\ns_add_u32 s{NON}, s{NON}, 0x7F4A7C15")

def p1_addr(k, VX0b, VX1b, VWb, tq_s):
    k(f"""
    v_and_b32 v3, 15, v{VL}
    v_lshrrev_b32 v4, 4, v{VL}
    v_lshrrev_b32 v5, 1, v3
    v_xor_b32 v5, v5, v4
    v_lshlrev_b32 v5, 4, v5
    v_lshl_add_u32 v5, v3, 7, v5
    s_lshl_b32 s32, s{tq_s}, 12
    v_add_u32 v{VX0b}, s32, v5
    v_xor_b32 v{VX1b}, 64, v{VX0b}
    v_bfe_u32 v5, v{VL}, 2, 2
    v_and_b32 v6, 1, v4
    v_lshl_add_u32 v5, v6, 2, v5
    v_lshrrev_b32 v6, 1, v4
    v_lshl_add_u32 v5, v6, 4, v5
    v_mul_u32_u24 v5, 288, v5
    v_and_b32 v6, 3, v{VL}
    v_lshl_add_u32 v5, v6, 3, v5
    v_add_u32 v{VWb}, {WOFF}, v5
    """)

def p1_loader(k, o, typ):
    VD = 200; n = 8 if typ == "X" else 9
    k(f"s_sub_u32 s57, s{W}, 4      ; lw\ns_setprio {o.get('prioL', 3)}")
    if typ == "X":
        k(f"""
        v_lshrrev_b32 v3, 3, v{VL}
        v_and_b32 v4, 7, v{VL}
        v_lshrrev_b32 v5, 4, v{VL}
        v_xor_b32 v4, v4, v5
        v_mul_u32_u24 v3, 1152, v3
        v_lshl_add_u32 v3, v4, 4, v3
        v_xor_b32 v4, 64, v3
        s_sub_u32 s31, s{W}, 6
        s_lshl_b32 s30, s{P}, 7
        s_lshl_b32 s32, s31, 6
        s_add_u32 s30, s30, s32
        s_mul_i32 s30, s30, 1152
        s_lshl_b32 s44, s31, 13
        """)
        k("s_mov_b32 s40, 0\ns_waitcnt lgkmcnt(0)")
        k.srd(12, 6, XBYTES)
        for j in range(8):
            k(f"v_add_u32 v{VD+j}, s30, v{3 + (j & 1)}\ns_add_u32 s30, s30, {8*1152}\ns_add_u32 m0, s44, {j*1024}\nbuffer_load_dwordx4 v{VD+j}, s[12:15], s40 offen lds")
        kstep, k0 = 128, 0
    else:
        k(f"s_mul_i32 s32, s{C}, 288\ns_mov_b32 s33, 3641\ns_mul_i32 s31, s57, {9*64}\ns_mul_i32 s44, s57, {9*1024}\ns_add_u32 s44, s44, {WOFF}\nv_add_u32 v2, s31, v{VL}")
        k("s_mov_b32 s40, 4608\ns_waitcnt lgkmcnt(0)")
        k.srd(12, 8, 576 * 9216)
        for j in range(9):
            k(f"""
            v_add_u32 v3, {64*j}, v2
            v_mul_lo_u32 v4, v3, s33
            v_lshrrev_b32 v4, 16, v4
            v_mul_u32_u24 v5, 18, v4
            v_sub_u32 v5, v3, v5
            v_and_b32 v6, 0x33, v4
            v_bfe_u32 v7, v4, 2, 1
            v_lshl_or_b32 v6, v7, 3, v6
            v_bfe_u32 v7, v4, 3, 1
            v_lshl_or_b32 v6, v7, 2, v6
            v_mul_u32_u24 v6, 9216, v6
            v_lshl_add_u32 v6, v5, 4, v6
            v_add_u32 v{VD+j}, s32, v6
            s_add_u32 m0, s44, {j*1024}
            buffer_load_dwordx4 v{VD+j}, s[12:15], s40 offen lds
            """)
        kstep = 64 * 9216
    k("s_mov_b32 s41, s44\ns_mov_b32 s43, 0")
    tch = 1 if (typ == "X" and o.get('touch', 1) == 1) else 0
    TV = 209
    def issue(touch=True):
        L = []
        for j in range(8 if typ == 'X' else 9):
            L.append((f"s_add_u32 m0, s41, {j*1024}\n" if j else "s_mov_b32 m0, s41\n") + f"buffer_load_dwordx4 v{VD+j}, s[12:15], s40 offen {'sc1 ' if typ == 'X' else ''}lds")
        if tch and touch: L.append(f"s_cmp_lt_u32 s49, s51\ns_cselect_b32 s52, s49, {OOB}\nbuffer_load_dword v254, v{TV}, s[28:31], s52 offen\ns_add_u32 s49, s49, s50")
        L.append(f"s_add_u32 s40, s40, {kstep}\ns_add_u32 s41, s41, {SLOT}\ns_cmp_ge_u32 s41, {SLOT*NS}\ns_cselect_b32 s41, s44, s41")
        L.append(f"s_add_u32 s43, s43, 1\ns_cmp_eq_u32 s43, 9\ns_cselect_b32 s40, 0, s40")
        return L
    k("\n".join(issue(False)[n:]))
    for _ in range(2): k("\n".join(issue(False)))
    if tch:
        k(f"""
        s_load_dwordx2 s[46:47], s[0:1], {ARG['w_sp']}
        s_load_dwordx2 s[54:55], s[0:1], {ARG['w_out']}
        v_mov_b32 v6, {OOB}
        v_and_b32 v3, 7, v{VL}
        v_lshrrev_b32 v4, 3, v{VL}
        v_lshlrev_b32 v3, 12, v3
        v_lshl_add_u32 v3, v4, 7, v3
        s_lshl_b32 s31, s2, 15
        v_add_u32 v3, s31, v3
        s_lshr_b32 s33, s2, {4 if o.get('rot') else 16}
        s_lshl_b32 s33, s33, 8
        v_lshl_add_u32 v4, v4, 7, s33
        v_and_b32 v4, 4095, v4
        v_and_b32 v3, 7, v{VL}
        v_lshl_add_u32 v3, v3, 12, v4
        v_add_u32 v3, s31, v3
        v_mov_b32 v{TV}, v3
        s_mov_b32 s49, 1000
        s_mov_b32 s50, 1
        s_mov_b32 s51, 1
        s_waitcnt lgkmcnt(0)
        """)
        k.srd(28, 46, 2048 * 4096)
        k(f"s_cmp_eq_u32 s{W}, 6\ns_cbranch_scc1 fz_t6")
        k.srd(28, 8, 576 * 9216)
        k(f"""
        s_mul_i32 s33, s2, {3*9216}
        s_cmp_lt_u32 s2, 192
        s_cselect_b32 s33, s33, {OOB}
        v_lshlrev_b32 v3, 7, v{VL}
        v_add_u32 v3, s33, v3
        v_cmp_gt_u32 vcc, 36, v{VL}
        v_cndmask_b32 v{TV}, v6, v3, vcc
        s_mov_b32 s49, {-9216 * o.get('tz1', 1)}
        s_mov_b32 s50, 9216
        s_mov_b32 s51, {3*9216}
        fz_t6:
        """)
    n0 = n; n = n + tch
    get_nonce(k)
    VX0, VX1, VW, VX0b, VX1b, VWb = 210, 211, 212, 213, 214, 215
    p1_addr(k, VX0b, VX1b, VWb, 57)
    CA = 44
    WF = 56
    ON = 108
    T = 112
    for i in range(4): k(f"v_mov_b32 v{ON+i}, 0x3f803f80")
    for i in range(12): k(f"v_mov_b32 v{CA+i}, 0")
    k(f"s_lshl_b32 s36, s57, 5\nv_add_u32 v{VWb}, s36, v{VWb}\nv_mov_b32 v{VW}, v{VWb}\ns_mov_b32 s34, 0\ns_mov_b32 s35, 0")
    k.srd(24, 4, 2048 * 16, add=WS_RS)
    k(f"s_lshl_b32 s36, s{P}, 7\ns_and_b32 s37, s57, 1\ns_lshl_b32 s37, s37, 6\ns_add_u32 s36, s36, s37\ns_lshl_b32 s36, s36, 4\nv_lshlrev_b32 v{T+8}, 4, v{VL}")
    fin_nonce(k)
    adv = f"s_add_u32 s34, s34, {SLOT}\ns_cmp_ge_u32 s34, {SLOT*NS}\ns_cselect_b32 s34, 0, s34\nv_add_u32 v{VW}, s34, v{VWb}"
    nt = 3 if typ == "W" else 2
    def stage(z2, do_issue, wait):
        k(f"s_waitcnt vmcnt({wait})\ns_barrier")
        rd_ = []; mf = []
        if z2:
            for hf in range(2):
                for t in range(nt):
                    f = WF + (hf * 3 + t) * 4
                    for rd in range(2): rd_.append(f"ds_read_b64_tr_b16 v[{f+2*rd}:{f+2*rd+1}], v{VW} offset:{hf*32*288 + rd*8*288 + t*128}")
                    mf.append(f"v_mfma_f32_16x16x32_bf16 v[{CA+4*t}:{CA+4*t+3}], v[{ON}:{ON+3}], v[{f}:{f+3}], v[{CA+4*t}:{CA+4*t+3}]")
        dm = issue() if do_issue else []
        if z2:
            k("\n".join(rd_ + dm[:2]))
            k("s_waitcnt lgkmcnt(0)")
            k("\n".join(front(dm[2:], mf)))
            k(adv)
        else: k("\n".join(dm))
        k("s_add_u32 s35, s35, 1")
    def gran_check(vd, va, so, full):
        L = k.label("rp"); D = k.label("rd")
        k(f"""
        s_mov_b32 s62, 0
        {"" if full else xm(0xffffffff)}
        {L}:
        v_cmp_ne_u32 vcc, s{NON}, v{vd+1}
        v_cmp_ne_u32 s[60:61], s{NON}, v{vd+3}
        s_or_b64 vcc, vcc, s[60:61]
        s_cbranch_vccz {D}
        s_add_u32 s62, s62, 1
        s_cmp_ge_u32 s62, {SPIN}
        s_cbranch_scc1 {D}
        buffer_load_dwordx4 v[{vd}:{vd+3}], v{va}, s[24:27], s{so} offen sc1
        s_waitcnt vmcnt(0)
        s_branch {L}
        {D}:
        """)
    k(f"fz_l1{typ}a:")
    stage(True, True, 2 * n0)
    if typ == "X":
        L = k.label("rg")
        k(f"s_cmp_eq_u32 s35, 5\ns_cbranch_scc0 {L}\nbuffer_load_dwordx4 v[{T+4}:{T+7}], v{T+8}, s[24:27], s36 offen sc1\n{L}:")
    k(f"s_cmp_lt_u32 s35, 6\ns_cbranch_scc1 fz_l1{typ}a")
    if typ == "X":
        k(f"s_waitcnt vmcnt({n})")
        gran_check(T + 4, T + 8, 36, True)
        k.srd(12, 4, XBYTES, add=WS_XN)
        k(f"""
        v_lshlrev_b32 v{T}, 2, v{VL}
        s_sub_u32 s33, s{W}, 6
        s_lshl_b32 s33, s33, 8
        s_add_u32 s33, s33, {ROWA}
        v_add_u32 v{T}, s33, v{T}
        ds_write_b32 v{T}, v{T+4}
        ds_write_b32 v{T}, v{T+6} offset:512
        """)
    k(f"fz_l1{typ}a2:")
    stage(True, True, 2 * n0)
    k(f"s_cmp_lt_u32 s35, 9\ns_cbranch_scc1 fz_l1{typ}a2")
    k(f"s_lshl_b32 s33, s57, 6\ns_add_u32 s33, s33, {COLP}\nv_lshlrev_b32 v{T}, 2, v{VL}\nv_add_u32 v{T}, s33, v{T}\n{xm(0xffff)}")
    for t in range(nt): k(f"ds_write_b32 v{T}, v{CA+4*t} offset:{t*256}")
    k("s_mov_b64 exec, -1\ns_waitcnt lgkmcnt(0)\ns_barrier")
    k.stamp(3)
    k("\n".join(issue()))
    if tch:
        L = k.label("t7")
        k(f"s_cmp_eq_u32 s{W}, 6\ns_cbranch_scc1 {L}")
        k.srd(28, 54, WOBYTES)
        k(f"s_mul_i32 s33, s2, {81*128}\nv_lshlrev_b32 v3, 7, v{VL}\nv_add_u32 v3, s33, v3\nv_mov_b32 v6, {OOB}\nv_cmp_gt_u32 vcc, 27, v{VL}\nv_cndmask_b32 v{TV}, v6, v3, vcc\ns_mov_b32 s49, 0\ns_mov_b32 s50, {27*128}\ns_mov_b32 s51, {81*128}\n{L}:")
    ex = 0
    if typ == "X":
        k.srd(24, 4, XBYTES, add=WS_XT)
        k(f"""
        v_bfe_u32 v{T}, v{VL}, 2, 2
        v_mul_u32_u24 v{T}, 1216, v{T}
        v_and_b32 v{T+1}, 3, v{VL}
        v_lshl_add_u32 v{T}, v{T+1}, 3, v{T}
        v_lshrrev_b32 v{T+1}, 4, v{VL}
        v_lshl_add_u32 v{T}, v{T+1}, 5, v{T}
        s_sub_u32 s37, s{W}, 6
        s_lshl_b32 s33, s37, 9
        s_add_u32 s33, s33, {XTS}
        v_add_u32 v{T}, s33, v{T}
        s_mul_i32 s33, s2, 9216
        s_lshl_b32 s36, s37, 12
        s_add_u32 s33, s33, s36
        s_lshl_b32 s36, s2, 1
        s_add_u32 s36, s36, s37
        s_lshl_b32 s36, s36, 2
        s_add_u32 s36, s36, {FL_T}
        """)
        for ps in range(5):
            for rd in range(2): k(f"ds_read_b64_tr_b16 v[{124+4*ps+2*rd}:{124+4*ps+2*rd+1}], v{T} offset:{rd*4*1216 + ps*128}")
        k("s_waitcnt lgkmcnt(0)")
        for ps in range(5): k(f"buffer_store_dwordx4 v[{124+4*ps}:{124+4*ps+3}], v{T+8}, s[24:27], s33 offen sc1\ns_add_u32 s33, s33, 1024")
        ex = 5
        nrow = o.get('trows', 4)
        k.srd(24, 46, 2048 * 4096)
        k(f"s_lshl_b32 s33, s2, 1\ns_add_u32 s33, s33, s37\ns_lshl_b32 s33, s33, 14\nv_lshlrev_b32 v{T+2}, 7, v{VL}")
        for i in range(2): k(f"buffer_load_dword v254, v{T+2}, s[24:27], s33 offen\ns_add_u32 s33, s33, 8192")
        ex = 7
    elif o.get('prew', 0):
        k.srd(24, 4, FRAG9, add=WS_Z2)
        k(f"s_mul_i32 s33, s{C}, {9*64}\ns_lshl_b32 s36, s{P}, 2\ns_add_u32 s33, s33, s36\ns_lshl_b32 s36, s57, 1\ns_add_u32 s33, s33, s36\ns_lshl_b32 s33, s33, 10")
        for i in range(9):
            k(f"buffer_store_dwordx4 v[{ON}:{ON+3}], v{T+8}, s[24:27], s33 offen sc1\nbuffer_store_dwordx4 v[{ON}:{ON+3}], v{T+8}, s[24:27], s33 offen offset:1024 sc1\ns_add_u32 s33, s33, 65536")
        ex = 18
    stage(False, False, 3 * n + tch + ex)
    for _ in range(3): stage(False, True, 2 * n + tch + ex)
    stage(False, True, 2 * n + tch)
    if typ == "X":
        k(f"v_mov_b32 v{T}, 0\nv_mov_b32 v{T+1}, s{NON}\ns_mov_b64 exec, 1\nbuffer_store_dword v{T+1}, v{T}, s[{FLS}:{FLS+3}], s36 offen sc1\ns_mov_b64 exec, -1")
    stage(False, True, 2 * n + tch)
    k(f"""
    s_sub_u32 s30, 7, s{W}
    s_lshl_b32 s58, s2, 1
    s_add_u32 s58, s58, s30
    s_add_u32 s59, s2, 512
    s_cmp_eq_u32 s30, 2
    s_cselect_b32 s58, s59, s58
    s_cmp_eq_u32 s30, 3
    s_cselect_b32 s58, 1000, s58
    s_mov_b32 s56, s30
    """)
    kgen_setup(k, o)
    for r in (2, 1, 0): stage(False, False, r * n + tch + 14)
    k("s_waitcnt vmcnt(0)\ns_barrier")
    k.stamp(6)
    k("s_branch fz_loader")

def p1_consumer(k, o):
    A2, A1 = 0, 72
    FX, FY = 144, 188
    VX0, VX1, VW, VX0b, VX1b, VWb = 232, 233, 234, 235, 236, 237
    NMR, RR = 238, 240
    VC1, VONE = 242, 244
    V16 = 246; VPG, VPR = 247, 248
    if o.get('ctouch', 1):
        k(f"""
        s_getpc_b64 s[28:29]
        fz_pc:
        s_sub_u32 s28, s28, fz_pc-{NAME}_kernel
        s_subb_u32 s29, s29, 0
        s_lshr_b32 s30, s2, 3
        s_lshl_b32 s30, s30, 2
        s_add_u32 s30, s30, s{W}
        s_mul_i32 s30, s30, {o.get('cl', 3)*128}
        v_lshlrev_b32 v3, 7, v{VL}
        v_add_u32 v3, s30, v3
        v_min_u32 v3, fz_end-{NAME}_kernel, v3
        {xm((1 << o.get('cl', 3)) - 1)}
        global_load_dword v254, v3, s[28:29]
        s_mov_b64 exec, -1
        """)
    k(f"s_load_dwordx2 s[24:25], s[0:1], {ARG['w_sp']}\ns_load_dwordx2 s[26:27], s[0:1], {ARG['w_out']}\ns_waitcnt lgkmcnt(0)")
    k.srd(12, 6, XBYTES)
    k(f"""
    s_lshl_b32 s30, s2, 2
    s_add_u32 s30, s30, s{W}
    s_mul_i32 s31, s30, 2304
    v_lshlrev_b32 v2, 4, v{VL}
    v_mov_b32 v3, {OOB}
    v_cmp_gt_u32 vcc, 36, v{VL}
    v_cndmask_b32 v2, v3, v2, vcc
    buffer_load_dwordx4 v[8:11], v2, s[12:15], s31 offen
    buffer_load_dwordx4 v[12:15], v2, s[12:15], s31 offen offset:576
    buffer_load_dwordx4 v[16:19], v2, s[12:15], s31 offen offset:1152
    buffer_load_dwordx4 v[20:23], v2, s[12:15], s31 offen offset:1728
    """)
    get_nonce(k)
    p1_addr(k, VX0b, VX1b, VWb, W)
    k(f"""
    v_mov_b32 v{VX0}, v{VX0b}
    v_mov_b32 v{VX1}, v{VX1b}
    v_mov_b32 v{VW}, v{VWb}
    s_mov_b32 s34, 0
    s_mov_b32 s56, {fbits(C2)}
    s_mov_b32 s57, {fbits(C2)}
    v_mov_b32 v{VC1}, {fbits(C1)}
    v_mov_b32 v{VC1+1}, {fbits(C1)}
    v_mov_b32 v{VONE}, 1.0
    v_mov_b32 v{VONE+1}, 1.0
    v_lshlrev_b32 v{V16}, 4, v{VL}
    s_lshl_b32 s33, s{W}, 8
    s_add_u32 s33, s33, {WPRIV}
    v_lshrrev_b32 v3, 4, v{VL}
    v_lshlrev_b32 v3, 4, v3
    v_add_u32 v{VPG}, s33, v3
    v_and_b32 v3, 31, v{VL}
    v_lshlrev_b32 v3, 2, v3
    v_add_u32 v{VPR}, s33, v3
    s_setprio {o.get('prio1', 2)}
    """)
    fin_nonce(k)
    if o.get('touch', 1):
        k(f"""
        v_mul_u32_u24 v3, 43, v{VL}
        v_lshrrev_b32 v3, 8, v3
        v_mul_u32_u24 v4, 6, v3
        v_sub_u32 v4, v{VL}, v4
        s_lshl_b32 s31, s30, 1
        v_add_u32 v3, s31, v3
        v_mul_u32_u24 v3, 1152, v3
        v_lshl_add_u32 v3, v4, 7, v3
        s_mul_i32 s31, s30, 14
        v_add_u32 v7, s31, v{VL}
        v_min_u32 v7, 13823, v7
        s_mov_b32 s32, 29128
        v_mul_lo_u32 v4, v7, s32
        v_lshrrev_b32 v4, 20, v4
        v_mul_u32_u24 v5, 36, v4
        v_sub_u32 v5, v7, v5
        v_mul_u32_u24 v4, 9216, v4
        v_lshl_add_u32 v4, v5, 7, v4
        v_add_u32 v4, {192*9216 + 4608}, v4
        {xm(0xfff)}
        global_load_dword v254, v3, s[6:7] offset:384
        {xm((1 << 14) - 1)}
        global_load_dword v254, v4, s[8:9]
        s_mov_b64 exec, -1
        """)

    X = 32; S = 70
    k(f"v_cmp_gt_u32 vcc, 36, v{VL}\ns_waitcnt vmcnt({2 if o.get('touch', 1) else 0})")
    for i in range(16): k(f"v_lshlrev_b32 v{X+2*i}, 16, v{8+i}\nv_and_b32 v{X+2*i+1}, 0xffff0000, v{8+i}")
    for r in range(2):
        b = X + 16 * r; s_ = S + 8 * r
        k(f"v_pk_add_f32 v[{s_}:{s_+1}], v[{b}:{b+1}], v[{b+2}:{b+3}]")
    for i in range(2, 8):
        for r in range(2):
            b = X + 16 * r; s_ = S + 8 * r
            k(f"v_pk_add_f32 v[{s_}:{s_+1}], v[{s_}:{s_+1}], v[{b+2*i}:{b+2*i+1}]")
    for r in range(2): k(f"v_add_f32 v{S+8*r}, v{S+8*r}, v{S+8*r+1}")
    dpp_sum16(k, [S, S + 8])
    for r in range(2): xsum_rows(k, S + 8 * r, S + 8 * r + 1)
    for r in range(2):
        s_ = S + 8 * r
        k(f"v_mul_f32 v{s_}, {1.0/576!r}, v{s_}\nv_cndmask_b32 v{s_+6}, 0, v{s_}, vcc\nv_mov_b32 v{s_+7}, v{s_+6}")
    for i in range(8):
        for r in range(2):
            b = X + 16 * r; s_ = S + 8 * r
            k(f"v_pk_add_f32 v[{s_+4}:{s_+5}], v[{b+2*i}:{b+2*i+1}], v[{s_+6}:{s_+7}] neg_lo:[0,1] neg_hi:[0,1]")
            if i == 0: k(f"v_pk_mul_f32 v[{s_+2}:{s_+3}], v[{s_+4}:{s_+5}], v[{s_+4}:{s_+5}]")
            else: k(f"v_pk_fma_f32 v[{s_+2}:{s_+3}], v[{s_+4}:{s_+5}], v[{s_+4}:{s_+5}], v[{s_+2}:{s_+3}]")
    for r in range(2): k(f"v_add_f32 v{S+8*r+2}, v{S+8*r+2}, v{S+8*r+3}")
    dpp_sum16(k, [S + 2, S + 10])
    for r in range(2): xsum_rows(k, S + 8 * r + 2, S + 8 * r + 3)
    k.srd(36, 4, 2048 * 16, add=WS_RS)
    for r in range(2):
        s_ = S + 8 * r
        k(f"v_mul_f32 v{s_+2}, {1.0/576!r}, v{s_+2}")
        ln_finish(k, s_, s_ + 2)
        k(f"v_mul_f32 v{s_}, -v{s_}, v{s_+2}\nv_mov_b32 v{s_+1}, s{NON}\nv_mov_b32 v{s_+3}, s{NON}")
    for i in range(8):
        for r in range(2):
            a = X + 16 * r + 2 * i; s_ = S + 8 * r
            k(f"v_pk_fma_f32 v[{a}:{a+1}], v[{a}:{a+1}], v[{s_+2}:{s_+3}], v[{s_}:{s_+1}] op_sel_hi:[1,0,0]")
    for i in range(16): k(f"v_cvt_pk_bf16_f32 v{8+i}, v{X+2*i}, v{X+2*i+1}")
    k(f"s_mul_i32 s31, s{W}, {2*1216}\ns_add_u32 s31, s31, {XTS}\nv_lshlrev_b32 v3, 4, v{VL}\nv_add_u32 v3, s31, v3\n{xm((1 << 36) - 1)}")
    for i in range(4): k(f"ds_write_b128 v3, v[{8+4*i}:{11+4*i}] offset:{(i >> 1)*1216 + (i & 1)*576}")
    k("s_mov_b64 exec, -1")
    k.srd(40, 4, XBYTES, add=WS_XN)
    k(f"s_mul_i32 s31, s30, 2304")
    for i in range(4): k(f"buffer_store_dwordx4 v[{8+4*i}:{11+4*i}], v2, s[40:43], s31 offen offset:{576*i} sc1")
    def rowgran():
        k(f"""
        s_lshl_b32 s31, s30, 5
        v_mov_b32 v249, 0
        s_waitcnt vmcnt(0)
        s_mov_b64 exec, 1
        buffer_store_dwordx4 v[112:115], v249, s[36:39], s31 offen sc1
        buffer_store_dwordx4 v[116:119], v249, s[36:39], s31 offen offset:16 sc1
        s_mov_b64 exec, -1
        """)
    for i in range(4): k(f"v_mov_b32 v{112+i}, v{S+i}\nv_mov_b32 v{116+i}, v{S+8+i}")
    k("s_waitcnt lgkmcnt(0)")
    def reads(F, half):
        vx = VX0 if half == 0 else VX1
        r = [f"ds_read_b128 v[{F+4*tb}:{F+4*tb+3}], v{vx} offset:{tb*2048}" for tb in range(2)]
        if o.get('nord1') == 1: return r
        if o.get('nord1') == 2: return [f"ds_read_b128 v[{F+8+4*i}:{F+8+4*i+3}], v{V16} offset:{i*1024}" for i in range(9)] + r
        for i in range(9):
            for rd in range(2):
                b = F + 8 + 4 * i + 2 * rd
                r.append(f"ds_read_b64_tr_b16 v[{b}:{b+1}], v{VW} offset:{half*32*288 + rd*8*288 + i*32}")
        return r
    def mfmas(F, z2, first=False):
        out = []; ACC = A2 if z2 else A1
        for i in range(9):
            for tb in range(2):
                a = ACC + (i * 2 + tb) * 4
                wf = f"v[{F+8+4*i}:{F+8+4*i+3}]"; xf = f"v[{F+4*tb}:{F+4*tb+3}]"
                A, B = (xf, wf) if z2 else (wf, xf)
                out.append(f"v_mfma_f32_16x16x32_bf16 v[{a}:{a+3}], {A}, {B}, {'0' if first else 'v[%d:%d]' % (a, a+3)}")
        return out
    adv = [f"s_add_u32 s34, s34, {SLOT}\ns_cmp_ge_u32 s34, {SLOT*NS}\ns_cselect_b32 s34, 0, s34",
           f"v_add_u32 v{VX0}, s34, v{VX0b}\nv_add_u32 v{VX1}, s34, v{VX1b}\nv_add_u32 v{VW}, s34, v{VWb}"]
    def gemm(z2):
        name = f"fz_g1{'a' if z2 else 'b'}"
        k("s_barrier")
        k.stamp(2 if z2 else 5)
        k("\n".join(reads(FX, 0)))
        k("s_waitcnt lgkmcnt(0)")
        k("\n".join(front2(mfmas(FX, z2, True), reads(FY, 1) + adv, o.get('per', 2))))
        k(f"s_mov_b32 s35, 1\ns_waitcnt lgkmcnt(0)\n{name}:\ns_barrier")
        k("\n".join(front2(mfmas(FY, z2), reads(FX, 0), o.get('per', 2))))
        k("s_waitcnt lgkmcnt(0)")
        k("\n".join(front2(mfmas(FX, z2), reads(FY, 1) + adv + ["s_add_u32 s35, s35, 1"], o.get('per', 2))))
        if z2:
            k("s_cmp_eq_u32 s35, 2\ns_cbranch_scc0 fz_nrg"); rowgran(); k("fz_nrg:")
        k(f"s_cmp_lt_u32 s35, 9\ns_waitcnt lgkmcnt(0)\ns_cbranch_scc1 {name}")
        k("\n".join(mfmas(FY, z2)))
    gemm(True)
    k.stamp(3)
    SU, SQ = FX, FX + 8
    CP = FX + 16
    T = 196
    PS, PQ = 212, 220
    k(f"""
    v_and_b32 v{T}, 15, v{VL}
    v_lshlrev_b32 v{T}, 2, v{T}
    v_add_u32 v{T+1}, {COLP}, v{T}
    s_lshl_b32 s33, s{W}, 7
    s_add_u32 s33, s33, {ROWA}
    v_add_u32 v{T}, s33, v{T}
    v_lshrrev_b32 v{T+2}, 4, v{VL}
    v_lshlrev_b32 v{T+2}, 4, v{T+2}
    v_add_u32 v{T+2}, s33, v{T+2}
    s_barrier
    ds_read_b128 v[{SU}:{SU+3}], v{T+2}
    ds_read_b128 v[{SU+4}:{SU+7}], v{T+2} offset:64
    ds_read_b128 v[{SQ}:{SQ+3}], v{T+2} offset:512
    ds_read_b128 v[{SQ+4}:{SQ+7}], v{T+2} offset:576
    """)
    for i in range(9): k(f"ds_read_b32 v{CP+4*i}, v{T+1} offset:{i*64}")
    k.srd(44, 26, WOBYTES)
    k("s_waitcnt lgkmcnt(0)")
    for i in range(9):
        pairs = [A2 + (i * 2) * 4, A2 + (i * 2) * 4 + 2, A2 + (i * 2 + 1) * 4, A2 + (i * 2 + 1) * 4 + 2]
        cs = CP + 4 * i
        for n, a in enumerate(pairs): k(f"v_pk_mul_f32 v[{T+2*n}:{T+2*n+1}], v[{SU+2*n}:{SU+2*n+1}], v[{cs}:{cs+1}] op_sel_hi:[1,0]")
        for n, a in enumerate(pairs): k(f"v_pk_fma_f32 v[{a}:{a+1}], v[{a}:{a+1}], v[{SQ+2*n}:{SQ+2*n+1}], v[{T+2*n}:{T+2*n+1}]")
        gelu_group(k, pairs, T, 56, VC1, VONE)
        for n, a in enumerate(pairs):
            if i == 0: k(f"v_pk_mul_f32 v[{PQ+2*n}:{PQ+2*n+1}], v[{a}:{a+1}], v[{a}:{a+1}]\nv_mov_b32 v{PS+2*n}, v{a}\nv_mov_b32 v{PS+2*n+1}, v{a+1}")
            else: k(f"v_pk_fma_f32 v[{PQ+2*n}:{PQ+2*n+1}], v[{a}:{a+1}], v[{a}:{a+1}], v[{PQ+2*n}:{PQ+2*n+1}]\nv_pk_add_f32 v[{PS+2*n}:{PS+2*n+1}], v[{PS+2*n}:{PS+2*n+1}], v[{a}:{a+1}]")
    dpp_sum16(k, list(range(PS, PS + 16)))
    k.srd(36, 4, 16 * 16 * 2048, add=WS_ST)
    k(f"""
    {xm(0x0001000100010001)}
    ds_write_b128 v{VPG}, v[{PS}:{PS+3}]
    ds_write_b128 v{VPG}, v[{PS+4}:{PS+7}] offset:64
    ds_write_b128 v{VPG}, v[{PQ}:{PQ+3}] offset:128
    ds_write_b128 v{VPG}, v[{PQ+4}:{PQ+7}] offset:192
    s_mov_b64 exec, -1
    ds_read_b32 v{T+4}, v{VPR}
    ds_read_b32 v{T+6}, v{VPR} offset:128
    v_mov_b32 v{T+5}, s{NON}
    v_mov_b32 v{T+7}, s{NON}
    s_lshl_b32 s33, s{P}, 4
    s_add_u32 s33, s33, s{C}
    s_lshl_b32 s33, s33, 11
    s_lshl_b32 s53, s{W}, 9
    s_add_u32 s33, s33, s53
    v_and_b32 v{T+3}, 31, v{VL}
    v_lshlrev_b32 v{T+3}, 4, v{T+3}
    s_waitcnt lgkmcnt(0)
    {xm(0xffffffff)}
    buffer_store_dwordx4 v[{T+4}:{T+7}], v{T+3}, s[36:39], s33 offen sc1
    s_mov_b64 exec, -1
    """)
    k.stamp(4)
    gemm(False)
    k.stamp(6)
    Q = FX
    T = 196
    k(f"""
    v_and_b32 v249, 31, v{VL}
    v_lshlrev_b32 v249, 4, v249
    v_lshrrev_b32 v250, 5, v{VL}
    v_lshl_add_u32 v249, v250, 14, v249
    s_lshl_b32 s52, s{P}, 15
    s_lshl_b32 s53, s{W}, 9
    s_add_u32 s52, s52, s53
    s_mov_b32 s62, 0
    """)
    def sweep():
        for c2 in range(8): k(f"s_add_u32 s53, s52, {c2*2048}\nbuffer_load_dwordx4 v[{Q+4*c2}:{Q+3+4*c2}], v249, s[36:39], s53 offen sc1")
    sweep()
    k(f"s_barrier\nfz_sp:\ns_waitcnt vmcnt(0)\nv_xor_b32 v{T+5}, s{NON}, v{Q+1}")
    for c2 in range(8):
        for hh in range(2):
            if c2 == 0 and hh == 0: continue
            k(f"v_xor_b32 v{T+6+(c2+hh)%2}, s{NON}, v{Q+1+4*c2+2*hh}\nv_or_b32 v{T+5}, v{T+5}, v{T+6+(c2+hh)%2}")
    k(f"v_cmp_ne_u32 vcc, 0, v{T+5}\ns_cbranch_vccz fz_spd\ns_add_u32 s62, s62, 1\ns_cmp_ge_u32 s62, {SPIN}\ns_cbranch_scc1 fz_spd")
    sweep()
    k(f"s_branch fz_sp\nfz_spd:")
    k.stamp(7)
    for c2 in range(1, 8): k(f"v_add_f32 v{Q}, v{Q}, v{Q+4*c2}\nv_add_f32 v{Q+2}, v{Q+2}, v{Q+2+4*c2}")
    m, v = Q, Q + 2
    k(f"""
    v_mov_b32 v{Q+1}, v{m}
    v_mov_b32 v{Q+3}, v{v}
    v_permlane32_swap_b32 v{m}, v{Q+1}
    v_permlane32_swap_b32 v{v}, v{Q+3}
    v_add_f32 v{m}, v{m}, v{Q+1}
    v_add_f32 v{v}, v{v}, v{Q+3}
    v_mul_f32 v{m}, {1.0/2304!r}, v{m}
    v_mul_f32 v{v}, {1.0/2304!r}, v{v}
    v_fma_f32 v{v}, -v{m}, v{m}, v{v}
    v_max_f32 v{v}, 0, v{v}
    """)
    ln_finish(k, m, v)
    SU, SQ = 148, 156
    k(f"""
    v_mul_f32 v{m}, -v{m}, v{v}
    ds_write_b32 v{VPR}, v{m}
    ds_write_b32 v{VPR}, v{v} offset:128
    ds_read_b128 v[{SU}:{SU+3}], v{VPG}
    ds_read_b128 v[{SU+4}:{SU+7}], v{VPG} offset:64
    ds_read_b128 v[{SQ}:{SQ+3}], v{VPG} offset:128
    ds_read_b128 v[{SQ+4}:{SQ+7}], v{VPG} offset:192
    """)
    k.srd(36, 4, FRAG9, add=WS_Z2)
    k(f"""
    s_mul_i32 s32, s{C}, {9*64}
    s_lshl_b32 s33, s{P}, 2
    s_add_u32 s33, s33, s{W}         ; kb
    s_add_u32 s32, s32, s33
    s_lshl_b32 s32, s32, 10
    s_lshl_b32 s34, s{C}, 6
    s_add_u32 s34, s34, s33
    s_lshl_b32 s34, s34, 2
    s_add_u32 s34, s34, {FL_2}
    v_lshrrev_b32 v250, 4, v{VL}
    v_lshlrev_b32 v250, 4, v250
    v_add_u32 v250, {COLP + 768}, v250
    s_waitcnt lgkmcnt(0)
    """)
    for i in range(9):
        oo = 164 + (i % 4) * 4
        for sb in range(2):
            a = A2 + (i * 2 + sb) * 4
            for hh in range(2):
                k(f"v_pk_fma_f32 v[{a+2*hh}:{a+2*hh+1}], v[{a+2*hh}:{a+2*hh+1}], v[{SQ+4*sb+2*hh}:{SQ+4*sb+2*hh+1}], v[{SU+4*sb+2*hh}:{SU+4*sb+2*hh+1}]")
            for hh in range(2): k(f"v_cvt_pk_bf16_f32 v{oo+2*sb+hh}, v{a+2*hh}, v{a+2*hh+1}")
        k(f"v_permlane16_swap_b32 v{oo}, v{oo+2}\nv_permlane16_swap_b32 v{oo+1}, v{oo+3}")
        k(f"buffer_store_dwordx4 v[{oo}:{oo+3}], v{V16}, s[36:39], s32 offen sc1\ns_add_u32 s32, s32, 65536")
    k.stamp(8)
    side_issue(k, o)
    for i in range(9):
        pairs = [A1 + (i * 2) * 4, A1 + (i * 2) * 4 + 2, A1 + (i * 2 + 1) * 4, A1 + (i * 2 + 1) * 4 + 2]
        gelu_group(k, pairs, T, 56, VC1, VONE)
        for n, a in enumerate(pairs): k(f"v_cvt_pk_bf16_f32 v{Z1 + (n >> 1)*18 + 2*i + (n & 1)}, v{a}, v{a+1}")
        if i == o.get('flagpos', 3):
            k(f"v_mov_b32 v{T+10}, 0\nv_mov_b32 v{T+11}, s{NON}\ns_waitcnt vmcnt(5)\ns_mov_b64 exec, 1\nbuffer_store_dword v{T+11}, v{T+10}, s[{FLS}:{FLS+3}], s34 offen sc1\ns_mov_b64 exec, -1")
            k.stamp(9)
    side_run(k, o)
    k("s_branch fz_cons")


def side_issue(k, o):
    k(f"""
    s_lshl_b32 s53, s{W}, 8
    s_add_u32 s53, s53, s2
    s_mul_i32 s54, s53, 52429
    s_lshr_b32 s54, s54, 18
    s_mul_i32 s55, s54, 5
    s_sub_u32 s55, s53, s55          ; q
    s_lshr_b32 s33, s54, 4
    s_and_b32 s35, s54, 15
    s_mul_i32 s35, s35, 144
    s_lshl_b32 s52, s55, 5
    s_add_u32 s35, s35, s52
    s_mul_i32 s35, s35, 1152
    s_mul_i32 s33, s33, 144
    s_add_u32 s35, s35, s33
    s_cmp_lt_u32 s53, 640
    s_cselect_b32 s35, s35, {OOB}
    s_mul_i32 s52, s{W}, 5120
    s_add_u32 s52, s52, {XTS}
    s_mov_b32 s33, {(1 << 16) // 9 + 1}
    """)
    for i in range(5):
        k(f"""
        v_add_u32 v232, {64*i}, v{VL}
        v_mul_lo_u32 v233, v232, s33
        v_lshrrev_b32 v233, 16, v233
        v_mul_u32_u24 v234, 9, v233
        v_sub_u32 v234, v232, v234
        v_mul_u32_u24 v233, 1152, v233
        v_lshl_add_u32 v233, v234, 4, v233
        s_add_u32 m0, s52, {i*1024}
        buffer_load_dwordx4 v233, s[44:47], s35 offen lds
        """)

def side_run(k, o):
    k(f"s_cmp_ge_u32 s53, 640\ns_cbranch_scc1 fz_sr9")
    k.srd(36, 4, WOBYTES, add=WS_WO)
    k(f"""
    v_bfe_u32 v3, v{VL}, 2, 2
    v_and_b32 v4, 3, v{VL}
    v_lshrrev_b32 v7, 4, v{VL}
    v_lshl_add_u32 v3, v7, 2, v3
    v_mul_u32_u24 v3, 144, v3
    v_lshl_add_u32 v3, v4, 3, v3
    v_add_u32 v3, s52, v3
    s_waitcnt vmcnt(1)
    """)
    for dt in range(5):
        k(f"ds_read_b64_tr_b16 v[{10+4*dt}:{11+4*dt}], v3 offset:{dt*32}")
        k(f"ds_read_b64_tr_b16 v[{12+4*dt}:{13+4*dt}], v3 offset:{dt*32 + 16*144}")
    k(f"""
    v_lshlrev_b32 v8, 4, v{VL}
    v_lshlrev_b32 v9, 3, v{VL}
    v_and_b32 v34, 7, v{VL}
    v_lshl_add_u32 v34, v7, 3, v34
    v_lshlrev_b32 v35, 4, v34
    v_lshlrev_b32 v34, 3, v34
    s_mul_i32 s33, s54, 20736
    s_mul_i32 s35, s55, 4608
    s_add_u32 s33, s33, s35
    s_add_u32 s35, s33, 4096
    s_lshl_b32 s59, s54, 3
    s_add_u32 s59, s59, s55
    s_lshl_b32 s59, s59, 2
    s_add_u32 s59, s59, {FL_W}
    s_cmp_eq_u32 s55, 4
    s_waitcnt lgkmcnt(0)
    s_cbranch_scc1 fz_sr2
    """)
    for dt in range(4): k(f"buffer_store_dwordx4 v[{10+4*dt}:{13+4*dt}], v8, s[36:39], s33 offen offset:{dt*1024} sc1")
    k(xm(0x00ff00ff00ff00ff))
    k("buffer_store_dwordx4 v[26:29], v35, s[36:39], s35 offen sc1\ns_branch fz_sr3\nfz_sr2:")
    for dt in range(4): k(f"buffer_store_dwordx2 v[{10+4*dt}:{11+4*dt}], v9, s[36:39], s33 offen offset:{dt*512} sc1")
    k(xm(0x00ff00ff00ff00ff))
    k("buffer_store_dwordx2 v[26:27], v34, s[36:39], s33 offen offset:2048 sc1\nfz_sr3:\ns_mov_b64 exec, -1")
    k("fz_sr9:")

def phase2(k, o):
    NST = 32
    k("fz_cons:")
    k.stamp(10)
    ACC = 0; FX = 72; FY = 116
    VA, VB0, VB1, VAb, VB0b, VB1b = 196, 197, 198, 199, 200, 201
    VT, VBS, VO = 203, 204, 208
    k(f"""
    s_load_dwordx2 s[8:9], s[0:1], {ARG['b_sp']}
    s_lshl_b32 s30, s{P}, 3
    s_lshl_b32 s31, s{W}, 1
    s_add_u32 s30, s30, s31
    s_lshl_b32 s31, s30, 4
    s_add_u32 s31, s31, s{C}
    s_mul_i32 s31, s31, 4608
    s_add_u32 s32, s31, {16*4608}
    v_lshlrev_b32 v{VO}, 4, v{VL}
    v_lshlrev_b32 v{VO+1}, 3, v{VL}
    v_and_b32 v{VT}, 15, v{VL}
    v_lshrrev_b32 v{VB0b}, 4, v{VL}
    v_lshrrev_b32 v{VB1b}, 1, v{VT}
    v_xor_b32 v{VB0b}, v{VB0b}, v{VB1b}
    v_lshlrev_b32 v{VB0b}, 4, v{VB0b}
    v_lshl_add_u32 v{VB0b}, v{VT}, 7, v{VB0b}
    s_lshl_b32 s34, s{W}, 12
    s_add_u32 s34, s34, 18432
    v_add_u32 v{VB0b}, s34, v{VB0b}
    v_xor_b32 v{VB1b}, 64, v{VB0b}
    v_mov_b32 v{VAb}, v{VO}
    v_mov_b32 v{VA}, v{VO}
    v_mov_b32 v{VB0}, v{VB0b}
    v_mov_b32 v{VB1}, v{VB1b}
    s_lshl_b32 s34, s30, 4
    v_add_u32 v{VT}, s34, v{VT}
    v_lshlrev_b32 v{VT}, 1, v{VT}
    s_waitcnt lgkmcnt(0)
    global_load_ushort v{VBS}, v{VT}, s[8:9]
    global_load_ushort v{VBS+2}, v{VT}, s[8:9] offset:32
    s_mov_b32 s34, 0
    s_mov_b32 s35, 1
    s_setprio {o.get('prio', 2)}
    """)
    k(f"""
    s_lshl_b32 s28, s{P}, 1
    s_lshr_b32 s10, s{W}, 1
    s_add_u32 s28, s28, s10
    s_lshl_b32 s28, s28, 4
    s_add_u32 s28, s28, s{C}
    s_lshl_b32 s28, s28, 1
    s_and_b32 s10, s{W}, 1
    s_add_u32 s28, s28, s10
    s_lshl_b32 s28, s28, 2
    s_add_u32 s28, s28, {FL_H}
    """)
    g3 = Gemm3(k, o)
    g3.pre()
    def reads(F, half):
        vb = VB0 if half == 0 else VB1
        r = [f"ds_read_b128 v[{F+4*tb}:{F+4*tb+3}], v{vb} offset:{tb*2048}" for tb in range(2)]
        r += [f"ds_read_b128 v[{F+8+4*ft}:{F+8+4*ft+3}], v{VA} offset:{(ft*2+half)*1024}" for ft in range(9)]
        return r
    def mfmas(F, first=False):
        return [f"v_mfma_f32_16x16x32_bf16 v[{ACC+(ft*2+tb)*4}:{ACC+(ft*2+tb)*4+3}], v[{F+8+4*ft}:{F+8+4*ft+3}], v[{F+4*tb}:{F+4*tb+3}], " + ("0" if first else f"v[{ACC+(ft*2+tb)*4}:{ACC+(ft*2+tb)*4+3}]")
                for ft in range(9) for tb in range(2)]
    adv = [f"s_add_u32 s34, s34, {SLOT}", f"s_cmp_ge_u32 s34, {SLOT*NS}", "s_cselect_b32 s34, 0, s34",
           f"v_add_u32 v{VA}, s34, v{VAb}", f"v_add_u32 v{VB0}, s34, v{VB0b}", f"v_add_u32 v{VB1}, s34, v{VB1b}"]
    k("s_barrier")
    k.stamp(11)
    k("\n".join(reads(FX, 0)))
    k("s_waitcnt lgkmcnt(0)")
    k("\n".join(front(mfmas(FX, True), reads(FY, 1) + adv)))
    k(f"s_cmp_lt_u32 s53, 640\ns_cselect_b32 s53, 8, 99\ns_waitcnt lgkmcnt(0)")
    k("fz_cloop:")
    k(f"s_cmp_eq_u32 s35, s53\ns_cbranch_scc0 fz_nwf")
    set_flag(k, 210, 211, 59)
    k(f"fz_nwf:\ns_cmp_eq_u32 s35, 28\ns_cbranch_scc0 fz_nwg\nbuffer_load_dword v238, v237, s[{FLS}:{FLS+3}], 0 offen sc1\nfz_nwg:")
    k("s_barrier")
    k("\n".join(front(mfmas(FY), reads(FX, 0))))
    k("s_waitcnt lgkmcnt(0)")
    k("\n".join(front(mfmas(FX), reads(FY, 1) + adv + ["s_add_u32 s35, s35, 1"])))
    k(f"s_cmp_lt_u32 s35, {NST}\ns_waitcnt lgkmcnt(0)\ns_cbranch_scc1 fz_cloop")
    k("s_barrier")
    k("\n".join(mfmas(FY)))
    k.stamp(12)
    k.srd(12, 4, FRAG9, add=WS_H)
    g3.wcheck()
    k(f"""
    v_lshlrev_b32 v{VBS}, 16, v{VBS}
    v_lshlrev_b32 v{VBS+2}, 16, v{VBS+2}
    v_mov_b32 v{VBS+1}, v{VBS}
    v_mov_b32 v{VBS+3}, v{VBS+2}
    """)
    T = FX
    for tb in range(2):
        b = VBS + 2 * tb
        for q in range(5):
            nt = 2 if q < 4 else 1
            zr = Z1 + tb * 18 + q * 4
            oo = T + (tb * 5 + q) % 4 * 12
            for t in range(nt):
                a = ACC + ((2 * q + t) * 2 + tb) * 4
                for hh in range(2):
                    z = zr + t * 2 + hh; u = oo + 4 + 2 * ((2 * t + hh) % 4)
                    k(f"""
                    v_pk_add_f32 v[{a+2*hh}:{a+2*hh+1}], v[{a+2*hh}:{a+2*hh+1}], v[{b}:{b+1}]
                    v_lshlrev_b32 v{u}, 16, v{z}
                    v_and_b32 v{u+1}, 0xffff0000, v{z}
                    v_pk_mul_f32 v[{a+2*hh}:{a+2*hh+1}], v[{a+2*hh}:{a+2*hh+1}], v[{u}:{u+1}]
                    v_cvt_pk_bf16_f32 v{oo+t*2+hh}, v{a+2*hh}, v{a+2*hh+1}
                    """)
            if q < 4: k(f"buffer_store_dwordx4 v[{oo}:{oo+3}], v{VO}, s[12:15], s{31+tb} offen offset:{q*1024} sc1")
            else: k(f"s_add_u32 s33, s{31+tb}, 4096\nbuffer_store_dwordx2 v[{oo}:{oo+1}], v{VO+1}, s[12:15], s33 offen sc1")
    g3.wregs()
    k(f"v_mov_b32 v0, 0\nv_mov_b32 v1, s{NON}\ns_waitcnt vmcnt(46)\ns_mov_b64 exec, 1\nbuffer_store_dword v1, v0, s[{FLS}:{FLS+3}], s28 offen sc1\ns_mov_b64 exec, -1")
    k.stamp(13)
    g3.main()
    k("fz_loader:\ns_setprio 0")
    for j in range(16): k(f"v_mov_b32 v{198+j}, 0")
    VD = 220
    def kgen():
        L = k.label("nk")
        k(f"s_cmp_ge_u32 s58, 576\ns_cbranch_scc1 {L}")
        k(f"s_lshl_b32 s59, s56, 13\ns_add_u32 s59, s59, {KTAB}\ns_mov_b32 s54, {fbits(L2E_HI)}\ns_mov_b32 s55, {fbits(I2P_HI)}")
        k("\n".join(kgen_addr(k, o)))
        k("\n".join(kgen_dt()))
        k("s_mov_b32 s53, 0\nfz_kg:")
        k("\n".join(kgen_half()))
        k("s_cmp_eq_u32 s53, 1\ns_cbranch_scc1 fz_kg2")
        k(f"{L}:")
    def issue(n, kstep, sc, chk=False):
        if chk:
            L = k.label("pc"); D = k.label("pd")
            k(f"""
            {L}:
            s_lshr_b32 s33, s40, 10
            s_and_b32 s33, s33, 60
            s_lshr_b64 s[48:49], s[46:47], s33
            s_and_b32 s48, s48, 15
            s_cbranch_scc0 {D}
            s_add_u32 s62, s62, 1
            s_cmp_ge_u32 s62, {SPIN}
            s_cbranch_scc1 {D}
            buffer_load_dword v6, v4, s[{FLS}:{FLS+3}], s30 offen sc1
            s_waitcnt vmcnt(0)
            v_cmp_ne_u32 s[46:47], s{NON}, v6
            s_branch {L}
            {D}:
            """)
        for j in range(n):
            k((f"s_add_u32 m0, s41, {j*1024}\n" if j else "s_mov_b32 m0, s41\n") + f"buffer_load_dwordx4 v{VL_(j)}, s[12:15], s40 offen {sc}lds")
        k(f"s_add_u32 s40, s40, {kstep}\ns_and_b32 s40, s40, {32*kstep - 1}\ns_add_u32 s41, s41, {SLOT}\ns_cmp_ge_u32 s41, {SLOT*NS}\ns_cselect_b32 s41, s44, s41")
    VL_ = lambda j: 112 + j
    def ring(tag, n, kstep, sc):
        k(f"s_mov_b32 s35, 0\nfz_l{tag}:\ns_waitcnt vmcnt({2*n})\ns_barrier")
        issue(n, kstep, sc, tag == "A")
        k(f"s_add_u32 s35, s35, 1\ns_cmp_lt_u32 s35, {NST-3}\ns_cbranch_scc1 fz_l{tag}")
        for r in (2, 1, 0): k(f"s_waitcnt vmcnt({n*r})\ns_barrier")
        if tag == "B": k("s_barrier")
    k(f"s_cmp_lg_u32 s{W}, 4\ns_cbranch_scc1 fz_ldB")
    k.srd(12, 4, FRAG9, add=WS_Z2)
    k(f"s_lshl_b32 s40, s{P}, 12" if o.get('rot') else "s_mov_b32 s40, 0")
    k(f"s_mul_i32 s31, s{C}, {9*65536}\nv_lshlrev_b32 v3, 4, v{VL}\nv_add_u32 v3, s31, v3\ns_mov_b32 s44, 0\ns_mov_b32 s41, 0")
    for j in range(18): k(f"v_add_u32 v{VL_(j)}, {(j >> 1)*65536 + (j & 1)*1024}, v3")
    k(f"s_lshl_b32 s30, s{C}, 8\ns_add_u32 s30, s30, {FL_2}\nv_lshlrev_b32 v4, 2, v{VL}\ns_mov_b64 s[46:47], -1\ns_mov_b32 s62, 0")
    issue(18, 2048, "sc1 ", True)
    k.stamp(10)
    for _ in range(2): issue(18, 2048, "sc1 ", True)
    k.stamp(11)
    ring("A", 18, 2048, "sc1 ")
    k("s_branch fz_fin")
    k(f"fz_ldB:\ns_load_dwordx2 s[6:7], s[0:1], {ARG['w_sp']}\ns_waitcnt lgkmcnt(0)")
    k.srd(12, 6, 2048 * 4096)
    k(f"s_cmp_lg_u32 s{W}, 5\ns_cbranch_scc1 fz_kg0")
    VL_ = lambda j: 198 + j
    k(f"""
    v_lshrrev_b32 v3, 3, v{VL}
    v_and_b32 v4, 7, v{VL}
    v_lshrrev_b32 v5, 4, v{VL}
    v_xor_b32 v4, v4, v5
    v_and_b32 v5, 1, v4
    v_lshlrev_b32 v5, 1, v5
    v_bfe_u32 v6, v4, 1, 1
    v_and_b32 v4, 4, v4
    v_or_b32 v4, v4, v5
    v_or_b32 v4, v4, v6
    v_lshlrev_b32 v4, 4, v4
    v_lshl_add_u32 v4, v3, 12, v4
    s_lshl_b32 s31, s{P}, 19
    v_add_u32 v4, s31, v4
    v_xor_b32 v5, 64, v4
    {"s_lshl_b32 s40, s%d, 8" % P if o.get('rot') else "s_mov_b32 s40, 0"}
    s_mov_b32 s44, 18432
    s_mov_b32 s41, 18432
    """)
    for j in range(16): k(f"v_add_u32 v{VL_(j)}, {j*32768}, v{4 + (j & 1)}")
    for _ in range(3): issue(16, 128, "")
    k("fz_kg0:")
    kgen()
    k.stamp(11)
    k(f"s_cmp_lg_u32 s{W}, 5\ns_cbranch_scc1 fz_idle")
    ring("B", 16, 128, "")
    k(f"""
    s_branch fz_ssm
    fz_idle:
    s_mov_b32 s35, 0
    fz_idl:
    s_barrier
    s_add_u32 s35, s35, 1
    s_cmp_lt_u32 s35, 33
    s_cbranch_scc1 fz_idl
    """)
    k("fz_ssm:")
    k.stamp(12)
    k(f"s_cmp_ge_u32 s58, 576\ns_cbranch_scc1 fz_fin\ns_mov_b32 s57, s56\ns_setprio {o.get('prio3', 3)}")
    conv_pre(k, o)
    k(f"s_lshl_b32 s33, s56, 13\ns_add_u32 s33, s33, {KTAB - 4608}\ns_sub_u32 s33, s59, s33")
    for r in list(range(KG['WAD'], KG['WAD'] + 16)) + list(range(KG['RW'], KG['RW'] + 4)) + list(range(KG['RS'], KG['RS'] + 10)):
        k(f"v_add_u32 v{r}, s33, v{r}")
    k("s_mov_b32 s53, 1\ns_branch fz_kg\nfz_kg2:")
    k.stamp(8)
    conv(k, o)

def gen_fused(prof=False, **o):
    OPT.update(o)
    k = Kern(NAME + "_kernel", 256, 512, 163840)
    k.prof = prof; k.allreal = bool(o.get('real', 0))
    k.stamp(0, True); k.stamp(1)
    if o.get('dbgt'): k("s_memrealtime s[64:65]")
    phase0(k, o); phase2(k, o)
    k("fz_fin:")
    if o.get('dbgt'):
        k(f"""
        s_waitcnt vmcnt(0)
        s_memrealtime s[66:67]
        s_load_dwordx2 s[68:69], s[0:1], {ARG['dbg']}
        s_waitcnt lgkmcnt(0)
        s_cmp_ge_u32 s2, 8
        s_cbranch_scc1 fz_end
        s_cmp_lg_u32 s22, 0
        s_cbranch_scc1 fz_end
        s_lshl_b32 s70, s2, 3
        v_mov_b32 v0, s70
        v_mov_b32 v2, s64
        v_mov_b32 v3, s66
        s_mov_b64 exec, 1
        global_store_dwordx2 v0, v[2:3], s[68:69]
        """)
    if prof:
        k("s_waitcnt vmcnt(0)"); k.stamp(15, True)
        k.prof_dump(0, 4, W, 16)
    k("fz_end:")
    return k

def emit_single(k, path):
    from gen import header
    s = header() + f"; @launch grid=({k.grid},1,1) block=({k.block},1,1) lds={k.lds}\n"
    s += '.amdgcn_target "amdgcn-amd-amdhsa--gfx950"\n.text\n' + k.text() + '.section .rodata,"a"\n' + k.desc()
    open(path, "w").write(s)

if __name__ == "__main__":
    opts = {a.split("=")[0]: int(a.split("=")[1]) for a in sys.argv[2:] if "=" in a}
    emit_single(gen_fused(prof="prof" in sys.argv, **opts), sys.argv[1])
```

```python
import sys, math; sys.path.insert(0, "dev")
from asmgen import *
from layout import *
import struct
import numpy as np
def fbits(x): return "0x%08x" % struct.unpack("<I", struct.pack("<f", x))[0]
def f32(x): return float(np.float32(x))
C1 = -2.0 * math.sqrt(2.0 / math.pi) * math.log2(math.e)
C2 = C1 * 0.044715
L2E = math.log2(math.e); L2E_HI = f32(L2E); L2E_LO = L2E - L2E_HI
I2P = 1.0 / (2 * math.pi); I2P_HI = f32(I2P); I2P_LO = I2P - I2P_HI
def rne(x, kk): return int(round(x / (1 << kk))) << kk
def rrow(v): return v if v <= 16 else 12 + v // 4
OOB = 0x7ff00000
P, C, W, NON = 20, 21, 22, 23
FLS = 16
VL = 255
SPIN = 0x4000
OPT = dict(sleep=0, sc1ld=1, nokgen=0)

def dpp_sum16(k, regs):
    for sh in (8, 4, 2, 1):
        for r in regs: k(f"v_add_f32_dpp v{r}, v{r}, v{r} row_ror:{sh} row_mask:0xf bank_mask:0xf")
def bf16_round(k, r): k(f"v_cvt_pk_bf16_f32 v{r}, v{r}, v{r}\nv_lshlrev_b32 v{r}, 16, v{r}")
def xsum_rows(k, r, t, both=True):
    k(f"v_mov_b32 v{t}, v{r}\nv_permlane16_swap_b32 v{r}, v{t}\nv_add_f32 v{r}, v{r}, v{t}")
    k(f"v_mov_b32 v{t}, v{r}\nv_permlane32_swap_b32 v{r}, v{t}\nv_add_f32 v{r}, v{r}, v{t}")
def mix(mf, other):
    out = []; n = len(mf); m = len(other); oi = 0
    for i, x in enumerate(mf):
        out.append(x)
        want = (i + 1) * m // n
        while oi < want: out.append(other[oi]); oi += 1
    return out + other[oi:]
def front2(mf, other, per=2):
    out = []; oi = 0
    for x in mf:
        out.append(x)
        for _ in range(per):
            if oi < len(other): out.append(other[oi]); oi += 1
    return out + other[oi:]
def front(mf, other):
    out = []; oi = 0
    for x in mf:
        out.append(x)
        if oi < len(other): out.append(other[oi]); oi += 1
    return out + other[oi:]

def xm(mask):
    return f"s_mov_b32 exec_lo, {hex(mask & 0xffffffff)}\ns_mov_b32 exec_hi, {hex(mask >> 32)}"
def set_flag(k, va, vd, off_s):
    k(f"""
    v_mov_b32 v{va}, 0
    v_mov_b32 v{vd}, s{NON}
    s_waitcnt vmcnt(0)
    s_mov_b64 exec, 1
    buffer_store_dword v{vd}, v{va}, s[{FLS}:{FLS+3}], s{off_s} offen sc1
    s_mov_b64 exec, -1
    """)
def poll(k, va, vd, off_s, nlanes, ndw=1, pre=False, mask=None):
    L = k.label("poll"); D = k.label("polld")
    ld = {1: "dword", 2: "dwordx2", 4: "dwordx4"}[ndw]
    dst = f"v{vd}" if ndw == 1 else f"v[{vd}:{vd+ndw-1}]"
    if not pre: k(f"v_lshlrev_b32 v{va}, { {1: 2, 2: 3, 4: 4}[ndw] }, v{VL}")
    k("s_mov_b32 s62, 0")
    if nlanes < 64: k(xm(mask if mask else (1 << nlanes) - 1))
    k(f"{L}:\nbuffer_load_{ld} {dst}, v{va}, s[{FLS}:{FLS+3}], {'0' if pre else 's%d' % off_s} offen sc1\ns_add_u32 s62, s62, 1\ns_waitcnt vmcnt(0)")
    k(f"v_cmp_ne_u32 vcc, s{NON}, v{vd}")
    for i in range(1, ndw): k(f"v_cmp_ne_u32 s[60:61], s{NON}, v{vd+i}\ns_or_b64 vcc, vcc, s[60:61]")
    sl = f"s_sleep {OPT['sleep']}\n" if OPT['sleep'] else ""
    k(f"s_cbranch_vccz {D}\n{sl}s_cmp_lt_u32 s62, {SPIN}\ns_cbranch_scc1 {L}\n{D}:")
    if nlanes < 64: k("s_mov_b64 exec, -1")

def gelu_group(k, pairs, T, SC2, VC1, VONE):
    n = len(pairs)
    for i, a in enumerate(pairs): k(f"v_pk_mul_f32 v[{T+2*i}:{T+2*i+1}], v[{a}:{a+1}], v[{a}:{a+1}]")
    for i, a in enumerate(pairs): k(f"v_pk_fma_f32 v[{T+2*i}:{T+2*i+1}], v[{T+2*i}:{T+2*i+1}], s[{SC2}:{SC2+1}], v[{VC1}:{VC1+1}]")
    for i, a in enumerate(pairs): k(f"v_pk_mul_f32 v[{T+2*i}:{T+2*i+1}], v[{T+2*i}:{T+2*i+1}], v[{a}:{a+1}]")
    for i in range(2 * n): k(f"v_exp_f32 v{T+i}, v{T+i}")
    for i, a in enumerate(pairs): k(f"v_pk_add_f32 v[{T+2*i}:{T+2*i+1}], v[{T+2*i}:{T+2*i+1}], v[{VONE}:{VONE+1}]")
    for i in range(2 * n): k(f"v_rcp_f32 v{T+i}, v{T+i}")
    for i, a in enumerate(pairs): k(f"v_pk_mul_f32 v[{a}:{a+1}], v[{a}:{a+1}], v[{T+2*i}:{T+2*i+1}]")

def ln_finish(k, m, v):
    bf16_round(k, v)
    k(f"v_add_f32 v{v}, {1e-5!r}, v{v}")
    bf16_round(k, v)
    k(f"v_sqrt_f32 v{v}, v{v}")
    bf16_round(k, v)
    k(f"v_rcp_f32 v{v}, v{v}")
    bf16_round(k, m)


KG = dict(ACC=0, WF=44, RB=108, RW=140, WAD=150, VJ=166, VG=167, DSK=168, DT=169, PRM=170, RS=182, XT3=192, VDMA=210)

def kgen_setup(k, o):
    g = KG
    k(f"""
    s_load_dwordx4 s[24:27], s[0:1], {ARG['A_re']}
    s_load_dwordx4 s[28:31], s[0:1], {ARG['B_re']}
    s_load_dwordx4 s[32:35], s[0:1], {ARG['C_re']}
    s_load_dwordx4 s[36:39], s[0:1], {ARG['log_dt']}
    s_min_u32 s42, s58, 575
    v_lshlrev_b32 v1, 1, v{VL}
    s_lshl_b32 s43, s42, 8
    v_add_u32 v1, s43, v1
    s_lshl_b32 s43, s42, 1
    v_mov_b32 v2, s43
    s_waitcnt lgkmcnt(0)
    """)
    for hf in range(2):
        for i in range(6):
            k(f"global_load_ushort v{g['PRM']+6*hf+i}, v1, s[{24+2*i}:{25+2*i}] offset:{hf*128}")
    k("global_load_ushort v196, v2, s[36:37]\nglobal_load_ushort v197, v2, s[38:39]")

def kgen_addr(k, o):
    g = KG; WAD, VJ, VG, RW, RS_ = g['WAD'], g['VJ'], g['VG'], g['RW'], g['RS']
    A = []
    A.append(f"v_lshrrev_b32 v46, 2, v{VL}\nv_and_b32 v47, 3, v{VL}\nv_lshlrev_b32 v47, 2, v47\nv_lshl_add_u32 v46, v46, 4, v47\nv_add_u32 v46, s59, v46")
    for i in range(16): A.append(f"v_xor_b32 v{WAD+i}, {i<<4}, v46")
    A.append(f"v_and_b32 v{VJ}, 15, v{VL}\nv_lshrrev_b32 v{VG}, 4, v{VL}")
    for m in range(4):
        A.append(f"v_add_u32 v46, {4*m}, v{VG}\nv_xor_b32 v46, v46, v{VJ}\nv_lshlrev_b32 v46, 4, v46\nv_lshl_add_u32 v46, v{VJ}, 8, v46\nv_add_u32 v{RW+m}, s59, v46")
    pats = [[b for b in range(16)], [rne(b, 1) for b in range(16)]]
    pats += [[rne(16 * nt + b, 2) for b in range(16)] for nt in range(4)]
    pats += [[rne(16 * nt + b, 3) for b in range(16)] for nt in range(4)]
    for pi_, pat in enumerate(pats):
        rows = [rrow(v) for v in pat]
        s = ""
        if pi_ == 0: s += f"v_mov_b32 v46, v{VJ}\n"
        else:
            kk = 1 if pi_ == 1 else (2 if pi_ < 6 else 3)
            nt = 0 if pi_ == 1 else (pi_ - 2) % 4
            c0 = 16 * nt + (1 << (kk - 1)) - 1
            s += f"v_add_u32 v46, {16*nt}, v{VJ}\nv_bfe_u32 v46, v46, {kk}, 1\nv_add3_u32 v46, v46, v{VJ}, {c0}\nv_and_b32 v46, {0xff & ~((1 << kk) - 1)}, v46\n"
            if pi_ > 1: s += "v_lshrrev_b32 v47, 2, v46\nv_add_u32 v47, 12, v47\nv_min_u32 v46, v46, v47\n"
            chk = []
            for j in range(16):
                v = (((((j + 16 * nt) >> kk) & 1) + j + c0) & (0xff & ~((1 << kk) - 1)))
                chk.append(min(v, 12 + (v >> 2)) if pi_ > 1 else v)
            assert chk == rows
        s += f"v_and_b32 v47, 15, v46\nv_xor_b32 v47, v47, v{VG}\nv_lshlrev_b32 v47, 4, v47\nv_lshl_add_u32 v46, v46, 8, v47\nv_add_u32 v{RS_+pi_}, s59, v46"
        A.append(s)
    return A

def kgen_dt():
    g = KG
    return [f"""v_lshlrev_b32 v44, 16, v196
    v_lshlrev_b32 v{g['DSK']}, 16, v197
    v_mul_f32 v45, {fbits(L2E_HI)}, v44
    v_fma_f32 v46, v44, s54, -v45
    v_fmac_f32 v46, {fbits(L2E_LO)}, v44
    v_exp_f32 v45, v45
    v_mul_f32 v46, {fbits(math.log(2.0))}, v46
    v_fma_f32 v{g['DT']}, v45, v46, v45
    v_cvt_pk_bf16_f32 v{g['DT']}, v{g['DT']}, v{g['DT']}
    v_lshlrev_b32 v{g['DT']}, 16, v{g['DT']}"""]

def kgen_half():
    g = KG; PRM, WAD, RW, RS_, WF, RB, DT = g['PRM'], g['WAD'], g['RW'], g['RS'], g['WF'], g['RB'], g['DT']
    A = []
    S = 220
    A_, B_, BR, BI, CR, CI = S, S + 1, S + 2, S + 3, S + 4, S + 5
    CB, W1, W16, W64, W512, W4, ONE = S + 6, S + 8, S + 10, S + 12, S + 14, S + 16, S + 18
    PA, PB, PC = [S + 20, S + 22], [S + 24, S + 26], S + 28
    TA, TB_ = S + 30, S + 31
    for i in range(6): A.append(f"v_lshlrev_b32 v{S+i}, 16, v{PRM+i}")
    for i in range(4): A.append(f"v_mul_f32 v{S+i}, v{DT}, v{S+i}")
    A += [f"v_mul_f32 v{CB}, v{CR}, v{BR}", f"v_mul_f32 v{CB+1}, v{CR}, v{BI}", f"v_fma_f32 v{CB}, -v{CI}, v{BI}, v{CB}", f"v_fma_f32 v{CB+1}, v{CI}, v{BR}, v{CB+1}"]
    ev = []
    for li, (l, r) in enumerate(((16, W16), (512, W512), (64, W64), (1, W1))):
        t = RB + 4 * li
        ev.append([f"v_mul_f32 v{t}, {float(l)!r}, v{A_}", f"v_mul_f32 v{t+1}, {float(l)!r}, v{B_}", f"v_mul_f32 v{t}, s54, v{t}", f"v_mul_f32 v{t+2}, s55, v{t+1}",
                   f"v_exp_f32 v{t}, v{t}", f"v_fma_f32 v{t+3}, v{t+1}, s55, -v{t+2}", f"v_fmac_f32 v{t+3}, {fbits(I2P_LO)}, v{t+1}", f"v_fract_f32 v{t+2}, v{t+2}",
                   f"v_add_f32 v{t+2}, v{t+2}, v{t+3}", f"v_cos_f32 v{r}, v{t+2}", f"v_sin_f32 v{r+1}, v{t+2}", f"v_mul_f32 v{r}, v{t}, v{r}", f"v_mul_f32 v{r+1}, v{t}, v{r+1}"])
    for pos in range(13):
        for e in ev: A.append(e[pos])
    def cmul(d, x, w):
        return [f"v_pk_mul_f32 v[{d}:{d+1}], v[{x}:{x+1}], v[{w}:{w+1}] op_sel_hi:[0,1]",
                f"v_pk_fma_f32 v[{d}:{d+1}], v[{x}:{x+1}], v[{w}:{w+1}], v[{d}:{d+1}] op_sel:[1,1,0] op_sel_hi:[1,0,1] neg_lo:[1,0,0]"]
    def put(x, t, base, row, neg):
        return [f"v_cvt_pk_bf16_f32 v{t}, v{x}, {'-' if neg else ''}v{x+1}", f"ds_write_b32 v{WAD + (row & 15)}, v{t} offset:{base + row*256}"]
    def wreads(wi, base):
        return [f"ds_read_b128 v[{WF+(wi*4+m)*4}:{WF+(wi*4+m)*4+3}], v{RW+m} offset:{base}" for m in range(4)]
    def pipe2(ca, cb):
        out = []; pa = []; pb = []
        for i in range(max(len(ca), len(cb)) + 1):
            sa = ca[i] if i < len(ca) else (None, None, []); sb = cb[i] if i < len(cb) else (None, None, [])
            q = [sa[0], sb[0]] + pa[:1] + pb[:1] + [sa[1], sb[1]] + pa[1:] + pb[1:]
            out += [x for x in q if x]
            pa = sa[2]; pb = sb[2]
        return out
    PA = [S + 20, S + 22, S + 32]; PB = [S + 24, S + 26, S + 28]
    ca = [(None, None, put(CB, TA, 0, 0, False))]; cur = CB
    for i in range(1, 32):
        d = PA[i % 3]; m = cmul(d, cur, W16); post = put(d, TA, 0, i & 15, False); cur = d
        if i in (15, 31): post = post + wreads(i // 16, 0)
        ca.append((m[0], m[1], post))
    cb = []; cur = CB
    for i in range(24):
        d = PB[i % 3]; m = cmul(d, cur, W512 if i == 0 else W64); post = put(d, TB_, 4096, i if i < 8 else i - 8, False); cur = d
        if i == 7: post = post + wreads(2, 4096)
        if i == 23: post = post + wreads(3, 4096)
        cb.append((m[0], m[1], post))
    W2, W3 = BR, CR
    for d, x in ((W2, W1), (W3, W2), (W4, W3)):
        m = cmul(d, x, W1); cb.append((m[0], m[1], [])); cb.append((None, None, []))
    A += pipe2(ca, cb)
    r1 = [(f"v_mov_b32 v{ONE}, 1.0", f"v_mov_b32 v{ONE+1}, 0", put(ONE, TA, 0, 0, True))]
    r2 = [(None, None, put(W16, TB_, 0, 16, True))]
    cur = W4
    for v in range(5, 16):
        d = PA[v % 3]; m = cmul(d, cur, W1); r1.append((m[0], m[1], put(d, TA, 0, v, True))); cur = d
    r1 += [(None, None, put(W1, TA, 0, 1, True)), (None, None, put(W2, TA, 0, 2, True))]
    cur = W16
    for i in range(11):
        d = PB[i % 3]; m = cmul(d, cur, W4); r2.append((m[0], m[1], put(d, TB_, 0, 17 + i, True))); cur = d
    r2 += [(None, None, put(W64, TB_, 0, 28, True)), (None, None, put(W3, TB_, 0, 3, True)), (None, None, put(W4, TB_, 0, 4, True))]
    A += pipe2(r1, r2)
    RBS = [RB, RB + 16, S]
    def rreads(t):
        L = []
        for m in range(4):
            b = RBS[t % 3] + 4 * m
            if m: L.append(f"v_xor_b32 v{g['XT3']+m}, {(4*m) << 4}, v{RS_+t}")
            L.append(f"ds_read_b128 v[{b}:{b+3}], v{RS_+t if m == 0 else g['XT3']+m}")
        return L
    tile_w = [0, 1, 2, 2, 2, 2, 3, 3, 3, 3]
    A += rreads(0) + rreads(1)
    for t in range(10):
        mf = []
        for m in range(4):
            b = RBS[t % 3] + 4 * m; w = WF + (tile_w[t] * 4 + m) * 4
            mf.append(f"v_mfma_f32_16x16x32_bf16 v[{4*t}:{4*t+3}], v[{b}:{b+3}], v[{w}:{w+3}], v[{4*t}:{4*t+3}]")
        A.append(f"s_waitcnt lgkmcnt({4 if t < 9 else 0})")
        A += front2(mf, rreads(t + 2) if t < 8 else [], 2)
    for i in range(6): A.append(f"v_mov_b32 v{PRM+i}, v{PRM+6+i}")
    return [a for a in A if a != "s_nop 0"]

def split(atoms, n):
    tot = sum(a.count("\n") + 1 for a in atoms); out = [[] for _ in range(n)]; acc = 0
    for a in atoms:
        out[min(n - 1, acc * n // tot)].append(a); acc += a.count("\n") + 1
    return out


REG = 21504
CONV0 = 3 * REG
WQ = [0, REG, 2 * REG, 139264]
YL_ = 6 * REG
def conv_pre(k, o):
    k.srd(24, 4, XBYTES, add=WS_XT)
    k(f"s_mul_i32 s59, s57, {REG}\ns_add_u32 s59, s59, {CONV0}\ns_mov_b32 s30, {FL_T}")
    k(f"s_cmp_ge_u32 s58, 288\ns_cselect_b32 s33, 4, 0\nv_lshlrev_b32 v44, 3, v{VL}\ns_add_u32 s30, s30, s33\nv_add_u32 v44, s30, v44")
    L = k.label("ft"); D = k.label("ftd")
    k(f"s_mov_b32 s62, 0\n{L}:")
    for i in range(4): k(f"buffer_load_dword v{48+i}, v44, s[{FLS}:{FLS+3}], 0 offen offset:{i*512} sc1")
    k(f"s_add_u32 s62, s62, 1\ns_waitcnt vmcnt(0)\nv_cmp_ne_u32 vcc, s{NON}, v48")
    for i in range(1, 4): k(f"v_cmp_ne_u32 s[60:61], s{NON}, v{48+i}\ns_or_b64 vcc, vcc, s[60:61]")
    k(f"s_cbranch_vccz {D}\ns_cmp_lt_u32 s62, {SPIN}\ns_cbranch_scc1 {L}\n{D}:")
    k(f"v_mul_u32_u24 v46, 9216, v{VL}\ns_lshl_b32 s30, s58, 4")
    for i in range(4):
        k(f"s_add_u32 m0, s59, {480+i*1024}\nbuffer_load_dwordx4 v46, s[24:27], s30 offen sc1 lds\ns_add_u32 s30, s30, {64*9216}")

def conv(k, o):
    g = KG; VJ, VG = g['VJ'], g['VG']
    CB = 4608 + 64
    k(f"""
    v_mov_b32 v48, 0
    v_mov_b32 v49, 0
    v_mov_b32 v50, 0
    v_mov_b32 v51, 0
    v_lshlrev_b32 v47, 4, v{VL}
    v_add_u32 v47, s59, v47
    {xm((1 << 30) - 1)}
    ds_write_b128 v47, v[48:51]
    {xm(3)}
    ds_write_b128 v47, v[48:51] offset:{CB + 4096}
    s_mov_b64 exec, -1
    v_lshlrev_b32 v44, 3, v{VG}
    v_lshl_add_u32 v45, v{VJ}, 5, v44
    v_sub_u32 v52, {CB + 2*(2044-256)}, v45
    v_add_u32 v52, s59, v52
    v_lshl_add_u32 v45, v{VJ}, 7, v44
    v_sub_u32 v53, {CB + 2*(2044-1072)}, v45
    v_add_u32 v53, s59, v53
    """)
    for t in range(10):
        if t < 2: va, off = 52, 2 * (256 - 256 * t)
        else:
            tb = (512 if t < 6 else 1024) + 16 * ((t - 2) % 4); va, off = 53, 2 * (1072 - tb)
        a = 4 * t; p = 54 + 2 * (t % 4)
        if t == 2: k(xm(0x00ff00ff00ff00ff))
        if t == 6: k("s_mov_b64 exec, -1")
        k(f"v_cvt_pk_bf16_f32 v{p}, v{a+3}, v{a+2}\nv_cvt_pk_bf16_f32 v{p+1}, v{a+1}, v{a}\nds_write_b64 v{va}, v[{p}:{p+1}] offset:{off}")
    for it in range(5):
        b = 64 + 20 * (it % 2) if False else 64 + 6 * it
        if it == 4: k(xm(3))
        k(f"ds_read_b128 v[{b}:{b+3}], v47 offset:{CB + it*1024}\nds_read_b64 v[{b+4}:{b+5}], v47 offset:{CB + it*1024 + 16}")
    k("s_mov_b64 exec, -1")
    for it in range(5):
        b = 64 + 6 * it; e = 96 + 12 * (it % 2)
        k(f"s_waitcnt lgkmcnt({min(15, 2*(4-it) + 3*min(it, 1))})" if False else "s_waitcnt lgkmcnt(0)" if it == 0 else "")
        if it == 4: k(xm(3))
        for i in range(4): k(f"v_alignbit_b32 v{e+i}, v{b+i+1}, v{b+i}, 16")
        for i in range(4): k(f"v_mov_b32 v{e+4+i}, v{b+i+1}")
        for i in range(3): k(f"v_mov_b32 v{e+8+i}, v{e+1+i}")
        k(f"v_alignbit_b32 v{e+11}, v{b+5}, v{b+4}, 16")
        for s_ in range(3): k(f"ds_write_b128 v47, v[{e+4*s_}:{e+4*s_+3}] offset:{CB + (s_+1)*4160 + it*1024}")
    k("s_mov_b64 exec, -1")
    VF, VGa = 140, 141
    k(f"""
    v_sub_u32 v44, 3, v{VJ}
    v_and_b32 v44, 3, v44
    v_mul_u32_u24 v44, 4160, v44
    v_lshrrev_b32 v45, 2, v{VJ}
    v_lshlrev_b32 v45, 3, v45
    v_sub_u32 v44, v44, v45
    v_lshl_add_u32 v44, v{VG}, 4, v44
    v_add_u32 v44, {CB + 2*(2028-2016)}, v44
    v_add_u32 v{VF}, s59, v44
    v_lshlrev_b32 v45, 5, v{VJ}
    v_lshl_add_u32 v{VGa}, v{VG}, 4, v45
    v_add_u32 v{VGa}, s59, v{VGa}
    v_lshl_add_u32 v130, v{VG}, 3, v45       ; 2*(16j+4g)
    v_add_u32 v131, s59, v130
    v_mov_b32 v132, v{g['DSK']}
    v_mov_b32 v133, v{g['DSK']}
    """)
    for i in range(32): k(f"v_mov_b32 v{i}, 0")
    SETS = [32, 142]
    def creads(s, rho):
        b = SETS[s]; L = []
        for m in range(8):
            gg = b + 32 + 4 * m; f = b + 4 * m
            L.append(f"ds_read_b128 v[{gg}:{gg+3}], v{VGa} offset:{64*(8*m + 7 - rho)}")
            L.append(f"ds_read_b64 v[{f}:{f+1}], v{VF} offset:{64*(63 - 8*m - rho)}")
            L.append(f"ds_read_b64 v[{f+2}:{f+3}], v{VF} offset:{64*(63 - 8*m - rho) + 8}")
        return L
    def cm(s):
        b = SETS[s]; L = []
        for m in range(8):
            for I in range(m, 8):
                gg = b + 32 + 4 * (I - m); f = b + 4 * m
                L.append(f"v_mfma_f32_16x16x32_bf16 v[{4*I}:{4*I+3}], v[{f}:{f+3}], v[{gg}:{gg+3}], v[{4*I}:{4*I+3}]")
        return L
    k("s_waitcnt vmcnt(0) lgkmcnt(0)")
    k.stamp(13)
    k("\n".join(creads(0, 0)))
    k(f"s_mov_b32 s35, 0\nfz_cv:\ns_waitcnt lgkmcnt(0)")
    k("\n".join(front(cm(0), creads(1, 1))))
    k(f"v_subrev_u32 v{VF}, 128, v{VF}\nv_subrev_u32 v{VGa}, 128, v{VGa}\ns_waitcnt lgkmcnt(0)")
    k("\n".join(front(cm(1), creads(0, 0))))
    k("s_add_u32 s35, s35, 1\ns_cmp_lt_u32 s35, 4\ns_cbranch_scc1 fz_cv")
    if o.get('p3'): k.stamp(2)
    k.srd(44, 4, XBYTES, add=WS_YT)
    k(f"s_lshl_b32 s30, s58, 12\ns_lshl_b32 s31, s58, 2\ns_add_u32 s31, s31, {FL_Y}\ns_waitcnt lgkmcnt(0)")
    for I in range(8): k(f"ds_read_b64 v[{32+2*I}:{33+2*I}], v131 offset:{480 + 512*I}")
    k("s_waitcnt lgkmcnt(0)")
    for I in range(8):
        a = 4 * I; oo = 64 + 2 * I
        for hh in range(2):
            u = 32 + 2 * I + hh; t = 100 + 8 * hh
            k(f"""
            v_lshlrev_b32 v{t}, 16, v{u}
            v_and_b32 v{t+1}, 0xffff0000, v{u}
            v_pk_mul_f32 v[{t}:{t+1}], v[{t}:{t+1}], v[132:133]
            v_cvt_pk_bf16_f32 v{t+2}, v{t}, v{t+1}
            v_cvt_pk_bf16_f32 v{t+3}, v{a+2*hh}, v{a+2*hh+1}
            v_lshlrev_b32 v{t}, 16, v{t+2}
            v_and_b32 v{t+1}, 0xffff0000, v{t+2}
            v_lshlrev_b32 v{t+4}, 16, v{t+3}
            v_and_b32 v{t+5}, 0xffff0000, v{t+3}
            v_pk_add_f32 v[{t}:{t+1}], v[{t}:{t+1}], v[{t+4}:{t+5}]
            v_cvt_pk_bf16_f32 v{oo+hh}, v{t}, v{t+1}
            """)
        k(f"buffer_store_dwordx2 v[{oo}:{oo+1}], v130, s[44:47], s30 offen offset:{512*I} sc1")
    if o.get('p3'): k.stamp(4)
    set_flag(k, 0, 1, 31)
    k.stamp(14)
    k("s_branch fz_fin")

def g3map(k, tp, e):
    k(f"s_and_b32 s{tp}, s2, 7\ns_lshl_b32 s{tp}, s{tp}, 2\ns_lshr_b32 s{e}, s2, 6\ns_add_u32 s{tp}, s{tp}, s{e}\ns_lshr_b32 s{e}, s2, 3\ns_and_b32 s{e}, s{e}, 7")

class Gemm3:
  def __init__(self, k, o):
    self.g = self.run(k, o)
  def pre(self): next(self.g)
  def wcheck(self): next(self.g)
  def wregs(self): next(self.g)
  def main(self): next(self.g, None)
  def run(self, k, o):
    RS = 336; YL = YL_
    TP, E = 20, 21
    k(f"""
    s_load_dwordx2 s[6:7], s[0:1], {ARG['x']}
    s_load_dwordx2 s[8:9], s[0:1], {ARG['out']}
    s_add_u32 s29, s{C}, s{W}
    s_and_b32 s29, s29, 15
    """)
    g3map(k, TP, E)
    k.srd(24, 4, WOBYTES, add=WS_WO)
    k.srd(36, 4, XBYTES, add=WS_YT)
    ACC = 0; RING = 80
    def HR(q): return 80 + 16 * q
    def WR(q): return 152 + 20 * q
    V16, V8, VH16, VH8 = 242, 243, 244, 245
    k(f"""
    v_lshlrev_b32 v{V16}, 4, v{VL}
    v_lshlrev_b32 v{V8}, 3, v{VL}
    v_lshrrev_b32 v4, 4, v{VL}
    v_and_b32 v5, 7, v{VL}
    v_lshl_add_u32 v5, v4, 3, v5
    v_and_b32 v6, 8, v{VL}
    v_cmp_eq_u32 vcc, 0, v6
    v_lshlrev_b32 v6, 4, v5
    v_lshlrev_b32 v7, 3, v5
    v_mov_b32 v8, {OOB}
    v_cndmask_b32 v{VH16}, v8, v6, vcc
    v_cndmask_b32 v{VH8}, v8, v7, vcc
    s_mul_i32 s57, s{TP}, {64*4608}
    s_mul_i32 s58, s{E}, {16*20736}
    v_lshrrev_b32 v4, 3, v{VL}
    v_lshl_add_u32 v4, v4, 2, s29
    v_and_b32 v4, 15, v4
    v_lshlrev_b32 v237, 5, v4
    v_and_b32 v5, 7, v{VL}
    v_lshl_add_u32 v237, v5, 2, v237
    s_lshl_b32 s10, s{E}, 9
    s_add_u32 s10, s10, {FL_W}
    v_add_u32 v237, s10, v237
    v_lshrrev_b32 v4, 1, v{VL}
    v_lshl_add_u32 v4, v4, 2, s29
    v_and_b32 v4, 15, v4
    v_and_b32 v5, 1, v{VL}
    v_lshlrev_b32 v5, 2, v5
    v_lshl_add_u32 v250, v4, 3, v5
    s_lshl_b32 s11, s{TP}, 7
    s_add_u32 s11, s11, {FL_H}
    v_add_u32 v250, s11, v250
    s_waitcnt lgkmcnt(0)
    """)
    def setgrp(dW):
        k(f"s_mul_i32 s50, s29, 4608\ns_add_u32 s50, s50, s57\ns_add_u32 s51, s50, {16*4608}\ns_add_u32 s52, s50, {32*4608}\ns_add_u32 s63, s50, {48*4608}")
        k(f"s_mul_i32 s54, s29, 20736\ns_add_u32 s54, s54, s58")
    def nextgrp(): k("s_add_u32 s29, s29, 4\ns_and_b32 s29, s29, 15"); setgrp(0)
    def hcheck(i):
        L = k.label("hc"); D = k.label("hd")
        k(f"""
        {L}:
        s_and_b32 s33, s59, {3 << (2*i)}
        s_cbranch_scc0 {D}
        s_add_u32 s62, s62, 1
        s_cmp_ge_u32 s62, {SPIN}
        s_cbranch_scc1 {D}
        {xm(0xff)}
        buffer_load_dword v251, v250, s[{FLS}:{FLS+3}], 0 offen sc1
        s_waitcnt vmcnt(0)
        v_cmp_ne_u32 vcc, s{NON}, v251
        s_mov_b64 exec, -1
        s_mov_b32 s59, vcc_lo
        s_branch {L}
        {D}:
        """)
    k.srd(40, 6, XBYTES)
    k.srd(44, 8, XBYTES)
    def loadsW(q):
        b = WR(q); L = []
        if q < 4:
            L.append(f"s_add_u32 s55, s54, {q*4608}")
            for dt in range(4): L.append(f"buffer_load_dwordx4 v[{b+4*dt}:{b+3+4*dt}], v{V16}, s[24:27], s55 offen offset:{dt*1024} sc1")
            L.append(f"s_add_u32 s55, s55, 4096")
            L.append(f"buffer_load_dwordx4 v[{b+16}:{b+19}], v{VH16}, s[24:27], s55 offen sc1")
        else:
            L.append(f"s_add_u32 s55, s54, 18432")
            for dt in range(4): L.append(f"buffer_load_dwordx2 v[{b+2*dt}:{b+1+2*dt}], v{V8}, s[24:27], s55 offen offset:{dt*512} sc1")
            L.append(f"buffer_load_dwordx2 v[{b+8}:{b+9}], v{VH8}, s[24:27], s55 offen offset:2048 sc1")
        return L
    def loadsH(q):
        b = HR(q); L = []
        if q < 4:
            for tb in range(4): L.append(f"buffer_load_dwordx4 v[{b+4*tb}:{b+4*tb+3}], v{V16}, s[12:15], s{[50, 51, 52, 63][tb]} offen offset:{q*1024} sc1")
        else:
            for tb in range(4): L.append(f"s_add_u32 s55, s{[50, 51, 52, 63][tb]}, 4096\nbuffer_load_dwordx2 v[{b+2*tb}:{b+2*tb+1}], v{V8}, s[12:15], s55 offen sc1")
        return L
    def mf(q, first=False):
        h = HR(q); w = WR(q); out = []
        for dt in range(5):
            for tb in range(4):
                a = ACC + (dt * 4 + tb) * 4
                cc = "0" if first else f"v[{a}:{a+3}]"
                if q < 4: out.append(f"v_mfma_f32_16x16x32_bf16 v[{a}:{a+3}], v[{w+4*dt}:{w+3+4*dt}], v[{h+4*tb}:{h+4*tb+3}], {cc}")
                else: out.append(f"v_mfma_f32_16x16x16_bf16 v[{a}:{a+3}], v[{w+2*dt}:{w+1+2*dt}], v[{h+2*tb}:{h+2*tb+1}], {cc}")
        return out
    setgrp(0)
    yield
    L = k.label("wf"); D = k.label("wfd")
    k(f"""
    s_mov_b32 s62, 0
    {xm(0x1f1f1f1f)}
    {L}:
    s_waitcnt vmcnt(0)
    v_cmp_ne_u32 vcc, s{NON}, v238
    s_cbranch_vccz {D}
    s_add_u32 s62, s62, 1
    s_cmp_ge_u32 s62, {SPIN}
    s_cbranch_scc1 {D}
    buffer_load_dword v238, v237, s[{FLS}:{FLS+3}], 0 offen sc1
    s_branch {L}
    {D}:
    s_mov_b64 exec, -1
    """)
    if o.get('wearly'):
        for q in range(4): k("\n".join(loadsW(q)))
    yield
    for q in range(4 if o.get('wearly') else 0, 5): k("\n".join(loadsW(q)))
    k(f"s_mul_i32 s56, s{W}, {REG}\ns_cmp_eq_u32 s{W}, 3\ns_cselect_b32 s56, {WQ[3]}, s56")
    k("s_mov_b64 exec, -1")
    yield
    k("s_mov_b64 exec, -1")
    k(f"v_add_u32 v246, s56, v{V16}\nv_add_u32 v247, s56, v{V8}\nv_and_b32 v248, 0x1ff, v{VH16}\nv_add_u32 v248, s56, v248\nv_and_b32 v249, 0xff, v{VH8}\nv_add_u32 v249, s56, v249")
    k("s_mov_b32 s59, 0xff\ns_mov_b32 s62, 0")
    hcheck(0)
    k.stamp(14)
    def ldsW(q):
        b = WR(q); L = []
        if q < 4:
            for dt in range(4): L.append(f"ds_read_b128 v[{b+4*dt}:{b+3+4*dt}], v246 offset:{q*4608 + dt*1024}")
            L.append(f"ds_read_b128 v[{b+16}:{b+19}], v248 offset:{q*4608 + 4096}")
        else:
            for dt in range(4): L.append(f"ds_read_b64 v[{b+2*dt}:{b+1+2*dt}], v247 offset:{18432 + dt*512}")
            L.append(f"ds_read_b64 v[{b+8}:{b+9}], v249 offset:{18432 + 2048}")
        return L
    for q in range(5): k("\n".join(loadsH(q)))
    nextgrp(); hcheck(1)
    if o.get('p3') == 2: k.stamp(11)
    for q in range(5):
        k("s_waitcnt vmcnt(16)")
        k("\n".join(mf(q, q == 0)))
        k("\n".join(loadsH(q) + ldsW(q)))
    if o.get('p3') == 2: k.stamp(8)
    nextgrp(); hcheck(2)
    for q in range(5):
        k(f"s_waitcnt vmcnt({4*(4-q) + 9*q}) lgkmcnt(0)")
        k("\n".join(mf(q)))
        k("\n".join(loadsH(q) + loadsW(q)))
    if o.get('p3') == 2: k.stamp(9)
    nextgrp(); hcheck(3)
    for q in range(5):
        k("s_waitcnt vmcnt(36)")
        k("\n".join(mf(q)))
        k("\n".join(loadsH(q) + loadsW(q)))
    if o.get('p3') == 2: k.stamp(10)
    for q in range(5):
        k(f"s_waitcnt vmcnt({9*(4-q)})")
        k("\n".join(mf(q)))
    XB = RING
    if o.get('p3'): k.stamp(3)
    k(f"""
    s_waitcnt vmcnt(0)
    s_lshl_b32 s30, s{TP}, 6
    v_add_u32 v{V8}, s30, v{VL}
    v_mul_u32_u24 v{V8}, 1152, v{V8}
    s_mul_i32 s30, s{E}, 144
    s_lshl_b32 s31, s{W}, 4
    s_add_u32 s30, s30, s31
    v_add_u32 v{V8}, s30, v{V8}
    buffer_load_dwordx4 v[{XB}:{XB+3}], v{V8}, s[40:43], 0 offen
    buffer_load_dwordx4 v[{XB+4}:{XB+7}], v{V8}, s[40:43], 0 offen offset:64
    buffer_load_dwordx4 v[{XB+8}:{XB+11}], v{V8}, s[40:43], 0 offen offset:128
    v_and_b32 v{VH16}, 15, v{VL}
    v_mul_u32_u24 v{VH16}, {RS}, v{VH16}
    v_lshrrev_b32 v{VH8}, 4, v{VL}
    v_lshl_add_u32 v{VH16}, v{VH8}, 4, v{VH16}
    v_add_u32 v{VH16}, s56, v{VH16}
    """)
    for dt in range(5):
        for tb in range(4):
            a = ACC + (dt * 4 + tb) * 4
            k(f"ds_write_b128 v{VH16}, v[{a}:{a+3}] offset:{tb*16*RS + dt*64}")
    k(f"s_mul_i32 s30, s{E}, 288\ns_add_u32 s30, s30, {FL_Y}")
    if o.get('p3'): k.stamp(4)
    poll(k, 100, 102, 30, 36, 2)
    if o.get('p3'): k.stamp(5)
    k(f"""
    v_lshrrev_b32 v3, 3, v{VL}
    v_and_b32 v4, 7, v{VL}
    v_lshlrev_b32 v3, 12, v3
    v_lshl_add_u32 v3, v4, 4, v3
    s_mul_i32 s30, s{E}, {72*4096}
    s_lshl_b32 s31, s{TP}, 7
    s_add_u32 s30, s30, s31
    s_lshl_b32 s31, s{W}, 15
    s_add_u32 s30, s30, s31
    s_lshl_b32 s31, s{W}, 10
    s_add_u32 m0, s31, {YL}
    buffer_load_dwordx4 v3, s[36:39], s30 offen sc1 lds
    s_add_u32 s30, s30, {4*32768}
    s_add_u32 m0, s31, {YL+4096}
    buffer_load_dwordx4 v3, s[36:39], s30 offen sc1 lds
    s_cmp_lg_u32 s{W}, 0
    s_cbranch_scc1 fz_y2
    s_add_u32 s30, s30, {4*32768}
    s_mov_b32 m0, {YL+8192}
    buffer_load_dwordx4 v3, s[36:39], s30 offen sc1 lds
    fz_y2:
    s_waitcnt lgkmcnt(0)
    s_barrier
    v_mul_u32_u24 v{VH16}, {RS}, v{VL}
    s_lshl_b32 s30, s{W}, 5
    v_add_u32 v{VH16}, s30, v{VH16}
    v_add_u32 v246, {WQ[3]}, v{VH16}
    v_lshlrev_b32 v{VH8}, 1, v{VL}
    s_lshl_b32 s30, s{W}, 10
    s_add_u32 s30, s30, {YL}
    v_add_u32 v{VH8}, s30, v{VH8}
    """)
    def fin(ps):
        Pp = 0; Y = 40; Tm = 48
        for w in range(4):
            for hh in range(2):
                k(f"ds_read_b128 v[{Pp+8*w+4*hh}:{Pp+8*w+4*hh+3}], v{VH16 if w < 3 else 246} offset:{(w % 3 if w < 3 else 0)*64*RS + ps*128 + hh*16}")
        if ps == 0: k("s_waitcnt vmcnt(0)")
        for i in range(8): k(f"ds_read_u16 v{Y+i}, v{VH8} offset:{ps*4096 + i*128}")
        k("s_waitcnt lgkmcnt(0)")
        for i in range(4):
            a = Pp + 2 * i
            k(f"""
            v_pk_add_f32 v[{a}:{a+1}], v[{a}:{a+1}], v[{a+8}:{a+9}]
            v_pk_add_f32 v[{a+16}:{a+17}], v[{a+16}:{a+17}], v[{a+24}:{a+25}]
            v_pk_add_f32 v[{a}:{a+1}], v[{a}:{a+1}], v[{a+16}:{a+17}]
            v_cvt_pk_bf16_f32 v{Tm}, v{a}, v{a+1}
            v_lshlrev_b32 v{a}, 16, v{Tm}
            v_and_b32 v{a+1}, 0xffff0000, v{Tm}
            v_lshlrev_b32 v{Tm+2}, 16, v{XB+4*ps+i}
            v_and_b32 v{Tm+3}, 0xffff0000, v{XB+4*ps+i}
            v_lshlrev_b32 v{Tm+4}, 16, v{Y+2*i}
            v_lshlrev_b32 v{Tm+5}, 16, v{Y+2*i+1}
            v_pk_add_f32 v[{Tm+2}:{Tm+3}], v[{Tm+2}:{Tm+3}], v[{Tm+4}:{Tm+5}]
            v_cvt_pk_bf16_f32 v{Tm}, v{Tm+2}, v{Tm+3}
            v_lshlrev_b32 v{Tm+2}, 16, v{Tm}
            v_and_b32 v{Tm+3}, 0xffff0000, v{Tm}
            v_pk_add_f32 v[{a}:{a+1}], v[{a}:{a+1}], v[{Tm+2}:{Tm+3}]
            v_cvt_pk_bf16_f32 v{56+4*ps+i}, v{a}, v{a+1}
            """)
        k(f"buffer_store_dwordx4 v[{56+4*ps}:{59+4*ps}], v{V8}, s[44:47], 0 offen offset:{ps*64}")
    if o.get('p3'): k.stamp(6)
    fin(0); fin(1)
    if o.get('p3'): k.stamp(7)
    k(f"s_cmp_lg_u32 s{W}, 0\ns_cbranch_scc1 fz_fin")
    fin(2)
    k(f"""
    s_cmp_lg_u32 s2, 0
    s_cbranch_scc1 fz_fin
    v_mov_b32 v0, 0
    v_mov_b32 v1, s{NON}
    s_mov_b64 exec, 1
    buffer_store_dword v1, v0, s[{FLS}:{FLS+3}], 0 offen
    s_mov_b64 exec, -1
    s_branch fz_fin
    """)
```

```python
import sys; sys.path.insert(0, "dev")
from common11 import *
SLOT = 34816; NS = 4
XTL = 104448; RPL = 114688
Z1 = 160
WOFF = 16384


ROWA = 139264
COLP = ROWA + 1024
WPRIV = COLP + 2 * 768
XTS = WPRIV + 1280
assert XTS + 4 * 5120 <= 163840
KTAB = 104448
CNT = WPRIV + 1024
WFL = 163000
RPK = XTS
WS_RS = WS_ST + 0x90000
def phase0(k, o):
    k(f"""
    s_getpc_b64 s[28:29]
    fz_pc:
    s_cmp_ge_u32 s2, 256
    s_cbranch_scc1 fz_end
    v_lshlrev_b32 v1, 7, v0
    v_min_u32 v1, fz_end-fz_pc, v1
    global_load_dword v254, v1, s[28:29]
    s_load_dwordx2 s[4:5], s[0:1], {ARG['ws']}
    s_load_dwordx2 s[6:7], s[0:1], {ARG['x']}
    s_load_dwordx2 s[8:9], s[0:1], {ARG['w_in']}
    v_lshrrev_b32 v1, 6, v0
    v_and_b32 v{VL}, 63, v0
    v_readfirstlane_b32 s{W}, v1
    s_and_b32 s30, s2, 7
    s_lshr_b32 s31, s2, 3
    s_and_b32 s{P}, s30, 1
    s_lshl_b32 s{P}, s{P}, 3
    s_lshr_b32 s32, s31, 2
    s_add_u32 s{P}, s{P}, s32
    s_lshr_b32 s{C}, s30, 1
    s_lshl_b32 s{C}, s{C}, 2
    s_and_b32 s32, s31, 3
    s_add_u32 s{C}, s{C}, s32
    s_cmp_lt_u32 s{W}, 4
    s_cbranch_scc1 fz_c1
    s_cmp_lt_u32 s{W}, 6
    s_cbranch_scc1 fz_l1W
    """)
    p1_loader(k, o, "X")
    k("fz_l1W:")
    p1_loader(k, o, "W")
    k("fz_c1:")
    p1_consumer(k, o)

def get_nonce(k):
    k(f"s_add_u32 s10, s4, {WS_FL}\ns_addc_u32 s11, s5, 0\ns_load_dword s{NON}, s[10:11], 0")
    k.srd(FLS, 4, FL_BYTES, add=WS_FL)
def fin_nonce(k):
    k(f"s_waitcnt lgkmcnt(0)\ns_mul_i32 s{NON}, s{NON}, 0x9E3779B1\ns_add_u32 s{NON}, s{NON}, 0x7F4A7C15")

def p1_addr(k, VX0b, VX1b, VWb, tq_s):
    k(f"""
    v_and_b32 v3, 15, v{VL}
    v_lshrrev_b32 v4, 4, v{VL}
    v_lshrrev_b32 v5, 1, v3
    v_xor_b32 v5, v5, v4
    v_lshlrev_b32 v5, 4, v5
    v_lshl_add_u32 v5, v3, 7, v5
    s_lshl_b32 s32, s{tq_s}, 12
    v_add_u32 v{VX0b}, s32, v5
    v_xor_b32 v{VX1b}, 64, v{VX0b}
    v_bfe_u32 v5, v{VL}, 2, 2
    v_and_b32 v6, 1, v4
    v_lshl_add_u32 v5, v6, 2, v5
    v_lshrrev_b32 v6, 1, v4
    v_lshl_add_u32 v5, v6, 4, v5
    v_mul_u32_u24 v5, 288, v5
    v_and_b32 v6, 3, v{VL}
    v_lshl_add_u32 v5, v6, 3, v5
    v_add_u32 v{VWb}, {WOFF}, v5
    """)

def p1_loader(k, o, typ):
    VD = 200; n = 8 if typ == "X" else 9
    k(f"s_sub_u32 s57, s{W}, 4      ; lw\ns_setprio {o.get('prioL', 3)}")
    if typ == "X":
        k(f"""
        v_lshrrev_b32 v3, 3, v{VL}
        v_and_b32 v4, 7, v{VL}
        v_lshrrev_b32 v5, 4, v{VL}
        v_xor_b32 v4, v4, v5
        v_mul_u32_u24 v3, 1152, v3
        v_lshl_add_u32 v3, v4, 4, v3
        v_xor_b32 v4, 64, v3
        s_sub_u32 s31, s{W}, 6
        s_lshl_b32 s30, s{P}, 7
        s_lshl_b32 s32, s31, 6
        s_add_u32 s30, s30, s32
        s_mul_i32 s30, s30, 1152
        s_lshl_b32 s44, s31, 13
        """)
        k("s_mov_b32 s40, 0\ns_waitcnt lgkmcnt(0)")
        k.srd(12, 6, XBYTES)
        for j in range(8):
            k(f"v_add_u32 v{VD+j}, s30, v{3 + (j & 1)}\ns_add_u32 s30, s30, {8*1152}\ns_add_u32 m0, s44, {j*1024}\nbuffer_load_dwordx4 v{VD+j}, s[12:15], s40 offen lds")
        kstep, k0 = 128, 0
    else:
        k(f"s_mul_i32 s32, s{C}, 288\ns_mov_b32 s33, 3641\ns_mul_i32 s31, s57, {9*64}\ns_mul_i32 s44, s57, {9*1024}\ns_add_u32 s44, s44, {WOFF}\nv_add_u32 v2, s31, v{VL}")
        k("s_mov_b32 s40, 4608\ns_waitcnt lgkmcnt(0)")
        k.srd(12, 8, 576 * 9216)
        for j in range(9):
            k(f"""
            v_add_u32 v3, {64*j}, v2
            v_mul_lo_u32 v4, v3, s33
            v_lshrrev_b32 v4, 16, v4
            v_mul_u32_u24 v5, 18, v4
            v_sub_u32 v5, v3, v5
            v_and_b32 v6, 0x33, v4
            v_bfe_u32 v7, v4, 2, 1
            v_lshl_or_b32 v6, v7, 3, v6
            v_bfe_u32 v7, v4, 3, 1
            v_lshl_or_b32 v6, v7, 2, v6
            v_mul_u32_u24 v6, 9216, v6
            v_lshl_add_u32 v6, v5, 4, v6
            v_add_u32 v{VD+j}, s32, v6
            s_add_u32 m0, s44, {j*1024}
            buffer_load_dwordx4 v{VD+j}, s[12:15], s40 offen lds
            """)
        kstep = 64 * 9216
    k("s_mov_b32 s41, s44\ns_mov_b32 s43, 0")
    tch = 1 if (typ == "X" and o.get('touch', 1) == 1) else 0
    TV = 209
    def issue(touch=True):
        L = []
        for j in range(8 if typ == 'X' else 9):
            L.append((f"s_add_u32 m0, s41, {j*1024}\n" if j else "s_mov_b32 m0, s41\n") + f"buffer_load_dwordx4 v{VD+j}, s[12:15], s40 offen {'sc1 ' if typ == 'X' else ''}lds")
        if tch and touch: L.append(f"s_cmp_lt_u32 s49, s51\ns_cselect_b32 s52, s49, {OOB}\nbuffer_load_dword v254, v{TV}, s[28:31], s52 offen\ns_add_u32 s49, s49, s50")
        L.append(f"s_add_u32 s40, s40, {kstep}\ns_add_u32 s41, s41, {SLOT}\ns_cmp_ge_u32 s41, {SLOT*NS}\ns_cselect_b32 s41, s44, s41")
        L.append(f"s_add_u32 s43, s43, 1\ns_cmp_eq_u32 s43, 9\ns_cselect_b32 s40, 0, s40")
        return L
    k("\n".join(issue(False)[n:]))
    for _ in range(2): k("\n".join(issue(False)))
    if o.get('p0'): k.stamp(5)
    if tch:
        k(f"""
        s_load_dwordx2 s[46:47], s[0:1], {ARG['w_sp']}
        s_load_dwordx2 s[54:55], s[0:1], {ARG['w_out']}
        v_mov_b32 v6, {OOB}
        v_and_b32 v3, 7, v{VL}
        v_lshrrev_b32 v4, 3, v{VL}
        v_lshlrev_b32 v3, 12, v3
        v_lshl_add_u32 v3, v4, 7, v3
        s_lshl_b32 s31, s2, 15
        v_add_u32 v3, s31, v3
        s_lshr_b32 s33, s2, {4 if o.get('rot') else 16}
        s_lshl_b32 s33, s33, 8
        v_lshl_add_u32 v4, v4, 7, s33
        v_and_b32 v4, 4095, v4
        v_and_b32 v3, 7, v{VL}
        v_lshl_add_u32 v3, v3, 12, v4
        v_add_u32 v3, s31, v3
        v_mov_b32 v{TV}, v3
        s_mov_b32 s49, 1000
        s_mov_b32 s50, 1
        s_mov_b32 s51, 1
        s_waitcnt lgkmcnt(0)
        """)
        k.srd(28, 46, 2048 * 4096)
        k(f"s_cmp_eq_u32 s{W}, 6\ns_cbranch_scc1 fz_t6")
        k.srd(28, 8, 576 * 9216)
        k(f"""
        s_mul_i32 s33, s2, {3*9216}
        s_cmp_lt_u32 s2, 192
        s_cselect_b32 s33, s33, {OOB}
        v_lshlrev_b32 v3, 7, v{VL}
        v_add_u32 v3, s33, v3
        v_cmp_gt_u32 vcc, 36, v{VL}
        v_cndmask_b32 v{TV}, v6, v3, vcc
        s_mov_b32 s49, {-9216 * o.get('tz1', 1)}
        s_mov_b32 s50, 9216
        s_mov_b32 s51, {3*9216}
        fz_t6:
        """)
    n0 = n; n = n + tch
    get_nonce(k)
    VX0, VX1, VW, VX0b, VX1b, VWb = 210, 211, 212, 213, 214, 215
    p1_addr(k, VX0b, VX1b, VWb, 57)
    CA = 44
    WF = 56
    ON = 108
    T = 112
    for i in range(4): k(f"v_mov_b32 v{ON+i}, 0x3f803f80")
    for i in range(12): k(f"v_mov_b32 v{CA+i}, 0")
    k(f"s_lshl_b32 s36, s57, 5\nv_add_u32 v{VWb}, s36, v{VWb}\nv_mov_b32 v{VW}, v{VWb}\ns_mov_b32 s34, 0\ns_mov_b32 s35, 0")
    k.srd(24, 4, 2048 * 16, add=WS_RS)
    k(f"s_lshl_b32 s36, s{P}, 7\ns_and_b32 s37, s57, 1\ns_lshl_b32 s37, s37, 6\ns_add_u32 s36, s36, s37\ns_lshl_b32 s36, s36, 4\nv_lshlrev_b32 v{T+8}, 4, v{VL}")
    k(f"""
    s_sub_u32 s56, 7, s{W}
    s_lshr_b32 s58, s56, 1
    s_xor_b32 s56, s56, s58
    s_lshl_b32 s58, s2, 1
    s_add_u32 s58, s58, s56
    s_add_u32 s59, s2, 512
    s_cmp_eq_u32 s56, 2
    s_cselect_b32 s58, s59, s58
    s_cmp_eq_u32 s56, 3
    s_cselect_b32 s58, 1000, s58
    s_lshl_b32 s59, s56, 13
    s_add_u32 s59, s59, {KTAB}
    """)
    k("\n".join(kgen_addr(k, o)))
    fin_nonce(k)
    for i in range(12): k(f"v_mov_b32 v{CA+i}, 0")
    adv = f"s_add_u32 s34, s34, {SLOT}\ns_cmp_ge_u32 s34, {SLOT*NS}\ns_cselect_b32 s34, 0, s34\nv_add_u32 v{VW}, s34, v{VWb}"
    nt = 3 if typ == "W" else 2
    def stage(z2, do_issue, wait):
        k(f"s_waitcnt vmcnt({wait})\ns_barrier")
        rd_ = []; mf = []
        if z2:
            for hf in range(2):
                for t in range(nt):
                    f = WF + (hf * 3 + t) * 4
                    for rd in range(2): rd_.append(f"ds_read_b64_tr_b16 v[{f+2*rd}:{f+2*rd+1}], v{VW} offset:{hf*32*288 + rd*8*288 + t*128}")
                    mf.append(f"v_mfma_f32_16x16x32_bf16 v[{CA+4*t}:{CA+4*t+3}], v[{ON}:{ON+3}], v[{f}:{f+3}], v[{CA+4*t}:{CA+4*t+3}]")
        dm = issue() if do_issue else []
        if z2:
            k("\n".join(rd_ + dm[:2]))
            k("s_waitcnt lgkmcnt(0)")
            k("\n".join(front(dm[2:], mf)))
            k(adv)
        else: k("\n".join(dm))
        k("s_add_u32 s35, s35, 1")
    def gran_check(vd, va, so, full):
        L = k.label("rp"); D = k.label("rd")
        k(f"""
        s_mov_b32 s62, 0
        {"" if full else xm(0xffffffff)}
        {L}:
        v_cmp_ne_u32 vcc, s{NON}, v{vd+1}
        v_cmp_ne_u32 s[60:61], s{NON}, v{vd+3}
        s_or_b64 vcc, vcc, s[60:61]
        s_cbranch_vccz {D}
        s_add_u32 s62, s62, 1
        s_cmp_ge_u32 s62, {SPIN}
        s_cbranch_scc1 {D}
        buffer_load_dwordx4 v[{vd}:{vd+3}], v{va}, s[24:27], s{so} offen sc1
        s_waitcnt vmcnt(0)
        s_branch {L}
        {D}:
        """)
    if o.get('p0'):
        k.stamp(7); k(f"s_waitcnt vmcnt({2*n0})"); k.stamp(8)
    k(f"fz_l1{typ}a:")
    stage(True, True, 2 * n0)
    if typ == "X":
        L = k.label("rg")
        k(f"s_cmp_eq_u32 s35, 5\ns_cbranch_scc0 {L}\nbuffer_load_dwordx4 v[{T+4}:{T+7}], v{T+8}, s[24:27], s36 offen sc1\n{L}:")
    k(f"s_cmp_lt_u32 s35, 6\ns_cbranch_scc1 fz_l1{typ}a")
    if typ == "X":
        k(f"s_waitcnt vmcnt({n})")
        gran_check(T + 4, T + 8, 36, True)
        k.srd(12, 4, XBYTES, add=WS_XN)
        k(f"""
        v_lshlrev_b32 v{T}, 2, v{VL}
        s_sub_u32 s33, s{W}, 6
        s_lshl_b32 s33, s33, 8
        s_add_u32 s33, s33, {ROWA}
        v_add_u32 v{T}, s33, v{T}
        ds_write_b32 v{T}, v{T+4}
        ds_write_b32 v{T}, v{T+6} offset:512
        """)
    k(f"fz_l1{typ}a2:")
    stage(True, True, 2 * n0)
    k(f"s_cmp_lt_u32 s35, 9\ns_cbranch_scc1 fz_l1{typ}a2")
    k(f"s_lshl_b32 s33, s57, 6\ns_add_u32 s33, s33, {COLP}\nv_lshlrev_b32 v{T}, 2, v{VL}\nv_add_u32 v{T}, s33, v{T}\n{xm(0xffff)}")
    for t in range(nt): k(f"ds_write_b32 v{T}, v{CA+4*t} offset:{t*256}")
    k("s_mov_b64 exec, -1\ns_waitcnt lgkmcnt(0)\ns_barrier")
    k.stamp(3)
    k("\n".join(issue()))
    if tch:
        L = k.label("t7")
        k(f"s_cmp_eq_u32 s{W}, 6\ns_cbranch_scc1 {L}")
        k.srd(28, 54, WOBYTES)
        k(f"s_mul_i32 s33, s2, {81*128}\nv_lshlrev_b32 v3, 7, v{VL}\nv_add_u32 v3, s33, v3\nv_mov_b32 v6, {OOB}\nv_cmp_gt_u32 vcc, 27, v{VL}\nv_cndmask_b32 v{TV}, v6, v3, vcc\ns_mov_b32 s49, 0\ns_mov_b32 s50, {27*128}\ns_mov_b32 s51, {81*128}\n{L}:")
    ex = 0
    if typ == "X":
        k.srd(24, 4, XBYTES, add=WS_XT)
        k(f"""
        v_bfe_u32 v{T}, v{VL}, 2, 2
        v_mul_u32_u24 v{T}, 1216, v{T}
        v_and_b32 v{T+1}, 3, v{VL}
        v_lshl_add_u32 v{T}, v{T+1}, 3, v{T}
        v_lshrrev_b32 v{T+1}, 4, v{VL}
        v_lshl_add_u32 v{T}, v{T+1}, 5, v{T}
        s_sub_u32 s37, s{W}, 6
        s_lshl_b32 s33, s37, 9
        s_add_u32 s33, s33, {XTS}
        v_add_u32 v{T}, s33, v{T}
        s_mul_i32 s33, s2, 9216
        s_lshl_b32 s36, s37, 12
        s_add_u32 s33, s33, s36
        s_lshl_b32 s36, s2, 1
        s_add_u32 s36, s36, s37
        s_lshl_b32 s36, s36, 2
        s_add_u32 s36, s36, {FL_T}
        """)
        for ps in range(5):
            for rd in range(2): k(f"ds_read_b64_tr_b16 v[{72+4*ps+2*rd}:{72+4*ps+2*rd+1}], v{T} offset:{rd*4*1216 + ps*128}")
        k("s_waitcnt lgkmcnt(0)")
        for ps in range(5): k(f"buffer_store_dwordx4 v[{72+4*ps}:{72+4*ps+3}], v{T+8}, s[24:27], s33 offen sc1\ns_add_u32 s33, s33, 1024")
        ex = 5
        nrow = o.get('trows', 4)
        k.srd(24, 46, 2048 * 4096)
        k(f"s_lshl_b32 s33, s2, 1\ns_add_u32 s33, s33, s37\ns_lshl_b32 s33, s33, 14\nv_lshlrev_b32 v{T+2}, 7, v{VL}")
        for i in range(2): k(f"buffer_load_dword v254, v{T+2}, s[24:27], s33 offen\ns_add_u32 s33, s33, 8192")
        ex = 7
    elif o.get('prew', 0):
        k.srd(24, 4, FRAG9, add=WS_Z2)
        k(f"s_mul_i32 s33, s{C}, {9*64}\ns_lshl_b32 s36, s{P}, 2\ns_add_u32 s33, s33, s36\ns_lshl_b32 s36, s57, 1\ns_add_u32 s33, s33, s36\ns_lshl_b32 s33, s33, 10")
        for i in range(9):
            k(f"buffer_store_dwordx4 v[{ON}:{ON+3}], v{T+8}, s[24:27], s33 offen sc1\nbuffer_store_dwordx4 v[{ON}:{ON+3}], v{T+8}, s[24:27], s33 offen offset:1024 sc1\ns_add_u32 s33, s33, 65536")
        ex = 18
    stage(False, False, 3 * n + tch + ex)
    for _ in range(3): stage(False, True, 2 * n + tch + ex)
    stage(False, True, 2 * n + tch)
    if typ == "X":
        k(f"v_mov_b32 v{T}, 0\nv_mov_b32 v{T+1}, s{NON}\ns_mov_b64 exec, 1\nbuffer_store_dword v{T+1}, v{T}, s[{FLS}:{FLS+3}], s36 offen sc1\ns_mov_b64 exec, -1")
    stage(False, True, 2 * n + tch)
    kgen_setup(k, o)
    for r in (2, 1, 0): stage(False, False, r * n + tch + 14)
    k("s_waitcnt vmcnt(0)\ns_barrier")
    k.stamp(6)
    k("s_branch fz_loader")

def p1_consumer(k, o):
    A2, A1 = 0, 72
    FX, FY = 144, 188
    VX0, VX1, VW, VX0b, VX1b, VWb = 232, 233, 234, 235, 236, 237
    NMR, RR = 238, 240
    VC1, VONE = 242, 244
    V16 = 246; VPG, VPR = 247, 248
    k(f"s_load_dwordx2 s[24:25], s[0:1], {ARG['w_sp']}\ns_load_dwordx2 s[26:27], s[0:1], {ARG['w_out']}\ns_waitcnt lgkmcnt(0)")
    k.srd(12, 6, XBYTES)
    k(f"""
    s_lshl_b32 s30, s2, 2
    s_add_u32 s30, s30, s{W}
    s_mul_i32 s31, s30, 2304
    v_lshlrev_b32 v2, 4, v{VL}
    v_mov_b32 v3, {OOB}
    v_cmp_gt_u32 vcc, 36, v{VL}
    v_cndmask_b32 v2, v3, v2, vcc
    buffer_load_dwordx4 v[8:11], v2, s[12:15], s31 offen
    buffer_load_dwordx4 v[12:15], v2, s[12:15], s31 offen offset:576
    buffer_load_dwordx4 v[16:19], v2, s[12:15], s31 offen offset:1152
    buffer_load_dwordx4 v[20:23], v2, s[12:15], s31 offen offset:1728
    """)
    get_nonce(k)
    p1_addr(k, VX0b, VX1b, VWb, W)
    k(f"""
    v_mov_b32 v{VX0}, v{VX0b}
    v_mov_b32 v{VX1}, v{VX1b}
    v_mov_b32 v{VW}, v{VWb}
    s_mov_b32 s34, 0
    s_mov_b32 s56, {fbits(C2)}
    s_mov_b32 s57, {fbits(C2)}
    v_mov_b32 v{VC1}, {fbits(C1)}
    v_mov_b32 v{VC1+1}, {fbits(C1)}
    v_mov_b32 v{VONE}, 1.0
    v_mov_b32 v{VONE+1}, 1.0
    v_lshlrev_b32 v{V16}, 4, v{VL}
    s_lshl_b32 s33, s{W}, 8
    s_add_u32 s33, s33, {WPRIV}
    v_lshrrev_b32 v3, 4, v{VL}
    v_lshlrev_b32 v3, 4, v3
    v_add_u32 v{VPG}, s33, v3
    v_and_b32 v3, 31, v{VL}
    v_lshlrev_b32 v3, 2, v3
    v_add_u32 v{VPR}, s33, v3
    s_setprio {o.get('prio1', 2)}
    """)
    fin_nonce(k)
    if o.get('touch', 1):
        k(f"""
        v_mul_u32_u24 v3, 43, v{VL}
        v_lshrrev_b32 v3, 8, v3
        v_mul_u32_u24 v4, 6, v3
        v_sub_u32 v4, v{VL}, v4
        s_lshl_b32 s31, s30, 1
        v_add_u32 v3, s31, v3
        v_mul_u32_u24 v3, 1152, v3
        v_lshl_add_u32 v3, v4, 7, v3
        s_mul_i32 s31, s30, 14
        v_add_u32 v7, s31, v{VL}
        v_min_u32 v7, 13823, v7
        s_mov_b32 s32, 29128
        v_mul_lo_u32 v4, v7, s32
        v_lshrrev_b32 v4, 20, v4
        v_mul_u32_u24 v5, 36, v4
        v_sub_u32 v5, v7, v5
        v_mul_u32_u24 v4, 9216, v4
        v_lshl_add_u32 v4, v5, 7, v4
        v_add_u32 v4, {192*9216 + 4608}, v4
        {xm(0xfff)}
        global_load_dword v254, v3, s[6:7] offset:384
        {xm((1 << 14) - 1)}
        global_load_dword v254, v4, s[8:9]
        s_mov_b64 exec, -1
        """)

    X = 32; S = 70
    if o.get('p0'): k.stamp(7)
    k(f"v_cmp_gt_u32 vcc, 36, v{VL}\ns_waitcnt vmcnt({2 if o.get('touch', 1) else 0})")
    if o.get('p0'): k.stamp(8)
    for i in range(16): k(f"v_lshlrev_b32 v{X+2*i}, 16, v{8+i}\nv_and_b32 v{X+2*i+1}, 0xffff0000, v{8+i}")
    for r in range(2):
        b = X + 16 * r; s_ = S + 8 * r
        k(f"v_pk_add_f32 v[{s_}:{s_+1}], v[{b}:{b+1}], v[{b+2}:{b+3}]")
    for i in range(2, 8):
        for r in range(2):
            b = X + 16 * r; s_ = S + 8 * r
            k(f"v_pk_add_f32 v[{s_}:{s_+1}], v[{s_}:{s_+1}], v[{b+2*i}:{b+2*i+1}]")
    for r in range(2): k(f"v_add_f32 v{S+8*r}, v{S+8*r}, v{S+8*r+1}")
    dpp_sum16(k, [S, S + 8])
    for r in range(2): xsum_rows(k, S + 8 * r, S + 8 * r + 1)
    for r in range(2):
        s_ = S + 8 * r
        k(f"v_mul_f32 v{s_}, {1.0/576!r}, v{s_}\nv_cndmask_b32 v{s_+6}, 0, v{s_}, vcc\nv_mov_b32 v{s_+7}, v{s_+6}")
    for i in range(8):
        for r in range(2):
            b = X + 16 * r; s_ = S + 8 * r
            k(f"v_pk_add_f32 v[{s_+4}:{s_+5}], v[{b+2*i}:{b+2*i+1}], v[{s_+6}:{s_+7}] neg_lo:[0,1] neg_hi:[0,1]")
            if i == 0: k(f"v_pk_mul_f32 v[{s_+2}:{s_+3}], v[{s_+4}:{s_+5}], v[{s_+4}:{s_+5}]")
            else: k(f"v_pk_fma_f32 v[{s_+2}:{s_+3}], v[{s_+4}:{s_+5}], v[{s_+4}:{s_+5}], v[{s_+2}:{s_+3}]")
    for r in range(2): k(f"v_add_f32 v{S+8*r+2}, v{S+8*r+2}, v{S+8*r+3}")
    dpp_sum16(k, [S + 2, S + 10])
    for r in range(2): xsum_rows(k, S + 8 * r + 2, S + 8 * r + 3)
    k.srd(36, 4, 2048 * 16, add=WS_RS)
    for r in range(2):
        s_ = S + 8 * r
        k(f"v_mul_f32 v{s_+2}, {1.0/576!r}, v{s_+2}")
        ln_finish(k, s_, s_ + 2)
        k(f"v_mul_f32 v{s_}, -v{s_}, v{s_+2}\nv_mov_b32 v{s_+1}, s{NON}\nv_mov_b32 v{s_+3}, s{NON}")
    for i in range(8):
        for r in range(2):
            a = X + 16 * r + 2 * i; s_ = S + 8 * r
            k(f"v_pk_fma_f32 v[{a}:{a+1}], v[{a}:{a+1}], v[{s_+2}:{s_+3}], v[{s_}:{s_+1}] op_sel_hi:[1,0,0]")
    for i in range(16): k(f"v_cvt_pk_bf16_f32 v{8+i}, v{X+2*i}, v{X+2*i+1}")
    k(f"s_mul_i32 s31, s{W}, {2*1216}\ns_add_u32 s31, s31, {XTS}\nv_lshlrev_b32 v3, 4, v{VL}\nv_add_u32 v3, s31, v3\n{xm((1 << 36) - 1)}")
    for i in range(4): k(f"ds_write_b128 v3, v[{8+4*i}:{11+4*i}] offset:{(i >> 1)*1216 + (i & 1)*576}")
    k(f"s_mov_b64 exec, -1\nv_mov_b32 v4, {CNT}\nv_mov_b32 v5, 0\nds_write_b32 v4, v5")
    k.srd(40, 4, XBYTES, add=WS_XN)
    k(f"s_mul_i32 s31, s30, 2304")
    for i in range(4): k(f"buffer_store_dwordx4 v[{8+4*i}:{11+4*i}], v2, s[40:43], s31 offen offset:{576*i} sc1")
    def rowgran():
        k(f"""
        s_lshl_b32 s31, s30, 5
        v_mov_b32 v249, 0
        s_waitcnt vmcnt(0)
        s_mov_b64 exec, 1
        buffer_store_dwordx4 v[112:115], v249, s[36:39], s31 offen sc1
        buffer_store_dwordx4 v[116:119], v249, s[36:39], s31 offen offset:16 sc1
        s_mov_b64 exec, -1
        """)
    for i in range(4): k(f"v_mov_b32 v{112+i}, v{S+i}\nv_mov_b32 v{116+i}, v{S+8+i}")
    k("s_waitcnt lgkmcnt(0)")
    def reads(F, half):
        vx = VX0 if half == 0 else VX1
        r = [f"ds_read_b128 v[{F+4*tb}:{F+4*tb+3}], v{vx} offset:{tb*2048}" for tb in range(2)]
        if o.get('nord1') == 1: return r
        if o.get('nord1') == 2: return [f"ds_read_b128 v[{F+8+4*i}:{F+8+4*i+3}], v{V16} offset:{i*1024}" for i in range(9)] + r
        for i in range(9):
            for rd in range(2):
                b = F + 8 + 4 * i + 2 * rd
                r.append(f"ds_read_b64_tr_b16 v[{b}:{b+1}], v{VW} offset:{half*32*288 + rd*8*288 + i*32}")
        return r
    def mfmas(F, z2, first=False):
        out = []; ACC = A2 if z2 else A1
        for i in range(9):
            for tb in range(2):
                a = ACC + (i * 2 + tb) * 4
                wf = f"v[{F+8+4*i}:{F+8+4*i+3}]"; xf = f"v[{F+4*tb}:{F+4*tb+3}]"
                A, B = (xf, wf) if z2 else (wf, xf)
                out.append(f"v_mfma_f32_16x16x32_bf16 v[{a}:{a+3}], {A}, {B}, {'0' if first else 'v[%d:%d]' % (a, a+3)}")
        return out
    adv = [f"s_add_u32 s34, s34, {SLOT}\ns_cmp_ge_u32 s34, {SLOT*NS}\ns_cselect_b32 s34, 0, s34",
           f"v_add_u32 v{VX0}, s34, v{VX0b}\nv_add_u32 v{VX1}, s34, v{VX1b}\nv_add_u32 v{VW}, s34, v{VWb}"]
    def gemm(z2):
        name = f"fz_g1{'a' if z2 else 'b'}"
        if o.get('p0') and z2: k.stamp(9)
        k("s_barrier")
        k.stamp(2 if z2 else 5)
        k("\n".join(reads(FX, 0)))
        k("s_waitcnt lgkmcnt(0)")
        k("\n".join(front2(mfmas(FX, z2, True), reads(FY, 1) + adv, o.get('per', 2))))
        k(f"s_mov_b32 s35, 1\ns_waitcnt lgkmcnt(0)\n{name}:\ns_barrier")
        k("\n".join(front2(mfmas(FY, z2), reads(FX, 0), o.get('per', 2))))
        k("s_waitcnt lgkmcnt(0)")
        k("\n".join(front2(mfmas(FX, z2), reads(FY, 1) + adv + ["s_add_u32 s35, s35, 1"], o.get('per', 2))))
        if z2:
            k("s_cmp_eq_u32 s35, 2\ns_cbranch_scc0 fz_nrg"); rowgran(); k("fz_nrg:")
        k(f"s_cmp_lt_u32 s35, 9\ns_waitcnt lgkmcnt(0)\ns_cbranch_scc1 {name}")
        k("\n".join(mfmas(FY, z2)))
    gemm(True)
    k.stamp(3)
    SU, SQ = FX, FX + 8
    CP = FX + 16
    T = 196
    PS, PQ = 212, 220
    k(f"""
    v_and_b32 v{T}, 15, v{VL}
    v_lshlrev_b32 v{T}, 2, v{T}
    v_add_u32 v{T+1}, {COLP}, v{T}
    s_lshl_b32 s33, s{W}, 7
    s_add_u32 s33, s33, {ROWA}
    v_add_u32 v{T}, s33, v{T}
    v_lshrrev_b32 v{T+2}, 4, v{VL}
    v_lshlrev_b32 v{T+2}, 4, v{T+2}
    v_add_u32 v{T+2}, s33, v{T+2}
    s_barrier
    ds_read_b128 v[{SU}:{SU+3}], v{T+2}
    ds_read_b128 v[{SU+4}:{SU+7}], v{T+2} offset:64
    ds_read_b128 v[{SQ}:{SQ+3}], v{T+2} offset:512
    ds_read_b128 v[{SQ+4}:{SQ+7}], v{T+2} offset:576
    """)
    for i in range(9): k(f"ds_read_b32 v{CP+4*i}, v{T+1} offset:{i*64}")
    k("s_waitcnt lgkmcnt(0)")
    for i in range(9):
        pairs = [A2 + (i * 2) * 4, A2 + (i * 2) * 4 + 2, A2 + (i * 2 + 1) * 4, A2 + (i * 2 + 1) * 4 + 2]
        cs = CP + 4 * i
        for n, a in enumerate(pairs): k(f"v_pk_mul_f32 v[{T+2*n}:{T+2*n+1}], v[{SU+2*n}:{SU+2*n+1}], v[{cs}:{cs+1}] op_sel_hi:[1,0]")
        for n, a in enumerate(pairs): k(f"v_pk_fma_f32 v[{a}:{a+1}], v[{a}:{a+1}], v[{SQ+2*n}:{SQ+2*n+1}], v[{T+2*n}:{T+2*n+1}]")
        gelu_group(k, pairs, T, 56, VC1, VONE)
        for n, a in enumerate(pairs):
            if i == 0: k(f"v_pk_mul_f32 v[{PQ+2*n}:{PQ+2*n+1}], v[{a}:{a+1}], v[{a}:{a+1}]\nv_mov_b32 v{PS+2*n}, v{a}\nv_mov_b32 v{PS+2*n+1}, v{a+1}")
            else: k(f"v_pk_fma_f32 v[{PQ+2*n}:{PQ+2*n+1}], v[{a}:{a+1}], v[{a}:{a+1}], v[{PQ+2*n}:{PQ+2*n+1}]\nv_pk_add_f32 v[{PS+2*n}:{PS+2*n+1}], v[{PS+2*n}:{PS+2*n+1}], v[{a}:{a+1}]")
    dpp_sum16(k, list(range(PS, PS + 16)))
    k.srd(36, 4, 16 * 16 * 2048, add=WS_ST)
    k(f"""
    {xm(0x0001000100010001)}
    ds_write_b128 v{VPG}, v[{PS}:{PS+3}]
    ds_write_b128 v{VPG}, v[{PS+4}:{PS+7}] offset:64
    ds_write_b128 v{VPG}, v[{PQ}:{PQ+3}] offset:128
    ds_write_b128 v{VPG}, v[{PQ+4}:{PQ+7}] offset:192
    s_mov_b64 exec, -1
    ds_read_b32 v{T+4}, v{VPR}
    ds_read_b32 v{T+6}, v{VPR} offset:128
    v_mov_b32 v{T+5}, s{NON}
    v_mov_b32 v{T+7}, s{NON}
    s_lshl_b32 s33, s{P}, 4
    s_add_u32 s33, s33, s{C}
    s_lshl_b32 s33, s33, 11
    s_lshl_b32 s53, s{W}, 9
    s_add_u32 s33, s33, s53
    v_and_b32 v{T+3}, 31, v{VL}
    v_lshlrev_b32 v{T+3}, 4, v{T+3}
    s_waitcnt lgkmcnt(0)
    {xm(0xffffffff)}
    buffer_store_dwordx4 v[{T+4}:{T+7}], v{T+3}, s[36:39], s33 offen sc1
    s_mov_b64 exec, -1
    """)
    k.stamp(4)
    gemm(False)
    k.stamp(6)
    Q = FX
    T = 196
    k(f"""
    v_and_b32 v249, 31, v{VL}
    v_lshlrev_b32 v249, 4, v249
    v_lshrrev_b32 v250, 5, v{VL}
    v_lshl_add_u32 v249, v250, 14, v249
    s_lshl_b32 s52, s{P}, 15
    s_lshl_b32 s53, s{W}, 9
    s_add_u32 s52, s52, s53
    s_mov_b32 s62, 0
    """)
    def sweep():
        for c2 in range(8): k(f"s_add_u32 s53, s52, {c2*2048}\nbuffer_load_dwordx4 v[{Q+4*c2}:{Q+3+4*c2}], v249, s[36:39], s53 offen sc1")
    sweep()
    k(f"s_barrier\nfz_sp:\ns_waitcnt vmcnt(0)\nv_xor_b32 v{T+5}, s{NON}, v{Q+1}")
    for c2 in range(8):
        for hh in range(2):
            if c2 == 0 and hh == 0: continue
            k(f"v_xor_b32 v{T+6+(c2+hh)%2}, s{NON}, v{Q+1+4*c2+2*hh}\nv_or_b32 v{T+5}, v{T+5}, v{T+6+(c2+hh)%2}")
    k(f"v_cmp_ne_u32 vcc, 0, v{T+5}\ns_cbranch_vccz fz_spd\ns_add_u32 s62, s62, 1\ns_cmp_ge_u32 s62, {SPIN}\ns_cbranch_scc1 fz_spd")
    sweep()
    k(f"s_branch fz_sp\nfz_spd:")
    k.stamp(7)
    for c2 in range(1, 8): k(f"v_add_f32 v{Q}, v{Q}, v{Q+4*c2}\nv_add_f32 v{Q+2}, v{Q+2}, v{Q+2+4*c2}")
    m, v = Q, Q + 2
    k(f"""
    v_mov_b32 v{Q+1}, v{m}
    v_mov_b32 v{Q+3}, v{v}
    v_permlane32_swap_b32 v{m}, v{Q+1}
    v_permlane32_swap_b32 v{v}, v{Q+3}
    v_add_f32 v{m}, v{m}, v{Q+1}
    v_add_f32 v{v}, v{v}, v{Q+3}
    v_mul_f32 v{m}, {1.0/2304!r}, v{m}
    v_mul_f32 v{v}, {1.0/2304!r}, v{v}
    v_fma_f32 v{v}, -v{m}, v{m}, v{v}
    v_max_f32 v{v}, 0, v{v}
    """)
    ln_finish(k, m, v)
    SU, SQ = 148, 156
    k(f"""
    v_mul_f32 v{m}, -v{m}, v{v}
    ds_write_b32 v{VPR}, v{m}
    ds_write_b32 v{VPR}, v{v} offset:128
    ds_read_b128 v[{SU}:{SU+3}], v{VPG}
    ds_read_b128 v[{SU+4}:{SU+7}], v{VPG} offset:64
    ds_read_b128 v[{SQ}:{SQ+3}], v{VPG} offset:128
    ds_read_b128 v[{SQ+4}:{SQ+7}], v{VPG} offset:192
    """)
    k.srd(36, 4, FRAG9, add=WS_Z2)
    k(f"""
    s_mul_i32 s32, s{C}, {9*64}
    s_lshl_b32 s33, s{P}, 2
    s_add_u32 s33, s33, s{W}         ; kb
    s_add_u32 s32, s32, s33
    s_lshl_b32 s32, s32, 10
    s_lshl_b32 s34, s{C}, 6
    s_add_u32 s34, s34, s33
    s_lshl_b32 s34, s34, 2
    s_add_u32 s34, s34, {FL_2}
    v_lshrrev_b32 v250, 4, v{VL}
    v_lshlrev_b32 v250, 4, v250
    v_add_u32 v250, {COLP + 768}, v250
    s_waitcnt lgkmcnt(0)
    """)
    for i in range(9):
        oo = 164 + (i % 4) * 4
        for sb in range(2):
            a = A2 + (i * 2 + sb) * 4
            for hh in range(2):
                k(f"v_pk_fma_f32 v[{a+2*hh}:{a+2*hh+1}], v[{a+2*hh}:{a+2*hh+1}], v[{SQ+4*sb+2*hh}:{SQ+4*sb+2*hh+1}], v[{SU+4*sb+2*hh}:{SU+4*sb+2*hh+1}]")
            for hh in range(2): k(f"v_cvt_pk_bf16_f32 v{oo+2*sb+hh}, v{a+2*hh}, v{a+2*hh+1}")
        k(f"v_permlane16_swap_b32 v{oo}, v{oo+2}\nv_permlane16_swap_b32 v{oo+1}, v{oo+3}")
        k(f"buffer_store_dwordx4 v[{oo}:{oo+3}], v{V16}, s[36:39], s32 offen sc1\ns_add_u32 s32, s32, 65536")
    k.stamp(8)
    k.srd(44, 26, WOBYTES)
    side_issue(k, o)
    k(f"v_mov_b32 v{T+10}, 0\nv_mov_b32 v{T+11}, s{NON}\nv_mov_b32 v{T+12}, {CNT}\nv_mov_b32 v{T+13}, 1\ns_waitcnt vmcnt(5)\ns_mov_b64 exec, 1\nds_add_u32 v{T+12}, v{T+13}\nbuffer_store_dword v{T+11}, v{T+10}, s[{FLS}:{FLS+3}], s34 offen sc1\ns_mov_b64 exec, -1")
    k.stamp(9)
    side_run(k, o)
    k("s_branch fz_cons")

def side_issue(k, o):
    k(f"""
    s_lshl_b32 s53, s{W}, 8
    s_add_u32 s53, s53, s2
    s_mul_i32 s54, s53, 52429
    s_lshr_b32 s54, s54, 18
    s_mul_i32 s55, s54, 5
    s_sub_u32 s55, s53, s55          ; q
    s_lshr_b32 s33, s54, 4
    s_and_b32 s35, s54, 15
    s_mul_i32 s35, s35, 144
    s_lshl_b32 s52, s55, 5
    s_add_u32 s35, s35, s52
    s_mul_i32 s35, s35, 1152
    s_mul_i32 s33, s33, 144
    s_add_u32 s35, s35, s33
    s_cmp_lt_u32 s53, 640
    s_cselect_b32 s35, s35, {OOB}
    s_mul_i32 s52, s{W}, 5120
    s_add_u32 s52, s52, {RPK}
    s_mov_b32 s33, {(1 << 16) // 9 + 1}
    """)
    for i in range(5):
        k(f"""
        v_add_u32 v232, {64*i}, v{VL}
        v_mul_lo_u32 v233, v232, s33
        v_lshrrev_b32 v233, 16, v233
        v_mul_u32_u24 v234, 9, v233
        v_sub_u32 v234, v232, v234
        v_mul_u32_u24 v233, 1152, v233
        v_lshl_add_u32 v233, v234, 4, v233
        s_add_u32 m0, s52, {i*1024}
        buffer_load_dwordx4 v233, s[44:47], s35 offen lds
        """)

def side_run(k, o):
    k(f"s_cmp_ge_u32 s53, 640\ns_cbranch_scc1 fz_sr9")
    k.srd(36, 4, WOBYTES, add=WS_WO)
    k(f"""
    v_bfe_u32 v3, v{VL}, 2, 2
    v_and_b32 v4, 3, v{VL}
    v_lshrrev_b32 v7, 4, v{VL}
    v_lshl_add_u32 v3, v7, 2, v3
    v_mul_u32_u24 v3, 144, v3
    v_lshl_add_u32 v3, v4, 3, v3
    v_add_u32 v3, s52, v3
    s_waitcnt vmcnt(1)
    """)
    for dt in range(5):
        k(f"ds_read_b64_tr_b16 v[{10+4*dt}:{11+4*dt}], v3 offset:{dt*32}")
        k(f"ds_read_b64_tr_b16 v[{12+4*dt}:{13+4*dt}], v3 offset:{dt*32 + 16*144}")
    k(f"""
    v_lshlrev_b32 v8, 4, v{VL}
    v_lshlrev_b32 v9, 3, v{VL}
    v_and_b32 v34, 7, v{VL}
    v_lshl_add_u32 v34, v7, 3, v34
    v_lshlrev_b32 v35, 4, v34
    v_lshlrev_b32 v34, 3, v34
    s_mul_i32 s33, s54, 20736
    s_mul_i32 s35, s55, 4608
    s_add_u32 s33, s33, s35
    s_add_u32 s35, s33, 4096
    s_lshl_b32 s59, s54, 3
    s_add_u32 s59, s59, s55
    s_lshl_b32 s59, s59, 2
    s_add_u32 s59, s59, {FL_W}
    s_cmp_eq_u32 s55, 4
    s_waitcnt lgkmcnt(0)
    s_cbranch_scc1 fz_sr2
    """)
    for dt in range(4): k(f"buffer_store_dwordx4 v[{10+4*dt}:{13+4*dt}], v8, s[36:39], s33 offen offset:{dt*1024} sc1")
    k(xm(0x00ff00ff00ff00ff))
    k("buffer_store_dwordx4 v[26:29], v35, s[36:39], s35 offen sc1\ns_branch fz_sr3\nfz_sr2:")
    for dt in range(4): k(f"buffer_store_dwordx2 v[{10+4*dt}:{11+4*dt}], v9, s[36:39], s33 offen offset:{dt*512} sc1")
    k(xm(0x00ff00ff00ff00ff))
    k("buffer_store_dwordx2 v[26:27], v34, s[36:39], s33 offen offset:2048 sc1\nfz_sr3:\ns_mov_b64 exec, -1")
    k("fz_sr9:")

def phase2(k, o):
    NST = 32
    k("fz_cons:")
    k.stamp(10)
    ACC = 0; ZR = 72; FX = 144; FY = 188
    VA, VB0, VB1, VAb, VB0b, VB1b = 232, 233, 234, 235, 236, 239
    GT = [240, 241, 246, 247, 248, 249]; VC2 = 252; BS = [253, 251]
    k(f"""
    s_load_dwordx2 s[8:9], s[0:1], {ARG['b_sp']}
    s_lshl_b32 s30, s{P}, 3
    s_lshl_b32 s31, s{W}, 1
    s_add_u32 s30, s30, s31
    s_lshl_b32 s31, s30, 4
    s_add_u32 s31, s31, s{C}
    s_mul_i32 s31, s31, 4608
    s_add_u32 s32, s31, {16*4608}
    v_and_b32 v3, 15, v{VL}
    v_lshrrev_b32 v{VB0b}, 4, v{VL}
    v_lshrrev_b32 v{VB1b}, 1, v3
    v_xor_b32 v{VB0b}, v{VB0b}, v{VB1b}
    v_lshlrev_b32 v{VB0b}, 4, v{VB0b}
    v_lshl_add_u32 v{VB0b}, v3, 7, v{VB0b}
    s_lshl_b32 s34, s{W}, 12
    s_add_u32 s34, s34, 18432
    v_add_u32 v{VB0b}, s34, v{VB0b}
    v_xor_b32 v{VB1b}, 64, v{VB0b}
    v_lshlrev_b32 v{VAb}, 4, v{VL}
    v_mov_b32 v{VA}, v{VAb}
    v_mov_b32 v{VB0}, v{VB0b}
    v_mov_b32 v{VB1}, v{VB1b}
    s_lshl_b32 s34, s30, 4
    v_add_u32 v3, s34, v3
    v_lshlrev_b32 v3, 1, v3
    v_mov_b32 v{VC2}, {fbits(C2)}
    s_waitcnt lgkmcnt(0)
    global_load_ushort v{BS[0]}, v3, s[8:9]
    global_load_ushort v{BS[1]}, v3, s[8:9] offset:32
    s_mov_b32 s34, 0
    s_setprio {o.get('prio', 2)}
    s_lshl_b32 s28, s{P}, 1
    s_lshr_b32 s10, s{W}, 1
    s_add_u32 s28, s28, s10
    s_lshl_b32 s28, s28, 4
    s_add_u32 s28, s28, s{C}
    s_lshl_b32 s28, s28, 1
    s_and_b32 s10, s{W}, 1
    s_add_u32 s28, s28, s10
    s_lshl_b32 s28, s28, 2
    s_add_u32 s28, s28, {FL_H}
    """)
    g3 = Gemm3(k, o)
    g3.pre()
    def reads(F, half):
        vb = VB0 if half == 0 else VB1
        r = [f"ds_read_b128 v[{F+4*tb}:{F+4*tb+3}], v{vb} offset:{tb*2048}" for tb in range(2)]
        r += [f"ds_read_b128 v[{F+8+4*ft}:{F+8+4*ft+3}], v{VA} offset:{(ft*2+half)*1024}" for ft in range(9)]
        return r
    def mfmas(F, first=False):
        return [f"v_mfma_f32_16x16x32_bf16 v[{ACC+(ft*2+tb)*4}:{ACC+(ft*2+tb)*4+3}], v[{F+8+4*ft}:{F+8+4*ft+3}], v[{F+4*tb}:{F+4*tb+3}], " + ("0" if first else f"v[{ACC+(ft*2+tb)*4}:{ACC+(ft*2+tb)*4+3}]")
                for ft in range(9) for tb in range(2)]
    adv = [f"s_add_u32 s34, s34, {SLOT}\ns_cmp_ge_u32 s34, {SLOT*NS}\ns_cselect_b32 s34, 0, s34",
           f"v_add_u32 v{VA}, s34, v{VAb}", f"v_add_u32 v{VB0}, s34, v{VB0b}", f"v_add_u32 v{VB1}, s34, v{VB1b}"]
    def gpair(n):
        if n >= 36: return []
        a = ZR + 2 * n; t = GT[2 * (n % 3)]; u = GT[2 * (n % 3) + 1]
        return [f"v_mul_f32 v{t}, v{a}, v{a}", f"v_mul_f32 v{u}, v{a+1}, v{a+1}",
                f"v_fmaak_f32 v{t}, v{VC2}, v{t}, {fbits(C1)}", f"v_fmaak_f32 v{u}, v{VC2}, v{u}, {fbits(C1)}",
                f"v_mul_f32 v{t}, v{t}, v{a}", f"v_mul_f32 v{u}, v{u}, v{a+1}",
                f"v_exp_f32 v{t}, v{t}", f"v_exp_f32 v{u}, v{u}",
                f"v_add_f32 v{t}, 1.0, v{t}", f"v_add_f32 v{u}, 1.0, v{u}",
                f"v_rcp_f32 v{t}, v{t}", f"v_rcp_f32 v{u}, v{u}",
                f"v_mul_f32 v{a}, v{a}, v{t}", f"v_mul_f32 v{a+1}, v{a+1}, v{u}",
                f"v_cvt_pk_bf16_f32 v{a}, v{a}, v{a+1}"]
    def weave(mf, rd, fill):
        out = []; fi = 0
        for i, x in enumerate(mf):
            out.append(x)
            if i < len(rd): out.append(rd[i])
            if fi < len(fill) and i >= 2: out.append(fill[fi]); fi += 1
        return out + rd[len(mf):] + fill[fi:]
    NU = 19
    k("s_barrier")
    k.stamp(11)
    k("\n".join(reads(FX, 0) + gpair(0)))
    k("s_waitcnt lgkmcnt(0)")
    k("\n".join(weave(mfmas(FX, True), reads(FY, 1) + adv, gpair(1))))
    np_ = 2
    for st in range(1, NU):
        k("s_waitcnt lgkmcnt(0)")
        if st == 8:
            k(f"s_cmp_ge_u32 s53, 640\ns_cbranch_scc1 fz_nwf"); set_flag(k, 238, 237 + 13, 59) if False else None
            k(f"v_mov_b32 v{GT[4]}, 0\nv_mov_b32 v{GT[5]}, s{NON}\ns_waitcnt vmcnt(0)\ns_mov_b64 exec, 1\nbuffer_store_dword v{GT[5]}, v{GT[4]}, s[{FLS}:{FLS+3}], s59 offen sc1\ns_mov_b64 exec, -1\nfz_nwf:")
        k("s_barrier")
        k("\n".join(weave(mfmas(FY), reads(FX, 0), gpair(np_)))); np_ += 1
        k("s_waitcnt lgkmcnt(0)")
        k("\n".join(weave(mfmas(FX), reads(FY, 1) + adv, gpair(np_)))); np_ += 1
    assert np_ >= 36
    k(f"s_mov_b32 s35, {NU}\ns_waitcnt lgkmcnt(0)\nfz_cloop:")
    k(f"s_cmp_eq_u32 s35, 28\ns_cbranch_scc0 fz_nwg\nbuffer_load_dword v238, v237, s[{FLS}:{FLS+3}], 0 offen sc1\nfz_nwg:")
    k("s_barrier")
    k("\n".join(front(mfmas(FY), reads(FX, 0))))
    k("s_waitcnt lgkmcnt(0)")
    k("\n".join(front(mfmas(FX), reads(FY, 1) + adv + ["s_add_u32 s35, s35, 1"])))
    k(f"s_cmp_lt_u32 s35, {NST}\ns_waitcnt lgkmcnt(0)\ns_cbranch_scc1 fz_cloop")
    k("s_barrier")
    k("\n".join(mfmas(FY)))
    k.stamp(12)
    k.srd(12, 4, FRAG9, add=WS_H)
    g3.wcheck()
    VBS = 232
    k("s_setprio 3")
    k(f"v_lshlrev_b32 v{VBS}, 16, v{BS[0]}\nv_lshlrev_b32 v{VBS+2}, 16, v{BS[1]}\nv_mov_b32 v{VBS+1}, v{VBS}\nv_mov_b32 v{VBS+3}, v{VBS+2}")
    for tb in range(2):
        b = VBS + 2 * tb
        for q in range(5):
            nt = 2 if q < 4 else 1
            oo = 144 + (tb * 5 + q) % 2 * 4
            for t in range(nt):
                a = ACC + ((2 * q + t) * 2 + tb) * 4
                for hh in range(2):
                    z = ZR + ((2 * q + t) * 2 + tb) * 4 + 2 * hh; u = 236 + 2 * ((2 * t + hh) % 3)
                    k(f"""
                    v_pk_add_f32 v[{a+2*hh}:{a+2*hh+1}], v[{a+2*hh}:{a+2*hh+1}], v[{b}:{b+1}]
                    v_lshlrev_b32 v{u}, 16, v{z}
                    v_and_b32 v{u+1}, 0xffff0000, v{z}
                    v_pk_mul_f32 v[{a+2*hh}:{a+2*hh+1}], v[{a+2*hh}:{a+2*hh+1}], v[{u}:{u+1}]
                    v_cvt_pk_bf16_f32 v{oo+t*2+hh}, v{a+2*hh}, v{a+2*hh+1}
                    """)
            if q < 4: k(f"buffer_store_dwordx4 v[{oo}:{oo+3}], v242, s[12:15], s{31+tb} offen offset:{q*1024} sc1")
            else: k(f"s_add_u32 s33, s{31+tb}, 4096\nbuffer_store_dwordx2 v[{oo}:{oo+1}], v243, s[12:15], s33 offen sc1")
    if o.get('p3'): k.stamp(2)
    k(f"v_mov_b32 v0, 0\nv_mov_b32 v1, s{NON}\ns_waitcnt vmcnt(0)\ns_mov_b64 exec, 1\nbuffer_store_dword v1, v0, s[{FLS}:{FLS+3}], s28 offen sc1\ns_mov_b64 exec, -1")
    k.stamp(13)
    k(f"s_setprio {o.get('prio4', 1)}")
    g3.wregs()
    g3.main()
    k("fz_loader:\ns_setprio 0")
    for j in range(16): k(f"v_mov_b32 v{198+j}, 0")
    def advk(kstep):
        k(f"""
        s_add_u32 s40, s40, {kstep}
        s_add_u32 s43, s43, 1
        s_cmp_eq_u32 s43, 2
        s_cselect_b32 s40, 0, s40
        s_cselect_b32 s42, s45, s42
        s_cmp_eq_u32 s40, s42
        s_cselect_b32 s33, {2*kstep}, 0
        s_add_u32 s40, s40, s33
        s_add_u32 s41, s41, {SLOT}
        s_cmp_ge_u32 s41, {SLOT*NS}
        s_cselect_b32 s41, s44, s41
        """)
    def issue(n, kstep, sc, chk=False):
        if chk:
            L = k.label("pc"); D = k.label("pd")
            k(f"""
            {L}:
            s_lshr_b32 s33, s40, 10
            s_and_b32 s33, s33, 60
            s_lshr_b64 s[48:49], s[46:47], s33
            s_and_b32 s48, s48, 15
            s_cbranch_scc0 {D}
            s_add_u32 s62, s62, 1
            s_cmp_ge_u32 s62, {SPIN}
            s_cbranch_scc1 {D}
            buffer_load_dword v200, v199, s[{FLS}:{FLS+3}], s30 offen sc1
            s_waitcnt vmcnt(0)
            v_cmp_ne_u32 s[46:47], s{NON}, v200
            s_branch {L}
            {D}:
            """)
        for j in range(n):
            k((f"s_add_u32 m0, s41, {j*1024}\n" if j else "s_mov_b32 m0, s41\n") + f"buffer_load_dwordx4 v{VL_(j)}, s[12:15], s40 offen {sc}lds")
        advk(kstep)
    VL_ = lambda j: 112 + j
    def ring(tag, n, kstep, sc, first):
        wst_setup(k, o, 214)
        k(f"s_mov_b32 s35, {first}\nfz_l{tag}:\ns_waitcnt vmcnt({2*n})\ns_barrier")
        issue(n, kstep, sc, tag == "A")
        fv = 214
        k(f"s_cmp_eq_u32 s35, 24\ns_cbranch_scc0 fz_m{tag}\nbuffer_load_dwordx2 v[{fv}:{fv+1}], v{fv+2}, s[{FLS}:{FLS+3}], s52 offen sc1\nfz_m{tag}:")
        k(f"s_add_u32 s35, s35, 1\ns_cmp_lt_u32 s35, {NST-3}\ns_cbranch_scc1 fz_l{tag}")
        wst_check(k, o, fv=214)
        if tag == "A":
            wst(k, 3); k(f"s_waitcnt vmcnt({2*n + 21})\ns_barrier")
            wst(k, 0); k(f"s_waitcnt vmcnt({n + 42})\ns_barrier\ns_waitcnt vmcnt(42)\ns_barrier")
        else:
            k(f"s_waitcnt vmcnt({2*n})\ns_barrier\ns_waitcnt vmcnt({n})\ns_barrier")
            wst(k, 1); wst(k, 2); k("s_waitcnt vmcnt(42)\ns_barrier")
        k("s_waitcnt vmcnt(0)\ns_barrier")
    k(f"s_cmp_eq_u32 s{W}, 5\ns_cbranch_scc1 fz_nk\ns_cmp_ge_u32 s58, 576\ns_cbranch_scc1 fz_nk")
    k(f"s_mov_b32 s54, {fbits(L2E_HI)}\ns_mov_b32 s55, {fbits(I2P_HI)}")
    for i in range(40): k(f"v_mov_b32 v{i}, 0")
    k("\n".join(kgen_dt()))
    k("s_mov_b32 s53, 0\nfz_kg:")
    k("\n".join(kgen_half()))
    k("s_cmp_eq_u32 s53, 1\ns_cbranch_scc1 fz_kg2\nfz_nk:")
    k.stamp(9)
    k(f"s_mov_b32 s43, 0\ns_mov_b32 s42, -1\ns_cmp_lg_u32 s{W}, 4\ns_cbranch_scc1 fz_ldB")
    k.srd(12, 4, FRAG9, add=WS_Z2)
    k(f"s_lshl_b32 s45, s{P}, 12\ns_mov_b32 s40, s45\ns_mul_i32 s31, s{C}, {9*65536}\nv_lshlrev_b32 v198, 4, v{VL}\nv_add_u32 v198, s31, v198\ns_mov_b32 s44, 0\ns_mov_b32 s41, 0")
    for j in range(18): k(f"v_add_u32 v{VL_(j)}, {(j >> 1)*65536 + (j & 1)*1024}, v198")
    k(f"""
    s_lshl_b32 s30, s{C}, 8
    s_add_u32 s30, s30, {FL_2}
    v_lshlrev_b32 v199, 2, v{VL}
    s_mov_b64 s[46:47], -1
    s_mov_b32 s62, 0
    v_mov_b32 v201, {CNT}
    fz_own:
    ds_read_b32 v202, v201
    s_add_u32 s62, s62, 1
    s_waitcnt lgkmcnt(0)
    v_readfirstlane_b32 s33, v202
    s_cmp_ge_u32 s33, 4
    s_cbranch_scc1 fz_ownd
    s_sleep 1
    s_cmp_lt_u32 s62, {SPIN*16}
    s_cbranch_scc1 fz_own
    fz_ownd:
    s_mov_b32 s62, 0
    """)
    k.stamp(10)
    for _ in range(2): issue(18, 2048, "sc1 ")
    k("s_waitcnt vmcnt(18)\ns_barrier")
    k.stamp(11)
    issue(18, 2048, "sc1 ", True); issue(18, 2048, "sc1 ", True)
    ring("A", 18, 2048, "sc1 ", 1)
    k("s_branch fz_ssm")
    k(f"fz_ldB:\ns_load_dwordx2 s[6:7], s[0:1], {ARG['w_sp']}\ns_waitcnt lgkmcnt(0)")
    k.srd(12, 6, 2048 * 4096)
    k(f"s_cmp_lg_u32 s{W}, 5\ns_cbranch_scc1 fz_idle")
    VL_ = lambda j: 198 + j
    k(f"""
    v_lshrrev_b32 v3, 3, v{VL}
    v_and_b32 v4, 7, v{VL}
    v_lshrrev_b32 v5, 4, v{VL}
    v_xor_b32 v4, v4, v5
    v_and_b32 v5, 1, v4
    v_lshlrev_b32 v5, 1, v5
    v_bfe_u32 v6, v4, 1, 1
    v_and_b32 v4, 4, v4
    v_or_b32 v4, v4, v5
    v_or_b32 v4, v4, v6
    v_lshlrev_b32 v4, 4, v4
    v_lshl_add_u32 v4, v3, 12, v4
    s_lshl_b32 s31, s{P}, 19
    v_add_u32 v4, s31, v4
    v_xor_b32 v5, 64, v4
    s_lshl_b32 s45, s{P}, 8
    s_mov_b32 s40, s45
    s_mov_b32 s44, 18432
    s_mov_b32 s41, 18432
    """)
    for j in range(16): k(f"v_add_u32 v{VL_(j)}, {j*32768}, v{4 + (j & 1)}")
    for _ in range(3): issue(16, 128, "")
    k.stamp(11)
    ring("B", 16, 128, "", 0)
    k(f"s_branch fz_fin\nfz_idle:\ns_mov_b32 s35, 0\nfz_idl:\ns_barrier\ns_add_u32 s35, s35, 1\ns_cmp_lt_u32 s35, 33\ns_cbranch_scc1 fz_idl\nfz_ssm:")
    k.stamp(12)
    k(f"s_cmp_ge_u32 s58, 576\ns_cbranch_scc1 fz_fin\ns_mov_b32 s57, s56\ns_setprio {o.get('prio3', 2)}")
    conv_pre(k, o)
    k(f"s_lshl_b32 s33, s56, 13\ns_add_u32 s33, s33, {KTAB - 4608}\ns_sub_u32 s33, s59, s33")
    for r in list(range(KG['WAD'], KG['WAD'] + 16)) + list(range(KG['RW'], KG['RW'] + 4)) + list(range(KG['RS'], KG['RS'] + 10)):
        k(f"v_add_u32 v{r}, s33, v{r}")
    k("s_mov_b32 s53, 1\ns_branch fz_kg\nfz_kg2:")
    k.stamp(8)
    conv(k, o)

def wst_setup(k, o, fv):
    g3map(k, 50, 51)
    k.srd(24, 4, WOBYTES, add=WS_WO)
    k(f"s_lshl_b32 s52, s51, 9\ns_add_u32 s52, s52, {FL_W}\ns_mul_i32 s63, s51, {16*20736}\nv_lshlrev_b32 v{fv+2}, 3, v{VL}\nv_lshlrev_b32 v{fv+3}, 4, v{VL}\nv_mov_b32 v{fv}, 0\nv_mov_b32 v{fv+1}, 0")
    k.wfv = fv
def wst_check(k, o, fv):
    L = k.label("w4"); D = k.label("w4d")
    k(f"""
    s_mov_b32 s62, 0
    {L}:
    v_cmp_ne_u32 vcc, s{NON}, v{fv}
    s_and_b32 vcc_lo, vcc_lo, 0x77777777
    s_and_b32 vcc_hi, vcc_hi, 0x77777777
    v_cmp_ne_u32 s[60:61], s{NON}, v{fv+1}
    s_and_b32 s60, s60, 0x33333333
    s_and_b32 s61, s61, 0x33333333
    s_or_b64 vcc, vcc, s[60:61]
    s_cbranch_scc0 {D}
    s_add_u32 s62, s62, 1
    s_cmp_ge_u32 s62, {SPIN}
    s_cbranch_scc1 {D}
    buffer_load_dwordx2 v[{fv}:{fv+1}], v{fv+2}, s[{FLS}:{FLS+3}], s52 offen sc1
    s_waitcnt vmcnt(0)
    s_branch {L}
    {D}:
    """)
def wst(k, w):
    fv = k.wfv
    k(f"s_add_u32 s48, s{C}, {w + 4}\ns_and_b32 s48, s48, 15\ns_mul_i32 s48, s48, 20736\ns_add_u32 s48, s48, s63")
    for i in range(21):
        if i == 20: k(xm(0xffff))
        k(f"s_mov_b32 m0, {WQ[w] + i*1024}\nbuffer_load_dwordx4 v{fv+3}, s[24:27], s48 offen sc1 lds\ns_add_u32 s48, s48, 1024")
    k("s_mov_b64 exec, -1")

def gen_fused(prof=False, **o):
    OPT.update(o); o['WFL'] = WFL
    k = Kern(NAME + "_kernel", 256, 512, 163840)
    k.prof = prof; k.allreal = bool(o.get('real', 0))
    if o.get('p0'):
        seen = set(); st0 = k.stamp
        def st(i, real=False):
            if i in (5, 7, 8, 9):
                key = (i, len([1 for l in k.lines if l.startswith(('fz_l1W:', 'fz_c1:'))]))
                if key in seen or any(l.startswith('fz_cons:') for l in k.lines): return
                seen.add(key)
            st0(i, real)
        k.stamp = st
    k.stamp(0, True); k.stamp(1)
    if o.get('dbgt'): k("s_memrealtime s[64:65]")
    phase0(k, o); phase2(k, o)
    k("fz_fin:")
    if o.get('dbgt'):
        k(f"""
        s_waitcnt vmcnt(0)
        s_memrealtime s[66:67]
        s_load_dwordx2 s[68:69], s[0:1], {ARG['dbg']}
        s_waitcnt lgkmcnt(0)
        s_cmp_ge_u32 s2, 8
        s_cbranch_scc1 fz_end
        s_cmp_lg_u32 s22, 0
        s_cbranch_scc1 fz_end
        s_lshl_b32 s70, s2, 3
        v_mov_b32 v0, s70
        v_mov_b32 v2, s64
        v_mov_b32 v3, s66
        s_mov_b64 exec, 1
        global_store_dwordx2 v0, v[2:3], s[68:69]
        """)
    if prof:
        k("s_waitcnt vmcnt(0)"); k.stamp(15, True)
        k.prof_dump(0, 4, W, 16)
    k("fz_end:")
    return k

def emit_single(k, path):
    from gen import header
    s = header() + f"; @launch kernel={k.name} grid=({k.grid},1,1) block=({k.block},1,1) lds={k.lds}\n"
    s += '.amdgcn_target "amdgcn-amd-amdhsa--gfx950"\n.text\n' + k.text() + '.section .rodata,"a"\n' + k.desc()
    open(path, "w").write(s)

if __name__ == "__main__":
    opts = {a.split("=")[0]: int(a.split("=")[1]) for a in sys.argv[2:] if "=" in a}
    emit_single(gen_fused(prof="prof" in sys.argv, **opts), sys.argv[1])
```

```python
import sys, math; sys.path.insert(0, "dev")
from asmgen import *
from layout import *
import struct
import numpy as np
def fbits(x): return "0x%08x" % struct.unpack("<I", struct.pack("<f", x))[0]
def f32(x): return float(np.float32(x))
C1 = -2.0 * math.sqrt(2.0 / math.pi) * math.log2(math.e)
C2 = C1 * 0.044715
L2E = math.log2(math.e); L2E_HI = f32(L2E); L2E_LO = L2E - L2E_HI
I2P = 1.0 / (2 * math.pi); I2P_HI = f32(I2P); I2P_LO = I2P - I2P_HI
def rne(x, kk): return int(round(x / (1 << kk))) << kk
def rrow(v): return v if v <= 16 else 12 + v // 4
OOB = 0x7ff00000
P, C, W, NON = 20, 21, 22, 23
FLS = 16
VL = 255
SPIN = 0x4000
OPT = dict(sleep=0, sc1ld=1, nokgen=0)

def dpp_sum16(k, regs):
    for sh in (8, 4, 2, 1):
        for r in regs: k(f"v_add_f32_dpp v{r}, v{r}, v{r} row_ror:{sh} row_mask:0xf bank_mask:0xf")
def bf16_round(k, r): k(f"v_cvt_pk_bf16_f32 v{r}, v{r}, v{r}\nv_lshlrev_b32 v{r}, 16, v{r}")
def xsum_rows(k, r, t, both=True):
    k(f"v_mov_b32 v{t}, v{r}\nv_permlane16_swap_b32 v{r}, v{t}\nv_add_f32 v{r}, v{r}, v{t}")
    k(f"v_mov_b32 v{t}, v{r}\nv_permlane32_swap_b32 v{r}, v{t}\nv_add_f32 v{r}, v{r}, v{t}")
def mix(mf, other):
    out = []; n = len(mf); m = len(other); oi = 0
    for i, x in enumerate(mf):
        out.append(x)
        want = (i + 1) * m // n
        while oi < want: out.append(other[oi]); oi += 1
    return out + other[oi:]
def front2(mf, other, per=2):
    out = []; oi = 0
    for x in mf:
        out.append(x)
        for _ in range(per):
            if oi < len(other): out.append(other[oi]); oi += 1
    return out + other[oi:]
def front(mf, other):
    out = []; oi = 0
    for x in mf:
        out.append(x)
        if oi < len(other): out.append(other[oi]); oi += 1
    return out + other[oi:]

def xm(mask):
    return f"s_mov_b32 exec_lo, {hex(mask & 0xffffffff)}\ns_mov_b32 exec_hi, {hex(mask >> 32)}"
def set_flag(k, va, vd, off_s):
    k(f"""
    v_mov_b32 v{va}, 0
    v_mov_b32 v{vd}, s{NON}
    s_waitcnt vmcnt(0)
    s_mov_b64 exec, 1
    buffer_store_dword v{vd}, v{va}, s[{FLS}:{FLS+3}], s{off_s} offen sc1
    s_mov_b64 exec, -1
    """)
def poll(k, va, vd, off_s, nlanes, ndw=1, pre=False, mask=None):
    L = k.label("poll"); D = k.label("polld")
    ld = {1: "dword", 2: "dwordx2", 4: "dwordx4"}[ndw]
    dst = f"v{vd}" if ndw == 1 else f"v[{vd}:{vd+ndw-1}]"
    if not pre: k(f"v_lshlrev_b32 v{va}, { {1: 2, 2: 3, 4: 4}[ndw] }, v{VL}")
    k("s_mov_b32 s62, 0")
    if nlanes < 64: k(xm(mask if mask else (1 << nlanes) - 1))
    k(f"{L}:\nbuffer_load_{ld} {dst}, v{va}, s[{FLS}:{FLS+3}], {'0' if pre else 's%d' % off_s} offen sc1\ns_add_u32 s62, s62, 1\ns_waitcnt vmcnt(0)")
    k(f"v_cmp_ne_u32 vcc, s{NON}, v{vd}")
    for i in range(1, ndw): k(f"v_cmp_ne_u32 s[60:61], s{NON}, v{vd+i}\ns_or_b64 vcc, vcc, s[60:61]")
    sl = f"s_sleep {OPT['sleep']}\n" if OPT['sleep'] else ""
    k(f"s_cbranch_vccz {D}\n{sl}s_cmp_lt_u32 s62, {SPIN}\ns_cbranch_scc1 {L}\n{D}:")
    if nlanes < 64: k("s_mov_b64 exec, -1")

def gelu_group(k, pairs, T, SC2, VC1, VONE):
    n = len(pairs)
    for i, a in enumerate(pairs): k(f"v_pk_mul_f32 v[{T+2*i}:{T+2*i+1}], v[{a}:{a+1}], v[{a}:{a+1}]")
    for i, a in enumerate(pairs): k(f"v_pk_fma_f32 v[{T+2*i}:{T+2*i+1}], v[{T+2*i}:{T+2*i+1}], s[{SC2}:{SC2+1}], v[{VC1}:{VC1+1}]")
    for i, a in enumerate(pairs): k(f"v_pk_mul_f32 v[{T+2*i}:{T+2*i+1}], v[{T+2*i}:{T+2*i+1}], v[{a}:{a+1}]")
    for i in range(2 * n): k(f"v_exp_f32 v{T+i}, v{T+i}")
    for i, a in enumerate(pairs): k(f"v_pk_add_f32 v[{T+2*i}:{T+2*i+1}], v[{T+2*i}:{T+2*i+1}], v[{VONE}:{VONE+1}]")
    for i in range(2 * n): k(f"v_rcp_f32 v{T+i}, v{T+i}")
    for i, a in enumerate(pairs): k(f"v_pk_mul_f32 v[{a}:{a+1}], v[{a}:{a+1}], v[{T+2*i}:{T+2*i+1}]")

def ln_finish(k, m, v):
    bf16_round(k, v)
    k(f"v_add_f32 v{v}, {1e-5!r}, v{v}")
    bf16_round(k, v)
    k(f"v_sqrt_f32 v{v}, v{v}")
    bf16_round(k, v)
    k(f"v_rcp_f32 v{v}, v{v}")
    bf16_round(k, m)


KG = dict(ACC=0, WF=44, RB=108, RW=140, WAD=150, VJ=166, VG=167, DSK=168, DT=169, PRM=170, RS=182, XT3=192, VDMA=210)

def kgen_setup(k, o):
    g = KG
    k(f"""
    s_load_dwordx4 s[24:27], s[0:1], {ARG['A_re']}
    s_load_dwordx4 s[28:31], s[0:1], {ARG['B_re']}
    s_load_dwordx4 s[32:35], s[0:1], {ARG['C_re']}
    s_load_dwordx4 s[36:39], s[0:1], {ARG['log_dt']}
    s_min_u32 s42, s58, 575
    v_lshlrev_b32 v1, 1, v{VL}
    s_lshl_b32 s43, s42, 8
    v_add_u32 v1, s43, v1
    s_lshl_b32 s43, s42, 1
    v_mov_b32 v2, s43
    s_waitcnt lgkmcnt(0)
    """)
    for hf in range(2):
        for i in range(6):
            k(f"global_load_ushort v{g['PRM']+6*hf+i}, v1, s[{24+2*i}:{25+2*i}] offset:{hf*128}")
    k("global_load_ushort v196, v2, s[36:37]\nglobal_load_ushort v197, v2, s[38:39]")

def kgen_addr(k, o):
    g = KG; WAD, VJ, VG, RW, RS_ = g['WAD'], g['VJ'], g['VG'], g['RW'], g['RS']
    A = []
    A.append(f"v_lshrrev_b32 v46, 2, v{VL}\nv_and_b32 v47, 3, v{VL}\nv_lshlrev_b32 v47, 2, v47\nv_lshl_add_u32 v46, v46, 4, v47\nv_add_u32 v46, s59, v46")
    for i in range(16): A.append(f"v_xor_b32 v{WAD+i}, {i<<4}, v46")
    A.append(f"v_and_b32 v{VJ}, 15, v{VL}\nv_lshrrev_b32 v{VG}, 4, v{VL}")
    for m in range(4):
        A.append(f"v_add_u32 v46, {4*m}, v{VG}\nv_xor_b32 v46, v46, v{VJ}\nv_lshlrev_b32 v46, 4, v46\nv_lshl_add_u32 v46, v{VJ}, 8, v46\nv_add_u32 v{RW+m}, s59, v46")
    pats = [[b for b in range(16)], [rne(b, 1) for b in range(16)]]
    pats += [[rne(16 * nt + b, 2) for b in range(16)] for nt in range(4)]
    pats += [[rne(16 * nt + b, 3) for b in range(16)] for nt in range(4)]
    for pi_, pat in enumerate(pats):
        rows = [rrow(v) for v in pat]
        s = ""
        if pi_ == 0: s += f"v_mov_b32 v46, v{VJ}\n"
        else:
            kk = 1 if pi_ == 1 else (2 if pi_ < 6 else 3)
            nt = 0 if pi_ == 1 else (pi_ - 2) % 4
            c0 = 16 * nt + (1 << (kk - 1)) - 1
            s += f"v_add_u32 v46, {16*nt}, v{VJ}\nv_bfe_u32 v46, v46, {kk}, 1\nv_add3_u32 v46, v46, v{VJ}, {c0}\nv_and_b32 v46, {0xff & ~((1 << kk) - 1)}, v46\n"
            if pi_ > 1: s += "v_lshrrev_b32 v47, 2, v46\nv_add_u32 v47, 12, v47\nv_min_u32 v46, v46, v47\n"
            chk = []
            for j in range(16):
                v = (((((j + 16 * nt) >> kk) & 1) + j + c0) & (0xff & ~((1 << kk) - 1)))
                chk.append(min(v, 12 + (v >> 2)) if pi_ > 1 else v)
            assert chk == rows
        s += f"v_and_b32 v47, 15, v46\nv_xor_b32 v47, v47, v{VG}\nv_lshlrev_b32 v47, 4, v47\nv_lshl_add_u32 v46, v46, 8, v47\nv_add_u32 v{RS_+pi_}, s59, v46"
        A.append(s)
    return A

def kgen_dt():
    g = KG
    return [f"""v_lshlrev_b32 v44, 16, v196
    v_lshlrev_b32 v{g['DSK']}, 16, v197
    v_mul_f32 v45, {fbits(L2E_HI)}, v44
    v_fma_f32 v46, v44, s54, -v45
    v_fmac_f32 v46, {fbits(L2E_LO)}, v44
    v_exp_f32 v45, v45
    v_mul_f32 v46, {fbits(math.log(2.0))}, v46
    v_fma_f32 v{g['DT']}, v45, v46, v45
    v_cvt_pk_bf16_f32 v{g['DT']}, v{g['DT']}, v{g['DT']}
    v_lshlrev_b32 v{g['DT']}, 16, v{g['DT']}"""]

def kgen_half():
    g = KG; PRM, WAD, RW, RS_, WF, RB, DT = g['PRM'], g['WAD'], g['RW'], g['RS'], g['WF'], g['RB'], g['DT']
    A = []
    S = 220
    A_, B_, BR, BI, CR, CI = S, S + 1, S + 2, S + 3, S + 4, S + 5
    CB, W1, W16, W64, W512, W4, ONE = S + 6, S + 8, S + 10, S + 12, S + 14, S + 16, S + 18
    PA, PB, PC = [S + 20, S + 22], [S + 24, S + 26], S + 28
    TA, TB_ = S + 30, S + 31
    for i in range(6): A.append(f"v_lshlrev_b32 v{S+i}, 16, v{PRM+i}")
    for i in range(4): A.append(f"v_mul_f32 v{S+i}, v{DT}, v{S+i}")
    A += [f"v_mul_f32 v{CB}, v{CR}, v{BR}", f"v_mul_f32 v{CB+1}, v{CR}, v{BI}", f"v_fma_f32 v{CB}, -v{CI}, v{BI}, v{CB}", f"v_fma_f32 v{CB+1}, v{CI}, v{BR}, v{CB+1}"]
    ev = []
    for li, (l, r) in enumerate(((16, W16), (512, W512), (64, W64), (1, W1))):
        t = RB + 4 * li
        ev.append([f"v_mul_f32 v{t}, {float(l)!r}, v{A_}", f"v_mul_f32 v{t+1}, {float(l)!r}, v{B_}", f"v_mul_f32 v{t}, s54, v{t}", f"v_mul_f32 v{t+2}, s55, v{t+1}",
                   f"v_exp_f32 v{t}, v{t}", f"v_fma_f32 v{t+3}, v{t+1}, s55, -v{t+2}", f"v_fmac_f32 v{t+3}, {fbits(I2P_LO)}, v{t+1}", f"v_fract_f32 v{t+2}, v{t+2}",
                   f"v_add_f32 v{t+2}, v{t+2}, v{t+3}", f"v_cos_f32 v{r}, v{t+2}", f"v_sin_f32 v{r+1}, v{t+2}", f"v_mul_f32 v{r}, v{t}, v{r}", f"v_mul_f32 v{r+1}, v{t}, v{r+1}"])
    for pos in range(13):
        for e in ev: A.append(e[pos])
    def cmul(d, x, w):
        return [f"v_pk_mul_f32 v[{d}:{d+1}], v[{x}:{x+1}], v[{w}:{w+1}] op_sel_hi:[0,1]",
                f"v_pk_fma_f32 v[{d}:{d+1}], v[{x}:{x+1}], v[{w}:{w+1}], v[{d}:{d+1}] op_sel:[1,1,0] op_sel_hi:[1,0,1] neg_lo:[1,0,0]"]
    def put(x, t, base, row, neg):
        return [f"v_cvt_pk_bf16_f32 v{t}, v{x}, {'-' if neg else ''}v{x+1}", f"ds_write_b32 v{WAD + (row & 15)}, v{t} offset:{base + row*256}"]
    def wreads(wi, base):
        return [f"ds_read_b128 v[{WF+(wi*4+m)*4}:{WF+(wi*4+m)*4+3}], v{RW+m} offset:{base}" for m in range(4)]
    def pipe2(ca, cb):
        out = []; pa = []; pb = []
        for i in range(max(len(ca), len(cb)) + 1):
            sa = ca[i] if i < len(ca) else (None, None, []); sb = cb[i] if i < len(cb) else (None, None, [])
            q = [sa[0], sb[0]] + pa[:1] + pb[:1] + [sa[1], sb[1]] + pa[1:] + pb[1:]
            out += [x for x in q if x]
            pa = sa[2]; pb = sb[2]
        return out
    PA = [S + 20, S + 22, S + 32]; PB = [S + 24, S + 26, S + 28]
    ca = [(None, None, put(CB, TA, 0, 0, False))]; cur = CB
    for i in range(1, 32):
        d = PA[i % 3]; m = cmul(d, cur, W16); post = put(d, TA, 0, i & 15, False); cur = d
        if i in (15, 31): post = post + wreads(i // 16, 0)
        ca.append((m[0], m[1], post))
    cb = []; cur = CB
    for i in range(24):
        d = PB[i % 3]; m = cmul(d, cur, W512 if i == 0 else W64); post = put(d, TB_, 4096, i if i < 8 else i - 8, False); cur = d
        if i == 7: post = post + wreads(2, 4096)
        if i == 23: post = post + wreads(3, 4096)
        cb.append((m[0], m[1], post))
    W2, W3 = BR, CR
    for d, x in ((W2, W1), (W3, W2), (W4, W3)):
        m = cmul(d, x, W1); cb.append((m[0], m[1], [])); cb.append((None, None, []))
    A += pipe2(ca, cb)
    r1 = [(f"v_mov_b32 v{ONE}, 1.0", f"v_mov_b32 v{ONE+1}, 0", put(ONE, TA, 0, 0, True))]
    r2 = [(None, None, put(W16, TB_, 0, 16, True))]
    cur = W4
    for v in range(5, 16):
        d = PA[v % 3]; m = cmul(d, cur, W1); r1.append((m[0], m[1], put(d, TA, 0, v, True))); cur = d
    r1 += [(None, None, put(W1, TA, 0, 1, True)), (None, None, put(W2, TA, 0, 2, True))]
    cur = W16
    for i in range(11):
        d = PB[i % 3]; m = cmul(d, cur, W4); r2.append((m[0], m[1], put(d, TB_, 0, 17 + i, True))); cur = d
    r2 += [(None, None, put(W64, TB_, 0, 28, True)), (None, None, put(W3, TB_, 0, 3, True)), (None, None, put(W4, TB_, 0, 4, True))]
    A += pipe2(r1, r2)
    RBS = [RB, RB + 16, S]
    def rreads(t):
        L = []
        for m in range(4):
            b = RBS[t % 3] + 4 * m
            if m: L.append(f"v_xor_b32 v{g['XT3']+m}, {(4*m) << 4}, v{RS_+t}")
            L.append(f"ds_read_b128 v[{b}:{b+3}], v{RS_+t if m == 0 else g['XT3']+m}")
        return L
    tile_w = [0, 1, 2, 2, 2, 2, 3, 3, 3, 3]
    A += rreads(0) + rreads(1)
    for t in range(10):
        mf = []
        for m in range(4):
            b = RBS[t % 3] + 4 * m; w = WF + (tile_w[t] * 4 + m) * 4
            mf.append(f"v_mfma_f32_16x16x32_bf16 v[{4*t}:{4*t+3}], v[{b}:{b+3}], v[{w}:{w+3}], v[{4*t}:{4*t+3}]")
        A.append(f"s_waitcnt lgkmcnt({4 if t < 9 else 0})")
        A += front2(mf, rreads(t + 2) if t < 8 else [], 2)
    for i in range(6): A.append(f"v_mov_b32 v{PRM+i}, v{PRM+6+i}")
    return [a for a in A if a != "s_nop 0"]

def split(atoms, n):
    tot = sum(a.count("\n") + 1 for a in atoms); out = [[] for _ in range(n)]; acc = 0
    for a in atoms:
        out[min(n - 1, acc * n // tot)].append(a); acc += a.count("\n") + 1
    return out


REG = 21504
CONV0 = 3 * REG
WQ = [0, REG, 2 * REG, 139264]
YL_ = 6 * REG
RDY = 163072
UR = 44
def ft_load(k):
    k(f"s_mul_i32 s33, s58, 911\ns_lshr_b32 s33, s33, 16\ns_lshl_b32 s33, s33, 7\ns_add_u32 s33, s33, {FL_T}\nv_lshlrev_b32 v60, 2, v{VL}\nv_and_b32 v60, 127, v60\nv_add_u32 v60, s33, v60")
    k(f"buffer_load_dword v64, v60, s[{FLS}:{FLS+3}], 0 offen sc1")
assert all((d * 911) >> 16 == d // 72 for d in range(576))
def u_load(k):
    L = k.label("ft"); D = k.label("ftd")
    k.srd(24, 4, XBYTES, add=WS_XT)
    k(f"s_mov_b32 s62, 0\n{L}:\ns_waitcnt vmcnt(0)\nv_cmp_ne_u32 vcc, s{NON}, v64")
    k(f"s_cbranch_vccz {D}\ns_add_u32 s62, s62, 1\ns_cmp_ge_u32 s62, {SPIN}\ns_cbranch_scc1 {D}")
    k(f"buffer_load_dword v64, v60, s[{FLS}:{FLS+3}], 0 offen sc1")
    k(f"s_branch {L}\n{D}:\nv_lshlrev_b32 v61, 4, v{VL}\ns_lshl_b32 s30, s58, 12\ns_add_u32 m0, s59, 480")
    for i in range(4): k(f"buffer_load_dwordx4 v61, s[24:27], s30 offen offset:{i*1024} sc1 lds")

CBO = 4608 + 64
def conv_build(k, o):
    g = KG; VJ, VG = g['VJ'], g['VG']; CB = CBO
    k(f"""
    v_mov_b32 v60, 0
    v_mov_b32 v61, 0
    v_mov_b32 v62, 0
    v_mov_b32 v63, 0
    v_lshlrev_b32 v127, 4, v{VL}
    v_add_u32 v127, s59, v127
    {xm((1 << 30) - 1)}
    ds_write_b128 v127, v[60:63]
    {xm(3)}
    ds_write_b128 v127, v[60:63] offset:{CB + 4096}
    s_mov_b64 exec, 1
    ds_write_b32 v127, v{g['DSK']} offset:4608
    s_mov_b64 exec, -1
    v_lshlrev_b32 v124, 3, v{VG}
    v_lshl_add_u32 v125, v{VJ}, 5, v124
    v_sub_u32 v122, {CB + 2*(2044-256)}, v125
    v_add_u32 v122, s59, v122
    v_lshl_add_u32 v125, v{VJ}, 7, v124
    v_sub_u32 v123, {CB + 2*(2044-1072)}, v125
    v_add_u32 v123, s59, v123
    """)
    for t in range(10):
        if t < 2: va, off = 122, 2 * (256 - 256 * t)
        else:
            tb = (512 if t < 6 else 1024) + 16 * ((t - 2) % 4); va, off = 123, 2 * (1072 - tb)
        a = 4 * t; p = 128 + 2 * (t % 4)
        if t == 2: k(xm(0x00ff00ff00ff00ff))
        if t == 6: k("s_mov_b64 exec, -1")
        k(f"v_cvt_pk_bf16_f32 v{p}, v{a+3}, v{a+2}\nv_cvt_pk_bf16_f32 v{p+1}, v{a+1}, v{a}\nds_write_b64 v{va}, v[{p}:{p+1}] offset:{off}")
    for it in range(5):
        b = 64 + 6 * it
        if it == 4: k(xm(3))
        k(f"ds_read_b128 v[{b}:{b+3}], v127 offset:{CB + it*1024}\nds_read_b64 v[{b+4}:{b+5}], v127 offset:{CB + it*1024 + 16}")
    k("s_mov_b64 exec, -1\ns_waitcnt lgkmcnt(0)")
    for it in range(5):
        b = 64 + 6 * it; e = 96 + 12 * (it % 2)
        if it == 4: k(xm(3))
        for i in range(4): k(f"v_alignbit_b32 v{e+i}, v{b+i+1}, v{b+i}, 16")
        for i in range(4): k(f"v_mov_b32 v{e+4+i}, v{b+i+1}")
        for i in range(3): k(f"v_mov_b32 v{e+8+i}, v{e+1+i}")
        k(f"v_alignbit_b32 v{e+11}, v{b+5}, v{b+4}, 16")
        for s_ in range(3): k(f"ds_write_b128 v127, v[{e+4*s_}:{e+4*s_+3}] offset:{CB + (s_+1)*4160 + it*1024}")
    k(f"s_mov_b64 exec, -1\nv_mov_b32 v60, s57\nv_mov_b32 v61, 1\ns_waitcnt vmcnt(0)\nds_write_b32 v60, v61")

def conv_run(k, o, st):
    CB = CBO; IS = [(7, 6, 1, 0), (5, 4, 3, 2)][st]; nm = max(IS) + 1
    VF, VGa = 140, 141
    k(f"""
    v_and_b32 v20, 15, v{VL}
    v_lshrrev_b32 v21, 4, v{VL}
    v_sub_u32 v22, 3, v20
    v_and_b32 v22, 3, v22
    v_mul_u32_u24 v22, 4160, v22
    v_lshrrev_b32 v23, 2, v20
    v_lshlrev_b32 v23, 3, v23
    v_sub_u32 v22, v22, v23
    v_lshl_add_u32 v22, v21, 4, v22
    v_add_u32 v22, {CB + 2*(2028-2016)}, v22
    v_add_u32 v{VF}, s59, v22
    v_lshlrev_b32 v23, 5, v20
    v_lshl_add_u32 v{VGa}, v21, 4, v23
    v_add_u32 v{VGa}, s59, v{VGa}
    v_lshl_add_u32 v130, v21, 3, v23
    v_add_u32 v131, s59, v130
    v_mov_b32 v24, s59
    ds_read_b32 v132, v24 offset:4608
    """)
    for i in range(16): k(f"v_mov_b32 v{i}, 0")
    SETS = [32, 142]
    def creads(s, rho):
        b = SETS[s]; L = []
        for m in range(nm):
            gg = b + 32 + 4 * m; f = b + 4 * m
            L.append(f"ds_read_b128 v[{gg}:{gg+3}], v{VGa} offset:{64*(8*m + 7 - rho)}")
            L.append(f"ds_read_b64 v[{f}:{f+1}], v{VF} offset:{64*(63 - 8*m - rho)}")
            L.append(f"ds_read_b64 v[{f+2}:{f+3}], v{VF} offset:{64*(63 - 8*m - rho) + 8}")
        return L
    def cm(s):
        b = SETS[s]; L = []
        for m in range(nm):
            for n, I in enumerate(IS):
                if I < m: continue
                gg = b + 32 + 4 * (I - m); f = b + 4 * m
                L.append(f"v_mfma_f32_16x16x32_bf16 v[{4*n}:{4*n+3}], v[{f}:{f+3}], v[{gg}:{gg+3}], v[{4*n}:{4*n+3}]")
        return L
    k("\n".join(creads(0, 0)))
    k(f"s_mov_b32 s35, 0\nfz_cv{st}:\ns_waitcnt lgkmcnt(0)")
    k("\n".join(front2(cm(0), creads(1, 1), 2)))
    k(f"v_subrev_u32 v{VF}, 128, v{VF}\nv_subrev_u32 v{VGa}, 128, v{VGa}\ns_waitcnt lgkmcnt(0)")
    k("\n".join(front2(cm(1), creads(0, 0), 2)))
    k(f"s_add_u32 s35, s35, 1\ns_cmp_lt_u32 s35, 4\ns_cbranch_scc1 fz_cv{st}")
    k.srd(44, 4, XBYTES, add=WS_YT)
    k(f"s_lshl_b32 s30, s58, 12\ns_lshl_b32 s31, s58, 3\ns_add_u32 s31, s31, {FL_Y + 4*st}\ns_waitcnt lgkmcnt(0)")
    for n, I in enumerate(IS): k(f"ds_read_b64 v[{32+2*n}:{33+2*n}], v131 offset:{480 + 512*I}")
    k("s_waitcnt lgkmcnt(0)")
    for n, I in enumerate(IS):
        a = 4 * n; oo = 64 + 2 * n
        for hh in range(2):
            u = 32 + 2 * n + hh; t = 100 + 8 * hh
            k(f"""
            v_lshlrev_b32 v{t}, 16, v{u}
            v_and_b32 v{t+1}, 0xffff0000, v{u}
            v_pk_fma_f32 v[{t}:{t+1}], v[{t}:{t+1}], v[132:133], v[{a+2*hh}:{a+2*hh+1}] op_sel_hi:[1,0,1]
            v_cvt_pk_bf16_f32 v{oo+hh}, v{t}, v{t+1}
            """)
        k(f"buffer_store_dwordx2 v[{oo}:{oo+1}], v130, s[44:47], s30 offen offset:{512*I} sc1")
    if st == 0:
        k("s_mov_b32 s52, s31\ns_cmp_eq_u32 s3, 1\ns_cbranch_scc1 fz_runb")
        set_flag(k, 16, 17, 31)
    else:
        set_flag(k, 16, 17, 31)
        k(f"s_cmp_eq_u32 s3, 1\ns_cbranch_scc0 fz_fin\ns_mov_b64 exec, 1\nbuffer_store_dword v17, v16, s[{FLS}:{FLS+3}], s52 offen sc1")

def g3map(k, tp, e):
    k(f"s_and_b32 s{tp}, s2, 7\ns_lshl_b32 s{tp}, s{tp}, 2\ns_lshr_b32 s{e}, s2, 6\ns_add_u32 s{tp}, s{tp}, s{e}\ns_lshr_b32 s{e}, s2, 3\ns_and_b32 s{e}, s{e}, 7")

class Gemm3:
  def __init__(self, k, o):
    self.g = self.run(k, o)
  def pre(self): next(self.g)
  def wcheck(self): next(self.g)
  def wregs(self): next(self.g)
  def main(self): next(self.g, None)
  def run(self, k, o):
    RS = 336; YL = YL_
    TP, E = 20, 21
    k(f"""
    s_load_dwordx2 s[6:7], s[0:1], {ARG['x']}
    s_load_dwordx2 s[8:9], s[0:1], {ARG['out']}
    s_add_u32 s29, s{C}, s{W}
    s_and_b32 s29, s29, 15
    """)
    g3map(k, TP, E)
    k.srd(24, 4, WOBYTES, add=WS_WO)
    k.srd(36, 4, XBYTES, add=WS_YT)
    ACC = 0; RING = 80
    def HR(q): return 80 + 16 * q
    def WR(q): return 152 + 20 * q
    V16, V8, VH16, VH8 = 242, 243, 244, 245
    k(f"""
    v_lshlrev_b32 v{V16}, 4, v{VL}
    v_lshlrev_b32 v{V8}, 3, v{VL}
    v_lshrrev_b32 v4, 4, v{VL}
    v_and_b32 v5, 7, v{VL}
    v_lshl_add_u32 v5, v4, 3, v5
    v_and_b32 v6, 8, v{VL}
    v_cmp_eq_u32 vcc, 0, v6
    v_lshlrev_b32 v6, 4, v5
    v_lshlrev_b32 v7, 3, v5
    v_mov_b32 v8, {OOB}
    v_cndmask_b32 v{VH16}, v8, v6, vcc
    v_cndmask_b32 v{VH8}, v8, v7, vcc
    s_mul_i32 s57, s{TP}, {64*4608}
    s_mul_i32 s58, s{E}, {16*20736}
    v_lshrrev_b32 v4, 3, v{VL}
    v_lshl_add_u32 v4, v4, 2, s29
    v_and_b32 v4, 15, v4
    v_lshlrev_b32 v237, 5, v4
    v_and_b32 v5, 7, v{VL}
    v_lshl_add_u32 v237, v5, 2, v237
    s_lshl_b32 s10, s{E}, 9
    s_add_u32 s10, s10, {FL_W}
    v_add_u32 v237, s10, v237
    v_lshrrev_b32 v4, 1, v{VL}
    v_lshl_add_u32 v4, v4, 2, s29
    v_and_b32 v4, 15, v4
    v_and_b32 v5, 1, v{VL}
    v_lshlrev_b32 v5, 2, v5
    v_lshl_add_u32 v250, v4, 3, v5
    s_lshl_b32 s11, s{TP}, 7
    s_add_u32 s11, s11, {FL_H}
    v_add_u32 v250, s11, v250
    s_waitcnt lgkmcnt(0)
    """)
    def setgrp(dW):
        k(f"s_mul_i32 s50, s29, 4608\ns_add_u32 s50, s50, s57\ns_add_u32 s51, s50, {16*4608}\ns_add_u32 s52, s50, {32*4608}\ns_add_u32 s63, s50, {48*4608}")
        k(f"s_mul_i32 s54, s29, 20736\ns_add_u32 s54, s54, s58")
    def nextgrp(): k("s_add_u32 s29, s29, 4\ns_and_b32 s29, s29, 15"); setgrp(0)
    def hcheck(i):
        L = k.label("hc"); D = k.label("hd")
        k(f"""
        {L}:
        s_and_b32 s33, s59, {3 << (2*i)}
        s_cbranch_scc0 {D}
        s_add_u32 s62, s62, 1
        s_cmp_ge_u32 s62, {SPIN}
        s_cbranch_scc1 {D}
        {xm(0xff)}
        buffer_load_dword v251, v250, s[{FLS}:{FLS+3}], 0 offen sc1
        s_waitcnt vmcnt(0)
        v_cmp_ne_u32 vcc, s{NON}, v251
        s_mov_b64 exec, -1
        s_mov_b32 s59, vcc_lo
        s_branch {L}
        {D}:
        """)
    k.srd(40, 6, XBYTES)
    k.srd(44, 8, XBYTES)
    def loadsW(q):
        b = WR(q); L = []
        if q < 4:
            L.append(f"s_add_u32 s55, s54, {q*4608}")
            for dt in range(4): L.append(f"buffer_load_dwordx4 v[{b+4*dt}:{b+3+4*dt}], v{V16}, s[24:27], s55 offen offset:{dt*1024} sc1")
            L.append(f"s_add_u32 s55, s55, 4096")
            L.append(f"buffer_load_dwordx4 v[{b+16}:{b+19}], v{VH16}, s[24:27], s55 offen sc1")
        else:
            L.append(f"s_add_u32 s55, s54, 18432")
            for dt in range(4): L.append(f"buffer_load_dwordx2 v[{b+2*dt}:{b+1+2*dt}], v{V8}, s[24:27], s55 offen offset:{dt*512} sc1")
            L.append(f"buffer_load_dwordx2 v[{b+8}:{b+9}], v{VH8}, s[24:27], s55 offen offset:2048 sc1")
        return L
    def loadsH(q):
        b = HR(q); L = []
        if q < 4:
            for tb in range(4): L.append(f"buffer_load_dwordx4 v[{b+4*tb}:{b+4*tb+3}], v{V16}, s[12:15], s{[50, 51, 52, 63][tb]} offen offset:{q*1024} sc1")
        else:
            for tb in range(4): L.append(f"s_add_u32 s55, s{[50, 51, 52, 63][tb]}, 4096\nbuffer_load_dwordx2 v[{b+2*tb}:{b+2*tb+1}], v{V8}, s[12:15], s55 offen sc1")
        return L
    def mf(q, first=False):
        h = HR(q); w = WR(q); out = []
        for dt in range(5):
            for tb in range(4):
                a = ACC + (dt * 4 + tb) * 4
                cc = "0" if first else f"v[{a}:{a+3}]"
                if q < 4: out.append(f"v_mfma_f32_16x16x32_bf16 v[{a}:{a+3}], v[{w+4*dt}:{w+3+4*dt}], v[{h+4*tb}:{h+4*tb+3}], {cc}")
                else: out.append(f"v_mfma_f32_16x16x16_bf16 v[{a}:{a+3}], v[{w+2*dt}:{w+1+2*dt}], v[{h+2*tb}:{h+2*tb+1}], {cc}")
        return out
    setgrp(0)
    yield
    L = k.label("wf"); D = k.label("wfd")
    k(f"""
    s_mov_b32 s62, 0
    {xm(0x1f1f1f1f)}
    {L}:
    s_waitcnt vmcnt(0)
    v_cmp_ne_u32 vcc, s{NON}, v238
    s_cbranch_vccz {D}
    s_add_u32 s62, s62, 1
    s_cmp_ge_u32 s62, {SPIN}
    s_cbranch_scc1 {D}
    buffer_load_dword v238, v237, s[{FLS}:{FLS+3}], 0 offen sc1
    s_branch {L}
    {D}:
    s_mov_b64 exec, -1
    """)
    if o.get('wearly'):
        for q in range(4): k("\n".join(loadsW(q)))
    yield
    for q in range(4 if o.get('wearly') else 0, 5): k("\n".join(loadsW(q)))
    k(f"s_mul_i32 s56, s{W}, {REG}\ns_cmp_eq_u32 s{W}, 3\ns_cselect_b32 s56, {WQ[3]}, s56")
    k("s_mov_b64 exec, -1")
    yield
    k("s_mov_b64 exec, -1")
    k(f"v_add_u32 v246, s56, v{V16}\nv_add_u32 v247, s56, v{V8}\nv_and_b32 v248, 0x1ff, v{VH16}\nv_add_u32 v248, s56, v248\nv_and_b32 v249, 0xff, v{VH8}\nv_add_u32 v249, s56, v249")
    k("s_mov_b32 s59, 0xff\ns_mov_b32 s62, 0")
    hcheck(0)
    k.stamp(14)
    def ldsW(q):
        b = WR(q); L = []
        if q < 4:
            for dt in range(4): L.append(f"ds_read_b128 v[{b+4*dt}:{b+3+4*dt}], v246 offset:{q*4608 + dt*1024}")
            L.append(f"ds_read_b128 v[{b+16}:{b+19}], v248 offset:{q*4608 + 4096}")
        else:
            for dt in range(4): L.append(f"ds_read_b64 v[{b+2*dt}:{b+1+2*dt}], v247 offset:{18432 + dt*512}")
            L.append(f"ds_read_b64 v[{b+8}:{b+9}], v249 offset:{18432 + 2048}")
        return L
    for q in range(5): k("\n".join(loadsH(q)))
    nextgrp(); hcheck(1)
    if o.get('p3') == 2: k.stamp(11)
    for q in range(5):
        k("s_waitcnt vmcnt(16)")
        k("\n".join(mf(q, q == 0)))
        k("\n".join(loadsH(q) + ldsW(q)))
    if o.get('p3') == 2: k.stamp(8)
    nextgrp(); hcheck(2)
    for q in range(5):
        k(f"s_waitcnt vmcnt({4*(4-q) + 9*q}) lgkmcnt(0)")
        k("\n".join(mf(q)))
        k("\n".join(loadsH(q) + loadsW(q)))
    if o.get('p3') == 2: k.stamp(9)
    nextgrp(); hcheck(3)
    for q in range(5):
        k("s_waitcnt vmcnt(36)")
        k("\n".join(mf(q)))
        k("\n".join(loadsH(q) + loadsW(q)))
    if o.get('p3') == 2: k.stamp(10)
    XB = RING
    for q in range(5):
        k(f"s_waitcnt vmcnt({9*(4-q) + (4 if q else 0)})")
        k("\n".join(mf(q)))
        if q == 0:
            k(f"""
            s_lshl_b32 s30, s{TP}, 6
            v_add_u32 v{V8}, s30, v{VL}
            v_mul_u32_u24 v{V8}, 1152, v{V8}
            s_mul_i32 s30, s{E}, 144
            s_lshl_b32 s31, s{W}, 4
            s_add_u32 s30, s30, s31
            v_add_u32 v{V8}, s30, v{V8}
            s_mul_i32 s30, s{E}, 576
            s_add_u32 s30, s30, {FL_Y}
            v_lshlrev_b32 v247, 4, v{VL}
            buffer_load_dwordx4 v[248:251], v247, s[{FLS}:{FLS+3}], s30 offen sc1
            buffer_load_dwordx4 v[{XB}:{XB+3}], v{V8}, s[40:43], 0 offen
            buffer_load_dwordx4 v[{XB+4}:{XB+7}], v{V8}, s[40:43], 0 offen offset:64
            buffer_load_dwordx4 v[{XB+8}:{XB+11}], v{V8}, s[40:43], 0 offen offset:128
            v_and_b32 v{VH16}, 15, v{VL}
            v_mul_u32_u24 v{VH16}, {RS}, v{VH16}
            v_lshrrev_b32 v{VH8}, 4, v{VL}
            v_lshl_add_u32 v{VH16}, v{VH8}, 4, v{VH16}
            v_add_u32 v{VH16}, s56, v{VH16}
            """)
    if o.get('p3'): k.stamp(3)
    L = k.label("yp"); D = k.label("ypd")
    k(f"""
    s_mov_b32 s62, 0
    s_waitcnt vmcnt(3)
    {xm((1 << 36) - 1)}
    {L}:
    v_cmp_ne_u32 vcc, s{NON}, v248
    v_cmp_ne_u32 s[60:61], s{NON}, v249
    s_or_b64 vcc, vcc, s[60:61]
    v_cmp_ne_u32 s[60:61], s{NON}, v250
    s_or_b64 vcc, vcc, s[60:61]
    v_cmp_ne_u32 s[60:61], s{NON}, v251
    s_or_b64 vcc, vcc, s[60:61]
    s_cbranch_vccz {D}
    s_add_u32 s62, s62, 1
    s_cmp_ge_u32 s62, {SPIN}
    s_cbranch_scc1 {D}
    buffer_load_dwordx4 v[248:251], v247, s[{FLS}:{FLS+3}], s30 offen sc1
    s_waitcnt vmcnt(0)
    s_branch {L}
    {D}:
    s_mov_b64 exec, -1
    """)
    if o.get('p3'): k.stamp(4)
    k(f"""
    v_lshrrev_b32 v100, 3, v{VL}
    v_and_b32 v101, 7, v{VL}
    v_lshlrev_b32 v100, 12, v100
    v_lshl_add_u32 v100, v101, 4, v100
    s_mul_i32 s30, s{E}, {72*4096}
    s_lshl_b32 s31, s{TP}, 7
    s_add_u32 s30, s30, s31
    s_lshl_b32 s31, s{W}, 15
    s_add_u32 s30, s30, s31
    s_lshl_b32 s31, s{W}, 10
    s_add_u32 m0, s31, {YL}
    buffer_load_dwordx4 v100, s[36:39], s30 offen sc1 lds
    s_add_u32 s30, s30, {4*32768}
    s_add_u32 m0, s31, {YL+4096}
    buffer_load_dwordx4 v100, s[36:39], s30 offen sc1 lds
    s_cmp_lg_u32 s{W}, 0
    s_cbranch_scc1 fz_y2
    s_add_u32 s30, s30, {4*32768}
    s_mov_b32 m0, {YL+8192}
    buffer_load_dwordx4 v100, s[36:39], s30 offen sc1 lds
    fz_y2:
    """)
    for dt in range(5):
        for tb in range(4):
            a = ACC + (dt * 4 + tb) * 4
            k(f"ds_write_b128 v{VH16}, v[{a}:{a+3}] offset:{tb*16*RS + dt*64}")
    if o.get('p3'): k.stamp(5)
    k(f"""
    s_waitcnt lgkmcnt(0)
    s_barrier
    v_mul_u32_u24 v{VH16}, {RS}, v{VL}
    s_lshl_b32 s30, s{W}, 5
    v_add_u32 v{VH16}, s30, v{VH16}
    v_add_u32 v246, {WQ[3]}, v{VH16}
    v_lshlrev_b32 v{VH8}, 1, v{VL}
    s_lshl_b32 s30, s{W}, 10
    s_add_u32 s30, s30, {YL}
    v_add_u32 v{VH8}, s30, v{VH8}
    """)
    def fin(ps):
        Pp = 0; Y = 40; Tm = 48
        for w in range(4):
            for hh in range(2):
                k(f"ds_read_b128 v[{Pp+8*w+4*hh}:{Pp+8*w+4*hh+3}], v{VH16 if w < 3 else 246} offset:{(w % 3 if w < 3 else 0)*64*RS + ps*128 + hh*16}")
        if ps == 0: k("s_waitcnt vmcnt(0)")
        for i in range(8): k(f"ds_read_u16 v{Y+i}, v{VH8} offset:{ps*4096 + i*128}")
        k("s_waitcnt lgkmcnt(0)")
        for i in range(4):
            a = Pp + 2 * i
            k(f"""
            v_pk_add_f32 v[{a}:{a+1}], v[{a}:{a+1}], v[{a+8}:{a+9}]
            v_pk_add_f32 v[{a+16}:{a+17}], v[{a+16}:{a+17}], v[{a+24}:{a+25}]
            v_pk_add_f32 v[{a}:{a+1}], v[{a}:{a+1}], v[{a+16}:{a+17}]
            v_cvt_pk_bf16_f32 v{Tm}, v{a}, v{a+1}
            v_lshlrev_b32 v{a}, 16, v{Tm}
            v_and_b32 v{a+1}, 0xffff0000, v{Tm}
            v_lshlrev_b32 v{Tm+2}, 16, v{XB+4*ps+i}
            v_and_b32 v{Tm+3}, 0xffff0000, v{XB+4*ps+i}
            v_lshlrev_b32 v{Tm+4}, 16, v{Y+2*i}
            v_lshlrev_b32 v{Tm+5}, 16, v{Y+2*i+1}
            v_pk_add_f32 v[{Tm+2}:{Tm+3}], v[{Tm+2}:{Tm+3}], v[{Tm+4}:{Tm+5}]
            v_cvt_pk_bf16_f32 v{Tm}, v{Tm+2}, v{Tm+3}
            v_lshlrev_b32 v{Tm+2}, 16, v{Tm}
            v_and_b32 v{Tm+3}, 0xffff0000, v{Tm}
            v_pk_add_f32 v[{a}:{a+1}], v[{a}:{a+1}], v[{Tm+2}:{Tm+3}]
            v_cvt_pk_bf16_f32 v{56+4*ps+i}, v{a}, v{a+1}
            """)
        k(f"buffer_store_dwordx4 v[{56+4*ps}:{59+4*ps}], v{V8}, s[44:47], 0 offen offset:{ps*64}")
    if o.get('p3'): k.stamp(6)
    fin(0); fin(1)
    if o.get('p3'): k.stamp(7)
    k(f"s_cmp_lg_u32 s{W}, 0\ns_cbranch_scc1 fz_fin")
    fin(2)
    k(f"""
    s_cmp_lg_u32 s2, 0
    s_cbranch_scc1 fz_fin
    v_mov_b32 v0, 0
    v_mov_b32 v1, s{NON}
    s_mov_b64 exec, 1
    buffer_store_dword v1, v0, s[{FLS}:{FLS+3}], 0 offen
    s_mov_b64 exec, -1
    s_branch fz_fin
    """)
```

```python
import sys; sys.path.insert(0, "dev")
from cm14 import *
SLOT = 34816; NS = 4
XTL = 104448; RPL = 114688
Z1 = 160
WOFF = 16384


ROWA = 139264
COLP = ROWA + 1024
WPRIV = COLP + 2 * 768
XTS = WPRIV + 1280
assert XTS + 4 * 5120 <= 163840
KTAB = 104448
CNT = WPRIV + 1024
WFL = 163000
RPK = XTS
WS_RS = WS_ST + 0x90000
def phase0(k, o):
    k(f"""
    s_load_dwordx2 s[6:7], s[0:1], {ARG['x']}
    s_load_dwordx2 s[8:9], s[0:1], {ARG['w_in']}
    s_load_dwordx2 s[4:5], s[0:1], {ARG['ws']}
    s_getpc_b64 s[28:29]
    fz_pc:
    s_cmp_ge_u32 s2, 256
    s_cbranch_scc1 fz_end
    v_lshrrev_b32 v1, 6, v0
    v_and_b32 v{VL}, 63, v0
    v_readfirstlane_b32 s{W}, v1
    s_and_b32 s30, s2, 7
    s_lshr_b32 s31, s2, 3
    v_lshrrev_b32 v1, 4, v0
    v_lshl_add_u32 v1, s31, 5, v1
    v_lshlrev_b32 v1, 7, v1
    v_min_u32 v1, fz_end-fz_pc, v1
    {xm(0x0001000100010001)}
    global_load_dword v254, v1, s[28:29]
    s_mov_b64 exec, -1
    s_and_b32 s{P}, s30, 1
    s_lshl_b32 s{P}, s{P}, 3
    s_lshr_b32 s32, s31, 2
    s_add_u32 s{P}, s{P}, s32
    s_lshr_b32 s{C}, s30, 1
    s_lshl_b32 s{C}, s{C}, 2
    s_and_b32 s32, s31, 3
    s_add_u32 s{C}, s{C}, s32
    s_lshl_b32 s63, s2, 3
    s_add_u32 s63, s63, s{W}
    s_mul_i32 s31, s63, 1152
    v_lshlrev_b32 v2, 4, v{VL}
    v_mov_b32 v3, {OOB}
    v_cmp_gt_u32 vcc, 36, v{VL}
    v_cndmask_b32 v2, v3, v2, vcc
    s_waitcnt lgkmcnt(0)
    """)
    k.srd(12, 6, XBYTES)
    k(f"""
    buffer_load_dwordx4 v[8:11], v2, s[12:15], s31 offen
    buffer_load_dwordx4 v[12:15], v2, s[12:15], s31 offen offset:576
    s_add_u32 s10, s4, {WS_FL}
    s_addc_u32 s11, s5, 0
    s_load_dword s{NON}, s[10:11], 0
    s_cmp_lt_u32 s{W}, 4
    s_cbranch_scc1 fz_c0
    s_cmp_lt_u32 s{W}, 6
    s_cbranch_scc1 fz_w0
    """)
    LX = p1_loader(k, o, "X"); next(LX)
    k("s_mov_b32 s3, 2\ns_branch fz_ln\nfz_w0:")
    LW = p1_loader(k, o, "W"); next(LW)
    k("s_mov_b32 s3, 1\ns_branch fz_ln\nfz_c0:")
    CC = p1_consumer(k, o); next(CC)
    k("s_mov_b32 s3, 0\nfz_ln:")
    ln1(k, o)
    k(f"s_cmp_eq_u32 s3, 0\ns_cbranch_scc1 fz_c1\ns_cmp_eq_u32 s3, 1\ns_cbranch_scc1 fz_l1W")
    next(LX, None)
    k("fz_l1W:")
    next(LW, None)
    k("fz_c1:")
    next(CC, None)

def ln1(k, o):
    X = 16; S = 112
    k.srd(FLS, 4, FL_BYTES, add=WS_FL)
    k(f"v_cmp_gt_u32 vcc, 36, v{VL}")
    for i in range(8): k(f"v_lshlrev_b32 v{X+2*i}, 16, v{8+i}\nv_and_b32 v{X+2*i+1}, 0xffff0000, v{8+i}")
    k(f"v_pk_add_f32 v[{S}:{S+1}], v[{X}:{X+1}], v[{X+2}:{X+3}]\nv_pk_add_f32 v[{S+2}:{S+3}], v[{X+4}:{X+5}], v[{X+6}:{X+7}]")
    for i in range(4, 8): k(f"v_pk_add_f32 v[{S+2*(i&1)}:{S+2*(i&1)+1}], v[{S+2*(i&1)}:{S+2*(i&1)+1}], v[{X+2*i}:{X+2*i+1}]")
    k(f"v_pk_add_f32 v[{S}:{S+1}], v[{S}:{S+1}], v[{S+2}:{S+3}]\nv_add_f32 v{S}, v{S}, v{S+1}")
    dpp_sum16(k, [S]); xsum_rows(k, S, S + 1)
    k(f"v_mul_f32 v{S}, {1.0/576!r}, v{S}\nv_cndmask_b32 v{S+6}, 0, v{S}, vcc")
    for i in range(8):
        t = 32 + 2 * i
        k(f"v_pk_add_f32 v[{t}:{t+1}], v[{X+2*i}:{X+2*i+1}], v[{S+6}:{S+7}] op_sel_hi:[1,0] neg_lo:[0,1] neg_hi:[0,1]")
    for i in range(8):
        t = 32 + 2 * i; q = S + 2 + 2 * (i & 1)
        if i < 2: k(f"v_pk_mul_f32 v[{q}:{q+1}], v[{t}:{t+1}], v[{t}:{t+1}]")
        else: k(f"v_pk_fma_f32 v[{q}:{q+1}], v[{t}:{t+1}], v[{t}:{t+1}], v[{q}:{q+1}]")
    k(f"v_pk_add_f32 v[{S+2}:{S+3}], v[{S+2}:{S+3}], v[{S+4}:{S+5}]\nv_add_f32 v{S+2}, v{S+2}, v{S+3}")
    dpp_sum16(k, [S + 2]); xsum_rows(k, S + 2, S + 3)
    k(f"v_mul_f32 v{S+2}, {1.0/576!r}, v{S+2}")
    k.srd(36, 4, XBYTES, add=WS_XN)
    k(f"s_waitcnt lgkmcnt(0)\ns_mul_i32 s{NON}, s{NON}, 0x9E3779B1\ns_add_u32 s{NON}, s{NON}, 0x7F4A7C15\ns_mul_i32 s31, s63, 1152")
    ln_finish(k, S, S + 2)
    k(f"v_mul_f32 v{S}, -v{S}, v{S+2}")
    for i in range(8): k(f"v_pk_fma_f32 v[{X+2*i}:{X+2*i+1}], v[{X+2*i}:{X+2*i+1}], v[{S+2}:{S+3}], v[{S}:{S+1}] op_sel_hi:[1,0,0]")
    for i in range(8): k(f"v_cvt_pk_bf16_f32 v{8+i}, v{X+2*i}, v{X+2*i+1}")
    k(f"""
    buffer_store_dwordx4 v[8:11], v2, s[36:39], s31 offen sc1
    buffer_store_dwordx4 v[12:15], v2, s[36:39], s31 offen offset:576 sc1
    v_mov_b32 v{S+1}, s{NON}
    v_mov_b32 v{S+3}, s{NON}
    s_lshl_b32 s63, s63, 4
    """)

def rowgran(k, srd, vz):
    k(f"v_mov_b32 v{vz}, 0\ns_mov_b64 exec, 1\nbuffer_store_dwordx4 v[112:115], v{vz}, s[{srd}:{srd+3}], s63 offen sc1\ns_mov_b64 exec, -1")

def get_nonce(k):
    k(f"s_add_u32 s10, s4, {WS_FL}\ns_addc_u32 s11, s5, 0\ns_load_dword s{NON}, s[10:11], 0")
    k.srd(FLS, 4, FL_BYTES, add=WS_FL)
def fin_nonce(k):
    k(f"s_waitcnt lgkmcnt(0)\ns_mul_i32 s{NON}, s{NON}, 0x9E3779B1\ns_add_u32 s{NON}, s{NON}, 0x7F4A7C15")

def p1_addr(k, VX0b, VX1b, VWb, tq_s):
    k(f"""
    v_and_b32 v3, 15, v{VL}
    v_lshrrev_b32 v4, 4, v{VL}
    v_lshrrev_b32 v5, 1, v3
    v_xor_b32 v5, v5, v4
    v_lshlrev_b32 v5, 4, v5
    v_lshl_add_u32 v5, v3, 7, v5
    s_lshl_b32 s32, s{tq_s}, 12
    v_add_u32 v{VX0b}, s32, v5
    v_xor_b32 v{VX1b}, 64, v{VX0b}
    v_bfe_u32 v5, v{VL}, 2, 2
    v_and_b32 v6, 1, v4
    v_lshl_add_u32 v5, v6, 2, v5
    v_lshrrev_b32 v6, 1, v4
    v_lshl_add_u32 v5, v6, 4, v5
    v_mul_u32_u24 v5, 288, v5
    v_and_b32 v6, 3, v{VL}
    v_lshl_add_u32 v5, v6, 3, v5
    v_add_u32 v{VWb}, {WOFF}, v5
    """)

def p1_loader(k, o, typ):
    VD = 200; n = 8 if typ == "X" else 9
    k(f"s_sub_u32 s57, s{W}, 4      ; lw\ns_setprio {o.get('prioL', 3)}")
    if typ == "X":
        k(f"""
        v_lshrrev_b32 v3, 3, v{VL}
        v_and_b32 v4, 7, v{VL}
        v_lshrrev_b32 v5, 4, v{VL}
        v_xor_b32 v4, v4, v5
        v_mul_u32_u24 v3, 1152, v3
        v_lshl_add_u32 v3, v4, 4, v3
        v_xor_b32 v4, 64, v3
        s_sub_u32 s31, s{W}, 6
        s_lshl_b32 s30, s{P}, 7
        s_lshl_b32 s32, s31, 6
        s_add_u32 s30, s30, s32
        s_mul_i32 s30, s30, 1152
        s_lshl_b32 s44, s31, 13
        """)
        k("s_mov_b32 s40, 0")
        for j in range(8):
            k(f"v_add_u32 v{VD+j}, s30, v{3 + (j & 1)}\ns_add_u32 s30, s30, {8*1152}\ns_add_u32 m0, s44, {j*1024}\nbuffer_load_dwordx4 v{VD+j}, s[12:15], s40 offen lds")
        kstep, k0 = 128, 0
    else:
        k(f"s_mul_i32 s32, s{C}, 288\ns_mov_b32 s33, 3641\ns_mul_i32 s31, s57, {9*64}\ns_mul_i32 s44, s57, {9*1024}\ns_add_u32 s44, s44, {WOFF}\nv_add_u32 v1, s31, v{VL}")
        k("s_mov_b32 s40, 4608")
        k.srd(12, 8, 576 * 9216)
        for j in range(9):
            k(f"""
            v_add_u32 v3, {64*j}, v1
            v_mul_lo_u32 v4, v3, s33
            v_lshrrev_b32 v4, 16, v4
            v_mul_u32_u24 v5, 18, v4
            v_sub_u32 v5, v3, v5
            v_and_b32 v6, 0x33, v4
            v_bfe_u32 v7, v4, 2, 1
            v_lshl_or_b32 v6, v7, 3, v6
            v_bfe_u32 v7, v4, 3, 1
            v_lshl_or_b32 v6, v7, 2, v6
            v_mul_u32_u24 v6, 9216, v6
            v_lshl_add_u32 v6, v5, 4, v6
            v_add_u32 v{VD+j}, s32, v6
            s_add_u32 m0, s44, {j*1024}
            buffer_load_dwordx4 v{VD+j}, s[12:15], s40 offen lds
            """)
        kstep = 64 * 9216
    k("s_mov_b32 s41, s44\ns_mov_b32 s43, 0")
    tch = 1 if (typ == "X" and o.get('touch', 1) == 1) else 0
    TV = 209
    def issue(touch=True):
        L = []
        for j in range(8 if typ == 'X' else 9):
            L.append((f"s_add_u32 m0, s41, {j*1024}\n" if j else "s_mov_b32 m0, s41\n") + f"buffer_load_dwordx4 v{VD+j}, s[12:15], s40 offen {'sc1 ' if typ == 'X' else ''}lds")
        if tch and touch: L.append(f"s_cmp_lt_u32 s49, s51\ns_cselect_b32 s52, s49, {OOB}\nbuffer_load_dword v254, v{TV}, s[28:31], s52 offen\ns_add_u32 s49, s49, s50")
        L.append(f"s_add_u32 s40, s40, {kstep}\ns_add_u32 s41, s41, {SLOT}\ns_cmp_ge_u32 s41, {SLOT*NS}\ns_cselect_b32 s41, s44, s41")
        L.append(f"s_add_u32 s43, s43, 1\ns_cmp_eq_u32 s43, 9\ns_cselect_b32 s40, 0, s40")
        return L
    k("\n".join(issue(False)[n:]))
    k("\n".join(issue(False)))
    if o.get('p0'): k.stamp(5)
    k(f"s_waitcnt vmcnt({2*n})")
    yield
    if tch:
        k(f"""
        s_load_dwordx2 s[46:47], s[0:1], {ARG['w_sp']}
        s_load_dwordx2 s[54:55], s[0:1], {ARG['w_out']}
        v_mov_b32 v6, {OOB}
        v_and_b32 v3, 7, v{VL}
        v_lshrrev_b32 v4, 3, v{VL}
        v_lshlrev_b32 v3, 12, v3
        v_lshl_add_u32 v3, v4, 7, v3
        s_lshl_b32 s31, s2, 15
        v_add_u32 v3, s31, v3
        s_lshr_b32 s33, s2, {4 if o.get('rot') else 16}
        s_lshl_b32 s33, s33, 8
        v_lshl_add_u32 v4, v4, 7, s33
        v_and_b32 v4, 4095, v4
        v_and_b32 v3, 7, v{VL}
        v_lshl_add_u32 v3, v3, 12, v4
        v_add_u32 v3, s31, v3
        v_mov_b32 v{TV}, v3
        s_mov_b32 s49, 1000
        s_mov_b32 s50, 1
        s_mov_b32 s51, 1
        s_waitcnt lgkmcnt(0)
        """)
        k.srd(28, 46, 2048 * 4096)
        k(f"s_cmp_eq_u32 s{W}, 6\ns_cbranch_scc1 fz_t6")
        k.srd(28, 8, 576 * 9216)
        k(f"""
        s_mul_i32 s33, s2, {3*9216}
        s_cmp_lt_u32 s2, 192
        s_cselect_b32 s33, s33, {OOB}
        v_lshlrev_b32 v3, 7, v{VL}
        v_add_u32 v3, s33, v3
        v_cmp_gt_u32 vcc, 36, v{VL}
        v_cndmask_b32 v{TV}, v6, v3, vcc
        s_mov_b32 s49, {-9216 * o.get('tz1', 1)}
        s_mov_b32 s50, 9216
        s_mov_b32 s51, {3*9216}
        fz_t6:
        """)
    n0 = n; n = n + tch
    VX0, VX1, VW, VX0b, VX1b, VWb = 210, 211, 212, 213, 214, 215
    p1_addr(k, VX0b, VX1b, VWb, 57)
    CA = 44
    WF = 56
    ON = 108
    T = 116
    for i in range(4): k(f"v_mov_b32 v{ON+i}, 0x3f803f80")
    for i in range(12): k(f"v_mov_b32 v{CA+i}, 0")
    k(f"s_lshl_b32 s36, s57, 5\nv_add_u32 v{VWb}, s36, v{VWb}\nv_mov_b32 v{VW}, v{VWb}\ns_mov_b32 s34, 0\ns_mov_b32 s35, 0")
    k.srd(24, 4, 2048 * 16, add=WS_RS)
    k(f"s_lshl_b32 s36, s{P}, 7\ns_and_b32 s37, s57, 1\ns_lshl_b32 s37, s37, 6\ns_add_u32 s36, s36, s37\ns_lshl_b32 s36, s36, 4\nv_lshlrev_b32 v{T+8}, 4, v{VL}")
    k(f"""
    s_sub_u32 s56, 7, s{W}
    s_lshr_b32 s58, s56, 1
    s_xor_b32 s56, s56, s58
    s_lshl_b32 s58, s2, 1
    s_add_u32 s58, s58, s56
    s_add_u32 s59, s2, 512
    s_cmp_eq_u32 s56, 2
    s_cselect_b32 s58, s59, s58
    s_cmp_eq_u32 s56, 3
    s_cselect_b32 s58, 1000, s58
    s_lshl_b32 s59, s56, 13
    s_add_u32 s59, s59, {KTAB}
    """)
    adv = f"s_add_u32 s34, s34, {SLOT}\ns_cmp_ge_u32 s34, {SLOT*NS}\ns_cselect_b32 s34, 0, s34\nv_add_u32 v{VW}, s34, v{VWb}"
    nt = 3 if typ == "W" else 2
    smem = [0]
    def stage(z2, do_issue, wait, fill=None, twice=False):
        k(f"s_waitcnt vmcnt({wait}){' lgkmcnt(0)' if z2 else ''}\ns_barrier")
        if not z2 and o.get('spat') == 20:
            for _ in range(o.get('nsm', 11)):
                if smem[0] < 64: k(f"s_load_dword s45, s[38:39], {smem[0]*128}"); smem[0] += 1
        rd_ = []; mf = []
        if z2:
            for hf in range(2):
                for t in range(nt):
                    f = WF + (hf * 3 + t) * 4
                    for rd in range(2): rd_.append(f"ds_read_b64_tr_b16 v[{f+2*rd}:{f+2*rd+1}], v{VW} offset:{hf*32*288 + rd*8*288 + t*128}")
                    mf.append(f"v_mfma_f32_16x16x32_bf16 v[{CA+4*t}:{CA+4*t+3}], v[{ON}:{ON+3}], v[{f}:{f+3}], v[{CA+4*t}:{CA+4*t+3}]")
        dm = issue() if do_issue else []
        if twice: dm = dm + issue()
        if z2:
            k("\n".join(rd_ + dm[:2]))
            k("s_waitcnt lgkmcnt(0)")
            k("\n".join(front(dm[2:], mf)))
            k(adv)
        else: k("\n".join(dm))
        if fill: k("\n".join(fill))
        k("s_add_u32 s35, s35, 1")
    def gran_check(vd, va, so, full):
        L = k.label("rp"); D = k.label("rd")
        k(f"""
        s_mov_b32 s62, 0
        {"" if full else xm(0xffffffff)}
        {L}:
        v_cmp_ne_u32 vcc, s{NON}, v{vd+1}
        v_cmp_ne_u32 s[60:61], s{NON}, v{vd+3}
        s_or_b64 vcc, vcc, s[60:61]
        s_cbranch_vccz {D}
        s_add_u32 s62, s62, 1
        s_cmp_ge_u32 s62, {SPIN}
        s_cbranch_scc1 {D}
        buffer_load_dwordx4 v[{vd}:{vd+3}], v{va}, s[24:27], s{so} offen sc1
        s_waitcnt vmcnt(0)
        s_branch {L}
        {D}:
        """)
    if o.get('p0'):
        k.stamp(7); k(f"s_waitcnt vmcnt({n0 + 2})"); k.stamp(8)
    stage(True, True, n0 + 2, twice=True)
    k(f"fz_l1{typ}a:")
    stage(True, True, 2 * n0)
    L = k.label("gr"); k(f"s_cmp_eq_u32 s35, 2\ns_cbranch_scc0 {L}"); rowgran(k, 24, T); k(f"{L}:")
    if typ == "X":
        L = k.label("rg")
        k(f"s_cmp_eq_u32 s35, 5\ns_cbranch_scc0 {L}\nbuffer_load_dwordx4 v[{T+4}:{T+7}], v{T+8}, s[24:27], s36 offen sc1\n{L}:")
    k(f"s_cmp_lt_u32 s35, 6\ns_cbranch_scc1 fz_l1{typ}a")
    if typ == "X":
        k(f"s_waitcnt vmcnt({n})")
        gran_check(T + 4, T + 8, 36, True)
        k.srd(12, 4, XBYTES, add=WS_XN)
        k(f"""
        v_lshlrev_b32 v{T}, 2, v{VL}
        s_sub_u32 s33, s{W}, 6
        s_lshl_b32 s33, s33, 8
        s_add_u32 s33, s33, {ROWA}
        v_add_u32 v{T}, s33, v{T}
        ds_write_b32 v{T}, v{T+4}
        ds_write_b32 v{T}, v{T+6} offset:512
        """)
    k(f"fz_l1{typ}a2:")
    stage(True, True, 2 * n0)
    k(f"s_cmp_lt_u32 s35, 9\ns_cbranch_scc1 fz_l1{typ}a2")
    k(f"s_lshl_b32 s33, s57, 6\ns_add_u32 s33, s33, {COLP}\nv_lshlrev_b32 v{T}, 2, v{VL}\nv_add_u32 v{T}, s33, v{T}\n{xm(0xffff)}")
    for t in range(nt): k(f"ds_write_b32 v{T}, v{CA+4*t} offset:{t*256}")
    k("s_mov_b64 exec, -1\ns_waitcnt lgkmcnt(0)\ns_barrier")
    k.stamp(3)
    k("\n".join(issue()))
    if tch:
        L = k.label("t7")
        k(f"s_cmp_eq_u32 s{W}, 6\ns_cbranch_scc1 {L}")
        k.srd(28, 54, WOBYTES)
        k(f"s_mul_i32 s33, s2, {81*128}\nv_lshlrev_b32 v3, 7, v{VL}\nv_add_u32 v3, s33, v3\nv_mov_b32 v6, {OOB}\nv_cmp_gt_u32 vcc, 27, v{VL}\nv_cndmask_b32 v{TV}, v6, v3, vcc\ns_mov_b32 s49, 0\ns_mov_b32 s50, {27*128}\ns_mov_b32 s51, {81*128}\n{L}:")
    ex = 0
    if typ == "X":
        def sptouch():
            k.srd(24, 46, 2048 * 4096)
            k(f"s_lshl_b32 s33, s2, 15\ns_sub_u32 s37, s{W}, 6\ns_lshl_b32 s37, s37, 10\ns_add_u32 s33, s33, s37\nv_lshrrev_b32 v{T+2}, 3, v{VL}\nv_lshlrev_b32 v{T+2}, 12, v{T+2}\nv_and_b32 v{T+3}, 7, v{VL}\nv_lshl_add_u32 v{T+2}, v{T+3}, 7, v{T+2}")
            for i in range(2): k(f"buffer_load_dword v254, v{T+2}, s[24:27], s33 offen offset:{i*2048}")
        if o.get('spat', 9) == 9:
            sptouch(); ex = 2
    else:
        L = k.label("xt")
        k(f"s_cmp_lg_u32 s{W}, 5\ns_cbranch_scc1 {L}")
        k.srd(24, 4, XBYTES, add=WS_XN)
        k(f"""
        s_lshl_b32 s36, s{P}, 1
        s_lshr_b32 s33, s{C}, 3
        s_add_u32 s36, s36, s33          ; tp
        s_and_b32 s37, s{C}, 7           ; e
        s_mul_i32 s33, s36, {64*1152}
        s_mul_i32 s38, s37, 144
        s_add_u32 s33, s33, s38
        s_mov_b32 s38, {(1 << 16) // 9 + 1}
        """)
        for i in range(9):
            k(f"""
            v_add_u32 v3, {64*i}, v{VL}
            v_mul_lo_u32 v4, v3, s38
            v_lshrrev_b32 v4, 16, v4
            v_mul_u32_u24 v5, 9, v4
            v_sub_u32 v5, v3, v5
            v_mul_u32_u24 v4, 1152, v4
            v_lshl_add_u32 v4, v5, 4, v4
            s_mov_b32 m0, {XTS + i*1024}
            buffer_load_dwordx4 v4, s[24:27], s33 offen sc1 lds
            """)
        k.srd(24, 4, XBYTES, add=WS_XT)
        k(f"""
        v_bfe_u32 v3, v{VL}, 2, 2
        v_lshrrev_b32 v4, 4, v{VL}
        v_lshl_add_u32 v3, v4, 3, v3     ; row = 8g + r
        v_mul_u32_u24 v3, 144, v3
        v_and_b32 v5, 3, v{VL}
        v_lshl_add_u32 v3, v5, 3, v3
        v_add_u32 v3, {XTS}, v3
        v_and_b32 v5, 15, v{VL}
        v_lshlrev_b32 v5, 12, v5
        v_lshl_add_u32 v5, v4, 4, v5     ; d*4096 + g*16
        s_mul_i32 s33, s37, {72*4096}
        s_lshl_b32 s38, s36, 7
        s_add_u32 s33, s33, s38
        s_lshl_b32 s37, s37, 5
        s_add_u32 s36, s36, s37
        s_lshl_b32 s36, s36, 2
        s_add_u32 s36, s36, {FL_T}
        s_waitcnt vmcnt(0)
        """)
        for dt in range(5):
            for h in range(2):
                for rd in range(2):
                    r = 56 + (dt * 2 + h) * 4 + 2 * rd
                    k(f"ds_read_b64_tr_b16 v[{r}:{r+1}], v3 offset:{(32*h + 4*rd)*144 + dt*32}")
        k("s_waitcnt lgkmcnt(0)")
        for dt in range(5):
            if dt == 4: k(xm(0x00ff00ff00ff00ff))
            for h in range(2):
                r = 56 + (dt * 2 + h) * 4
                k(f"buffer_store_dwordx4 v[{r}:{r+3}], v5, s[24:27], s33 offen offset:{64*h} sc1")
            k("s_add_u32 s33, s33, 65536")
        k(f"s_mov_b64 exec, -1\n{L}:")
    if o.get('spat') == 20:
        k(f"s_load_dwordx2 s[38:39], s[0:1], {ARG['w_sp']}\ns_lshl_b32 s33, s2, 2\ns_add_u32 s33, s33, s57\ns_lshl_b32 s33, s33, 13\ns_waitcnt lgkmcnt(0)\ns_add_u32 s38, s38, s33\ns_addc_u32 s39, s39, 0")
        for _ in range(o.get('nsm0', 12)): k(f"s_load_dword s45, s[38:39], {smem[0]*128}"); smem[0] += 1
    ka = split(kgen_addr(k, o), 4)
    stage(False, False, 3 * n + tch + ex, ka[0])
    for i in range(3): stage(False, True, 2 * n + tch + ex, ka[1 + i])
    stage(False, True, 2 * n + tch)
    if typ == "W":
        L = k.label("xf")
        k(f"s_cmp_lg_u32 s{W}, 5\ns_cbranch_scc1 {L}\nv_mov_b32 v{T}, 0\nv_mov_b32 v{T+1}, s{NON}\ns_mov_b64 exec, 1\nbuffer_store_dword v{T+1}, v{T}, s[{FLS}:{FLS+3}], s36 offen sc1\ns_mov_b64 exec, -1\n{L}:")
    stage(False, True, 2 * n + tch)
    e2 = 0
    if typ == "X" and o.get('spat', 9) == 15: sptouch(); e2 = 2
    kgen_setup(k, o)
    stage(False, False, 2 * n + tch + 14 + e2)
    Q = 56
    k.srd(24, 4, 16 * 16 * 2048, add=WS_ST)
    k(f"""
    v_and_b32 v{T}, 31, v{VL}
    v_lshlrev_b32 v{T+1}, 2, v{T}
    v_lshlrev_b32 v{T}, 4, v{T}
    v_lshrrev_b32 v{T+2}, 5, v{VL}
    v_lshl_add_u32 v{T}, v{T+2}, 14, v{T}
    s_lshl_b32 s52, s{P}, 15
    s_lshl_b32 s53, s57, 9
    s_add_u32 s52, s52, s53
    s_lshl_b32 s33, s57, 7
    s_add_u32 s33, s33, {ROWA}
    v_add_u32 v{T+1}, s33, v{T+1}
    s_mov_b32 s62, 0
    """)
    def sweep():
        for c2 in range(8): k(f"s_add_u32 s53, s52, {c2*2048}\nbuffer_load_dwordx4 v[{Q+4*c2}:{Q+3+4*c2}], v{T}, s[24:27], s53 offen sc1")
    sweep()
    stage(False, False, n + tch + 14 + 8 + e2)
    stage(False, False, 0)
    L = k.label("sp"); D = k.label("spd")
    k(f"{L}:\nv_xor_b32 v{T+5}, s{NON}, v{Q+1}")
    for c2 in range(8):
        for hh in range(2):
            if c2 == 0 and hh == 0: continue
            k(f"v_xor_b32 v{T+6+(c2+hh)%2}, s{NON}, v{Q+1+4*c2+2*hh}\nv_or_b32 v{T+5}, v{T+5}, v{T+6+(c2+hh)%2}")
    k(f"v_cmp_ne_u32 vcc, 0, v{T+5}\ns_cbranch_vccz {D}\ns_add_u32 s62, s62, 1\ns_cmp_ge_u32 s62, {SPIN}\ns_cbranch_scc1 {D}")
    sweep()
    k(f"s_waitcnt vmcnt(0)\ns_branch {L}\n{D}:")
    for c2 in range(1, 8): k(f"v_add_f32 v{Q}, v{Q}, v{Q+4*c2}\nv_add_f32 v{Q+2}, v{Q+2}, v{Q+2+4*c2}")
    m, v = Q, Q + 2
    k(f"""
    v_mov_b32 v{Q+1}, v{m}
    v_mov_b32 v{Q+3}, v{v}
    v_permlane32_swap_b32 v{m}, v{Q+1}
    v_permlane32_swap_b32 v{v}, v{Q+3}
    v_add_f32 v{m}, v{m}, v{Q+1}
    v_add_f32 v{v}, v{v}, v{Q+3}
    v_mul_f32 v{m}, {1.0/2304!r}, v{m}
    v_mul_f32 v{v}, {1.0/2304!r}, v{v}
    v_fma_f32 v{v}, -v{m}, v{m}, v{v}
    v_max_f32 v{v}, 0, v{v}
    """)
    ln_finish(k, m, v)
    k(f"v_mul_f32 v{m}, -v{m}, v{v}\nds_write_b32 v{T+1}, v{m}\nds_write_b32 v{T+1}, v{v} offset:512\ns_waitcnt lgkmcnt(0)\ns_barrier")
    if typ == "X" and o.get('spat', 9) == 18: sptouch()
    k.stamp(6)
    k("s_branch fz_loader")

def p1_consumer(k, o):
    A2, A1 = 0, 72
    FX, FY = 144, 188
    VX0, VX1, VW, VX0b, VX1b, VWb = 232, 233, 234, 235, 236, 237
    NMR, RR = 238, 240
    VC1, VONE = 242, 244
    V16 = 246; VPG, VPR = 247, 248
    k(f"s_load_dwordx2 s[26:27], s[0:1], {ARG['w_out']}\ns_load_dwordx2 s[24:25], s[0:1], {ARG['w_sp']}\ns_lshl_b32 s30, s2, 2\ns_add_u32 s30, s30, s{W}")
    k(f"s_lshl_b32 s33, s30, 13\nv_lshlrev_b32 v250, 7, v{VL}\nv_add_u32 v250, s33, v250")
    p1_addr(k, VX0b, VX1b, VWb, W)
    k(f"""
    v_mov_b32 v{VX0}, v{VX0b}
    v_mov_b32 v{VX1}, v{VX1b}
    v_mov_b32 v{VW}, v{VWb}
    s_mov_b32 s34, 0
    s_mov_b32 s56, {fbits(C2)}
    s_mov_b32 s57, {fbits(C2)}
    v_mov_b32 v{VC1}, {fbits(C1)}
    v_mov_b32 v{VC1+1}, {fbits(C1)}
    v_mov_b32 v{VONE}, 1.0
    v_mov_b32 v{VONE+1}, 1.0
    v_lshlrev_b32 v{V16}, 4, v{VL}
    s_lshl_b32 s33, s{W}, 8
    s_add_u32 s33, s33, {WPRIV}
    v_lshrrev_b32 v3, 4, v{VL}
    v_lshlrev_b32 v3, 4, v3
    v_add_u32 v{VPG}, s33, v3
    v_and_b32 v3, 31, v{VL}
    v_lshlrev_b32 v3, 2, v3
    v_add_u32 v{VPR}, s33, v3
    s_setprio {o.get('prio1', 2)}
    """)
    if o.get('touch', 1):
        k(f"""
        v_mul_u32_u24 v3, 43, v{VL}
        v_lshrrev_b32 v3, 8, v3
        v_mul_u32_u24 v4, 6, v3
        v_sub_u32 v4, v{VL}, v4
        s_lshl_b32 s31, s30, 1
        v_add_u32 v3, s31, v3
        v_mul_u32_u24 v3, 1152, v3
        v_lshl_add_u32 v3, v4, 7, v3
        s_mul_i32 s31, s30, 14
        v_add_u32 v7, s31, v{VL}
        v_min_u32 v7, 13823, v7
        s_mov_b32 s32, 29128
        v_mul_lo_u32 v4, v7, s32
        v_lshrrev_b32 v4, 20, v4
        v_mul_u32_u24 v5, 36, v4
        v_sub_u32 v5, v7, v5
        v_mul_u32_u24 v4, 9216, v4
        v_lshl_add_u32 v4, v5, 7, v4
        v_add_u32 v4, {192*9216 + 4608}, v4
        {xm(0xfff)}
        global_load_dword v254, v3, s[6:7] offset:384
        {xm((1 << 14) - 1)}
        global_load_dword v254, v4, s[8:9]
        s_mov_b64 exec, -1
        """)

    if o.get('p0'): k.stamp(7)
    k(f"v_mov_b32 v4, {CNT}\nv_mov_b32 v5, 0\nds_write_b32 v4, v5\ns_waitcnt vmcnt({2 if o.get('touch', 1) else 0})")
    if o.get('p0'): k.stamp(8)
    yield
    k.srd(36, 4, 2048 * 16, add=WS_RS)
    k("s_waitcnt lgkmcnt(0)")
    def reads(F, half):
        vx = VX0 if half == 0 else VX1
        r = [f"ds_read_b128 v[{F+4*tb}:{F+4*tb+3}], v{vx} offset:{tb*2048}" for tb in range(2)]
        if o.get('nord1') == 1: return r
        if o.get('nord1') == 2: return [f"ds_read_b128 v[{F+8+4*i}:{F+8+4*i+3}], v{V16} offset:{i*1024}" for i in range(9)] + r
        for i in range(9):
            for rd in range(2):
                b = F + 8 + 4 * i + 2 * rd
                r.append(f"ds_read_b64_tr_b16 v[{b}:{b+1}], v{VW} offset:{half*32*288 + rd*8*288 + i*32}")
        return r
    def mfmas(F, z2, first=False):
        out = []; ACC = A2 if z2 else A1
        for i in range(9):
            for tb in range(2):
                a = ACC + (i * 2 + tb) * 4
                wf = f"v[{F+8+4*i}:{F+8+4*i+3}]"; xf = f"v[{F+4*tb}:{F+4*tb+3}]"
                A, B = (xf, wf) if z2 else (wf, xf)
                out.append(f"v_mfma_f32_16x16x32_bf16 v[{a}:{a+3}], {A}, {B}, {'0' if first else 'v[%d:%d]' % (a, a+3)}")
        return out
    adv = [f"s_add_u32 s34, s34, {SLOT}\ns_cmp_ge_u32 s34, {SLOT*NS}\ns_cselect_b32 s34, 0, s34",
           f"v_add_u32 v{VX0}, s34, v{VX0b}\nv_add_u32 v{VX1}, s34, v{VX1b}\nv_add_u32 v{VW}, s34, v{VWb}"]
    def gemm(z2):
        name = f"fz_g1{'a' if z2 else 'b'}"
        if o.get('p0') and z2: k.stamp(9)
        k("s_barrier")
        k.stamp(2 if z2 else 5)
        k("\n".join(reads(FX, 0)))
        k("s_waitcnt lgkmcnt(0)")
        k("\n".join(front2(mfmas(FX, z2, True), reads(FY, 1) + adv, o.get('per', 2))))
        k(f"s_mov_b32 s35, 1\ns_waitcnt lgkmcnt(0)\n{name}:\ns_barrier")
        k("\n".join(front2(mfmas(FY, z2), reads(FX, 0), o.get('per', 2))))
        k("s_waitcnt lgkmcnt(0)")
        k("\n".join(front2(mfmas(FX, z2), reads(FY, 1) + adv + ["s_add_u32 s35, s35, 1"], o.get('per', 2))))
        if z2:
            k("s_cmp_eq_u32 s35, 2\ns_cbranch_scc0 fz_nrg\ns_waitcnt vmcnt(0)"); rowgran(k, 36, 249); k("fz_nrg:")
            if o.get('spat', 9) < 9:
                k(f"s_cmp_eq_u32 s35, {o['spat']}\ns_cbranch_scc0 fz_nsp\nglobal_load_dword v254, v250, s[24:25]\nfz_nsp:")
        k(f"s_cmp_lt_u32 s35, 9\ns_waitcnt lgkmcnt(0)\ns_cbranch_scc1 {name}")
        k("\n".join(mfmas(FY, z2)))
    gemm(True)
    k.stamp(3)
    SU, SQ = FX, FX + 8
    CP = FX + 16
    T = 196
    PS, PQ = 212, 220
    k(f"""
    v_and_b32 v{T}, 15, v{VL}
    v_lshlrev_b32 v{T}, 2, v{T}
    v_add_u32 v{T+1}, {COLP}, v{T}
    s_lshl_b32 s33, s{W}, 7
    s_add_u32 s33, s33, {ROWA}
    v_add_u32 v{T}, s33, v{T}
    v_lshrrev_b32 v{T+2}, 4, v{VL}
    v_lshlrev_b32 v{T+2}, 4, v{T+2}
    v_add_u32 v{T+2}, s33, v{T+2}
    s_barrier
    ds_read_b128 v[{SU}:{SU+3}], v{T+2}
    ds_read_b128 v[{SU+4}:{SU+7}], v{T+2} offset:64
    ds_read_b128 v[{SQ}:{SQ+3}], v{T+2} offset:512
    ds_read_b128 v[{SQ+4}:{SQ+7}], v{T+2} offset:576
    """)
    for i in range(9): k(f"ds_read_b32 v{CP+4*i}, v{T+1} offset:{i*64}")
    k("s_waitcnt lgkmcnt(0)")
    for i in range(9):
        pairs = [A2 + (i * 2) * 4, A2 + (i * 2) * 4 + 2, A2 + (i * 2 + 1) * 4, A2 + (i * 2 + 1) * 4 + 2]
        cs = CP + 4 * i
        for n, a in enumerate(pairs): k(f"v_pk_mul_f32 v[{T+2*n}:{T+2*n+1}], v[{SU+2*n}:{SU+2*n+1}], v[{cs}:{cs+1}] op_sel_hi:[1,0]")
        for n, a in enumerate(pairs): k(f"v_pk_fma_f32 v[{a}:{a+1}], v[{a}:{a+1}], v[{SQ+2*n}:{SQ+2*n+1}], v[{T+2*n}:{T+2*n+1}]")
        gelu_group(k, pairs, T, 56, VC1, VONE)
        for n, a in enumerate(pairs):
            if i == 0: k(f"v_pk_mul_f32 v[{PQ+2*n}:{PQ+2*n+1}], v[{a}:{a+1}], v[{a}:{a+1}]\nv_mov_b32 v{PS+2*n}, v{a}\nv_mov_b32 v{PS+2*n+1}, v{a+1}")
            else: k(f"v_pk_fma_f32 v[{PQ+2*n}:{PQ+2*n+1}], v[{a}:{a+1}], v[{a}:{a+1}], v[{PQ+2*n}:{PQ+2*n+1}]\nv_pk_add_f32 v[{PS+2*n}:{PS+2*n+1}], v[{PS+2*n}:{PS+2*n+1}], v[{a}:{a+1}]")
    dpp_sum16(k, list(range(PS, PS + 16)))
    k.srd(36, 4, 16 * 16 * 2048, add=WS_ST)
    k(f"""
    {xm(0x0001000100010001)}
    ds_write_b128 v{VPG}, v[{PS}:{PS+3}]
    ds_write_b128 v{VPG}, v[{PS+4}:{PS+7}] offset:64
    ds_write_b128 v{VPG}, v[{PQ}:{PQ+3}] offset:128
    ds_write_b128 v{VPG}, v[{PQ+4}:{PQ+7}] offset:192
    s_mov_b64 exec, -1
    ds_read_b32 v{T+4}, v{VPR}
    ds_read_b32 v{T+6}, v{VPR} offset:128
    v_mov_b32 v{T+5}, s{NON}
    v_mov_b32 v{T+7}, s{NON}
    s_lshl_b32 s33, s{P}, 4
    s_add_u32 s33, s33, s{C}
    s_lshl_b32 s33, s33, 11
    s_lshl_b32 s53, s{W}, 9
    s_add_u32 s33, s33, s53
    v_and_b32 v{T+3}, 31, v{VL}
    v_lshlrev_b32 v{T+3}, 4, v{T+3}
    s_waitcnt lgkmcnt(0)
    {xm(0xffffffff)}
    buffer_store_dwordx4 v[{T+4}:{T+7}], v{T+3}, s[36:39], s33 offen sc1
    s_mov_b64 exec, -1
    """)
    k.stamp(4)
    gemm(False)
    k.stamp(6)
    T = 196
    SU, SQ = 148, 156
    k(f"""
    v_lshrrev_b32 v249, 4, v{VL}
    v_lshlrev_b32 v249, 4, v249
    s_lshl_b32 s33, s{W}, 7
    s_add_u32 s33, s33, {ROWA}
    v_add_u32 v249, s33, v249
    """)
    k.srd(36, 4, FRAG9, add=WS_Z2)
    k(f"""
    s_mul_i32 s32, s{C}, {9*64}
    s_lshl_b32 s33, s{P}, 2
    s_add_u32 s33, s33, s{W}         ; kb
    s_add_u32 s32, s32, s33
    s_lshl_b32 s32, s32, 10
    s_lshl_b32 s34, s{C}, 6
    s_add_u32 s34, s34, s33
    s_lshl_b32 s34, s34, 2
    s_add_u32 s34, s34, {FL_2}
    s_barrier
    ds_read_b128 v[{SU}:{SU+3}], v249
    ds_read_b128 v[{SU+4}:{SU+7}], v249 offset:64
    ds_read_b128 v[{SQ}:{SQ+3}], v249 offset:512
    ds_read_b128 v[{SQ+4}:{SQ+7}], v249 offset:576
    s_waitcnt lgkmcnt(0)
    """)
    k.stamp(7)
    for i in range(9):
        oo = 164 + (i % 4) * 4
        for sb in range(2):
            a = A2 + (i * 2 + sb) * 4
            for hh in range(2):
                k(f"v_pk_fma_f32 v[{a+2*hh}:{a+2*hh+1}], v[{a+2*hh}:{a+2*hh+1}], v[{SQ+4*sb+2*hh}:{SQ+4*sb+2*hh+1}], v[{SU+4*sb+2*hh}:{SU+4*sb+2*hh+1}]")
            for hh in range(2): k(f"v_cvt_pk_bf16_f32 v{oo+2*sb+hh}, v{a+2*hh}, v{a+2*hh+1}")
        k(f"v_permlane16_swap_b32 v{oo}, v{oo+2}\nv_permlane16_swap_b32 v{oo+1}, v{oo+3}")
        k(f"buffer_store_dwordx4 v[{oo}:{oo+3}], v{V16}, s[36:39], s32 offen sc1\ns_add_u32 s32, s32, 65536")
    k.stamp(8)
    k.srd(44, 26, WOBYTES)
    side_issue(k, o)
    k(f"v_mov_b32 v{T+10}, 0\nv_mov_b32 v{T+11}, s{NON}\nv_mov_b32 v{T+12}, {CNT}\nv_mov_b32 v{T+13}, 1\ns_waitcnt vmcnt(5)\ns_mov_b64 exec, 1\nds_add_u32 v{T+12}, v{T+13}\nbuffer_store_dword v{T+11}, v{T+10}, s[{FLS}:{FLS+3}], s34 offen sc1\ns_mov_b64 exec, -1")
    k.stamp(9)
    side_run(k, o)
    k("s_branch fz_cons")

def side_issue(k, o):
    k(f"""
    s_lshl_b32 s53, s{W}, 8
    s_add_u32 s53, s53, s2
    s_mul_i32 s54, s53, 52429
    s_lshr_b32 s54, s54, 18
    s_mul_i32 s55, s54, 5
    s_sub_u32 s55, s53, s55          ; q
    s_lshr_b32 s33, s54, 4
    s_and_b32 s35, s54, 15
    s_mul_i32 s35, s35, 144
    s_lshl_b32 s52, s55, 5
    s_add_u32 s35, s35, s52
    s_mul_i32 s35, s35, 1152
    s_mul_i32 s33, s33, 144
    s_add_u32 s35, s35, s33
    s_cmp_lt_u32 s53, 640
    s_cselect_b32 s35, s35, {OOB}
    s_mul_i32 s52, s{W}, 5120
    s_add_u32 s52, s52, {RPK}
    s_mov_b32 s33, {(1 << 16) // 9 + 1}
    """)
    for i in range(5):
        k(f"""
        v_add_u32 v232, {64*i}, v{VL}
        v_mul_lo_u32 v233, v232, s33
        v_lshrrev_b32 v233, 16, v233
        v_mul_u32_u24 v234, 9, v233
        v_sub_u32 v234, v232, v234
        v_mul_u32_u24 v233, 1152, v233
        v_lshl_add_u32 v233, v234, 4, v233
        s_add_u32 m0, s52, {i*1024}
        buffer_load_dwordx4 v233, s[44:47], s35 offen lds
        """)

def side_run(k, o):
    k(f"s_cmp_ge_u32 s53, 640\ns_cbranch_scc1 fz_sr9")
    k.srd(36, 4, WOBYTES, add=WS_WO)
    k(f"""
    v_bfe_u32 v3, v{VL}, 2, 2
    v_and_b32 v4, 3, v{VL}
    v_lshrrev_b32 v7, 4, v{VL}
    v_lshl_add_u32 v3, v7, 2, v3
    v_mul_u32_u24 v3, 144, v3
    v_lshl_add_u32 v3, v4, 3, v3
    v_add_u32 v3, s52, v3
    s_waitcnt vmcnt(1)
    """)
    for dt in range(5):
        k(f"ds_read_b64_tr_b16 v[{10+4*dt}:{11+4*dt}], v3 offset:{dt*32}")
        k(f"ds_read_b64_tr_b16 v[{12+4*dt}:{13+4*dt}], v3 offset:{dt*32 + 16*144}")
    k(f"""
    v_lshlrev_b32 v8, 4, v{VL}
    v_lshlrev_b32 v9, 3, v{VL}
    v_and_b32 v34, 7, v{VL}
    v_lshl_add_u32 v34, v7, 3, v34
    v_lshlrev_b32 v35, 4, v34
    v_lshlrev_b32 v34, 3, v34
    s_mul_i32 s33, s54, 20736
    s_mul_i32 s35, s55, 4608
    s_add_u32 s33, s33, s35
    s_add_u32 s35, s33, 4096
    s_lshl_b32 s59, s54, 3
    s_add_u32 s59, s59, s55
    s_lshl_b32 s59, s59, 2
    s_add_u32 s59, s59, {FL_W}
    s_cmp_eq_u32 s55, 4
    s_waitcnt lgkmcnt(0)
    s_cbranch_scc1 fz_sr2
    """)
    for dt in range(4): k(f"buffer_store_dwordx4 v[{10+4*dt}:{13+4*dt}], v8, s[36:39], s33 offen offset:{dt*1024} sc1")
    k(xm(0x00ff00ff00ff00ff))
    k("buffer_store_dwordx4 v[26:29], v35, s[36:39], s35 offen sc1\ns_branch fz_sr3\nfz_sr2:")
    for dt in range(4): k(f"buffer_store_dwordx2 v[{10+4*dt}:{11+4*dt}], v9, s[36:39], s33 offen offset:{dt*512} sc1")
    k(xm(0x00ff00ff00ff00ff))
    k("buffer_store_dwordx2 v[26:27], v34, s[36:39], s33 offen offset:2048 sc1\nfz_sr3:\ns_mov_b64 exec, -1")
    k("fz_sr9:")

def phase2(k, o):
    NST = 32
    k("fz_cons:")
    k.stamp(10)
    ACC = 0; ZR = 72; FX = 144; FY = 188
    VA, VB0, VB1, VAb, VB0b, VB1b = 232, 233, 234, 235, 236, 239
    GT = [240, 241, 246, 247, 248, 249]; VC2 = 252; BS = [253, 251]
    k(f"""
    s_load_dwordx2 s[8:9], s[0:1], {ARG['b_sp']}
    s_lshl_b32 s30, s{P}, 3
    s_lshl_b32 s31, s{W}, 1
    s_add_u32 s30, s30, s31
    s_lshl_b32 s31, s30, 4
    s_add_u32 s31, s31, s{C}
    s_mul_i32 s31, s31, 4608
    s_add_u32 s32, s31, {16*4608}
    v_and_b32 v3, 15, v{VL}
    v_lshrrev_b32 v{VB0b}, 4, v{VL}
    v_lshrrev_b32 v{VB1b}, 1, v3
    v_xor_b32 v{VB0b}, v{VB0b}, v{VB1b}
    v_lshlrev_b32 v{VB0b}, 4, v{VB0b}
    v_lshl_add_u32 v{VB0b}, v3, 7, v{VB0b}
    s_lshl_b32 s34, s{W}, 12
    s_add_u32 s34, s34, 18432
    v_add_u32 v{VB0b}, s34, v{VB0b}
    v_xor_b32 v{VB1b}, 64, v{VB0b}
    v_lshlrev_b32 v{VAb}, 4, v{VL}
    v_mov_b32 v{VA}, v{VAb}
    v_mov_b32 v{VB0}, v{VB0b}
    v_mov_b32 v{VB1}, v{VB1b}
    s_lshl_b32 s34, s30, 4
    v_add_u32 v3, s34, v3
    v_lshlrev_b32 v3, 1, v3
    v_mov_b32 v{VC2}, {fbits(C2)}
    s_waitcnt lgkmcnt(0)
    global_load_ushort v{BS[0]}, v3, s[8:9]
    global_load_ushort v{BS[1]}, v3, s[8:9] offset:32
    s_mov_b32 s34, 0
    s_setprio {o.get('prio', 2)}
    s_lshl_b32 s28, s{P}, 1
    s_lshr_b32 s10, s{W}, 1
    s_add_u32 s28, s28, s10
    s_lshl_b32 s28, s28, 4
    s_add_u32 s28, s28, s{C}
    s_lshl_b32 s28, s28, 1
    s_and_b32 s10, s{W}, 1
    s_add_u32 s28, s28, s10
    s_lshl_b32 s28, s28, 2
    s_add_u32 s28, s28, {FL_H}
    """)
    g3 = Gemm3(k, o)
    g3.pre()
    def reads(F, half):
        vb = VB0 if half == 0 else VB1
        r = [f"ds_read_b128 v[{F+4*tb}:{F+4*tb+3}], v{vb} offset:{tb*2048}" for tb in range(2)]
        r += [f"ds_read_b128 v[{F+8+4*ft}:{F+8+4*ft+3}], v{VA} offset:{(ft*2+half)*1024}" for ft in range(9)]
        return r
    def mfmas(F, first=False):
        return [f"v_mfma_f32_16x16x32_bf16 v[{ACC+(ft*2+tb)*4}:{ACC+(ft*2+tb)*4+3}], v[{F+8+4*ft}:{F+8+4*ft+3}], v[{F+4*tb}:{F+4*tb+3}], " + ("0" if first else f"v[{ACC+(ft*2+tb)*4}:{ACC+(ft*2+tb)*4+3}]")
                for ft in range(9) for tb in range(2)]
    adv = [f"s_add_u32 s34, s34, {SLOT}\ns_cmp_ge_u32 s34, {SLOT*NS}\ns_cselect_b32 s34, 0, s34",
           f"v_add_u32 v{VA}, s34, v{VAb}", f"v_add_u32 v{VB0}, s34, v{VB0b}", f"v_add_u32 v{VB1}, s34, v{VB1b}"]
    def gpair(n):
        if n >= 36: return []
        a = ZR + 2 * n; t = GT[2 * (n % 3)]; u = GT[2 * (n % 3) + 1]
        return [f"v_mul_f32 v{t}, v{a}, v{a}", f"v_mul_f32 v{u}, v{a+1}, v{a+1}",
                f"v_fmaak_f32 v{t}, v{VC2}, v{t}, {fbits(C1)}", f"v_fmaak_f32 v{u}, v{VC2}, v{u}, {fbits(C1)}",
                f"v_mul_f32 v{t}, v{t}, v{a}", f"v_mul_f32 v{u}, v{u}, v{a+1}",
                f"v_exp_f32 v{t}, v{t}", f"v_exp_f32 v{u}, v{u}",
                f"v_add_f32 v{t}, 1.0, v{t}", f"v_add_f32 v{u}, 1.0, v{u}",
                f"v_rcp_f32 v{t}, v{t}", f"v_rcp_f32 v{u}, v{u}",
                f"v_mul_f32 v{a}, v{a}, v{t}", f"v_mul_f32 v{a+1}, v{a+1}, v{u}",
                f"v_cvt_pk_bf16_f32 v{a}, v{a}, v{a+1}"]
    def weave(mf, rd, fill):
        out = []; fi = 0
        for i, x in enumerate(mf):
            out.append(x)
            if i < len(rd): out.append(rd[i])
            if fi < len(fill) and i >= 2: out.append(fill[fi]); fi += 1
        return out + rd[len(mf):] + fill[fi:]
    NU = 19
    k("s_barrier")
    k.stamp(11)
    k("\n".join(reads(FX, 0) + gpair(0)))
    k("s_waitcnt lgkmcnt(0)")
    k("\n".join(weave(mfmas(FX, True), reads(FY, 1) + adv, gpair(1))))
    np_ = 2
    for st in range(1, NU):
        k("s_waitcnt lgkmcnt(0)")
        if st == 8:
            k(f"s_cmp_ge_u32 s53, 640\ns_cbranch_scc1 fz_nwf"); set_flag(k, 238, 237 + 13, 59) if False else None
            k(f"v_mov_b32 v{GT[4]}, 0\nv_mov_b32 v{GT[5]}, s{NON}\ns_waitcnt vmcnt(0)\ns_mov_b64 exec, 1\nbuffer_store_dword v{GT[5]}, v{GT[4]}, s[{FLS}:{FLS+3}], s59 offen sc1\ns_mov_b64 exec, -1\nfz_nwf:")
        k("s_barrier")
        k("\n".join(weave(mfmas(FY), reads(FX, 0), gpair(np_)))); np_ += 1
        k("s_waitcnt lgkmcnt(0)")
        k("\n".join(weave(mfmas(FX), reads(FY, 1) + adv, gpair(np_)))); np_ += 1
    assert np_ >= 36
    k(f"s_mov_b32 s35, {NU}\ns_waitcnt lgkmcnt(0)\nfz_cloop:")
    k(f"s_cmp_eq_u32 s35, 28\ns_cbranch_scc0 fz_nwg\nbuffer_load_dword v238, v237, s[{FLS}:{FLS+3}], 0 offen sc1\nfz_nwg:")
    k("s_barrier")
    k("\n".join(front(mfmas(FY), reads(FX, 0))))
    k("s_waitcnt lgkmcnt(0)")
    k("\n".join(front(mfmas(FX), reads(FY, 1) + adv + ["s_add_u32 s35, s35, 1"])))
    k(f"s_cmp_lt_u32 s35, {NST}\ns_waitcnt lgkmcnt(0)\ns_cbranch_scc1 fz_cloop")
    k("s_barrier")
    k("\n".join(mfmas(FY)))
    k.stamp(12)
    k.srd(12, 4, FRAG9, add=WS_H)
    g3.wcheck()
    VBS = 232
    k("s_setprio 3")
    k(f"v_lshlrev_b32 v{VBS}, 16, v{BS[0]}\nv_lshlrev_b32 v{VBS+2}, 16, v{BS[1]}\nv_mov_b32 v{VBS+1}, v{VBS}\nv_mov_b32 v{VBS+3}, v{VBS+2}")
    for tb in range(2):
        b = VBS + 2 * tb
        for q in range(5):
            nt = 2 if q < 4 else 1
            oo = 144 + (tb * 5 + q) % 2 * 4
            for t in range(nt):
                a = ACC + ((2 * q + t) * 2 + tb) * 4
                for hh in range(2):
                    z = ZR + ((2 * q + t) * 2 + tb) * 4 + 2 * hh; u = 236 + 2 * ((2 * t + hh) % 3)
                    k(f"""
                    v_pk_add_f32 v[{a+2*hh}:{a+2*hh+1}], v[{a+2*hh}:{a+2*hh+1}], v[{b}:{b+1}]
                    v_lshlrev_b32 v{u}, 16, v{z}
                    v_and_b32 v{u+1}, 0xffff0000, v{z}
                    v_pk_mul_f32 v[{a+2*hh}:{a+2*hh+1}], v[{a+2*hh}:{a+2*hh+1}], v[{u}:{u+1}]
                    v_cvt_pk_bf16_f32 v{oo+t*2+hh}, v{a+2*hh}, v{a+2*hh+1}
                    """)
            if q < 4: k(f"buffer_store_dwordx4 v[{oo}:{oo+3}], v242, s[12:15], s{31+tb} offen offset:{q*1024} sc1")
            else: k(f"s_add_u32 s33, s{31+tb}, 4096\nbuffer_store_dwordx2 v[{oo}:{oo+1}], v243, s[12:15], s33 offen sc1")
    if o.get('p3'): k.stamp(2)
    k(f"v_mov_b32 v0, 0\nv_mov_b32 v1, s{NON}\ns_waitcnt vmcnt(0)\ns_mov_b64 exec, 1\nbuffer_store_dword v1, v0, s[{FLS}:{FLS+3}], s28 offen sc1\ns_mov_b64 exec, -1")
    k.stamp(13)
    k(f"s_setprio {o.get('prio4', 1)}")
    g3.wregs()
    g3.main()
    k("fz_loader:\ns_setprio 0")
    for j in range(16): k(f"v_mov_b32 v{198+j}, 0")
    def advk(kstep):
        k(f"""
        s_add_u32 s40, s40, {kstep}
        s_add_u32 s43, s43, 1
        s_cmp_eq_u32 s43, 2
        s_cselect_b32 s40, 0, s40
        s_cselect_b32 s42, s45, s42
        s_cmp_eq_u32 s40, s42
        s_cselect_b32 s33, {2*kstep}, 0
        s_add_u32 s40, s40, s33
        s_add_u32 s41, s41, {SLOT}
        s_cmp_ge_u32 s41, {SLOT*NS}
        s_cselect_b32 s41, s44, s41
        """)
    def issue(n, kstep, sc, chk=False):
        if chk:
            L = k.label("pc"); D = k.label("pd")
            k(f"""
            {L}:
            s_lshr_b32 s33, s40, 10
            s_and_b32 s33, s33, 60
            s_lshr_b64 s[48:49], s[46:47], s33
            s_and_b32 s48, s48, 15
            s_cbranch_scc0 {D}
            s_add_u32 s62, s62, 1
            s_cmp_ge_u32 s62, {SPIN}
            s_cbranch_scc1 {D}
            buffer_load_dword v200, v199, s[{FLS}:{FLS+3}], s30 offen sc1
            s_waitcnt vmcnt(0)
            v_cmp_ne_u32 s[46:47], s{NON}, v200
            s_branch {L}
            {D}:
            """)
        for j in range(n):
            k((f"s_add_u32 m0, s41, {j*1024}\n" if j else "s_mov_b32 m0, s41\n") + f"buffer_load_dwordx4 v{VL_(j)}, s[12:15], s40 offen {sc}lds")
        advk(kstep)
    VL_ = lambda j: 112 + j
    def ring(tag, n, kstep, sc, first):
        k(f"s_setprio {o.get('prioR', 0)}")
        wst_setup(k, o, 214)
        k(f"s_mov_b32 s35, {first}\nfz_l{tag}:\ns_waitcnt vmcnt({2*n})\ns_barrier")
        issue(n, kstep, sc, tag == "A")
        fv = 214
        k(f"s_cmp_eq_u32 s35, 24\ns_cbranch_scc0 fz_m{tag}\nbuffer_load_dwordx2 v[{fv}:{fv+1}], v{fv+2}, s[{FLS}:{FLS+3}], s52 offen sc1\nfz_m{tag}:")
        k(f"s_add_u32 s35, s35, 1\ns_cmp_lt_u32 s35, {NST-3}\ns_cbranch_scc1 fz_l{tag}")
        wst_check(k, o, fv=214)
        if tag == "A":
            wst(k, 3); k(f"s_waitcnt vmcnt({2*n + 21})\ns_barrier")
            wst(k, 0); k(f"s_waitcnt vmcnt({n + 42})\ns_barrier\ns_waitcnt vmcnt(42)\ns_barrier")
        else:
            k(f"s_waitcnt vmcnt({2*n})\ns_barrier\ns_waitcnt vmcnt({n})\ns_barrier")
            wst(k, 1); wst(k, 2); k("s_waitcnt vmcnt(42)\ns_barrier")
        k("s_waitcnt vmcnt(0)\ns_barrier")
    if o.get('nossm') == 2: k("s_branch fz_nk")
    k(f"s_cmp_eq_u32 s{W}, 5\ns_cbranch_scc1 fz_nk\ns_cmp_ge_u32 s58, 576\ns_cbranch_scc1 fz_nk")
    k(f"s_mov_b32 s54, {fbits(L2E_HI)}\ns_mov_b32 s55, {fbits(I2P_HI)}")
    for i in range(40): k(f"v_mov_b32 v{i}, 0")
    k("\n".join(kgen_dt()))
    k("s_mov_b32 s53, 0\nfz_kg:")
    k("\n".join(kgen_half()))
    k("s_cmp_eq_u32 s53, 1\ns_cbranch_scc1 fz_kg2\nfz_nk:")
    k.stamp(9)
    k(f"s_mov_b32 s43, 0\ns_mov_b32 s42, -1\ns_cmp_lg_u32 s{W}, 4\ns_cbranch_scc1 fz_ldB")
    k.srd(12, 4, FRAG9, add=WS_Z2)
    k(f"s_lshl_b32 s45, s{P}, 12\ns_mov_b32 s40, s45\ns_mul_i32 s31, s{C}, {9*65536}\nv_lshlrev_b32 v198, 4, v{VL}\nv_add_u32 v198, s31, v198\ns_mov_b32 s44, 0\ns_mov_b32 s41, 0")
    for j in range(18): k(f"v_add_u32 v{VL_(j)}, {(j >> 1)*65536 + (j & 1)*1024}, v198")
    k(f"""
    s_lshl_b32 s30, s{C}, 8
    s_add_u32 s30, s30, {FL_2}
    v_lshlrev_b32 v199, 2, v{VL}
    s_mov_b64 s[46:47], -1
    s_mov_b32 s62, 0
    v_mov_b32 v201, {CNT}
    fz_own:
    ds_read_b32 v202, v201
    s_add_u32 s62, s62, 1
    s_waitcnt lgkmcnt(0)
    v_readfirstlane_b32 s33, v202
    s_cmp_ge_u32 s33, 4
    s_cbranch_scc1 fz_ownd
    s_sleep 1
    s_cmp_lt_u32 s62, {SPIN*16}
    s_cbranch_scc1 fz_own
    fz_ownd:
    s_mov_b32 s62, 0
    """)
    k.stamp(10)
    for _ in range(2): issue(18, 2048, "sc1 ")
    k("s_waitcnt vmcnt(18)\ns_barrier")
    k.stamp(11)
    issue(18, 2048, "sc1 ", True); issue(18, 2048, "sc1 ", True)
    ring("A", 18, 2048, "sc1 ", 1)
    k("s_branch fz_p34")
    k(f"fz_ldB:\ns_load_dwordx2 s[6:7], s[0:1], {ARG['w_sp']}\ns_waitcnt lgkmcnt(0)")
    k.srd(12, 6, 2048 * 4096)
    k(f"s_cmp_lg_u32 s{W}, 5\ns_cbranch_scc1 fz_idle")
    VL_ = lambda j: 198 + j
    k(f"""
    v_lshrrev_b32 v3, 3, v{VL}
    v_and_b32 v4, 7, v{VL}
    v_lshrrev_b32 v5, 4, v{VL}
    v_xor_b32 v4, v4, v5
    v_and_b32 v5, 1, v4
    v_lshlrev_b32 v5, 1, v5
    v_bfe_u32 v6, v4, 1, 1
    v_and_b32 v4, 4, v4
    v_or_b32 v4, v4, v5
    v_or_b32 v4, v4, v6
    v_lshlrev_b32 v4, 4, v4
    v_lshl_add_u32 v4, v3, 12, v4
    s_lshl_b32 s31, s{P}, 19
    v_add_u32 v4, s31, v4
    v_xor_b32 v5, 64, v4
    s_lshl_b32 s45, s{P}, 8
    s_mov_b32 s40, s45
    s_mov_b32 s44, 18432
    s_mov_b32 s41, 18432
    """)
    for j in range(16): k(f"v_add_u32 v{VL_(j)}, {j*32768}, v{4 + (j & 1)}")
    for _ in range(3): issue(16, 128, "")
    k.stamp(11)
    ring("B", 16, 128, "", 0)
    k(f"s_lshl_b32 s58, s2, 1\ns_mov_b32 s59, {CONV0}\ns_mov_b32 s57, {RDY}\ns_branch fz_help")
    k("fz_idle:")
    k(f"v_mov_b32 v44, {RDY}\nv_mov_b32 v45, 0\nds_write_b32 v44, v45\nds_write_b32 v44, v45 offset:4")
    regs = list(range(KG['WAD'], KG['WAD'] + 16)) + list(range(KG['RW'], KG['RW'] + 4)) + list(range(KG['RS'], KG['RS'] + 10))
    nch = o.get('nch', 0)
    if nch:
        for r in regs: k(f"v_add_u32 v{r}, {139264 - KTAB}, v{r}")
        k("s_barrier")
        for ch in split(kgen_half(), nch):
            k("s_barrier"); k("\n".join(ch))
        for _ in range(30 - nch): k("s_barrier")
    else:
        k(f"s_mov_b32 s35, 0\nfz_idl:\ns_barrier\ns_add_u32 s35, s35, 1\ns_cmp_lt_u32 s35, 31\ns_cbranch_scc1 fz_idl")
    ft_load(k)
    k("s_barrier\ns_barrier")
    k.stamp(12)
    k(f"s_lshl_b32 s57, s56, 2\ns_add_u32 s57, s57, {RDY}")
    k(f"s_mov_b32 s3, 0\ns_cmp_eq_u32 s{W}, 7\ns_cbranch_scc1 fz_k2\ns_cmp_ge_u32 s2, 64\ns_cbranch_scc1 fz_k2\ns_mov_b32 s3, 1\nfz_k2:")
    k(f"s_setprio {o.get('prio3', 2)}\ns_mul_i32 s59, s56, {REG}\ns_add_u32 s59, s59, {CONV0}")
    u_load(k)
    if nch: k(f"s_cmp_lg_u32 s{W}, 4\ns_cbranch_scc1 fz_kg2")
    k(f"s_lshl_b32 s33, s56, 13\ns_add_u32 s33, s33, {KTAB - 4608}\ns_sub_u32 s33, s59, s33")
    for r in regs: k(f"v_add_u32 v{r}, s33, v{r}")
    k("s_mov_b32 s53, 1\ns_branch fz_kg\nfz_kg2:")
    k.stamp(8)
    conv_build(k, o)
    k.stamp(13)
    conv_run(k, o, 0)
    k.stamp(14)
    k("s_branch fz_fin")
    k(f"fz_p34:\ns_cmp_lt_u32 s58, 576\ns_cbranch_scc1 fz_own3")
    k(f"s_lshl_b32 s58, s2, 1\ns_add_u32 s58, s58, 1\ns_mov_b32 s59, {CONV0 + REG}\ns_mov_b32 s57, {RDY + 4}")
    k(f"""
    fz_help:
    s_mov_b32 s3, 0
    s_setprio {o.get('prio3', 2)}
    v_mov_b32 v20, s57
    s_mov_b32 s62, 0
    fz_hw:
    ds_read_b32 v21, v20
    s_add_u32 s62, s62, 1
    s_waitcnt lgkmcnt(0)
    v_readfirstlane_b32 s33, v21
    s_cmp_eq_u32 s33, 1
    s_cbranch_scc1 fz_runb
    s_sleep 2
    s_cmp_lt_u32 s62, {SPIN*16}
    s_cbranch_scc1 fz_hw
    fz_runb:
    """)
    k.stamp(13)
    conv_run(k, o, 1)
    k.stamp(14)
    k("s_branch fz_fin\nfz_own3:")
    ft_load(k)
    k(f"s_mov_b32 s57, {RDY + 8}\ns_mov_b32 s3, 1\ns_branch fz_k2")

def wst_setup(k, o, fv):
    g3map(k, 50, 51)
    k.srd(24, 4, WOBYTES, add=WS_WO)
    k(f"s_lshl_b32 s52, s51, 9\ns_add_u32 s52, s52, {FL_W}\ns_mul_i32 s63, s51, {16*20736}\nv_lshlrev_b32 v{fv+2}, 3, v{VL}\nv_lshlrev_b32 v{fv+3}, 4, v{VL}\nv_mov_b32 v{fv}, 0\nv_mov_b32 v{fv+1}, 0")
    k.wfv = fv
def wst_check(k, o, fv):
    L = k.label("w4"); D = k.label("w4d")
    k(f"""
    s_mov_b32 s62, 0
    {L}:
    v_cmp_ne_u32 vcc, s{NON}, v{fv}
    s_and_b32 vcc_lo, vcc_lo, 0x77777777
    s_and_b32 vcc_hi, vcc_hi, 0x77777777
    v_cmp_ne_u32 s[60:61], s{NON}, v{fv+1}
    s_and_b32 s60, s60, 0x33333333
    s_and_b32 s61, s61, 0x33333333
    s_or_b64 vcc, vcc, s[60:61]
    s_cbranch_scc0 {D}
    s_add_u32 s62, s62, 1
    s_cmp_ge_u32 s62, {SPIN}
    s_cbranch_scc1 {D}
    buffer_load_dwordx2 v[{fv}:{fv+1}], v{fv+2}, s[{FLS}:{FLS+3}], s52 offen sc1
    s_waitcnt vmcnt(0)
    s_branch {L}
    {D}:
    """)
def wst(k, w):
    fv = k.wfv
    k(f"s_add_u32 s48, s{C}, {w + 4}\ns_and_b32 s48, s48, 15\ns_mul_i32 s48, s48, 20736\ns_add_u32 s48, s48, s63")
    for i in range(21):
        if i == 20: k(xm(0xffff))
        k(f"s_mov_b32 m0, {WQ[w] + i*1024}\nbuffer_load_dwordx4 v{fv+3}, s[24:27], s48 offen sc1 lds\ns_add_u32 s48, s48, 1024")
    k("s_mov_b64 exec, -1")

def gen_fused(prof=False, **o):
    OPT.update(o); o['WFL'] = WFL
    k = Kern(NAME + "_kernel", 256, 512, 163840)
    k.prof = prof; k.allreal = bool(o.get('real', 0))
    if o.get('p0'):
        seen = set(); st0 = k.stamp
        def st(i, real=False):
            if i in (5, 7, 8, 9):
                key = (i, len([1 for l in k.lines if l.startswith(('fz_l1W:', 'fz_c1:'))]))
                if key in seen or any(l.startswith('fz_cons:') for l in k.lines): return
                seen.add(key)
            st0(i, real)
        k.stamp = st
    k.stamp(0, True); k.stamp(1)
    if o.get('dbgt'): k("s_memrealtime s[64:65]")
    phase0(k, o); phase2(k, o)
    k("fz_fin:")
    if o.get('dbgt'):
        k(f"""
        s_waitcnt vmcnt(0)
        s_memrealtime s[66:67]
        s_load_dwordx2 s[68:69], s[0:1], {ARG['dbg']}
        s_waitcnt lgkmcnt(0)
        s_cmp_ge_u32 s2, 8
        s_cbranch_scc1 fz_end
        s_cmp_lg_u32 s22, 0
        s_cbranch_scc1 fz_end
        s_lshl_b32 s70, s2, 3
        v_mov_b32 v0, s70
        v_mov_b32 v2, s64
        v_mov_b32 v3, s66
        s_mov_b64 exec, 1
        global_store_dwordx2 v0, v[2:3], s[68:69]
        """)
    if prof:
        k("s_waitcnt vmcnt(0)"); k.stamp(15, True)
        k.prof_dump(0, 4, W, 16)
    k("fz_end:")
    return k

def emit_single(k, path):
    from gen import header
    s = header() + f"; @launch kernel={k.name} grid=({k.grid},1,1) block=({k.block},1,1) lds={k.lds}\n"
    s += '.amdgcn_target "amdgcn-amd-amdhsa--gfx950"\n.text\n' + k.text() + '.section .rodata,"a"\n' + k.desc()
    open(path, "w").write(s)

if __name__ == "__main__":
    opts = {a.split("=")[0]: int(a.split("=")[1]) for a in sys.argv[2:] if "=" in a}
    emit_single(gen_fused(prof="prof" in sys.argv, **opts), sys.argv[1])
```

```python
import sys, math; sys.path.insert(0, "dev")
from asmgen import *
from layout import *
import struct
import numpy as np
def fbits(x): return "0x%08x" % struct.unpack("<I", struct.pack("<f", x))[0]
def f32(x): return float(np.float32(x))
C1 = -2.0 * math.sqrt(2.0 / math.pi) * math.log2(math.e)
C2 = C1 * 0.044715
L2E = math.log2(math.e); L2E_HI = f32(L2E); L2E_LO = L2E - L2E_HI
I2P = 1.0 / (2 * math.pi); I2P_HI = f32(I2P); I2P_LO = I2P - I2P_HI
def rne(x, kk): return int(round(x / (1 << kk))) << kk
def rrow(v): return v if v <= 16 else 12 + v // 4
OOB = 0x7ff00000
P, C, W, NON = 20, 21, 22, 23
FLS = 16
VL = 255
SPIN = 0x4000
OPT = dict(sleep=0, sc1ld=1, nokgen=0)

def dpp_sum16(k, regs):
    for sh in (8, 4, 2, 1):
        for r in regs: k(f"v_add_f32_dpp v{r}, v{r}, v{r} row_ror:{sh} row_mask:0xf bank_mask:0xf")
def bf16_round(k, r): k(f"v_cvt_pk_bf16_f32 v{r}, v{r}, v{r}\nv_lshlrev_b32 v{r}, 16, v{r}")
def xsum_rows(k, r, t, both=True):
    k(f"v_mov_b32 v{t}, v{r}\nv_permlane16_swap_b32 v{r}, v{t}\nv_add_f32 v{r}, v{r}, v{t}")
    k(f"v_mov_b32 v{t}, v{r}\nv_permlane32_swap_b32 v{r}, v{t}\nv_add_f32 v{r}, v{r}, v{t}")
def mix(mf, other):
    out = []; n = len(mf); m = len(other); oi = 0
    for i, x in enumerate(mf):
        out.append(x)
        want = (i + 1) * m // n
        while oi < want: out.append(other[oi]); oi += 1
    return out + other[oi:]
def front2(mf, other, per=2):
    out = []; oi = 0
    for x in mf:
        out.append(x)
        for _ in range(per):
            if oi < len(other): out.append(other[oi]); oi += 1
    return out + other[oi:]
def front(mf, other):
    out = []; oi = 0
    for x in mf:
        out.append(x)
        if oi < len(other): out.append(other[oi]); oi += 1
    return out + other[oi:]

def xm(mask):
    return f"s_mov_b32 exec_lo, {hex(mask & 0xffffffff)}\ns_mov_b32 exec_hi, {hex(mask >> 32)}"
def set_flag(k, va, vd, off_s):
    k(f"""
    v_mov_b32 v{va}, 0
    v_mov_b32 v{vd}, s{NON}
    s_waitcnt vmcnt(0)
    s_mov_b64 exec, 1
    buffer_store_dword v{vd}, v{va}, s[{FLS}:{FLS+3}], s{off_s} offen sc1
    s_mov_b64 exec, -1
    """)
def poll(k, va, vd, off_s, nlanes, ndw=1, pre=False, mask=None):
    L = k.label("poll"); D = k.label("polld")
    ld = {1: "dword", 2: "dwordx2", 4: "dwordx4"}[ndw]
    dst = f"v{vd}" if ndw == 1 else f"v[{vd}:{vd+ndw-1}]"
    if not pre: k(f"v_lshlrev_b32 v{va}, { {1: 2, 2: 3, 4: 4}[ndw] }, v{VL}")
    k("s_mov_b32 s62, 0")
    if nlanes < 64: k(xm(mask if mask else (1 << nlanes) - 1))
    k(f"{L}:\nbuffer_load_{ld} {dst}, v{va}, s[{FLS}:{FLS+3}], {'0' if pre else 's%d' % off_s} offen sc1\ns_add_u32 s62, s62, 1\ns_waitcnt vmcnt(0)")
    k(f"v_cmp_ne_u32 vcc, s{NON}, v{vd}")
    for i in range(1, ndw): k(f"v_cmp_ne_u32 s[60:61], s{NON}, v{vd+i}\ns_or_b64 vcc, vcc, s[60:61]")
    sl = f"s_sleep {OPT['sleep']}\n" if OPT['sleep'] else ""
    k(f"s_cbranch_vccz {D}\n{sl}s_cmp_lt_u32 s62, {SPIN}\ns_cbranch_scc1 {L}\n{D}:")
    if nlanes < 64: k("s_mov_b64 exec, -1")

def gelu_group(k, pairs, T, SC2, VC1, VONE):
    n = len(pairs)
    for i, a in enumerate(pairs): k(f"v_pk_mul_f32 v[{T+2*i}:{T+2*i+1}], v[{a}:{a+1}], v[{a}:{a+1}]")
    for i, a in enumerate(pairs): k(f"v_pk_fma_f32 v[{T+2*i}:{T+2*i+1}], v[{T+2*i}:{T+2*i+1}], s[{SC2}:{SC2+1}], v[{VC1}:{VC1+1}]")
    for i, a in enumerate(pairs): k(f"v_pk_mul_f32 v[{T+2*i}:{T+2*i+1}], v[{T+2*i}:{T+2*i+1}], v[{a}:{a+1}]")
    for i in range(2 * n): k(f"v_exp_f32 v{T+i}, v{T+i}")
    for i, a in enumerate(pairs): k(f"v_pk_add_f32 v[{T+2*i}:{T+2*i+1}], v[{T+2*i}:{T+2*i+1}], v[{VONE}:{VONE+1}]")
    for i in range(2 * n): k(f"v_rcp_f32 v{T+i}, v{T+i}")
    for i, a in enumerate(pairs): k(f"v_pk_mul_f32 v[{a}:{a+1}], v[{a}:{a+1}], v[{T+2*i}:{T+2*i+1}]")

def ln_finish(k, m, v):
    bf16_round(k, v)
    k(f"v_add_f32 v{v}, {1e-5!r}, v{v}")
    bf16_round(k, v)
    k(f"v_sqrt_f32 v{v}, v{v}")
    bf16_round(k, v)
    k(f"v_rcp_f32 v{v}, v{v}")
    bf16_round(k, m)


KG = dict(ACC=0, WF=44, RB=108, RW=140, WAD=150, VJ=166, VG=167, DSK=168, DT=169, PRM=170, RS=182, XT3=192, VDMA=210)

def kgen_setup(k, o):
    g = KG
    k(f"""
    s_load_dwordx4 s[24:27], s[0:1], {ARG['A_re']}
    s_load_dwordx4 s[28:31], s[0:1], {ARG['B_re']}
    s_load_dwordx4 s[32:35], s[0:1], {ARG['C_re']}
    s_load_dwordx4 s[36:39], s[0:1], {ARG['log_dt']}
    s_min_u32 s42, s58, 575
    v_lshlrev_b32 v1, 1, v{VL}
    s_lshl_b32 s43, s42, 8
    v_add_u32 v1, s43, v1
    s_lshl_b32 s43, s42, 1
    v_mov_b32 v2, s43
    s_waitcnt lgkmcnt(0)
    """)
    for hf in range(2):
        for i in range(6):
            k(f"global_load_ushort v{g['PRM']+6*hf+i}, v1, s[{24+2*i}:{25+2*i}] offset:{hf*128}")
    k("global_load_ushort v196, v2, s[36:37]\nglobal_load_ushort v197, v2, s[38:39]")

def kgen_addr(k, o):
    g = KG; WAD, VJ, VG, RW, RS_ = g['WAD'], g['VJ'], g['VG'], g['RW'], g['RS']
    A = []
    A.append(f"v_lshrrev_b32 v46, 2, v{VL}\nv_and_b32 v47, 3, v{VL}\nv_lshlrev_b32 v47, 2, v47\nv_lshl_add_u32 v46, v46, 4, v47\nv_add_u32 v46, s59, v46")
    for i in range(16): A.append(f"v_xor_b32 v{WAD+i}, {i<<4}, v46")
    A.append(f"v_and_b32 v{VJ}, 15, v{VL}\nv_lshrrev_b32 v{VG}, 4, v{VL}")
    for m in range(4):
        A.append(f"v_add_u32 v46, {4*m}, v{VG}\nv_xor_b32 v46, v46, v{VJ}\nv_lshlrev_b32 v46, 4, v46\nv_lshl_add_u32 v46, v{VJ}, 8, v46\nv_add_u32 v{RW+m}, s59, v46")
    pats = [[b for b in range(16)], [rne(b, 1) for b in range(16)]]
    pats += [[rne(16 * nt + b, 2) for b in range(16)] for nt in range(4)]
    pats += [[rne(16 * nt + b, 3) for b in range(16)] for nt in range(4)]
    for pi_, pat in enumerate(pats):
        rows = [rrow(v) for v in pat]
        s = ""
        if pi_ == 0: s += f"v_mov_b32 v46, v{VJ}\n"
        else:
            kk = 1 if pi_ == 1 else (2 if pi_ < 6 else 3)
            nt = 0 if pi_ == 1 else (pi_ - 2) % 4
            c0 = 16 * nt + (1 << (kk - 1)) - 1
            s += f"v_add_u32 v46, {16*nt}, v{VJ}\nv_bfe_u32 v46, v46, {kk}, 1\nv_add3_u32 v46, v46, v{VJ}, {c0}\nv_and_b32 v46, {0xff & ~((1 << kk) - 1)}, v46\n"
            if pi_ > 1: s += "v_lshrrev_b32 v47, 2, v46\nv_add_u32 v47, 12, v47\nv_min_u32 v46, v46, v47\n"
            chk = []
            for j in range(16):
                v = (((((j + 16 * nt) >> kk) & 1) + j + c0) & (0xff & ~((1 << kk) - 1)))
                chk.append(min(v, 12 + (v >> 2)) if pi_ > 1 else v)
            assert chk == rows
        s += f"v_and_b32 v47, 15, v46\nv_xor_b32 v47, v47, v{VG}\nv_lshlrev_b32 v47, 4, v47\nv_lshl_add_u32 v46, v46, 8, v47\nv_add_u32 v{RS_+pi_}, s59, v46"
        A.append(s)
    return A

def kgen_dt():
    g = KG
    return [f"""v_lshlrev_b32 v44, 16, v196
    v_lshlrev_b32 v{g['DSK']}, 16, v197
    v_mul_f32 v45, {fbits(L2E_HI)}, v44
    v_fma_f32 v46, v44, s54, -v45
    v_fmac_f32 v46, {fbits(L2E_LO)}, v44
    v_exp_f32 v45, v45
    v_mul_f32 v46, {fbits(math.log(2.0))}, v46
    v_fma_f32 v{g['DT']}, v45, v46, v45
    v_cvt_pk_bf16_f32 v{g['DT']}, v{g['DT']}, v{g['DT']}
    v_lshlrev_b32 v{g['DT']}, 16, v{g['DT']}"""]

def kgen_half():
    g = KG; PRM, WAD, RW, RS_, WF, RB, DT = g['PRM'], g['WAD'], g['RW'], g['RS'], g['WF'], g['RB'], g['DT']
    A = []
    S = 220
    A_, B_, BR, BI, CR, CI = S, S + 1, S + 2, S + 3, S + 4, S + 5
    CB, W1, W16, W64, W512, W4, ONE = S + 6, S + 8, S + 10, S + 12, S + 14, S + 16, S + 18
    PA, PB, PC = [S + 20, S + 22], [S + 24, S + 26], S + 28
    TA, TB_ = S + 30, S + 31
    for i in range(6): A.append(f"v_lshlrev_b32 v{S+i}, 16, v{PRM+i}")
    for i in range(4): A.append(f"v_mul_f32 v{S+i}, v{DT}, v{S+i}")
    A += [f"v_mul_f32 v{CB}, v{CR}, v{BR}", f"v_mul_f32 v{CB+1}, v{CR}, v{BI}", f"v_fma_f32 v{CB}, -v{CI}, v{BI}, v{CB}", f"v_fma_f32 v{CB+1}, v{CI}, v{BR}, v{CB+1}"]
    ev = []
    for li, (l, r) in enumerate(((16, W16), (512, W512), (64, W64), (1, W1))):
        t = RB + 4 * li
        ev.append([f"v_mul_f32 v{t}, {float(l)!r}, v{A_}", f"v_mul_f32 v{t+1}, {float(l)!r}, v{B_}", f"v_mul_f32 v{t}, s54, v{t}", f"v_mul_f32 v{t+2}, s55, v{t+1}",
                   f"v_exp_f32 v{t}, v{t}", f"v_fma_f32 v{t+3}, v{t+1}, s55, -v{t+2}", f"v_fmac_f32 v{t+3}, {fbits(I2P_LO)}, v{t+1}", f"v_fract_f32 v{t+2}, v{t+2}",
                   f"v_add_f32 v{t+2}, v{t+2}, v{t+3}", f"v_cos_f32 v{r}, v{t+2}", f"v_sin_f32 v{r+1}, v{t+2}", f"v_mul_f32 v{r}, v{t}, v{r}", f"v_mul_f32 v{r+1}, v{t}, v{r+1}"])
    for pos in range(13):
        for e in ev: A.append(e[pos])
    def cmul(d, x, w):
        return [f"v_pk_mul_f32 v[{d}:{d+1}], v[{x}:{x+1}], v[{w}:{w+1}] op_sel_hi:[0,1]",
                f"v_pk_fma_f32 v[{d}:{d+1}], v[{x}:{x+1}], v[{w}:{w+1}], v[{d}:{d+1}] op_sel:[1,1,0] op_sel_hi:[1,0,1] neg_lo:[1,0,0]"]
    def put(x, t, base, row, neg):
        return [f"v_cvt_pk_bf16_f32 v{t}, v{x}, {'-' if neg else ''}v{x+1}", f"ds_write_b32 v{WAD + (row & 15)}, v{t} offset:{base + row*256}"]
    def wreads(wi, base):
        return [f"ds_read_b128 v[{WF+(wi*4+m)*4}:{WF+(wi*4+m)*4+3}], v{RW+m} offset:{base}" for m in range(4)]
    def pipe2(ca, cb):
        out = []; pa = []; pb = []
        for i in range(max(len(ca), len(cb)) + 1):
            sa = ca[i] if i < len(ca) else (None, None, []); sb = cb[i] if i < len(cb) else (None, None, [])
            q = [sa[0], sb[0]] + pa[:1] + pb[:1] + [sa[1], sb[1]] + pa[1:] + pb[1:]
            out += [x for x in q if x]
            pa = sa[2]; pb = sb[2]
        return out
    PA = [S + 20, S + 22, S + 32]; PB = [S + 24, S + 26, S + 28]
    ca = [(None, None, put(CB, TA, 0, 0, False))]; cur = CB
    for i in range(1, 32):
        d = PA[i % 3]; m = cmul(d, cur, W16); post = put(d, TA, 0, i & 15, False); cur = d
        if i in (15, 31): post = post + wreads(i // 16, 0)
        ca.append((m[0], m[1], post))
    cb = []; cur = CB
    for i in range(24):
        d = PB[i % 3]; m = cmul(d, cur, W512 if i == 0 else W64); post = put(d, TB_, 4096, i if i < 8 else i - 8, False); cur = d
        if i == 7: post = post + wreads(2, 4096)
        if i == 23: post = post + wreads(3, 4096)
        cb.append((m[0], m[1], post))
    W2, W3 = BR, CR
    for d, x in ((W2, W1), (W3, W2), (W4, W3)):
        m = cmul(d, x, W1); cb.append((m[0], m[1], [])); cb.append((None, None, []))
    A += pipe2(ca, cb)
    r1 = [(f"v_mov_b32 v{ONE}, 1.0", f"v_mov_b32 v{ONE+1}, 0", put(ONE, TA, 0, 0, True))]
    r2 = [(None, None, put(W16, TB_, 0, 16, True))]
    cur = W4
    for v in range(5, 16):
        d = PA[v % 3]; m = cmul(d, cur, W1); r1.append((m[0], m[1], put(d, TA, 0, v, True))); cur = d
    r1 += [(None, None, put(W1, TA, 0, 1, True)), (None, None, put(W2, TA, 0, 2, True))]
    cur = W16
    for i in range(11):
        d = PB[i % 3]; m = cmul(d, cur, W4); r2.append((m[0], m[1], put(d, TB_, 0, 17 + i, True))); cur = d
    r2 += [(None, None, put(W64, TB_, 0, 28, True)), (None, None, put(W3, TB_, 0, 3, True)), (None, None, put(W4, TB_, 0, 4, True))]
    A += pipe2(r1, r2)
    RBS = [RB, RB + 16, S]
    def rreads(t):
        L = []
        for m in range(4):
            b = RBS[t % 3] + 4 * m
            if m: L.append(f"v_xor_b32 v{g['XT3']+m}, {(4*m) << 4}, v{RS_+t}")
            L.append(f"ds_read_b128 v[{b}:{b+3}], v{RS_+t if m == 0 else g['XT3']+m}")
        return L
    tile_w = [0, 1, 2, 2, 2, 2, 3, 3, 3, 3]
    A += rreads(0) + rreads(1)
    for t in range(10):
        mf = []
        for m in range(4):
            b = RBS[t % 3] + 4 * m; w = WF + (tile_w[t] * 4 + m) * 4
            mf.append(f"v_mfma_f32_16x16x32_bf16 v[{4*t}:{4*t+3}], v[{b}:{b+3}], v[{w}:{w+3}], v[{4*t}:{4*t+3}]")
        A.append(f"s_waitcnt lgkmcnt({4 if t < 9 else 0})")
        A += front2(mf, rreads(t + 2) if t < 8 else [], 2)
    for i in range(6): A.append(f"v_mov_b32 v{PRM+i}, v{PRM+6+i}")
    return [a for a in A if a != "s_nop 0"]

def split(atoms, n):
    tot = sum(a.count("\n") + 1 for a in atoms); out = [[] for _ in range(n)]; acc = 0
    for a in atoms:
        out[min(n - 1, acc * n // tot)].append(a); acc += a.count("\n") + 1
    return out


REG = 21504
CONV0 = 3 * REG
WQ = [0, REG, 2 * REG, 139264]
YL_ = 6 * REG
RDY = 163072
UR = 44
def ft_load(k):
    k(f"s_mul_i32 s33, s58, 911\ns_lshr_b32 s33, s33, 16\ns_lshl_b32 s33, s33, 8\ns_add_u32 s33, s33, {FL_T}\nv_lshlrev_b32 v60, 2, v{VL}\nv_add_u32 v60, s33, v60")
    k(f"buffer_load_dword v64, v60, s[{FLS}:{FLS+3}], 0 offen sc1")
assert all((d * 911) >> 16 == d // 72 for d in range(576))
def u_load(k):
    L = k.label("ft"); D = k.label("ftd")
    k.srd(24, 4, XBYTES, add=WS_XT)
    k(f"s_mov_b32 s62, 0\n{L}:\ns_waitcnt vmcnt(0)\nv_cmp_ne_u32 vcc, s{NON}, v64")
    k(f"s_cbranch_vccz {D}\ns_add_u32 s62, s62, 1\ns_cmp_ge_u32 s62, {SPIN}\ns_cbranch_scc1 {D}")
    k(f"buffer_load_dword v64, v60, s[{FLS}:{FLS+3}], 0 offen sc1")
    k(f"s_branch {L}\n{D}:\nv_lshlrev_b32 v61, 4, v{VL}\ns_lshl_b32 s30, s58, 12\ns_add_u32 m0, s59, 480")
    for i in range(4): k(f"buffer_load_dwordx4 v61, s[24:27], s30 offen offset:{i*1024} sc1 lds")

CBO = 4608 + 64
def conv_build(k, o):
    g = KG; VJ, VG = g['VJ'], g['VG']; CB = CBO
    k(f"""
    v_mov_b32 v60, 0
    v_mov_b32 v61, 0
    v_mov_b32 v62, 0
    v_mov_b32 v63, 0
    v_lshlrev_b32 v127, 4, v{VL}
    v_add_u32 v127, s59, v127
    {xm((1 << 30) - 1)}
    ds_write_b128 v127, v[60:63]
    {xm(3)}
    ds_write_b128 v127, v[60:63] offset:{CB + 4096}
    s_mov_b64 exec, 1
    ds_write_b32 v127, v{g['DSK']} offset:4608
    s_mov_b64 exec, -1
    v_lshlrev_b32 v124, 3, v{VG}
    v_lshl_add_u32 v125, v{VJ}, 5, v124
    v_sub_u32 v122, {CB + 2*(2044-256)}, v125
    v_add_u32 v122, s59, v122
    v_lshl_add_u32 v125, v{VJ}, 7, v124
    v_sub_u32 v123, {CB + 2*(2044-1072)}, v125
    v_add_u32 v123, s59, v123
    """)
    for t in range(10):
        if t < 2: va, off = 122, 2 * (256 - 256 * t)
        else:
            tb = (512 if t < 6 else 1024) + 16 * ((t - 2) % 4); va, off = 123, 2 * (1072 - tb)
        a = 4 * t; p = 128 + 2 * (t % 4)
        if t == 2: k(xm(0x00ff00ff00ff00ff))
        if t == 6: k("s_mov_b64 exec, -1")
        k(f"v_cvt_pk_bf16_f32 v{p}, v{a+3}, v{a+2}\nv_cvt_pk_bf16_f32 v{p+1}, v{a+1}, v{a}\nds_write_b64 v{va}, v[{p}:{p+1}] offset:{off}")
    for it in range(5):
        b = 64 + 6 * it
        if it == 4: k(xm(3))
        k(f"ds_read_b128 v[{b}:{b+3}], v127 offset:{CB + it*1024}\nds_read_b64 v[{b+4}:{b+5}], v127 offset:{CB + it*1024 + 16}")
    k("s_mov_b64 exec, -1\ns_waitcnt lgkmcnt(0)")
    for it in range(5):
        b = 64 + 6 * it; e = 96 + 12 * (it % 2)
        if it == 4: k(xm(3))
        for i in range(4): k(f"v_alignbit_b32 v{e+i}, v{b+i+1}, v{b+i}, 16")
        for i in range(4): k(f"v_mov_b32 v{e+4+i}, v{b+i+1}")
        for i in range(3): k(f"v_mov_b32 v{e+8+i}, v{e+1+i}")
        k(f"v_alignbit_b32 v{e+11}, v{b+5}, v{b+4}, 16")
        for s_ in range(3): k(f"ds_write_b128 v127, v[{e+4*s_}:{e+4*s_+3}] offset:{CB + (s_+1)*4160 + it*1024}")
    k(f"s_mov_b64 exec, -1\nv_mov_b32 v60, s57\nv_mov_b32 v61, 1\ns_waitcnt vmcnt(0)\nds_write_b32 v60, v61")

def conv_run(k, o, st):
    CB = CBO; IS = [(7, 6, 1, 0), (5, 4, 3, 2), (0, 1, 2, 3, 4, 5, 6, 7)][st]; nm = max(IS) + 1
    VF, VGa = 140, 141
    k(f"""
    v_and_b32 v20, 15, v{VL}
    v_lshrrev_b32 v21, 4, v{VL}
    v_sub_u32 v22, 3, v20
    v_and_b32 v22, 3, v22
    v_mul_u32_u24 v22, 4160, v22
    v_lshrrev_b32 v23, 2, v20
    v_lshlrev_b32 v23, 3, v23
    v_sub_u32 v22, v22, v23
    v_lshl_add_u32 v22, v21, 4, v22
    v_add_u32 v22, {CB + 2*(2028-2016)}, v22
    v_add_u32 v{VF}, s59, v22
    v_lshlrev_b32 v23, 5, v20
    v_lshl_add_u32 v{VGa}, v21, 4, v23
    v_add_u32 v{VGa}, s59, v{VGa}
    v_lshl_add_u32 v130, v21, 3, v23
    v_add_u32 v131, s59, v130
    v_mov_b32 v24, s59
    ds_read_b32 v132, v24 offset:4608
    """)
    for i in range(4 * len(IS)): k(f"v_mov_b32 v{i}, 0")
    SETS = [32, 142]
    def creads(s, rho):
        b = SETS[s]; L = []
        for m in range(nm):
            gg = b + 32 + 4 * m; f = b + 4 * m
            L.append(f"ds_read_b128 v[{gg}:{gg+3}], v{VGa} offset:{64*(8*m + 7 - rho)}")
            L.append(f"ds_read_b64 v[{f}:{f+1}], v{VF} offset:{64*(63 - 8*m - rho)}")
            L.append(f"ds_read_b64 v[{f+2}:{f+3}], v{VF} offset:{64*(63 - 8*m - rho) + 8}")
        return L
    def cm(s):
        b = SETS[s]; L = []
        for m in range(nm):
            for n, I in enumerate(IS):
                if I < m: continue
                gg = b + 32 + 4 * (I - m); f = b + 4 * m
                L.append(f"v_mfma_f32_16x16x32_bf16 v[{4*n}:{4*n+3}], v[{f}:{f+3}], v[{gg}:{gg+3}], v[{4*n}:{4*n+3}]")
        return L
    k("\n".join(creads(0, 0)))
    k(f"s_mov_b32 s35, 0\nfz_cv{st}:\ns_waitcnt lgkmcnt(0)")
    k("\n".join(front2(cm(0), creads(1, 1), 1 if st == 2 else 2)))
    k(f"v_subrev_u32 v{VF}, 128, v{VF}\nv_subrev_u32 v{VGa}, 128, v{VGa}\ns_waitcnt lgkmcnt(0)")
    k("\n".join(front2(cm(1), creads(0, 0), 1 if st == 2 else 2)))
    k(f"s_add_u32 s35, s35, 1\ns_cmp_lt_u32 s35, 4\ns_cbranch_scc1 fz_cv{st}")
    k.srd(44, 4, XBYTES, add=WS_YT)
    k(f"s_lshl_b32 s30, s58, 12\ns_lshl_b32 s31, s58, 3\ns_add_u32 s31, s31, {FL_Y + 4*(st & 1)}\ns_waitcnt lgkmcnt(0)")
    for n, I in enumerate(IS): k(f"ds_read_b64 v[{32+2*n}:{33+2*n}], v131 offset:{480 + 512*I}")
    k("s_waitcnt lgkmcnt(0)")
    for n, I in enumerate(IS):
        a = 4 * n; oo = 64 + 2 * n
        for hh in range(2):
            u = 32 + 2 * n + hh; t = 100 + 8 * hh
            k(f"""
            v_lshlrev_b32 v{t}, 16, v{u}
            v_and_b32 v{t+1}, 0xffff0000, v{u}
            v_pk_fma_f32 v[{t}:{t+1}], v[{t}:{t+1}], v[132:133], v[{a+2*hh}:{a+2*hh+1}] op_sel_hi:[1,0,1]
            v_cvt_pk_bf16_f32 v{oo+hh}, v{t}, v{t+1}
            """)
        k(f"buffer_store_dwordx2 v[{oo}:{oo+1}], v130, s[44:47], s30 offen offset:{512*I} sc1")
    if st == 2:
        k(f"v_mov_b32 v34, 0\nv_mov_b32 v36, s{NON}\nv_mov_b32 v37, s{NON}\ns_waitcnt vmcnt(0)\ns_mov_b64 exec, 1\nbuffer_store_dwordx2 v[36:37], v34, s[{FLS}:{FLS+3}], s31 offen sc1")
    elif st == 0:
        k("s_mov_b32 s52, s31\ns_cmp_eq_u32 s3, 1\ns_cbranch_scc1 fz_runb")
        set_flag(k, 16, 17, 31)
    else:
        set_flag(k, 16, 17, 31)
        k(f"s_cmp_eq_u32 s3, 1\ns_cbranch_scc0 fz_fin\ns_mov_b64 exec, 1\nbuffer_store_dword v17, v16, s[{FLS}:{FLS+3}], s52 offen sc1")

def g3map(k, tp, e):
    k(f"s_and_b32 s{tp}, s2, 7\ns_lshl_b32 s{tp}, s{tp}, 2\ns_lshr_b32 s{e}, s2, 6\ns_add_u32 s{tp}, s{tp}, s{e}\ns_lshr_b32 s{e}, s2, 3\ns_and_b32 s{e}, s{e}, 7")

class Gemm3:
  def __init__(self, k, o):
    self.g = self.run(k, o)
  def pre(self): next(self.g)
  def wcheck(self): next(self.g)
  def wregs(self): next(self.g)
  def main(self): next(self.g, None)
  def run(self, k, o):
    RS = 336; YL = YL_
    TP, E = 20, 21
    k(f"""
    s_load_dwordx2 s[6:7], s[0:1], {ARG['x']}
    s_load_dwordx2 s[8:9], s[0:1], {ARG['out']}
    s_add_u32 s29, s{C}, s{W}
    s_and_b32 s29, s29, 15
    """)
    g3map(k, TP, E)
    k.srd(24, 4, WOBYTES, add=WS_WO)
    k.srd(36, 4, XBYTES, add=WS_YT)
    ACC = 0; RING = 80
    def HR(q): return 80 + 16 * q
    def WR(q): return 152 + 20 * q
    V16, V8, VH16, VH8 = 242, 243, 244, 245
    k(f"""
    v_lshlrev_b32 v{V16}, 4, v{VL}
    v_lshlrev_b32 v{V8}, 3, v{VL}
    v_lshrrev_b32 v4, 4, v{VL}
    v_and_b32 v5, 7, v{VL}
    v_lshl_add_u32 v5, v4, 3, v5
    v_and_b32 v6, 8, v{VL}
    v_cmp_eq_u32 vcc, 0, v6
    v_lshlrev_b32 v6, 4, v5
    v_lshlrev_b32 v7, 3, v5
    v_mov_b32 v8, {OOB}
    v_cndmask_b32 v{VH16}, v8, v6, vcc
    v_cndmask_b32 v{VH8}, v8, v7, vcc
    s_mul_i32 s57, s{TP}, {64*4608}
    s_mul_i32 s58, s{E}, {16*20736}
    v_lshrrev_b32 v4, 3, v{VL}
    v_lshl_add_u32 v4, v4, 2, s29
    v_and_b32 v4, 15, v4
    v_lshlrev_b32 v237, 5, v4
    v_and_b32 v5, 7, v{VL}
    v_lshl_add_u32 v237, v5, 2, v237
    s_lshl_b32 s10, s{E}, 9
    s_add_u32 s10, s10, {FL_W}
    v_add_u32 v237, s10, v237
    v_lshrrev_b32 v4, 1, v{VL}
    v_lshl_add_u32 v4, v4, 2, s29
    v_and_b32 v4, 15, v4
    v_and_b32 v5, 1, v{VL}
    v_lshlrev_b32 v5, 2, v5
    v_lshl_add_u32 v250, v4, 3, v5
    s_lshl_b32 s11, s{TP}, 7
    s_add_u32 s11, s11, {FL_H}
    v_add_u32 v250, s11, v250
    s_waitcnt lgkmcnt(0)
    """)
    def setgrp(dW):
        k(f"s_mul_i32 s50, s29, 4608\ns_add_u32 s50, s50, s57\ns_add_u32 s51, s50, {16*4608}\ns_add_u32 s52, s50, {32*4608}\ns_add_u32 s63, s50, {48*4608}")
        k(f"s_mul_i32 s54, s29, 20736\ns_add_u32 s54, s54, s58")
    def nextgrp(): k("s_add_u32 s29, s29, 4\ns_and_b32 s29, s29, 15"); setgrp(0)
    def hcheck(i):
        L = k.label("hc"); D = k.label("hd")
        k(f"""
        {L}:
        s_and_b32 s33, s59, {3 << (2*i)}
        s_cbranch_scc0 {D}
        s_add_u32 s62, s62, 1
        s_cmp_ge_u32 s62, {SPIN}
        s_cbranch_scc1 {D}
        {xm(0xff)}
        buffer_load_dword v251, v250, s[{FLS}:{FLS+3}], 0 offen sc1
        s_waitcnt vmcnt(0)
        v_cmp_ne_u32 vcc, s{NON}, v251
        s_mov_b64 exec, -1
        s_mov_b32 s59, vcc_lo
        s_branch {L}
        {D}:
        """)
    k.srd(40, 6, XBYTES)
    k.srd(44, 8, XBYTES)
    def loadsW(q):
        b = WR(q); L = []
        if q < 4:
            L.append(f"s_add_u32 s55, s54, {q*4608}")
            for dt in range(4): L.append(f"buffer_load_dwordx4 v[{b+4*dt}:{b+3+4*dt}], v{V16}, s[24:27], s55 offen offset:{dt*1024} sc1")
            L.append(f"s_add_u32 s55, s55, 4096")
            L.append(f"buffer_load_dwordx4 v[{b+16}:{b+19}], v{VH16}, s[24:27], s55 offen sc1")
        else:
            L.append(f"s_add_u32 s55, s54, 18432")
            for dt in range(4): L.append(f"buffer_load_dwordx2 v[{b+2*dt}:{b+1+2*dt}], v{V8}, s[24:27], s55 offen offset:{dt*512} sc1")
            L.append(f"buffer_load_dwordx2 v[{b+8}:{b+9}], v{VH8}, s[24:27], s55 offen offset:2048 sc1")
        return L
    def loadsH(q):
        b = HR(q); L = []
        if q < 4:
            for tb in range(4): L.append(f"buffer_load_dwordx4 v[{b+4*tb}:{b+4*tb+3}], v{V16}, s[12:15], s{[50, 51, 52, 63][tb]} offen offset:{q*1024} sc1")
        else:
            for tb in range(4): L.append(f"s_add_u32 s55, s{[50, 51, 52, 63][tb]}, 4096\nbuffer_load_dwordx2 v[{b+2*tb}:{b+2*tb+1}], v{V8}, s[12:15], s55 offen sc1")
        return L
    def mf(q, first=False):
        h = HR(q); w = WR(q); out = []
        for dt in range(5):
            for tb in range(4):
                a = ACC + (dt * 4 + tb) * 4
                cc = "0" if first else f"v[{a}:{a+3}]"
                if q < 4: out.append(f"v_mfma_f32_16x16x32_bf16 v[{a}:{a+3}], v[{w+4*dt}:{w+3+4*dt}], v[{h+4*tb}:{h+4*tb+3}], {cc}")
                else: out.append(f"v_mfma_f32_16x16x16_bf16 v[{a}:{a+3}], v[{w+2*dt}:{w+1+2*dt}], v[{h+2*tb}:{h+2*tb+1}], {cc}")
        return out
    setgrp(0)
    yield
    L = k.label("wf"); D = k.label("wfd")
    k(f"""
    s_mov_b32 s62, 0
    {xm(0x1f1f1f1f)}
    {L}:
    s_waitcnt vmcnt(0)
    v_cmp_ne_u32 vcc, s{NON}, v238
    s_cbranch_vccz {D}
    s_add_u32 s62, s62, 1
    s_cmp_ge_u32 s62, {SPIN}
    s_cbranch_scc1 {D}
    buffer_load_dword v238, v237, s[{FLS}:{FLS+3}], 0 offen sc1
    s_branch {L}
    {D}:
    s_mov_b64 exec, -1
    """)
    if o.get('wearly'):
        for q in range(4): k("\n".join(loadsW(q)))
    yield
    for q in range(4 if o.get('wearly') else 0, 5): k("\n".join(loadsW(q)))
    k(f"s_mul_i32 s56, s{W}, {REG}\ns_cmp_eq_u32 s{W}, 3\ns_cselect_b32 s56, {WQ[3]}, s56")
    k("s_mov_b64 exec, -1")
    yield
    k("s_mov_b64 exec, -1")
    k(f"v_add_u32 v246, s56, v{V16}\nv_add_u32 v247, s56, v{V8}\nv_and_b32 v248, 0x1ff, v{VH16}\nv_add_u32 v248, s56, v248\nv_and_b32 v249, 0xff, v{VH8}\nv_add_u32 v249, s56, v249")
    k("s_mov_b32 s59, 0xff\ns_mov_b32 s62, 0")
    hcheck(0)
    k.stamp(14)
    def ldsW(q):
        b = WR(q); L = []
        if q < 4:
            for dt in range(4): L.append(f"ds_read_b128 v[{b+4*dt}:{b+3+4*dt}], v246 offset:{q*4608 + dt*1024}")
            L.append(f"ds_read_b128 v[{b+16}:{b+19}], v248 offset:{q*4608 + 4096}")
        else:
            for dt in range(4): L.append(f"ds_read_b64 v[{b+2*dt}:{b+1+2*dt}], v247 offset:{18432 + dt*512}")
            L.append(f"ds_read_b64 v[{b+8}:{b+9}], v249 offset:{18432 + 2048}")
        return L
    for q in range(5): k("\n".join(loadsH(q)))
    nextgrp(); hcheck(1)
    if o.get('p3') == 2: k.stamp(11)
    for q in range(5):
        k("s_waitcnt vmcnt(16)")
        k("\n".join(mf(q, q == 0)))
        k("\n".join(loadsH(q) + ldsW(q)))
    if o.get('p3') == 2: k.stamp(8)
    nextgrp(); hcheck(2)
    for q in range(5):
        k(f"s_waitcnt vmcnt({4*(4-q) + 9*q}) lgkmcnt(0)")
        k("\n".join(mf(q)))
        k("\n".join(loadsH(q) + loadsW(q)))
    if o.get('p3') == 2: k.stamp(9)
    nextgrp(); hcheck(3)
    for q in range(5):
        k("s_waitcnt vmcnt(36)")
        k("\n".join(mf(q)))
        k("\n".join(loadsH(q) + loadsW(q)))
    if o.get('p3') == 2: k.stamp(10)
    XB = RING
    for q in range(5):
        k(f"s_waitcnt vmcnt({9*(4-q) + (4 if q else 0)})")
        k("\n".join(mf(q)))
        if q == 0:
            k(f"""
            s_lshl_b32 s30, s{TP}, 6
            v_add_u32 v{V8}, s30, v{VL}
            v_mul_u32_u24 v{V8}, 1152, v{V8}
            s_mul_i32 s30, s{E}, 144
            s_lshl_b32 s31, s{W}, 4
            s_add_u32 s30, s30, s31
            v_add_u32 v{V8}, s30, v{V8}
            s_mul_i32 s30, s{E}, 576
            s_add_u32 s30, s30, {FL_Y}
            v_lshlrev_b32 v247, 4, v{VL}
            buffer_load_dwordx4 v[248:251], v247, s[{FLS}:{FLS+3}], s30 offen sc1
            buffer_load_dwordx4 v[{XB}:{XB+3}], v{V8}, s[40:43], 0 offen
            buffer_load_dwordx4 v[{XB+4}:{XB+7}], v{V8}, s[40:43], 0 offen offset:64
            buffer_load_dwordx4 v[{XB+8}:{XB+11}], v{V8}, s[40:43], 0 offen offset:128
            v_and_b32 v{VH16}, 15, v{VL}
            v_mul_u32_u24 v{VH16}, {RS}, v{VH16}
            v_lshrrev_b32 v{VH8}, 4, v{VL}
            v_lshl_add_u32 v{VH16}, v{VH8}, 4, v{VH16}
            v_add_u32 v{VH16}, s56, v{VH16}
            """)
    if o.get('p3'): k.stamp(3)
    L = k.label("yp"); D = k.label("ypd")
    k(f"""
    s_mov_b32 s62, 0
    s_waitcnt vmcnt(3)
    {xm((1 << 36) - 1)}
    {L}:
    v_cmp_ne_u32 vcc, s{NON}, v248
    v_cmp_ne_u32 s[60:61], s{NON}, v249
    s_or_b64 vcc, vcc, s[60:61]
    v_cmp_ne_u32 s[60:61], s{NON}, v250
    s_or_b64 vcc, vcc, s[60:61]
    v_cmp_ne_u32 s[60:61], s{NON}, v251
    s_or_b64 vcc, vcc, s[60:61]
    s_cbranch_vccz {D}
    s_add_u32 s62, s62, 1
    s_cmp_ge_u32 s62, {SPIN}
    s_cbranch_scc1 {D}
    buffer_load_dwordx4 v[248:251], v247, s[{FLS}:{FLS+3}], s30 offen sc1
    s_waitcnt vmcnt(0)
    s_branch {L}
    {D}:
    s_mov_b64 exec, -1
    """)
    if o.get('p3'): k.stamp(4)
    k(f"""
    v_lshrrev_b32 v100, 3, v{VL}
    v_and_b32 v101, 7, v{VL}
    v_lshlrev_b32 v100, 12, v100
    v_lshl_add_u32 v100, v101, 4, v100
    s_mul_i32 s30, s{E}, {72*4096}
    s_lshl_b32 s31, s{TP}, 7
    s_add_u32 s30, s30, s31
    s_lshl_b32 s31, s{W}, 15
    s_add_u32 s30, s30, s31
    s_lshl_b32 s31, s{W}, 10
    s_add_u32 m0, s31, {YL}
    buffer_load_dwordx4 v100, s[36:39], s30 offen sc1 lds
    s_add_u32 s30, s30, {4*32768}
    s_add_u32 m0, s31, {YL+4096}
    buffer_load_dwordx4 v100, s[36:39], s30 offen sc1 lds
    s_cmp_lg_u32 s{W}, 0
    s_cbranch_scc1 fz_y2
    s_add_u32 s30, s30, {4*32768}
    s_mov_b32 m0, {YL+8192}
    buffer_load_dwordx4 v100, s[36:39], s30 offen sc1 lds
    fz_y2:
    """)
    for dt in range(5):
        for tb in range(4):
            a = ACC + (dt * 4 + tb) * 4
            k(f"ds_write_b128 v{VH16}, v[{a}:{a+3}] offset:{tb*16*RS + dt*64}")
    if o.get('p3'): k.stamp(5)
    k(f"""
    s_waitcnt lgkmcnt(0)
    s_barrier
    v_mul_u32_u24 v{VH16}, {RS}, v{VL}
    s_lshl_b32 s30, s{W}, 5
    v_add_u32 v{VH16}, s30, v{VH16}
    v_add_u32 v246, {WQ[3]}, v{VH16}
    v_lshlrev_b32 v{VH8}, 1, v{VL}
    s_lshl_b32 s30, s{W}, 10
    s_add_u32 s30, s30, {YL}
    v_add_u32 v{VH8}, s30, v{VH8}
    """)
    def fin(ps):
        Pp = 0; Y = 40; Tm = 48
        for w in range(4):
            for hh in range(2):
                k(f"ds_read_b128 v[{Pp+8*w+4*hh}:{Pp+8*w+4*hh+3}], v{VH16 if w < 3 else 246} offset:{(w % 3 if w < 3 else 0)*64*RS + ps*128 + hh*16}")
        if ps == 0: k("s_waitcnt vmcnt(0)")
        for i in range(8): k(f"ds_read_u16 v{Y+i}, v{VH8} offset:{ps*4096 + i*128}")
        k("s_waitcnt lgkmcnt(0)")
        for i in range(4):
            a = Pp + 2 * i
            k(f"""
            v_pk_add_f32 v[{a}:{a+1}], v[{a}:{a+1}], v[{a+8}:{a+9}]
            v_pk_add_f32 v[{a+16}:{a+17}], v[{a+16}:{a+17}], v[{a+24}:{a+25}]
            v_pk_add_f32 v[{a}:{a+1}], v[{a}:{a+1}], v[{a+16}:{a+17}]
            v_cvt_pk_bf16_f32 v{Tm}, v{a}, v{a+1}
            v_lshlrev_b32 v{a}, 16, v{Tm}
            v_and_b32 v{a+1}, 0xffff0000, v{Tm}
            v_lshlrev_b32 v{Tm+2}, 16, v{XB+4*ps+i}
            v_and_b32 v{Tm+3}, 0xffff0000, v{XB+4*ps+i}
            v_lshlrev_b32 v{Tm+4}, 16, v{Y+2*i}
            v_lshlrev_b32 v{Tm+5}, 16, v{Y+2*i+1}
            v_pk_add_f32 v[{Tm+2}:{Tm+3}], v[{Tm+2}:{Tm+3}], v[{Tm+4}:{Tm+5}]
            v_cvt_pk_bf16_f32 v{Tm}, v{Tm+2}, v{Tm+3}
            v_lshlrev_b32 v{Tm+2}, 16, v{Tm}
            v_and_b32 v{Tm+3}, 0xffff0000, v{Tm}
            v_pk_add_f32 v[{a}:{a+1}], v[{a}:{a+1}], v[{Tm+2}:{Tm+3}]
            v_cvt_pk_bf16_f32 v{56+4*ps+i}, v{a}, v{a+1}
            """)
        k(f"buffer_store_dwordx4 v[{56+4*ps}:{59+4*ps}], v{V8}, s[44:47], 0 offen offset:{ps*64}")
    if o.get('p3'): k.stamp(6)
    fin(0); fin(1)
    if o.get('p3'): k.stamp(7)
    k(f"s_cmp_lg_u32 s{W}, 0\ns_cbranch_scc1 fz_fin")
    fin(2)
    k(f"""
    s_cmp_lg_u32 s2, 0
    s_cbranch_scc1 fz_fin
    v_mov_b32 v0, 0
    v_mov_b32 v1, s{NON}
    s_mov_b64 exec, 1
    buffer_store_dword v1, v0, s[{FLS}:{FLS+3}], 0 offen
    s_mov_b64 exec, -1
    s_branch fz_fin
    """)
```

```python
import sys; sys.path.insert(0, "dev")
from cm15 import *
SLOT = 34816; NS = 4
XTL = 104448; RPL = 114688
Z1 = 160
WOFF = 16384


ROWA = 139264
COLP = ROWA + 1024
WPRIV = COLP + 2 * 768
XTS = WPRIV + 1280
assert XTS + 4 * 5120 <= 163840
KTAB = 104448
CNT = WPRIV + 1024
WFL = 163000
RPK = XTS
WS_RS = WS_ST + 0x90000
def phase0(k, o):
    k(f"""
    s_load_dwordx2 s[6:7], s[0:1], {ARG['x']}
    s_load_dwordx2 s[8:9], s[0:1], {ARG['w_in']}
    s_load_dwordx2 s[4:5], s[0:1], {ARG['ws']}
    s_getpc_b64 s[28:29]
    fz_pc:
    s_cmp_ge_u32 s2, 256
    s_cbranch_scc1 fz_end
    v_lshrrev_b32 v1, 6, v0
    v_and_b32 v{VL}, 63, v0
    v_readfirstlane_b32 s{W}, v1
    s_and_b32 s30, s2, 7
    s_lshr_b32 s31, s2, 3
    v_lshrrev_b32 v1, 4, v0
    v_lshl_add_u32 v1, s31, 5, v1
    v_lshlrev_b32 v1, 7, v1
    v_min_u32 v1, fz_end-fz_pc, v1
    {xm(0x0001000100010001)}
    global_load_dword v254, v1, s[28:29]
    s_mov_b64 exec, -1
    s_and_b32 s{P}, s30, 1
    s_lshl_b32 s{P}, s{P}, 3
    s_lshr_b32 s32, s31, 2
    s_add_u32 s{P}, s{P}, s32
    s_lshr_b32 s{C}, s30, 1
    s_lshl_b32 s{C}, s{C}, 2
    s_and_b32 s32, s31, 3
    s_add_u32 s{C}, s{C}, s32
    s_lshl_b32 s63, s2, 3
    s_add_u32 s63, s63, s{W}
    s_mul_i32 s31, s63, 1152
    v_lshlrev_b32 v2, 4, v{VL}
    v_mov_b32 v3, {OOB}
    v_cmp_gt_u32 vcc, 36, v{VL}
    v_cndmask_b32 v2, v3, v2, vcc
    s_waitcnt lgkmcnt(0)
    """)
    k.srd(12, 6, XBYTES)
    k(f"""
    buffer_load_dwordx4 v[8:11], v2, s[12:15], s31 offen
    buffer_load_dwordx4 v[12:15], v2, s[12:15], s31 offen offset:576
    s_add_u32 s10, s4, {WS_FL}
    s_addc_u32 s11, s5, 0
    s_load_dword s{NON}, s[10:11], 0
    s_cmp_lt_u32 s{W}, 4
    s_cbranch_scc1 fz_c0
    s_cmp_lt_u32 s{W}, 6
    s_cbranch_scc1 fz_w0
    """)
    LX = p1_loader(k, o, "X"); next(LX)
    k("s_mov_b32 s3, 2\ns_branch fz_ln\nfz_w0:")
    LW = p1_loader(k, o, "W"); next(LW)
    k("s_mov_b32 s3, 1\ns_branch fz_ln\nfz_c0:")
    CC = p1_consumer(k, o); next(CC)
    k("s_mov_b32 s3, 0\nfz_ln:")
    ln1(k, o)
    k(f"s_cmp_eq_u32 s3, 0\ns_cbranch_scc1 fz_c1\ns_cmp_eq_u32 s3, 1\ns_cbranch_scc1 fz_l1W")
    next(LX, None)
    k("fz_l1W:")
    next(LW, None)
    k("fz_c1:")
    next(CC, None)

def ln1(k, o):
    X = 16; S = 112
    k.srd(FLS, 4, FL_BYTES, add=WS_FL)
    k(f"v_cmp_gt_u32 vcc, 36, v{VL}")
    for i in range(8): k(f"v_lshlrev_b32 v{X+2*i}, 16, v{8+i}\nv_and_b32 v{X+2*i+1}, 0xffff0000, v{8+i}")
    k(f"v_pk_add_f32 v[{S}:{S+1}], v[{X}:{X+1}], v[{X+2}:{X+3}]\nv_pk_add_f32 v[{S+2}:{S+3}], v[{X+4}:{X+5}], v[{X+6}:{X+7}]")
    for i in range(4, 8): k(f"v_pk_add_f32 v[{S+2*(i&1)}:{S+2*(i&1)+1}], v[{S+2*(i&1)}:{S+2*(i&1)+1}], v[{X+2*i}:{X+2*i+1}]")
    k(f"v_pk_add_f32 v[{S}:{S+1}], v[{S}:{S+1}], v[{S+2}:{S+3}]\nv_add_f32 v{S}, v{S}, v{S+1}")
    dpp_sum16(k, [S]); xsum_rows(k, S, S + 1)
    k(f"v_mul_f32 v{S}, {1.0/576!r}, v{S}\nv_cndmask_b32 v{S+6}, 0, v{S}, vcc")
    for i in range(8):
        t = 32 + 2 * i
        k(f"v_pk_add_f32 v[{t}:{t+1}], v[{X+2*i}:{X+2*i+1}], v[{S+6}:{S+7}] op_sel_hi:[1,0] neg_lo:[0,1] neg_hi:[0,1]")
    for i in range(8):
        t = 32 + 2 * i; q = S + 2 + 2 * (i & 1)
        if i < 2: k(f"v_pk_mul_f32 v[{q}:{q+1}], v[{t}:{t+1}], v[{t}:{t+1}]")
        else: k(f"v_pk_fma_f32 v[{q}:{q+1}], v[{t}:{t+1}], v[{t}:{t+1}], v[{q}:{q+1}]")
    k(f"v_pk_add_f32 v[{S+2}:{S+3}], v[{S+2}:{S+3}], v[{S+4}:{S+5}]\nv_add_f32 v{S+2}, v{S+2}, v{S+3}")
    dpp_sum16(k, [S + 2]); xsum_rows(k, S + 2, S + 3)
    k(f"v_mul_f32 v{S+2}, {1.0/576!r}, v{S+2}")
    k.srd(36, 4, XBYTES, add=WS_XN)
    k(f"s_waitcnt lgkmcnt(0)\ns_mul_i32 s{NON}, s{NON}, 0x9E3779B1\ns_add_u32 s{NON}, s{NON}, 0x7F4A7C15\ns_mul_i32 s31, s63, 1152")
    ln_finish(k, S, S + 2)
    k(f"v_mul_f32 v{S}, -v{S}, v{S+2}")
    for i in range(8): k(f"v_pk_fma_f32 v[{X+2*i}:{X+2*i+1}], v[{X+2*i}:{X+2*i+1}], v[{S+2}:{S+3}], v[{S}:{S+1}] op_sel_hi:[1,0,0]")
    for i in range(8): k(f"v_cvt_pk_bf16_f32 v{8+i}, v{X+2*i}, v{X+2*i+1}")
    k(f"""
    buffer_store_dwordx4 v[8:11], v2, s[36:39], s31 offen sc1
    buffer_store_dwordx4 v[12:15], v2, s[36:39], s31 offen offset:576 sc1
    v_mov_b32 v{S+1}, s{NON}
    v_mov_b32 v{S+3}, s{NON}
    s_lshl_b32 s63, s63, 4
    """)

def rowgran(k, srd, vz):
    k(f"v_mov_b32 v{vz}, 0\ns_mov_b64 exec, 1\nbuffer_store_dwordx4 v[112:115], v{vz}, s[{srd}:{srd+3}], s63 offen sc1\ns_mov_b64 exec, -1")

def get_nonce(k):
    k(f"s_add_u32 s10, s4, {WS_FL}\ns_addc_u32 s11, s5, 0\ns_load_dword s{NON}, s[10:11], 0")
    k.srd(FLS, 4, FL_BYTES, add=WS_FL)
def fin_nonce(k):
    k(f"s_waitcnt lgkmcnt(0)\ns_mul_i32 s{NON}, s{NON}, 0x9E3779B1\ns_add_u32 s{NON}, s{NON}, 0x7F4A7C15")

def p1_addr(k, VX0b, VX1b, VWb, tq_s):
    k(f"""
    v_and_b32 v3, 15, v{VL}
    v_lshrrev_b32 v4, 4, v{VL}
    v_lshrrev_b32 v5, 1, v3
    v_xor_b32 v5, v5, v4
    v_lshlrev_b32 v5, 4, v5
    v_lshl_add_u32 v5, v3, 7, v5
    s_lshl_b32 s32, s{tq_s}, 12
    v_add_u32 v{VX0b}, s32, v5
    v_xor_b32 v{VX1b}, 64, v{VX0b}
    v_bfe_u32 v5, v{VL}, 2, 2
    v_and_b32 v6, 1, v4
    v_lshl_add_u32 v5, v6, 2, v5
    v_lshrrev_b32 v6, 1, v4
    v_lshl_add_u32 v5, v6, 4, v5
    v_mul_u32_u24 v5, 288, v5
    v_and_b32 v6, 3, v{VL}
    v_lshl_add_u32 v5, v6, 3, v5
    v_add_u32 v{VWb}, {WOFF}, v5
    """)

def p1_loader(k, o, typ):
    VD = 200; n = 8 if typ == "X" else 9
    k(f"s_sub_u32 s57, s{W}, 4      ; lw\ns_setprio {o.get('prioL', 3)}")
    if typ == "X":
        k(f"""
        v_lshrrev_b32 v3, 3, v{VL}
        v_and_b32 v4, 7, v{VL}
        v_lshrrev_b32 v5, 4, v{VL}
        v_xor_b32 v4, v4, v5
        v_mul_u32_u24 v3, 1152, v3
        v_lshl_add_u32 v3, v4, 4, v3
        v_xor_b32 v4, 64, v3
        s_sub_u32 s31, s{W}, 6
        s_lshl_b32 s30, s{P}, 7
        s_lshl_b32 s32, s31, 6
        s_add_u32 s30, s30, s32
        s_mul_i32 s30, s30, 1152
        s_lshl_b32 s44, s31, 13
        """)
        k("s_mov_b32 s40, 0")
        for j in range(8):
            k(f"v_add_u32 v{VD+j}, s30, v{3 + (j & 1)}\ns_add_u32 s30, s30, {8*1152}\ns_add_u32 m0, s44, {j*1024}\nbuffer_load_dwordx4 v{VD+j}, s[12:15], s40 offen lds")
        kstep, k0 = 128, 0
    else:
        k(f"s_mul_i32 s32, s{C}, 288\ns_mov_b32 s33, 3641\ns_mul_i32 s31, s57, {9*64}\ns_mul_i32 s44, s57, {9*1024}\ns_add_u32 s44, s44, {WOFF}\nv_add_u32 v1, s31, v{VL}")
        k("s_mov_b32 s40, 4608")
        k.srd(12, 8, 576 * 9216)
        for j in range(9):
            k(f"""
            v_add_u32 v3, {64*j}, v1
            v_mul_lo_u32 v4, v3, s33
            v_lshrrev_b32 v4, 16, v4
            v_mul_u32_u24 v5, 18, v4
            v_sub_u32 v5, v3, v5
            v_and_b32 v6, 0x33, v4
            v_bfe_u32 v7, v4, 2, 1
            v_lshl_or_b32 v6, v7, 3, v6
            v_bfe_u32 v7, v4, 3, 1
            v_lshl_or_b32 v6, v7, 2, v6
            v_mul_u32_u24 v6, 9216, v6
            v_lshl_add_u32 v6, v5, 4, v6
            v_add_u32 v{VD+j}, s32, v6
            s_add_u32 m0, s44, {j*1024}
            buffer_load_dwordx4 v{VD+j}, s[12:15], s40 offen lds
            """)
        kstep = 64 * 9216
    k("s_mov_b32 s41, s44\ns_mov_b32 s43, 0")
    tch = 0
    TV = 209
    def issue(touch=True):
        L = []
        for j in range(8 if typ == 'X' else 9):
            L.append((f"s_add_u32 m0, s41, {j*1024}\n" if j else "s_mov_b32 m0, s41\n") + f"buffer_load_dwordx4 v{VD+j}, s[12:15], s40 offen {'sc1 ' if typ == 'X' else ''}lds")
        if tch and touch: L.append(f"s_cmp_lt_u32 s49, s51\ns_cselect_b32 s52, s49, {OOB}\nbuffer_load_dword v254, v{TV}, s[28:31], s52 offen\ns_add_u32 s49, s49, s50")
        L.append(f"s_add_u32 s40, s40, {kstep}\ns_add_u32 s41, s41, {SLOT}\ns_cmp_ge_u32 s41, {SLOT*NS}\ns_cselect_b32 s41, s44, s41")
        L.append(f"s_add_u32 s43, s43, 1\ns_cmp_eq_u32 s43, 9\ns_cselect_b32 s40, 0, s40")
        return L
    k("\n".join(issue(False)[n:]))
    k("\n".join(issue(False)))
    if o.get('p0'): k.stamp(5)
    k(f"s_waitcnt vmcnt({2*n})")
    yield
    if typ == "X": k(f"s_load_dwordx2 s[46:47], s[0:1], {ARG['w_sp']}\ns_load_dwordx2 s[54:55], s[0:1], {ARG['w_out']}")
    n0 = n; n = n + tch
    VX0, VX1, VW, VX0b, VX1b, VWb = 210, 211, 212, 213, 214, 215
    p1_addr(k, VX0b, VX1b, VWb, 57)
    CA = 44
    WF = 56
    ON = 108
    T = 116
    for i in range(4): k(f"v_mov_b32 v{ON+i}, 0x3f803f80")
    for i in range(12): k(f"v_mov_b32 v{CA+i}, 0")
    k(f"s_lshl_b32 s36, s57, 5\nv_add_u32 v{VWb}, s36, v{VWb}\nv_mov_b32 v{VW}, v{VWb}\ns_mov_b32 s34, 0\ns_mov_b32 s35, 0")
    k.srd(24, 4, 2048 * 16, add=WS_RS)
    k(f"s_lshl_b32 s36, s{P}, 7\ns_and_b32 s37, s57, 1\ns_lshl_b32 s37, s37, 6\ns_add_u32 s36, s36, s37\ns_lshl_b32 s36, s36, 4\nv_lshlrev_b32 v{T+8}, 4, v{VL}")
    k(f"""
    s_sub_u32 s56, 7, s{W}
    s_lshr_b32 s58, s56, 1
    s_xor_b32 s56, s56, s58
    s_lshl_b32 s58, s2, 1
    s_add_u32 s58, s58, s56
    s_add_u32 s59, s2, 512
    s_cmp_eq_u32 s56, 2
    s_cselect_b32 s58, s59, s58
    s_cmp_eq_u32 s56, 3
    s_cselect_b32 s58, 1000, s58
    s_lshl_b32 s59, s56, 13
    s_add_u32 s59, s59, {KTAB}
    """)
    adv = f"s_add_u32 s34, s34, {SLOT}\ns_cmp_ge_u32 s34, {SLOT*NS}\ns_cselect_b32 s34, 0, s34\nv_add_u32 v{VW}, s34, v{VWb}"
    nt = 3 if typ == "W" else 2
    smem = [0]
    def stage(z2, do_issue, wait, fill=None, twice=False):
        k(f"s_waitcnt vmcnt({wait}){' lgkmcnt(0)' if z2 else ''}\ns_barrier")
        if not z2 and o.get('spat') == 20:
            for _ in range(o.get('nsm', 11)):
                if smem[0] < 64: k(f"s_load_dword s45, s[38:39], {smem[0]*128}"); smem[0] += 1
        rd_ = []; mf = []
        if z2:
            for hf in range(2):
                for t in range(nt):
                    f = WF + (hf * 3 + t) * 4
                    for rd in range(2): rd_.append(f"ds_read_b64_tr_b16 v[{f+2*rd}:{f+2*rd+1}], v{VW} offset:{hf*32*288 + rd*8*288 + t*128}")
                    mf.append(f"v_mfma_f32_16x16x32_bf16 v[{CA+4*t}:{CA+4*t+3}], v[{ON}:{ON+3}], v[{f}:{f+3}], v[{CA+4*t}:{CA+4*t+3}]")
        dm = issue() if do_issue else []
        if twice: dm = dm + issue()
        if z2:
            k("\n".join(rd_ + dm[:2]))
            k("s_waitcnt lgkmcnt(0)")
            k("\n".join(front(dm[2:], mf)))
            k(adv)
        else: k("\n".join(dm))
        if fill: k("\n".join(fill))
        k("s_add_u32 s35, s35, 1")
    def gran_check(vd, va, so, full):
        L = k.label("rp"); D = k.label("rd")
        k(f"""
        s_mov_b32 s62, 0
        {"" if full else xm(0xffffffff)}
        {L}:
        v_cmp_ne_u32 vcc, s{NON}, v{vd+1}
        v_cmp_ne_u32 s[60:61], s{NON}, v{vd+3}
        s_or_b64 vcc, vcc, s[60:61]
        s_cbranch_vccz {D}
        s_add_u32 s62, s62, 1
        s_cmp_ge_u32 s62, {SPIN}
        s_cbranch_scc1 {D}
        buffer_load_dwordx4 v[{vd}:{vd+3}], v{va}, s[24:27], s{so} offen sc1
        s_waitcnt vmcnt(0)
        s_branch {L}
        {D}:
        """)
    if o.get('p0'):
        k.stamp(7); k(f"s_waitcnt vmcnt({n0 + 2})"); k.stamp(8)
    stage(True, True, n0 + 2, twice=True)
    k(f"fz_l1{typ}a:")
    stage(True, True, 2 * n0)
    L = k.label("gr"); k(f"s_cmp_eq_u32 s35, 2\ns_cbranch_scc0 {L}"); rowgran(k, 24, T); k(f"{L}:")
    k(f"s_cmp_lt_u32 s35, 6\ns_cbranch_scc1 fz_l1{typ}a")
    t = 0
    def sptouch():
        k.srd(28, 46, 2048 * 4096)
        k(f"s_lshl_b32 s33, s2, 15\ns_sub_u32 s37, s{W}, 6\ns_lshl_b32 s37, s37, 10\ns_add_u32 s33, s33, s37\nv_lshrrev_b32 v{T+2}, 3, v{VL}\nv_lshlrev_b32 v{T+2}, 12, v{T+2}\nv_and_b32 v{T+3}, 7, v{VL}\nv_lshl_add_u32 v{T+2}, v{T+3}, 7, v{T+2}")
        for i in range(2): k(f"buffer_load_dword v254, v{T+2}, s[28:31], s33 offen offset:{i*2048}")
    if typ == "X":
        k(f"buffer_load_dwordx4 v[{T+4}:{T+7}], v{T+8}, s[24:27], s36 offen sc1")
        k.srd(28, 8, 576 * 9216)
        k(f"""
        s_mul_i32 s33, s2, {3*9216}
        s_cmp_lt_u32 s2, 192
        s_cselect_b32 s33, s33, {OOB}
        s_sub_u32 s37, s{W}, 6
        s_mul_i32 s37, s37, 54
        v_add_u32 v{T+2}, s37, v{VL}
        v_mul_u32_u24 v{T+3}, 57, v{T+2}
        v_lshrrev_b32 v{T+3}, 11, v{T+3}
        v_mul_u32_u24 v{T+3}, {9216 - 36*128}, v{T+3}
        v_lshl_add_u32 v{T+2}, v{T+2}, 7, v{T+3}
        {xm((1 << 54) - 1)}
        buffer_load_dword v254, v{T+2}, s[28:31], s33 offen
        s_mov_b64 exec, -1
        """)
        assert all((l * 57) >> 11 == l // 36 for l in range(108))
        sptouch(); t = 3
    stage(True, False, 2 * n + t + (1 if t else 0))
    stage(True, False, n + t + (1 if t else 0))
    if typ == "X":
        k(f"s_waitcnt vmcnt({t})")
        gran_check(T + 4, T + 8, 36, True)
        k.srd(12, 4, XBYTES, add=WS_XN)
        k(f"""
        v_lshlrev_b32 v{T}, 2, v{VL}
        s_sub_u32 s33, s{W}, 6
        s_lshl_b32 s33, s33, 8
        s_add_u32 s33, s33, {ROWA}
        v_add_u32 v{T}, s33, v{T}
        ds_write_b32 v{T}, v{T+4}
        ds_write_b32 v{T}, v{T+6} offset:512
        """)
    stage(True, False, t)
    k(f"s_lshl_b32 s33, s57, 6\ns_add_u32 s33, s33, {COLP}\nv_lshlrev_b32 v{T}, 2, v{VL}\nv_add_u32 v{T}, s33, v{T}\n{xm(0xffff)}")
    for t in range(nt): k(f"ds_write_b32 v{T}, v{CA+4*t} offset:{t*256}")
    k("s_mov_b64 exec, -1")
    if o.get('early9', 0):
        for _ in range(o.get('n9', 1)): k("\n".join(issue()))
    k("s_waitcnt lgkmcnt(0)\ns_barrier")
    k.stamp(3)
    for _ in range(3 - (o.get('n9', 1) if o.get('early9', 0) else 0)): k("\n".join(issue()))
    k("\n".join(issue()))
    ex = 0
    if typ == "X":
        pass
    else:
        k.srd(24, 4, XBYTES, add=WS_XN)
        k(f"""
        s_lshl_b32 s36, s{P}, 1
        s_lshr_b32 s33, s{C}, 3
        s_add_u32 s36, s36, s33          ; tp
        s_and_b32 s37, s{C}, 7           ; e
        s_lshl_b32 s33, s36, 1
        s_add_u32 s33, s33, s57
        s_mul_i32 s33, s33, {32*1152}
        s_mul_i32 s38, s37, 144
        s_add_u32 s33, s33, s38
        s_mov_b32 s38, {(1 << 16) // 9 + 1}
        s_mul_i32 s39, s57, 5120
        s_add_u32 s39, s39, {XTS}
        """)
        for i in range(5):
            k(f"""
            v_add_u32 v3, {64*i}, v{VL}
            v_mul_lo_u32 v4, v3, s38
            v_lshrrev_b32 v4, 16, v4
            v_mul_u32_u24 v5, 9, v4
            v_sub_u32 v5, v3, v5
            v_mul_u32_u24 v4, 1152, v4
            v_lshl_add_u32 v4, v5, 4, v4
            s_add_u32 m0, s39, {i*1024}
            buffer_load_dwordx4 v4, s[24:27], s33 offen sc1 lds
            """)
        k.srd(24, 4, XBYTES, add=WS_XT)
        k(f"""
        v_bfe_u32 v3, v{VL}, 2, 2
        v_lshrrev_b32 v4, 4, v{VL}
        v_lshl_add_u32 v3, v4, 3, v3     ; row = 8g + r
        v_mul_u32_u24 v3, 144, v3
        v_and_b32 v5, 3, v{VL}
        v_lshl_add_u32 v3, v5, 3, v3
        v_add_u32 v3, s39, v3
        v_and_b32 v5, 15, v{VL}
        v_lshlrev_b32 v5, 12, v5
        v_lshl_add_u32 v5, v4, 4, v5     ; d*4096 + g*16
        s_mul_i32 s39, s37, {72*4096}
        s_lshl_b32 s38, s36, 7
        s_add_u32 s39, s39, s38
        s_lshl_b32 s38, s57, 6
        s_add_u32 s39, s39, s38
        s_lshl_b32 s37, s37, 5
        s_add_u32 s36, s36, s37
        s_lshl_b32 s36, s36, 1
        s_add_u32 s36, s36, s57
        s_lshl_b32 s36, s36, 2
        s_add_u32 s36, s36, {FL_T}
        """)
        ex = 5
        xt2 = [f"s_waitcnt vmcnt({n})"]
        for dt in range(5):
            for rd in range(2): xt2.append(f"ds_read_b64_tr_b16 v[{56+4*dt+2*rd}:{57+4*dt+2*rd}], v3 offset:{4*rd*144 + dt*32}")
        xt2.append("s_waitcnt lgkmcnt(0)")
        for dt in range(5):
            if dt == 4: xt2.append(xm(0x00ff00ff00ff00ff))
            xt2.append(f"buffer_store_dwordx4 v[{56+4*dt}:{59+4*dt}], v5, s[24:27], s39 offen sc1\ns_add_u32 s39, s39, 65536")
        xt2.append("s_mov_b64 exec, -1")
    if o.get('spat') == 20:
        k(f"s_load_dwordx2 s[38:39], s[0:1], {ARG['w_sp']}\ns_lshl_b32 s33, s2, 2\ns_add_u32 s33, s33, s57\ns_lshl_b32 s33, s33, 13\ns_waitcnt lgkmcnt(0)\ns_add_u32 s38, s38, s33\ns_addc_u32 s39, s39, 0")
        for _ in range(o.get('nsm0', 12)): k(f"s_load_dword s45, s[38:39], {smem[0]*128}"); smem[0] += 1
    ka = split(kgen_addr(k, o), 4)
    pub = [f"""s_add_u32 s28, s4, {WS_ST}
    s_addc_u32 s29, s5, 0
    s_mov_b32 s30, {16*16*2048}
    s_mov_b32 s31, 0x20000
    v_and_b32 v{T}, 31, v{VL}
    v_lshlrev_b32 v{T+1}, 2, v{T}
    s_lshl_b32 s33, s57, 8
    s_add_u32 s33, s33, {WPRIV}
    v_add_u32 v{T+1}, s33, v{T+1}
    ds_read_b32 v{T+4}, v{T+1}
    ds_read_b32 v{T+6}, v{T+1} offset:128
    v_mov_b32 v{T+5}, s{NON}
    v_mov_b32 v{T+7}, s{NON}
    s_lshl_b32 s33, s{P}, 4
    s_add_u32 s33, s33, s{C}
    s_lshl_b32 s33, s33, 11
    s_lshl_b32 s53, s57, 9
    s_add_u32 s33, s33, s53
    v_lshlrev_b32 v{T}, 4, v{T}
    s_waitcnt lgkmcnt(0)
    {xm(0xffffffff)}
    buffer_store_dwordx4 v[{T+4}:{T+7}], v{T}, s[28:31], s33 offen sc1
    s_mov_b64 exec, -1"""]
    stage(False, False, 3 * n + tch + ex, pub + ka[0])
    if typ == "X":
        for i in range(3): stage(False, True, 2 * n + tch + ex, ka[1 + i])
    else:
        stage(False, True, 2 * n + ex, xt2 + ka[1])
        for i in range(2): stage(False, True, 2 * n, ka[2 + i])
    stage(False, True, 2 * n + tch)
    if typ == "W":
        L = k.label("xf")
        k(f"v_mov_b32 v{T}, 0\nv_mov_b32 v{T+1}, s{NON}\ns_mov_b64 exec, 1\nbuffer_store_dword v{T+1}, v{T}, s[{FLS}:{FLS+3}], s36 offen sc1\ns_mov_b64 exec, -1\n{L}:")
    stage(False, True, 2 * n + tch)
    e2 = 0
    if typ == "X":
        k.srd(28, 54, WOBYTES)
        k(f"s_mul_i32 s33, s2, {81*128}\ns_sub_u32 s37, s{W}, 6\ns_mul_i32 s37, s37, {41*128}\ns_add_u32 s33, s33, s37\nv_lshlrev_b32 v{T+2}, 7, v{VL}\n{xm((1 << 41) - 1)}\nbuffer_load_dword v254, v{T+2}, s[28:31], s33 offen\ns_mov_b64 exec, -1")
        e2 = 1
    kgen_setup(k, o)
    stage(False, False, 2 * n + tch + 14 + e2)
    Q = 56
    k.srd(24, 4, 16 * 16 * 2048, add=WS_ST)
    k(f"""
    v_and_b32 v{T}, 31, v{VL}
    v_lshlrev_b32 v{T+1}, 2, v{T}
    v_lshlrev_b32 v{T}, 4, v{T}
    v_lshrrev_b32 v{T+2}, 5, v{VL}
    v_lshl_add_u32 v{T}, v{T+2}, 14, v{T}
    s_lshl_b32 s52, s{P}, 15
    s_lshl_b32 s53, s57, 9
    s_add_u32 s52, s52, s53
    s_lshl_b32 s33, s57, 7
    s_add_u32 s33, s33, {ROWA}
    v_add_u32 v{T+1}, s33, v{T+1}
    s_mov_b32 s62, 0
    """)
    def sweep():
        for c2 in range(8): k(f"s_add_u32 s53, s52, {c2*2048}\nbuffer_load_dwordx4 v[{Q+4*c2}:{Q+3+4*c2}], v{T}, s[24:27], s53 offen sc1")
    sweep()
    stage(False, False, n + tch + 14 + 8 + e2)
    stage(False, False, 0)
    L = k.label("sp"); D = k.label("spd")
    k(f"{L}:\nv_xor_b32 v{T+5}, s{NON}, v{Q+1}")
    for c2 in range(8):
        for hh in range(2):
            if c2 == 0 and hh == 0: continue
            k(f"v_xor_b32 v{T+6+(c2+hh)%2}, s{NON}, v{Q+1+4*c2+2*hh}\nv_or_b32 v{T+5}, v{T+5}, v{T+6+(c2+hh)%2}")
    k(f"v_cmp_ne_u32 vcc, 0, v{T+5}\ns_cbranch_vccz {D}\ns_add_u32 s62, s62, 1\ns_cmp_ge_u32 s62, {SPIN}\ns_cbranch_scc1 {D}")
    sweep()
    k(f"s_waitcnt vmcnt(0)\ns_branch {L}\n{D}:")
    for c2 in range(1, 8): k(f"v_add_f32 v{Q}, v{Q}, v{Q+4*c2}\nv_add_f32 v{Q+2}, v{Q+2}, v{Q+2+4*c2}")
    m, v = Q, Q + 2
    k(f"""
    v_mov_b32 v{Q+1}, v{m}
    v_mov_b32 v{Q+3}, v{v}
    v_permlane32_swap_b32 v{m}, v{Q+1}
    v_permlane32_swap_b32 v{v}, v{Q+3}
    v_add_f32 v{m}, v{m}, v{Q+1}
    v_add_f32 v{v}, v{v}, v{Q+3}
    v_mul_f32 v{m}, {1.0/2304!r}, v{m}
    v_mul_f32 v{v}, {1.0/2304!r}, v{v}
    v_fma_f32 v{v}, -v{m}, v{m}, v{v}
    v_max_f32 v{v}, 0, v{v}
    """)
    ln_finish(k, m, v)
    k(f"v_mul_f32 v{m}, -v{m}, v{v}\nds_write_b32 v{T+1}, v{m}\nds_write_b32 v{T+1}, v{v} offset:512\ns_waitcnt lgkmcnt(0)\ns_barrier")
    k.stamp(6)
    k("s_branch fz_loader")

def p1_consumer(k, o):
    A2, A1 = 0, 72
    FX, FY = 144, 188
    VX0, VX1, VW, VX0b, VX1b, VWb = 232, 233, 234, 235, 236, 237
    NMR, RR = 238, 240
    VC1, VONE = 242, 244
    V16 = 246; VPG, VPR = 247, 248
    k(f"s_load_dwordx2 s[26:27], s[0:1], {ARG['w_out']}\ns_load_dwordx2 s[24:25], s[0:1], {ARG['w_sp']}\ns_lshl_b32 s30, s2, 2\ns_add_u32 s30, s30, s{W}")
    k(f"s_lshl_b32 s33, s30, 13\nv_lshlrev_b32 v250, 7, v{VL}\nv_add_u32 v250, s33, v250")
    p1_addr(k, VX0b, VX1b, VWb, W)
    k(f"""
    v_mov_b32 v{VX0}, v{VX0b}
    v_mov_b32 v{VX1}, v{VX1b}
    v_mov_b32 v{VW}, v{VWb}
    s_mov_b32 s34, 0
    s_mov_b32 s56, {fbits(C2)}
    s_mov_b32 s57, {fbits(C2)}
    v_mov_b32 v{VC1}, {fbits(C1)}
    v_mov_b32 v{VC1+1}, {fbits(C1)}
    v_mov_b32 v{VONE}, 1.0
    v_mov_b32 v{VONE+1}, 1.0
    v_lshlrev_b32 v{V16}, 4, v{VL}
    s_lshl_b32 s33, s{W}, 8
    s_add_u32 s33, s33, {WPRIV}
    v_lshrrev_b32 v3, 4, v{VL}
    v_lshlrev_b32 v3, 4, v3
    v_add_u32 v{VPG}, s33, v3
    v_and_b32 v3, 31, v{VL}
    v_lshlrev_b32 v3, 2, v3
    v_add_u32 v{VPR}, s33, v3
    s_setprio {o.get('prio1', 2)}
    """)
    if o.get('touch', 1):
        k(f"""
        v_mul_u32_u24 v3, 43, v{VL}
        v_lshrrev_b32 v3, 8, v3
        v_mul_u32_u24 v4, 6, v3
        v_sub_u32 v4, v{VL}, v4
        s_lshl_b32 s31, s30, 1
        v_add_u32 v3, s31, v3
        v_mul_u32_u24 v3, 1152, v3
        v_lshl_add_u32 v3, v4, 7, v3
        s_mul_i32 s31, s30, 14
        v_add_u32 v7, s31, v{VL}
        v_min_u32 v7, 13823, v7
        s_mov_b32 s32, 29128
        v_mul_lo_u32 v4, v7, s32
        v_lshrrev_b32 v4, 20, v4
        v_mul_u32_u24 v5, 36, v4
        v_sub_u32 v5, v7, v5
        v_mul_u32_u24 v4, 9216, v4
        v_lshl_add_u32 v4, v5, 7, v4
        v_add_u32 v4, {192*9216 + 4608}, v4
        {xm(0xfff)}
        global_load_dword v254, v3, s[6:7] offset:384
        {xm((1 << 14) - 1)}
        global_load_dword v254, v4, s[8:9]
        s_mov_b64 exec, -1
        """)

    if o.get('p0'): k.stamp(7)
    k(f"v_mov_b32 v4, {CNT}\nv_mov_b32 v5, 0\nds_write_b32 v4, v5\ns_waitcnt vmcnt({2 if o.get('touch', 1) else 0})")
    if o.get('p0'): k.stamp(8)
    yield
    k.srd(36, 4, 2048 * 16, add=WS_RS)
    k("s_waitcnt lgkmcnt(0)")
    def reads(F, half):
        vx = VX0 if half == 0 else VX1
        r = [f"ds_read_b128 v[{F+4*tb}:{F+4*tb+3}], v{vx} offset:{tb*2048}" for tb in range(2)]
        if o.get('nord1') == 1: return r
        if o.get('nord1') == 2: return [f"ds_read_b128 v[{F+8+4*i}:{F+8+4*i+3}], v{V16} offset:{i*1024}" for i in range(9)] + r
        for i in range(9):
            for rd in range(2):
                b = F + 8 + 4 * i + 2 * rd
                r.append(f"ds_read_b64_tr_b16 v[{b}:{b+1}], v{VW} offset:{half*32*288 + rd*8*288 + i*32}")
        return r
    def mfmas(F, z2, first=False):
        out = []; ACC = A2 if z2 else A1
        for i in range(9):
            for tb in range(2):
                a = ACC + (i * 2 + tb) * 4
                wf = f"v[{F+8+4*i}:{F+8+4*i+3}]"; xf = f"v[{F+4*tb}:{F+4*tb+3}]"
                A, B = (xf, wf) if z2 else (wf, xf)
                out.append(f"v_mfma_f32_16x16x32_bf16 v[{a}:{a+3}], {A}, {B}, {'0' if first else 'v[%d:%d]' % (a, a+3)}")
        return out
    adv = [f"s_add_u32 s34, s34, {SLOT}\ns_cmp_ge_u32 s34, {SLOT*NS}\ns_cselect_b32 s34, 0, s34",
           f"v_add_u32 v{VX0}, s34, v{VX0b}\nv_add_u32 v{VX1}, s34, v{VX1b}\nv_add_u32 v{VW}, s34, v{VWb}"]
    def gemm(z2):
        name = f"fz_g1{'a' if z2 else 'b'}"
        if o.get('p0') and z2: k.stamp(9)
        k("s_barrier")
        k.stamp(2 if z2 else 5)
        k("\n".join(reads(FX, 0)))
        k("s_waitcnt lgkmcnt(0)")
        k("\n".join(front2(mfmas(FX, z2, True), reads(FY, 1) + adv, o.get('per', 2))))
        k(f"s_mov_b32 s35, 1\ns_waitcnt lgkmcnt(0)\n{name}:\ns_barrier")
        k("\n".join(front2(mfmas(FY, z2), reads(FX, 0), o.get('per', 2))))
        k("s_waitcnt lgkmcnt(0)")
        k("\n".join(front2(mfmas(FX, z2), reads(FY, 1) + adv + ["s_add_u32 s35, s35, 1"], o.get('per', 2))))
        if z2:
            k("s_cmp_eq_u32 s35, 2\ns_cbranch_scc0 fz_nrg\ns_waitcnt vmcnt(0)"); rowgran(k, 36, 249); k("fz_nrg:")
            if o.get('spat', 9) < 9:
                k(f"s_cmp_eq_u32 s35, {o['spat']}\ns_cbranch_scc0 fz_nsp\nglobal_load_dword v254, v250, s[24:25]\nfz_nsp:")
        k(f"s_cmp_lt_u32 s35, 9\ns_waitcnt lgkmcnt(0)\ns_cbranch_scc1 {name}")
        k("\n".join(mfmas(FY, z2)))
    gemm(True)
    k.stamp(3)
    SU, SQ = FX, FX + 8
    CP = FX + 16
    T = 196
    PS, PQ = 212, 220
    k(f"""
    v_and_b32 v{T}, 15, v{VL}
    v_lshlrev_b32 v{T}, 2, v{T}
    v_add_u32 v{T+1}, {COLP}, v{T}
    s_lshl_b32 s33, s{W}, 7
    s_add_u32 s33, s33, {ROWA}
    v_add_u32 v{T}, s33, v{T}
    v_lshrrev_b32 v{T+2}, 4, v{VL}
    v_lshlrev_b32 v{T+2}, 4, v{T+2}
    v_add_u32 v{T+2}, s33, v{T+2}
    s_barrier
    ds_read_b128 v[{SU}:{SU+3}], v{T+2}
    ds_read_b128 v[{SU+4}:{SU+7}], v{T+2} offset:64
    ds_read_b128 v[{SQ}:{SQ+3}], v{T+2} offset:512
    ds_read_b128 v[{SQ+4}:{SQ+7}], v{T+2} offset:576
    """)
    for i in range(9): k(f"ds_read_b32 v{CP+4*i}, v{T+1} offset:{i*64}")
    k("s_waitcnt lgkmcnt(0)")
    for i in range(9):
        pairs = [A2 + (i * 2) * 4, A2 + (i * 2) * 4 + 2, A2 + (i * 2 + 1) * 4, A2 + (i * 2 + 1) * 4 + 2]
        cs = CP + 4 * i
        for n, a in enumerate(pairs): k(f"v_pk_mul_f32 v[{T+2*n}:{T+2*n+1}], v[{SU+2*n}:{SU+2*n+1}], v[{cs}:{cs+1}] op_sel_hi:[1,0]")
        for n, a in enumerate(pairs): k(f"v_pk_fma_f32 v[{a}:{a+1}], v[{a}:{a+1}], v[{SQ+2*n}:{SQ+2*n+1}], v[{T+2*n}:{T+2*n+1}]")
        gelu_group(k, pairs, T, 56, VC1, VONE)
        for n, a in enumerate(pairs):
            if i == 0: k(f"v_pk_mul_f32 v[{PQ+2*n}:{PQ+2*n+1}], v[{a}:{a+1}], v[{a}:{a+1}]\nv_mov_b32 v{PS+2*n}, v{a}\nv_mov_b32 v{PS+2*n+1}, v{a+1}")
            else: k(f"v_pk_fma_f32 v[{PQ+2*n}:{PQ+2*n+1}], v[{a}:{a+1}], v[{a}:{a+1}], v[{PQ+2*n}:{PQ+2*n+1}]\nv_pk_add_f32 v[{PS+2*n}:{PS+2*n+1}], v[{PS+2*n}:{PS+2*n+1}], v[{a}:{a+1}]")
    dpp_sum16(k, list(range(PS, PS + 16)))
    k(f"""
    {xm(0x0001000100010001)}
    ds_write_b128 v{VPG}, v[{PS}:{PS+3}]
    ds_write_b128 v{VPG}, v[{PS+4}:{PS+7}] offset:64
    ds_write_b128 v{VPG}, v[{PQ}:{PQ+3}] offset:128
    ds_write_b128 v{VPG}, v[{PQ+4}:{PQ+7}] offset:192
    s_mov_b64 exec, -1
    s_waitcnt lgkmcnt(0)
    """)
    k.stamp(4)
    gemm(False)
    k.stamp(6)
    T = 196
    SU, SQ = 148, 156
    k(f"""
    v_lshrrev_b32 v249, 4, v{VL}
    v_lshlrev_b32 v249, 4, v249
    s_lshl_b32 s33, s{W}, 7
    s_add_u32 s33, s33, {ROWA}
    v_add_u32 v249, s33, v249
    """)
    k.srd(36, 4, FRAG9, add=WS_Z2)
    k(f"""
    s_mul_i32 s32, s{C}, {9*64}
    s_lshl_b32 s33, s{P}, 2
    s_add_u32 s33, s33, s{W}         ; kb
    s_add_u32 s32, s32, s33
    s_lshl_b32 s32, s32, 10
    s_lshl_b32 s34, s{C}, 6
    s_add_u32 s34, s34, s33
    s_lshl_b32 s34, s34, 2
    s_add_u32 s34, s34, {FL_2}
    s_barrier
    ds_read_b128 v[{SU}:{SU+3}], v249
    ds_read_b128 v[{SU+4}:{SU+7}], v249 offset:64
    ds_read_b128 v[{SQ}:{SQ+3}], v249 offset:512
    ds_read_b128 v[{SQ+4}:{SQ+7}], v249 offset:576
    s_waitcnt lgkmcnt(0)
    """)
    k.stamp(7)
    for i in range(9):
        oo = 164 + (i % 4) * 4
        for sb in range(2):
            a = A2 + (i * 2 + sb) * 4
            for hh in range(2):
                k(f"v_pk_fma_f32 v[{a+2*hh}:{a+2*hh+1}], v[{a+2*hh}:{a+2*hh+1}], v[{SQ+4*sb+2*hh}:{SQ+4*sb+2*hh+1}], v[{SU+4*sb+2*hh}:{SU+4*sb+2*hh+1}]")
            for hh in range(2): k(f"v_cvt_pk_bf16_f32 v{oo+2*sb+hh}, v{a+2*hh}, v{a+2*hh+1}")
        k(f"v_permlane16_swap_b32 v{oo}, v{oo+2}\nv_permlane16_swap_b32 v{oo+1}, v{oo+3}")
        k(f"buffer_store_dwordx4 v[{oo}:{oo+3}], v{V16}, s[36:39], s32 offen sc1\ns_add_u32 s32, s32, 65536")
    k.stamp(8)
    k.srd(44, 26, WOBYTES)
    side_issue(k, o)
    k(f"v_mov_b32 v{T+10}, 0\nv_mov_b32 v{T+11}, s{NON}\nv_mov_b32 v{T+12}, {CNT}\nv_mov_b32 v{T+13}, 1\ns_waitcnt vmcnt(5)\ns_mov_b64 exec, 1\nds_add_u32 v{T+12}, v{T+13}\nbuffer_store_dword v{T+11}, v{T+10}, s[{FLS}:{FLS+3}], s34 offen sc1\ns_mov_b64 exec, -1")
    k.stamp(9)
    side_run(k, o)
    k("s_branch fz_cons")

def side_issue(k, o):
    k(f"""
    s_lshl_b32 s53, s{W}, 8
    s_add_u32 s53, s53, s2
    s_mul_i32 s54, s53, 52429
    s_lshr_b32 s54, s54, 18
    s_mul_i32 s55, s54, 5
    s_sub_u32 s55, s53, s55          ; q
    s_lshr_b32 s33, s54, 4
    s_and_b32 s35, s54, 15
    s_mul_i32 s35, s35, 144
    s_lshl_b32 s52, s55, 5
    s_add_u32 s35, s35, s52
    s_mul_i32 s35, s35, 1152
    s_mul_i32 s33, s33, 144
    s_add_u32 s35, s35, s33
    s_cmp_lt_u32 s53, 640
    s_cselect_b32 s35, s35, {OOB}
    s_mul_i32 s52, s{W}, 5120
    s_add_u32 s52, s52, {RPK}
    s_mov_b32 s33, {(1 << 16) // 9 + 1}
    """)
    for i in range(5):
        k(f"""
        v_add_u32 v232, {64*i}, v{VL}
        v_mul_lo_u32 v233, v232, s33
        v_lshrrev_b32 v233, 16, v233
        v_mul_u32_u24 v234, 9, v233
        v_sub_u32 v234, v232, v234
        v_mul_u32_u24 v233, 1152, v233
        v_lshl_add_u32 v233, v234, 4, v233
        s_add_u32 m0, s52, {i*1024}
        buffer_load_dwordx4 v233, s[44:47], s35 offen lds
        """)

def side_run(k, o):
    k(f"s_cmp_ge_u32 s53, 640\ns_cbranch_scc1 fz_sr9")
    k.srd(36, 4, WOBYTES, add=WS_WO)
    k(f"""
    v_bfe_u32 v3, v{VL}, 2, 2
    v_and_b32 v4, 3, v{VL}
    v_lshrrev_b32 v7, 4, v{VL}
    v_lshl_add_u32 v3, v7, 2, v3
    v_mul_u32_u24 v3, 144, v3
    v_lshl_add_u32 v3, v4, 3, v3
    v_add_u32 v3, s52, v3
    s_waitcnt vmcnt(1)
    """)
    for dt in range(5):
        k(f"ds_read_b64_tr_b16 v[{10+4*dt}:{11+4*dt}], v3 offset:{dt*32}")
        k(f"ds_read_b64_tr_b16 v[{12+4*dt}:{13+4*dt}], v3 offset:{dt*32 + 16*144}")
    k(f"""
    v_lshlrev_b32 v8, 4, v{VL}
    v_lshlrev_b32 v9, 3, v{VL}
    v_and_b32 v34, 7, v{VL}
    v_lshl_add_u32 v34, v7, 3, v34
    v_lshlrev_b32 v35, 4, v34
    v_lshlrev_b32 v34, 3, v34
    s_mul_i32 s33, s54, 20736
    s_mul_i32 s35, s55, 4608
    s_add_u32 s33, s33, s35
    s_add_u32 s35, s33, 4096
    s_lshl_b32 s59, s54, 3
    s_add_u32 s59, s59, s55
    s_lshl_b32 s59, s59, 2
    s_add_u32 s59, s59, {FL_W}
    s_cmp_eq_u32 s55, 4
    s_waitcnt lgkmcnt(0)
    s_cbranch_scc1 fz_sr2
    """)
    for dt in range(4): k(f"buffer_store_dwordx4 v[{10+4*dt}:{13+4*dt}], v8, s[36:39], s33 offen offset:{dt*1024} sc1")
    k(xm(0x00ff00ff00ff00ff))
    k("buffer_store_dwordx4 v[26:29], v35, s[36:39], s35 offen sc1\ns_branch fz_sr3\nfz_sr2:")
    for dt in range(4): k(f"buffer_store_dwordx2 v[{10+4*dt}:{11+4*dt}], v9, s[36:39], s33 offen offset:{dt*512} sc1")
    k(xm(0x00ff00ff00ff00ff))
    k("buffer_store_dwordx2 v[26:27], v34, s[36:39], s33 offen offset:2048 sc1\nfz_sr3:\ns_mov_b64 exec, -1")
    k("fz_sr9:")

def phase2(k, o):
    NST = 32
    k("fz_cons:")
    k.stamp(10)
    ACC = 0; ZR = 72; FX = 144; FY = 188
    VA, VB0, VB1, VAb, VB0b, VB1b = 232, 233, 234, 235, 236, 239
    GT = [240, 241, 246, 247, 248, 249]; VC2 = 252; BS = [253, 251]
    k(f"""
    s_load_dwordx2 s[8:9], s[0:1], {ARG['b_sp']}
    s_lshl_b32 s30, s{P}, 3
    s_lshl_b32 s31, s{W}, 1
    s_add_u32 s30, s30, s31
    s_lshl_b32 s31, s30, 4
    s_add_u32 s31, s31, s{C}
    s_mul_i32 s31, s31, 4608
    s_add_u32 s32, s31, {16*4608}
    v_and_b32 v3, 15, v{VL}
    v_lshrrev_b32 v{VB0b}, 4, v{VL}
    v_lshrrev_b32 v{VB1b}, 1, v3
    v_xor_b32 v{VB0b}, v{VB0b}, v{VB1b}
    v_lshlrev_b32 v{VB0b}, 4, v{VB0b}
    v_lshl_add_u32 v{VB0b}, v3, 7, v{VB0b}
    s_lshl_b32 s34, s{W}, 12
    s_add_u32 s34, s34, 18432
    v_add_u32 v{VB0b}, s34, v{VB0b}
    v_xor_b32 v{VB1b}, 64, v{VB0b}
    v_lshlrev_b32 v{VAb}, 4, v{VL}
    v_add_u32 v{VA}, {2*SLOT}, v{VAb}
    v_add_u32 v{VB0}, {2*SLOT}, v{VB0b}
    v_add_u32 v{VB1}, {2*SLOT}, v{VB1b}
    s_lshl_b32 s34, s30, 4
    v_add_u32 v3, s34, v3
    v_lshlrev_b32 v3, 1, v3
    v_mov_b32 v{VC2}, {fbits(C2)}
    s_waitcnt lgkmcnt(0)
    global_load_ushort v{BS[0]}, v3, s[8:9]
    global_load_ushort v{BS[1]}, v3, s[8:9] offset:32
    s_mov_b32 s34, 0
    s_setprio {o.get('prio', 2)}
    s_lshl_b32 s28, s{P}, 1
    s_lshr_b32 s10, s{W}, 1
    s_add_u32 s28, s28, s10
    s_lshl_b32 s28, s28, 4
    s_add_u32 s28, s28, s{C}
    s_lshl_b32 s28, s28, 1
    s_and_b32 s10, s{W}, 1
    s_add_u32 s28, s28, s10
    s_lshl_b32 s28, s28, 2
    s_add_u32 s28, s28, {FL_H}
    """)
    g3 = Gemm3(k, o)
    g3.pre()
    def reads(F, half, st):
        sl = st % 4; hi = sl >> 1; off = (sl & 1) * SLOT
        vb = [[VB0b, VB1b], [VB0, VB1]][hi][half]; va = [VAb, VA][hi]
        r = [f"ds_read_b128 v[{F+4*tb}:{F+4*tb+3}], v{vb} offset:{off + tb*2048}" for tb in range(2)]
        r += [f"ds_read_b128 v[{F+8+4*ft}:{F+8+4*ft+3}], v{va} offset:{off + (ft*2+half)*1024}" for ft in range(9)]
        return r
    def mfmas(F, first=False):
        return [f"v_mfma_f32_16x16x32_bf16 v[{ACC+(ft*2+tb)*4}:{ACC+(ft*2+tb)*4+3}], v[{F+8+4*ft}:{F+8+4*ft+3}], v[{F+4*tb}:{F+4*tb+3}], " + ("0" if first else f"v[{ACC+(ft*2+tb)*4}:{ACC+(ft*2+tb)*4+3}]")
                for ft in range(o.get('nft', 9)) for tb in range(2)]
    adv = [f"s_add_u32 s34, s34, {SLOT}\ns_cmp_ge_u32 s34, {SLOT*NS}\ns_cselect_b32 s34, 0, s34",
           f"v_add_u32 v{VA}, s34, v{VAb}", f"v_add_u32 v{VB0}, s34, v{VB0b}", f"v_add_u32 v{VB1}, s34, v{VB1b}"]
    def gpair(n):
        if n >= 36: return []
        a = ZR + 2 * n; t = GT[2 * (n % 3)]; u = GT[2 * (n % 3) + 1]
        return [f"v_mul_f32 v{t}, v{a}, v{a}", f"v_mul_f32 v{u}, v{a+1}, v{a+1}",
                f"v_fmaak_f32 v{t}, v{VC2}, v{t}, {fbits(C1)}", f"v_fmaak_f32 v{u}, v{VC2}, v{u}, {fbits(C1)}",
                f"v_mul_f32 v{t}, v{t}, v{a}", f"v_mul_f32 v{u}, v{u}, v{a+1}",
                f"v_exp_f32 v{t}, v{t}", f"v_exp_f32 v{u}, v{u}",
                f"v_add_f32 v{t}, 1.0, v{t}", f"v_add_f32 v{u}, 1.0, v{u}",
                f"v_rcp_f32 v{t}, v{t}", f"v_rcp_f32 v{u}, v{u}",
                f"v_mul_f32 v{a}, v{a}, v{t}", f"v_mul_f32 v{a+1}, v{a+1}, v{u}",
                f"v_cvt_pk_bf16_f32 v{a}, v{a}, v{a+1}"]
    def weave(mf, rd, fill):
        out = []; fi = 0
        for i, x in enumerate(mf):
            out.append(x)
            if i < len(rd): out.append(rd[i])
            if fi < len(fill) and i >= 2: out.append(fill[fi]); fi += 1
        return out + rd[len(mf):] + fill[fi:]
    NU = o.get('NU', 12)
    allf = [x for n_ in range(36) for x in gpair(n_)]
    nh = 2 * NU; per_ = -(-len(allf) // nh)
    fl = [allf[i * per_:(i + 1) * per_] for i in range(nh)]
    def weave(mf, rd, fill):
        out = []; fi = 0; n_ = len(mf)
        for i, x in enumerate(mf):
            out.append(x)
            if i < len(rd): out.append(rd[i])
            want = (i + 1) * len(fill) // n_ if o.get('even', 1) else (i - 1 if i >= 2 else 0)
            while fi < min(want, len(fill)): out.append(fill[fi]); fi += 1
        return out + rd[len(mf):] + fill[fi:]
    k("s_barrier")
    k.stamp(11)
    bp = o.get('bp', 18)
    def stage2(st, f0, f1, extra=(), tail=()):
        k("\n".join(weave(mfmas(FY), reads(FX, 0, st), f0)))
        k("s_waitcnt lgkmcnt(0)")
        w = weave(mfmas(FX), reads(FY, 1, st) + list(extra), f1)
        idx = [i for i, x in enumerate(w) if x.startswith("v_mfma")]
        cut = len(w) if bp >= 18 else idx[bp]
        k("\n".join(w[:cut] + list(tail) + ["s_waitcnt lgkmcnt(0)", "s_barrier"] + w[cut:]))
    k("\n".join(reads(FX, 0, 0) + fl[0]))
    k("s_waitcnt lgkmcnt(0)")
    k("\n".join(weave(mfmas(FX, True), reads(FY, 1, 0), fl[1])))
    k("s_waitcnt lgkmcnt(0)\ns_barrier")
    assert NU % 4 == 0
    for st in range(1, NU):
        tail = []
        if st == 7:
            tail = [f"s_cmp_ge_u32 s53, 640\ns_cbranch_scc1 fz_nwf\nv_mov_b32 v238, 0\nv_mov_b32 v254, s{NON}\ns_waitcnt vmcnt(0)\ns_mov_b64 exec, 1\nbuffer_store_dword v254, v238, s[{FLS}:{FLS+3}], s59 offen sc1\ns_mov_b64 exec, -1\nfz_nwf:"]
        stage2(st, fl[2 * st], fl[2 * st + 1], tail=tail)
    if o.get('p2'): k.stamp(10)
    k(f"s_mov_b32 s35, {NU}\nfz_cloop:")
    for u in range(4):
        stage2(u, [], [], extra=(["s_add_u32 s35, s35, 4", "s_cmp_lt_u32 s35, 28"] if u == 3 else []))
    k("s_cbranch_scc1 fz_cloop")
    for u in range(4):
        stage2(u, [], [], extra=([f"buffer_load_dword v238, v237, s[{FLS}:{FLS+3}], 0 offen sc1"] if u == 0 else []))
    k("\n".join(mfmas(FY)))
    k.stamp(12)
    k.srd(12, 4, FRAG9, add=WS_H)
    g3.wcheck()
    VBS = 232
    k("s_setprio 3")
    k(f"v_lshlrev_b32 v{VBS}, 16, v{BS[0]}\nv_lshlrev_b32 v{VBS+2}, 16, v{BS[1]}\nv_mov_b32 v{VBS+1}, v{VBS}\nv_mov_b32 v{VBS+3}, v{VBS+2}")
    for tb in range(2):
        b = VBS + 2 * tb
        for q in range(5):
            nt = 2 if q < 4 else 1
            oo = 144 + (tb * 5 + q) % 2 * 4
            for t in range(nt):
                a = ACC + ((2 * q + t) * 2 + tb) * 4
                for hh in range(2):
                    z = ZR + ((2 * q + t) * 2 + tb) * 4 + 2 * hh; u = 236 + 2 * ((2 * t + hh) % 3)
                    k(f"""
                    v_pk_add_f32 v[{a+2*hh}:{a+2*hh+1}], v[{a+2*hh}:{a+2*hh+1}], v[{b}:{b+1}]
                    v_lshlrev_b32 v{u}, 16, v{z}
                    v_and_b32 v{u+1}, 0xffff0000, v{z}
                    v_pk_mul_f32 v[{a+2*hh}:{a+2*hh+1}], v[{a+2*hh}:{a+2*hh+1}], v[{u}:{u+1}]
                    v_cvt_pk_bf16_f32 v{oo+t*2+hh}, v{a+2*hh}, v{a+2*hh+1}
                    """)
            if q < 4: k(f"buffer_store_dwordx4 v[{oo}:{oo+3}], v242, s[12:15], s{31+tb} offen offset:{q*1024} sc1")
            else: k(f"s_add_u32 s33, s{31+tb}, 4096\nbuffer_store_dwordx2 v[{oo}:{oo+1}], v243, s[12:15], s33 offen sc1")
    if o.get('p3'): k.stamp(2)
    k(f"v_mov_b32 v0, 0\nv_mov_b32 v1, s{NON}\ns_waitcnt vmcnt(0)\ns_mov_b64 exec, 1\nbuffer_store_dword v1, v0, s[{FLS}:{FLS+3}], s28 offen sc1\ns_mov_b64 exec, -1")
    k.stamp(13)
    k(f"s_setprio {o.get('prio4', 1)}")
    g3.wregs()
    g3.main()
    k("fz_loader:\ns_setprio 0")
    for j in range(16): k(f"v_mov_b32 v{198+j}, 0")
    def advk(kstep):
        k(f"""
        s_add_u32 s40, s40, {kstep}
        s_add_u32 s43, s43, 1
        s_cmp_eq_u32 s43, 2
        s_cselect_b32 s40, 0, s40
        s_cselect_b32 s42, s45, s42
        s_cmp_eq_u32 s40, s42
        s_cselect_b32 s33, {2*kstep}, 0
        s_add_u32 s40, s40, s33
        s_add_u32 s41, s41, {SLOT}
        s_cmp_ge_u32 s41, {SLOT*NS}
        s_cselect_b32 s41, s44, s41
        """)
    def issue(n, kstep, sc, chk=False, j0=0):
        if chk:
            L = k.label("pc"); D = k.label("pd")
            k(f"""
            {L}:
            s_lshr_b32 s33, s40, 10
            s_and_b32 s33, s33, 60
            s_lshr_b64 s[48:49], s[46:47], s33
            s_and_b32 s48, s48, 15
            s_cbranch_scc0 {D}
            s_add_u32 s62, s62, 1
            s_cmp_ge_u32 s62, {SPIN}
            s_cbranch_scc1 {D}
            buffer_load_dword v200, v199, s[{FLS}:{FLS+3}], s30 offen sc1
            s_waitcnt vmcnt(0)
            v_cmp_ne_u32 s[46:47], s{NON}, v200
            s_branch {L}
            {D}:
            """)
        for j in range(0 if o.get('nodma2') else n):
            k((f"s_add_u32 m0, s41, {(j+j0)*1024}\n" if j + j0 else "s_mov_b32 m0, s41\n") + f"buffer_load_dwordx4 v{VL_(j)}, s[12:15], s40 offen {sc}lds")
        advk(kstep)
    VL_ = lambda j: 112 + j
    def ring(tag, n, kstep, sc, first):
        k(f"s_setprio {o.get('prioR', 3)}")
        wst_setup(k, o, 214)
        if o.get('l4', 1):
            k(f"s_mov_b32 s35, {first}\nfz_h{tag}:\ns_waitcnt vmcnt({2*n})\ns_barrier")
            issue(n, kstep, sc, tag == "A")
            k(f"s_add_u32 s35, s35, 1\ns_cmp_lt_u32 s35, 5\ns_cbranch_scc1 fz_h{tag}\ns_waitcnt vmcnt({2*n})\ns_barrier")
            n2 = n; n = n // 2
            issue(n, kstep, sc, tag == "A")
            k(f"s_waitcnt vmcnt({n2 + n})\ns_barrier")
            issue(n, kstep, sc, tag == "A")
            first = 7
        k(f"s_mov_b32 s35, {first}\nfz_l{tag}:\ns_waitcnt vmcnt({2*n})\ns_barrier")
        issue(n, kstep, sc, tag == "A")
        fv = 214
        k(f"s_cmp_eq_u32 s35, 24\ns_cbranch_scc0 fz_m{tag}\nbuffer_load_dwordx2 v[{fv}:{fv+1}], v{fv+2}, s[{FLS}:{FLS+3}], s52 offen sc1\nfz_m{tag}:")
        k(f"s_add_u32 s35, s35, 1\ns_cmp_lt_u32 s35, {NST-3}\ns_cbranch_scc1 fz_l{tag}")
        wst_check(k, o, fv=214)
        if tag == "A":
            wst(k, 3); k(f"s_waitcnt vmcnt({2*n + 21})\ns_barrier")
            wst(k, 0); k(f"s_waitcnt vmcnt({n + 42})\ns_barrier\ns_waitcnt vmcnt(42)\ns_barrier")
        else:
            k(f"s_waitcnt vmcnt({2*n})\ns_barrier\ns_waitcnt vmcnt({n})\ns_barrier")
            wst(k, 1); wst(k, 2); k("s_waitcnt vmcnt(42)\ns_barrier")
        k("s_waitcnt vmcnt(0)\ns_barrier")
    if o.get('nossm') == 2: k("s_branch fz_nk")
    k(f"s_cmp_eq_u32 s{W}, 5\ns_cbranch_scc1 fz_nk\ns_cmp_ge_u32 s58, 576\ns_cbranch_scc1 fz_nk")
    k(f"s_mov_b32 s54, {fbits(L2E_HI)}\ns_mov_b32 s55, {fbits(I2P_HI)}")
    for i in range(40): k(f"v_mov_b32 v{i}, 0")
    k("\n".join(kgen_dt()))
    k("s_mov_b32 s53, 0\nfz_kg:")
    k("\n".join(kgen_half()))
    k("s_cmp_eq_u32 s53, 1\ns_cbranch_scc1 fz_kg2\nfz_nk:")
    k.stamp(9)
    k(f"s_mov_b32 s43, 0\ns_mov_b32 s42, -1\ns_cmp_lg_u32 s{W}, 4\ns_cbranch_scc1 fz_ldB")
    k.srd(12, 4, FRAG9, add=WS_Z2)
    k(f"s_lshl_b32 s45, s{P}, 12\ns_mov_b32 s40, s45\ns_mul_i32 s31, s{C}, {9*65536}\nv_lshlrev_b32 v198, 4, v{VL}\nv_add_u32 v198, s31, v198\ns_mov_b32 s44, 0\ns_mov_b32 s41, 0")
    for j in range(18): k(f"v_add_u32 v{VL_(j)}, {(j >> 1)*65536 + (j & 1)*1024}, v198")
    k(f"""
    s_lshl_b32 s30, s{C}, 8
    s_add_u32 s30, s30, {FL_2}
    v_lshlrev_b32 v199, 2, v{VL}
    s_mov_b64 s[46:47], -1
    s_mov_b32 s62, 0
    v_mov_b32 v201, {CNT}
    fz_own:
    ds_read_b32 v202, v201
    s_add_u32 s62, s62, 1
    s_waitcnt lgkmcnt(0)
    v_readfirstlane_b32 s33, v202
    s_cmp_ge_u32 s33, 4
    s_cbranch_scc1 fz_ownd
    s_cmp_lt_u32 s62, {SPIN*16}
    s_cbranch_scc1 fz_own
    fz_ownd:
    s_mov_b32 s62, 0
    """)
    k.stamp(10)
    for _ in range(2): issue(18, 2048, "sc1 ")
    k("s_waitcnt vmcnt(18)\ns_barrier")
    k.stamp(11)
    issue(18, 2048, "sc1 ", True); issue(18, 2048, "sc1 ", True)
    ring("A", 18, 2048, "sc1 ", 1)
    k("s_branch fz_p34")
    k(f"fz_ldB:\ns_load_dwordx2 s[6:7], s[0:1], {ARG['w_sp']}\ns_waitcnt lgkmcnt(0)")
    k.srd(12, 6, 2048 * 4096)
    k(f"s_cmp_lg_u32 s{W}, 5\ns_cbranch_scc1 fz_idle")
    VL_ = lambda j: 198 + j
    k(f"""
    v_lshrrev_b32 v3, 3, v{VL}
    v_and_b32 v4, 7, v{VL}
    v_lshrrev_b32 v5, 4, v{VL}
    v_xor_b32 v4, v4, v5
    v_and_b32 v5, 1, v4
    v_lshlrev_b32 v5, 1, v5
    v_bfe_u32 v6, v4, 1, 1
    v_and_b32 v4, 4, v4
    v_or_b32 v4, v4, v5
    v_or_b32 v4, v4, v6
    v_lshlrev_b32 v4, 4, v4
    v_lshl_add_u32 v4, v3, 12, v4
    s_lshl_b32 s31, s{P}, 19
    v_add_u32 v4, s31, v4
    v_xor_b32 v5, 64, v4
    s_lshl_b32 s45, s{P}, 8
    s_mov_b32 s40, s45
    s_mov_b32 s44, 18432
    s_mov_b32 s41, 18432
    """)
    for j in range(16): k(f"v_add_u32 v{VL_(j)}, {j*32768}, v{4 + (j & 1)}")
    for _ in range(3): issue(16, 128, "")
    k.stamp(11)
    ring("B", 16, 128, "", 0)
    mode = o.get('cv', 1)
    if mode == 0: k("s_branch fz_fin")
    else: k(f"s_cmp_lt_u32 s2, 64\ns_cbranch_scc1 fz_fin\ns_lshl_b32 s58, s2, 1\ns_mov_b32 s59, {CONV0}\ns_mov_b32 s57, {RDY}\ns_branch fz_help")
    k("fz_idle:")
    k(f"v_mov_b32 v44, {RDY}\nv_mov_b32 v45, 0\nds_write_b32 v44, v45\nds_write_b32 v44, v45 offset:4")
    regs = list(range(KG['WAD'], KG['WAD'] + 16)) + list(range(KG['RW'], KG['RW'] + 4)) + list(range(KG['RS'], KG['RS'] + 10))
    nch = o.get('nch', 0)
    if nch:
        for r in regs: k(f"v_add_u32 v{r}, {139264 - KTAB}, v{r}")
        k("s_barrier")
        for ch in split(kgen_half(), nch):
            k("s_barrier"); k("\n".join(ch))
        for _ in range(30 - nch): k("s_barrier")
    elif o.get('l4', 1):
        k(f"s_setprio {o.get('prioR', 3)}\ns_cmp_eq_u32 s{W}, 7\ns_cbranch_scc1 fz_h7")
        for tag, n, kstep, sc in (("6", 9, 2048, "sc1 "), ("7", 8, 128, "")):
            VL_ = lambda j: 202 + j
            if tag == "6":
                k.srd(12, 4, FRAG9, add=WS_Z2)
                k(f"s_lshl_b32 s45, s{P}, 12\ns_mul_i32 s31, s{C}, {9*65536}\nv_lshlrev_b32 v198, 4, v{VL}\nv_add_u32 v198, s31, v198\ns_mov_b32 s44, 0")
                for j in range(9): k(f"v_add_u32 v{VL_(j)}, {((j+9) >> 1)*65536 + ((j+9) & 1)*1024}, v198")
                k(f"s_lshl_b32 s30, s{C}, 8\ns_add_u32 s30, s30, {FL_2}\nv_lshlrev_b32 v199, 2, v{VL}\ns_mov_b64 s[46:47], -1\ns_mov_b32 s62, 0")
            else:
                k(f"""
                fz_h7:
                v_lshrrev_b32 v44, 3, v{VL}
                v_and_b32 v45, 7, v{VL}
                v_lshrrev_b32 v46, 4, v{VL}
                v_xor_b32 v45, v45, v46
                v_and_b32 v46, 1, v45
                v_lshlrev_b32 v46, 1, v46
                v_bfe_u32 v47, v45, 1, 1
                v_and_b32 v45, 4, v45
                v_or_b32 v45, v45, v46
                v_or_b32 v45, v45, v47
                v_lshlrev_b32 v45, 4, v45
                v_lshl_add_u32 v45, v44, 12, v45
                s_lshl_b32 s31, s{P}, 19
                v_add_u32 v44, s31, v45
                v_xor_b32 v45, 64, v44
                s_lshl_b32 s45, s{P}, 8
                s_mov_b32 s44, 18432
                """)
                for j in range(8): k(f"v_add_u32 v{VL_(j)}, {(j+8)*32768}, v{44 + (j & 1)}")
            k(f"s_mov_b32 s40, s45\ns_mov_b32 s41, s44\ns_mov_b32 s35, 0\nfz_a{tag}:")
            advk(kstep)
            k(f"s_add_u32 s35, s35, 1\ns_cmp_lt_u32 s35, 8\ns_cbranch_scc1 fz_a{tag}")
            for _ in range(5): k("s_barrier")
            k(f"s_mov_b32 s35, 5\nfz_r{tag}:\ns_waitcnt vmcnt({2*n})\ns_barrier")
            issue(n, kstep, sc, tag == "6", j0=n)
            k(f"s_add_u32 s35, s35, 1\ns_cmp_lt_u32 s35, 29\ns_cbranch_scc1 fz_r{tag}")
            k(f"s_waitcnt vmcnt({2*n})\ns_barrier\ns_waitcnt vmcnt({n})\ns_barrier\ns_waitcnt vmcnt(0)")
            if tag == "6": k("s_branch fz_h9")
        k("fz_h9:")
    else:
        k(f"s_mov_b32 s35, 0\nfz_idl:\ns_barrier\ns_add_u32 s35, s35, 1\ns_cmp_lt_u32 s35, 31\ns_cbranch_scc1 fz_idl")
    ft_load(k)
    k("s_barrier\ns_barrier")
    k.stamp(12)
    k(f"s_lshl_b32 s57, s56, 2\ns_add_u32 s57, s57, {RDY}")
    k(f"s_mov_b32 s3, 0\ns_cmp_ge_u32 s2, 64\ns_cbranch_scc1 fz_k2\ns_mov_b32 s3, 1\nfz_k2:")
    k(f"s_setprio {o.get('prio3', 2)}\ns_mul_i32 s59, s56, {REG}\ns_add_u32 s59, s59, {CONV0}")
    u_load(k)
    if nch: k(f"s_cmp_lg_u32 s{W}, 4\ns_cbranch_scc1 fz_kg2")
    k(f"s_lshl_b32 s33, s56, 13\ns_add_u32 s33, s33, {KTAB - 4608}\ns_sub_u32 s33, s59, s33")
    for r in regs: k(f"v_add_u32 v{r}, s33, v{r}")
    k("s_mov_b32 s53, 1\ns_branch fz_kg\nfz_kg2:")
    k.stamp(8)
    conv_build(k, o)
    k.stamp(13)
    if mode:
        k("s_cmp_eq_u32 s3, 1\ns_cbranch_scc1 fz_full")
        conv_run(k, o, 0)
        k.stamp(14)
        k("s_branch fz_fin\nfz_full:")
    conv_run(k, o, 2)
    k.stamp(14)
    k("s_branch fz_fin")
    k(f"fz_p34:\ns_cmp_lt_u32 s58, 576\ns_cbranch_scc1 fz_own3")
    if mode:
        k(f"s_lshl_b32 s58, s2, 1\ns_add_u32 s58, s58, 1\ns_mov_b32 s59, {CONV0 + REG}\ns_mov_b32 s57, {RDY + 4}")
        k(f"""
        fz_help:
        s_mov_b32 s3, 0
        s_setprio {o.get('prio3', 2)}
        v_mov_b32 v20, s57
        s_mov_b32 s62, 0
        fz_hw:
        ds_read_b32 v21, v20
        s_add_u32 s62, s62, 1
        s_waitcnt lgkmcnt(0)
        v_readfirstlane_b32 s33, v21
        s_cmp_eq_u32 s33, 1
        s_cbranch_scc1 fz_runb
        s_cmp_lt_u32 s62, {SPIN*16}
        s_cbranch_scc1 fz_hw
        fz_runb:
        """)
        k.stamp(13)
        conv_run(k, o, 1)
        k.stamp(14)
    k("s_branch fz_fin\nfz_own3:")
    ft_load(k)
    k(f"s_mov_b32 s57, {RDY + 8}\ns_mov_b32 s3, 1\ns_branch fz_k2")

def wst_setup(k, o, fv):
    g3map(k, 50, 51)
    k.srd(24, 4, WOBYTES, add=WS_WO)
    k(f"s_lshl_b32 s52, s51, 9\ns_add_u32 s52, s52, {FL_W}\ns_mul_i32 s63, s51, {16*20736}\nv_lshlrev_b32 v{fv+2}, 3, v{VL}\nv_lshlrev_b32 v{fv+3}, 4, v{VL}\nv_mov_b32 v{fv}, 0\nv_mov_b32 v{fv+1}, 0")
    k.wfv = fv
def wst_check(k, o, fv):
    L = k.label("w4"); D = k.label("w4d")
    k(f"""
    s_mov_b32 s62, 0
    {L}:
    v_cmp_ne_u32 vcc, s{NON}, v{fv}
    s_and_b32 vcc_lo, vcc_lo, 0x77777777
    s_and_b32 vcc_hi, vcc_hi, 0x77777777
    v_cmp_ne_u32 s[60:61], s{NON}, v{fv+1}
    s_and_b32 s60, s60, 0x33333333
    s_and_b32 s61, s61, 0x33333333
    s_or_b64 vcc, vcc, s[60:61]
    s_cbranch_scc0 {D}
    s_add_u32 s62, s62, 1
    s_cmp_ge_u32 s62, {SPIN}
    s_cbranch_scc1 {D}
    buffer_load_dwordx2 v[{fv}:{fv+1}], v{fv+2}, s[{FLS}:{FLS+3}], s52 offen sc1
    s_waitcnt vmcnt(0)
    s_branch {L}
    {D}:
    """)
def wst(k, w):
    fv = k.wfv
    k(f"s_add_u32 s48, s{C}, {w + 4}\ns_and_b32 s48, s48, 15\ns_mul_i32 s48, s48, 20736\ns_add_u32 s48, s48, s63")
    for i in range(21):
        if i == 20: k(xm(0xffff))
        k(f"s_mov_b32 m0, {WQ[w] + i*1024}\nbuffer_load_dwordx4 v{fv+3}, s[24:27], s48 offen sc1 lds\ns_add_u32 s48, s48, 1024")
    k("s_mov_b64 exec, -1")

def gen_fused(prof=False, **o):
    OPT.update(o); o['WFL'] = WFL
    k = Kern(NAME + "_kernel", 256, 512, 163840)
    k.prof = prof; k.allreal = bool(o.get('real', 0))
    if o.get('p0'):
        seen = set(); st0 = k.stamp
        def st(i, real=False):
            if i in (5, 7, 8, 9):
                key = (i, len([1 for l in k.lines if l.startswith(('fz_l1W:', 'fz_c1:'))]))
                if key in seen or any(l.startswith('fz_cons:') for l in k.lines): return
                seen.add(key)
            st0(i, real)
        k.stamp = st
    k.stamp(0, True); k.stamp(1)
    if o.get('dbgt'): k("s_memrealtime s[64:65]")
    phase0(k, o); phase2(k, o)
    k("fz_fin:")
    if o.get('dbgt'):
        k(f"""
        s_waitcnt vmcnt(0)
        s_memrealtime s[66:67]
        s_load_dwordx2 s[68:69], s[0:1], {ARG['dbg']}
        s_waitcnt lgkmcnt(0)
        s_cmp_ge_u32 s2, 8
        s_cbranch_scc1 fz_end
        s_cmp_lg_u32 s22, 0
        s_cbranch_scc1 fz_end
        s_lshl_b32 s70, s2, 3
        v_mov_b32 v0, s70
        v_mov_b32 v2, s64
        v_mov_b32 v3, s66
        s_mov_b64 exec, 1
        global_store_dwordx2 v0, v[2:3], s[68:69]
        """)
    if prof:
        k("s_waitcnt vmcnt(0)"); k.stamp(15, True)
        k.prof_dump(0, 4, W, 16)
    k("fz_end:")
    return k

def emit_single(k, path):
    from gen import header
    s = header() + f"; @launch kernel={k.name} grid=({k.grid},1,1) block=({k.block},1,1) lds={k.lds}\n"
    s += '.amdgcn_target "amdgcn-amd-amdhsa--gfx950"\n.text\n' + k.text() + '.section .rodata,"a"\n' + k.desc()
    open(path, "w").write(s)

if __name__ == "__main__":
    opts = {a.split("=")[0]: int(a.split("=")[1]) for a in sys.argv[2:] if "=" in a}
    emit_single(gen_fused(prof="prof" in sys.argv, **opts), sys.argv[1])
```

```python
import sys, math; sys.path.insert(0, "dev")
from asmgen import *
from layout import *
import struct
import numpy as np
def fbits(x): return "0x%08x" % struct.unpack("<I", struct.pack("<f", x))[0]
def f32(x): return float(np.float32(x))
C1 = -2.0 * math.sqrt(2.0 / math.pi) * math.log2(math.e)
C2 = C1 * 0.044715
L2E = math.log2(math.e); L2E_HI = f32(L2E); L2E_LO = L2E - L2E_HI
I2P = 1.0 / (2 * math.pi); I2P_HI = f32(I2P); I2P_LO = I2P - I2P_HI
def rne(x, kk): return int(round(x / (1 << kk))) << kk
def rrow(v): return v if v <= 16 else 12 + v // 4
OOB = 0x7ff00000
P, C, W, NON = 20, 21, 22, 23
FLS = 16
VL = 255
SPIN = 0x4000
OPT = dict(sleep=0, sc1ld=1, nokgen=0)

def dpp_sum16(k, regs):
    for sh in (8, 4, 2, 1):
        for r in regs: k(f"v_add_f32_dpp v{r}, v{r}, v{r} row_ror:{sh} row_mask:0xf bank_mask:0xf")
def bf16_round(k, r): k(f"v_cvt_pk_bf16_f32 v{r}, v{r}, v{r}\nv_lshlrev_b32 v{r}, 16, v{r}")
def xsum_rows(k, r, t, both=True):
    k(f"v_mov_b32 v{t}, v{r}\nv_permlane16_swap_b32 v{r}, v{t}\nv_add_f32 v{r}, v{r}, v{t}")
    k(f"v_mov_b32 v{t}, v{r}\nv_permlane32_swap_b32 v{r}, v{t}\nv_add_f32 v{r}, v{r}, v{t}")
def mix(mf, other):
    out = []; n = len(mf); m = len(other); oi = 0
    for i, x in enumerate(mf):
        out.append(x)
        want = (i + 1) * m // n
        while oi < want: out.append(other[oi]); oi += 1
    return out + other[oi:]
def front2(mf, other, per=2):
    out = []; oi = 0
    for x in mf:
        out.append(x)
        for _ in range(per):
            if oi < len(other): out.append(other[oi]); oi += 1
    return out + other[oi:]
def front(mf, other):
    out = []; oi = 0
    for x in mf:
        out.append(x)
        if oi < len(other): out.append(other[oi]); oi += 1
    return out + other[oi:]

def xm(mask):
    return f"s_mov_b32 exec_lo, {hex(mask & 0xffffffff)}\ns_mov_b32 exec_hi, {hex(mask >> 32)}"
def set_flag(k, va, vd, off_s):
    k(f"""
    v_mov_b32 v{va}, 0
    v_mov_b32 v{vd}, s{NON}
    s_waitcnt vmcnt(0)
    s_mov_b64 exec, 1
    buffer_store_dword v{vd}, v{va}, s[{FLS}:{FLS+3}], s{off_s} offen sc1
    s_mov_b64 exec, -1
    """)
def poll(k, va, vd, off_s, nlanes, ndw=1, pre=False, mask=None):
    L = k.label("poll"); D = k.label("polld")
    ld = {1: "dword", 2: "dwordx2", 4: "dwordx4"}[ndw]
    dst = f"v{vd}" if ndw == 1 else f"v[{vd}:{vd+ndw-1}]"
    if not pre: k(f"v_lshlrev_b32 v{va}, { {1: 2, 2: 3, 4: 4}[ndw] }, v{VL}")
    k("s_mov_b32 s62, 0")
    if nlanes < 64: k(xm(mask if mask else (1 << nlanes) - 1))
    k(f"{L}:\nbuffer_load_{ld} {dst}, v{va}, s[{FLS}:{FLS+3}], {'0' if pre else 's%d' % off_s} offen sc1\ns_add_u32 s62, s62, 1\ns_waitcnt vmcnt(0)")
    k(f"v_cmp_ne_u32 vcc, s{NON}, v{vd}")
    for i in range(1, ndw): k(f"v_cmp_ne_u32 s[60:61], s{NON}, v{vd+i}\ns_or_b64 vcc, vcc, s[60:61]")
    sl = f"s_sleep {OPT['sleep']}\n" if OPT['sleep'] else ""
    k(f"s_cbranch_vccz {D}\n{sl}s_cmp_lt_u32 s62, {SPIN}\ns_cbranch_scc1 {L}\n{D}:")
    if nlanes < 64: k("s_mov_b64 exec, -1")

def gelu_group(k, pairs, T, SC2, VC1, VONE):
    n = len(pairs)
    for i, a in enumerate(pairs): k(f"v_pk_mul_f32 v[{T+2*i}:{T+2*i+1}], v[{a}:{a+1}], v[{a}:{a+1}]")
    for i, a in enumerate(pairs): k(f"v_pk_fma_f32 v[{T+2*i}:{T+2*i+1}], v[{T+2*i}:{T+2*i+1}], s[{SC2}:{SC2+1}], v[{VC1}:{VC1+1}]")
    for i, a in enumerate(pairs): k(f"v_pk_mul_f32 v[{T+2*i}:{T+2*i+1}], v[{T+2*i}:{T+2*i+1}], v[{a}:{a+1}]")
    for i in range(2 * n): k(f"v_exp_f32 v{T+i}, v{T+i}")
    for i, a in enumerate(pairs): k(f"v_pk_add_f32 v[{T+2*i}:{T+2*i+1}], v[{T+2*i}:{T+2*i+1}], v[{VONE}:{VONE+1}]")
    for i in range(2 * n): k(f"v_rcp_f32 v{T+i}, v{T+i}")
    for i, a in enumerate(pairs): k(f"v_pk_mul_f32 v[{a}:{a+1}], v[{a}:{a+1}], v[{T+2*i}:{T+2*i+1}]")

def ln_finish(k, m, v):
    bf16_round(k, v)
    k(f"v_add_f32 v{v}, {1e-5!r}, v{v}")
    bf16_round(k, v)
    k(f"v_sqrt_f32 v{v}, v{v}")
    bf16_round(k, v)
    k(f"v_rcp_f32 v{v}, v{v}")
    bf16_round(k, m)


KG = dict(ACC=0, WF=44, RB=108, RW=140, WAD=150, VJ=166, VG=167, DSK=168, DT=169, PRM=170, RS=182, XT3=192, VDMA=210)

def kgen_setup(k, o):
    g = KG
    k(f"""
    s_load_dwordx4 s[24:27], s[0:1], {ARG['A_re']}
    s_load_dwordx4 s[28:31], s[0:1], {ARG['B_re']}
    s_load_dwordx4 s[32:35], s[0:1], {ARG['C_re']}
    s_load_dwordx4 s[36:39], s[0:1], {ARG['log_dt']}
    s_min_u32 s42, s58, 575
    v_lshlrev_b32 v1, 1, v{VL}
    s_lshl_b32 s43, s42, 8
    v_add_u32 v1, s43, v1
    s_lshl_b32 s43, s42, 1
    v_mov_b32 v2, s43
    s_waitcnt lgkmcnt(0)
    """)
    for hf in range(2):
        for i in range(6):
            k(f"global_load_ushort v{g['PRM']+6*hf+i}, v1, s[{24+2*i}:{25+2*i}] offset:{hf*128}")
    k("global_load_ushort v196, v2, s[36:37]\nglobal_load_ushort v197, v2, s[38:39]")

def kgen_addr(k, o):
    g = KG; WAD, VJ, VG, RW, RS_ = g['WAD'], g['VJ'], g['VG'], g['RW'], g['RS']
    A = []
    A.append(f"v_lshrrev_b32 v46, 2, v{VL}\nv_and_b32 v47, 3, v{VL}\nv_lshlrev_b32 v47, 2, v47\nv_lshl_add_u32 v46, v46, 4, v47\nv_add_u32 v46, s59, v46")
    for i in range(16): A.append(f"v_xor_b32 v{WAD+i}, {i<<4}, v46")
    A.append(f"v_and_b32 v{VJ}, 15, v{VL}\nv_lshrrev_b32 v{VG}, 4, v{VL}")
    for m in range(4):
        A.append(f"v_add_u32 v46, {4*m}, v{VG}\nv_xor_b32 v46, v46, v{VJ}\nv_lshlrev_b32 v46, 4, v46\nv_lshl_add_u32 v46, v{VJ}, 8, v46\nv_add_u32 v{RW+m}, s59, v46")
    pats = [[b for b in range(16)], [rne(b, 1) for b in range(16)]]
    pats += [[rne(16 * nt + b, 2) for b in range(16)] for nt in range(4)]
    pats += [[rne(16 * nt + b, 3) for b in range(16)] for nt in range(4)]
    for pi_, pat in enumerate(pats):
        rows = [rrow(v) for v in pat]
        s = ""
        if pi_ == 0: s += f"v_mov_b32 v46, v{VJ}\n"
        else:
            kk = 1 if pi_ == 1 else (2 if pi_ < 6 else 3)
            nt = 0 if pi_ == 1 else (pi_ - 2) % 4
            c0 = 16 * nt + (1 << (kk - 1)) - 1
            s += f"v_add_u32 v46, {16*nt}, v{VJ}\nv_bfe_u32 v46, v46, {kk}, 1\nv_add3_u32 v46, v46, v{VJ}, {c0}\nv_and_b32 v46, {0xff & ~((1 << kk) - 1)}, v46\n"
            if pi_ > 1: s += "v_lshrrev_b32 v47, 2, v46\nv_add_u32 v47, 12, v47\nv_min_u32 v46, v46, v47\n"
            chk = []
            for j in range(16):
                v = (((((j + 16 * nt) >> kk) & 1) + j + c0) & (0xff & ~((1 << kk) - 1)))
                chk.append(min(v, 12 + (v >> 2)) if pi_ > 1 else v)
            assert chk == rows
        s += f"v_and_b32 v47, 15, v46\nv_xor_b32 v47, v47, v{VG}\nv_lshlrev_b32 v47, 4, v47\nv_lshl_add_u32 v46, v46, 8, v47\nv_add_u32 v{RS_+pi_}, s59, v46"
        A.append(s)
    return A

def kgen_dt():
    g = KG
    return [f"""v_lshlrev_b32 v44, 16, v196
    v_lshlrev_b32 v{g['DSK']}, 16, v197
    v_mul_f32 v45, {fbits(L2E_HI)}, v44
    v_fma_f32 v46, v44, s54, -v45
    v_fmac_f32 v46, {fbits(L2E_LO)}, v44
    v_exp_f32 v45, v45
    v_mul_f32 v46, {fbits(math.log(2.0))}, v46
    v_fma_f32 v{g['DT']}, v45, v46, v45
    v_cvt_pk_bf16_f32 v{g['DT']}, v{g['DT']}, v{g['DT']}
    v_lshlrev_b32 v{g['DT']}, 16, v{g['DT']}"""]

def kgen_half():
    g = KG; PRM, WAD, RW, RS_, WF, RB, DT = g['PRM'], g['WAD'], g['RW'], g['RS'], g['WF'], g['RB'], g['DT']
    A = []
    S = 220
    A_, B_, BR, BI, CR, CI = S, S + 1, S + 2, S + 3, S + 4, S + 5
    CB, W1, W16, W64, W512, W4, ONE = S + 6, S + 8, S + 10, S + 12, S + 14, S + 16, S + 18
    PA, PB, PC = [S + 20, S + 22], [S + 24, S + 26], S + 28
    TA, TB_ = S + 30, S + 31
    for i in range(6): A.append(f"v_lshlrev_b32 v{S+i}, 16, v{PRM+i}")
    for i in range(4): A.append(f"v_mul_f32 v{S+i}, v{DT}, v{S+i}")
    A += [f"v_mul_f32 v{CB}, v{CR}, v{BR}", f"v_mul_f32 v{CB+1}, v{CR}, v{BI}", f"v_fma_f32 v{CB}, -v{CI}, v{BI}, v{CB}", f"v_fma_f32 v{CB+1}, v{CI}, v{BR}, v{CB+1}"]
    ev = []
    for li, (l, r) in enumerate(((16, W16), (512, W512), (64, W64), (1, W1))):
        t = RB + 4 * li
        ev.append([f"v_mul_f32 v{t}, {float(l)!r}, v{A_}", f"v_mul_f32 v{t+1}, {float(l)!r}, v{B_}", f"v_mul_f32 v{t}, s54, v{t}", f"v_mul_f32 v{t+2}, s55, v{t+1}",
                   f"v_exp_f32 v{t}, v{t}", f"v_fma_f32 v{t+3}, v{t+1}, s55, -v{t+2}", f"v_fmac_f32 v{t+3}, {fbits(I2P_LO)}, v{t+1}", f"v_fract_f32 v{t+2}, v{t+2}",
                   f"v_add_f32 v{t+2}, v{t+2}, v{t+3}", f"v_cos_f32 v{r}, v{t+2}", f"v_sin_f32 v{r+1}, v{t+2}", f"v_mul_f32 v{r}, v{t}, v{r}", f"v_mul_f32 v{r+1}, v{t}, v{r+1}"])
    for pos in range(13):
        for e in ev: A.append(e[pos])
    def cmul(d, x, w):
        return [f"v_pk_mul_f32 v[{d}:{d+1}], v[{x}:{x+1}], v[{w}:{w+1}] op_sel_hi:[0,1]",
                f"v_pk_fma_f32 v[{d}:{d+1}], v[{x}:{x+1}], v[{w}:{w+1}], v[{d}:{d+1}] op_sel:[1,1,0] op_sel_hi:[1,0,1] neg_lo:[1,0,0]"]
    def put(x, t, base, row, neg):
        return [f"v_cvt_pk_bf16_f32 v{t}, v{x}, {'-' if neg else ''}v{x+1}", f"ds_write_b32 v{WAD + (row & 15)}, v{t} offset:{base + row*256}"]
    def wreads(wi, base):
        return [f"ds_read_b128 v[{WF+(wi*4+m)*4}:{WF+(wi*4+m)*4+3}], v{RW+m} offset:{base}" for m in range(4)]
    def pipe2(ca, cb):
        out = []; pa = []; pb = []
        for i in range(max(len(ca), len(cb)) + 1):
            sa = ca[i] if i < len(ca) else (None, None, []); sb = cb[i] if i < len(cb) else (None, None, [])
            q = [sa[0], sb[0]] + pa[:1] + pb[:1] + [sa[1], sb[1]] + pa[1:] + pb[1:]
            out += [x for x in q if x]
            pa = sa[2]; pb = sb[2]
        return out
    PA = [S + 20, S + 22, S + 32]; PB = [S + 24, S + 26, S + 28]
    ca = [(None, None, put(CB, TA, 0, 0, False))]; cur = CB
    for i in range(1, 32):
        d = PA[i % 3]; m = cmul(d, cur, W16); post = put(d, TA, 0, i & 15, False); cur = d
        if i in (15, 31): post = post + wreads(i // 16, 0)
        ca.append((m[0], m[1], post))
    cb = []; cur = CB
    for i in range(24):
        d = PB[i % 3]; m = cmul(d, cur, W512 if i == 0 else W64); post = put(d, TB_, 4096, i if i < 8 else i - 8, False); cur = d
        if i == 7: post = post + wreads(2, 4096)
        if i == 23: post = post + wreads(3, 4096)
        cb.append((m[0], m[1], post))
    W2, W3 = BR, CR
    for d, x in ((W2, W1), (W3, W2), (W4, W3)):
        m = cmul(d, x, W1); cb.append((m[0], m[1], [])); cb.append((None, None, []))
    A += pipe2(ca, cb)
    r1 = [(f"v_mov_b32 v{ONE}, 1.0", f"v_mov_b32 v{ONE+1}, 0", put(ONE, TA, 0, 0, True))]
    r2 = [(None, None, put(W16, TB_, 0, 16, True))]
    cur = W4
    for v in range(5, 16):
        d = PA[v % 3]; m = cmul(d, cur, W1); r1.append((m[0], m[1], put(d, TA, 0, v, True))); cur = d
    r1 += [(None, None, put(W1, TA, 0, 1, True)), (None, None, put(W2, TA, 0, 2, True))]
    cur = W16
    for i in range(11):
        d = PB[i % 3]; m = cmul(d, cur, W4); r2.append((m[0], m[1], put(d, TB_, 0, 17 + i, True))); cur = d
    r2 += [(None, None, put(W64, TB_, 0, 28, True)), (None, None, put(W3, TB_, 0, 3, True)), (None, None, put(W4, TB_, 0, 4, True))]
    A += pipe2(r1, r2)
    RBS = [RB, RB + 16, S]
    def rreads(t):
        L = []
        for m in range(4):
            b = RBS[t % 3] + 4 * m
            if m: L.append(f"v_xor_b32 v{g['XT3']+m}, {(4*m) << 4}, v{RS_+t}")
            L.append(f"ds_read_b128 v[{b}:{b+3}], v{RS_+t if m == 0 else g['XT3']+m}")
        return L
    tile_w = [0, 1, 2, 2, 2, 2, 3, 3, 3, 3]
    A += rreads(0) + rreads(1)
    for t in range(10):
        mf = []
        for m in range(4):
            b = RBS[t % 3] + 4 * m; w = WF + (tile_w[t] * 4 + m) * 4
            mf.append(f"v_mfma_f32_16x16x32_bf16 v[{4*t}:{4*t+3}], v[{b}:{b+3}], v[{w}:{w+3}], v[{4*t}:{4*t+3}]")
        A.append(f"s_waitcnt lgkmcnt({4 if t < 9 else 0})")
        A += front2(mf, rreads(t + 2) if t < 8 else [], 2)
    for i in range(6): A.append(f"v_mov_b32 v{PRM+i}, v{PRM+6+i}")
    return [a for a in A if a != "s_nop 0"]

def split(atoms, n):
    tot = sum(a.count("\n") + 1 for a in atoms); out = [[] for _ in range(n)]; acc = 0
    for a in atoms:
        out[min(n - 1, acc * n // tot)].append(a); acc += a.count("\n") + 1
    return out


REG = 21504
CONV0 = 3 * REG
WQ = [0, REG, 2 * REG, 139264]
YL_ = 6 * REG
RDY = 163072
UR = 44
def ft_load(k):
    k(f"s_mul_i32 s33, s58, 911\ns_lshr_b32 s33, s33, 16\ns_lshl_b32 s33, s33, 8\ns_add_u32 s33, s33, {FL_T}\nv_lshlrev_b32 v60, 2, v{VL}\nv_add_u32 v60, s33, v60")
    k(f"buffer_load_dword v64, v60, s[{FLS}:{FLS+3}], 0 offen sc1")
assert all((d * 911) >> 16 == d // 72 for d in range(576))
def u_load(k):
    L = k.label("ft"); D = k.label("ftd")
    k.srd(24, 4, XBYTES, add=WS_XT)
    k(f"s_mov_b32 s62, 0\n{L}:\ns_waitcnt vmcnt(0)\nv_cmp_ne_u32 vcc, s{NON}, v64")
    k(f"s_cbranch_vccz {D}\ns_add_u32 s62, s62, 1\ns_cmp_ge_u32 s62, {SPIN}\ns_cbranch_scc1 {D}")
    k(f"buffer_load_dword v64, v60, s[{FLS}:{FLS+3}], 0 offen sc1")
    k(f"s_branch {L}\n{D}:\nv_lshlrev_b32 v61, 4, v{VL}\ns_lshl_b32 s30, s58, 12\ns_add_u32 m0, s59, 480")
    for i in range(4): k(f"buffer_load_dwordx4 v61, s[24:27], s30 offen offset:{i*1024} sc1 lds")

CBO = 4608 + 64
def conv_build(k, o):
    g = KG; VJ, VG = g['VJ'], g['VG']; CB = CBO
    k(f"""
    v_mov_b32 v60, 0
    v_mov_b32 v61, 0
    v_mov_b32 v62, 0
    v_mov_b32 v63, 0
    v_lshlrev_b32 v127, 4, v{VL}
    v_add_u32 v127, s59, v127
    {xm((1 << 30) - 1)}
    ds_write_b128 v127, v[60:63]
    {xm(3)}
    ds_write_b128 v127, v[60:63] offset:{CB + 4096}
    s_mov_b64 exec, 1
    ds_write_b32 v127, v{g['DSK']} offset:4608
    s_mov_b64 exec, -1
    v_lshlrev_b32 v124, 3, v{VG}
    v_lshl_add_u32 v125, v{VJ}, 5, v124
    v_sub_u32 v122, {CB + 2*(2044-256)}, v125
    v_add_u32 v122, s59, v122
    v_lshl_add_u32 v125, v{VJ}, 7, v124
    v_sub_u32 v123, {CB + 2*(2044-1072)}, v125
    v_add_u32 v123, s59, v123
    """)
    for t in range(10):
        if t < 2: va, off = 122, 2 * (256 - 256 * t)
        else:
            tb = (512 if t < 6 else 1024) + 16 * ((t - 2) % 4); va, off = 123, 2 * (1072 - tb)
        a = 4 * t; p = 128 + 2 * (t % 4)
        if t == 2: k(xm(0x00ff00ff00ff00ff))
        if t == 6: k("s_mov_b64 exec, -1")
        k(f"v_cvt_pk_bf16_f32 v{p}, v{a+3}, v{a+2}\nv_cvt_pk_bf16_f32 v{p+1}, v{a+1}, v{a}\nds_write_b64 v{va}, v[{p}:{p+1}] offset:{off}")
    for it in range(5):
        b = 64 + 6 * it
        if it == 4: k(xm(3))
        k(f"ds_read_b128 v[{b}:{b+3}], v127 offset:{CB + it*1024}\nds_read_b64 v[{b+4}:{b+5}], v127 offset:{CB + it*1024 + 16}")
    k("s_mov_b64 exec, -1\ns_waitcnt lgkmcnt(0)")
    for it in range(5):
        b = 64 + 6 * it; e = 96 + 12 * (it % 2)
        if it == 4: k(xm(3))
        for i in range(4): k(f"v_alignbit_b32 v{e+i}, v{b+i+1}, v{b+i}, 16")
        for i in range(4): k(f"v_mov_b32 v{e+4+i}, v{b+i+1}")
        for i in range(3): k(f"v_mov_b32 v{e+8+i}, v{e+1+i}")
        k(f"v_alignbit_b32 v{e+11}, v{b+5}, v{b+4}, 16")
        for s_ in range(3): k(f"ds_write_b128 v127, v[{e+4*s_}:{e+4*s_+3}] offset:{CB + (s_+1)*4160 + it*1024}")
    k(f"s_mov_b64 exec, -1\nv_mov_b32 v60, s57\nv_mov_b32 v61, 1\ns_waitcnt vmcnt(0)\nds_write_b32 v60, v61")

def conv_run(k, o, st):
    CB = CBO; IS = [(7, 6, 1, 0), (5, 4, 3, 2), (0, 1, 2, 3, 4, 5, 6, 7)][st]; nm = max(IS) + 1
    VF, VGa = 140, 141
    k(f"""
    v_and_b32 v20, 15, v{VL}
    v_lshrrev_b32 v21, 4, v{VL}
    v_sub_u32 v22, 3, v20
    v_and_b32 v22, 3, v22
    v_mul_u32_u24 v22, 4160, v22
    v_lshrrev_b32 v23, 2, v20
    v_lshlrev_b32 v23, 3, v23
    v_sub_u32 v22, v22, v23
    v_lshl_add_u32 v22, v21, 4, v22
    v_add_u32 v22, {CB + 2*(2028-2016)}, v22
    v_add_u32 v{VF}, s59, v22
    v_lshlrev_b32 v23, 5, v20
    v_lshl_add_u32 v{VGa}, v21, 4, v23
    v_add_u32 v{VGa}, s59, v{VGa}
    v_lshl_add_u32 v130, v21, 3, v23
    v_add_u32 v131, s59, v130
    v_mov_b32 v24, s59
    ds_read_b32 v132, v24 offset:4608
    """)
    for i in range(4 * len(IS)): k(f"v_mov_b32 v{i}, 0")
    SETS = [32, 142]
    def creads(s, rho):
        b = SETS[s]; L = []
        for m in range(nm):
            gg = b + 32 + 4 * m; f = b + 4 * m
            L.append(f"ds_read_b128 v[{gg}:{gg+3}], v{VGa} offset:{64*(8*m + 7 - rho)}")
            L.append(f"ds_read_b64 v[{f}:{f+1}], v{VF} offset:{64*(63 - 8*m - rho)}")
            L.append(f"ds_read_b64 v[{f+2}:{f+3}], v{VF} offset:{64*(63 - 8*m - rho) + 8}")
        return L
    def cm(s):
        b = SETS[s]; L = []
        for m in range(nm):
            for n, I in enumerate(IS):
                if I < m: continue
                gg = b + 32 + 4 * (I - m); f = b + 4 * m
                L.append(f"v_mfma_f32_16x16x32_bf16 v[{4*n}:{4*n+3}], v[{f}:{f+3}], v[{gg}:{gg+3}], v[{4*n}:{4*n+3}]")
        return L
    k("\n".join(creads(0, 0)))
    k(f"s_mov_b32 s35, 0\nfz_cv{st}:\ns_waitcnt lgkmcnt(0)")
    k("\n".join(front2(cm(0), creads(1, 1), 1 if st == 2 else 2)))
    k(f"v_subrev_u32 v{VF}, 128, v{VF}\nv_subrev_u32 v{VGa}, 128, v{VGa}\ns_waitcnt lgkmcnt(0)")
    k("\n".join(front2(cm(1), creads(0, 0), 1 if st == 2 else 2)))
    k(f"s_add_u32 s35, s35, 1\ns_cmp_lt_u32 s35, 4\ns_cbranch_scc1 fz_cv{st}")
    k.srd(44, 4, XBYTES, add=WS_YT)
    k(f"s_lshl_b32 s30, s58, 12\ns_lshl_b32 s31, s58, 3\ns_add_u32 s31, s31, {FL_Y + 4*(st & 1)}\ns_waitcnt lgkmcnt(0)")
    for n, I in enumerate(IS): k(f"ds_read_b64 v[{32+2*n}:{33+2*n}], v131 offset:{480 + 512*I}")
    k("s_waitcnt lgkmcnt(0)")
    for n, I in enumerate(IS):
        a = 4 * n; oo = 64 + 2 * n
        for hh in range(2):
            u = 32 + 2 * n + hh; t = 100 + 8 * hh
            k(f"""
            v_lshlrev_b32 v{t}, 16, v{u}
            v_and_b32 v{t+1}, 0xffff0000, v{u}
            v_pk_fma_f32 v[{t}:{t+1}], v[{t}:{t+1}], v[132:133], v[{a+2*hh}:{a+2*hh+1}] op_sel_hi:[1,0,1]
            v_cvt_pk_bf16_f32 v{oo+hh}, v{t}, v{t+1}
            """)
        k(f"buffer_store_dwordx2 v[{oo}:{oo+1}], v130, s[44:47], s30 offen offset:{512*I} sc1")
    if st == 2:
        k(f"v_mov_b32 v34, 0\nv_mov_b32 v36, s{NON}\nv_mov_b32 v37, s{NON}\ns_waitcnt vmcnt(0)\ns_mov_b64 exec, 1\nbuffer_store_dwordx2 v[36:37], v34, s[{FLS}:{FLS+3}], s31 offen sc1")
    elif st == 0:
        k("s_mov_b32 s52, s31\ns_cmp_eq_u32 s3, 1\ns_cbranch_scc1 fz_runb")
        set_flag(k, 16, 17, 31)
    else:
        set_flag(k, 16, 17, 31)
        k(f"s_cmp_eq_u32 s3, 1\ns_cbranch_scc0 fz_fin\ns_mov_b64 exec, 1\nbuffer_store_dword v17, v16, s[{FLS}:{FLS+3}], s52 offen sc1")

def g3map(k, tp, e):
    k(f"s_and_b32 s{tp}, s2, 7\ns_lshl_b32 s{tp}, s{tp}, 2\ns_lshr_b32 s{e}, s2, 6\ns_add_u32 s{tp}, s{tp}, s{e}\ns_lshr_b32 s{e}, s2, 3\ns_and_b32 s{e}, s{e}, 7")

class Gemm3:
  def __init__(self, k, o):
    self.g = self.run(k, o)
  def pre(self): next(self.g)
  def wcheck(self): next(self.g)
  def wregs(self): next(self.g)
  def main(self): next(self.g, None)
  def run(self, k, o):
    RS = 336; YL = YL_
    TP, E = 20, 21
    k(f"""
    s_load_dwordx2 s[6:7], s[0:1], {ARG['x']}
    s_load_dwordx2 s[8:9], s[0:1], {ARG['out']}
    s_add_u32 s29, s{C}, s{W}
    s_and_b32 s29, s29, 15
    """)
    g3map(k, TP, E)
    k.srd(24, 4, WOBYTES, add=WS_WO)
    k.srd(36, 4, XBYTES, add=WS_YT)
    ACC = 0; RING = 80
    def HR(q): return 80 + 16 * q
    def WR(q): return 152 + 20 * q
    V16, V8, VH16, VH8 = 242, 243, 244, 245
    k(f"""
    v_lshlrev_b32 v{V16}, 4, v{VL}
    v_lshlrev_b32 v{V8}, 3, v{VL}
    v_lshrrev_b32 v4, 4, v{VL}
    v_and_b32 v5, 7, v{VL}
    v_lshl_add_u32 v5, v4, 3, v5
    v_and_b32 v6, 8, v{VL}
    v_cmp_eq_u32 vcc, 0, v6
    v_lshlrev_b32 v6, 4, v5
    v_lshlrev_b32 v7, 3, v5
    v_mov_b32 v8, {OOB}
    v_cndmask_b32 v{VH16}, v8, v6, vcc
    v_cndmask_b32 v{VH8}, v8, v7, vcc
    s_mul_i32 s57, s{TP}, {64*4608}
    s_mul_i32 s58, s{E}, {16*20736}
    v_lshrrev_b32 v4, 3, v{VL}
    v_lshl_add_u32 v4, v4, 2, s29
    v_and_b32 v4, 15, v4
    v_lshlrev_b32 v237, 5, v4
    v_and_b32 v5, 7, v{VL}
    v_lshl_add_u32 v237, v5, 2, v237
    s_lshl_b32 s10, s{E}, 9
    s_add_u32 s10, s10, {FL_W}
    v_add_u32 v237, s10, v237
    v_lshrrev_b32 v4, 1, v{VL}
    v_lshl_add_u32 v4, v4, 2, s29
    v_and_b32 v4, 15, v4
    v_and_b32 v5, 1, v{VL}
    v_lshlrev_b32 v5, 2, v5
    v_lshl_add_u32 v250, v4, 3, v5
    s_lshl_b32 s11, s{TP}, 7
    s_add_u32 s11, s11, {FL_H}
    v_add_u32 v250, s11, v250
    s_waitcnt lgkmcnt(0)
    """)
    def setgrp(dW):
        k(f"s_mul_i32 s50, s29, 4608\ns_add_u32 s50, s50, s57\ns_add_u32 s51, s50, {16*4608}\ns_add_u32 s52, s50, {32*4608}\ns_add_u32 s63, s50, {48*4608}")
        k(f"s_mul_i32 s54, s29, 20736\ns_add_u32 s54, s54, s58")
    def nextgrp(): k("s_add_u32 s29, s29, 4\ns_and_b32 s29, s29, 15"); setgrp(0)
    def hcheck(i):
        L = k.label("hc"); D = k.label("hd")
        k(f"""
        {L}:
        s_and_b32 s33, s59, {3 << (2*i)}
        s_cbranch_scc0 {D}
        s_add_u32 s62, s62, 1
        s_cmp_ge_u32 s62, {SPIN}
        s_cbranch_scc1 {D}
        {xm(0xff)}
        buffer_load_dword v251, v250, s[{FLS}:{FLS+3}], 0 offen sc1
        s_waitcnt vmcnt(0)
        v_cmp_ne_u32 vcc, s{NON}, v251
        s_mov_b64 exec, -1
        s_mov_b32 s59, vcc_lo
        s_branch {L}
        {D}:
        """)
    k.srd(40, 6, XBYTES)
    k.srd(44, 8, XBYTES)
    def loadsW(q):
        b = WR(q); L = []
        if q < 4:
            L.append(f"s_add_u32 s55, s54, {q*4608}")
            for dt in range(4): L.append(f"buffer_load_dwordx4 v[{b+4*dt}:{b+3+4*dt}], v{V16}, s[24:27], s55 offen offset:{dt*1024} sc1")
            L.append(f"s_add_u32 s55, s55, 4096")
            L.append(f"buffer_load_dwordx4 v[{b+16}:{b+19}], v{VH16}, s[24:27], s55 offen sc1")
        else:
            L.append(f"s_add_u32 s55, s54, 18432")
            for dt in range(4): L.append(f"buffer_load_dwordx2 v[{b+2*dt}:{b+1+2*dt}], v{V8}, s[24:27], s55 offen offset:{dt*512} sc1")
            L.append(f"buffer_load_dwordx2 v[{b+8}:{b+9}], v{VH8}, s[24:27], s55 offen offset:2048 sc1")
        return L
    def loadsH(q):
        b = HR(q); L = []
        if q < 4:
            for tb in range(4): L.append(f"buffer_load_dwordx4 v[{b+4*tb}:{b+4*tb+3}], v{V16}, s[12:15], s{[50, 51, 52, 63][tb]} offen offset:{q*1024} sc1")
        else:
            for tb in range(4): L.append(f"s_add_u32 s55, s{[50, 51, 52, 63][tb]}, 4096\nbuffer_load_dwordx2 v[{b+2*tb}:{b+2*tb+1}], v{V8}, s[12:15], s55 offen sc1")
        return L
    def mf(q, first=False):
        h = HR(q); w = WR(q); out = []
        for dt in range(5):
            for tb in range(4):
                a = ACC + (dt * 4 + tb) * 4
                cc = "0" if first else f"v[{a}:{a+3}]"
                if q < 4: out.append(f"v_mfma_f32_16x16x32_bf16 v[{a}:{a+3}], v[{w+4*dt}:{w+3+4*dt}], v[{h+4*tb}:{h+4*tb+3}], {cc}")
                else: out.append(f"v_mfma_f32_16x16x16_bf16 v[{a}:{a+3}], v[{w+2*dt}:{w+1+2*dt}], v[{h+2*tb}:{h+2*tb+1}], {cc}")
        return out
    setgrp(0)
    yield
    L = k.label("wf"); D = k.label("wfd")
    k(f"""
    s_mov_b32 s62, 0
    {xm(0x1f1f1f1f)}
    {L}:
    s_waitcnt vmcnt(0)
    v_cmp_ne_u32 vcc, s{NON}, v238
    s_cbranch_vccz {D}
    s_add_u32 s62, s62, 1
    s_cmp_ge_u32 s62, {SPIN}
    s_cbranch_scc1 {D}
    buffer_load_dword v238, v237, s[{FLS}:{FLS+3}], 0 offen sc1
    s_branch {L}
    {D}:
    s_mov_b64 exec, -1
    """)
    if o.get('wearly'):
        for q in range(4): k("\n".join(loadsW(q)))
    yield
    wl = o.get('wl', 2)
    for q in range(wl): k("\n".join(loadsW(q)))
    k(f"s_mul_i32 s56, s{W}, {REG}\ns_cmp_eq_u32 s{W}, 3\ns_cselect_b32 s56, {WQ[3]}, s56")
    k("s_mov_b64 exec, -1")
    yield
    k("s_mov_b64 exec, -1")
    k(f"v_add_u32 v246, s56, v{V16}\nv_add_u32 v247, s56, v{V8}\nv_and_b32 v248, 0x1ff, v{VH16}\nv_add_u32 v248, s56, v248\nv_and_b32 v249, 0xff, v{VH8}\nv_add_u32 v249, s56, v249")
    k("s_mov_b32 s59, 0xff\ns_mov_b32 s62, 0")
    hcheck(0)
    k.stamp(14)
    def ldsW(q):
        b = WR(q); L = []
        if q < 4:
            for dt in range(4): L.append(f"ds_read_b128 v[{b+4*dt}:{b+3+4*dt}], v246 offset:{q*4608 + dt*1024}")
            L.append(f"ds_read_b128 v[{b+16}:{b+19}], v248 offset:{q*4608 + 4096}")
        else:
            for dt in range(4): L.append(f"ds_read_b64 v[{b+2*dt}:{b+1+2*dt}], v247 offset:{18432 + dt*512}")
            L.append(f"ds_read_b64 v[{b+8}:{b+9}], v249 offset:{18432 + 2048}")
        return L
    Qv = []
    def need(*tags):
        last = max([i for i, t in enumerate(Qv) if t in tags], default=-1)
        n_ = len(Qv) - 1 - last
        del Qv[:last + 1]
        return n_ if last >= 0 else None
    def H(g_, q):
        k("\n".join(loadsH(q))); Qv.extend([("H", g_, q)] * 4)
    def dmaW(g_, q):
        nb = 4608 if q < 4 else 2304; nf_, rem = nb // 1024, nb % 1024
        k(f"s_add_u32 s55, s49, {q*4608}\ns_add_u32 m0, s56, {q*4608}")
        for i in range(nf_ + 1):
            if i == 4: k("s_add_u32 s55, s55, 4096\ns_add_u32 m0, m0, 4096")
            if i == nf_: k(xm((1 << (rem // 16)) - 1))
            k(f"buffer_load_dwordx4 v{V16}, s[24:27], s55 offen offset:{(i % 4)*1024} sc1 lds")
        k("s_mov_b64 exec, -1")
        Qv.extend([("W", g_, q)] * (nf_ + 1))
    for q in range(5):
        H(0, q)
        if q >= wl: k("\n".join(loadsW(q))); Qv.extend([("H", 0, q)] * 5)
    for g_ in range(3):
        nextgrp(); hcheck(g_ + 1)
        if g_ < 2: k("s_add_u32 s49, s29, 4\ns_and_b32 s49, s49, 15\ns_mul_i32 s49, s49, 20736\ns_add_u32 s49, s49, s58")
        if o.get('p3') == 2: k.stamp([11, 8, 9][g_])
        for q in range(5):
            n_ = need(("H", g_, q))
            if n_ is not None: k(f"s_waitcnt vmcnt({n_})")
            if g_ > 0 and q == 0: k("s_waitcnt lgkmcnt(0)")
            k("\n".join(mf(q, g_ == 0 and q == 0)))
            H(g_ + 1, q)
            n_ = need(("W", g_ + 1, q))
            if n_ is not None: k(f"s_waitcnt vmcnt({n_})")
            k("\n".join(ldsW(q)))
            if g_ < 2 and q > 0: k("s_waitcnt lgkmcnt(5)"); dmaW(g_ + 2, q - 1)
        if g_ < 2: k("s_waitcnt lgkmcnt(0)"); dmaW(g_ + 2, 4)
    if o.get('p3') == 2: k.stamp(10)
    XB = RING
    for q in range(5):
        k(f"s_waitcnt vmcnt({need(('H', 3, q))})" + (" lgkmcnt(0)" if q == 0 else ""))
        k("\n".join(mf(q)))
        if q == 0:
            Qv.extend([("X", 0, 0)] * 4)
            k(f"""
            s_lshl_b32 s30, s{TP}, 6
            v_add_u32 v{V8}, s30, v{VL}
            v_mul_u32_u24 v{V8}, 1152, v{V8}
            s_mul_i32 s30, s{E}, 144
            s_lshl_b32 s31, s{W}, 4
            s_add_u32 s30, s30, s31
            v_add_u32 v{V8}, s30, v{V8}
            s_mul_i32 s30, s{E}, 576
            s_add_u32 s30, s30, {FL_Y}
            v_lshlrev_b32 v247, 4, v{VL}
            buffer_load_dwordx4 v[248:251], v247, s[{FLS}:{FLS+3}], s30 offen sc1
            buffer_load_dwordx4 v[{XB}:{XB+3}], v{V8}, s[40:43], 0 offen
            buffer_load_dwordx4 v[{XB+4}:{XB+7}], v{V8}, s[40:43], 0 offen offset:64
            buffer_load_dwordx4 v[{XB+8}:{XB+11}], v{V8}, s[40:43], 0 offen offset:128
            v_and_b32 v{VH16}, 15, v{VL}
            v_mul_u32_u24 v{VH16}, {RS}, v{VH16}
            v_lshrrev_b32 v{VH8}, 4, v{VL}
            v_lshl_add_u32 v{VH16}, v{VH8}, 4, v{VH16}
            v_add_u32 v{VH16}, s56, v{VH16}
            """)
    if o.get('p3'): k.stamp(3)
    L = k.label("yp"); D = k.label("ypd")
    k(f"""
    s_mov_b32 s62, 0
    s_waitcnt vmcnt(3)
    {xm((1 << 36) - 1)}
    {L}:
    v_cmp_ne_u32 vcc, s{NON}, v248
    v_cmp_ne_u32 s[60:61], s{NON}, v249
    s_or_b64 vcc, vcc, s[60:61]
    v_cmp_ne_u32 s[60:61], s{NON}, v250
    s_or_b64 vcc, vcc, s[60:61]
    v_cmp_ne_u32 s[60:61], s{NON}, v251
    s_or_b64 vcc, vcc, s[60:61]
    s_cbranch_vccz {D}
    s_add_u32 s62, s62, 1
    s_cmp_ge_u32 s62, {SPIN}
    s_cbranch_scc1 {D}
    buffer_load_dwordx4 v[248:251], v247, s[{FLS}:{FLS+3}], s30 offen sc1
    s_waitcnt vmcnt(0)
    s_branch {L}
    {D}:
    s_mov_b64 exec, -1
    """)
    if o.get('p3'): k.stamp(4)
    k(f"""
    v_lshrrev_b32 v100, 3, v{VL}
    v_and_b32 v101, 7, v{VL}
    v_lshlrev_b32 v100, 12, v100
    v_lshl_add_u32 v100, v101, 4, v100
    s_mul_i32 s30, s{E}, {72*4096}
    s_lshl_b32 s31, s{TP}, 7
    s_add_u32 s30, s30, s31
    s_lshl_b32 s31, s{W}, 15
    s_add_u32 s30, s30, s31
    s_lshl_b32 s31, s{W}, 10
    s_add_u32 m0, s31, {YL}
    buffer_load_dwordx4 v100, s[36:39], s30 offen sc1 lds
    s_add_u32 s30, s30, {4*32768}
    s_add_u32 m0, s31, {YL+4096}
    buffer_load_dwordx4 v100, s[36:39], s30 offen sc1 lds
    s_cmp_lg_u32 s{W}, 0
    s_cbranch_scc1 fz_y2
    s_add_u32 s30, s30, {4*32768}
    s_mov_b32 m0, {YL+8192}
    buffer_load_dwordx4 v100, s[36:39], s30 offen sc1 lds
    fz_y2:
    """)
    for dt in range(5):
        for tb in range(4):
            a = ACC + (dt * 4 + tb) * 4
            k(f"ds_write_b128 v{VH16}, v[{a}:{a+3}] offset:{tb*16*RS + dt*64}")
    if o.get('p3'): k.stamp(5)
    if o.get('fb', 0):
        k(f"""
        v_mov_b32 v96, {RDY + 16}
        v_mov_b32 v97, 1
        s_mov_b64 exec, 1
        ds_add_u32 v96, v97
        s_mov_b64 exec, -1
        s_mov_b32 s62, 0
        fz_fb:
        ds_read_b32 v97, v96
        s_add_u32 s62, s62, 1
        s_waitcnt lgkmcnt(0)
        v_readfirstlane_b32 s33, v97
        s_cmp_ge_u32 s33, 4
        s_cbranch_scc1 fz_fbd
        s_cmp_lt_u32 s62, {SPIN*16}
        s_cbranch_scc1 fz_fb
        fz_fbd:
        """)
    else: k("s_waitcnt lgkmcnt(0)\ns_barrier")
    k(f"""
    v_mul_u32_u24 v{VH16}, {RS}, v{VL}
    s_lshl_b32 s30, s{W}, 5
    v_add_u32 v{VH16}, s30, v{VH16}
    v_add_u32 v246, {WQ[3]}, v{VH16}
    v_lshlrev_b32 v{VH8}, 1, v{VL}
    s_lshl_b32 s30, s{W}, 10
    s_add_u32 s30, s30, {YL}
    v_add_u32 v{VH8}, s30, v{VH8}
    """)
    def fin(ps):
        Pp = 0; Y = 40; Tm = 48
        for w in range(4):
            for hh in range(2):
                k(f"ds_read_b128 v[{Pp+8*w+4*hh}:{Pp+8*w+4*hh+3}], v{VH16 if w < 3 else 246} offset:{(w % 3 if w < 3 else 0)*64*RS + ps*128 + hh*16}")
        if ps == 0: k("s_waitcnt vmcnt(0)")
        for i in range(8): k(f"ds_read_u16 v{Y+i}, v{VH8} offset:{ps*4096 + i*128}")
        k("s_waitcnt lgkmcnt(0)")
        for i in range(4):
            a = Pp + 2 * i
            k(f"""
            v_pk_add_f32 v[{a}:{a+1}], v[{a}:{a+1}], v[{a+8}:{a+9}]
            v_pk_add_f32 v[{a+16}:{a+17}], v[{a+16}:{a+17}], v[{a+24}:{a+25}]
            v_pk_add_f32 v[{a}:{a+1}], v[{a}:{a+1}], v[{a+16}:{a+17}]
            v_lshlrev_b32 v{Tm+2}, 16, v{XB+4*ps+i}
            v_and_b32 v{Tm+3}, 0xffff0000, v{XB+4*ps+i}
            v_lshlrev_b32 v{Tm+4}, 16, v{Y+2*i}
            v_lshlrev_b32 v{Tm+5}, 16, v{Y+2*i+1}
            v_pk_add_f32 v[{Tm+2}:{Tm+3}], v[{Tm+2}:{Tm+3}], v[{Tm+4}:{Tm+5}]
            v_pk_add_f32 v[{a}:{a+1}], v[{a}:{a+1}], v[{Tm+2}:{Tm+3}]
            v_cvt_pk_bf16_f32 v{56+4*ps+i}, v{a}, v{a+1}
            """)
        k(f"buffer_store_dwordx4 v[{56+4*ps}:{59+4*ps}], v{V8}, s[44:47], 0 offen offset:{ps*64}")
    if o.get('p3'): k.stamp(6)
    fin(0); fin(1)
    if o.get('p3'): k.stamp(7)
    k(f"s_cmp_lg_u32 s{W}, 0\ns_cbranch_scc1 fz_fin")
    fin(2)
    k(f"""
    s_cmp_lg_u32 s2, 0
    s_cbranch_scc1 fz_fin
    v_mov_b32 v0, 0
    v_mov_b32 v1, s{NON}
    s_mov_b64 exec, 1
    buffer_store_dword v1, v0, s[{FLS}:{FLS+3}], 0 offen
    s_mov_b64 exec, -1
    s_branch fz_fin
    """)
```

```python
import sys; sys.path.insert(0, "dev")
from cm24 import *
SLOT = 34816; NS = 4
XTL = 104448; RPL = 114688
Z1 = 160
WOFF = 16384


ROWA = 139264
COLP = ROWA + 1024
WPRIV = COLP + 2 * 768
XTS = WPRIV + 1280
assert XTS + 4 * 5120 <= 163840
KTAB = 139264
CNT = WPRIV + 1024
WFL = 163000
RPK = XTS
WS_RS = WS_ST + 0x90000
def phase0(k, o):
    k(f"""
    s_load_dwordx2 s[6:7], s[0:1], {ARG['x']}
    s_load_dwordx2 s[8:9], s[0:1], {ARG['w_in']}
    s_load_dwordx2 s[4:5], s[0:1], {ARG['ws']}
    s_getpc_b64 s[28:29]
    fz_pc:
    s_cmp_ge_u32 s2, 256
    s_cbranch_scc1 fz_end
    v_lshrrev_b32 v1, 6, v0
    v_and_b32 v{VL}, 63, v0
    v_readfirstlane_b32 s{W}, v1
    s_and_b32 s30, s2, 7
    s_lshr_b32 s31, s2, 3
    v_lshrrev_b32 v1, 4, v0
    v_lshl_add_u32 v1, s31, 5, v1
    v_lshlrev_b32 v1, 7, v1
    v_min_u32 v1, fz_end-fz_pc, v1
    {xm(0x0001000100010001)}
    global_load_dword v254, v1, s[28:29]
    s_mov_b64 exec, -1
    s_and_b32 s{P}, s30, 1
    s_lshl_b32 s{P}, s{P}, 3
    s_lshr_b32 s32, s31, 2
    s_add_u32 s{P}, s{P}, s32
    s_lshr_b32 s{C}, s30, 1
    s_lshl_b32 s{C}, s{C}, 2
    s_and_b32 s32, s31, 3
    s_add_u32 s{C}, s{C}, s32
    s_lshl_b32 s63, s2, 3
    s_add_u32 s63, s63, s{W}
    s_mul_i32 s31, s63, 1152
    v_lshlrev_b32 v2, 4, v{VL}
    v_mov_b32 v3, {OOB}
    v_cmp_gt_u32 vcc, 36, v{VL}
    v_cndmask_b32 v2, v3, v2, vcc
    s_waitcnt lgkmcnt(0)
    """)
    k.srd(12, 6, XBYTES)
    k(f"""
    buffer_load_dwordx4 v[8:11], v2, s[12:15], s31 offen
    buffer_load_dwordx4 v[12:15], v2, s[12:15], s31 offen offset:576
    s_add_u32 s10, s4, {WS_FL}
    s_addc_u32 s11, s5, 0
    s_load_dword s{NON}, s[10:11], 0
    s_cmp_lt_u32 s{W}, 4
    s_cbranch_scc1 fz_c0
    s_cmp_lt_u32 s{W}, 6
    s_cbranch_scc1 fz_w0
    """)
    LX = p1_loader(k, o, "X"); next(LX)
    k("s_mov_b32 s3, 2\ns_branch fz_ln\nfz_w0:")
    LW = p1_loader(k, o, "W"); next(LW)
    k("s_mov_b32 s3, 1\ns_branch fz_ln\nfz_c0:")
    CC = p1_consumer(k, o); next(CC)
    k("s_mov_b32 s3, 0\nfz_ln:")
    ln1(k, o)
    k(f"s_cmp_eq_u32 s3, 0\ns_cbranch_scc1 fz_c1\ns_cmp_eq_u32 s3, 1\ns_cbranch_scc1 fz_l1W")
    next(LX, None)
    k("fz_l1W:")
    next(LW, None)
    k("fz_c1:")
    next(CC, None)

def ln1(k, o):
    X = 16; S = 112
    k.srd(FLS, 4, FL_BYTES, add=WS_FL)
    k(f"v_cmp_gt_u32 vcc, 36, v{VL}")
    for i in range(8): k(f"v_lshlrev_b32 v{X+2*i}, 16, v{8+i}\nv_and_b32 v{X+2*i+1}, 0xffff0000, v{8+i}")
    k(f"v_pk_add_f32 v[{S}:{S+1}], v[{X}:{X+1}], v[{X+2}:{X+3}]\nv_pk_add_f32 v[{S+2}:{S+3}], v[{X+4}:{X+5}], v[{X+6}:{X+7}]")
    for i in range(4, 8): k(f"v_pk_add_f32 v[{S+2*(i&1)}:{S+2*(i&1)+1}], v[{S+2*(i&1)}:{S+2*(i&1)+1}], v[{X+2*i}:{X+2*i+1}]")
    k(f"v_pk_add_f32 v[{S}:{S+1}], v[{S}:{S+1}], v[{S+2}:{S+3}]\nv_add_f32 v{S}, v{S}, v{S+1}")
    dpp_sum16(k, [S]); xsum_rows(k, S, S + 1)
    k(f"v_mul_f32 v{S}, {1.0/576!r}, v{S}\nv_cndmask_b32 v{S+6}, 0, v{S}, vcc")
    for i in range(8):
        t = 32 + 2 * i
        k(f"v_pk_add_f32 v[{t}:{t+1}], v[{X+2*i}:{X+2*i+1}], v[{S+6}:{S+7}] op_sel_hi:[1,0] neg_lo:[0,1] neg_hi:[0,1]")
    for i in range(8):
        t = 32 + 2 * i; q = S + 2 + 2 * (i & 1)
        if i < 2: k(f"v_pk_mul_f32 v[{q}:{q+1}], v[{t}:{t+1}], v[{t}:{t+1}]")
        else: k(f"v_pk_fma_f32 v[{q}:{q+1}], v[{t}:{t+1}], v[{t}:{t+1}], v[{q}:{q+1}]")
    k(f"v_pk_add_f32 v[{S+2}:{S+3}], v[{S+2}:{S+3}], v[{S+4}:{S+5}]\nv_add_f32 v{S+2}, v{S+2}, v{S+3}")
    dpp_sum16(k, [S + 2]); xsum_rows(k, S + 2, S + 3)
    k(f"v_mul_f32 v{S+2}, {1.0/576!r}, v{S+2}")
    k.srd(36, 4, XBYTES, add=WS_XN)
    k(f"s_waitcnt lgkmcnt(0)\ns_mul_i32 s{NON}, s{NON}, 0x9E3779B1\ns_add_u32 s{NON}, s{NON}, 0x7F4A7C15\ns_mul_i32 s31, s63, 1152")
    ln_finish(k, S, S + 2)
    k(f"v_mul_f32 v{S}, -v{S}, v{S+2}")
    for i in range(8): k(f"v_pk_fma_f32 v[{X+2*i}:{X+2*i+1}], v[{X+2*i}:{X+2*i+1}], v[{S+2}:{S+3}], v[{S}:{S+1}] op_sel_hi:[1,0,0]")
    for i in range(8): k(f"v_cvt_pk_bf16_f32 v{8+i}, v{X+2*i}, v{X+2*i+1}")
    k(f"""
    buffer_store_dwordx4 v[8:11], v2, s[36:39], s31 offen sc1
    buffer_store_dwordx4 v[12:15], v2, s[36:39], s31 offen offset:576 sc1
    v_mov_b32 v{S+1}, s{NON}
    v_mov_b32 v{S+3}, s{NON}
    s_lshl_b32 s63, s63, 4
    """)

def rowgran(k, srd, vz):
    k(f"v_mov_b32 v{vz}, 0\ns_mov_b64 exec, 1\nbuffer_store_dwordx4 v[112:115], v{vz}, s[{srd}:{srd+3}], s63 offen sc1\ns_mov_b64 exec, -1")

def get_nonce(k):
    k(f"s_add_u32 s10, s4, {WS_FL}\ns_addc_u32 s11, s5, 0\ns_load_dword s{NON}, s[10:11], 0")
    k.srd(FLS, 4, FL_BYTES, add=WS_FL)
def fin_nonce(k):
    k(f"s_waitcnt lgkmcnt(0)\ns_mul_i32 s{NON}, s{NON}, 0x9E3779B1\ns_add_u32 s{NON}, s{NON}, 0x7F4A7C15")

def p1_addr(k, VX0b, VX1b, VWb, tq_s):
    k(f"""
    v_and_b32 v3, 15, v{VL}
    v_lshrrev_b32 v4, 4, v{VL}
    v_lshrrev_b32 v5, 1, v3
    v_xor_b32 v5, v5, v4
    v_lshlrev_b32 v5, 4, v5
    v_lshl_add_u32 v5, v3, 7, v5
    s_lshl_b32 s32, s{tq_s}, 12
    v_add_u32 v{VX0b}, s32, v5
    v_xor_b32 v{VX1b}, 64, v{VX0b}
    v_bfe_u32 v5, v{VL}, 2, 2
    v_and_b32 v6, 1, v4
    v_lshl_add_u32 v5, v6, 2, v5
    v_lshrrev_b32 v6, 1, v4
    v_lshl_add_u32 v5, v6, 4, v5
    v_mul_u32_u24 v5, 288, v5
    v_and_b32 v6, 3, v{VL}
    v_lshl_add_u32 v5, v6, 3, v5
    v_add_u32 v{VWb}, {WOFF}, v5
    """)

def p1_loader(k, o, typ):
    VD = 200; n = 8 if typ == "X" else 9
    k(f"s_sub_u32 s57, s{W}, 4      ; lw\ns_setprio {o.get('prioL', 3)}")
    if typ == "X":
        k(f"""
        v_lshrrev_b32 v3, 3, v{VL}
        v_and_b32 v4, 7, v{VL}
        v_lshrrev_b32 v5, 4, v{VL}
        v_xor_b32 v4, v4, v5
        v_mul_u32_u24 v3, 1152, v3
        v_lshl_add_u32 v3, v4, 4, v3
        v_xor_b32 v4, 64, v3
        s_sub_u32 s31, s{W}, 6
        s_lshl_b32 s30, s{P}, 7
        s_lshl_b32 s32, s31, 6
        s_add_u32 s30, s30, s32
        s_mul_i32 s30, s30, 1152
        s_lshl_b32 s44, s31, 13
        """)
        k("s_mov_b32 s40, 0")
        for j in range(8):
            k(f"v_add_u32 v{VD+j}, s30, v{3 + (j & 1)}\ns_add_u32 s30, s30, {8*1152}\ns_add_u32 m0, s44, {j*1024}\nbuffer_load_dwordx4 v{VD+j}, s[12:15], s40 offen lds")
        kstep, k0 = 128, 0
    else:
        k(f"s_mul_i32 s32, s{C}, 288\ns_mov_b32 s33, 3641\ns_mul_i32 s31, s57, {9*64}\ns_mul_i32 s44, s57, {9*1024}\ns_add_u32 s44, s44, {WOFF}\nv_add_u32 v1, s31, v{VL}")
        k("s_mov_b32 s40, 4608")
        k.srd(12, 8, 576 * 9216)
        for j in range(9):
            k(f"""
            v_add_u32 v3, {64*j}, v1
            v_mul_lo_u32 v4, v3, s33
            v_lshrrev_b32 v4, 16, v4
            v_mul_u32_u24 v5, 18, v4
            v_sub_u32 v5, v3, v5
            v_and_b32 v6, 0x33, v4
            v_bfe_u32 v7, v4, 2, 1
            v_lshl_or_b32 v6, v7, 3, v6
            v_bfe_u32 v7, v4, 3, 1
            v_lshl_or_b32 v6, v7, 2, v6
            v_mul_u32_u24 v6, 9216, v6
            v_lshl_add_u32 v6, v5, 4, v6
            v_add_u32 v{VD+j}, s32, v6
            s_add_u32 m0, s44, {j*1024}
            buffer_load_dwordx4 v{VD+j}, s[12:15], s40 offen lds
            """)
        kstep = 64 * 9216
    k("s_mov_b32 s41, s44\ns_mov_b32 s43, 0")
    tch = 0
    TV = 209
    def issue(touch=True):
        L = []
        for j in range(8 if typ == 'X' else 9):
            L.append((f"s_add_u32 m0, s41, {j*1024}\n" if j else "s_mov_b32 m0, s41\n") + f"buffer_load_dwordx4 v{VD+j}, s[12:15], s40 offen {'sc1 ' if typ == 'X' else ''}lds")
        if tch and touch: L.append(f"s_cmp_lt_u32 s49, s51\ns_cselect_b32 s52, s49, {OOB}\nbuffer_load_dword v254, v{TV}, s[28:31], s52 offen\ns_add_u32 s49, s49, s50")
        L.append(f"s_add_u32 s40, s40, {kstep}\ns_add_u32 s41, s41, {SLOT}\ns_cmp_ge_u32 s41, {SLOT*NS}\ns_cselect_b32 s41, s44, s41")
        L.append(f"s_add_u32 s43, s43, 1\ns_cmp_eq_u32 s43, 9\ns_cselect_b32 s40, 0, s40")
        return L
    k("\n".join(issue(False)[n:]))
    k("\n".join(issue(False)))
    if o.get('p0'): k.stamp(5)
    pe = o.get('pe', 0)
    pb = o.get('pb', 2)
    for _ in range(pb - 2): k("\n".join(issue(False)))
    k(f"s_waitcnt vmcnt({pb*n})")
    yield
    for _ in range(pe): k("\n".join(issue(False)))
    if typ == "X": k(f"s_load_dwordx2 s[46:47], s[0:1], {ARG['w_sp']}\ns_load_dwordx2 s[54:55], s[0:1], {ARG['w_out']}")
    n0 = n; n = n + tch
    VX0, VX1, VW, VX0b, VX1b, VWb = 210, 211, 212, 213, 214, 215
    p1_addr(k, VX0b, VX1b, VWb, 57)
    CA = 44
    WF = 56
    ON = 108
    T = 116
    for i in range(4): k(f"v_mov_b32 v{ON+i}, 0x3f803f80")
    for i in range(12): k(f"v_mov_b32 v{CA+i}, 0")
    k(f"s_lshl_b32 s36, s57, 5\nv_add_u32 v{VWb}, s36, v{VWb}\nv_mov_b32 v{VW}, v{VWb}\ns_mov_b32 s34, 0\ns_mov_b32 s35, 0")
    k.srd(24, 4, 2048 * 16, add=WS_RS)
    k(f"s_lshl_b32 s36, s{P}, 7\ns_and_b32 s37, s57, 1\ns_lshl_b32 s37, s37, 6\ns_add_u32 s36, s36, s37\ns_lshl_b32 s36, s36, 4\nv_lshlrev_b32 v{T+8}, 4, v{VL}")
    k(f"""
    s_sub_u32 s56, 7, s{W}
    s_lshr_b32 s58, s56, 1
    s_xor_b32 s56, s56, s58
    s_lshl_b32 s58, s2, 1
    s_add_u32 s58, s58, s56
    s_add_u32 s59, s2, 512
    s_cmp_eq_u32 s56, 2
    s_cselect_b32 s58, s59, s58
    s_cmp_eq_u32 s56, 3
    s_cselect_b32 s58, 1000, s58
    s_lshl_b32 s59, s56, 13
    s_add_u32 s59, s59, {KTAB}
    """)
    adv = f"s_add_u32 s34, s34, {SLOT}\ns_cmp_ge_u32 s34, {SLOT*NS}\ns_cselect_b32 s34, 0, s34\nv_add_u32 v{VW}, s34, v{VWb}"
    nt = 3 if typ == "W" else 2
    smem = [0]
    def stage(z2, do_issue, wait, fill=None, twice=False):
        k(f"s_waitcnt vmcnt({wait}){' lgkmcnt(0)' if z2 else ''}\ns_barrier")
        if not z2 and o.get('spat') == 20:
            for _ in range(o.get('nsm', 11)):
                if smem[0] < 64: k(f"s_load_dword s45, s[38:39], {smem[0]*128}"); smem[0] += 1
        rd_ = []; mf = []
        if z2:
            for hf in range(2):
                for t in range(nt):
                    f = WF + (hf * 3 + t) * 4
                    for rd in range(2): rd_.append(f"ds_read_b64_tr_b16 v[{f+2*rd}:{f+2*rd+1}], v{VW} offset:{hf*32*288 + rd*8*288 + t*128}")
                    mf.append(f"v_mfma_f32_16x16x32_bf16 v[{CA+4*t}:{CA+4*t+3}], v[{ON}:{ON+3}], v[{f}:{f+3}], v[{CA+4*t}:{CA+4*t+3}]")
        dm = issue() if do_issue else []
        if twice: dm = dm + issue()
        if z2:
            k("\n".join(rd_ + dm[:2]))
            k("s_waitcnt lgkmcnt(0)")
            k("\n".join(front(dm[2:], mf)))
            k(adv)
        else: k("\n".join(dm))
        if fill: k("\n".join(fill))
        k("s_add_u32 s35, s35, 1")
    def gran_check(vd, va, so, full):
        L = k.label("rp"); D = k.label("rd")
        k(f"""
        s_mov_b32 s62, 0
        {"" if full else xm(0xffffffff)}
        {L}:
        v_cmp_ne_u32 vcc, s{NON}, v{vd+1}
        v_cmp_ne_u32 s[60:61], s{NON}, v{vd+3}
        s_or_b64 vcc, vcc, s[60:61]
        s_cbranch_vccz {D}
        s_add_u32 s62, s62, 1
        s_cmp_ge_u32 s62, {SPIN}
        s_cbranch_scc1 {D}
        buffer_load_dwordx4 v[{vd}:{vd+3}], v{va}, s[24:27], s{so} offen sc1
        s_waitcnt vmcnt(0)
        s_branch {L}
        {D}:
        """)
    if o.get('p0'):
        k.stamp(7); k(f"s_waitcnt vmcnt({n0 + 2})"); k.stamp(8)
    tot_ = pb + pe
    stage(True, tot_ < 4, (tot_ - 1) * n0 + 2, twice=(tot_ == 2))
    k(f"fz_l1{typ}a:")
    stage(True, True, 2 * n0)
    L = k.label("gr"); k(f"s_cmp_eq_u32 s35, 2\ns_cbranch_scc0 {L}"); rowgran(k, 24, T); k(f"{L}:")
    tp = o.get('tp', 6)
    if typ == "X" and tp > 5:
        L = k.label("rg")
        k(f"s_cmp_eq_u32 s35, 5\ns_cbranch_scc0 {L}\nbuffer_load_dwordx4 v[{T+4}:{T+7}], v{T+8}, s[24:27], s36 offen sc1\n{L}:")
    k(f"s_cmp_lt_u32 s35, 6\ns_cbranch_scc1 fz_l1{typ}a")
    def z1touch():
        k.srd(28, 8, 576 * 9216)
        k(f"""
        s_mul_i32 s33, s2, {3*9216}
        s_cmp_lt_u32 s2, 192
        s_cselect_b32 s33, s33, {OOB}
        s_sub_u32 s37, s{W}, 6
        s_mul_i32 s37, s37, 54
        v_add_u32 v{T+2}, s37, v{VL}
        v_mul_u32_u24 v{T+3}, 57, v{T+2}
        v_lshrrev_b32 v{T+3}, 11, v{T+3}
        v_mul_u32_u24 v{T+3}, {9216 - 36*128}, v{T+3}
        v_lshl_add_u32 v{T+2}, v{T+2}, 7, v{T+3}
        {xm((1 << 54) - 1)}
        buffer_load_dword v254, v{T+2}, s[28:31], s33 offen
        s_mov_b64 exec, -1
        """)
    def sptouch():
        k.srd(28, 46, 2048 * 4096)
        k(f"s_lshl_b32 s33, s2, 15\ns_sub_u32 s37, s{W}, 6\ns_lshl_b32 s37, s37, 10\ns_add_u32 s33, s33, s37\nv_lshrrev_b32 v{T+2}, 3, v{VL}\nv_lshlrev_b32 v{T+2}, 12, v{T+2}\nv_and_b32 v{T+3}, 7, v{VL}\nv_lshl_add_u32 v{T+2}, v{T+3}, 7, v{T+2}")
        for i in range(2): k(f"buffer_load_dword v254, v{T+2}, s[28:31], s33 offen offset:{i*2048}")
    def xswitch(w):
        k(f"s_waitcnt vmcnt({w})")
        gran_check(T + 4, T + 8, 36, True)
        k.srd(12, 4, XBYTES, add=WS_XN)
        k(f"""
        v_lshlrev_b32 v{T}, 2, v{VL}
        s_sub_u32 s33, s{W}, 6
        s_lshl_b32 s33, s33, 8
        s_add_u32 s33, s33, {ROWA}
        v_add_u32 v{T}, s33, v{T}
        ds_write_b32 v{T}, v{T+4}
        ds_write_b32 v{T}, v{T+6} offset:512
        """)
    X_ = typ == "X"
    if tp == 5:
        if X_: k(f"buffer_load_dwordx4 v[{T+4}:{T+7}], v{T+8}, s[24:27], s36 offen sc1"); z1touch(); sptouch()
        stage(True, False, 2 * n + 4 * X_); stage(True, False, n + 4 * X_)
        if X_: xswitch(3)
        stage(True, False, 3 * X_); left = 4
    else:
        if X_: z1touch(); xswitch(n + 1)
        stage(True, True, 2 * n + X_)
        if tp == 6:
            if X_: sptouch()
            stage(True, False, 2 * n + 3 * X_); stage(True, False, n + 3 * X_); left = 3
        else:
            stage(True, True, 2 * n + X_)
            if X_: sptouch()
            stage(True, False, 2 * n + 3 * X_); left = 2
    k(f"s_lshl_b32 s33, s57, 6\ns_add_u32 s33, s33, {COLP}\nv_lshlrev_b32 v{T}, 2, v{VL}\nv_add_u32 v{T}, s33, v{T}\n{xm(0xffff)}")
    for t in range(nt): k(f"ds_write_b32 v{T}, v{CA+4*t} offset:{t*256}")
    k("s_mov_b64 exec, -1\ns_waitcnt lgkmcnt(0)\ns_barrier")
    k.stamp(3)
    for _ in range(left): k("\n".join(issue()))
    tx = 2 * X_ if tp > 5 else 0
    ex = 0
    if typ == "X":
        pass
    else:
        k.srd(24, 4, XBYTES, add=WS_XN)
        k(f"""
        s_lshl_b32 s36, s{P}, 1
        s_lshr_b32 s33, s{C}, 3
        s_add_u32 s36, s36, s33          ; tp
        s_and_b32 s37, s{C}, 7           ; e
        s_lshl_b32 s33, s36, 1
        s_add_u32 s33, s33, s57
        s_mul_i32 s33, s33, {32*1152}
        s_mul_i32 s38, s37, 144
        s_add_u32 s33, s33, s38
        s_mov_b32 s38, {(1 << 16) // 9 + 1}
        s_mul_i32 s39, s57, 5120
        s_add_u32 s39, s39, {XTS}
        """)
        for i in range(5):
            k(f"""
            v_add_u32 v3, {64*i}, v{VL}
            v_mul_lo_u32 v4, v3, s38
            v_lshrrev_b32 v4, 16, v4
            v_mul_u32_u24 v5, 9, v4
            v_sub_u32 v5, v3, v5
            v_mul_u32_u24 v4, 1152, v4
            v_lshl_add_u32 v4, v5, 4, v4
            s_add_u32 m0, s39, {i*1024}
            buffer_load_dwordx4 v4, s[24:27], s33 offen sc1 lds
            """)
        k.srd(24, 4, XBYTES, add=WS_XT)
        k(f"""
        v_bfe_u32 v3, v{VL}, 2, 2
        v_lshrrev_b32 v4, 4, v{VL}
        v_lshl_add_u32 v3, v4, 3, v3     ; row = 8g + r
        v_mul_u32_u24 v3, 144, v3
        v_and_b32 v5, 3, v{VL}
        v_lshl_add_u32 v3, v5, 3, v3
        v_add_u32 v3, s39, v3
        v_and_b32 v5, 15, v{VL}
        v_lshlrev_b32 v5, 12, v5
        v_lshl_add_u32 v5, v4, 4, v5     ; d*4096 + g*16
        s_mul_i32 s39, s37, {72*4096}
        s_lshl_b32 s38, s36, 7
        s_add_u32 s39, s39, s38
        s_lshl_b32 s38, s57, 6
        s_add_u32 s39, s39, s38
        s_lshl_b32 s37, s37, 5
        s_add_u32 s36, s36, s37
        s_lshl_b32 s36, s36, 1
        s_add_u32 s36, s36, s57
        s_lshl_b32 s36, s36, 2
        s_add_u32 s36, s36, {FL_T}
        """)
        ex = 5
        xt2 = [f"s_waitcnt vmcnt({n})"]
        for dt in range(5):
            for rd in range(2): xt2.append(f"ds_read_b64_tr_b16 v[{56+4*dt+2*rd}:{57+4*dt+2*rd}], v3 offset:{4*rd*144 + dt*32}")
        xt2.append("s_waitcnt lgkmcnt(0)")
        for dt in range(5):
            if dt == 4: xt2.append(xm(0x00ff00ff00ff00ff))
            xt2.append(f"buffer_store_dwordx4 v[{56+4*dt}:{59+4*dt}], v5, s[24:27], s39 offen sc1\ns_add_u32 s39, s39, 65536")
        xt2.append("s_mov_b64 exec, -1")
    if o.get('spat') == 20:
        k(f"s_load_dwordx2 s[38:39], s[0:1], {ARG['w_sp']}\ns_lshl_b32 s33, s2, 2\ns_add_u32 s33, s33, s57\ns_lshl_b32 s33, s33, 13\ns_waitcnt lgkmcnt(0)\ns_add_u32 s38, s38, s33\ns_addc_u32 s39, s39, 0")
        for _ in range(o.get('nsm0', 12)): k(f"s_load_dword s45, s[38:39], {smem[0]*128}"); smem[0] += 1
    ka = split(kgen_addr(k, o), 4)
    pub = [f"""s_add_u32 s28, s4, {WS_ST}
    s_addc_u32 s29, s5, 0
    s_mov_b32 s30, {16*16*2048}
    s_mov_b32 s31, 0x20000
    v_and_b32 v{T}, 31, v{VL}
    v_lshlrev_b32 v{T+1}, 2, v{T}
    s_lshl_b32 s33, s57, 8
    s_add_u32 s33, s33, {WPRIV}
    v_add_u32 v{T+1}, s33, v{T+1}
    ds_read_b32 v{T+4}, v{T+1}
    ds_read_b32 v{T+6}, v{T+1} offset:128
    v_mov_b32 v{T+5}, s{NON}
    v_mov_b32 v{T+7}, s{NON}
    s_lshl_b32 s33, s{P}, 4
    s_add_u32 s33, s33, s{C}
    s_lshl_b32 s33, s33, 11
    s_lshl_b32 s53, s57, 9
    s_add_u32 s33, s33, s53
    v_lshlrev_b32 v{T}, 4, v{T}
    s_waitcnt lgkmcnt(0)
    {xm(0xffffffff)}
    buffer_store_dwordx4 v[{T+4}:{T+7}], v{T}, s[28:31], s33 offen sc1
    s_mov_b64 exec, -1"""]
    stage(False, False, 3 * n + tx + ex, pub + ka[0])
    if typ == "X":
        for i in range(3): stage(False, True, 2 * n + ex + (tx + 1 if (i == 0 and tp == 7) else 0), ka[1 + i])
    else:
        stage(False, True, 2 * n + ex, xt2 + ka[1])
        for i in range(2): stage(False, True, 2 * n, ka[2 + i])
    stage(False, True, 2 * n + tch)
    if typ == "W":
        L = k.label("xf")
        k(f"v_mov_b32 v{T}, 0\nv_mov_b32 v{T+1}, s{NON}\ns_mov_b64 exec, 1\nbuffer_store_dword v{T+1}, v{T}, s[{FLS}:{FLS+3}], s36 offen sc1\ns_mov_b64 exec, -1\n{L}:")
    stage(False, True, 2 * n + tch)
    e2 = 0
    if typ == "X":
        k.srd(28, 54, WOBYTES)
        k(f"s_mul_i32 s33, s2, {81*128}\ns_sub_u32 s37, s{W}, 6\ns_mul_i32 s37, s37, {41*128}\ns_add_u32 s33, s33, s37\nv_lshlrev_b32 v{T+2}, 7, v{VL}\n{xm((1 << 41) - 1)}\nbuffer_load_dword v254, v{T+2}, s[28:31], s33 offen\ns_mov_b64 exec, -1")
        e2 = 1
    kgen_setup(k, o)
    stage(False, False, 2 * n + tch + 14 + e2)
    Q = 56
    k.srd(24, 4, 16 * 16 * 2048, add=WS_ST)
    k(f"""
    v_and_b32 v{T}, 31, v{VL}
    v_lshlrev_b32 v{T+1}, 2, v{T}
    v_lshlrev_b32 v{T}, 4, v{T}
    v_lshrrev_b32 v{T+2}, 5, v{VL}
    v_lshl_add_u32 v{T}, v{T+2}, 14, v{T}
    s_lshl_b32 s52, s{P}, 15
    s_lshl_b32 s53, s57, 9
    s_add_u32 s52, s52, s53
    s_lshl_b32 s33, s57, 7
    s_add_u32 s33, s33, {ROWA}
    v_add_u32 v{T+1}, s33, v{T+1}
    s_mov_b32 s62, 0
    """)
    def sweep():
        for c2 in range(8): k(f"s_add_u32 s53, s52, {c2*2048}\nbuffer_load_dwordx4 v[{Q+4*c2}:{Q+3+4*c2}], v{T}, s[24:27], s53 offen sc1")
    sweep()
    stage(False, False, n + tch + 14 + 8 + e2)
    if typ == "W":
        b_setup(k)
    stage(False, False, 0)
    L = k.label("sp"); D = k.label("spd")
    k(f"{L}:\nv_xor_b32 v{T+5}, s{NON}, v{Q+1}")
    for c2 in range(8):
        for hh in range(2):
            if c2 == 0 and hh == 0: continue
            k(f"v_xor_b32 v{T+6+(c2+hh)%2}, s{NON}, v{Q+1+4*c2+2*hh}\nv_or_b32 v{T+5}, v{T+5}, v{T+6+(c2+hh)%2}")
    k(f"v_cmp_ne_u32 vcc, 0, v{T+5}\ns_cbranch_vccz {D}\ns_add_u32 s62, s62, 1\ns_cmp_ge_u32 s62, {SPIN}\ns_cbranch_scc1 {D}")
    sweep()
    k(f"s_waitcnt vmcnt(0)\ns_branch {L}\n{D}:")
    for c2 in range(1, 8): k(f"v_add_f32 v{Q}, v{Q}, v{Q+4*c2}\nv_add_f32 v{Q+2}, v{Q+2}, v{Q+2+4*c2}")
    m, v = Q, Q + 2
    k(f"""
    v_mov_b32 v{Q+1}, v{m}
    v_mov_b32 v{Q+3}, v{v}
    v_permlane32_swap_b32 v{m}, v{Q+1}
    v_permlane32_swap_b32 v{v}, v{Q+3}
    v_add_f32 v{m}, v{m}, v{Q+1}
    v_add_f32 v{v}, v{v}, v{Q+3}
    v_mul_f32 v{m}, {1.0/2304!r}, v{m}
    v_mul_f32 v{v}, {1.0/2304!r}, v{v}
    v_fma_f32 v{v}, -v{m}, v{m}, v{v}
    v_max_f32 v{v}, 0, v{v}
    """)
    ln_finish(k, m, v)
    k(f"v_mul_f32 v{m}, -v{m}, v{v}\nds_write_b32 v{T+1}, v{m}\nds_write_b32 v{T+1}, v{v} offset:512")
    if typ == "W":
        L = k.label("b0"); k(f"s_cmp_lg_u32 s{W}, 5\ns_cbranch_scc1 {L}")
        for j in range(16): k(f"s_mov_b32 m0, {18432 + j*1024}\nbuffer_load_dwordx4 v{220+j}, s[12:15], s40 offen lds")
        advk(k, 128)
        k(f"s_waitcnt lgkmcnt(0)\ns_barrier\ns_branch fz_ld5\n{L}:")
    k("s_waitcnt lgkmcnt(0)\ns_barrier")
    k.stamp(6)
    k("s_branch fz_loader")

def p1_consumer(k, o):
    A2, A1 = 0, 72
    FX, FY = 144, 188
    VX0, VX1, VW, VX0b, VX1b, VWb = 232, 233, 234, 235, 236, 237
    NMR, RR = 238, 240
    VC1, VONE = 242, 244
    V16 = 246; VPG, VPR = 247, 248
    k(f"s_lshl_b32 s30, s2, 2\ns_add_u32 s30, s30, s{W}")
    p1_addr(k, VX0b, VX1b, VWb, W)
    k(f"""
    v_add_u32 v{VX0}, {2*SLOT}, v{VX0b}
    v_add_u32 v{VX1}, {2*SLOT}, v{VX1b}
    v_add_u32 v{VW}, {2*SLOT}, v{VWb}
    s_mov_b32 s56, {fbits(C2)}
    s_mov_b32 s57, {fbits(C2)}
    v_mov_b32 v{VC1}, {fbits(C1)}
    v_mov_b32 v{VC1+1}, {fbits(C1)}
    v_mov_b32 v{VONE}, 1.0
    v_mov_b32 v{VONE+1}, 1.0
    v_lshlrev_b32 v{V16}, 4, v{VL}
    s_lshl_b32 s33, s{W}, 8
    s_add_u32 s33, s33, {WPRIV}
    v_lshrrev_b32 v3, 4, v{VL}
    v_lshlrev_b32 v3, 4, v3
    v_add_u32 v{VPG}, s33, v3
    v_and_b32 v3, 31, v{VL}
    v_lshlrev_b32 v3, 2, v3
    v_add_u32 v{VPR}, s33, v3
    s_setprio {o.get('prio1', 2)}
    """)
    if o.get('touch', 1):
        k(f"""
        v_mul_u32_u24 v3, 43, v{VL}
        v_lshrrev_b32 v3, 8, v3
        v_mul_u32_u24 v4, 6, v3
        v_sub_u32 v4, v{VL}, v4
        s_lshl_b32 s31, s30, 1
        v_add_u32 v3, s31, v3
        v_mul_u32_u24 v3, 1152, v3
        v_lshl_add_u32 v3, v4, 7, v3
        s_mul_i32 s31, s30, 14
        v_add_u32 v7, s31, v{VL}
        v_min_u32 v7, 13823, v7
        s_mov_b32 s32, 29128
        v_mul_lo_u32 v4, v7, s32
        v_lshrrev_b32 v4, 20, v4
        v_mul_u32_u24 v5, 36, v4
        v_sub_u32 v5, v7, v5
        v_mul_u32_u24 v4, 9216, v4
        v_lshl_add_u32 v4, v5, 7, v4
        v_add_u32 v4, {192*9216 + 4608}, v4
        {xm(0xfff)}
        global_load_dword v254, v3, s[6:7] offset:384
        {xm((1 << 14) - 1)}
        global_load_dword v254, v4, s[8:9]
        s_mov_b64 exec, -1
        """)

    if o.get('p0'): k.stamp(7)
    k(f"s_waitcnt vmcnt({2 if o.get('touch', 1) else 0})")
    if o.get('p0'): k.stamp(8)
    yield
    k.srd(36, 4, 2048 * 16, add=WS_RS)
    k("s_waitcnt lgkmcnt(0)")
    def reads(F, half, st):
        sl = st % 4; hi = sl >> 1; off = (sl & 1) * SLOT
        vx = [[VX0b, VX1b], [VX0, VX1]][hi][half]; vw = [VWb, VW][hi]
        r = [f"ds_read_b128 v[{F+4*tb}:{F+4*tb+3}], v{vx} offset:{off + tb*2048}" for tb in range(2)]
        for i in range(9):
            for rd in range(2):
                b = F + 8 + 4 * i + 2 * rd
                r.append(f"ds_read_b64_tr_b16 v[{b}:{b+1}], v{vw} offset:{off + half*32*288 + rd*8*288 + i*32}")
        return r
    def mfmas(F, z2, first=False):
        out = []; ACC = A2 if z2 else A1
        for i in range(9):
            for tb in range(2):
                a = ACC + (i * 2 + tb) * 4
                wf = f"v[{F+8+4*i}:{F+8+4*i+3}]"; xf = f"v[{F+4*tb}:{F+4*tb+3}]"
                A, B = (xf, wf) if z2 else (wf, xf)
                out.append(f"v_mfma_f32_16x16x32_bf16 v[{a}:{a+3}], {A}, {B}, {'0' if first else 'v[%d:%d]' % (a, a+3)}")
        return out
    G = o.get('G', 15)
    def spread(mf_, other):
        out = []; oi = 0
        for i, x in enumerate(mf_):
            out.append(x)
            want = min(len(other), -(-(i + 1) * len(other) // G))
            while oi < want: out.append(other[oi]); oi += 1
        return out + other[oi:]
    def gemm(z2):
        s0 = 0 if z2 else 9
        if o.get('p0') and z2: k.stamp(9)
        k("s_barrier")
        k.stamp(2 if z2 else 5)
        k("\n".join(reads(FX, 0, s0)))
        k("s_waitcnt lgkmcnt(0)")
        k("\n".join(spread(mfmas(FX, z2, True), reads(FY, 1, s0))))
        for st in range(s0 + 1, s0 + 9):
            if st == 2: k("s_waitcnt vmcnt(0)"); rowgran(k, 36, 249)
            k("s_waitcnt lgkmcnt(0)\ns_barrier")
            k("\n".join(spread(mfmas(FY, z2), reads(FX, 0, st))))
            k("s_waitcnt lgkmcnt(0)")
            k("\n".join(spread(mfmas(FX, z2), reads(FY, 1, st))))
        k("s_waitcnt lgkmcnt(0)")
        k("\n".join(mfmas(FY, z2)))
    gemm(True)
    k.stamp(3)
    SU, SQ = FX, FX + 8
    CP = FX + 16
    T = 196
    PS, PQ = 212, 220
    k(f"""
    v_and_b32 v{T}, 15, v{VL}
    v_lshlrev_b32 v{T}, 2, v{T}
    v_add_u32 v{T+1}, {COLP}, v{T}
    s_lshl_b32 s33, s{W}, 7
    s_add_u32 s33, s33, {ROWA}
    v_add_u32 v{T}, s33, v{T}
    v_lshrrev_b32 v{T+2}, 4, v{VL}
    v_lshlrev_b32 v{T+2}, 4, v{T+2}
    v_add_u32 v{T+2}, s33, v{T+2}
    s_barrier
    ds_read_b128 v[{SU}:{SU+3}], v{T+2}
    ds_read_b128 v[{SU+4}:{SU+7}], v{T+2} offset:64
    ds_read_b128 v[{SQ}:{SQ+3}], v{T+2} offset:512
    ds_read_b128 v[{SQ+4}:{SQ+7}], v{T+2} offset:576
    """)
    for i in range(9): k(f"ds_read_b32 v{CP+4*i}, v{T+1} offset:{i*64}")
    k("s_waitcnt lgkmcnt(0)")
    for i in range(9):
        pairs = [A2 + (i * 2) * 4, A2 + (i * 2) * 4 + 2, A2 + (i * 2 + 1) * 4, A2 + (i * 2 + 1) * 4 + 2]
        cs = CP + 4 * i
        for n, a in enumerate(pairs): k(f"v_pk_mul_f32 v[{T+2*n}:{T+2*n+1}], v[{SU+2*n}:{SU+2*n+1}], v[{cs}:{cs+1}] op_sel_hi:[1,0]")
        for n, a in enumerate(pairs): k(f"v_pk_fma_f32 v[{a}:{a+1}], v[{a}:{a+1}], v[{SQ+2*n}:{SQ+2*n+1}], v[{T+2*n}:{T+2*n+1}]")
        gelu_group(k, pairs, T, 56, VC1, VONE)
        for n, a in enumerate(pairs):
            if i == 0: k(f"v_pk_mul_f32 v[{PQ+2*n}:{PQ+2*n+1}], v[{a}:{a+1}], v[{a}:{a+1}]\nv_mov_b32 v{PS+2*n}, v{a}\nv_mov_b32 v{PS+2*n+1}, v{a+1}")
            else: k(f"v_pk_fma_f32 v[{PQ+2*n}:{PQ+2*n+1}], v[{a}:{a+1}], v[{a}:{a+1}], v[{PQ+2*n}:{PQ+2*n+1}]\nv_pk_add_f32 v[{PS+2*n}:{PS+2*n+1}], v[{PS+2*n}:{PS+2*n+1}], v[{a}:{a+1}]")
    dpp_sum16(k, list(range(PS, PS + 16)))
    k(f"""
    {xm(0x0001000100010001)}
    ds_write_b128 v{VPG}, v[{PS}:{PS+3}]
    ds_write_b128 v{VPG}, v[{PS+4}:{PS+7}] offset:64
    ds_write_b128 v{VPG}, v[{PQ}:{PQ+3}] offset:128
    ds_write_b128 v{VPG}, v[{PQ+4}:{PQ+7}] offset:192
    s_mov_b64 exec, -1
    s_waitcnt lgkmcnt(0)
    """)
    k.stamp(4)
    gemm(False)
    k.stamp(6)
    T = 196
    SU, SQ = 148, 156
    k(f"""
    v_lshrrev_b32 v249, 4, v{VL}
    v_lshlrev_b32 v249, 4, v249
    s_lshl_b32 s33, s{W}, 7
    s_add_u32 s33, s33, {ROWA}
    v_add_u32 v249, s33, v249
    """)
    k.srd(36, 4, FRAG9, add=WS_Z2)
    k(f"""
    s_mul_i32 s32, s{C}, {9*64}
    s_lshl_b32 s33, s{P}, 2
    s_add_u32 s33, s33, s{W}         ; kb
    s_add_u32 s32, s32, s33
    s_lshl_b32 s32, s32, 10
    s_lshl_b32 s34, s{C}, 6
    s_add_u32 s34, s34, s33
    s_lshl_b32 s34, s34, 2
    s_add_u32 s34, s34, {FL_2}
    s_lshr_b32 s33, s{W}, 1
    s_mul_i32 s33, s33, {SLOT}
    s_and_b32 s53, s{W}, 1
    s_lshl_b32 s53, s53, 10
    s_add_u32 s33, s33, s53
    v_add_u32 v250, s33, v{V16}
    s_barrier
    ds_read_b128 v[{SU}:{SU+3}], v249
    ds_read_b128 v[{SU+4}:{SU+7}], v249 offset:64
    ds_read_b128 v[{SQ}:{SQ+3}], v249 offset:512
    ds_read_b128 v[{SQ+4}:{SQ+7}], v249 offset:576
    s_waitcnt lgkmcnt(0)
    """)
    k.stamp(7)
    for i in range(9):
        oo = 164 + (i % 4) * 4
        for sb in range(2):
            a = A2 + (i * 2 + sb) * 4
            for hh in range(2):
                k(f"v_pk_fma_f32 v[{a+2*hh}:{a+2*hh+1}], v[{a+2*hh}:{a+2*hh+1}], v[{SQ+4*sb+2*hh}:{SQ+4*sb+2*hh+1}], v[{SU+4*sb+2*hh}:{SU+4*sb+2*hh+1}]")
            for hh in range(2): k(f"v_cvt_pk_bf16_f32 v{oo+2*sb+hh}, v{a+2*hh}, v{a+2*hh+1}")
        k(f"v_permlane16_swap_b32 v{oo}, v{oo+2}\nv_permlane16_swap_b32 v{oo+1}, v{oo+3}")
        k(f"buffer_store_dwordx4 v[{oo}:{oo+3}], v{V16}, s[36:39], s32 offen sc1\ns_add_u32 s32, s32, 65536")
        k(f"ds_write_b128 v250, v[{oo}:{oo+3}] offset:{i*2048}")
    k.stamp(8)
    k("s_mov_b32 s48, s34\ns_branch fz_cons")

def side_issue(k, o, sb, st):
    k(f"""
    s_mul_i32 s36, s{sb}, 52429
    s_lshr_b32 s36, s36, 18
    s_mul_i32 s37, s36, 5
    s_sub_u32 s37, s{sb}, s37        ; q
    s_lshr_b32 s33, s36, 4
    s_and_b32 s35, s36, 15
    s_mul_i32 s35, s35, 144
    s_lshl_b32 s37, s37, 5
    s_add_u32 s35, s35, s37
    s_mul_i32 s35, s35, 1152
    s_mul_i32 s33, s33, 144
    s_add_u32 s35, s35, s33
    s_cmp_lt_u32 s{sb}, 640
    s_cselect_b32 s35, s35, {OOB}
    s_mov_b32 s33, {(1 << 16) // 9 + 1}
    """)
    for i in range(5):
        k(f"""
        v_add_u32 v44, {64*i}, v{VL}
        v_mul_lo_u32 v45, v44, s33
        v_lshrrev_b32 v45, 16, v45
        v_mul_u32_u24 v46, 9, v45
        v_sub_u32 v46, v44, v46
        v_mul_u32_u24 v45, 1152, v45
        v_lshl_add_u32 v45, v46, 4, v45
        s_add_u32 m0, s{st}, {i*1024}
        buffer_load_dwordx4 v45, s[24:27], s35 offen lds
        """)

def side_run(k, o, sb, st, fl):
    E = k.label("sr"); L2 = k.label("sr"); L3 = k.label("sr")
    k(f"""
    s_cmp_ge_u32 s{sb}, 640
    s_cbranch_scc1 {E}
    v_bfe_u32 v47, v{VL}, 2, 2
    v_and_b32 v48, 3, v{VL}
    v_lshrrev_b32 v51, 4, v{VL}
    v_lshl_add_u32 v47, v51, 2, v47
    v_mul_u32_u24 v47, 144, v47
    v_lshl_add_u32 v47, v48, 3, v47
    v_add_u32 v47, s{st}, v47
    """)
    for dt in range(5):
        k(f"ds_read_b64_tr_b16 v[{54+4*dt}:{55+4*dt}], v47 offset:{dt*32}")
        k(f"ds_read_b64_tr_b16 v[{56+4*dt}:{57+4*dt}], v47 offset:{dt*32 + 16*144}")
    k(f"""
    v_lshlrev_b32 v52, 4, v{VL}
    v_lshlrev_b32 v53, 3, v{VL}
    v_and_b32 v78, 7, v{VL}
    v_lshl_add_u32 v78, v51, 3, v78
    v_lshlrev_b32 v79, 4, v78
    v_lshlrev_b32 v78, 3, v78
    s_mul_i32 s36, s{sb}, 52429
    s_lshr_b32 s36, s36, 18
    s_mul_i32 s37, s36, 5
    s_sub_u32 s37, s{sb}, s37
    s_mul_i32 s33, s36, 20736
    s_mul_i32 s35, s37, 4608
    s_add_u32 s33, s33, s35
    s_add_u32 s35, s33, 4096
    s_lshl_b32 s{fl}, s36, 3
    s_add_u32 s{fl}, s{fl}, s37
    s_lshl_b32 s{fl}, s{fl}, 2
    s_add_u32 s{fl}, s{fl}, {FL_W}
    s_cmp_eq_u32 s37, 4
    s_waitcnt lgkmcnt(0)
    s_cbranch_scc1 {L2}
    """)
    for dt in range(4): k(f"buffer_store_dwordx4 v[{54+4*dt}:{57+4*dt}], v52, s[28:31], s33 offen offset:{dt*1024} sc1")
    k(xm(0x00ff00ff00ff00ff))
    k(f"buffer_store_dwordx4 v[70:73], v79, s[28:31], s35 offen sc1\ns_branch {L3}\n{L2}:")
    for dt in range(4): k(f"buffer_store_dwordx2 v[{54+4*dt}:{55+4*dt}], v53, s[28:31], s33 offen offset:{dt*512} sc1")
    k(xm(0x00ff00ff00ff00ff))
    k(f"buffer_store_dwordx2 v[70:71], v78, s[28:31], s33 offen offset:2048 sc1\n{L3}:\ns_mov_b64 exec, -1\n{E}:")

def b_setup(k):
    k(f"""
    s_load_dwordx2 s[6:7], s[0:1], {ARG['w_sp']}
    v_lshrrev_b32 v3, 3, v{VL}
    v_and_b32 v4, 7, v{VL}
    v_lshrrev_b32 v5, 4, v{VL}
    v_xor_b32 v4, v4, v5
    v_and_b32 v5, 1, v4
    v_lshlrev_b32 v5, 1, v5
    v_bfe_u32 v6, v4, 1, 1
    v_and_b32 v4, 4, v4
    v_or_b32 v4, v4, v5
    v_or_b32 v4, v4, v6
    v_lshlrev_b32 v4, 4, v4
    v_lshl_add_u32 v4, v3, 12, v4
    s_lshl_b32 s33, s{P}, 19
    v_add_u32 v4, s33, v4
    v_xor_b32 v5, 64, v4
    s_lshl_b32 s45, s{P}, 8
    s_mov_b32 s40, s45
    s_mov_b32 s44, 18432
    s_mov_b32 s41, 18432
    s_mov_b32 s43, 0
    s_mov_b32 s42, -1
    """)
    for j in range(16): k(f"v_add_u32 v{220+j}, {j*32768}, v{4 + (j & 1)}")
    k("s_waitcnt lgkmcnt(0)")
    k.srd(12, 6, 2048 * 4096)

def advk(k, kstep):
    k(f"""
    s_add_u32 s40, s40, {kstep}
    s_add_u32 s43, s43, 1
    s_cmp_eq_u32 s43, 2
    s_cselect_b32 s40, 0, s40
    s_cselect_b32 s42, s45, s42
    s_cmp_eq_u32 s40, s42
    s_cselect_b32 s33, {2*kstep}, 0
    s_add_u32 s40, s40, s33
    s_add_u32 s41, s41, {SLOT}
    s_cmp_ge_u32 s41, {SLOT*NS}
    s_cselect_b32 s41, s44, s41
    """)

def phase2(k, o):
    NST = 32
    k("fz_cons:")
    k.stamp(10)
    ACC = 0; ZR = 72; FX = 144; FY = 188
    VA, VB0, VB1, VAb, VB0b, VB1b = 232, 233, 234, 235, 236, 239
    GT = [240, 241, 246, 247, 248, 249]; VC2 = 252; BS = [253, 251]
    k(f"""
    s_load_dwordx2 s[8:9], s[0:1], {ARG['b_sp']}
    s_lshl_b32 s30, s{P}, 3
    s_lshl_b32 s31, s{W}, 1
    s_add_u32 s30, s30, s31
    s_lshl_b32 s31, s30, 4
    s_add_u32 s31, s31, s{C}
    s_mul_i32 s31, s31, 4608
    s_add_u32 s32, s31, {16*4608}
    v_and_b32 v3, 15, v{VL}
    v_lshrrev_b32 v{VB0b}, 4, v{VL}
    v_lshrrev_b32 v{VB1b}, 1, v3
    v_xor_b32 v{VB0b}, v{VB0b}, v{VB1b}
    v_lshlrev_b32 v{VB0b}, 4, v{VB0b}
    v_lshl_add_u32 v{VB0b}, v3, 7, v{VB0b}
    s_lshl_b32 s34, s{W}, 12
    s_add_u32 s34, s34, 18432
    v_add_u32 v{VB0b}, s34, v{VB0b}
    v_xor_b32 v{VB1b}, 64, v{VB0b}
    v_lshlrev_b32 v{VAb}, 4, v{VL}
    v_add_u32 v{VA}, {2*SLOT}, v{VAb}
    v_add_u32 v{VB0}, {2*SLOT}, v{VB0b}
    v_add_u32 v{VB1}, {2*SLOT}, v{VB1b}
    s_lshl_b32 s34, s30, 4
    v_add_u32 v3, s34, v3
    v_lshlrev_b32 v3, 1, v3
    v_mov_b32 v{VC2}, {fbits(C2)}
    s_waitcnt lgkmcnt(0)
    global_load_ushort v{BS[0]}, v3, s[8:9]
    global_load_ushort v{BS[1]}, v3, s[8:9] offset:32
    s_mov_b32 s34, 0
    s_setprio {o.get('prio', 2)}
    s_lshl_b32 s28, s{P}, 1
    s_lshr_b32 s10, s{W}, 1
    s_add_u32 s28, s28, s10
    s_lshl_b32 s28, s28, 4
    s_add_u32 s28, s28, s{C}
    s_lshl_b32 s28, s28, 1
    s_and_b32 s10, s{W}, 1
    s_add_u32 s28, s28, s10
    s_lshl_b32 s28, s28, 2
    s_add_u32 s28, s28, {FL_H}
    """)
    g3 = Gemm3(k, o)
    g3.pre()
    def reads(F, half, st):
        sl = st % 4; hi = sl >> 1; off = (sl & 1) * SLOT
        vb = [[VB0b, VB1b], [VB0, VB1]][hi][half]; va = [VAb, VA][hi]
        r = [f"ds_read_b128 v[{F+4*tb}:{F+4*tb+3}], v{vb} offset:{off + tb*2048}" for tb in range(2)]
        r += [f"ds_read_b128 v[{F+8+4*ft}:{F+8+4*ft+3}], v{va} offset:{off + (ft*2+half)*1024}" for ft in range(9)]
        return r
    def mfmas(F, first=False):
        return [f"v_mfma_f32_16x16x32_bf16 v[{ACC+(ft*2+tb)*4}:{ACC+(ft*2+tb)*4+3}], v[{F+8+4*ft}:{F+8+4*ft+3}], v[{F+4*tb}:{F+4*tb+3}], " + ("0" if first else f"v[{ACC+(ft*2+tb)*4}:{ACC+(ft*2+tb)*4+3}]")
                for ft in range(o.get('nft', 9)) for tb in range(2)]
    adv = [f"s_add_u32 s34, s34, {SLOT}\ns_cmp_ge_u32 s34, {SLOT*NS}\ns_cselect_b32 s34, 0, s34",
           f"v_add_u32 v{VA}, s34, v{VAb}", f"v_add_u32 v{VB0}, s34, v{VB0b}", f"v_add_u32 v{VB1}, s34, v{VB1b}"]
    def gpair(n):
        if n >= 36: return []
        a = ZR + 2 * n; t = GT[2 * (n % 3)]; u = GT[2 * (n % 3) + 1]
        return [f"v_mul_f32 v{t}, v{a}, v{a}", f"v_mul_f32 v{u}, v{a+1}, v{a+1}",
                f"v_fmaak_f32 v{t}, v{VC2}, v{t}, {fbits(C1)}", f"v_fmaak_f32 v{u}, v{VC2}, v{u}, {fbits(C1)}",
                f"v_mul_f32 v{t}, v{t}, v{a}", f"v_mul_f32 v{u}, v{u}, v{a+1}",
                f"v_exp_f32 v{t}, v{t}", f"v_exp_f32 v{u}, v{u}",
                f"v_add_f32 v{t}, 1.0, v{t}", f"v_add_f32 v{u}, 1.0, v{u}",
                f"v_rcp_f32 v{t}, v{t}", f"v_rcp_f32 v{u}, v{u}",
                f"v_mul_f32 v{a}, v{a}, v{t}", f"v_mul_f32 v{a+1}, v{a+1}, v{u}",
                f"v_cvt_pk_bf16_f32 v{a}, v{a}, v{a+1}"]
    def weave(mf, rd, fill):
        out = []; fi = 0
        for i, x in enumerate(mf):
            out.append(x)
            if i < len(rd): out.append(rd[i])
            if fi < len(fill) and i >= 2: out.append(fill[fi]); fi += 1
        return out + rd[len(mf):] + fill[fi:]
    NU = o.get('NU', 12)
    gb = o.get('gb', 0)
    allf = [x for n_ in range(36 - gb) for x in gpair(n_)]
    nh = 2 * NU; per_ = -(-len(allf) // nh)
    fl = [allf[i * per_:(i + 1) * per_] for i in range(nh)]
    def weave(mf, rd, fill):
        out = []; fi = 0; n_ = len(mf)
        for i, x in enumerate(mf):
            out.append(x)
            if i < len(rd): out.append(rd[i])
            want = (i + 1) * len(fill) // n_ if o.get('even', 1) else (i - 1 if i >= 2 else 0)
            while fi < min(want, len(fill)): out.append(fill[fi]); fi += 1
        return out + rd[len(mf):] + fill[fi:]
    k("s_barrier")
    k.stamp(11)
    bp = o.get('bp', 18)
    def stage2(st, f0, f1, extra=(), tail=()):
        k("\n".join(weave(mfmas(FY), reads(FX, 0, st), f0)))
        k("s_waitcnt lgkmcnt(0)")
        w = weave(mfmas(FX), reads(FY, 1, st) + list(extra), f1)
        idx = [i for i, x in enumerate(w) if x.startswith("v_mfma")]
        cut = len(w) if bp >= 18 else idx[bp]
        k("\n".join(w[:cut] + list(tail) + ["s_waitcnt lgkmcnt(0)", "s_barrier"] + w[cut:]))
    k("\n".join(reads(FX, 0, 0) + fl[0]))
    k("s_waitcnt lgkmcnt(0)")
    k("\n".join(weave(mfmas(FX, True), reads(FY, 1, 0), fl[1])))
    zf = f"v_mov_b32 v238, 0\nv_mov_b32 v254, s{NON}\ns_waitcnt vmcnt(2)\ns_mov_b64 exec, 1\nbuffer_store_dword v254, v238, s[{FLS}:{FLS+3}], s48 offen sc1\ns_mov_b64 exec, -1"
    if o.get('zfp', 0) == 0: k(zf); k.stamp(9)
    k("s_waitcnt lgkmcnt(0)\ns_barrier")
    assert NU % 4 == 0
    for st in range(1, NU):
        tail = [zf] if (st == 1 and o.get('zfp', 0) == 1) else []
        if st == 1 and gb:
            for n0 in range(36 - gb, 36, 3):
                g3_ = [gpair(n_) for n_ in range(n0, min(36, n0 + 3))]
                for pos in range(15): tail += [g_[pos] for g_ in g3_]
        stage2(st, fl[2 * st], fl[2 * st + 1], tail=tail)
    if o.get('p2'): k.stamp(10)
    k(f"s_mov_b32 s35, {NU}\nfz_cloop:")
    for u in range(4):
        stage2(u, [], [], extra=(["s_add_u32 s35, s35, 4", "s_cmp_lt_u32 s35, 28"] if u == 3 else []))
    k("s_cbranch_scc1 fz_cloop")
    for u in range(4):
        stage2(u, [], [], extra=([f"buffer_load_dword v238, v237, s[{FLS}:{FLS+3}], 0 offen sc1"] if u == 0 else []))
    k("\n".join(mfmas(FY)))
    k.stamp(12)
    k.srd(12, 4, FRAG9, add=WS_H)
    g3.wcheck()
    VBS = 232
    k("s_setprio 3")
    k(f"v_lshlrev_b32 v{VBS}, 16, v{BS[0]}\nv_lshlrev_b32 v{VBS+2}, 16, v{BS[1]}\nv_mov_b32 v{VBS+1}, v{VBS}\nv_mov_b32 v{VBS+3}, v{VBS+2}")
    for tb in range(2):
        b = VBS + 2 * tb
        for q in range(5):
            nt = 2 if q < 4 else 1
            oo = 144 + (tb * 5 + q) % 2 * 4
            for t in range(nt):
                a = ACC + ((2 * q + t) * 2 + tb) * 4
                for hh in range(2):
                    z = ZR + ((2 * q + t) * 2 + tb) * 4 + 2 * hh; u = 236 + 2 * ((2 * t + hh) % 3)
                    k(f"""
                    v_pk_add_f32 v[{a+2*hh}:{a+2*hh+1}], v[{a+2*hh}:{a+2*hh+1}], v[{b}:{b+1}]
                    v_lshlrev_b32 v{u}, 16, v{z}
                    v_and_b32 v{u+1}, 0xffff0000, v{z}
                    v_pk_mul_f32 v[{a+2*hh}:{a+2*hh+1}], v[{a+2*hh}:{a+2*hh+1}], v[{u}:{u+1}]
                    v_cvt_pk_bf16_f32 v{oo+t*2+hh}, v{a+2*hh}, v{a+2*hh+1}
                    """)
            if q < 4: k(f"buffer_store_dwordx4 v[{oo}:{oo+3}], v242, s[12:15], s{31+tb} offen offset:{q*1024} sc1")
            else: k(f"s_add_u32 s33, s{31+tb}, 4096\nbuffer_store_dwordx2 v[{oo}:{oo+1}], v243, s[12:15], s33 offen sc1")
    if o.get('p3'): k.stamp(2)
    k(f"v_mov_b32 v0, 0\nv_mov_b32 v1, s{NON}\ns_waitcnt vmcnt(0)\ns_mov_b64 exec, 1\nbuffer_store_dword v1, v0, s[{FLS}:{FLS+3}], s28 offen sc1\ns_mov_b64 exec, -1")
    k.stamp(13)
    k(f"s_setprio {o.get('prio4', 1)}")
    g3.wregs()
    g3.main()
    k("fz_loader:\ns_setprio 0")
    for j in range(16): k(f"v_mov_b32 v{198+j}, 0")
    def issue(n, kstep, sc, chk=False, j0=0):
        if chk:
            L = k.label("pc"); D = k.label("pd")
            k(f"""
            {L}:
            s_lshr_b32 s33, s40, 10
            s_and_b32 s33, s33, 60
            s_lshr_b64 s[48:49], s[46:47], s33
            s_and_b32 s48, s48, 15
            s_cbranch_scc0 {D}
            s_add_u32 s62, s62, 1
            s_cmp_ge_u32 s62, {SPIN}
            s_cbranch_scc1 {D}
            buffer_load_dword v200, v199, s[{FLS}:{FLS+3}], s30 offen sc1
            s_waitcnt vmcnt(0)
            v_cmp_ne_u32 s[46:47], s{NON}, v200
            s_branch {L}
            {D}:
            """)
        for j in range(0 if o.get('nodma2') else n):
            k((f"s_add_u32 m0, s41, {(j+j0)*1024}\n" if j + j0 else "s_mov_b32 m0, s41\n") + f"buffer_load_dwordx4 v{VL_(j)}, s[12:15], s40 offen {sc}lds")
        advk(k, kstep)
    VL_ = lambda j: 112 + j
    def ring(tag, n, kstep, sc, first):
        k(f"s_setprio {o.get('prioR', 3)}")
        wst_setup(k, o, 214)
        if o.get('l4', 1):
            k(f"s_mov_b32 s35, {first}\nfz_h{tag}:\ns_waitcnt vmcnt({2*n})\ns_barrier")
            issue(n, kstep, sc, tag == "A")
            k(f"s_add_u32 s35, s35, 1\ns_cmp_lt_u32 s35, 5\ns_cbranch_scc1 fz_h{tag}\ns_waitcnt vmcnt({2*n})\ns_barrier")
            n2 = n; n = n // 2
            issue(n, kstep, sc, tag == "A")
            k(f"s_waitcnt vmcnt({n2 + n})\ns_barrier")
            issue(n, kstep, sc, tag == "A")
            first = 7
        k(f"s_mov_b32 s35, {first}\nfz_l{tag}:\ns_waitcnt vmcnt({2*n})\ns_barrier")
        issue(n, kstep, sc, tag == "A")
        fv = 214
        k(f"s_cmp_eq_u32 s35, 24\ns_cbranch_scc0 fz_m{tag}\nbuffer_load_dwordx2 v[{fv}:{fv+1}], v{fv+2}, s[{FLS}:{FLS+3}], s52 offen sc1\nfz_m{tag}:")
        k(f"s_add_u32 s35, s35, 1\ns_cmp_lt_u32 s35, {NST-3}\ns_cbranch_scc1 fz_l{tag}")
        wst_check(k, o, fv=214)
        if tag == "A":
            k(f"v_mov_b32 v60, {RDY}\nv_mov_b32 v61, 0\nds_write_b32 v60, v61 offset:8\nds_write_b32 v60, v61 offset:16\ns_min_u32 s58, s58, 1000")
            ft_load(k)
            wst(k, 3); k(f"s_waitcnt vmcnt({2*n + 22})\ns_barrier")
            wst(k, 0); k(f"s_waitcnt vmcnt({n + 43})\ns_barrier\ns_waitcnt vmcnt(43) lgkmcnt(0)\ns_barrier")
        else:
            k(f"s_waitcnt vmcnt({2*n})\ns_barrier\ns_waitcnt vmcnt({n})\ns_barrier")
            wst(k, 1); wst(k, 2); k("s_waitcnt vmcnt(42)\ns_barrier")
        k("s_waitcnt vmcnt(0)\ns_barrier")
    k(f"s_cmp_ge_u32 s58, 576\ns_cbranch_scc1 fz_nk0")
    k(f"s_mov_b32 s54, {fbits(L2E_HI)}\ns_mov_b32 s55, {fbits(I2P_HI)}")
    for i in range(40): k(f"v_mov_b32 v{i}, 0")
    k("\n".join(kgen_dt()))
    if o.get('t3', 0): k(f"s_cmp_eq_u32 s{W}, 4\ns_cbranch_scc1 fz_nk0")
    kh = kgen_half(); c0 = next(i for i, x in enumerate(kh) if x.startswith('ds_')); c1 = len(kh) * o.get('k1', 50) // 100
    k("s_mov_b32 s53, 0\nfz_kg:")
    k("\n".join(kh[:c0]))
    k("s_cmp_lg_u32 s53, 0\ns_cbranch_scc1 fz_kgb\ns_barrier\nfz_kgb:")
    k("\n".join(kh[c0:c1]))
    k("s_cmp_lg_u32 s53, 0\ns_cbranch_scc1 fz_kgc\ns_barrier\nfz_kgc:")
    k("\n".join(kh[c1:]))
    k("s_cmp_eq_u32 s53, 1\ns_cbranch_scc1 fz_kg2\ns_cmp_eq_u32 s53, 0\ns_cbranch_scc1 fz_nk\ns_mov_b32 s53, 1\ns_branch fz_kg\nfz_nk0:\ns_barrier\ns_barrier\nfz_nk:")
    k.stamp(9)
    k(f"s_mov_b32 s43, 0\ns_mov_b32 s42, -1\ns_cmp_lg_u32 s{W}, 4\ns_cbranch_scc1 fz_idle")
    k.srd(12, 4, FRAG9, add=WS_Z2)
    k(f"s_lshl_b32 s45, s{P}, 12\ns_mov_b32 s40, s45\ns_mul_i32 s31, s{C}, {9*65536}\nv_lshlrev_b32 v198, 4, v{VL}\nv_add_u32 v198, s31, v198\ns_mov_b32 s44, 0\ns_mov_b32 s41, 0")
    for j in range(18): k(f"v_add_u32 v{VL_(j)}, {(j >> 1)*65536 + (j & 1)*1024}, v198")
    k(f"s_lshl_b32 s30, s{C}, 8\ns_add_u32 s30, s30, {FL_2}\nv_lshlrev_b32 v199, 2, v{VL}\ns_mov_b64 s[46:47], -1\ns_mov_b32 s62, 0")
    advk(k, 2048); advk(k, 2048)
    k.stamp(10)
    issue(18, 2048, "sc1 ", True)
    issue(18, 2048, "sc1 ", True); issue(18, 2048, "sc1 ", True)
    k.stamp(11)
    ring("A", 18, 2048, "sc1 ", 2)
    k("s_branch fz_p34")
    k("fz_ld5:\ns_setprio 0")
    VL_ = lambda j: 220 + j
    for _ in range(2): issue(16, 128, "")
    k.stamp(11)
    ring("B", 16, 128, "", 0)
    mode = o.get('cv', 1)
    if mode == 0: k("s_branch fz_fin")
    else:
        k(f"s_lshl_b32 s58, s2, 1\ns_mov_b32 s59, {CONV0}\ns_mov_b32 s57, {RDY}\ns_cmp_ge_u32 s2, 64\ns_cbranch_scc1 fz_help")
        if o.get('h3', 1): k(f"s_add_u32 s58, s2, 512\ns_mov_b32 s59, {CONV0 + 2*REG}\ns_mov_b32 s57, {RDY + 8}\ns_branch fz_help")
        else: k("s_branch fz_fin")
    k("fz_idle:")
    k(f"v_mov_b32 v44, {RDY}\nv_mov_b32 v45, 0\nds_write_b32 v44, v45\nds_write_b32 v44, v45 offset:4")
    regs = list(range(KG['WAD'], KG['WAD'] + 16)) + list(range(KG['RW'], KG['RW'] + 4)) + list(range(KG['RS'], KG['RS'] + 10))
    nch = o.get('nch', 0)
    if nch:
        for r in regs: k(f"v_add_u32 v{r}, {139264 - KTAB}, v{r}")
        k("s_barrier")
        for ch in split(kgen_half(), nch):
            k("s_barrier"); k("\n".join(ch))
        for _ in range(30 - nch): k("s_barrier")
    elif o.get('l4', 1):
        k(f"""
        s_load_dwordx2 s[6:7], s[0:1], {ARG['w_sp']}
        s_load_dwordx2 s[8:9], s[0:1], {ARG['w_out']}
        s_lshl_b32 s50, s56, 8
        s_add_u32 s50, s50, s2
        s_add_u32 s51, s2, 384
        s_cmp_ge_u32 s2, 128
        s_cselect_b32 s51, s51, 999
        s_cmp_eq_u32 s56, 0
        s_cselect_b32 s51, s51, 999
        s_lshl_b32 s52, s56, 13
        s_add_u32 s52, s52, {KTAB}
        s_mov_b32 s63, {KTAB + 16384}
        s_mov_b32 s38, {FL_BYTES}
        s_mov_b32 s39, {FL_BYTES}
        s_waitcnt lgkmcnt(0)
        """)
        k.srd(24, 8, WOBYTES)
        k.srd(28, 4, WOBYTES, add=WS_WO)
        k.srd(12, 6, 2048 * 4096)
        side_issue(k, o, 50, 52)
        k("s_cmp_ge_u32 s51, 640\ns_cbranch_scc1 fz_ns2"); side_issue(k, o, 51, 63); k("fz_ns2:")
        k("s_barrier\ns_barrier\ns_waitcnt vmcnt(0)")
        side_run(k, o, 50, 52, 38); side_run(k, o, 51, 63, 39)
        k(f"s_setprio {o.get('prioR', 3)}\ns_cmp_eq_u32 s{W}, 7\ns_cbranch_scc1 fz_h7")
        for tag, n, kstep, sc in (("6", 9, 2048, "sc1 "), ("7", 8, 128, "")):
            VL_ = lambda j: 202 + j
            if tag == "6":
                k.srd(12, 4, FRAG9, add=WS_Z2)
                k(f"s_lshl_b32 s45, s{P}, 12\ns_mul_i32 s31, s{C}, {9*65536}\nv_lshlrev_b32 v198, 4, v{VL}\nv_add_u32 v198, s31, v198\ns_mov_b32 s44, 0")
                for j in range(9): k(f"v_add_u32 v{VL_(j)}, {((j+9) >> 1)*65536 + ((j+9) & 1)*1024}, v198")
                k(f"s_lshl_b32 s30, s{C}, 8\ns_add_u32 s30, s30, {FL_2}\nv_lshlrev_b32 v199, 2, v{VL}\ns_mov_b64 s[46:47], -1\ns_mov_b32 s62, 0")
            else:
                k(f"""
                fz_h7:
                v_lshrrev_b32 v44, 3, v{VL}
                v_and_b32 v45, 7, v{VL}
                v_lshrrev_b32 v46, 4, v{VL}
                v_xor_b32 v45, v45, v46
                v_and_b32 v46, 1, v45
                v_lshlrev_b32 v46, 1, v46
                v_bfe_u32 v47, v45, 1, 1
                v_and_b32 v45, 4, v45
                v_or_b32 v45, v45, v46
                v_or_b32 v45, v45, v47
                v_lshlrev_b32 v45, 4, v45
                v_lshl_add_u32 v45, v44, 12, v45
                s_lshl_b32 s31, s{P}, 19
                v_add_u32 v44, s31, v45
                v_xor_b32 v45, 64, v44
                s_lshl_b32 s45, s{P}, 8
                s_mov_b32 s44, 18432
                """)
                for j in range(8): k(f"v_add_u32 v{VL_(j)}, {(j+8)*32768}, v{44 + (j & 1)}")
            k(f"s_mov_b32 s40, s45\ns_mov_b32 s41, s44\ns_mov_b32 s35, 0\nfz_a{tag}:")
            advk(k, kstep)
            k(f"s_add_u32 s35, s35, 1\ns_cmp_lt_u32 s35, 8\ns_cbranch_scc1 fz_a{tag}")
            k("s_barrier")
            k(f"s_mov_b32 s35, 5\nfz_r{tag}:\ns_waitcnt vmcnt({2*n})\ns_barrier")
            issue(n, kstep, sc, tag == "6", j0=n)
            k(f"s_cmp_eq_u32 s35, 8\ns_cbranch_scc0 fz_f{tag}\nv_mov_b32 v44, 0\nv_mov_b32 v45, s{NON}\ns_mov_b64 exec, 1\nbuffer_store_dword v45, v44, s[{FLS}:{FLS+3}], s38 offen sc1\nbuffer_store_dword v45, v44, s[{FLS}:{FLS+3}], s39 offen sc1\ns_mov_b64 exec, -1\nfz_f{tag}:")
            k(f"s_add_u32 s35, s35, 1\ns_cmp_lt_u32 s35, 29\ns_cbranch_scc1 fz_r{tag}")
            k(f"s_waitcnt vmcnt({2*n})\ns_barrier\ns_waitcnt vmcnt({n})\ns_barrier\ns_waitcnt vmcnt(0)")
            if tag == "6": k("s_branch fz_h9")
        k("fz_h9:")
    else:
        k(f"s_mov_b32 s35, 0\nfz_idl:\ns_barrier\ns_add_u32 s35, s35, 1\ns_cmp_lt_u32 s35, 31\ns_cbranch_scc1 fz_idl")
    ft_load(k)
    k("s_barrier\ns_barrier")
    k.stamp(12)
    k(f"s_lshl_b32 s57, s56, 2\ns_add_u32 s57, s57, {RDY}")
    k(f"s_mov_b32 s3, 0\ns_cmp_ge_u32 s2, 64\ns_cbranch_scc1 fz_k2\ns_mov_b32 s3, 1\nfz_k2:")
    k(f"s_setprio {o.get('prio3', 3)}\ns_mul_i32 s59, s56, {REG}\ns_add_u32 s59, s59, {CONV0}")
    u_load(k)
    if nch: k(f"s_cmp_lg_u32 s{W}, 4\ns_cbranch_scc1 fz_kg2")
    k(f"s_lshl_b32 s33, s56, 13\ns_add_u32 s33, s33, {KTAB - 4608}\ns_sub_u32 s33, s59, s33")
    for r in regs: k(f"v_add_u32 v{r}, s33, v{r}")
    if o.get('t3', 0): k(f"s_mov_b32 s53, 2\ns_cmp_eq_u32 s{W}, 4\ns_cbranch_scc1 fz_kg")
    k("s_mov_b32 s53, 1\ns_branch fz_kg\nfz_kg2:")
    k.stamp(8)
    conv_build(k, o)
    k.stamp(13)
    if mode:
        k("s_cmp_eq_u32 s3, 1\ns_cbranch_scc1 fz_full")
        conv_run(k, o, 0)
        k.stamp(14)
        k("s_branch fz_fin\nfz_full:")
    conv_run(k, o, 2)
    k.stamp(14)
    k("s_branch fz_fin")
    k(f"fz_p34:\ns_cmp_lt_u32 s58, 576\ns_cbranch_scc1 fz_own3")
    if mode:
        k(f"s_lshl_b32 s58, s2, 1\ns_add_u32 s58, s58, 1\ns_mov_b32 s59, {CONV0 + REG}\ns_mov_b32 s57, {RDY + 4}")
        k(f"""
        fz_help:
        s_mov_b32 s3, 0
        s_setprio {o.get('prio3', 3)}
        v_mov_b32 v20, s57
        s_mov_b32 s62, 0
        fz_hw:
        ds_read_b32 v21, v20
        s_add_u32 s62, s62, 1
        s_waitcnt lgkmcnt(0)
        v_readfirstlane_b32 s33, v21
        s_cmp_eq_u32 s33, 1
        s_cbranch_scc1 fz_runb
        s_cmp_lt_u32 s62, {SPIN*16}
        s_cbranch_scc1 fz_hw
        fz_runb:
        """)
        k.stamp(13)
        conv_run(k, o, 1)
        k.stamp(14)
    k("s_branch fz_fin\nfz_own3:")
    k(f"s_mov_b32 s57, {RDY + 8}\ns_mov_b32 s3, {0 if o.get('h3', 1) else 1}\ns_branch fz_k2")

def wst_setup(k, o, fv):
    g3map(k, 50, 51)
    k.srd(24, 4, WOBYTES, add=WS_WO)
    k(f"s_lshl_b32 s52, s51, 9\ns_add_u32 s52, s52, {FL_W}\ns_mul_i32 s63, s51, {16*20736}\nv_lshlrev_b32 v{fv+2}, 3, v{VL}\nv_lshlrev_b32 v{fv+3}, 4, v{VL}\nv_mov_b32 v{fv}, 0\nv_mov_b32 v{fv+1}, 0")
    k.wfv = fv
def wst_check(k, o, fv):
    L = k.label("w4"); D = k.label("w4d")
    k(f"""
    s_mov_b32 s62, 0
    {L}:
    v_cmp_ne_u32 vcc, s{NON}, v{fv}
    s_and_b32 vcc_lo, vcc_lo, 0x77777777
    s_and_b32 vcc_hi, vcc_hi, 0x77777777
    v_cmp_ne_u32 s[60:61], s{NON}, v{fv+1}
    s_and_b32 s60, s60, 0x33333333
    s_and_b32 s61, s61, 0x33333333
    s_or_b64 vcc, vcc, s[60:61]
    s_cbranch_scc0 {D}
    s_add_u32 s62, s62, 1
    s_cmp_ge_u32 s62, {SPIN}
    s_cbranch_scc1 {D}
    buffer_load_dwordx2 v[{fv}:{fv+1}], v{fv+2}, s[{FLS}:{FLS+3}], s52 offen sc1
    s_waitcnt vmcnt(0)
    s_branch {L}
    {D}:
    """)
def wst(k, w):
    fv = k.wfv
    k(f"s_add_u32 s48, s{C}, {w + 4}\ns_and_b32 s48, s48, 15\ns_mul_i32 s48, s48, 20736\ns_add_u32 s48, s48, s63")
    for i in range(21):
        if i == 20: k(xm(0xffff))
        k(f"s_mov_b32 m0, {WQ[w] + i*1024}\nbuffer_load_dwordx4 v{fv+3}, s[24:27], s48 offen sc1 lds\ns_add_u32 s48, s48, 1024")
    k("s_mov_b64 exec, -1")

def gen_fused(prof=False, **o):
    OPT.update(o); o['WFL'] = WFL
    k = Kern(NAME + "_kernel", 256, 512, 163840)
    k.prof = prof; k.allreal = bool(o.get('real', 0))
    if o.get('p0'):
        seen = set(); st0 = k.stamp
        def st(i, real=False):
            if i in (5, 7, 8, 9):
                key = (i, len([1 for l in k.lines if l.startswith(('fz_l1W:', 'fz_c1:'))]))
                if key in seen or any(l.startswith('fz_cons:') for l in k.lines): return
                seen.add(key)
            st0(i, real)
        k.stamp = st
    k.stamp(0, True); k.stamp(1)
    if o.get('dbgt'): k("s_memrealtime s[64:65]")
    phase0(k, o); phase2(k, o)
    k("fz_fin:")
    if o.get('dbgt'):
        k(f"""
        s_waitcnt vmcnt(0)
        s_memrealtime s[66:67]
        s_load_dwordx2 s[68:69], s[0:1], {ARG['dbg']}
        s_waitcnt lgkmcnt(0)
        s_cmp_ge_u32 s2, 8
        s_cbranch_scc1 fz_end
        s_cmp_lg_u32 s22, 0
        s_cbranch_scc1 fz_end
        s_lshl_b32 s70, s2, 3
        v_mov_b32 v0, s70
        v_mov_b32 v2, s64
        v_mov_b32 v3, s66
        s_mov_b64 exec, 1
        global_store_dwordx2 v0, v[2:3], s[68:69]
        """)
    if prof:
        k("s_waitcnt vmcnt(0)"); k.stamp(15, True)
        k.prof_dump(0, 4, W, 16)
    k("fz_end:")
    return k

def emit_single(k, path):
    from gen import header
    s = header() + f"; @launch kernel={k.name} grid=({k.grid},1,1) block=({k.block},1,1) lds={k.lds}\n"
    s += '.amdgcn_target "amdgcn-amd-amdhsa--gfx950"\n.text\n' + k.text() + '.section .rodata,"a"\n' + k.desc()
    open(path, "w").write(s)

if __name__ == "__main__":
    opts = {a.split("=")[0]: int(a.split("=")[1]) for a in sys.argv[2:] if "=" in a}
    emit_single(gen_fused(prof="prof" in sys.argv, **opts), sys.argv[1])
```

```python
import sys; sys.path.insert(0, "dev")
from cm24 import *
SLOT = 34816; NS = 4
XTL = 104448; RPL = 114688
Z1 = 160
WOFF = 16384


ROWA = 139264
COLP = ROWA + 1024
WPRIV = COLP + 2 * 768
XTS = WPRIV + 1280
assert XTS + 4 * 5120 <= 163840
KTAB = 139264
CNT = WPRIV + 1024
WFL = 163000
RPK = XTS
WS_RS = WS_ST + 0x90000
def phase0(k, o):
    k(f"""
    s_load_dwordx2 s[6:7], s[0:1], {ARG['x']}
    s_load_dwordx2 s[8:9], s[0:1], {ARG['w_in']}
    s_load_dwordx2 s[4:5], s[0:1], {ARG['ws']}
    s_getpc_b64 s[28:29]
    fz_pc:
    s_cmp_ge_u32 s2, 256
    s_cbranch_scc1 fz_end
    v_lshrrev_b32 v1, 6, v0
    v_and_b32 v{VL}, 63, v0
    v_readfirstlane_b32 s{W}, v1
    s_and_b32 s30, s2, 7
    s_lshr_b32 s31, s2, 3
    v_lshrrev_b32 v1, 4, v0
    v_lshl_add_u32 v1, s31, 5, v1
    v_lshlrev_b32 v1, 7, v1
    v_min_u32 v1, fz_end-fz_pc, v1
    {xm(0x0001000100010001)}
    global_load_dword v254, v1, s[28:29]
    s_mov_b64 exec, -1
    s_and_b32 s{P}, s30, 1
    s_lshl_b32 s{P}, s{P}, 3
    s_lshr_b32 s32, s31, 2
    s_add_u32 s{P}, s{P}, s32
    s_lshr_b32 s{C}, s30, 1
    s_lshl_b32 s{C}, s{C}, 2
    s_and_b32 s32, s31, 3
    s_add_u32 s{C}, s{C}, s32
    s_lshl_b32 s63, s2, 3
    s_add_u32 s63, s63, s{W}
    s_mul_i32 s31, s63, 1152
    v_lshlrev_b32 v2, 4, v{VL}
    v_mov_b32 v3, {OOB}
    v_cmp_gt_u32 vcc, 36, v{VL}
    v_cndmask_b32 v2, v3, v2, vcc
    s_waitcnt lgkmcnt(0)
    """)
    k.srd(12, 6, XBYTES)
    k(f"""
    buffer_load_dwordx4 v[8:11], v2, s[12:15], s31 offen
    buffer_load_dwordx4 v[12:15], v2, s[12:15], s31 offen offset:576
    s_add_u32 s10, s4, {WS_FL}
    s_addc_u32 s11, s5, 0
    s_load_dword s{NON}, s[10:11], 0
    s_cmp_lt_u32 s{W}, 4
    s_cbranch_scc1 fz_c0
    s_cmp_lt_u32 s{W}, 6
    s_cbranch_scc1 fz_w0
    """)
    LX = p1_loader(k, o, "X"); next(LX)
    k("s_mov_b32 s3, 2\ns_branch fz_ln\nfz_w0:")
    LW = p1_loader(k, o, "W"); next(LW)
    k("s_mov_b32 s3, 1\ns_branch fz_ln\nfz_c0:")
    CC = p1_consumer(k, o); next(CC)
    k("s_mov_b32 s3, 0\nfz_ln:")
    ln1(k, o)
    k(f"s_cmp_eq_u32 s3, 0\ns_cbranch_scc1 fz_c1\ns_cmp_eq_u32 s3, 1\ns_cbranch_scc1 fz_l1W")
    next(LX, None)
    k("fz_l1W:")
    next(LW, None)
    k("fz_c1:")
    next(CC, None)

def ln1(k, o):
    X = 16; S = 112
    k.srd(FLS, 4, FL_BYTES, add=WS_FL)
    k(f"v_cmp_gt_u32 vcc, 36, v{VL}")
    for i in range(8): k(f"v_lshlrev_b32 v{X+2*i}, 16, v{8+i}\nv_and_b32 v{X+2*i+1}, 0xffff0000, v{8+i}")
    k(f"v_pk_add_f32 v[{S}:{S+1}], v[{X}:{X+1}], v[{X+2}:{X+3}]\nv_pk_add_f32 v[{S+2}:{S+3}], v[{X+4}:{X+5}], v[{X+6}:{X+7}]")
    for i in range(4, 8): k(f"v_pk_add_f32 v[{S+2*(i&1)}:{S+2*(i&1)+1}], v[{S+2*(i&1)}:{S+2*(i&1)+1}], v[{X+2*i}:{X+2*i+1}]")
    k(f"v_pk_add_f32 v[{S}:{S+1}], v[{S}:{S+1}], v[{S+2}:{S+3}]\nv_add_f32 v{S}, v{S}, v{S+1}")
    dpp_sum16(k, [S]); xsum_rows(k, S, S + 1)
    k(f"v_mul_f32 v{S}, {1.0/576!r}, v{S}\nv_cndmask_b32 v{S+6}, 0, v{S}, vcc")
    for i in range(8):
        t = 32 + 2 * i
        k(f"v_pk_add_f32 v[{t}:{t+1}], v[{X+2*i}:{X+2*i+1}], v[{S+6}:{S+7}] op_sel_hi:[1,0] neg_lo:[0,1] neg_hi:[0,1]")
    for i in range(8):
        t = 32 + 2 * i; q = S + 2 + 2 * (i & 1)
        if i < 2: k(f"v_pk_mul_f32 v[{q}:{q+1}], v[{t}:{t+1}], v[{t}:{t+1}]")
        else: k(f"v_pk_fma_f32 v[{q}:{q+1}], v[{t}:{t+1}], v[{t}:{t+1}], v[{q}:{q+1}]")
    k(f"v_pk_add_f32 v[{S+2}:{S+3}], v[{S+2}:{S+3}], v[{S+4}:{S+5}]\nv_add_f32 v{S+2}, v{S+2}, v{S+3}")
    dpp_sum16(k, [S + 2]); xsum_rows(k, S + 2, S + 3)
    k(f"v_mul_f32 v{S+2}, {1.0/576!r}, v{S+2}")
    k.srd(36, 4, XBYTES, add=WS_XN)
    k(f"s_waitcnt lgkmcnt(0)\ns_mul_i32 s{NON}, s{NON}, 0x9E3779B1\ns_add_u32 s{NON}, s{NON}, 0x7F4A7C15\ns_mul_i32 s31, s63, 1152")
    ln_finish(k, S, S + 2)
    k(f"v_mul_f32 v{S}, -v{S}, v{S+2}")
    for i in range(8): k(f"v_pk_fma_f32 v[{X+2*i}:{X+2*i+1}], v[{X+2*i}:{X+2*i+1}], v[{S+2}:{S+3}], v[{S}:{S+1}] op_sel_hi:[1,0,0]")
    for i in range(8): k(f"v_cvt_pk_bf16_f32 v{8+i}, v{X+2*i}, v{X+2*i+1}")
    k(f"""
    buffer_store_dwordx4 v[8:11], v2, s[36:39], s31 offen sc1
    buffer_store_dwordx4 v[12:15], v2, s[36:39], s31 offen offset:576 sc1
    v_mov_b32 v{S+1}, s{NON}
    v_mov_b32 v{S+3}, s{NON}
    s_lshl_b32 s63, s63, 4
    """)

def rowgran(k, srd, vz):
    k(f"v_mov_b32 v{vz}, 0\ns_mov_b64 exec, 1\nbuffer_store_dwordx4 v[112:115], v{vz}, s[{srd}:{srd+3}], s63 offen sc1\ns_mov_b64 exec, -1")

def get_nonce(k):
    k(f"s_add_u32 s10, s4, {WS_FL}\ns_addc_u32 s11, s5, 0\ns_load_dword s{NON}, s[10:11], 0")
    k.srd(FLS, 4, FL_BYTES, add=WS_FL)
def fin_nonce(k):
    k(f"s_waitcnt lgkmcnt(0)\ns_mul_i32 s{NON}, s{NON}, 0x9E3779B1\ns_add_u32 s{NON}, s{NON}, 0x7F4A7C15")

def p1_addr(k, VX0b, VX1b, VWb, tq_s):
    k(f"""
    v_and_b32 v3, 15, v{VL}
    v_lshrrev_b32 v4, 4, v{VL}
    v_lshrrev_b32 v5, 1, v3
    v_xor_b32 v5, v5, v4
    v_lshlrev_b32 v5, 4, v5
    v_lshl_add_u32 v5, v3, 7, v5
    s_lshl_b32 s32, s{tq_s}, 12
    v_add_u32 v{VX0b}, s32, v5
    v_xor_b32 v{VX1b}, 64, v{VX0b}
    v_bfe_u32 v5, v{VL}, 2, 2
    v_and_b32 v6, 1, v4
    v_lshl_add_u32 v5, v6, 2, v5
    v_lshrrev_b32 v6, 1, v4
    v_lshl_add_u32 v5, v6, 4, v5
    v_mul_u32_u24 v5, 288, v5
    v_and_b32 v6, 3, v{VL}
    v_lshl_add_u32 v5, v6, 3, v5
    v_add_u32 v{VWb}, {WOFF}, v5
    """)

def p1_loader(k, o, typ):
    VD = 200; n = 8 if typ == "X" else 9
    k(f"s_sub_u32 s57, s{W}, 4      ; lw\ns_setprio {o.get('prioL', 3)}")
    if typ == "X":
        k(f"""
        v_lshrrev_b32 v3, 3, v{VL}
        v_and_b32 v4, 7, v{VL}
        v_lshrrev_b32 v5, 4, v{VL}
        v_xor_b32 v4, v4, v5
        v_mul_u32_u24 v3, 1152, v3
        v_lshl_add_u32 v3, v4, 4, v3
        v_xor_b32 v4, 64, v3
        s_sub_u32 s31, s{W}, 6
        s_lshl_b32 s30, s{P}, 7
        s_lshl_b32 s32, s31, 6
        s_add_u32 s30, s30, s32
        s_mul_i32 s30, s30, 1152
        s_lshl_b32 s44, s31, 13
        """)
        k("s_mov_b32 s40, 0")
        for j in range(8):
            k(f"v_add_u32 v{VD+j}, s30, v{3 + (j & 1)}\ns_add_u32 s30, s30, {8*1152}\ns_add_u32 m0, s44, {j*1024}\nbuffer_load_dwordx4 v{VD+j}, s[12:15], s40 offen lds")
        kstep, k0 = 128, 0
    else:
        k(f"s_mul_i32 s32, s{C}, 288\ns_mov_b32 s33, 3641\ns_mul_i32 s31, s57, {9*64}\ns_mul_i32 s44, s57, {9*1024}\ns_add_u32 s44, s44, {WOFF}\nv_add_u32 v1, s31, v{VL}")
        k("s_mov_b32 s40, 4608")
        k.srd(12, 8, 576 * 9216)
        for j in range(9):
            k(f"""
            v_add_u32 v3, {64*j}, v1
            v_mul_lo_u32 v4, v3, s33
            v_lshrrev_b32 v4, 16, v4
            v_mul_u32_u24 v5, 18, v4
            v_sub_u32 v5, v3, v5
            v_and_b32 v6, 0x33, v4
            v_bfe_u32 v7, v4, 2, 1
            v_lshl_or_b32 v6, v7, 3, v6
            v_bfe_u32 v7, v4, 3, 1
            v_lshl_or_b32 v6, v7, 2, v6
            v_mul_u32_u24 v6, 9216, v6
            v_lshl_add_u32 v6, v5, 4, v6
            v_add_u32 v{VD+j}, s32, v6
            s_add_u32 m0, s44, {j*1024}
            buffer_load_dwordx4 v{VD+j}, s[12:15], s40 offen lds
            """)
        kstep = 64 * 9216
    k("s_mov_b32 s41, s44\ns_mov_b32 s43, 0")
    tch = 0
    TV = 209
    def issue(touch=True):
        L = []
        for j in range(8 if typ == 'X' else 9):
            L.append((f"s_add_u32 m0, s41, {j*1024}\n" if j else "s_mov_b32 m0, s41\n") + f"buffer_load_dwordx4 v{VD+j}, s[12:15], s40 offen {'sc1 ' if typ == 'X' else ''}lds")
        if tch and touch: L.append(f"s_cmp_lt_u32 s49, s51\ns_cselect_b32 s52, s49, {OOB}\nbuffer_load_dword v254, v{TV}, s[28:31], s52 offen\ns_add_u32 s49, s49, s50")
        L.append(f"s_add_u32 s40, s40, {kstep}\ns_add_u32 s41, s41, {SLOT}\ns_cmp_ge_u32 s41, {SLOT*NS}\ns_cselect_b32 s41, s44, s41")
        L.append(f"s_add_u32 s43, s43, 1\ns_cmp_eq_u32 s43, 9\ns_cselect_b32 s40, 0, s40")
        return L
    k("\n".join(issue(False)[n:]))
    k("\n".join(issue(False)))
    if o.get('p0'): k.stamp(5)
    pe = o.get('pe', 1)
    pb = o.get('pb', 2)
    for _ in range(pb - 2): k("\n".join(issue(False)))
    k(f"s_waitcnt vmcnt({pb*n})")
    yield
    for _ in range(pe): k("\n".join(issue(False)))
    if typ == "X": k(f"s_load_dwordx2 s[46:47], s[0:1], {ARG['w_sp']}\ns_load_dwordx2 s[54:55], s[0:1], {ARG['w_out']}")
    n0 = n; n = n + tch
    VX0, VX1, VW, VX0b, VX1b, VWb = 210, 211, 212, 213, 214, 215
    p1_addr(k, VX0b, VX1b, VWb, 57)
    CA = 44
    WF = 56
    ON = 108
    T = 116
    for i in range(4): k(f"v_mov_b32 v{ON+i}, 0x3f803f80")
    for i in range(12): k(f"v_mov_b32 v{CA+i}, 0")
    k(f"s_lshl_b32 s36, s57, 5\nv_add_u32 v{VWb}, s36, v{VWb}\nv_mov_b32 v{VW}, v{VWb}\ns_mov_b32 s34, 0\ns_mov_b32 s35, 0")
    k.srd(24, 4, 2048 * 16, add=WS_RS)
    k(f"s_lshl_b32 s36, s{P}, 7\ns_and_b32 s37, s57, 1\ns_lshl_b32 s37, s37, 6\ns_add_u32 s36, s36, s37\ns_lshl_b32 s36, s36, 4\nv_lshlrev_b32 v{T+8}, 4, v{VL}")
    k(f"""
    s_sub_u32 s56, 7, s{W}
    s_lshr_b32 s58, s56, 1
    s_xor_b32 s56, s56, s58
    s_lshl_b32 s58, s2, 1
    s_add_u32 s58, s58, s56
    s_add_u32 s59, s2, 512
    s_cmp_eq_u32 s56, 2
    s_cselect_b32 s58, s59, s58
    s_cmp_eq_u32 s56, 3
    s_cselect_b32 s58, 1000, s58
    s_lshl_b32 s59, s56, 13
    s_add_u32 s59, s59, {KTAB}
    """)
    adv = f"s_add_u32 s34, s34, {SLOT}\ns_cmp_ge_u32 s34, {SLOT*NS}\ns_cselect_b32 s34, 0, s34\nv_add_u32 v{VW}, s34, v{VWb}"
    nt = 3 if typ == "W" else 2
    smem = [0]
    def stage(z2, do_issue, wait, fill=None, twice=False):
        k(f"s_waitcnt vmcnt({wait}){' lgkmcnt(0)' if z2 else ''}\ns_barrier")
        if not z2 and o.get('spat') == 20:
            for _ in range(o.get('nsm', 11)):
                if smem[0] < 64: k(f"s_load_dword s45, s[38:39], {smem[0]*128}"); smem[0] += 1
        rd_ = []; mf = []
        if z2:
            for hf in range(2):
                for t in range(nt):
                    f = WF + (hf * 3 + t) * 4
                    for rd in range(2): rd_.append(f"ds_read_b64_tr_b16 v[{f+2*rd}:{f+2*rd+1}], v{VW} offset:{hf*32*288 + rd*8*288 + t*128}")
                    mf.append(f"v_mfma_f32_16x16x32_bf16 v[{CA+4*t}:{CA+4*t+3}], v[{ON}:{ON+3}], v[{f}:{f+3}], v[{CA+4*t}:{CA+4*t+3}]")
        dm = issue() if do_issue else []
        if twice: dm = dm + issue()
        if z2:
            k("\n".join(rd_ + dm[:2]))
            k("s_waitcnt lgkmcnt(0)")
            k("\n".join(front(dm[2:], mf)))
            k(adv)
        else: k("\n".join(dm))
        if fill: k("\n".join(fill))
        k("s_add_u32 s35, s35, 1")
    def gran_check(vd, va, so, full):
        L = k.label("rp"); D = k.label("rd")
        k(f"""
        s_mov_b32 s62, 0
        {"" if full else xm(0xffffffff)}
        {L}:
        v_cmp_ne_u32 vcc, s{NON}, v{vd+1}
        v_cmp_ne_u32 s[60:61], s{NON}, v{vd+3}
        s_or_b64 vcc, vcc, s[60:61]
        s_cbranch_vccz {D}
        s_add_u32 s62, s62, 1
        s_cmp_ge_u32 s62, {SPIN}
        s_cbranch_scc1 {D}
        buffer_load_dwordx4 v[{vd}:{vd+3}], v{va}, s[24:27], s{so} offen sc1
        s_waitcnt vmcnt(0)
        s_branch {L}
        {D}:
        """)
    if o.get('p0'):
        k.stamp(7); k(f"s_waitcnt vmcnt({n0 + 2})"); k.stamp(8)
    tot_ = pb + pe
    stage(True, tot_ < 4, (tot_ - 1) * n0 + 2, twice=(tot_ == 2))
    k(f"fz_l1{typ}a:")
    stage(True, True, 2 * n0)
    L = k.label("gr"); k(f"s_cmp_eq_u32 s35, 2\ns_cbranch_scc0 {L}"); rowgran(k, 24, T); k(f"{L}:")
    tp = o.get('tp', 6)
    if typ == "X" and tp > 5:
        L = k.label("rg")
        k(f"s_cmp_eq_u32 s35, 5\ns_cbranch_scc0 {L}\nbuffer_load_dwordx4 v[{T+4}:{T+7}], v{T+8}, s[24:27], s36 offen sc1\n{L}:")
    k(f"s_cmp_lt_u32 s35, 6\ns_cbranch_scc1 fz_l1{typ}a")
    def z1touch():
        k.srd(28, 8, 576 * 9216)
        k(f"""
        s_mul_i32 s33, s2, {3*9216}
        s_cmp_lt_u32 s2, 192
        s_cselect_b32 s33, s33, {OOB}
        s_sub_u32 s37, s{W}, 6
        s_mul_i32 s37, s37, 54
        v_add_u32 v{T+2}, s37, v{VL}
        v_mul_u32_u24 v{T+3}, 57, v{T+2}
        v_lshrrev_b32 v{T+3}, 11, v{T+3}
        v_mul_u32_u24 v{T+3}, {9216 - 36*128}, v{T+3}
        v_lshl_add_u32 v{T+2}, v{T+2}, 7, v{T+3}
        {xm((1 << 54) - 1)}
        buffer_load_dword v254, v{T+2}, s[28:31], s33 offen
        s_mov_b64 exec, -1
        """)
    def sptouch():
        k.srd(28, 46, 2048 * 4096)
        k(f"s_lshl_b32 s33, s2, 15\ns_sub_u32 s37, s{W}, 6\ns_lshl_b32 s37, s37, 10\ns_add_u32 s33, s33, s37\nv_lshrrev_b32 v{T+2}, 3, v{VL}\nv_lshlrev_b32 v{T+2}, 12, v{T+2}\nv_and_b32 v{T+3}, 7, v{VL}\nv_lshl_add_u32 v{T+2}, v{T+3}, 7, v{T+2}")
        for i in range(2): k(f"buffer_load_dword v254, v{T+2}, s[28:31], s33 offen offset:{i*2048}")
    def xswitch(w):
        k(f"s_waitcnt vmcnt({w})")
        gran_check(T + 4, T + 8, 36, True)
        k.srd(12, 4, XBYTES, add=WS_XN)
        k(f"""
        v_lshlrev_b32 v{T}, 2, v{VL}
        s_sub_u32 s33, s{W}, 6
        s_lshl_b32 s33, s33, 8
        s_add_u32 s33, s33, {ROWA}
        v_add_u32 v{T}, s33, v{T}
        ds_write_b32 v{T}, v{T+4}
        ds_write_b32 v{T}, v{T+6} offset:512
        """)
    X_ = typ == "X"
    if tp == 5:
        if X_: k(f"buffer_load_dwordx4 v[{T+4}:{T+7}], v{T+8}, s[24:27], s36 offen sc1"); z1touch(); sptouch()
        stage(True, False, 2 * n + 4 * X_); stage(True, False, n + 4 * X_)
        if X_: xswitch(3)
        stage(True, False, 3 * X_); left = 4
    else:
        if X_: z1touch(); xswitch(n + 1)
        stage(True, True, 2 * n + X_)
        if tp == 6:
            if X_: sptouch()
            stage(True, False, 2 * n + 3 * X_); stage(True, False, n + 3 * X_); left = 3
        else:
            stage(True, True, 2 * n + X_)
            if X_: sptouch()
            stage(True, False, 2 * n + 3 * X_); left = 2
    k(f"s_lshl_b32 s33, s57, 6\ns_add_u32 s33, s33, {COLP}\nv_lshlrev_b32 v{T}, 2, v{VL}\nv_add_u32 v{T}, s33, v{T}\n{xm(0xffff)}")
    for t in range(nt): k(f"ds_write_b32 v{T}, v{CA+4*t} offset:{t*256}")
    k("s_mov_b64 exec, -1\ns_waitcnt lgkmcnt(0)\ns_barrier")
    k.stamp(3)
    for _ in range(left): k("\n".join(issue()))
    tx = 2 * X_ if tp > 5 else 0
    ex = 0
    if typ == "X":
        pass
    else:
        k.srd(24, 4, XBYTES, add=WS_XN)
        k(f"""
        s_lshl_b32 s36, s{P}, 1
        s_lshr_b32 s33, s{C}, 3
        s_add_u32 s36, s36, s33          ; tp
        s_and_b32 s37, s{C}, 7           ; e
        s_lshl_b32 s33, s36, 1
        s_add_u32 s33, s33, s57
        s_mul_i32 s33, s33, {32*1152}
        s_mul_i32 s38, s37, 144
        s_add_u32 s33, s33, s38
        s_mov_b32 s38, {(1 << 16) // 9 + 1}
        s_mul_i32 s39, s57, 5120
        s_add_u32 s39, s39, {XTS}
        """)
        for i in range(5):
            k(f"""
            v_add_u32 v3, {64*i}, v{VL}
            v_mul_lo_u32 v4, v3, s38
            v_lshrrev_b32 v4, 16, v4
            v_mul_u32_u24 v5, 9, v4
            v_sub_u32 v5, v3, v5
            v_mul_u32_u24 v4, 1152, v4
            v_lshl_add_u32 v4, v5, 4, v4
            s_add_u32 m0, s39, {i*1024}
            buffer_load_dwordx4 v4, s[24:27], s33 offen sc1 lds
            """)
        k.srd(24, 4, XBYTES, add=WS_XT)
        k(f"""
        v_bfe_u32 v3, v{VL}, 2, 2
        v_lshrrev_b32 v4, 4, v{VL}
        v_lshl_add_u32 v3, v4, 3, v3     ; row = 8g + r
        v_mul_u32_u24 v3, 144, v3
        v_and_b32 v5, 3, v{VL}
        v_lshl_add_u32 v3, v5, 3, v3
        v_add_u32 v3, s39, v3
        v_and_b32 v5, 15, v{VL}
        v_lshlrev_b32 v5, 12, v5
        v_lshl_add_u32 v5, v4, 4, v5     ; d*4096 + g*16
        s_mul_i32 s39, s37, {72*4096}
        s_lshl_b32 s38, s36, 7
        s_add_u32 s39, s39, s38
        s_lshl_b32 s38, s57, 6
        s_add_u32 s39, s39, s38
        s_lshl_b32 s37, s37, 5
        s_add_u32 s36, s36, s37
        s_lshl_b32 s36, s36, 1
        s_add_u32 s36, s36, s57
        s_lshl_b32 s36, s36, 2
        s_add_u32 s36, s36, {FL_T}
        """)
        ex = 5
        xt2 = [f"s_waitcnt vmcnt({n})"]
        for dt in range(5):
            for rd in range(2): xt2.append(f"ds_read_b64_tr_b16 v[{56+4*dt+2*rd}:{57+4*dt+2*rd}], v3 offset:{4*rd*144 + dt*32}")
        xt2.append("s_waitcnt lgkmcnt(0)")
        for dt in range(5):
            if dt == 4: xt2.append(xm(0x00ff00ff00ff00ff))
            xt2.append(f"buffer_store_dwordx4 v[{56+4*dt}:{59+4*dt}], v5, s[24:27], s39 offen sc1\ns_add_u32 s39, s39, 65536")
        xt2.append("s_mov_b64 exec, -1")
    if o.get('spat') == 20:
        k(f"s_load_dwordx2 s[38:39], s[0:1], {ARG['w_sp']}\ns_lshl_b32 s33, s2, 2\ns_add_u32 s33, s33, s57\ns_lshl_b32 s33, s33, 13\ns_waitcnt lgkmcnt(0)\ns_add_u32 s38, s38, s33\ns_addc_u32 s39, s39, 0")
        for _ in range(o.get('nsm0', 12)): k(f"s_load_dword s45, s[38:39], {smem[0]*128}"); smem[0] += 1
    ka = split(kgen_addr(k, o), 4)
    pub = [f"""s_add_u32 s28, s4, {WS_ST}
    s_addc_u32 s29, s5, 0
    s_mov_b32 s30, {16*16*2048}
    s_mov_b32 s31, 0x20000
    v_and_b32 v{T}, 31, v{VL}
    v_lshlrev_b32 v{T+1}, 2, v{T}
    s_lshl_b32 s33, s57, 8
    s_add_u32 s33, s33, {WPRIV}
    v_add_u32 v{T+1}, s33, v{T+1}
    ds_read_b32 v{T+4}, v{T+1}
    ds_read_b32 v{T+6}, v{T+1} offset:128
    v_mov_b32 v{T+5}, s{NON}
    v_mov_b32 v{T+7}, s{NON}
    s_lshl_b32 s33, s{P}, 4
    s_add_u32 s33, s33, s{C}
    s_lshl_b32 s33, s33, 11
    s_lshl_b32 s53, s57, 9
    s_add_u32 s33, s33, s53
    v_lshlrev_b32 v{T}, 4, v{T}
    s_waitcnt lgkmcnt(0)
    {xm(0xffffffff)}
    buffer_store_dwordx4 v[{T+4}:{T+7}], v{T}, s[28:31], s33 offen sc1
    s_mov_b64 exec, -1"""]
    stage(False, False, 3 * n + tx + ex, pub + ka[0])
    if typ == "X":
        for i in range(3): stage(False, True, 2 * n + ex + (tx + 1 if (i == 0 and tp == 7) else 0), ka[1 + i])
    else:
        stage(False, True, 2 * n + ex, xt2 + ka[1])
        for i in range(2): stage(False, True, 2 * n, ka[2 + i])
    stage(False, True, 2 * n + tch)
    if typ == "W":
        L = k.label("xf")
        k(f"v_mov_b32 v{T}, 0\nv_mov_b32 v{T+1}, s{NON}\ns_mov_b64 exec, 1\nbuffer_store_dword v{T+1}, v{T}, s[{FLS}:{FLS+3}], s36 offen sc1\ns_mov_b64 exec, -1\n{L}:")
    stage(False, True, 2 * n + tch)
    e2 = 0
    if typ == "X":
        k.srd(28, 54, WOBYTES)
        k(f"s_mul_i32 s33, s2, {81*128}\ns_sub_u32 s37, s{W}, 6\ns_mul_i32 s37, s37, {41*128}\ns_add_u32 s33, s33, s37\nv_lshlrev_b32 v{T+2}, 7, v{VL}\n{xm((1 << 41) - 1)}\nbuffer_load_dword v254, v{T+2}, s[28:31], s33 offen\ns_mov_b64 exec, -1")
        e2 = 1
    kgen_setup(k, o)
    stage(False, False, 2 * n + tch + 14 + e2)
    Q = 56
    k.srd(24, 4, 16 * 16 * 2048, add=WS_ST)
    k(f"""
    v_and_b32 v{T}, 31, v{VL}
    v_lshlrev_b32 v{T+1}, 2, v{T}
    v_lshlrev_b32 v{T}, 4, v{T}
    v_lshrrev_b32 v{T+2}, 5, v{VL}
    v_lshl_add_u32 v{T}, v{T+2}, 14, v{T}
    s_lshl_b32 s52, s{P}, 15
    s_lshl_b32 s53, s57, 9
    s_add_u32 s52, s52, s53
    s_lshl_b32 s33, s57, 7
    s_add_u32 s33, s33, {ROWA}
    v_add_u32 v{T+1}, s33, v{T+1}
    s_mov_b32 s62, 0
    """)
    def sweep():
        for c2 in range(8): k(f"s_add_u32 s53, s52, {c2*2048}\nbuffer_load_dwordx4 v[{Q+4*c2}:{Q+3+4*c2}], v{T}, s[24:27], s53 offen sc1")
    sweep()
    stage(False, False, n + tch + 14 + 8 + e2)
    if typ == "W":
        b_setup(k)
    stage(False, False, 0)
    L = k.label("sp"); D = k.label("spd")
    k(f"{L}:\nv_xor_b32 v{T+5}, s{NON}, v{Q+1}")
    for c2 in range(8):
        for hh in range(2):
            if c2 == 0 and hh == 0: continue
            k(f"v_xor_b32 v{T+6+(c2+hh)%2}, s{NON}, v{Q+1+4*c2+2*hh}\nv_or_b32 v{T+5}, v{T+5}, v{T+6+(c2+hh)%2}")
    k(f"v_cmp_ne_u32 vcc, 0, v{T+5}\ns_cbranch_vccz {D}\ns_add_u32 s62, s62, 1\ns_cmp_ge_u32 s62, {SPIN}\ns_cbranch_scc1 {D}")
    sweep()
    k(f"s_waitcnt vmcnt(0)\ns_branch {L}\n{D}:")
    for c2 in range(1, 8): k(f"v_add_f32 v{Q}, v{Q}, v{Q+4*c2}\nv_add_f32 v{Q+2}, v{Q+2}, v{Q+2+4*c2}")
    m, v = Q, Q + 2
    k(f"""
    v_mov_b32 v{Q+1}, v{m}
    v_mov_b32 v{Q+3}, v{v}
    v_permlane32_swap_b32 v{m}, v{Q+1}
    v_permlane32_swap_b32 v{v}, v{Q+3}
    v_add_f32 v{m}, v{m}, v{Q+1}
    v_add_f32 v{v}, v{v}, v{Q+3}
    v_mul_f32 v{m}, {1.0/2304!r}, v{m}
    v_mul_f32 v{v}, {1.0/2304!r}, v{v}
    v_fma_f32 v{v}, -v{m}, v{m}, v{v}
    v_max_f32 v{v}, 0, v{v}
    """)
    ln_finish(k, m, v)
    k(f"v_mul_f32 v{m}, -v{m}, v{v}\nds_write_b32 v{T+1}, v{m}\nds_write_b32 v{T+1}, v{v} offset:512")
    if typ == "W":
        L = k.label("b0"); k(f"s_cmp_lg_u32 s{W}, 5\ns_cbranch_scc1 {L}")
        for j in range(16): k(f"s_mov_b32 m0, {18432 + j*1024}\nbuffer_load_dwordx4 v{220+j}, s[12:15], s40 offen lds")
        advk(k, 128)
        k(f"s_waitcnt lgkmcnt(0)\ns_barrier\ns_branch fz_ld5\n{L}:")
    k("s_waitcnt lgkmcnt(0)\ns_barrier")
    k.stamp(6)
    k("s_branch fz_loader")

def p1_consumer(k, o):
    A2, A1 = 0, 72
    FX, FY = 144, 188
    VX0, VX1, VW, VX0b, VX1b, VWb = 232, 233, 234, 235, 236, 237
    NMR, RR = 238, 240
    VC1, VONE = 242, 244
    V16 = 246; VPG, VPR = 247, 248
    k(f"s_lshl_b32 s30, s2, 2\ns_add_u32 s30, s30, s{W}")
    p1_addr(k, VX0b, VX1b, VWb, W)
    k(f"""
    v_mov_b32 v{VX0}, v{VX0b}
    v_mov_b32 v{VX1}, v{VX1b}
    v_mov_b32 v{VW}, v{VWb}
    s_mov_b32 s34, 0
    s_mov_b32 s56, {fbits(C2)}
    s_mov_b32 s57, {fbits(C2)}
    v_mov_b32 v{VC1}, {fbits(C1)}
    v_mov_b32 v{VC1+1}, {fbits(C1)}
    v_mov_b32 v{VONE}, 1.0
    v_mov_b32 v{VONE+1}, 1.0
    v_lshlrev_b32 v{V16}, 4, v{VL}
    s_lshl_b32 s33, s{W}, 8
    s_add_u32 s33, s33, {WPRIV}
    v_lshrrev_b32 v3, 4, v{VL}
    v_lshlrev_b32 v3, 4, v3
    v_add_u32 v{VPG}, s33, v3
    v_and_b32 v3, 31, v{VL}
    v_lshlrev_b32 v3, 2, v3
    v_add_u32 v{VPR}, s33, v3
    s_setprio {o.get('prio1', 2)}
    """)
    if o.get('touch', 1):
        k(f"""
        v_mul_u32_u24 v3, 43, v{VL}
        v_lshrrev_b32 v3, 8, v3
        v_mul_u32_u24 v4, 6, v3
        v_sub_u32 v4, v{VL}, v4
        s_lshl_b32 s31, s30, 1
        v_add_u32 v3, s31, v3
        v_mul_u32_u24 v3, 1152, v3
        v_lshl_add_u32 v3, v4, 7, v3
        s_mul_i32 s31, s30, 14
        v_add_u32 v7, s31, v{VL}
        v_min_u32 v7, 13823, v7
        s_mov_b32 s32, 29128
        v_mul_lo_u32 v4, v7, s32
        v_lshrrev_b32 v4, 20, v4
        v_mul_u32_u24 v5, 36, v4
        v_sub_u32 v5, v7, v5
        v_mul_u32_u24 v4, 9216, v4
        v_lshl_add_u32 v4, v5, 7, v4
        v_add_u32 v4, {192*9216 + 4608}, v4
        {xm(0xfff)}
        global_load_dword v254, v3, s[6:7] offset:384
        {xm((1 << 14) - 1)}
        global_load_dword v254, v4, s[8:9]
        s_mov_b64 exec, -1
        """)

    if o.get('p0'): k.stamp(7)
    k(f"s_waitcnt vmcnt({2 if o.get('touch', 1) else 0})")
    if o.get('p0'): k.stamp(8)
    yield
    k.srd(36, 4, 2048 * 16, add=WS_RS)
    k("s_waitcnt lgkmcnt(0)")
    def reads(F, half):
        vx = VX0 if half == 0 else VX1
        r = [f"ds_read_b128 v[{F+4*tb}:{F+4*tb+3}], v{vx} offset:{tb*2048}" for tb in range(2)]
        if o.get('nord1') == 1: return r
        if o.get('nord1') == 2: return [f"ds_read_b128 v[{F+8+4*i}:{F+8+4*i+3}], v{V16} offset:{i*1024}" for i in range(9)] + r
        for i in range(9):
            for rd in range(2):
                b = F + 8 + 4 * i + 2 * rd
                r.append(f"ds_read_b64_tr_b16 v[{b}:{b+1}], v{VW} offset:{half*32*288 + rd*8*288 + i*32}")
        return r
    def mfmas(F, z2, first=False):
        out = []; ACC = A2 if z2 else A1
        for i in range(9):
            for tb in range(2):
                a = ACC + (i * 2 + tb) * 4
                wf = f"v[{F+8+4*i}:{F+8+4*i+3}]"; xf = f"v[{F+4*tb}:{F+4*tb+3}]"
                A, B = (xf, wf) if z2 else (wf, xf)
                out.append(f"v_mfma_f32_16x16x32_bf16 v[{a}:{a+3}], {A}, {B}, {'0' if first else 'v[%d:%d]' % (a, a+3)}")
        return out
    adv = [f"s_add_u32 s34, s34, {SLOT}\ns_cmp_ge_u32 s34, {SLOT*NS}\ns_cselect_b32 s34, 0, s34",
           f"v_add_u32 v{VX0}, s34, v{VX0b}\nv_add_u32 v{VX1}, s34, v{VX1b}\nv_add_u32 v{VW}, s34, v{VWb}"]
    def gemm(z2):
        name = f"fz_g1{'a' if z2 else 'b'}"
        if o.get('p0') and z2: k.stamp(9)
        k("s_barrier")
        k.stamp(2 if z2 else 5)
        k("\n".join(reads(FX, 0)))
        k("s_waitcnt lgkmcnt(0)")
        k("\n".join(front2(mfmas(FX, z2, True), reads(FY, 1) + adv, o.get('per', 2))))
        k(f"s_mov_b32 s35, 1\ns_waitcnt lgkmcnt(0)\n{name}:\ns_barrier")
        k("\n".join(front2(mfmas(FY, z2), reads(FX, 0), o.get('per', 2))))
        k("s_waitcnt lgkmcnt(0)")
        k("\n".join(front2(mfmas(FX, z2), reads(FY, 1) + adv + ["s_add_u32 s35, s35, 1"], o.get('per', 2))))
        if z2:
            k("s_cmp_eq_u32 s35, 2\ns_cbranch_scc0 fz_nrg\ns_waitcnt vmcnt(0)"); rowgran(k, 36, 249); k("fz_nrg:")
            if o.get('spat', 9) < 9:
                k(f"s_cmp_eq_u32 s35, {o['spat']}\ns_cbranch_scc0 fz_nsp\nglobal_load_dword v254, v250, s[24:25]\nfz_nsp:")
        k(f"s_cmp_lt_u32 s35, 9\ns_waitcnt lgkmcnt(0)\ns_cbranch_scc1 {name}")
        k("\n".join(mfmas(FY, z2)))
    gemm(True)
    k.stamp(3)
    SU, SQ = FX, FX + 8
    CP = FX + 16
    T = 196
    PS, PQ = 212, 220
    k(f"""
    v_and_b32 v{T}, 15, v{VL}
    v_lshlrev_b32 v{T}, 2, v{T}
    v_add_u32 v{T+1}, {COLP}, v{T}
    s_lshl_b32 s33, s{W}, 7
    s_add_u32 s33, s33, {ROWA}
    v_add_u32 v{T}, s33, v{T}
    v_lshrrev_b32 v{T+2}, 4, v{VL}
    v_lshlrev_b32 v{T+2}, 4, v{T+2}
    v_add_u32 v{T+2}, s33, v{T+2}
    s_barrier
    ds_read_b128 v[{SU}:{SU+3}], v{T+2}
    ds_read_b128 v[{SU+4}:{SU+7}], v{T+2} offset:64
    ds_read_b128 v[{SQ}:{SQ+3}], v{T+2} offset:512
    ds_read_b128 v[{SQ+4}:{SQ+7}], v{T+2} offset:576
    """)
    for i in range(9): k(f"ds_read_b32 v{CP+4*i}, v{T+1} offset:{i*64}")
    k("s_waitcnt lgkmcnt(0)")
    for i in range(9):
        pairs = [A2 + (i * 2) * 4, A2 + (i * 2) * 4 + 2, A2 + (i * 2 + 1) * 4, A2 + (i * 2 + 1) * 4 + 2]
        cs = CP + 4 * i
        for n, a in enumerate(pairs): k(f"v_pk_mul_f32 v[{T+2*n}:{T+2*n+1}], v[{SU+2*n}:{SU+2*n+1}], v[{cs}:{cs+1}] op_sel_hi:[1,0]")
        for n, a in enumerate(pairs): k(f"v_pk_fma_f32 v[{a}:{a+1}], v[{a}:{a+1}], v[{SQ+2*n}:{SQ+2*n+1}], v[{T+2*n}:{T+2*n+1}]")
        gelu_group(k, pairs, T, 56, VC1, VONE)
        for n, a in enumerate(pairs):
            if i == 0: k(f"v_pk_mul_f32 v[{PQ+2*n}:{PQ+2*n+1}], v[{a}:{a+1}], v[{a}:{a+1}]\nv_mov_b32 v{PS+2*n}, v{a}\nv_mov_b32 v{PS+2*n+1}, v{a+1}")
            else: k(f"v_pk_fma_f32 v[{PQ+2*n}:{PQ+2*n+1}], v[{a}:{a+1}], v[{a}:{a+1}], v[{PQ+2*n}:{PQ+2*n+1}]\nv_pk_add_f32 v[{PS+2*n}:{PS+2*n+1}], v[{PS+2*n}:{PS+2*n+1}], v[{a}:{a+1}]")
    dpp_sum16(k, list(range(PS, PS + 16)))
    k(f"""
    {xm(0x0001000100010001)}
    ds_write_b128 v{VPG}, v[{PS}:{PS+3}]
    ds_write_b128 v{VPG}, v[{PS+4}:{PS+7}] offset:64
    ds_write_b128 v{VPG}, v[{PQ}:{PQ+3}] offset:128
    ds_write_b128 v{VPG}, v[{PQ+4}:{PQ+7}] offset:192
    s_mov_b64 exec, -1
    s_waitcnt lgkmcnt(0)
    """)
    k.stamp(4)
    gemm(False)
    k.stamp(6)
    T = 196
    SU, SQ = 148, 156
    k(f"""
    v_lshrrev_b32 v249, 4, v{VL}
    v_lshlrev_b32 v249, 4, v249
    s_lshl_b32 s33, s{W}, 7
    s_add_u32 s33, s33, {ROWA}
    v_add_u32 v249, s33, v249
    """)
    k.srd(36, 4, FRAG9, add=WS_Z2)
    k(f"""
    s_mul_i32 s32, s{C}, {9*64}
    s_lshl_b32 s33, s{P}, 2
    s_add_u32 s33, s33, s{W}         ; kb
    s_add_u32 s32, s32, s33
    s_lshl_b32 s32, s32, 10
    s_lshl_b32 s34, s{C}, 6
    s_add_u32 s34, s34, s33
    s_lshl_b32 s34, s34, 2
    s_add_u32 s34, s34, {FL_2}
    s_lshr_b32 s33, s{W}, 1
    s_mul_i32 s33, s33, {SLOT}
    s_and_b32 s53, s{W}, 1
    s_lshl_b32 s53, s53, 10
    s_add_u32 s33, s33, s53
    v_add_u32 v250, s33, v{V16}
    s_barrier
    ds_read_b128 v[{SU}:{SU+3}], v249
    ds_read_b128 v[{SU+4}:{SU+7}], v249 offset:64
    ds_read_b128 v[{SQ}:{SQ+3}], v249 offset:512
    ds_read_b128 v[{SQ+4}:{SQ+7}], v249 offset:576
    s_waitcnt lgkmcnt(0)
    """)
    k.stamp(7)
    for i in range(9):
        oo = 164 + (i % 4) * 4
        for sb in range(2):
            a = A2 + (i * 2 + sb) * 4
            for hh in range(2):
                k(f"v_pk_fma_f32 v[{a+2*hh}:{a+2*hh+1}], v[{a+2*hh}:{a+2*hh+1}], v[{SQ+4*sb+2*hh}:{SQ+4*sb+2*hh+1}], v[{SU+4*sb+2*hh}:{SU+4*sb+2*hh+1}]")
            for hh in range(2): k(f"v_cvt_pk_bf16_f32 v{oo+2*sb+hh}, v{a+2*hh}, v{a+2*hh+1}")
        k(f"v_permlane16_swap_b32 v{oo}, v{oo+2}\nv_permlane16_swap_b32 v{oo+1}, v{oo+3}")
        k(f"buffer_store_dwordx4 v[{oo}:{oo+3}], v{V16}, s[36:39], s32 offen sc1\ns_add_u32 s32, s32, 65536")
        k(f"ds_write_b128 v250, v[{oo}:{oo+3}] offset:{i*2048}")
    k.stamp(8)
    k("s_mov_b32 s48, s34\ns_branch fz_cons")

def side_issue(k, o, sb, st):
    k(f"""
    s_mul_i32 s36, s{sb}, 52429
    s_lshr_b32 s36, s36, 18
    s_mul_i32 s37, s36, 5
    s_sub_u32 s37, s{sb}, s37        ; q
    s_lshr_b32 s33, s36, 4
    s_and_b32 s35, s36, 15
    s_mul_i32 s35, s35, 144
    s_lshl_b32 s37, s37, 5
    s_add_u32 s35, s35, s37
    s_mul_i32 s35, s35, 1152
    s_mul_i32 s33, s33, 144
    s_add_u32 s35, s35, s33
    s_cmp_lt_u32 s{sb}, 640
    s_cselect_b32 s35, s35, {OOB}
    s_mov_b32 s33, {(1 << 16) // 9 + 1}
    """)
    for i in range(5):
        k(f"""
        v_add_u32 v44, {64*i}, v{VL}
        v_mul_lo_u32 v45, v44, s33
        v_lshrrev_b32 v45, 16, v45
        v_mul_u32_u24 v46, 9, v45
        v_sub_u32 v46, v44, v46
        v_mul_u32_u24 v45, 1152, v45
        v_lshl_add_u32 v45, v46, 4, v45
        s_add_u32 m0, s{st}, {i*1024}
        buffer_load_dwordx4 v45, s[24:27], s35 offen lds
        """)

def side_run(k, o, sb, st, fl):
    E = k.label("sr"); L2 = k.label("sr"); L3 = k.label("sr")
    k(f"""
    s_cmp_ge_u32 s{sb}, 640
    s_cbranch_scc1 {E}
    v_bfe_u32 v47, v{VL}, 2, 2
    v_and_b32 v48, 3, v{VL}
    v_lshrrev_b32 v51, 4, v{VL}
    v_lshl_add_u32 v47, v51, 2, v47
    v_mul_u32_u24 v47, 144, v47
    v_lshl_add_u32 v47, v48, 3, v47
    v_add_u32 v47, s{st}, v47
    """)
    for dt in range(5):
        k(f"ds_read_b64_tr_b16 v[{54+4*dt}:{55+4*dt}], v47 offset:{dt*32}")
        k(f"ds_read_b64_tr_b16 v[{56+4*dt}:{57+4*dt}], v47 offset:{dt*32 + 16*144}")
    k(f"""
    v_lshlrev_b32 v52, 4, v{VL}
    v_lshlrev_b32 v53, 3, v{VL}
    v_and_b32 v78, 7, v{VL}
    v_lshl_add_u32 v78, v51, 3, v78
    v_lshlrev_b32 v79, 4, v78
    v_lshlrev_b32 v78, 3, v78
    s_mul_i32 s36, s{sb}, 52429
    s_lshr_b32 s36, s36, 18
    s_mul_i32 s37, s36, 5
    s_sub_u32 s37, s{sb}, s37
    s_mul_i32 s33, s36, 20736
    s_mul_i32 s35, s37, 4608
    s_add_u32 s33, s33, s35
    s_add_u32 s35, s33, 4096
    s_lshl_b32 s{fl}, s36, 3
    s_add_u32 s{fl}, s{fl}, s37
    s_lshl_b32 s{fl}, s{fl}, 2
    s_add_u32 s{fl}, s{fl}, {FL_W}
    s_cmp_eq_u32 s37, 4
    s_waitcnt lgkmcnt(0)
    s_cbranch_scc1 {L2}
    """)
    for dt in range(4): k(f"buffer_store_dwordx4 v[{54+4*dt}:{57+4*dt}], v52, s[28:31], s33 offen offset:{dt*1024} sc1")
    k(xm(0x00ff00ff00ff00ff))
    k(f"buffer_store_dwordx4 v[70:73], v79, s[28:31], s35 offen sc1\ns_branch {L3}\n{L2}:")
    for dt in range(4): k(f"buffer_store_dwordx2 v[{54+4*dt}:{55+4*dt}], v53, s[28:31], s33 offen offset:{dt*512} sc1")
    k(xm(0x00ff00ff00ff00ff))
    k(f"buffer_store_dwordx2 v[70:71], v78, s[28:31], s33 offen offset:2048 sc1\n{L3}:\ns_mov_b64 exec, -1\n{E}:")

def b_setup(k):
    k(f"""
    s_load_dwordx2 s[6:7], s[0:1], {ARG['w_sp']}
    v_lshrrev_b32 v3, 3, v{VL}
    v_and_b32 v4, 7, v{VL}
    v_lshrrev_b32 v5, 4, v{VL}
    v_xor_b32 v4, v4, v5
    v_and_b32 v5, 1, v4
    v_lshlrev_b32 v5, 1, v5
    v_bfe_u32 v6, v4, 1, 1
    v_and_b32 v4, 4, v4
    v_or_b32 v4, v4, v5
    v_or_b32 v4, v4, v6
    v_lshlrev_b32 v4, 4, v4
    v_lshl_add_u32 v4, v3, 12, v4
    s_lshl_b32 s33, s{P}, 19
    v_add_u32 v4, s33, v4
    v_xor_b32 v5, 64, v4
    s_lshl_b32 s45, s{P}, 8
    s_mov_b32 s40, s45
    s_mov_b32 s44, 18432
    s_mov_b32 s41, 18432
    s_mov_b32 s43, 0
    s_mov_b32 s42, -1
    """)
    for j in range(16): k(f"v_add_u32 v{220+j}, {j*32768}, v{4 + (j & 1)}")
    k("s_waitcnt lgkmcnt(0)")
    k.srd(12, 6, 2048 * 4096)

def advk(k, kstep):
    k(f"""
    s_add_u32 s40, s40, {kstep}
    s_add_u32 s43, s43, 1
    s_cmp_eq_u32 s43, 2
    s_cselect_b32 s40, 0, s40
    s_cselect_b32 s42, s45, s42
    s_cmp_eq_u32 s40, s42
    s_cselect_b32 s33, {2*kstep}, 0
    s_add_u32 s40, s40, s33
    s_add_u32 s41, s41, {SLOT}
    s_cmp_ge_u32 s41, {SLOT*NS}
    s_cselect_b32 s41, s44, s41
    """)

def phase2(k, o):
    NST = 32
    k("fz_cons:")
    k.stamp(10)
    ACC = 0; ZR = 72; FX = 144; FY = 188
    VA, VB0, VB1, VAb, VB0b, VB1b = 232, 233, 234, 235, 236, 239
    GT = [240, 241, 246, 247, 248, 249]; VC2 = 252; BS = [253, 251]
    k(f"""
    s_load_dwordx2 s[8:9], s[0:1], {ARG['b_sp']}
    s_lshl_b32 s30, s{P}, 3
    s_lshl_b32 s31, s{W}, 1
    s_add_u32 s30, s30, s31
    s_lshl_b32 s31, s30, 4
    s_add_u32 s31, s31, s{C}
    s_mul_i32 s31, s31, 4608
    s_add_u32 s32, s31, {16*4608}
    v_and_b32 v3, 15, v{VL}
    v_lshrrev_b32 v{VB0b}, 4, v{VL}
    v_lshrrev_b32 v{VB1b}, 1, v3
    v_xor_b32 v{VB0b}, v{VB0b}, v{VB1b}
    v_lshlrev_b32 v{VB0b}, 4, v{VB0b}
    v_lshl_add_u32 v{VB0b}, v3, 7, v{VB0b}
    s_lshl_b32 s34, s{W}, 12
    s_add_u32 s34, s34, 18432
    v_add_u32 v{VB0b}, s34, v{VB0b}
    v_xor_b32 v{VB1b}, 64, v{VB0b}
    v_lshlrev_b32 v{VAb}, 4, v{VL}
    v_add_u32 v{VA}, {2*SLOT}, v{VAb}
    v_add_u32 v{VB0}, {2*SLOT}, v{VB0b}
    v_add_u32 v{VB1}, {2*SLOT}, v{VB1b}
    s_lshl_b32 s34, s30, 4
    v_add_u32 v3, s34, v3
    v_lshlrev_b32 v3, 1, v3
    v_mov_b32 v{VC2}, {fbits(C2)}
    s_waitcnt lgkmcnt(0)
    global_load_ushort v{BS[0]}, v3, s[8:9]
    global_load_ushort v{BS[1]}, v3, s[8:9] offset:32
    s_mov_b32 s34, 0
    s_setprio {o.get('prio', 2)}
    s_lshl_b32 s28, s{P}, 1
    s_lshr_b32 s10, s{W}, 1
    s_add_u32 s28, s28, s10
    s_lshl_b32 s28, s28, 4
    s_add_u32 s28, s28, s{C}
    s_lshl_b32 s28, s28, 1
    s_and_b32 s10, s{W}, 1
    s_add_u32 s28, s28, s10
    s_lshl_b32 s28, s28, 2
    s_add_u32 s28, s28, {FL_H}
    """)
    g3 = Gemm3(k, o)
    g3.pre()
    def reads(F, half, st):
        sl = st % 4; hi = sl >> 1; off = (sl & 1) * SLOT
        vb = [[VB0b, VB1b], [VB0, VB1]][hi][half]; va = [VAb, VA][hi]
        r = [f"ds_read_b128 v[{F+4*tb}:{F+4*tb+3}], v{vb} offset:{off + tb*2048}" for tb in range(2)]
        r += [f"ds_read_b128 v[{F+8+4*ft}:{F+8+4*ft+3}], v{va} offset:{off + (ft*2+half)*1024}" for ft in range(9)]
        return r
    def mfmas(F, first=False):
        return [f"v_mfma_f32_16x16x32_bf16 v[{ACC+(ft*2+tb)*4}:{ACC+(ft*2+tb)*4+3}], v[{F+8+4*ft}:{F+8+4*ft+3}], v[{F+4*tb}:{F+4*tb+3}], " + ("0" if first else f"v[{ACC+(ft*2+tb)*4}:{ACC+(ft*2+tb)*4+3}]")
                for ft in range(o.get('nft', 9)) for tb in range(2)]
    adv = [f"s_add_u32 s34, s34, {SLOT}\ns_cmp_ge_u32 s34, {SLOT*NS}\ns_cselect_b32 s34, 0, s34",
           f"v_add_u32 v{VA}, s34, v{VAb}", f"v_add_u32 v{VB0}, s34, v{VB0b}", f"v_add_u32 v{VB1}, s34, v{VB1b}"]
    def gpair(n):
        if n >= 36: return []
        a = ZR + 2 * n; t = GT[2 * (n % 3)]; u = GT[2 * (n % 3) + 1]
        return [f"v_mul_f32 v{t}, v{a}, v{a}", f"v_mul_f32 v{u}, v{a+1}, v{a+1}",
                f"v_fmaak_f32 v{t}, v{VC2}, v{t}, {fbits(C1)}", f"v_fmaak_f32 v{u}, v{VC2}, v{u}, {fbits(C1)}",
                f"v_mul_f32 v{t}, v{t}, v{a}", f"v_mul_f32 v{u}, v{u}, v{a+1}",
                f"v_exp_f32 v{t}, v{t}", f"v_exp_f32 v{u}, v{u}",
                f"v_add_f32 v{t}, 1.0, v{t}", f"v_add_f32 v{u}, 1.0, v{u}",
                f"v_rcp_f32 v{t}, v{t}", f"v_rcp_f32 v{u}, v{u}",
                f"v_mul_f32 v{a}, v{a}, v{t}", f"v_mul_f32 v{a+1}, v{a+1}, v{u}",
                f"v_cvt_pk_bf16_f32 v{a}, v{a}, v{a+1}"]
    def weave(mf, rd, fill):
        out = []; fi = 0
        for i, x in enumerate(mf):
            out.append(x)
            if i < len(rd): out.append(rd[i])
            if fi < len(fill) and i >= 2: out.append(fill[fi]); fi += 1
        return out + rd[len(mf):] + fill[fi:]
    NU = o.get('NU', 12)
    gb = o.get('gb', 0)
    allf = [x for n_ in range(36 - gb) for x in gpair(n_)]
    nh = 2 * NU; per_ = -(-len(allf) // nh)
    fl = [allf[i * per_:(i + 1) * per_] for i in range(nh)]
    def weave(mf, rd, fill):
        out = []; fi = 0; n_ = len(mf)
        for i, x in enumerate(mf):
            out.append(x)
            if i < len(rd): out.append(rd[i])
            want = (i + 1) * len(fill) // n_ if o.get('even', 1) else (i - 1 if i >= 2 else 0)
            while fi < min(want, len(fill)): out.append(fill[fi]); fi += 1
        return out + rd[len(mf):] + fill[fi:]
    k("s_barrier")
    k.stamp(11)
    bp = o.get('bp', 18)
    def stage2(st, f0, f1, extra=(), tail=()):
        k("\n".join(weave(mfmas(FY), reads(FX, 0, st), f0)))
        k("s_waitcnt lgkmcnt(0)")
        w = weave(mfmas(FX), reads(FY, 1, st) + list(extra), f1)
        idx = [i for i, x in enumerate(w) if x.startswith("v_mfma")]
        cut = len(w) if bp >= 18 else idx[bp]
        k("\n".join(w[:cut] + list(tail) + ["s_waitcnt lgkmcnt(0)", "s_barrier"] + w[cut:]))
    k("\n".join(reads(FX, 0, 0) + fl[0]))
    k("s_waitcnt lgkmcnt(0)")
    k("\n".join(weave(mfmas(FX, True), reads(FY, 1, 0), fl[1])))
    zf = f"v_mov_b32 v238, 0\nv_mov_b32 v254, s{NON}\ns_waitcnt vmcnt(2)\ns_mov_b64 exec, 1\nbuffer_store_dword v254, v238, s[{FLS}:{FLS+3}], s48 offen sc1\ns_mov_b64 exec, -1"
    if o.get('zfp', 0) == 0: k(zf); k.stamp(9)
    k("s_waitcnt lgkmcnt(0)\ns_barrier")
    assert NU % 4 == 0
    for st in range(1, NU):
        tail = [zf] if (st == 1 and o.get('zfp', 0) == 1) else []
        if st == 1 and gb:
            for n0 in range(36 - gb, 36, 3):
                g3_ = [gpair(n_) for n_ in range(n0, min(36, n0 + 3))]
                for pos in range(15): tail += [g_[pos] for g_ in g3_]
        stage2(st, fl[2 * st], fl[2 * st + 1], tail=tail)
    if o.get('p2'): k.stamp(10)
    k(f"s_mov_b32 s35, {NU}\nfz_cloop:")
    for u in range(4):
        stage2(u, [], [], extra=(["s_add_u32 s35, s35, 4", "s_cmp_lt_u32 s35, 28"] if u == 3 else []))
    k("s_cbranch_scc1 fz_cloop")
    for u in range(4):
        stage2(u, [], [], extra=([f"buffer_load_dword v238, v237, s[{FLS}:{FLS+3}], 0 offen sc1"] if u == 0 else []))
    k("\n".join(mfmas(FY)))
    k.stamp(12)
    k.srd(12, 4, FRAG9, add=WS_H)
    g3.wcheck()
    VBS = 232
    k("s_setprio 3")
    k(f"v_lshlrev_b32 v{VBS}, 16, v{BS[0]}\nv_lshlrev_b32 v{VBS+2}, 16, v{BS[1]}\nv_mov_b32 v{VBS+1}, v{VBS}\nv_mov_b32 v{VBS+3}, v{VBS+2}")
    for tb in range(2):
        b = VBS + 2 * tb
        for q in range(5):
            nt = 2 if q < 4 else 1
            oo = 144 + (tb * 5 + q) % 2 * 4
            for t in range(nt):
                a = ACC + ((2 * q + t) * 2 + tb) * 4
                for hh in range(2):
                    z = ZR + ((2 * q + t) * 2 + tb) * 4 + 2 * hh; u = 236 + 2 * ((2 * t + hh) % 3)
                    k(f"""
                    v_pk_add_f32 v[{a+2*hh}:{a+2*hh+1}], v[{a+2*hh}:{a+2*hh+1}], v[{b}:{b+1}]
                    v_lshlrev_b32 v{u}, 16, v{z}
                    v_and_b32 v{u+1}, 0xffff0000, v{z}
                    v_pk_mul_f32 v[{a+2*hh}:{a+2*hh+1}], v[{a+2*hh}:{a+2*hh+1}], v[{u}:{u+1}]
                    v_cvt_pk_bf16_f32 v{oo+t*2+hh}, v{a+2*hh}, v{a+2*hh+1}
                    """)
            if q < 4: k(f"buffer_store_dwordx4 v[{oo}:{oo+3}], v242, s[12:15], s{31+tb} offen offset:{q*1024} sc1")
            else: k(f"s_add_u32 s33, s{31+tb}, 4096\nbuffer_store_dwordx2 v[{oo}:{oo+1}], v243, s[12:15], s33 offen sc1")
    if o.get('p3'): k.stamp(2)
    k(f"v_mov_b32 v0, 0\nv_mov_b32 v1, s{NON}\ns_waitcnt vmcnt(0)\ns_mov_b64 exec, 1\nbuffer_store_dword v1, v0, s[{FLS}:{FLS+3}], s28 offen sc1\ns_mov_b64 exec, -1")
    k.stamp(13)
    k(f"s_setprio {o.get('prio4', 1)}")
    g3.wregs()
    g3.main()
    k("fz_loader:\ns_setprio 0")
    for j in range(16): k(f"v_mov_b32 v{198+j}, 0")
    def issue(n, kstep, sc, chk=False, j0=0):
        if chk:
            L = k.label("pc"); D = k.label("pd")
            k(f"""
            {L}:
            s_lshr_b32 s33, s40, 10
            s_and_b32 s33, s33, 60
            s_lshr_b64 s[48:49], s[46:47], s33
            s_and_b32 s48, s48, 15
            s_cbranch_scc0 {D}
            s_add_u32 s62, s62, 1
            s_cmp_ge_u32 s62, {SPIN}
            s_cbranch_scc1 {D}
            buffer_load_dword v200, v199, s[{FLS}:{FLS+3}], s30 offen sc1
            s_waitcnt vmcnt(0)
            v_cmp_ne_u32 s[46:47], s{NON}, v200
            s_branch {L}
            {D}:
            """)
        for j in range(0 if o.get('nodma2') else n):
            k((f"s_add_u32 m0, s41, {(j+j0)*1024}\n" if j + j0 else "s_mov_b32 m0, s41\n") + f"buffer_load_dwordx4 v{VL_(j)}, s[12:15], s40 offen {sc}lds")
        advk(k, kstep)
    VL_ = lambda j: 112 + j
    def ring(tag, n, kstep, sc, first):
        k(f"s_setprio {o.get('prioR', 3)}")
        wst_setup(k, o, 214)
        if o.get('l4', 1):
            k(f"s_mov_b32 s35, {first}\nfz_h{tag}:\ns_waitcnt vmcnt({2*n})\ns_barrier")
            issue(n, kstep, sc, tag == "A")
            k(f"s_add_u32 s35, s35, 1\ns_cmp_lt_u32 s35, 5\ns_cbranch_scc1 fz_h{tag}\ns_waitcnt vmcnt({2*n})\ns_barrier")
            n2 = n; n = n // 2
            issue(n, kstep, sc, tag == "A")
            k(f"s_waitcnt vmcnt({n2 + n})\ns_barrier")
            issue(n, kstep, sc, tag == "A")
            first = 7
        k(f"s_mov_b32 s35, {first}\nfz_l{tag}:\ns_waitcnt vmcnt({2*n})\ns_barrier")
        issue(n, kstep, sc, tag == "A")
        fv = 214
        k(f"s_cmp_eq_u32 s35, 24\ns_cbranch_scc0 fz_m{tag}\nbuffer_load_dwordx2 v[{fv}:{fv+1}], v{fv+2}, s[{FLS}:{FLS+3}], s52 offen sc1\nfz_m{tag}:")
        k(f"s_add_u32 s35, s35, 1\ns_cmp_lt_u32 s35, {NST-3}\ns_cbranch_scc1 fz_l{tag}")
        wst_check(k, o, fv=214)
        if tag == "A":
            k(f"v_mov_b32 v60, {RDY}\nv_mov_b32 v61, 0\nds_write_b32 v60, v61 offset:8\nds_write_b32 v60, v61 offset:16\ns_min_u32 s58, s58, 1000")
            ft_load(k)
            wst(k, 3); k(f"s_waitcnt vmcnt({2*n + 22})\ns_barrier")
            wst(k, 0); k(f"s_waitcnt vmcnt({n + 43})\ns_barrier\ns_waitcnt vmcnt(43) lgkmcnt(0)\ns_barrier")
        else:
            k(f"s_waitcnt vmcnt({2*n})\ns_barrier\ns_waitcnt vmcnt({n})\ns_barrier")
            wst(k, 1); wst(k, 2); k("s_waitcnt vmcnt(42)\ns_barrier")
        k("s_waitcnt vmcnt(0)\ns_barrier")
    k(f"s_cmp_ge_u32 s58, 576\ns_cbranch_scc1 fz_nk0")
    k(f"s_mov_b32 s54, {fbits(L2E_HI)}\ns_mov_b32 s55, {fbits(I2P_HI)}")
    for i in range(40): k(f"v_mov_b32 v{i}, 0")
    k("\n".join(kgen_dt()))
    if o.get('t3', 0): k(f"s_cmp_eq_u32 s{W}, 4\ns_cbranch_scc1 fz_nk0")
    kh = kgen_half(); c0 = next(i for i, x in enumerate(kh) if x.startswith('ds_')); c1 = len(kh) * o.get('k1', 50) // 100
    k("s_mov_b32 s53, 0\nfz_kg:")
    k("\n".join(kh[:c0]))
    k("s_cmp_lg_u32 s53, 0\ns_cbranch_scc1 fz_kgb\ns_barrier\nfz_kgb:")
    k("\n".join(kh[c0:c1]))
    k("s_cmp_lg_u32 s53, 0\ns_cbranch_scc1 fz_kgc\ns_barrier\nfz_kgc:")
    k("\n".join(kh[c1:]))
    k("s_cmp_eq_u32 s53, 1\ns_cbranch_scc1 fz_kg2\ns_cmp_eq_u32 s53, 0\ns_cbranch_scc1 fz_nk\ns_mov_b32 s53, 1\ns_branch fz_kg\nfz_nk0:\ns_barrier\ns_barrier\nfz_nk:")
    k.stamp(9)
    k(f"s_mov_b32 s43, 0\ns_mov_b32 s42, -1\ns_cmp_lg_u32 s{W}, 4\ns_cbranch_scc1 fz_idle")
    k.srd(12, 4, FRAG9, add=WS_Z2)
    k(f"s_lshl_b32 s45, s{P}, 12\ns_mov_b32 s40, s45\ns_mul_i32 s31, s{C}, {9*65536}\nv_lshlrev_b32 v198, 4, v{VL}\nv_add_u32 v198, s31, v198\ns_mov_b32 s44, 0\ns_mov_b32 s41, 0")
    for j in range(18): k(f"v_add_u32 v{VL_(j)}, {(j >> 1)*65536 + (j & 1)*1024}, v198")
    k(f"s_lshl_b32 s30, s{C}, 8\ns_add_u32 s30, s30, {FL_2}\nv_lshlrev_b32 v199, 2, v{VL}\ns_mov_b64 s[46:47], -1\ns_mov_b32 s62, 0")
    advk(k, 2048); advk(k, 2048)
    k.stamp(10)
    issue(18, 2048, "sc1 ", True)
    issue(18, 2048, "sc1 ", True); issue(18, 2048, "sc1 ", True)
    k.stamp(11)
    ring("A", 18, 2048, "sc1 ", 2)
    k("s_branch fz_p34")
    k("fz_ld5:\ns_setprio 0")
    VL_ = lambda j: 220 + j
    for _ in range(2): issue(16, 128, "")
    k.stamp(11)
    ring("B", 16, 128, "", 0)
    mode = o.get('cv', 1)
    if mode == 0: k("s_branch fz_fin")
    else:
        k(f"s_lshl_b32 s58, s2, 1\ns_mov_b32 s59, {CONV0}\ns_mov_b32 s57, {RDY}\ns_cmp_ge_u32 s2, 64\ns_cbranch_scc1 fz_help")
        if o.get('h3', 1): k(f"s_add_u32 s58, s2, 512\ns_mov_b32 s59, {CONV0 + 2*REG}\ns_mov_b32 s57, {RDY + 8}\ns_branch fz_help")
        else: k("s_branch fz_fin")
    k("fz_idle:")
    k(f"v_mov_b32 v44, {RDY}\nv_mov_b32 v45, 0\nds_write_b32 v44, v45\nds_write_b32 v44, v45 offset:4")
    regs = list(range(KG['WAD'], KG['WAD'] + 16)) + list(range(KG['RW'], KG['RW'] + 4)) + list(range(KG['RS'], KG['RS'] + 10))
    nch = o.get('nch', 0)
    if nch:
        for r in regs: k(f"v_add_u32 v{r}, {139264 - KTAB}, v{r}")
        k("s_barrier")
        for ch in split(kgen_half(), nch):
            k("s_barrier"); k("\n".join(ch))
        for _ in range(30 - nch): k("s_barrier")
    elif o.get('l4', 1):
        k(f"""
        s_load_dwordx2 s[6:7], s[0:1], {ARG['w_sp']}
        s_load_dwordx2 s[8:9], s[0:1], {ARG['w_out']}
        s_lshl_b32 s50, s56, 8
        s_add_u32 s50, s50, s2
        s_add_u32 s51, s2, 384
        s_cmp_ge_u32 s2, 128
        s_cselect_b32 s51, s51, 999
        s_cmp_eq_u32 s56, 0
        s_cselect_b32 s51, s51, 999
        s_lshl_b32 s52, s56, 13
        s_add_u32 s52, s52, {KTAB}
        s_mov_b32 s63, {KTAB + 16384}
        s_mov_b32 s38, {FL_BYTES}
        s_mov_b32 s39, {FL_BYTES}
        s_waitcnt lgkmcnt(0)
        """)
        k.srd(24, 8, WOBYTES)
        k.srd(28, 4, WOBYTES, add=WS_WO)
        k.srd(12, 6, 2048 * 4096)
        side_issue(k, o, 50, 52)
        k("s_cmp_ge_u32 s51, 640\ns_cbranch_scc1 fz_ns2"); side_issue(k, o, 51, 63); k("fz_ns2:")
        k("s_barrier\ns_barrier\ns_waitcnt vmcnt(0)")
        side_run(k, o, 50, 52, 38); side_run(k, o, 51, 63, 39)
        k(f"s_setprio {o.get('prioR', 3)}\ns_cmp_eq_u32 s{W}, 7\ns_cbranch_scc1 fz_h7")
        for tag, n, kstep, sc in (("6", 9, 2048, "sc1 "), ("7", 8, 128, "")):
            VL_ = lambda j: 202 + j
            if tag == "6":
                k.srd(12, 4, FRAG9, add=WS_Z2)
                k(f"s_lshl_b32 s45, s{P}, 12\ns_mul_i32 s31, s{C}, {9*65536}\nv_lshlrev_b32 v198, 4, v{VL}\nv_add_u32 v198, s31, v198\ns_mov_b32 s44, 0")
                for j in range(9): k(f"v_add_u32 v{VL_(j)}, {((j+9) >> 1)*65536 + ((j+9) & 1)*1024}, v198")
                k(f"s_lshl_b32 s30, s{C}, 8\ns_add_u32 s30, s30, {FL_2}\nv_lshlrev_b32 v199, 2, v{VL}\ns_mov_b64 s[46:47], -1\ns_mov_b32 s62, 0")
            else:
                k(f"""
                fz_h7:
                v_lshrrev_b32 v44, 3, v{VL}
                v_and_b32 v45, 7, v{VL}
                v_lshrrev_b32 v46, 4, v{VL}
                v_xor_b32 v45, v45, v46
                v_and_b32 v46, 1, v45
                v_lshlrev_b32 v46, 1, v46
                v_bfe_u32 v47, v45, 1, 1
                v_and_b32 v45, 4, v45
                v_or_b32 v45, v45, v46
                v_or_b32 v45, v45, v47
                v_lshlrev_b32 v45, 4, v45
                v_lshl_add_u32 v45, v44, 12, v45
                s_lshl_b32 s31, s{P}, 19
                v_add_u32 v44, s31, v45
                v_xor_b32 v45, 64, v44
                s_lshl_b32 s45, s{P}, 8
                s_mov_b32 s44, 18432
                """)
                for j in range(8): k(f"v_add_u32 v{VL_(j)}, {(j+8)*32768}, v{44 + (j & 1)}")
            k(f"s_mov_b32 s40, s45\ns_mov_b32 s41, s44\ns_mov_b32 s35, 0\nfz_a{tag}:")
            advk(k, kstep)
            k(f"s_add_u32 s35, s35, 1\ns_cmp_lt_u32 s35, 8\ns_cbranch_scc1 fz_a{tag}")
            k("s_barrier")
            k(f"s_mov_b32 s35, 5\nfz_r{tag}:\ns_waitcnt vmcnt({2*n})\ns_barrier")
            issue(n, kstep, sc, tag == "6", j0=n)
            k(f"s_cmp_eq_u32 s35, 8\ns_cbranch_scc0 fz_f{tag}\nv_mov_b32 v44, 0\nv_mov_b32 v45, s{NON}\ns_mov_b64 exec, 1\nbuffer_store_dword v45, v44, s[{FLS}:{FLS+3}], s38 offen sc1\nbuffer_store_dword v45, v44, s[{FLS}:{FLS+3}], s39 offen sc1\ns_mov_b64 exec, -1\nfz_f{tag}:")
            k(f"s_add_u32 s35, s35, 1\ns_cmp_lt_u32 s35, 29\ns_cbranch_scc1 fz_r{tag}")
            k(f"s_waitcnt vmcnt({2*n})\ns_barrier\ns_waitcnt vmcnt({n})\ns_barrier\ns_waitcnt vmcnt(0)")
            if tag == "6": k("s_branch fz_h9")
        k("fz_h9:")
    else:
        k(f"s_mov_b32 s35, 0\nfz_idl:\ns_barrier\ns_add_u32 s35, s35, 1\ns_cmp_lt_u32 s35, 31\ns_cbranch_scc1 fz_idl")
    ft_load(k)
    k("s_barrier\ns_barrier")
    k.stamp(12)
    k(f"s_lshl_b32 s57, s56, 2\ns_add_u32 s57, s57, {RDY}")
    k(f"s_mov_b32 s3, 0\ns_cmp_ge_u32 s2, 64\ns_cbranch_scc1 fz_k2\ns_mov_b32 s3, 1\nfz_k2:")
    k(f"s_setprio {o.get('prio3', 3)}\ns_mul_i32 s59, s56, {REG}\ns_add_u32 s59, s59, {CONV0}")
    u_load(k)
    if nch: k(f"s_cmp_lg_u32 s{W}, 4\ns_cbranch_scc1 fz_kg2")
    k(f"s_lshl_b32 s33, s56, 13\ns_add_u32 s33, s33, {KTAB - 4608}\ns_sub_u32 s33, s59, s33")
    for r in regs: k(f"v_add_u32 v{r}, s33, v{r}")
    if o.get('t3', 0): k(f"s_mov_b32 s53, 2\ns_cmp_eq_u32 s{W}, 4\ns_cbranch_scc1 fz_kg")
    k("s_mov_b32 s53, 1\ns_branch fz_kg\nfz_kg2:")
    k.stamp(8)
    conv_build(k, o)
    k.stamp(13)
    if mode:
        k("s_cmp_eq_u32 s3, 1\ns_cbranch_scc1 fz_full")
        conv_run(k, o, 0)
        k.stamp(14)
        k("s_branch fz_fin\nfz_full:")
    conv_run(k, o, 2)
    k.stamp(14)
    k("s_branch fz_fin")
    k(f"fz_p34:\ns_cmp_lt_u32 s58, 576\ns_cbranch_scc1 fz_own3")
    if mode:
        k(f"s_lshl_b32 s58, s2, 1\ns_add_u32 s58, s58, 1\ns_mov_b32 s59, {CONV0 + REG}\ns_mov_b32 s57, {RDY + 4}")
        k(f"""
        fz_help:
        s_mov_b32 s3, 0
        s_setprio {o.get('prio3', 3)}
        v_mov_b32 v20, s57
        s_mov_b32 s62, 0
        fz_hw:
        ds_read_b32 v21, v20
        s_add_u32 s62, s62, 1
        s_waitcnt lgkmcnt(0)
        v_readfirstlane_b32 s33, v21
        s_cmp_eq_u32 s33, 1
        s_cbranch_scc1 fz_runb
        s_cmp_lt_u32 s62, {SPIN*16}
        s_cbranch_scc1 fz_hw
        fz_runb:
        """)
        k.stamp(13)
        conv_run(k, o, 1)
        k.stamp(14)
    k("s_branch fz_fin\nfz_own3:")
    k(f"s_mov_b32 s57, {RDY + 8}\ns_mov_b32 s3, {0 if o.get('h3', 1) else 1}\ns_branch fz_k2")

def wst_setup(k, o, fv):
    g3map(k, 50, 51)
    k.srd(24, 4, WOBYTES, add=WS_WO)
    k(f"s_lshl_b32 s52, s51, 9\ns_add_u32 s52, s52, {FL_W}\ns_mul_i32 s63, s51, {16*20736}\nv_lshlrev_b32 v{fv+2}, 3, v{VL}\nv_lshlrev_b32 v{fv+3}, 4, v{VL}\nv_mov_b32 v{fv}, 0\nv_mov_b32 v{fv+1}, 0")
    k.wfv = fv
def wst_check(k, o, fv):
    L = k.label("w4"); D = k.label("w4d")
    k(f"""
    s_mov_b32 s62, 0
    {L}:
    v_cmp_ne_u32 vcc, s{NON}, v{fv}
    s_and_b32 vcc_lo, vcc_lo, 0x77777777
    s_and_b32 vcc_hi, vcc_hi, 0x77777777
    v_cmp_ne_u32 s[60:61], s{NON}, v{fv+1}
    s_and_b32 s60, s60, 0x33333333
    s_and_b32 s61, s61, 0x33333333
    s_or_b64 vcc, vcc, s[60:61]
    s_cbranch_scc0 {D}
    s_add_u32 s62, s62, 1
    s_cmp_ge_u32 s62, {SPIN}
    s_cbranch_scc1 {D}
    buffer_load_dwordx2 v[{fv}:{fv+1}], v{fv+2}, s[{FLS}:{FLS+3}], s52 offen sc1
    s_waitcnt vmcnt(0)
    s_branch {L}
    {D}:
    """)
def wst(k, w):
    fv = k.wfv
    k(f"s_add_u32 s48, s{C}, {w + 4}\ns_and_b32 s48, s48, 15\ns_mul_i32 s48, s48, 20736\ns_add_u32 s48, s48, s63")
    for i in range(21):
        if i == 20: k(xm(0xffff))
        k(f"s_mov_b32 m0, {WQ[w] + i*1024}\nbuffer_load_dwordx4 v{fv+3}, s[24:27], s48 offen sc1 lds\ns_add_u32 s48, s48, 1024")
    k("s_mov_b64 exec, -1")

def gen_fused(prof=False, **o):
    OPT.update(o); o['WFL'] = WFL
    k = Kern(NAME + "_kernel", 256, 512, 163840)
    k.prof = prof; k.allreal = bool(o.get('real', 0))
    if o.get('p0'):
        seen = set(); st0 = k.stamp
        def st(i, real=False):
            if i in (5, 7, 8, 9):
                key = (i, len([1 for l in k.lines if l.startswith(('fz_l1W:', 'fz_c1:'))]))
                if key in seen or any(l.startswith('fz_cons:') for l in k.lines): return
                seen.add(key)
            st0(i, real)
        k.stamp = st
    k.stamp(0, True); k.stamp(1)
    if o.get('dbgt'): k("s_memrealtime s[64:65]")
    phase0(k, o); phase2(k, o)
    k("fz_fin:")
    if o.get('dbgt'):
        k(f"""
        s_waitcnt vmcnt(0)
        s_memrealtime s[66:67]
        s_load_dwordx2 s[68:69], s[0:1], {ARG['dbg']}
        s_waitcnt lgkmcnt(0)
        s_cmp_ge_u32 s2, 8
        s_cbranch_scc1 fz_end
        s_cmp_lg_u32 s22, 0
        s_cbranch_scc1 fz_end
        s_lshl_b32 s70, s2, 3
        v_mov_b32 v0, s70
        v_mov_b32 v2, s64
        v_mov_b32 v3, s66
        s_mov_b64 exec, 1
        global_store_dwordx2 v0, v[2:3], s[68:69]
        """)
    if prof:
        k("s_waitcnt vmcnt(0)"); k.stamp(15, True)
        k.prof_dump(0, 4, W, 16)
    k("fz_end:")
    return k

def emit_single(k, path):
    from gen import header
    s = header() + f"; @launch kernel={k.name} grid=({k.grid},1,1) block=({k.block},1,1) lds={k.lds}\n"
    s += '.amdgcn_target "amdgcn-amd-amdhsa--gfx950"\n.text\n' + k.text() + '.section .rodata,"a"\n' + k.desc()
    open(path, "w").write(s)

if __name__ == "__main__":
    opts = {a.split("=")[0]: int(a.split("=")[1]) for a in sys.argv[2:] if "=" in a}
    emit_single(gen_fused(prof="prof" in sys.argv, **opts), sys.argv[1])
```

```python
import sys; sys.path.insert(0, "dev")
from cm24 import *
SLOT = 34816; NS = 4
XTL = 104448; RPL = 114688
Z1 = 160
WOFF = 16384


ROWA = 139264
COLP = ROWA + 1024
WPRIV = COLP + 2 * 768
XTS = WPRIV + 1280
assert XTS + 4 * 5120 <= 163840
KTAB = 139264
CNT = WPRIV + 1024
WFL = 163000
RPK = XTS
WS_RS = WS_ST + 0x90000
def phase0(k, o):
    k(f"""
    s_load_dwordx2 s[6:7], s[0:1], {ARG['x']}
    s_load_dwordx2 s[8:9], s[0:1], {ARG['w_in']}
    s_load_dwordx2 s[4:5], s[0:1], {ARG['ws']}
    s_getpc_b64 s[28:29]
    fz_pc:
    s_cmp_ge_u32 s2, 256
    s_cbranch_scc1 fz_end
    v_lshrrev_b32 v1, 6, v0
    v_and_b32 v{VL}, 63, v0
    v_readfirstlane_b32 s{W}, v1
    s_and_b32 s30, s2, 7
    s_lshr_b32 s31, s2, 3
    v_lshrrev_b32 v1, 4, v0
    v_lshl_add_u32 v1, s31, 5, v1
    v_lshlrev_b32 v1, 7, v1
    v_min_u32 v1, fz_end-fz_pc, v1
    {xm(0x0001000100010001)}
    global_load_dword v254, v1, s[28:29]
    s_mov_b64 exec, -1
    s_and_b32 s{P}, s30, 1
    s_lshl_b32 s{P}, s{P}, 3
    s_lshr_b32 s32, s31, 2
    s_add_u32 s{P}, s{P}, s32
    s_lshr_b32 s{C}, s30, 1
    s_lshl_b32 s{C}, s{C}, 2
    s_and_b32 s32, s31, 3
    s_add_u32 s{C}, s{C}, s32
    s_lshl_b32 s63, s2, 3
    s_add_u32 s63, s63, s{W}
    s_mul_i32 s31, s63, 1152
    v_lshlrev_b32 v2, 4, v{VL}
    v_mov_b32 v3, {OOB}
    v_cmp_gt_u32 vcc, 36, v{VL}
    v_cndmask_b32 v2, v3, v2, vcc
    s_waitcnt lgkmcnt(0)
    """)
    k.srd(12, 6, XBYTES)
    k(f"""
    buffer_load_dwordx4 v[8:11], v2, s[12:15], s31 offen
    buffer_load_dwordx4 v[12:15], v2, s[12:15], s31 offen offset:576
    s_add_u32 s10, s4, {WS_FL}
    s_addc_u32 s11, s5, 0
    s_load_dword s{NON}, s[10:11], 0
    s_cmp_lt_u32 s{W}, 4
    s_cbranch_scc1 fz_c0
    s_cmp_lt_u32 s{W}, 6
    s_cbranch_scc1 fz_w0
    """)
    LX = p1_loader(k, o, "X"); next(LX)
    k("s_mov_b32 s3, 2\ns_branch fz_ln\nfz_w0:")
    LW = p1_loader(k, o, "W"); next(LW)
    k("s_mov_b32 s3, 1\ns_branch fz_ln\nfz_c0:")
    CC = p1_consumer(k, o); next(CC)
    k("s_mov_b32 s3, 0\nfz_ln:")
    ln1(k, o)
    k(f"s_cmp_eq_u32 s3, 0\ns_cbranch_scc1 fz_c1\ns_cmp_eq_u32 s3, 1\ns_cbranch_scc1 fz_l1W")
    next(LX, None)
    k("fz_l1W:")
    next(LW, None)
    k("fz_c1:")
    next(CC, None)

def ln1(k, o):
    X = 16; S = 112
    k.srd(FLS, 4, FL_BYTES, add=WS_FL)
    k(f"v_cmp_gt_u32 vcc, 36, v{VL}")
    for i in range(8): k(f"v_lshlrev_b32 v{X+2*i}, 16, v{8+i}\nv_and_b32 v{X+2*i+1}, 0xffff0000, v{8+i}")
    k(f"v_pk_add_f32 v[{S}:{S+1}], v[{X}:{X+1}], v[{X+2}:{X+3}]\nv_pk_add_f32 v[{S+2}:{S+3}], v[{X+4}:{X+5}], v[{X+6}:{X+7}]")
    for i in range(4, 8): k(f"v_pk_add_f32 v[{S+2*(i&1)}:{S+2*(i&1)+1}], v[{S+2*(i&1)}:{S+2*(i&1)+1}], v[{X+2*i}:{X+2*i+1}]")
    k(f"v_pk_add_f32 v[{S}:{S+1}], v[{S}:{S+1}], v[{S+2}:{S+3}]\nv_add_f32 v{S}, v{S}, v{S+1}")
    dpp_sum16(k, [S]); xsum_rows(k, S, S + 1)
    k(f"v_mul_f32 v{S}, {1.0/576!r}, v{S}\nv_cndmask_b32 v{S+6}, 0, v{S}, vcc")
    for i in range(8):
        t = 32 + 2 * i
        k(f"v_pk_add_f32 v[{t}:{t+1}], v[{X+2*i}:{X+2*i+1}], v[{S+6}:{S+7}] op_sel_hi:[1,0] neg_lo:[0,1] neg_hi:[0,1]")
    for i in range(8):
        t = 32 + 2 * i; q = S + 2 + 2 * (i & 1)
        if i < 2: k(f"v_pk_mul_f32 v[{q}:{q+1}], v[{t}:{t+1}], v[{t}:{t+1}]")
        else: k(f"v_pk_fma_f32 v[{q}:{q+1}], v[{t}:{t+1}], v[{t}:{t+1}], v[{q}:{q+1}]")
    k(f"v_pk_add_f32 v[{S+2}:{S+3}], v[{S+2}:{S+3}], v[{S+4}:{S+5}]\nv_add_f32 v{S+2}, v{S+2}, v{S+3}")
    dpp_sum16(k, [S + 2]); xsum_rows(k, S + 2, S + 3)
    k(f"v_mul_f32 v{S+2}, {1.0/576!r}, v{S+2}")
    k.srd(36, 4, XBYTES, add=WS_XN)
    k(f"s_waitcnt lgkmcnt(0)\ns_mul_i32 s{NON}, s{NON}, 0x9E3779B1\ns_add_u32 s{NON}, s{NON}, 0x7F4A7C15\ns_mul_i32 s31, s63, 1152")
    ln_finish(k, S, S + 2)
    k(f"v_mul_f32 v{S}, -v{S}, v{S+2}")
    for i in range(8): k(f"v_pk_fma_f32 v[{X+2*i}:{X+2*i+1}], v[{X+2*i}:{X+2*i+1}], v[{S+2}:{S+3}], v[{S}:{S+1}] op_sel_hi:[1,0,0]")
    for i in range(8): k(f"v_cvt_pk_bf16_f32 v{8+i}, v{X+2*i}, v{X+2*i+1}")
    k(f"""
    buffer_store_dwordx4 v[8:11], v2, s[36:39], s31 offen sc1
    buffer_store_dwordx4 v[12:15], v2, s[36:39], s31 offen offset:576 sc1
    v_mov_b32 v{S+1}, s{NON}
    v_mov_b32 v{S+3}, s{NON}
    s_lshl_b32 s63, s63, 4
    """)

def rowgran(k, srd, vz):
    k(f"v_mov_b32 v{vz}, 0\ns_mov_b64 exec, 1\nbuffer_store_dwordx4 v[112:115], v{vz}, s[{srd}:{srd+3}], s63 offen sc1\ns_mov_b64 exec, -1")

def get_nonce(k):
    k(f"s_add_u32 s10, s4, {WS_FL}\ns_addc_u32 s11, s5, 0\ns_load_dword s{NON}, s[10:11], 0")
    k.srd(FLS, 4, FL_BYTES, add=WS_FL)
def fin_nonce(k):
    k(f"s_waitcnt lgkmcnt(0)\ns_mul_i32 s{NON}, s{NON}, 0x9E3779B1\ns_add_u32 s{NON}, s{NON}, 0x7F4A7C15")

def p1_addr(k, VX0b, VX1b, VWb, tq_s):
    k(f"""
    v_and_b32 v3, 15, v{VL}
    v_lshrrev_b32 v4, 4, v{VL}
    v_lshrrev_b32 v5, 1, v3
    v_xor_b32 v5, v5, v4
    v_lshlrev_b32 v5, 4, v5
    v_lshl_add_u32 v5, v3, 7, v5
    s_lshl_b32 s32, s{tq_s}, 12
    v_add_u32 v{VX0b}, s32, v5
    v_xor_b32 v{VX1b}, 64, v{VX0b}
    v_bfe_u32 v5, v{VL}, 2, 2
    v_and_b32 v6, 1, v4
    v_lshl_add_u32 v5, v6, 2, v5
    v_lshrrev_b32 v6, 1, v4
    v_lshl_add_u32 v5, v6, 4, v5
    v_mul_u32_u24 v5, 288, v5
    v_and_b32 v6, 3, v{VL}
    v_lshl_add_u32 v5, v6, 3, v5
    v_add_u32 v{VWb}, {WOFF}, v5
    """)

def p1_loader(k, o, typ):
    VD = 200; n = 8 if typ == "X" else 9
    k(f"s_sub_u32 s57, s{W}, 4      ; lw\ns_setprio {o.get('prioL', 3)}")
    if typ == "X":
        k(f"""
        v_lshrrev_b32 v3, 3, v{VL}
        v_and_b32 v4, 7, v{VL}
        v_lshrrev_b32 v5, 4, v{VL}
        v_xor_b32 v4, v4, v5
        v_mul_u32_u24 v3, 1152, v3
        v_lshl_add_u32 v3, v4, 4, v3
        v_xor_b32 v4, 64, v3
        s_sub_u32 s31, s{W}, 6
        s_lshl_b32 s30, s{P}, 7
        s_lshl_b32 s32, s31, 6
        s_add_u32 s30, s30, s32
        s_mul_i32 s30, s30, 1152
        s_lshl_b32 s44, s31, 13
        """)
        k("s_mov_b32 s40, 0")
        for j in range(8):
            k(f"v_add_u32 v{VD+j}, s30, v{3 + (j & 1)}\ns_add_u32 s30, s30, {8*1152}\ns_add_u32 m0, s44, {j*1024}\nbuffer_load_dwordx4 v{VD+j}, s[12:15], s40 offen lds")
        kstep, k0 = 128, 0
    else:
        k(f"s_mul_i32 s32, s{C}, 288\ns_mov_b32 s33, 3641\ns_mul_i32 s31, s57, {9*64}\ns_mul_i32 s44, s57, {9*1024}\ns_add_u32 s44, s44, {WOFF}\nv_add_u32 v1, s31, v{VL}")
        k("s_mov_b32 s40, 4608")
        k.srd(12, 8, 576 * 9216)
        for j in range(9):
            k(f"""
            v_add_u32 v3, {64*j}, v1
            v_mul_lo_u32 v4, v3, s33
            v_lshrrev_b32 v4, 16, v4
            v_mul_u32_u24 v5, 18, v4
            v_sub_u32 v5, v3, v5
            v_and_b32 v6, 0x33, v4
            v_bfe_u32 v7, v4, 2, 1
            v_lshl_or_b32 v6, v7, 3, v6
            v_bfe_u32 v7, v4, 3, 1
            v_lshl_or_b32 v6, v7, 2, v6
            v_mul_u32_u24 v6, 9216, v6
            v_lshl_add_u32 v6, v5, 4, v6
            v_add_u32 v{VD+j}, s32, v6
            s_add_u32 m0, s44, {j*1024}
            buffer_load_dwordx4 v{VD+j}, s[12:15], s40 offen lds
            """)
        kstep = 64 * 9216
    k("s_mov_b32 s41, s44\ns_mov_b32 s43, 0")
    tch = 0
    TV = 209
    def issue(touch=True):
        L = []
        for j in range(8 if typ == 'X' else 9):
            L.append((f"s_add_u32 m0, s41, {j*1024}\n" if j else "s_mov_b32 m0, s41\n") + f"buffer_load_dwordx4 v{VD+j}, s[12:15], s40 offen {'sc1 ' if typ == 'X' else ''}lds")
        if tch and touch: L.append(f"s_cmp_lt_u32 s49, s51\ns_cselect_b32 s52, s49, {OOB}\nbuffer_load_dword v254, v{TV}, s[28:31], s52 offen\ns_add_u32 s49, s49, s50")
        L.append(f"s_add_u32 s40, s40, {kstep}\ns_add_u32 s41, s41, {SLOT}\ns_cmp_ge_u32 s41, {SLOT*NS}\ns_cselect_b32 s41, s44, s41")
        L.append(f"s_add_u32 s43, s43, 1\ns_cmp_eq_u32 s43, 9\ns_cselect_b32 s40, 0, s40")
        return L
    k("\n".join(issue(False)[n:]))
    k("\n".join(issue(False)))
    if o.get('p0'): k.stamp(5)
    pe = o.get('pe', 0)
    pb = o.get('pb', 2)
    for _ in range(pb - 2): k("\n".join(issue(False)))
    k(f"s_waitcnt vmcnt({pb*n})")
    yield
    for _ in range(pe): k("\n".join(issue(False)))
    if typ == "X": k(f"s_load_dwordx2 s[46:47], s[0:1], {ARG['w_sp']}\ns_load_dwordx2 s[54:55], s[0:1], {ARG['w_out']}")
    n0 = n; n = n + tch
    VX0, VX1, VW, VX0b, VX1b, VWb = 210, 211, 212, 213, 214, 215
    p1_addr(k, VX0b, VX1b, VWb, 57)
    CA = 44
    WF = 56
    ON = 108
    T = 116
    for i in range(4): k(f"v_mov_b32 v{ON+i}, 0x3f803f80")
    for i in range(12): k(f"v_mov_b32 v{CA+i}, 0")
    k(f"s_lshl_b32 s36, s57, 5\nv_add_u32 v{VWb}, s36, v{VWb}\nv_mov_b32 v{VW}, v{VWb}\ns_mov_b32 s34, 0\ns_mov_b32 s35, 0")
    k.srd(24, 4, 2048 * 16, add=WS_RS)
    k(f"s_lshl_b32 s36, s{P}, 7\ns_and_b32 s37, s57, 1\ns_lshl_b32 s37, s37, 6\ns_add_u32 s36, s36, s37\ns_lshl_b32 s36, s36, 4\nv_lshlrev_b32 v{T+8}, 4, v{VL}")
    k(f"""
    s_sub_u32 s56, 7, s{W}
    s_lshr_b32 s58, s56, 1
    s_xor_b32 s56, s56, s58
    s_lshl_b32 s58, s2, 1
    s_add_u32 s58, s58, s56
    s_add_u32 s59, s2, 512
    s_cmp_eq_u32 s56, 2
    s_cselect_b32 s58, s59, s58
    s_cmp_eq_u32 s56, 3
    s_cselect_b32 s58, 1000, s58
    s_lshl_b32 s59, s56, 13
    s_add_u32 s59, s59, {KTAB}
    """)
    adv = f"s_add_u32 s34, s34, {SLOT}\ns_cmp_ge_u32 s34, {SLOT*NS}\ns_cselect_b32 s34, 0, s34\nv_add_u32 v{VW}, s34, v{VWb}"
    nt = 3 if typ == "W" else 2
    smem = [0]
    def stage(z2, do_issue, wait, fill=None, twice=False):
        k(f"s_waitcnt vmcnt({wait}){' lgkmcnt(0)' if z2 else ''}\ns_barrier")
        if not z2 and o.get('spat') == 20:
            for _ in range(o.get('nsm', 11)):
                if smem[0] < 64: k(f"s_load_dword s45, s[38:39], {smem[0]*128}"); smem[0] += 1
        rd_ = []; mf = []
        if z2:
            for hf in range(2):
                for t in range(nt):
                    f = WF + (hf * 3 + t) * 4
                    for rd in range(2): rd_.append(f"ds_read_b64_tr_b16 v[{f+2*rd}:{f+2*rd+1}], v{VW} offset:{hf*32*288 + rd*8*288 + t*128}")
                    mf.append(f"v_mfma_f32_16x16x32_bf16 v[{CA+4*t}:{CA+4*t+3}], v[{ON}:{ON+3}], v[{f}:{f+3}], v[{CA+4*t}:{CA+4*t+3}]")
        dm = issue() if do_issue else []
        if twice: dm = dm + issue()
        if z2:
            k("\n".join(rd_ + dm[:2]))
            k("s_waitcnt lgkmcnt(0)")
            k("\n".join(front(dm[2:], mf)))
            k(adv)
        else: k("\n".join(dm))
        if fill: k("\n".join(fill))
        k("s_add_u32 s35, s35, 1")
    def gran_check(vd, va, so, full):
        L = k.label("rp"); D = k.label("rd")
        k(f"""
        s_mov_b32 s62, 0
        {"" if full else xm(0xffffffff)}
        {L}:
        v_cmp_ne_u32 vcc, s{NON}, v{vd+1}
        v_cmp_ne_u32 s[60:61], s{NON}, v{vd+3}
        s_or_b64 vcc, vcc, s[60:61]
        s_cbranch_vccz {D}
        s_add_u32 s62, s62, 1
        s_cmp_ge_u32 s62, {SPIN}
        s_cbranch_scc1 {D}
        buffer_load_dwordx4 v[{vd}:{vd+3}], v{va}, s[24:27], s{so} offen sc1
        s_waitcnt vmcnt(0)
        s_branch {L}
        {D}:
        """)
    if o.get('p0'):
        k.stamp(7); k(f"s_waitcnt vmcnt({n0 + 2})"); k.stamp(8)
    tot_ = pb + pe
    stage(True, tot_ < 4, (tot_ - 1) * n0 + 2, twice=(tot_ == 2))
    k(f"fz_l1{typ}a:")
    stage(True, True, 2 * n0)
    L = k.label("gr"); k(f"s_cmp_eq_u32 s35, 2\ns_cbranch_scc0 {L}"); rowgran(k, 24, T); k(f"{L}:")
    tp = o.get('tp', 6)
    if typ == "X" and tp > 5:
        L = k.label("rg")
        k(f"s_cmp_eq_u32 s35, 5\ns_cbranch_scc0 {L}\nbuffer_load_dwordx4 v[{T+4}:{T+7}], v{T+8}, s[24:27], s36 offen sc1\n{L}:")
    k(f"s_cmp_lt_u32 s35, 6\ns_cbranch_scc1 fz_l1{typ}a")
    def z1touch():
        k.srd(28, 8, 576 * 9216)
        k(f"""
        s_mul_i32 s33, s2, {3*9216}
        s_cmp_lt_u32 s2, 192
        s_cselect_b32 s33, s33, {OOB}
        s_sub_u32 s37, s{W}, 6
        s_mul_i32 s37, s37, 54
        v_add_u32 v{T+2}, s37, v{VL}
        v_mul_u32_u24 v{T+3}, 57, v{T+2}
        v_lshrrev_b32 v{T+3}, 11, v{T+3}
        v_mul_u32_u24 v{T+3}, {9216 - 36*128}, v{T+3}
        v_lshl_add_u32 v{T+2}, v{T+2}, 7, v{T+3}
        {xm((1 << 54) - 1)}
        buffer_load_dword v254, v{T+2}, s[28:31], s33 offen
        s_mov_b64 exec, -1
        """)
    def sptouch():
        k.srd(28, 46, 2048 * 4096)
        k(f"s_lshl_b32 s33, s2, 15\ns_sub_u32 s37, s{W}, 6\ns_lshl_b32 s37, s37, 10\ns_add_u32 s33, s33, s37\nv_lshrrev_b32 v{T+2}, 3, v{VL}\nv_lshlrev_b32 v{T+2}, 12, v{T+2}\nv_and_b32 v{T+3}, 7, v{VL}\nv_lshl_add_u32 v{T+2}, v{T+3}, 7, v{T+2}")
        for i in range(2): k(f"buffer_load_dword v254, v{T+2}, s[28:31], s33 offen offset:{i*2048}")
    def xswitch(w):
        k(f"s_waitcnt vmcnt({w})")
        gran_check(T + 4, T + 8, 36, True)
        k.srd(12, 4, XBYTES, add=WS_XN)
        k(f"""
        v_lshlrev_b32 v{T}, 2, v{VL}
        s_sub_u32 s33, s{W}, 6
        s_lshl_b32 s33, s33, 8
        s_add_u32 s33, s33, {ROWA}
        v_add_u32 v{T}, s33, v{T}
        ds_write_b32 v{T}, v{T+4}
        ds_write_b32 v{T}, v{T+6} offset:512
        """)
    X_ = typ == "X"
    if tp == 5:
        if X_: k(f"buffer_load_dwordx4 v[{T+4}:{T+7}], v{T+8}, s[24:27], s36 offen sc1"); z1touch(); sptouch()
        stage(True, False, 2 * n + 4 * X_); stage(True, False, n + 4 * X_)
        if X_: xswitch(3)
        stage(True, False, 3 * X_); left = 4
    else:
        if X_: z1touch(); xswitch(n + 1)
        stage(True, True, 2 * n + X_)
        if tp == 6:
            if X_: sptouch()
            stage(True, False, 2 * n + 3 * X_); stage(True, False, n + 3 * X_); left = 3
        else:
            stage(True, True, 2 * n + X_)
            if X_: sptouch()
            stage(True, False, 2 * n + 3 * X_); left = 2
    k(f"s_lshl_b32 s33, s57, 6\ns_add_u32 s33, s33, {COLP}\nv_lshlrev_b32 v{T}, 2, v{VL}\nv_add_u32 v{T}, s33, v{T}\n{xm(0xffff)}")
    for t in range(nt): k(f"ds_write_b32 v{T}, v{CA+4*t} offset:{t*256}")
    k("s_mov_b64 exec, -1\ns_waitcnt lgkmcnt(0)\ns_barrier")
    k.stamp(3)
    for _ in range(left): k("\n".join(issue()))
    tx = 2 * X_ if tp > 5 else 0
    ex = 0
    if typ == "X":
        pass
    else:
        k.srd(24, 4, XBYTES, add=WS_XN)
        k(f"""
        s_lshl_b32 s36, s{P}, 1
        s_lshr_b32 s33, s{C}, 3
        s_add_u32 s36, s36, s33          ; tp
        s_and_b32 s37, s{C}, 7           ; e
        s_lshl_b32 s33, s36, 1
        s_add_u32 s33, s33, s57
        s_mul_i32 s33, s33, {32*1152}
        s_mul_i32 s38, s37, 144
        s_add_u32 s33, s33, s38
        s_mov_b32 s38, {(1 << 16) // 9 + 1}
        s_mul_i32 s39, s57, 5120
        s_add_u32 s39, s39, {XTS}
        """)
        for i in range(5):
            k(f"""
            v_add_u32 v3, {64*i}, v{VL}
            v_mul_lo_u32 v4, v3, s38
            v_lshrrev_b32 v4, 16, v4
            v_mul_u32_u24 v5, 9, v4
            v_sub_u32 v5, v3, v5
            v_mul_u32_u24 v4, 1152, v4
            v_lshl_add_u32 v4, v5, 4, v4
            s_add_u32 m0, s39, {i*1024}
            buffer_load_dwordx4 v4, s[24:27], s33 offen sc1 lds
            """)
        k.srd(24, 4, XBYTES, add=WS_XT)
        k(f"""
        v_bfe_u32 v3, v{VL}, 2, 2
        v_lshrrev_b32 v4, 4, v{VL}
        v_lshl_add_u32 v3, v4, 3, v3     ; row = 8g + r
        v_mul_u32_u24 v3, 144, v3
        v_and_b32 v5, 3, v{VL}
        v_lshl_add_u32 v3, v5, 3, v3
        v_add_u32 v3, s39, v3
        v_and_b32 v5, 15, v{VL}
        v_lshlrev_b32 v5, 12, v5
        v_lshl_add_u32 v5, v4, 4, v5     ; d*4096 + g*16
        s_mul_i32 s39, s37, {72*4096}
        s_lshl_b32 s38, s36, 7
        s_add_u32 s39, s39, s38
        s_lshl_b32 s38, s57, 6
        s_add_u32 s39, s39, s38
        s_lshl_b32 s37, s37, 5
        s_add_u32 s36, s36, s37
        s_lshl_b32 s36, s36, 1
        s_add_u32 s36, s36, s57
        s_lshl_b32 s36, s36, 2
        s_add_u32 s36, s36, {FL_T}
        """)
        ex = 5
        xt2 = [f"s_waitcnt vmcnt({n})"]
        for dt in range(5):
            for rd in range(2): xt2.append(f"ds_read_b64_tr_b16 v[{56+4*dt+2*rd}:{57+4*dt+2*rd}], v3 offset:{4*rd*144 + dt*32}")
        xt2.append("s_waitcnt lgkmcnt(0)")
        for dt in range(5):
            if dt == 4: xt2.append(xm(0x00ff00ff00ff00ff))
            xt2.append(f"buffer_store_dwordx4 v[{56+4*dt}:{59+4*dt}], v5, s[24:27], s39 offen sc1\ns_add_u32 s39, s39, 65536")
        xt2.append("s_mov_b64 exec, -1")
    if o.get('spat') == 20:
        k(f"s_load_dwordx2 s[38:39], s[0:1], {ARG['w_sp']}\ns_lshl_b32 s33, s2, 2\ns_add_u32 s33, s33, s57\ns_lshl_b32 s33, s33, 13\ns_waitcnt lgkmcnt(0)\ns_add_u32 s38, s38, s33\ns_addc_u32 s39, s39, 0")
        for _ in range(o.get('nsm0', 12)): k(f"s_load_dword s45, s[38:39], {smem[0]*128}"); smem[0] += 1
    ka = split(kgen_addr(k, o), 4)
    pub = [f"""s_add_u32 s28, s4, {WS_ST}
    s_addc_u32 s29, s5, 0
    s_mov_b32 s30, {16*16*2048}
    s_mov_b32 s31, 0x20000
    v_and_b32 v{T}, 31, v{VL}
    v_lshlrev_b32 v{T+1}, 2, v{T}
    s_lshl_b32 s33, s57, 8
    s_add_u32 s33, s33, {WPRIV}
    v_add_u32 v{T+1}, s33, v{T+1}
    ds_read_b32 v{T+4}, v{T+1}
    ds_read_b32 v{T+6}, v{T+1} offset:128
    v_mov_b32 v{T+5}, s{NON}
    v_mov_b32 v{T+7}, s{NON}
    s_lshl_b32 s33, s{P}, 4
    s_add_u32 s33, s33, s{C}
    s_lshl_b32 s33, s33, 11
    s_lshl_b32 s53, s57, 9
    s_add_u32 s33, s33, s53
    v_lshlrev_b32 v{T}, 4, v{T}
    s_waitcnt lgkmcnt(0)
    {xm(0xffffffff)}
    buffer_store_dwordx4 v[{T+4}:{T+7}], v{T}, s[28:31], s33 offen sc1
    s_mov_b64 exec, -1"""]
    stage(False, False, 3 * n + tx + ex, pub + ka[0])
    if typ == "X":
        for i in range(3): stage(False, True, 2 * n + ex + (tx + 1 if (i == 0 and tp == 7) else 0), ka[1 + i])
    else:
        stage(False, True, 2 * n + ex, xt2 + ka[1])
        for i in range(2): stage(False, True, 2 * n, ka[2 + i])
    stage(False, True, 2 * n + tch)
    if typ == "W":
        L = k.label("xf")
        k(f"v_mov_b32 v{T}, 0\nv_mov_b32 v{T+1}, s{NON}\ns_mov_b64 exec, 1\nbuffer_store_dword v{T+1}, v{T}, s[{FLS}:{FLS+3}], s36 offen sc1\ns_mov_b64 exec, -1\n{L}:")
    stage(False, True, 2 * n + tch)
    e2 = 0
    if typ == "X":
        k.srd(28, 54, WOBYTES)
        k(f"s_mul_i32 s33, s2, {81*128}\ns_sub_u32 s37, s{W}, 6\ns_mul_i32 s37, s37, {41*128}\ns_add_u32 s33, s33, s37\nv_lshlrev_b32 v{T+2}, 7, v{VL}\n{xm((1 << 41) - 1)}\nbuffer_load_dword v254, v{T+2}, s[28:31], s33 offen\ns_mov_b64 exec, -1")
        e2 = 1
    kgen_setup(k, o)
    stage(False, False, 2 * n + tch + 14 + e2)
    Q = 56
    k.srd(24, 4, 16 * 16 * 2048, add=WS_ST)
    k(f"""
    v_and_b32 v{T}, 31, v{VL}
    v_lshlrev_b32 v{T+1}, 2, v{T}
    v_lshlrev_b32 v{T}, 4, v{T}
    v_lshrrev_b32 v{T+2}, 5, v{VL}
    v_lshl_add_u32 v{T}, v{T+2}, 14, v{T}
    s_lshl_b32 s52, s{P}, 15
    s_lshl_b32 s53, s57, 9
    s_add_u32 s52, s52, s53
    s_lshl_b32 s33, s57, 7
    s_add_u32 s33, s33, {ROWA}
    v_add_u32 v{T+1}, s33, v{T+1}
    s_mov_b32 s62, 0
    """)
    def sweep():
        for c2 in range(8): k(f"s_add_u32 s53, s52, {c2*2048}\nbuffer_load_dwordx4 v[{Q+4*c2}:{Q+3+4*c2}], v{T}, s[24:27], s53 offen sc1")
    sweep()
    stage(False, False, n + tch + 14 + 8 + e2)
    if typ == "W":
        b_setup(k)
    stage(False, False, 0)
    L = k.label("sp"); D = k.label("spd")
    k(f"{L}:\nv_xor_b32 v{T+5}, s{NON}, v{Q+1}")
    for c2 in range(8):
        for hh in range(2):
            if c2 == 0 and hh == 0: continue
            k(f"v_xor_b32 v{T+6+(c2+hh)%2}, s{NON}, v{Q+1+4*c2+2*hh}\nv_or_b32 v{T+5}, v{T+5}, v{T+6+(c2+hh)%2}")
    k(f"v_cmp_ne_u32 vcc, 0, v{T+5}\ns_cbranch_vccz {D}\ns_add_u32 s62, s62, 1\ns_cmp_ge_u32 s62, {SPIN}\ns_cbranch_scc1 {D}")
    sweep()
    k(f"s_waitcnt vmcnt(0)\ns_branch {L}\n{D}:")
    for c2 in range(1, 8): k(f"v_add_f32 v{Q}, v{Q}, v{Q+4*c2}\nv_add_f32 v{Q+2}, v{Q+2}, v{Q+2+4*c2}")
    m, v = Q, Q + 2
    k(f"""
    v_mov_b32 v{Q+1}, v{m}
    v_mov_b32 v{Q+3}, v{v}
    v_permlane32_swap_b32 v{m}, v{Q+1}
    v_permlane32_swap_b32 v{v}, v{Q+3}
    v_add_f32 v{m}, v{m}, v{Q+1}
    v_add_f32 v{v}, v{v}, v{Q+3}
    v_mul_f32 v{m}, {1.0/2304!r}, v{m}
    v_mul_f32 v{v}, {1.0/2304!r}, v{v}
    v_fma_f32 v{v}, -v{m}, v{m}, v{v}
    v_max_f32 v{v}, 0, v{v}
    """)
    ln_finish(k, m, v)
    k(f"v_mul_f32 v{m}, -v{m}, v{v}\nds_write_b32 v{T+1}, v{m}\nds_write_b32 v{T+1}, v{v} offset:512")
    if typ == "W":
        L = k.label("b0"); k(f"s_cmp_lg_u32 s{W}, 5\ns_cbranch_scc1 {L}")
        for j in range(16): k(f"s_mov_b32 m0, {18432 + j*1024}\nbuffer_load_dwordx4 v{220+j}, s[12:15], s40 offen lds")
        advk(k, 128)
        k(f"s_waitcnt lgkmcnt(0)\ns_barrier\ns_branch fz_ld5\n{L}:")
    k("s_waitcnt lgkmcnt(0)\ns_barrier")
    k.stamp(6)
    k("s_branch fz_loader")

def p1_consumer(k, o):
    A2, A1 = 0, 72
    FX, FY = 144, 188
    VX0, VX1, VW, VX0b, VX1b, VWb = 232, 233, 234, 235, 236, 237
    NMR, RR = 238, 240
    VC1, VONE = 242, 244
    V16 = 246; VPG, VPR = 247, 248
    k(f"s_lshl_b32 s30, s2, 2\ns_add_u32 s30, s30, s{W}")
    p1_addr(k, VX0b, VX1b, VWb, W)
    k(f"""
    v_mov_b32 v{VX0}, v{VX0b}
    v_mov_b32 v{VX1}, v{VX1b}
    v_mov_b32 v{VW}, v{VWb}
    s_mov_b32 s34, 0
    s_mov_b32 s56, {fbits(C2)}
    s_mov_b32 s57, {fbits(C2)}
    v_mov_b32 v{VC1}, {fbits(C1)}
    v_mov_b32 v{VC1+1}, {fbits(C1)}
    v_mov_b32 v{VONE}, 1.0
    v_mov_b32 v{VONE+1}, 1.0
    v_lshlrev_b32 v{V16}, 4, v{VL}
    s_lshl_b32 s33, s{W}, 8
    s_add_u32 s33, s33, {WPRIV}
    v_lshrrev_b32 v3, 4, v{VL}
    v_lshlrev_b32 v3, 4, v3
    v_add_u32 v{VPG}, s33, v3
    v_and_b32 v3, 31, v{VL}
    v_lshlrev_b32 v3, 2, v3
    v_add_u32 v{VPR}, s33, v3
    s_setprio {o.get('prio1', 2)}
    """)
    if o.get('touch', 1):
        k(f"""
        v_mul_u32_u24 v3, 43, v{VL}
        v_lshrrev_b32 v3, 8, v3
        v_mul_u32_u24 v4, 6, v3
        v_sub_u32 v4, v{VL}, v4
        s_lshl_b32 s31, s30, 1
        v_add_u32 v3, s31, v3
        v_mul_u32_u24 v3, 1152, v3
        v_lshl_add_u32 v3, v4, 7, v3
        s_mul_i32 s31, s30, 14
        v_add_u32 v7, s31, v{VL}
        v_min_u32 v7, 13823, v7
        s_mov_b32 s32, 29128
        v_mul_lo_u32 v4, v7, s32
        v_lshrrev_b32 v4, 20, v4
        v_mul_u32_u24 v5, 36, v4
        v_sub_u32 v5, v7, v5
        v_mul_u32_u24 v4, 9216, v4
        v_lshl_add_u32 v4, v5, 7, v4
        v_add_u32 v4, {192*9216 + 4608}, v4
        {xm(0xfff)}
        global_load_dword v254, v3, s[6:7] offset:384
        {xm((1 << 14) - 1)}
        global_load_dword v254, v4, s[8:9]
        s_mov_b64 exec, -1
        """)

    if o.get('dry', 1):
        k(f"""
        s_mov_b32 s49, 1
        s_mov_b64 exec, 0
        s_cmp_eq_u32 s{W}, 0
        s_cbranch_scc1 fz_dry0
        s_cmp_eq_u32 s{W}, 1
        s_cbranch_scc1 fz_dry1
        s_cmp_eq_u32 s{W}, 2
        s_cbranch_scc1 fz_dry2
        s_branch fz_dry3
        fz_dryr:
        s_mov_b64 exec, -1
        s_mov_b32 s49, 0
        """)
    if o.get('p0'): k.stamp(7)
    k(f"s_waitcnt vmcnt({2 if o.get('touch', 1) else 0})")
    if o.get('p0'): k.stamp(8)
    yield
    k.srd(36, 4, 2048 * 16, add=WS_RS)
    k("s_waitcnt lgkmcnt(0)")
    def reads(F, half):
        vx = VX0 if half == 0 else VX1
        r = [f"ds_read_b128 v[{F+4*tb}:{F+4*tb+3}], v{vx} offset:{tb*2048}" for tb in range(2)]
        if o.get('nord1') == 1: return r
        if o.get('nord1') == 2: return [f"ds_read_b128 v[{F+8+4*i}:{F+8+4*i+3}], v{V16} offset:{i*1024}" for i in range(9)] + r
        for i in range(9):
            for rd in range(2):
                b = F + 8 + 4 * i + 2 * rd
                r.append(f"ds_read_b64_tr_b16 v[{b}:{b+1}], v{VW} offset:{half*32*288 + rd*8*288 + i*32}")
        return r
    def mfmas(F, z2, first=False):
        out = []; ACC = A2 if z2 else A1
        for i in range(9):
            for tb in range(2):
                a = ACC + (i * 2 + tb) * 4
                wf = f"v[{F+8+4*i}:{F+8+4*i+3}]"; xf = f"v[{F+4*tb}:{F+4*tb+3}]"
                A, B = (xf, wf) if z2 else (wf, xf)
                out.append(f"v_mfma_f32_16x16x32_bf16 v[{a}:{a+3}], {A}, {B}, {'0' if first else 'v[%d:%d]' % (a, a+3)}")
        return out
    adv = [f"s_add_u32 s34, s34, {SLOT}\ns_cmp_ge_u32 s34, {SLOT*NS}\ns_cselect_b32 s34, 0, s34",
           f"v_add_u32 v{VX0}, s34, v{VX0b}\nv_add_u32 v{VX1}, s34, v{VX1b}\nv_add_u32 v{VW}, s34, v{VWb}"]
    def gemm(z2):
        name = f"fz_g1{'a' if z2 else 'b'}"
        if o.get('p0') and z2: k.stamp(9)
        k("s_barrier")
        k.stamp(2 if z2 else 5)
        k("\n".join(reads(FX, 0)))
        k("s_waitcnt lgkmcnt(0)")
        k("\n".join(front2(mfmas(FX, z2, True), reads(FY, 1) + adv, o.get('per', 2))))
        k(f"s_mov_b32 s35, 1\ns_waitcnt lgkmcnt(0)\n{name}:\ns_barrier")
        k("\n".join(front2(mfmas(FY, z2), reads(FX, 0), o.get('per', 2))))
        k("s_waitcnt lgkmcnt(0)")
        k("\n".join(front2(mfmas(FX, z2), reads(FY, 1) + adv + ["s_add_u32 s35, s35, 1"], o.get('per', 2))))
        if z2:
            k("s_cmp_eq_u32 s35, 2\ns_cbranch_scc0 fz_nrg\ns_waitcnt vmcnt(0)"); rowgran(k, 36, 249); k("fz_nrg:")
            if o.get('spat', 9) < 9:
                k(f"s_cmp_eq_u32 s35, {o['spat']}\ns_cbranch_scc0 fz_nsp\nglobal_load_dword v254, v250, s[24:25]\nfz_nsp:")
        k(f"s_cmp_lt_u32 s35, 9\ns_waitcnt lgkmcnt(0)\ns_cbranch_scc1 {name}")
        k("\n".join(mfmas(FY, z2)))
    gemm(True)
    k.stamp(3)
    SU, SQ = FX, FX + 8
    CP = FX + 16
    T = 196
    PS, PQ = 212, 220
    k(f"""
    v_and_b32 v{T}, 15, v{VL}
    v_lshlrev_b32 v{T}, 2, v{T}
    v_add_u32 v{T+1}, {COLP}, v{T}
    s_lshl_b32 s33, s{W}, 7
    s_add_u32 s33, s33, {ROWA}
    v_add_u32 v{T}, s33, v{T}
    v_lshrrev_b32 v{T+2}, 4, v{VL}
    v_lshlrev_b32 v{T+2}, 4, v{T+2}
    v_add_u32 v{T+2}, s33, v{T+2}
    s_barrier
    ds_read_b128 v[{SU}:{SU+3}], v{T+2}
    ds_read_b128 v[{SU+4}:{SU+7}], v{T+2} offset:64
    ds_read_b128 v[{SQ}:{SQ+3}], v{T+2} offset:512
    ds_read_b128 v[{SQ+4}:{SQ+7}], v{T+2} offset:576
    """)
    for i in range(9): k(f"ds_read_b32 v{CP+4*i}, v{T+1} offset:{i*64}")
    k("s_waitcnt lgkmcnt(0)")
    for i in range(9):
        if o.get('dry', 1) and i in (0, 2, 5, 7):
            if i: k("s_cmp_eq_u32 s49, 1\ns_cbranch_scc1 fz_dryr")
            k(f"fz_dry{(0, 2, 5, 7).index(i)}:")
        pairs = [A2 + (i * 2) * 4, A2 + (i * 2) * 4 + 2, A2 + (i * 2 + 1) * 4, A2 + (i * 2 + 1) * 4 + 2]
        cs = CP + 4 * i
        for n, a in enumerate(pairs): k(f"v_pk_mul_f32 v[{T+2*n}:{T+2*n+1}], v[{SU+2*n}:{SU+2*n+1}], v[{cs}:{cs+1}] op_sel_hi:[1,0]")
        for n, a in enumerate(pairs): k(f"v_pk_fma_f32 v[{a}:{a+1}], v[{a}:{a+1}], v[{SQ+2*n}:{SQ+2*n+1}], v[{T+2*n}:{T+2*n+1}]")
        gelu_group(k, pairs, T, 56, VC1, VONE)
        for n, a in enumerate(pairs):
            if i == 0: k(f"v_pk_mul_f32 v[{PQ+2*n}:{PQ+2*n+1}], v[{a}:{a+1}], v[{a}:{a+1}]\nv_mov_b32 v{PS+2*n}, v{a}\nv_mov_b32 v{PS+2*n+1}, v{a+1}")
            else: k(f"v_pk_fma_f32 v[{PQ+2*n}:{PQ+2*n+1}], v[{a}:{a+1}], v[{a}:{a+1}], v[{PQ+2*n}:{PQ+2*n+1}]\nv_pk_add_f32 v[{PS+2*n}:{PS+2*n+1}], v[{PS+2*n}:{PS+2*n+1}], v[{a}:{a+1}]")
    dpp_sum16(k, list(range(PS, PS + 16)))
    if o.get('dry', 1): k("s_cmp_eq_u32 s49, 1\ns_cbranch_scc1 fz_dryr")
    k(f"""
    {xm(0x0001000100010001)}
    ds_write_b128 v{VPG}, v[{PS}:{PS+3}]
    ds_write_b128 v{VPG}, v[{PS+4}:{PS+7}] offset:64
    ds_write_b128 v{VPG}, v[{PQ}:{PQ+3}] offset:128
    ds_write_b128 v{VPG}, v[{PQ+4}:{PQ+7}] offset:192
    s_mov_b64 exec, -1
    s_waitcnt lgkmcnt(0)
    """)
    k.stamp(4)
    gemm(False)
    k.stamp(6)
    T = 196
    SU, SQ = 148, 156
    k(f"""
    v_lshrrev_b32 v249, 4, v{VL}
    v_lshlrev_b32 v249, 4, v249
    s_lshl_b32 s33, s{W}, 7
    s_add_u32 s33, s33, {ROWA}
    v_add_u32 v249, s33, v249
    """)
    k.srd(36, 4, FRAG9, add=WS_Z2)
    k(f"""
    s_mul_i32 s32, s{C}, {9*64}
    s_lshl_b32 s33, s{P}, 2
    s_add_u32 s33, s33, s{W}         ; kb
    s_add_u32 s32, s32, s33
    s_lshl_b32 s32, s32, 10
    s_lshl_b32 s34, s{C}, 6
    s_add_u32 s34, s34, s33
    s_lshl_b32 s34, s34, 2
    s_add_u32 s34, s34, {FL_2}
    s_lshr_b32 s33, s{W}, 1
    s_mul_i32 s33, s33, {SLOT}
    s_and_b32 s53, s{W}, 1
    s_lshl_b32 s53, s53, 10
    s_add_u32 s33, s33, s53
    v_add_u32 v250, s33, v{V16}
    s_barrier
    ds_read_b128 v[{SU}:{SU+3}], v249
    ds_read_b128 v[{SU+4}:{SU+7}], v249 offset:64
    ds_read_b128 v[{SQ}:{SQ+3}], v249 offset:512
    ds_read_b128 v[{SQ+4}:{SQ+7}], v249 offset:576
    s_waitcnt lgkmcnt(0)
    """)
    k.stamp(7)
    for i in range(9):
        oo = 164 + (i % 4) * 4
        for sb in range(2):
            a = A2 + (i * 2 + sb) * 4
            for hh in range(2):
                k(f"v_pk_fma_f32 v[{a+2*hh}:{a+2*hh+1}], v[{a+2*hh}:{a+2*hh+1}], v[{SQ+4*sb+2*hh}:{SQ+4*sb+2*hh+1}], v[{SU+4*sb+2*hh}:{SU+4*sb+2*hh+1}]")
            for hh in range(2): k(f"v_cvt_pk_bf16_f32 v{oo+2*sb+hh}, v{a+2*hh}, v{a+2*hh+1}")
        k(f"v_permlane16_swap_b32 v{oo}, v{oo+2}\nv_permlane16_swap_b32 v{oo+1}, v{oo+3}")
        k(f"buffer_store_dwordx4 v[{oo}:{oo+3}], v{V16}, s[36:39], s32 offen sc1\ns_add_u32 s32, s32, 65536")
        k(f"ds_write_b128 v250, v[{oo}:{oo+3}] offset:{i*2048}")
    k.stamp(8)
    k("s_mov_b32 s48, s34\ns_branch fz_cons")

def side_issue(k, o, sb, st):
    k(f"""
    s_mul_i32 s36, s{sb}, 52429
    s_lshr_b32 s36, s36, 18
    s_mul_i32 s37, s36, 5
    s_sub_u32 s37, s{sb}, s37        ; q
    s_lshr_b32 s33, s36, 4
    s_and_b32 s35, s36, 15
    s_mul_i32 s35, s35, 144
    s_lshl_b32 s37, s37, 5
    s_add_u32 s35, s35, s37
    s_mul_i32 s35, s35, 1152
    s_mul_i32 s33, s33, 144
    s_add_u32 s35, s35, s33
    s_cmp_lt_u32 s{sb}, 640
    s_cselect_b32 s35, s35, {OOB}
    s_mov_b32 s33, {(1 << 16) // 9 + 1}
    """)
    for i in range(5):
        k(f"""
        v_add_u32 v44, {64*i}, v{VL}
        v_mul_lo_u32 v45, v44, s33
        v_lshrrev_b32 v45, 16, v45
        v_mul_u32_u24 v46, 9, v45
        v_sub_u32 v46, v44, v46
        v_mul_u32_u24 v45, 1152, v45
        v_lshl_add_u32 v45, v46, 4, v45
        s_add_u32 m0, s{st}, {i*1024}
        buffer_load_dwordx4 v45, s[24:27], s35 offen lds
        """)

def side_run(k, o, sb, st, fl):
    E = k.label("sr"); L2 = k.label("sr"); L3 = k.label("sr")
    k(f"""
    s_cmp_ge_u32 s{sb}, 640
    s_cbranch_scc1 {E}
    v_bfe_u32 v47, v{VL}, 2, 2
    v_and_b32 v48, 3, v{VL}
    v_lshrrev_b32 v51, 4, v{VL}
    v_lshl_add_u32 v47, v51, 2, v47
    v_mul_u32_u24 v47, 144, v47
    v_lshl_add_u32 v47, v48, 3, v47
    v_add_u32 v47, s{st}, v47
    """)
    for dt in range(5):
        k(f"ds_read_b64_tr_b16 v[{54+4*dt}:{55+4*dt}], v47 offset:{dt*32}")
        k(f"ds_read_b64_tr_b16 v[{56+4*dt}:{57+4*dt}], v47 offset:{dt*32 + 16*144}")
    k(f"""
    v_lshlrev_b32 v52, 4, v{VL}
    v_lshlrev_b32 v53, 3, v{VL}
    v_and_b32 v78, 7, v{VL}
    v_lshl_add_u32 v78, v51, 3, v78
    v_lshlrev_b32 v79, 4, v78
    v_lshlrev_b32 v78, 3, v78
    s_mul_i32 s36, s{sb}, 52429
    s_lshr_b32 s36, s36, 18
    s_mul_i32 s37, s36, 5
    s_sub_u32 s37, s{sb}, s37
    s_mul_i32 s33, s36, 20736
    s_mul_i32 s35, s37, 4608
    s_add_u32 s33, s33, s35
    s_add_u32 s35, s33, 4096
    s_lshl_b32 s{fl}, s36, 3
    s_add_u32 s{fl}, s{fl}, s37
    s_lshl_b32 s{fl}, s{fl}, 2
    s_add_u32 s{fl}, s{fl}, {FL_W}
    s_cmp_eq_u32 s37, 4
    s_waitcnt lgkmcnt(0)
    s_cbranch_scc1 {L2}
    """)
    for dt in range(4): k(f"buffer_store_dwordx4 v[{54+4*dt}:{57+4*dt}], v52, s[28:31], s33 offen offset:{dt*1024} sc1")
    k(xm(0x00ff00ff00ff00ff))
    k(f"buffer_store_dwordx4 v[70:73], v79, s[28:31], s35 offen sc1\ns_branch {L3}\n{L2}:")
    for dt in range(4): k(f"buffer_store_dwordx2 v[{54+4*dt}:{55+4*dt}], v53, s[28:31], s33 offen offset:{dt*512} sc1")
    k(xm(0x00ff00ff00ff00ff))
    k(f"buffer_store_dwordx2 v[70:71], v78, s[28:31], s33 offen offset:2048 sc1\n{L3}:\ns_mov_b64 exec, -1\n{E}:")

def b_setup(k):
    k(f"""
    s_load_dwordx2 s[6:7], s[0:1], {ARG['w_sp']}
    v_lshrrev_b32 v3, 3, v{VL}
    v_and_b32 v4, 7, v{VL}
    v_lshrrev_b32 v5, 4, v{VL}
    v_xor_b32 v4, v4, v5
    v_and_b32 v5, 1, v4
    v_lshlrev_b32 v5, 1, v5
    v_bfe_u32 v6, v4, 1, 1
    v_and_b32 v4, 4, v4
    v_or_b32 v4, v4, v5
    v_or_b32 v4, v4, v6
    v_lshlrev_b32 v4, 4, v4
    v_lshl_add_u32 v4, v3, 12, v4
    s_lshl_b32 s33, s{P}, 19
    v_add_u32 v4, s33, v4
    v_xor_b32 v5, 64, v4
    s_lshl_b32 s45, s{P}, 8
    s_mov_b32 s40, s45
    s_mov_b32 s44, 18432
    s_mov_b32 s41, 18432
    s_mov_b32 s43, 0
    s_mov_b32 s42, -1
    """)
    for j in range(16): k(f"v_add_u32 v{220+j}, {j*32768}, v{4 + (j & 1)}")
    k("s_waitcnt lgkmcnt(0)")
    k.srd(12, 6, 2048 * 4096)

def advk(k, kstep):
    k(f"""
    s_add_u32 s40, s40, {kstep}
    s_add_u32 s43, s43, 1
    s_cmp_eq_u32 s43, 2
    s_cselect_b32 s40, 0, s40
    s_cselect_b32 s42, s45, s42
    s_cmp_eq_u32 s40, s42
    s_cselect_b32 s33, {2*kstep}, 0
    s_add_u32 s40, s40, s33
    s_add_u32 s41, s41, {SLOT}
    s_cmp_ge_u32 s41, {SLOT*NS}
    s_cselect_b32 s41, s44, s41
    """)

def phase2(k, o):
    NST = 32
    k("fz_cons:")
    k.stamp(10)
    ACC = 0; ZR = 72; FX = 144; FY = 188
    VA, VB0, VB1, VAb, VB0b, VB1b = 232, 233, 234, 235, 236, 239
    GT = [240, 241, 246, 247, 248, 249]; VC2 = 252; BS = [253, 251]
    k(f"""
    s_load_dwordx2 s[8:9], s[0:1], {ARG['b_sp']}
    s_lshl_b32 s30, s{P}, 3
    s_lshl_b32 s31, s{W}, 1
    s_add_u32 s30, s30, s31
    s_lshl_b32 s31, s30, 4
    s_add_u32 s31, s31, s{C}
    s_mul_i32 s31, s31, 4608
    s_add_u32 s32, s31, {16*4608}
    v_and_b32 v3, 15, v{VL}
    v_lshrrev_b32 v{VB0b}, 4, v{VL}
    v_lshrrev_b32 v{VB1b}, 1, v3
    v_xor_b32 v{VB0b}, v{VB0b}, v{VB1b}
    v_lshlrev_b32 v{VB0b}, 4, v{VB0b}
    v_lshl_add_u32 v{VB0b}, v3, 7, v{VB0b}
    s_lshl_b32 s34, s{W}, 12
    s_add_u32 s34, s34, 18432
    v_add_u32 v{VB0b}, s34, v{VB0b}
    v_xor_b32 v{VB1b}, 64, v{VB0b}
    v_lshlrev_b32 v{VAb}, 4, v{VL}
    v_add_u32 v{VA}, {2*SLOT}, v{VAb}
    v_add_u32 v{VB0}, {2*SLOT}, v{VB0b}
    v_add_u32 v{VB1}, {2*SLOT}, v{VB1b}
    s_lshl_b32 s34, s30, 4
    v_add_u32 v3, s34, v3
    v_lshlrev_b32 v3, 1, v3
    v_mov_b32 v{VC2}, {fbits(C2)}
    s_waitcnt lgkmcnt(0)
    global_load_ushort v{BS[0]}, v3, s[8:9]
    global_load_ushort v{BS[1]}, v3, s[8:9] offset:32
    s_mov_b32 s34, 0
    s_setprio {o.get('prio', 2)}
    s_lshl_b32 s28, s{P}, 1
    s_lshr_b32 s10, s{W}, 1
    s_add_u32 s28, s28, s10
    s_lshl_b32 s28, s28, 4
    s_add_u32 s28, s28, s{C}
    s_lshl_b32 s28, s28, 1
    s_and_b32 s10, s{W}, 1
    s_add_u32 s28, s28, s10
    s_lshl_b32 s28, s28, 2
    s_add_u32 s28, s28, {FL_H}
    """)
    g3 = Gemm3(k, o)
    g3.pre()
    def reads(F, half, st):
        sl = st % 4; hi = sl >> 1; off = (sl & 1) * SLOT
        vb = [[VB0b, VB1b], [VB0, VB1]][hi][half]; va = [VAb, VA][hi]
        r = [f"ds_read_b128 v[{F+4*tb}:{F+4*tb+3}], v{vb} offset:{off + tb*2048}" for tb in range(2)]
        r += [f"ds_read_b128 v[{F+8+4*ft}:{F+8+4*ft+3}], v{va} offset:{off + (ft*2+half)*1024}" for ft in range(9)]
        return r
    def mfmas(F, first=False):
        return [f"v_mfma_f32_16x16x32_bf16 v[{ACC+(ft*2+tb)*4}:{ACC+(ft*2+tb)*4+3}], v[{F+8+4*ft}:{F+8+4*ft+3}], v[{F+4*tb}:{F+4*tb+3}], " + ("0" if first else f"v[{ACC+(ft*2+tb)*4}:{ACC+(ft*2+tb)*4+3}]")
                for ft in range(o.get('nft', 9)) for tb in range(2)]
    adv = [f"s_add_u32 s34, s34, {SLOT}\ns_cmp_ge_u32 s34, {SLOT*NS}\ns_cselect_b32 s34, 0, s34",
           f"v_add_u32 v{VA}, s34, v{VAb}", f"v_add_u32 v{VB0}, s34, v{VB0b}", f"v_add_u32 v{VB1}, s34, v{VB1b}"]
    def gpair(n):
        if n >= 36: return []
        a = ZR + 2 * n; t = GT[2 * (n % 3)]; u = GT[2 * (n % 3) + 1]
        return [f"v_mul_f32 v{t}, v{a}, v{a}", f"v_mul_f32 v{u}, v{a+1}, v{a+1}",
                f"v_fmaak_f32 v{t}, v{VC2}, v{t}, {fbits(C1)}", f"v_fmaak_f32 v{u}, v{VC2}, v{u}, {fbits(C1)}",
                f"v_mul_f32 v{t}, v{t}, v{a}", f"v_mul_f32 v{u}, v{u}, v{a+1}",
                f"v_exp_f32 v{t}, v{t}", f"v_exp_f32 v{u}, v{u}",
                f"v_add_f32 v{t}, 1.0, v{t}", f"v_add_f32 v{u}, 1.0, v{u}",
                f"v_rcp_f32 v{t}, v{t}", f"v_rcp_f32 v{u}, v{u}",
                f"v_mul_f32 v{a}, v{a}, v{t}", f"v_mul_f32 v{a+1}, v{a+1}, v{u}",
                f"v_cvt_pk_bf16_f32 v{a}, v{a}, v{a+1}"]
    def weave(mf, rd, fill):
        out = []; fi = 0
        for i, x in enumerate(mf):
            out.append(x)
            if i < len(rd): out.append(rd[i])
            if fi < len(fill) and i >= 2: out.append(fill[fi]); fi += 1
        return out + rd[len(mf):] + fill[fi:]
    NU = o.get('NU', 20)
    gb = o.get('gb', 0)
    allf = [x for n_ in range(36 - gb) for x in gpair(n_)]
    nh = 2 * NU; per_ = -(-len(allf) // nh)
    fl = [allf[i * per_:(i + 1) * per_] for i in range(nh)]
    def weave(mf, rd, fill):
        out = []; fi = 0; n_ = len(mf)
        for i, x in enumerate(mf):
            out.append(x)
            if i < len(rd): out.append(rd[i])
            want = (i + 1) * len(fill) // n_ if o.get('even', 1) else (i - 1 if i >= 2 else 0)
            while fi < min(want, len(fill)): out.append(fill[fi]); fi += 1
        return out + rd[len(mf):] + fill[fi:]
    k("s_barrier")
    k.stamp(11)
    bp = o.get('bp', 18)
    def stage2(st, f0, f1, extra=(), tail=()):
        k("\n".join(weave(mfmas(FY), reads(FX, 0, st), f0)))
        k("s_waitcnt lgkmcnt(0)")
        w = weave(mfmas(FX), reads(FY, 1, st) + list(extra), f1)
        idx = [i for i, x in enumerate(w) if x.startswith("v_mfma")]
        cut = len(w) if bp >= 18 else idx[bp]
        k("\n".join(w[:cut] + list(tail) + ["s_waitcnt lgkmcnt(0)", "s_barrier"] + w[cut:]))
    k("\n".join(reads(FX, 0, 0) + fl[0]))
    k("s_waitcnt lgkmcnt(0)")
    k("\n".join(weave(mfmas(FX, True), reads(FY, 1, 0), fl[1])))
    zf = f"v_mov_b32 v238, 0\nv_mov_b32 v254, s{NON}\ns_waitcnt vmcnt(2)\ns_mov_b64 exec, 1\nbuffer_store_dword v254, v238, s[{FLS}:{FLS+3}], s48 offen sc1\ns_mov_b64 exec, -1"
    if o.get('zfp', 0) == 0: k(zf); k.stamp(9)
    k("s_waitcnt lgkmcnt(0)\ns_barrier")
    assert NU % 4 == 0
    for st in range(1, NU):
        tail = [zf] if (st == 1 and o.get('zfp', 0) == 1) else []
        if st == 1 and gb:
            for n0 in range(36 - gb, 36, 3):
                g3_ = [gpair(n_) for n_ in range(n0, min(36, n0 + 3))]
                for pos in range(15): tail += [g_[pos] for g_ in g3_]
        stage2(st, fl[2 * st], fl[2 * st + 1], tail=tail)
    if o.get('p2'): k.stamp(10)
    k(f"s_mov_b32 s35, {NU}\nfz_cloop:")
    for u in range(4):
        stage2(u, [], [], extra=(["s_add_u32 s35, s35, 4", "s_cmp_lt_u32 s35, 28"] if u == 3 else []))
    k("s_cbranch_scc1 fz_cloop")
    for u in range(4):
        stage2(u, [], [], extra=([f"buffer_load_dword v238, v237, s[{FLS}:{FLS+3}], 0 offen sc1"] if u == 0 else []))
    k("\n".join(mfmas(FY)))
    k.stamp(12)
    k.srd(12, 4, FRAG9, add=WS_H)
    g3.wcheck()
    VBS = 232
    k("s_setprio 3")
    k(f"v_lshlrev_b32 v{VBS}, 16, v{BS[0]}\nv_lshlrev_b32 v{VBS+2}, 16, v{BS[1]}\nv_mov_b32 v{VBS+1}, v{VBS}\nv_mov_b32 v{VBS+3}, v{VBS+2}")
    for tb in range(2):
        b = VBS + 2 * tb
        for q in range(5):
            nt = 2 if q < 4 else 1
            oo = 144 + (tb * 5 + q) % 2 * 4
            for t in range(nt):
                a = ACC + ((2 * q + t) * 2 + tb) * 4
                for hh in range(2):
                    z = ZR + ((2 * q + t) * 2 + tb) * 4 + 2 * hh; u = 236 + 2 * ((2 * t + hh) % 3)
                    k(f"""
                    v_pk_add_f32 v[{a+2*hh}:{a+2*hh+1}], v[{a+2*hh}:{a+2*hh+1}], v[{b}:{b+1}]
                    v_lshlrev_b32 v{u}, 16, v{z}
                    v_and_b32 v{u+1}, 0xffff0000, v{z}
                    v_pk_mul_f32 v[{a+2*hh}:{a+2*hh+1}], v[{a+2*hh}:{a+2*hh+1}], v[{u}:{u+1}]
                    v_cvt_pk_bf16_f32 v{oo+t*2+hh}, v{a+2*hh}, v{a+2*hh+1}
                    """)
            if q < 4: k(f"buffer_store_dwordx4 v[{oo}:{oo+3}], v242, s[12:15], s{31+tb} offen offset:{q*1024} sc1")
            else: k(f"s_add_u32 s33, s{31+tb}, 4096\nbuffer_store_dwordx2 v[{oo}:{oo+1}], v243, s[12:15], s33 offen sc1")
    if o.get('p3'): k.stamp(2)
    k(f"v_mov_b32 v0, 0\nv_mov_b32 v1, s{NON}\ns_waitcnt vmcnt(0)\ns_mov_b64 exec, 1\nbuffer_store_dword v1, v0, s[{FLS}:{FLS+3}], s28 offen sc1\ns_mov_b64 exec, -1")
    k.stamp(13)
    k(f"s_setprio {o.get('prio4', 1)}")
    g3.wregs()
    g3.main()
    k("fz_loader:\ns_setprio 0")
    for j in range(16): k(f"v_mov_b32 v{198+j}, 0")
    def issue(n, kstep, sc, chk=False, j0=0):
        if chk:
            L = k.label("pc"); D = k.label("pd")
            k(f"""
            {L}:
            s_lshr_b32 s33, s40, 10
            s_and_b32 s33, s33, 60
            s_lshr_b64 s[48:49], s[46:47], s33
            s_and_b32 s48, s48, 15
            s_cbranch_scc0 {D}
            s_add_u32 s62, s62, 1
            s_cmp_ge_u32 s62, {SPIN}
            s_cbranch_scc1 {D}
            buffer_load_dword v200, v199, s[{FLS}:{FLS+3}], s30 offen sc1
            s_waitcnt vmcnt(0)
            v_cmp_ne_u32 s[46:47], s{NON}, v200
            s_branch {L}
            {D}:
            """)
        for j in range(0 if o.get('nodma2') else n):
            k((f"s_add_u32 m0, s41, {(j+j0)*1024}\n" if j + j0 else "s_mov_b32 m0, s41\n") + f"buffer_load_dwordx4 v{VL_(j)}, s[12:15], s40 offen {sc}lds")
        advk(k, kstep)
    VL_ = lambda j: 112 + j
    def ring(tag, n, kstep, sc, first):
        k(f"s_setprio {o.get('prioR', 3)}")
        wst_setup(k, o, 214)
        if o.get('l4', 1):
            k(f"s_mov_b32 s35, {first}\nfz_h{tag}:\ns_waitcnt vmcnt({2*n})\ns_barrier")
            issue(n, kstep, sc, tag == "A")
            k(f"s_add_u32 s35, s35, 1\ns_cmp_lt_u32 s35, 5\ns_cbranch_scc1 fz_h{tag}\ns_waitcnt vmcnt({2*n})\ns_barrier")
            n2 = n; n = n // 2
            issue(n, kstep, sc, tag == "A")
            k(f"s_waitcnt vmcnt({n2 + n})\ns_barrier")
            issue(n, kstep, sc, tag == "A")
            first = 7
        k(f"s_mov_b32 s35, {first}\nfz_l{tag}:\ns_waitcnt vmcnt({2*n})\ns_barrier")
        issue(n, kstep, sc, tag == "A")
        fv = 214
        k(f"s_cmp_eq_u32 s35, 24\ns_cbranch_scc0 fz_m{tag}\nbuffer_load_dwordx2 v[{fv}:{fv+1}], v{fv+2}, s[{FLS}:{FLS+3}], s52 offen sc1\nfz_m{tag}:")
        k(f"s_add_u32 s35, s35, 1\ns_cmp_lt_u32 s35, {NST-3}\ns_cbranch_scc1 fz_l{tag}")
        wst_check(k, o, fv=214)
        if tag == "A":
            k(f"v_mov_b32 v60, {RDY}\nv_mov_b32 v61, 0\nds_write_b32 v60, v61 offset:8\nds_write_b32 v60, v61 offset:16\ns_min_u32 s58, s58, 1000")
            ft_load(k)
            wst(k, 3); k(f"s_waitcnt vmcnt({2*n + 22})\ns_barrier")
            wst(k, 0); k(f"s_waitcnt vmcnt({n + 43})\ns_barrier\ns_waitcnt vmcnt(43) lgkmcnt(0)\ns_barrier")
        else:
            k(f"s_waitcnt vmcnt({2*n})\ns_barrier\ns_waitcnt vmcnt({n})\ns_barrier")
            wst(k, 1); wst(k, 2); k("s_waitcnt vmcnt(42)\ns_barrier")
        k("s_waitcnt vmcnt(0)\ns_barrier")
    k(f"s_cmp_ge_u32 s58, 576\ns_cbranch_scc1 fz_nk0")
    k(f"s_mov_b32 s54, {fbits(L2E_HI)}\ns_mov_b32 s55, {fbits(I2P_HI)}")
    for i in range(40): k(f"v_mov_b32 v{i}, 0")
    k("\n".join(kgen_dt()))
    if o.get('t3', 0): k(f"s_cmp_eq_u32 s{W}, 4\ns_cbranch_scc1 fz_nk0")
    kh = kgen_half(); c0 = next(i for i, x in enumerate(kh) if x.startswith('ds_')); c1 = len(kh) * o.get('k1', 50) // 100
    k("s_mov_b32 s53, 0\nfz_kg:")
    k("\n".join(kh[:c0]))
    k("s_cmp_lg_u32 s53, 0\ns_cbranch_scc1 fz_kgb\ns_barrier\nfz_kgb:")
    k("\n".join(kh[c0:c1]))
    k("s_cmp_lg_u32 s53, 0\ns_cbranch_scc1 fz_kgc\ns_barrier\nfz_kgc:")
    k("\n".join(kh[c1:]))
    k("s_cmp_eq_u32 s53, 1\ns_cbranch_scc1 fz_kg2\ns_cmp_eq_u32 s53, 0\ns_cbranch_scc1 fz_nk\ns_mov_b32 s53, 1\ns_branch fz_kg\nfz_nk0:\ns_barrier\ns_barrier\nfz_nk:")
    k.stamp(9)
    k(f"s_mov_b32 s43, 0\ns_mov_b32 s42, -1\ns_cmp_lg_u32 s{W}, 4\ns_cbranch_scc1 fz_idle")
    k.srd(12, 4, FRAG9, add=WS_Z2)
    k(f"s_lshl_b32 s45, s{P}, 12\ns_mov_b32 s40, s45\ns_mul_i32 s31, s{C}, {9*65536}\nv_lshlrev_b32 v198, 4, v{VL}\nv_add_u32 v198, s31, v198\ns_mov_b32 s44, 0\ns_mov_b32 s41, 0")
    for j in range(18): k(f"v_add_u32 v{VL_(j)}, {(j >> 1)*65536 + (j & 1)*1024}, v198")
    k(f"s_lshl_b32 s30, s{C}, 8\ns_add_u32 s30, s30, {FL_2}\nv_lshlrev_b32 v199, 2, v{VL}\ns_mov_b64 s[46:47], -1\ns_mov_b32 s62, 0")
    advk(k, 2048); advk(k, 2048)
    k.stamp(10)
    issue(18, 2048, "sc1 ", True)
    issue(18, 2048, "sc1 ", True); issue(18, 2048, "sc1 ", True)
    k.stamp(11)
    ring("A", 18, 2048, "sc1 ", 2)
    k("s_branch fz_p34")
    k("fz_ld5:\ns_setprio 0")
    VL_ = lambda j: 220 + j
    for _ in range(2): issue(16, 128, "")
    k.stamp(11)
    ring("B", 16, 128, "", 0)
    mode = o.get('cv', 1)
    if mode == 0: k("s_branch fz_fin")
    else:
        k(f"s_lshl_b32 s58, s2, 1\ns_mov_b32 s59, {CONV0}\ns_mov_b32 s57, {RDY}\ns_cmp_ge_u32 s2, 64\ns_cbranch_scc1 fz_help")
        if o.get('h3', 1): k(f"s_add_u32 s58, s2, 512\ns_mov_b32 s59, {CONV0 + 2*REG}\ns_mov_b32 s57, {RDY + 8}\ns_branch fz_help")
        else: k("s_branch fz_fin")
    k("fz_idle:")
    k(f"v_mov_b32 v44, {RDY}\nv_mov_b32 v45, 0\nds_write_b32 v44, v45\nds_write_b32 v44, v45 offset:4")
    regs = list(range(KG['WAD'], KG['WAD'] + 16)) + list(range(KG['RW'], KG['RW'] + 4)) + list(range(KG['RS'], KG['RS'] + 10))
    nch = o.get('nch', 0)
    if nch:
        for r in regs: k(f"v_add_u32 v{r}, {139264 - KTAB}, v{r}")
        k("s_barrier")
        for ch in split(kgen_half(), nch):
            k("s_barrier"); k("\n".join(ch))
        for _ in range(30 - nch): k("s_barrier")
    elif o.get('l4', 1):
        k(f"""
        s_load_dwordx2 s[6:7], s[0:1], {ARG['w_sp']}
        s_load_dwordx2 s[8:9], s[0:1], {ARG['w_out']}
        s_lshl_b32 s50, s56, 8
        s_add_u32 s50, s50, s2
        s_add_u32 s51, s2, 384
        s_cmp_ge_u32 s2, 128
        s_cselect_b32 s51, s51, 999
        s_cmp_eq_u32 s56, 0
        s_cselect_b32 s51, s51, 999
        s_lshl_b32 s52, s56, 13
        s_add_u32 s52, s52, {KTAB}
        s_mov_b32 s63, {KTAB + 16384}
        s_mov_b32 s38, {FL_BYTES}
        s_mov_b32 s39, {FL_BYTES}
        s_waitcnt lgkmcnt(0)
        """)
        k.srd(24, 8, WOBYTES)
        k.srd(28, 4, WOBYTES, add=WS_WO)
        k.srd(12, 6, 2048 * 4096)
        side_issue(k, o, 50, 52)
        k("s_cmp_ge_u32 s51, 640\ns_cbranch_scc1 fz_ns2"); side_issue(k, o, 51, 63); k("fz_ns2:")
        k("s_barrier\ns_barrier\ns_waitcnt vmcnt(0)")
        side_run(k, o, 50, 52, 38); side_run(k, o, 51, 63, 39)
        k(f"s_setprio {o.get('prioR', 3)}\ns_cmp_eq_u32 s{W}, 7\ns_cbranch_scc1 fz_h7")
        for tag, n, kstep, sc in (("6", 9, 2048, "sc1 "), ("7", 8, 128, "")):
            VL_ = lambda j: 202 + j
            if tag == "6":
                k.srd(12, 4, FRAG9, add=WS_Z2)
                k(f"s_lshl_b32 s45, s{P}, 12\ns_mul_i32 s31, s{C}, {9*65536}\nv_lshlrev_b32 v198, 4, v{VL}\nv_add_u32 v198, s31, v198\ns_mov_b32 s44, 0")
                for j in range(9): k(f"v_add_u32 v{VL_(j)}, {((j+9) >> 1)*65536 + ((j+9) & 1)*1024}, v198")
                k(f"s_lshl_b32 s30, s{C}, 8\ns_add_u32 s30, s30, {FL_2}\nv_lshlrev_b32 v199, 2, v{VL}\ns_mov_b64 s[46:47], -1\ns_mov_b32 s62, 0")
            else:
                k(f"""
                fz_h7:
                v_lshrrev_b32 v44, 3, v{VL}
                v_and_b32 v45, 7, v{VL}
                v_lshrrev_b32 v46, 4, v{VL}
                v_xor_b32 v45, v45, v46
                v_and_b32 v46, 1, v45
                v_lshlrev_b32 v46, 1, v46
                v_bfe_u32 v47, v45, 1, 1
                v_and_b32 v45, 4, v45
                v_or_b32 v45, v45, v46
                v_or_b32 v45, v45, v47
                v_lshlrev_b32 v45, 4, v45
                v_lshl_add_u32 v45, v44, 12, v45
                s_lshl_b32 s31, s{P}, 19
                v_add_u32 v44, s31, v45
                v_xor_b32 v45, 64, v44
                s_lshl_b32 s45, s{P}, 8
                s_mov_b32 s44, 18432
                """)
                for j in range(8): k(f"v_add_u32 v{VL_(j)}, {(j+8)*32768}, v{44 + (j & 1)}")
            k(f"s_mov_b32 s40, s45\ns_mov_b32 s41, s44\ns_mov_b32 s35, 0\nfz_a{tag}:")
            advk(k, kstep)
            k(f"s_add_u32 s35, s35, 1\ns_cmp_lt_u32 s35, 8\ns_cbranch_scc1 fz_a{tag}")
            k("s_barrier")
            k(f"s_mov_b32 s35, 5\nfz_r{tag}:\ns_waitcnt vmcnt({2*n})\ns_barrier")
            issue(n, kstep, sc, tag == "6", j0=n)
            k(f"s_cmp_eq_u32 s35, 8\ns_cbranch_scc0 fz_f{tag}\nv_mov_b32 v44, 0\nv_mov_b32 v45, s{NON}\ns_mov_b64 exec, 1\nbuffer_store_dword v45, v44, s[{FLS}:{FLS+3}], s38 offen sc1\nbuffer_store_dword v45, v44, s[{FLS}:{FLS+3}], s39 offen sc1\ns_mov_b64 exec, -1\nfz_f{tag}:")
            k(f"s_add_u32 s35, s35, 1\ns_cmp_lt_u32 s35, 29\ns_cbranch_scc1 fz_r{tag}")
            k(f"s_waitcnt vmcnt({2*n})\ns_barrier\ns_waitcnt vmcnt({n})\ns_barrier\ns_waitcnt vmcnt(0)")
            if tag == "6": k("s_branch fz_h9")
        k("fz_h9:")
    else:
        k(f"s_mov_b32 s35, 0\nfz_idl:\ns_barrier\ns_add_u32 s35, s35, 1\ns_cmp_lt_u32 s35, 31\ns_cbranch_scc1 fz_idl")
    ft_load(k)
    k("s_barrier\ns_barrier")
    k.stamp(12)
    k(f"s_lshl_b32 s57, s56, 2\ns_add_u32 s57, s57, {RDY}")
    k(f"s_mov_b32 s3, 0\ns_cmp_ge_u32 s2, 64\ns_cbranch_scc1 fz_k2\ns_mov_b32 s3, 1\nfz_k2:")
    k(f"s_setprio {o.get('prio3', 3)}\ns_mul_i32 s59, s56, {REG}\ns_add_u32 s59, s59, {CONV0}")
    u_load(k)
    if nch: k(f"s_cmp_lg_u32 s{W}, 4\ns_cbranch_scc1 fz_kg2")
    k(f"s_lshl_b32 s33, s56, 13\ns_add_u32 s33, s33, {KTAB - 4608}\ns_sub_u32 s33, s59, s33")
    for r in regs: k(f"v_add_u32 v{r}, s33, v{r}")
    if o.get('t3', 0): k(f"s_mov_b32 s53, 2\ns_cmp_eq_u32 s{W}, 4\ns_cbranch_scc1 fz_kg")
    k("s_mov_b32 s53, 1\ns_branch fz_kg\nfz_kg2:")
    k.stamp(8)
    conv_build(k, o)
    k.stamp(13)
    if mode:
        k("s_cmp_eq_u32 s3, 1\ns_cbranch_scc1 fz_full")
        conv_run(k, o, 0)
        k.stamp(14)
        k("s_branch fz_fin\nfz_full:")
    conv_run(k, o, 2)
    k.stamp(14)
    k("s_branch fz_fin")
    k(f"fz_p34:\ns_cmp_lt_u32 s58, 576\ns_cbranch_scc1 fz_own3")
    if mode:
        k(f"s_lshl_b32 s58, s2, 1\ns_add_u32 s58, s58, 1\ns_mov_b32 s59, {CONV0 + REG}\ns_mov_b32 s57, {RDY + 4}")
        k(f"""
        fz_help:
        s_mov_b32 s3, 0
        s_setprio {o.get('prio3', 3)}
        v_mov_b32 v20, s57
        s_mov_b32 s62, 0
        fz_hw:
        ds_read_b32 v21, v20
        s_add_u32 s62, s62, 1
        s_waitcnt lgkmcnt(0)
        v_readfirstlane_b32 s33, v21
        s_cmp_eq_u32 s33, 1
        s_cbranch_scc1 fz_runb
        s_cmp_lt_u32 s62, {SPIN*16}
        s_cbranch_scc1 fz_hw
        fz_runb:
        """)
        k.stamp(13)
        conv_run(k, o, 1)
        k.stamp(14)
    k("s_branch fz_fin\nfz_own3:")
    k(f"s_mov_b32 s57, {RDY + 8}\ns_mov_b32 s3, {0 if o.get('h3', 1) else 1}\ns_branch fz_k2")

def wst_setup(k, o, fv):
    g3map(k, 50, 51)
    k.srd(24, 4, WOBYTES, add=WS_WO)
    k(f"s_lshl_b32 s52, s51, 9\ns_add_u32 s52, s52, {FL_W}\ns_mul_i32 s63, s51, {16*20736}\nv_lshlrev_b32 v{fv+2}, 3, v{VL}\nv_lshlrev_b32 v{fv+3}, 4, v{VL}\nv_mov_b32 v{fv}, 0\nv_mov_b32 v{fv+1}, 0")
    k.wfv = fv
def wst_check(k, o, fv):
    L = k.label("w4"); D = k.label("w4d")
    k(f"""
    s_mov_b32 s62, 0
    {L}:
    v_cmp_ne_u32 vcc, s{NON}, v{fv}
    s_and_b32 vcc_lo, vcc_lo, 0x77777777
    s_and_b32 vcc_hi, vcc_hi, 0x77777777
    v_cmp_ne_u32 s[60:61], s{NON}, v{fv+1}
    s_and_b32 s60, s60, 0x33333333
    s_and_b32 s61, s61, 0x33333333
    s_or_b64 vcc, vcc, s[60:61]
    s_cbranch_scc0 {D}
    s_add_u32 s62, s62, 1
    s_cmp_ge_u32 s62, {SPIN}
    s_cbranch_scc1 {D}
    buffer_load_dwordx2 v[{fv}:{fv+1}], v{fv+2}, s[{FLS}:{FLS+3}], s52 offen sc1
    s_waitcnt vmcnt(0)
    s_branch {L}
    {D}:
    """)
def wst(k, w):
    fv = k.wfv
    k(f"s_add_u32 s48, s{C}, {w + 4}\ns_and_b32 s48, s48, 15\ns_mul_i32 s48, s48, 20736\ns_add_u32 s48, s48, s63")
    for i in range(21):
        if i == 20: k(xm(0xffff))
        k(f"s_mov_b32 m0, {WQ[w] + i*1024}\nbuffer_load_dwordx4 v{fv+3}, s[24:27], s48 offen sc1 lds\ns_add_u32 s48, s48, 1024")
    k("s_mov_b64 exec, -1")

def gen_fused(prof=False, **o):
    OPT.update(o); o['WFL'] = WFL
    k = Kern(NAME + "_kernel", 256, 512, 163840)
    k.prof = prof; k.allreal = bool(o.get('real', 0))
    if o.get('p0'):
        seen = set(); st0 = k.stamp
        def st(i, real=False):
            if i in (5, 7, 8, 9):
                key = (i, len([1 for l in k.lines if l.startswith(('fz_l1W:', 'fz_c1:'))]))
                if key in seen or any(l.startswith('fz_cons:') for l in k.lines): return
                seen.add(key)
            st0(i, real)
        k.stamp = st
    k.stamp(0, True); k.stamp(1)
    if o.get('dbgt'): k("s_memrealtime s[64:65]")
    phase0(k, o); phase2(k, o)
    k("fz_fin:")
    if o.get('dbgt'):
        k(f"""
        s_waitcnt vmcnt(0)
        s_memrealtime s[66:67]
        s_load_dwordx2 s[68:69], s[0:1], {ARG['dbg']}
        s_waitcnt lgkmcnt(0)
        s_cmp_ge_u32 s2, 8
        s_cbranch_scc1 fz_end
        s_cmp_lg_u32 s22, 0
        s_cbranch_scc1 fz_end
        s_lshl_b32 s70, s2, 3
        v_mov_b32 v0, s70
        v_mov_b32 v2, s64
        v_mov_b32 v3, s66
        s_mov_b64 exec, 1
        global_store_dwordx2 v0, v[2:3], s[68:69]
        """)
    if prof:
        k("s_waitcnt vmcnt(0)"); k.stamp(15, True)
        k.prof_dump(0, 4, W, 16)
    k("fz_end:")
    return k

def emit_single(k, path):
    from gen import header
    s = header() + f"; @launch kernel={k.name} grid=({k.grid},1,1) block=({k.block},1,1) lds={k.lds}\n"
    s += '.amdgcn_target "amdgcn-amd-amdhsa--gfx950"\n.text\n' + k.text() + '.section .rodata,"a"\n' + k.desc()
    open(path, "w").write(s)

if __name__ == "__main__":
    opts = {a.split("=")[0]: int(a.split("=")[1]) for a in sys.argv[2:] if "=" in a}
    emit_single(gen_fused(prof="prof" in sys.argv, **opts), sys.argv[1])
```

```python
import sys; sys.path.insert(0, "dev")
from cm24 import *
SLOT = 34816; NS = 4
XTL = 104448; RPL = 114688
Z1 = 160
WOFF = 16384


ROWA = 139264
COLP = ROWA + 1024
WPRIV = COLP + 2 * 768
XTS = WPRIV + 1280
assert XTS + 4 * 5120 <= 163840
KTAB = 139264
CNT = WPRIV + 1024
WFL = 163000
RPK = XTS
WS_RS = WS_ST + 0x90000
def phase0(k, o):
    k(f"""
    s_load_dwordx2 s[6:7], s[0:1], {ARG['x']}
    s_load_dwordx2 s[8:9], s[0:1], {ARG['w_in']}
    s_load_dwordx2 s[4:5], s[0:1], {ARG['ws']}
    s_getpc_b64 s[28:29]
    fz_pc:
    s_cmp_ge_u32 s2, 256
    s_cbranch_scc1 fz_end
    v_lshrrev_b32 v1, 6, v0
    v_and_b32 v{VL}, 63, v0
    v_readfirstlane_b32 s{W}, v1
    s_and_b32 s30, s2, 7
    s_lshr_b32 s31, s2, 3
    v_lshrrev_b32 v1, 4, v0
    v_lshl_add_u32 v1, s31, 5, v1
    v_lshlrev_b32 v1, 7, v1
    v_min_u32 v1, fz_end-fz_pc, v1
    {xm(0x0001000100010001)}
    global_load_dword v254, v1, s[28:29]
    s_mov_b64 exec, -1
    s_and_b32 s{P}, s30, 1
    s_lshl_b32 s{P}, s{P}, 3
    s_lshr_b32 s32, s31, 2
    s_add_u32 s{P}, s{P}, s32
    s_lshr_b32 s{C}, s30, 1
    s_lshl_b32 s{C}, s{C}, 2
    s_and_b32 s32, s31, 3
    s_add_u32 s{C}, s{C}, s32
    s_lshl_b32 s63, s2, 3
    s_add_u32 s63, s63, s{W}
    s_mul_i32 s31, s63, 1152
    v_lshlrev_b32 v2, 4, v{VL}
    v_mov_b32 v3, {OOB}
    v_cmp_gt_u32 vcc, 36, v{VL}
    v_cndmask_b32 v2, v3, v2, vcc
    s_waitcnt lgkmcnt(0)
    """)
    k.srd(12, 6, XBYTES)
    k(f"""
    buffer_load_dwordx4 v[8:11], v2, s[12:15], s31 offen
    buffer_load_dwordx4 v[12:15], v2, s[12:15], s31 offen offset:576
    s_add_u32 s10, s4, {WS_FL}
    s_addc_u32 s11, s5, 0
    s_load_dword s{NON}, s[10:11], 0
    s_cmp_lt_u32 s{W}, 4
    s_cbranch_scc1 fz_c0
    s_cmp_lt_u32 s{W}, 6
    s_cbranch_scc1 fz_w0
    """)
    LX = p1_loader(k, o, "X"); next(LX)
    k("s_mov_b32 s3, 2\ns_branch fz_ln\nfz_w0:")
    LW = p1_loader(k, o, "W"); next(LW)
    k("s_mov_b32 s3, 1\ns_branch fz_ln\nfz_c0:")
    CC = p1_consumer(k, o); next(CC)
    k("s_mov_b32 s3, 0\nfz_ln:")
    ln1(k, o)
    k(f"s_cmp_eq_u32 s3, 0\ns_cbranch_scc1 fz_c1\ns_cmp_eq_u32 s3, 1\ns_cbranch_scc1 fz_l1W")
    next(LX, None)
    k("fz_l1W:")
    next(LW, None)
    k("fz_c1:")
    next(CC, None)

def ln1(k, o):
    X = 16; S = 112
    k.srd(FLS, 4, FL_BYTES, add=WS_FL)
    k(f"v_cmp_gt_u32 vcc, 36, v{VL}")
    for i in range(8): k(f"v_lshlrev_b32 v{X+2*i}, 16, v{8+i}\nv_and_b32 v{X+2*i+1}, 0xffff0000, v{8+i}")
    k(f"v_pk_add_f32 v[{S}:{S+1}], v[{X}:{X+1}], v[{X+2}:{X+3}]\nv_pk_add_f32 v[{S+2}:{S+3}], v[{X+4}:{X+5}], v[{X+6}:{X+7}]")
    for i in range(4, 8): k(f"v_pk_add_f32 v[{S+2*(i&1)}:{S+2*(i&1)+1}], v[{S+2*(i&1)}:{S+2*(i&1)+1}], v[{X+2*i}:{X+2*i+1}]")
    k(f"v_pk_add_f32 v[{S}:{S+1}], v[{S}:{S+1}], v[{S+2}:{S+3}]\nv_add_f32 v{S}, v{S}, v{S+1}")
    dpp_sum16(k, [S]); xsum_rows(k, S, S + 1)
    k(f"v_mul_f32 v{S}, {1.0/576!r}, v{S}\nv_cndmask_b32 v{S+6}, 0, v{S}, vcc")
    for i in range(8):
        t = 32 + 2 * i
        k(f"v_pk_add_f32 v[{t}:{t+1}], v[{X+2*i}:{X+2*i+1}], v[{S+6}:{S+7}] op_sel_hi:[1,0] neg_lo:[0,1] neg_hi:[0,1]")
    for i in range(8):
        t = 32 + 2 * i; q = S + 2 + 2 * (i & 1)
        if i < 2: k(f"v_pk_mul_f32 v[{q}:{q+1}], v[{t}:{t+1}], v[{t}:{t+1}]")
        else: k(f"v_pk_fma_f32 v[{q}:{q+1}], v[{t}:{t+1}], v[{t}:{t+1}], v[{q}:{q+1}]")
    k(f"v_pk_add_f32 v[{S+2}:{S+3}], v[{S+2}:{S+3}], v[{S+4}:{S+5}]\nv_add_f32 v{S+2}, v{S+2}, v{S+3}")
    dpp_sum16(k, [S + 2]); xsum_rows(k, S + 2, S + 3)
    k(f"v_mul_f32 v{S+2}, {1.0/576!r}, v{S+2}")
    k.srd(36, 4, XBYTES, add=WS_XN)
    k(f"s_waitcnt lgkmcnt(0)\ns_mul_i32 s{NON}, s{NON}, 0x9E3779B1\ns_add_u32 s{NON}, s{NON}, 0x7F4A7C15\ns_mul_i32 s31, s63, 1152")
    ln_finish(k, S, S + 2)
    k(f"v_mul_f32 v{S}, -v{S}, v{S+2}")
    for i in range(8): k(f"v_pk_fma_f32 v[{X+2*i}:{X+2*i+1}], v[{X+2*i}:{X+2*i+1}], v[{S+2}:{S+3}], v[{S}:{S+1}] op_sel_hi:[1,0,0]")
    for i in range(8): k(f"v_cvt_pk_bf16_f32 v{8+i}, v{X+2*i}, v{X+2*i+1}")
    k(f"""
    buffer_store_dwordx4 v[8:11], v2, s[36:39], s31 offen sc1
    buffer_store_dwordx4 v[12:15], v2, s[36:39], s31 offen offset:576 sc1
    v_mov_b32 v{S+1}, s{NON}
    v_mov_b32 v{S+3}, s{NON}
    s_lshl_b32 s63, s63, 4
    """)

def rowgran(k, srd, vz):
    k(f"v_mov_b32 v{vz}, 0\ns_mov_b64 exec, 1\nbuffer_store_dwordx4 v[112:115], v{vz}, s[{srd}:{srd+3}], s63 offen sc1\ns_mov_b64 exec, -1")

def get_nonce(k):
    k(f"s_add_u32 s10, s4, {WS_FL}\ns_addc_u32 s11, s5, 0\ns_load_dword s{NON}, s[10:11], 0")
    k.srd(FLS, 4, FL_BYTES, add=WS_FL)
def fin_nonce(k):
    k(f"s_waitcnt lgkmcnt(0)\ns_mul_i32 s{NON}, s{NON}, 0x9E3779B1\ns_add_u32 s{NON}, s{NON}, 0x7F4A7C15")

def p1_addr(k, VX0b, VX1b, VWb, tq_s):
    k(f"""
    v_and_b32 v3, 15, v{VL}
    v_lshrrev_b32 v4, 4, v{VL}
    v_lshrrev_b32 v5, 1, v3
    v_xor_b32 v5, v5, v4
    v_lshlrev_b32 v5, 4, v5
    v_lshl_add_u32 v5, v3, 7, v5
    s_lshl_b32 s32, s{tq_s}, 12
    v_add_u32 v{VX0b}, s32, v5
    v_xor_b32 v{VX1b}, 64, v{VX0b}
    v_bfe_u32 v5, v{VL}, 2, 2
    v_and_b32 v6, 1, v4
    v_lshl_add_u32 v5, v6, 2, v5
    v_lshrrev_b32 v6, 1, v4
    v_lshl_add_u32 v5, v6, 4, v5
    v_mul_u32_u24 v5, 288, v5
    v_and_b32 v6, 3, v{VL}
    v_lshl_add_u32 v5, v6, 3, v5
    v_add_u32 v{VWb}, {WOFF}, v5
    """)

def p1_loader(k, o, typ):
    VD = 200; n = 8 if typ == "X" else 9
    k(f"s_sub_u32 s57, s{W}, 4      ; lw\ns_setprio {o.get('prioL', 3)}")
    if typ == "X":
        k(f"""
        v_lshrrev_b32 v3, 3, v{VL}
        v_and_b32 v4, 7, v{VL}
        v_lshrrev_b32 v5, 4, v{VL}
        v_xor_b32 v4, v4, v5
        v_mul_u32_u24 v3, 1152, v3
        v_lshl_add_u32 v3, v4, 4, v3
        v_xor_b32 v4, 64, v3
        s_sub_u32 s31, s{W}, 6
        s_lshl_b32 s30, s{P}, 7
        s_lshl_b32 s32, s31, 6
        s_add_u32 s30, s30, s32
        s_mul_i32 s30, s30, 1152
        s_lshl_b32 s44, s31, 13
        """)
        k("s_mov_b32 s40, 0")
        for j in range(8):
            k(f"v_add_u32 v{VD+j}, s30, v{3 + (j & 1)}\ns_add_u32 s30, s30, {8*1152}\ns_add_u32 m0, s44, {j*1024}\nbuffer_load_dwordx4 v{VD+j}, s[12:15], s40 offen lds")
        kstep, k0 = 128, 0
    else:
        k(f"s_mul_i32 s32, s{C}, 288\ns_mov_b32 s33, 3641\ns_mul_i32 s31, s57, {9*64}\ns_mul_i32 s44, s57, {9*1024}\ns_add_u32 s44, s44, {WOFF}\nv_add_u32 v1, s31, v{VL}")
        k("s_mov_b32 s40, 4608")
        k.srd(12, 8, 576 * 9216)
        for j in range(9):
            k(f"""
            v_add_u32 v3, {64*j}, v1
            v_mul_lo_u32 v4, v3, s33
            v_lshrrev_b32 v4, 16, v4
            v_mul_u32_u24 v5, 18, v4
            v_sub_u32 v5, v3, v5
            v_and_b32 v6, 0x33, v4
            v_bfe_u32 v7, v4, 2, 1
            v_lshl_or_b32 v6, v7, 3, v6
            v_bfe_u32 v7, v4, 3, 1
            v_lshl_or_b32 v6, v7, 2, v6
            v_mul_u32_u24 v6, 9216, v6
            v_lshl_add_u32 v6, v5, 4, v6
            v_add_u32 v{VD+j}, s32, v6
            s_add_u32 m0, s44, {j*1024}
            buffer_load_dwordx4 v{VD+j}, s[12:15], s40 offen lds
            """)
        kstep = 64 * 9216
    k("s_mov_b32 s41, s44\ns_mov_b32 s43, 0")
    tch = 0
    TV = 209
    def issue(touch=True):
        L = []
        for j in range(8 if typ == 'X' else 9):
            L.append((f"s_add_u32 m0, s41, {j*1024}\n" if j else "s_mov_b32 m0, s41\n") + f"buffer_load_dwordx4 v{VD+j}, s[12:15], s40 offen {'sc1 ' if typ == 'X' else ''}lds")
        if tch and touch: L.append(f"s_cmp_lt_u32 s49, s51\ns_cselect_b32 s52, s49, {OOB}\nbuffer_load_dword v254, v{TV}, s[28:31], s52 offen\ns_add_u32 s49, s49, s50")
        L.append(f"s_add_u32 s40, s40, {kstep}\ns_add_u32 s41, s41, {SLOT}\ns_cmp_ge_u32 s41, {SLOT*NS}\ns_cselect_b32 s41, s44, s41")
        L.append(f"s_add_u32 s43, s43, 1\ns_cmp_eq_u32 s43, 9\ns_cselect_b32 s40, 0, s40")
        return L
    k("\n".join(issue(False)[n:]))
    k("\n".join(issue(False)))
    if o.get('p0'): k.stamp(5)
    pe = o.get('pe', 0)
    pb = o.get('pb', 2)
    for _ in range(pb - 2): k("\n".join(issue(False)))
    k(f"s_waitcnt vmcnt({pb*n})")
    yield
    for _ in range(pe): k("\n".join(issue(False)))
    if typ == "X": k(f"s_load_dwordx2 s[46:47], s[0:1], {ARG['w_sp']}\ns_load_dwordx2 s[54:55], s[0:1], {ARG['w_out']}")
    n0 = n; n = n + tch
    VX0, VX1, VW, VX0b, VX1b, VWb = 210, 211, 212, 213, 214, 215
    p1_addr(k, VX0b, VX1b, VWb, 57)
    CA = 44
    WF = 56
    ON = 108
    T = 116
    for i in range(4): k(f"v_mov_b32 v{ON+i}, 0x3f803f80")
    for i in range(12): k(f"v_mov_b32 v{CA+i}, 0")
    k(f"s_lshl_b32 s36, s57, 5\nv_add_u32 v{VWb}, s36, v{VWb}\nv_mov_b32 v{VW}, v{VWb}\ns_mov_b32 s34, 0\ns_mov_b32 s35, 0")
    k.srd(24, 4, 2048 * 16, add=WS_RS)
    k(f"s_lshl_b32 s36, s{P}, 7\ns_and_b32 s37, s57, 1\ns_lshl_b32 s37, s37, 6\ns_add_u32 s36, s36, s37\ns_lshl_b32 s36, s36, 4\nv_lshlrev_b32 v{T+8}, 4, v{VL}")
    k(f"""
    s_sub_u32 s56, 7, s{W}
    s_lshr_b32 s58, s56, 1
    s_xor_b32 s56, s56, s58
    s_lshl_b32 s58, s2, 1
    s_add_u32 s58, s58, s56
    s_add_u32 s59, s2, 512
    s_cmp_eq_u32 s56, 2
    s_cselect_b32 s58, s59, s58
    s_cmp_eq_u32 s56, 3
    s_cselect_b32 s58, 1000, s58
    s_lshl_b32 s59, s56, 13
    s_add_u32 s59, s59, {KTAB}
    """)
    adv = f"s_add_u32 s34, s34, {SLOT}\ns_cmp_ge_u32 s34, {SLOT*NS}\ns_cselect_b32 s34, 0, s34\nv_add_u32 v{VW}, s34, v{VWb}"
    nt = 3 if typ == "W" else 2
    smem = [0]
    def stage(z2, do_issue, wait, fill=None, twice=False):
        k(f"s_waitcnt vmcnt({wait}){' lgkmcnt(0)' if z2 else ''}\ns_barrier")
        if not z2 and o.get('spat') == 20:
            for _ in range(o.get('nsm', 11)):
                if smem[0] < 64: k(f"s_load_dword s45, s[38:39], {smem[0]*128}"); smem[0] += 1
        rd_ = []; mf = []
        if z2:
            for hf in range(2):
                for t in range(nt):
                    f = WF + (hf * 3 + t) * 4
                    for rd in range(2): rd_.append(f"ds_read_b64_tr_b16 v[{f+2*rd}:{f+2*rd+1}], v{VW} offset:{hf*32*288 + rd*8*288 + t*128}")
                    mf.append(f"v_mfma_f32_16x16x32_bf16 v[{CA+4*t}:{CA+4*t+3}], v[{ON}:{ON+3}], v[{f}:{f+3}], v[{CA+4*t}:{CA+4*t+3}]")
        dm = issue() if do_issue else []
        if twice: dm = dm + issue()
        if z2:
            k("\n".join(rd_ + dm[:2]))
            k("s_waitcnt lgkmcnt(0)")
            k("\n".join(front(dm[2:], mf)))
            k(adv)
        else: k("\n".join(dm))
        if fill: k("\n".join(fill))
        k("s_add_u32 s35, s35, 1")
    def gran_check(vd, va, so, full):
        L = k.label("rp"); D = k.label("rd")
        k(f"""
        s_mov_b32 s62, 0
        {"" if full else xm(0xffffffff)}
        {L}:
        v_cmp_ne_u32 vcc, s{NON}, v{vd+1}
        v_cmp_ne_u32 s[60:61], s{NON}, v{vd+3}
        s_or_b64 vcc, vcc, s[60:61]
        s_cbranch_vccz {D}
        s_add_u32 s62, s62, 1
        s_cmp_ge_u32 s62, {SPIN}
        s_cbranch_scc1 {D}
        buffer_load_dwordx4 v[{vd}:{vd+3}], v{va}, s[24:27], s{so} offen sc1
        s_waitcnt vmcnt(0)
        s_branch {L}
        {D}:
        """)
    if o.get('p0'):
        k.stamp(7); k(f"s_waitcnt vmcnt({n0 + 2})"); k.stamp(8)
    tot_ = pb + pe
    stage(True, tot_ < 4, (tot_ - 1) * n0 + 2, twice=(tot_ == 2))
    k(f"fz_l1{typ}a:")
    stage(True, True, 2 * n0)
    L = k.label("gr"); k(f"s_cmp_eq_u32 s35, 2\ns_cbranch_scc0 {L}"); rowgran(k, 24, T); k(f"{L}:")
    tp = o.get('tp', 6)
    if typ == "X" and tp > 5:
        L = k.label("rg")
        k(f"s_cmp_eq_u32 s35, 5\ns_cbranch_scc0 {L}\nbuffer_load_dwordx4 v[{T+4}:{T+7}], v{T+8}, s[24:27], s36 offen sc1\n{L}:")
    k(f"s_cmp_lt_u32 s35, 6\ns_cbranch_scc1 fz_l1{typ}a")
    def z1touch():
        k.srd(28, 8, 576 * 9216)
        k(f"""
        s_mul_i32 s33, s2, {3*9216}
        s_cmp_lt_u32 s2, 192
        s_cselect_b32 s33, s33, {OOB}
        s_sub_u32 s37, s{W}, 6
        s_mul_i32 s37, s37, 54
        v_add_u32 v{T+2}, s37, v{VL}
        v_mul_u32_u24 v{T+3}, 57, v{T+2}
        v_lshrrev_b32 v{T+3}, 11, v{T+3}
        v_mul_u32_u24 v{T+3}, {9216 - 36*128}, v{T+3}
        v_lshl_add_u32 v{T+2}, v{T+2}, 7, v{T+3}
        {xm((1 << 54) - 1)}
        buffer_load_dword v254, v{T+2}, s[28:31], s33 offen
        s_mov_b64 exec, -1
        """)
    def sptouch():
        k.srd(28, 46, 2048 * 4096)
        k(f"s_lshl_b32 s33, s2, 15\ns_sub_u32 s37, s{W}, 6\ns_lshl_b32 s37, s37, 10\ns_add_u32 s33, s33, s37\nv_lshrrev_b32 v{T+2}, 3, v{VL}\nv_lshlrev_b32 v{T+2}, 12, v{T+2}\nv_and_b32 v{T+3}, 7, v{VL}\nv_lshl_add_u32 v{T+2}, v{T+3}, 7, v{T+2}")
        for i in range(2): k(f"buffer_load_dword v254, v{T+2}, s[28:31], s33 offen offset:{i*2048}")
    def xswitch(w):
        k(f"s_waitcnt vmcnt({w})")
        gran_check(T + 4, T + 8, 36, True)
        k.srd(12, 4, XBYTES, add=WS_XN)
        k(f"""
        v_lshlrev_b32 v{T}, 2, v{VL}
        s_sub_u32 s33, s{W}, 6
        s_lshl_b32 s33, s33, 8
        s_add_u32 s33, s33, {ROWA}
        v_add_u32 v{T}, s33, v{T}
        ds_write_b32 v{T}, v{T+4}
        ds_write_b32 v{T}, v{T+6} offset:512
        """)
    X_ = typ == "X"
    if tp == 5:
        if X_: k(f"buffer_load_dwordx4 v[{T+4}:{T+7}], v{T+8}, s[24:27], s36 offen sc1"); z1touch(); sptouch()
        stage(True, False, 2 * n + 4 * X_); stage(True, False, n + 4 * X_)
        if X_: xswitch(3)
        stage(True, False, 3 * X_); left = 4
    else:
        if X_: z1touch(); xswitch(n + 1)
        stage(True, True, 2 * n + X_)
        if tp == 6:
            if X_: sptouch()
            stage(True, False, 2 * n + 3 * X_); stage(True, False, n + 3 * X_); left = 3
        else:
            stage(True, True, 2 * n + X_)
            if X_: sptouch()
            stage(True, False, 2 * n + 3 * X_); left = 2
    k(f"s_lshl_b32 s33, s57, 6\ns_add_u32 s33, s33, {COLP}\nv_lshlrev_b32 v{T}, 2, v{VL}\nv_add_u32 v{T}, s33, v{T}\n{xm(0xffff)}")
    for t in range(nt): k(f"ds_write_b32 v{T}, v{CA+4*t} offset:{t*256}")
    k("s_mov_b64 exec, -1\ns_waitcnt lgkmcnt(0)\ns_barrier")
    k.stamp(3)
    for _ in range(left): k("\n".join(issue()))
    tx = 2 * X_ if tp > 5 else 0
    ex = 0
    if typ == "X":
        pass
    else:
        k.srd(24, 4, XBYTES, add=WS_XN)
        k(f"""
        s_lshl_b32 s36, s{P}, 1
        s_lshr_b32 s33, s{C}, 3
        s_add_u32 s36, s36, s33          ; tp
        s_and_b32 s37, s{C}, 7           ; e
        s_lshl_b32 s33, s36, 1
        s_add_u32 s33, s33, s57
        s_mul_i32 s33, s33, {32*1152}
        s_mul_i32 s38, s37, 144
        s_add_u32 s33, s33, s38
        s_mov_b32 s38, {(1 << 16) // 9 + 1}
        s_mul_i32 s39, s57, 5120
        s_add_u32 s39, s39, {XTS}
        """)
        for i in range(5):
            k(f"""
            v_add_u32 v3, {64*i}, v{VL}
            v_mul_lo_u32 v4, v3, s38
            v_lshrrev_b32 v4, 16, v4
            v_mul_u32_u24 v5, 9, v4
            v_sub_u32 v5, v3, v5
            v_mul_u32_u24 v4, 1152, v4
            v_lshl_add_u32 v4, v5, 4, v4
            s_add_u32 m0, s39, {i*1024}
            buffer_load_dwordx4 v4, s[24:27], s33 offen sc1 lds
            """)
        k.srd(24, 4, XBYTES, add=WS_XT)
        k(f"""
        v_bfe_u32 v3, v{VL}, 2, 2
        v_lshrrev_b32 v4, 4, v{VL}
        v_lshl_add_u32 v3, v4, 3, v3     ; row = 8g + r
        v_mul_u32_u24 v3, 144, v3
        v_and_b32 v5, 3, v{VL}
        v_lshl_add_u32 v3, v5, 3, v3
        v_add_u32 v3, s39, v3
        v_and_b32 v5, 15, v{VL}
        v_lshlrev_b32 v5, 12, v5
        v_lshl_add_u32 v5, v4, 4, v5     ; d*4096 + g*16
        s_mul_i32 s39, s37, {72*4096}
        s_lshl_b32 s38, s36, 7
        s_add_u32 s39, s39, s38
        s_lshl_b32 s38, s57, 6
        s_add_u32 s39, s39, s38
        s_lshl_b32 s37, s37, 5
        s_add_u32 s36, s36, s37
        s_lshl_b32 s36, s36, 1
        s_add_u32 s36, s36, s57
        s_lshl_b32 s36, s36, 2
        s_add_u32 s36, s36, {FL_T}
        """)
        ex = 5
        xt2 = [f"s_waitcnt vmcnt({n})"]
        for dt in range(5):
            for rd in range(2): xt2.append(f"ds_read_b64_tr_b16 v[{56+4*dt+2*rd}:{57+4*dt+2*rd}], v3 offset:{4*rd*144 + dt*32}")
        xt2.append("s_waitcnt lgkmcnt(0)")
        for dt in range(5):
            if dt == 4: xt2.append(xm(0x00ff00ff00ff00ff))
            xt2.append(f"buffer_store_dwordx4 v[{56+4*dt}:{59+4*dt}], v5, s[24:27], s39 offen sc1\ns_add_u32 s39, s39, 65536")
        xt2.append("s_mov_b64 exec, -1")
    if o.get('spat') == 20:
        k(f"s_load_dwordx2 s[38:39], s[0:1], {ARG['w_sp']}\ns_lshl_b32 s33, s2, 2\ns_add_u32 s33, s33, s57\ns_lshl_b32 s33, s33, 13\ns_waitcnt lgkmcnt(0)\ns_add_u32 s38, s38, s33\ns_addc_u32 s39, s39, 0")
        for _ in range(o.get('nsm0', 12)): k(f"s_load_dword s45, s[38:39], {smem[0]*128}"); smem[0] += 1
    ka = split(kgen_addr(k, o), 4)
    pub = [f"""s_add_u32 s28, s4, {WS_ST}
    s_addc_u32 s29, s5, 0
    s_mov_b32 s30, {16*16*2048}
    s_mov_b32 s31, 0x20000
    v_and_b32 v{T}, 31, v{VL}
    v_lshlrev_b32 v{T+1}, 2, v{T}
    s_lshl_b32 s33, s57, 8
    s_add_u32 s33, s33, {WPRIV}
    v_add_u32 v{T+1}, s33, v{T+1}
    ds_read_b32 v{T+4}, v{T+1}
    ds_read_b32 v{T+6}, v{T+1} offset:128
    v_mov_b32 v{T+5}, s{NON}
    v_mov_b32 v{T+7}, s{NON}
    s_lshl_b32 s33, s{P}, 4
    s_add_u32 s33, s33, s{C}
    s_lshl_b32 s33, s33, 11
    s_lshl_b32 s53, s57, 9
    s_add_u32 s33, s33, s53
    v_lshlrev_b32 v{T}, 4, v{T}
    s_waitcnt lgkmcnt(0)
    {xm(0xffffffff)}
    buffer_store_dwordx4 v[{T+4}:{T+7}], v{T}, s[28:31], s33 offen sc1
    s_mov_b64 exec, -1"""]
    stage(False, False, 3 * n + tx + ex, pub + ka[0])
    if typ == "X":
        for i in range(3): stage(False, True, 2 * n + ex + (tx + 1 if (i == 0 and tp == 7) else 0), ka[1 + i])
    else:
        stage(False, True, 2 * n + ex, xt2 + ka[1])
        for i in range(2): stage(False, True, 2 * n, ka[2 + i])
    stage(False, True, 2 * n + tch)
    if typ == "W":
        L = k.label("xf")
        k(f"v_mov_b32 v{T}, 0\nv_mov_b32 v{T+1}, s{NON}\ns_mov_b64 exec, 1\nbuffer_store_dword v{T+1}, v{T}, s[{FLS}:{FLS+3}], s36 offen sc1\ns_mov_b64 exec, -1\n{L}:")
    stage(False, True, 2 * n + tch)
    e2 = 0
    if typ == "X":
        k.srd(28, 54, WOBYTES)
        k(f"s_mul_i32 s33, s2, {81*128}\ns_sub_u32 s37, s{W}, 6\ns_mul_i32 s37, s37, {41*128}\ns_add_u32 s33, s33, s37\nv_lshlrev_b32 v{T+2}, 7, v{VL}\n{xm((1 << 41) - 1)}\nbuffer_load_dword v254, v{T+2}, s[28:31], s33 offen\ns_mov_b64 exec, -1")
        e2 = 1
    kgen_setup(k, o)
    stage(False, False, 2 * n + tch + 14 + e2)
    Q = 56
    k.srd(24, 4, 16 * 16 * 2048, add=WS_ST)
    k(f"""
    v_and_b32 v{T}, 31, v{VL}
    v_lshlrev_b32 v{T+1}, 2, v{T}
    v_lshlrev_b32 v{T}, 4, v{T}
    v_lshrrev_b32 v{T+2}, 5, v{VL}
    v_lshl_add_u32 v{T}, v{T+2}, 14, v{T}
    s_lshl_b32 s52, s{P}, 15
    s_lshl_b32 s53, s57, 9
    s_add_u32 s52, s52, s53
    s_lshl_b32 s33, s57, 7
    s_add_u32 s33, s33, {ROWA}
    v_add_u32 v{T+1}, s33, v{T+1}
    s_mov_b32 s62, 0
    """)
    def sweep():
        for c2 in range(8): k(f"s_add_u32 s53, s52, {c2*2048}\nbuffer_load_dwordx4 v[{Q+4*c2}:{Q+3+4*c2}], v{T}, s[24:27], s53 offen sc1")
    sweep()
    stage(False, False, n + tch + 14 + 8 + e2)
    if typ == "W":
        b_setup(k)
    stage(False, False, 0)
    L = k.label("sp"); D = k.label("spd")
    k(f"{L}:\nv_xor_b32 v{T+5}, s{NON}, v{Q+1}")
    for c2 in range(8):
        for hh in range(2):
            if c2 == 0 and hh == 0: continue
            k(f"v_xor_b32 v{T+6+(c2+hh)%2}, s{NON}, v{Q+1+4*c2+2*hh}\nv_or_b32 v{T+5}, v{T+5}, v{T+6+(c2+hh)%2}")
    k(f"v_cmp_ne_u32 vcc, 0, v{T+5}\ns_cbranch_vccz {D}\ns_add_u32 s62, s62, 1\ns_cmp_ge_u32 s62, {SPIN}\ns_cbranch_scc1 {D}")
    sweep()
    k(f"s_waitcnt vmcnt(0)\ns_branch {L}\n{D}:")
    for c2 in range(1, 8): k(f"v_add_f32 v{Q}, v{Q}, v{Q+4*c2}\nv_add_f32 v{Q+2}, v{Q+2}, v{Q+2+4*c2}")
    m, v = Q, Q + 2
    k(f"""
    v_mov_b32 v{Q+1}, v{m}
    v_mov_b32 v{Q+3}, v{v}
    v_permlane32_swap_b32 v{m}, v{Q+1}
    v_permlane32_swap_b32 v{v}, v{Q+3}
    v_add_f32 v{m}, v{m}, v{Q+1}
    v_add_f32 v{v}, v{v}, v{Q+3}
    v_mul_f32 v{m}, {1.0/2304!r}, v{m}
    v_mul_f32 v{v}, {1.0/2304!r}, v{v}
    v_fma_f32 v{v}, -v{m}, v{m}, v{v}
    v_max_f32 v{v}, 0, v{v}
    """)
    ln_finish(k, m, v)
    k(f"v_mul_f32 v{m}, -v{m}, v{v}\nds_write_b32 v{T+1}, v{m}\nds_write_b32 v{T+1}, v{v} offset:512")
    if typ == "W":
        L = k.label("b0"); k(f"s_cmp_lg_u32 s{W}, 5\ns_cbranch_scc1 {L}")
        for j in range(16): k(f"s_mov_b32 m0, {18432 + j*1024}\nbuffer_load_dwordx4 v{220+j}, s[12:15], s40 offen lds")
        advk(k, 128)
        k(f"s_waitcnt lgkmcnt(0)\ns_barrier\ns_branch fz_ld5\n{L}:")
    k("s_waitcnt lgkmcnt(0)\ns_barrier")
    k.stamp(6)
    k("s_branch fz_loader")

def p1_consumer(k, o):
    A2, A1 = 0, 72
    FX, FY = 144, 188
    VX0, VX1, VW, VX0b, VX1b, VWb = 232, 233, 234, 235, 236, 237
    NMR, RR = 238, 240
    VC1, VONE = 242, 244
    V16 = 246; VPG, VPR = 247, 248
    k(f"s_lshl_b32 s30, s2, 2\ns_add_u32 s30, s30, s{W}")
    p1_addr(k, VX0b, VX1b, VWb, W)
    k(f"""
    v_add_u32 v{VX0}, {2*SLOT}, v{VX0b}
    v_add_u32 v{VX1}, {2*SLOT}, v{VX1b}
    v_add_u32 v{VW}, {2*SLOT}, v{VWb}
    s_mov_b32 s56, {fbits(C2)}
    s_mov_b32 s57, {fbits(C2)}
    v_mov_b32 v{VC1}, {fbits(C1)}
    v_mov_b32 v{VC1+1}, {fbits(C1)}
    v_mov_b32 v{VONE}, 1.0
    v_mov_b32 v{VONE+1}, 1.0
    v_lshlrev_b32 v{V16}, 4, v{VL}
    s_lshl_b32 s33, s{W}, 8
    s_add_u32 s33, s33, {WPRIV}
    v_lshrrev_b32 v3, 4, v{VL}
    v_lshlrev_b32 v3, 4, v3
    v_add_u32 v{VPG}, s33, v3
    v_and_b32 v3, 31, v{VL}
    v_lshlrev_b32 v3, 2, v3
    v_add_u32 v{VPR}, s33, v3
    s_setprio {o.get('prio1', 2)}
    """)
    if o.get('touch', 1):
        k(f"""
        v_mul_u32_u24 v3, 43, v{VL}
        v_lshrrev_b32 v3, 8, v3
        v_mul_u32_u24 v4, 6, v3
        v_sub_u32 v4, v{VL}, v4
        s_lshl_b32 s31, s30, 1
        v_add_u32 v3, s31, v3
        v_mul_u32_u24 v3, 1152, v3
        v_lshl_add_u32 v3, v4, 7, v3
        s_mul_i32 s31, s30, 14
        v_add_u32 v7, s31, v{VL}
        v_min_u32 v7, 13823, v7
        s_mov_b32 s32, 29128
        v_mul_lo_u32 v4, v7, s32
        v_lshrrev_b32 v4, 20, v4
        v_mul_u32_u24 v5, 36, v4
        v_sub_u32 v5, v7, v5
        v_mul_u32_u24 v4, 9216, v4
        v_lshl_add_u32 v4, v5, 7, v4
        v_add_u32 v4, {192*9216 + 4608}, v4
        {xm(0xfff)}
        global_load_dword v254, v3, s[6:7] offset:384
        {xm((1 << 14) - 1)}
        global_load_dword v254, v4, s[8:9]
        s_mov_b64 exec, -1
        """)

    if o.get('p0'): k.stamp(7)
    k(f"s_waitcnt vmcnt({2 if o.get('touch', 1) else 0})")
    if o.get('p0'): k.stamp(8)
    yield
    k.srd(36, 4, 2048 * 16, add=WS_RS)
    k("s_waitcnt lgkmcnt(0)")
    def reads(F, half, st):
        sl = st % 4; hi = sl >> 1; off = (sl & 1) * SLOT
        vx = [[VX0b, VX1b], [VX0, VX1]][hi][half]; vw = [VWb, VW][hi]
        r = [f"ds_read_b128 v[{F+4*tb}:{F+4*tb+3}], v{vx} offset:{off + tb*2048}" for tb in range(2)]
        for i in range(9):
            for rd in range(2):
                b = F + 8 + 4 * i + 2 * rd
                r.append(f"ds_read_b64_tr_b16 v[{b}:{b+1}], v{vw} offset:{off + half*32*288 + rd*8*288 + i*32}")
        return r
    def mfmas(F, z2, first=False):
        out = []; ACC = A2 if z2 else A1
        for i in range(9):
            for tb in range(2):
                a = ACC + (i * 2 + tb) * 4
                wf = f"v[{F+8+4*i}:{F+8+4*i+3}]"; xf = f"v[{F+4*tb}:{F+4*tb+3}]"
                A, B = (xf, wf) if z2 else (wf, xf)
                out.append(f"v_mfma_f32_16x16x32_bf16 v[{a}:{a+3}], {A}, {B}, {'0' if first else 'v[%d:%d]' % (a, a+3)}")
        return out
    G = o.get('G', 15)
    def spread(mf_, other):
        out = []; oi = 0
        for i, x in enumerate(mf_):
            out.append(x)
            want = min(len(other), -(-(i + 1) * len(other) // G))
            while oi < want: out.append(other[oi]); oi += 1
        return out + other[oi:]
    def gemm(z2):
        s0 = 0 if z2 else 9
        if o.get('p0') and z2: k.stamp(9)
        k("s_barrier")
        k.stamp(2 if z2 else 5)
        k("\n".join(reads(FX, 0, s0)))
        k("s_waitcnt lgkmcnt(0)")
        k("\n".join(spread(mfmas(FX, z2, True), reads(FY, 1, s0))))
        for st in range(s0 + 1, s0 + 9):
            if st == 2: k("s_waitcnt vmcnt(0)"); rowgran(k, 36, 249)
            k("s_waitcnt lgkmcnt(0)\ns_barrier")
            k("\n".join(spread(mfmas(FY, z2), reads(FX, 0, st))))
            k("s_waitcnt lgkmcnt(0)")
            k("\n".join(spread(mfmas(FX, z2), reads(FY, 1, st))))
        k("s_waitcnt lgkmcnt(0)")
        k("\n".join(mfmas(FY, z2)))
    gemm(True)
    k.stamp(3)
    SU, SQ = FX, FX + 8
    CP = FX + 16
    T = 196
    PS, PQ = 212, 220
    k(f"""
    v_and_b32 v{T}, 15, v{VL}
    v_lshlrev_b32 v{T}, 2, v{T}
    v_add_u32 v{T+1}, {COLP}, v{T}
    s_lshl_b32 s33, s{W}, 7
    s_add_u32 s33, s33, {ROWA}
    v_add_u32 v{T}, s33, v{T}
    v_lshrrev_b32 v{T+2}, 4, v{VL}
    v_lshlrev_b32 v{T+2}, 4, v{T+2}
    v_add_u32 v{T+2}, s33, v{T+2}
    s_barrier
    ds_read_b128 v[{SU}:{SU+3}], v{T+2}
    ds_read_b128 v[{SU+4}:{SU+7}], v{T+2} offset:64
    ds_read_b128 v[{SQ}:{SQ+3}], v{T+2} offset:512
    ds_read_b128 v[{SQ+4}:{SQ+7}], v{T+2} offset:576
    """)
    for i in range(9): k(f"ds_read_b32 v{CP+4*i}, v{T+1} offset:{i*64}")
    k("s_waitcnt lgkmcnt(0)")
    for i in range(9):
        pairs = [A2 + (i * 2) * 4, A2 + (i * 2) * 4 + 2, A2 + (i * 2 + 1) * 4, A2 + (i * 2 + 1) * 4 + 2]
        cs = CP + 4 * i
        for n, a in enumerate(pairs): k(f"v_pk_mul_f32 v[{T+2*n}:{T+2*n+1}], v[{SU+2*n}:{SU+2*n+1}], v[{cs}:{cs+1}] op_sel_hi:[1,0]")
        for n, a in enumerate(pairs): k(f"v_pk_fma_f32 v[{a}:{a+1}], v[{a}:{a+1}], v[{SQ+2*n}:{SQ+2*n+1}], v[{T+2*n}:{T+2*n+1}]")
        gelu_group(k, pairs, T, 56, VC1, VONE)
        for n, a in enumerate(pairs):
            if i == 0: k(f"v_pk_mul_f32 v[{PQ+2*n}:{PQ+2*n+1}], v[{a}:{a+1}], v[{a}:{a+1}]\nv_mov_b32 v{PS+2*n}, v{a}\nv_mov_b32 v{PS+2*n+1}, v{a+1}")
            else: k(f"v_pk_fma_f32 v[{PQ+2*n}:{PQ+2*n+1}], v[{a}:{a+1}], v[{a}:{a+1}], v[{PQ+2*n}:{PQ+2*n+1}]\nv_pk_add_f32 v[{PS+2*n}:{PS+2*n+1}], v[{PS+2*n}:{PS+2*n+1}], v[{a}:{a+1}]")
    dpp_sum16(k, list(range(PS, PS + 16)))
    k(f"""
    {xm(0x0001000100010001)}
    ds_write_b128 v{VPG}, v[{PS}:{PS+3}]
    ds_write_b128 v{VPG}, v[{PS+4}:{PS+7}] offset:64
    ds_write_b128 v{VPG}, v[{PQ}:{PQ+3}] offset:128
    ds_write_b128 v{VPG}, v[{PQ+4}:{PQ+7}] offset:192
    s_mov_b64 exec, -1
    s_waitcnt lgkmcnt(0)
    """)
    k.stamp(4)
    gemm(False)
    k.stamp(6)
    T = 196
    SU, SQ = 148, 156
    k(f"""
    v_lshrrev_b32 v249, 4, v{VL}
    v_lshlrev_b32 v249, 4, v249
    s_lshl_b32 s33, s{W}, 7
    s_add_u32 s33, s33, {ROWA}
    v_add_u32 v249, s33, v249
    """)
    k.srd(36, 4, FRAG9, add=WS_Z2)
    k(f"""
    s_mul_i32 s32, s{C}, {9*64}
    s_lshl_b32 s33, s{P}, 2
    s_add_u32 s33, s33, s{W}         ; kb
    s_add_u32 s32, s32, s33
    s_lshl_b32 s32, s32, 10
    s_lshl_b32 s34, s{C}, 6
    s_add_u32 s34, s34, s33
    s_lshl_b32 s34, s34, 2
    s_add_u32 s34, s34, {FL_2}
    s_lshr_b32 s33, s{W}, 1
    s_mul_i32 s33, s33, {SLOT}
    s_and_b32 s53, s{W}, 1
    s_lshl_b32 s53, s53, 10
    s_add_u32 s33, s33, s53
    v_add_u32 v250, s33, v{V16}
    s_barrier
    ds_read_b128 v[{SU}:{SU+3}], v249
    ds_read_b128 v[{SU+4}:{SU+7}], v249 offset:64
    ds_read_b128 v[{SQ}:{SQ+3}], v249 offset:512
    ds_read_b128 v[{SQ+4}:{SQ+7}], v249 offset:576
    s_waitcnt lgkmcnt(0)
    """)
    k.stamp(7)
    for i in range(9):
        oo = 164 + (i % 4) * 4
        for sb in range(2):
            a = A2 + (i * 2 + sb) * 4
            for hh in range(2):
                k(f"v_pk_fma_f32 v[{a+2*hh}:{a+2*hh+1}], v[{a+2*hh}:{a+2*hh+1}], v[{SQ+4*sb+2*hh}:{SQ+4*sb+2*hh+1}], v[{SU+4*sb+2*hh}:{SU+4*sb+2*hh+1}]")
            for hh in range(2): k(f"v_cvt_pk_bf16_f32 v{oo+2*sb+hh}, v{a+2*hh}, v{a+2*hh+1}")
        k(f"v_permlane16_swap_b32 v{oo}, v{oo+2}\nv_permlane16_swap_b32 v{oo+1}, v{oo+3}")
        k(f"buffer_store_dwordx4 v[{oo}:{oo+3}], v{V16}, s[36:39], s32 offen sc1\ns_add_u32 s32, s32, 65536")
        k(f"ds_write_b128 v250, v[{oo}:{oo+3}] offset:{i*2048}")
    k.stamp(8)
    k("s_mov_b32 s48, s34\ns_branch fz_cons")

def side_issue(k, o, sb, st):
    k(f"""
    s_mul_i32 s36, s{sb}, 52429
    s_lshr_b32 s36, s36, 18
    s_mul_i32 s37, s36, 5
    s_sub_u32 s37, s{sb}, s37        ; q
    s_lshr_b32 s33, s36, 4
    s_and_b32 s35, s36, 15
    s_mul_i32 s35, s35, 144
    s_lshl_b32 s37, s37, 5
    s_add_u32 s35, s35, s37
    s_mul_i32 s35, s35, 1152
    s_mul_i32 s33, s33, 144
    s_add_u32 s35, s35, s33
    s_cmp_lt_u32 s{sb}, 640
    s_cselect_b32 s35, s35, {OOB}
    s_mov_b32 s33, {(1 << 16) // 9 + 1}
    """)
    for i in range(5):
        k(f"""
        v_add_u32 v44, {64*i}, v{VL}
        v_mul_lo_u32 v45, v44, s33
        v_lshrrev_b32 v45, 16, v45
        v_mul_u32_u24 v46, 9, v45
        v_sub_u32 v46, v44, v46
        v_mul_u32_u24 v45, 1152, v45
        v_lshl_add_u32 v45, v46, 4, v45
        s_add_u32 m0, s{st}, {i*1024}
        buffer_load_dwordx4 v45, s[24:27], s35 offen lds
        """)

def side_run(k, o, sb, st, fl):
    E = k.label("sr"); L2 = k.label("sr"); L3 = k.label("sr")
    k(f"""
    s_cmp_ge_u32 s{sb}, 640
    s_cbranch_scc1 {E}
    v_bfe_u32 v47, v{VL}, 2, 2
    v_and_b32 v48, 3, v{VL}
    v_lshrrev_b32 v51, 4, v{VL}
    v_lshl_add_u32 v47, v51, 2, v47
    v_mul_u32_u24 v47, 144, v47
    v_lshl_add_u32 v47, v48, 3, v47
    v_add_u32 v47, s{st}, v47
    """)
    for dt in range(5):
        k(f"ds_read_b64_tr_b16 v[{54+4*dt}:{55+4*dt}], v47 offset:{dt*32}")
        k(f"ds_read_b64_tr_b16 v[{56+4*dt}:{57+4*dt}], v47 offset:{dt*32 + 16*144}")
    k(f"""
    v_lshlrev_b32 v52, 4, v{VL}
    v_lshlrev_b32 v53, 3, v{VL}
    v_and_b32 v78, 7, v{VL}
    v_lshl_add_u32 v78, v51, 3, v78
    v_lshlrev_b32 v79, 4, v78
    v_lshlrev_b32 v78, 3, v78
    s_mul_i32 s36, s{sb}, 52429
    s_lshr_b32 s36, s36, 18
    s_mul_i32 s37, s36, 5
    s_sub_u32 s37, s{sb}, s37
    s_mul_i32 s33, s36, 20736
    s_mul_i32 s35, s37, 4608
    s_add_u32 s33, s33, s35
    s_add_u32 s35, s33, 4096
    s_lshl_b32 s{fl}, s36, 3
    s_add_u32 s{fl}, s{fl}, s37
    s_lshl_b32 s{fl}, s{fl}, 2
    s_add_u32 s{fl}, s{fl}, {FL_W}
    s_cmp_eq_u32 s37, 4
    s_waitcnt lgkmcnt(0)
    s_cbranch_scc1 {L2}
    """)
    for dt in range(4): k(f"buffer_store_dwordx4 v[{54+4*dt}:{57+4*dt}], v52, s[28:31], s33 offen offset:{dt*1024} sc1")
    k(xm(0x00ff00ff00ff00ff))
    k(f"buffer_store_dwordx4 v[70:73], v79, s[28:31], s35 offen sc1\ns_branch {L3}\n{L2}:")
    for dt in range(4): k(f"buffer_store_dwordx2 v[{54+4*dt}:{55+4*dt}], v53, s[28:31], s33 offen offset:{dt*512} sc1")
    k(xm(0x00ff00ff00ff00ff))
    k(f"buffer_store_dwordx2 v[70:71], v78, s[28:31], s33 offen offset:2048 sc1\n{L3}:\ns_mov_b64 exec, -1\n{E}:")

def b_setup(k):
    k(f"""
    s_load_dwordx2 s[6:7], s[0:1], {ARG['w_sp']}
    v_lshrrev_b32 v3, 3, v{VL}
    v_and_b32 v4, 7, v{VL}
    v_lshrrev_b32 v5, 4, v{VL}
    v_xor_b32 v4, v4, v5
    v_and_b32 v5, 1, v4
    v_lshlrev_b32 v5, 1, v5
    v_bfe_u32 v6, v4, 1, 1
    v_and_b32 v4, 4, v4
    v_or_b32 v4, v4, v5
    v_or_b32 v4, v4, v6
    v_lshlrev_b32 v4, 4, v4
    v_lshl_add_u32 v4, v3, 12, v4
    s_lshl_b32 s33, s{P}, 19
    v_add_u32 v4, s33, v4
    v_xor_b32 v5, 64, v4
    s_lshl_b32 s45, s{P}, 8
    s_mov_b32 s40, s45
    s_mov_b32 s44, 18432
    s_mov_b32 s41, 18432
    s_mov_b32 s43, 0
    s_mov_b32 s42, -1
    """)
    for j in range(16): k(f"v_add_u32 v{220+j}, {j*32768}, v{4 + (j & 1)}")
    k("s_waitcnt lgkmcnt(0)")
    k.srd(12, 6, 2048 * 4096)

def advk(k, kstep):
    k(f"""
    s_add_u32 s40, s40, {kstep}
    s_add_u32 s43, s43, 1
    s_cmp_eq_u32 s43, 2
    s_cselect_b32 s40, 0, s40
    s_cselect_b32 s42, s45, s42
    s_cmp_eq_u32 s40, s42
    s_cselect_b32 s33, {2*kstep}, 0
    s_add_u32 s40, s40, s33
    s_add_u32 s41, s41, {SLOT}
    s_cmp_ge_u32 s41, {SLOT*NS}
    s_cselect_b32 s41, s44, s41
    """)

def phase2(k, o):
    NST = 32
    k("fz_cons:")
    k.stamp(10)
    ACC = 0; ZR = 72; FX = 144; FY = 188
    VA, VB0, VB1, VAb, VB0b, VB1b = 232, 233, 234, 235, 236, 239
    GT = [240, 241, 246, 247, 248, 249]; VC2 = 252; BS = [253, 251]
    k(f"""
    s_load_dwordx2 s[8:9], s[0:1], {ARG['b_sp']}
    s_lshl_b32 s30, s{P}, 3
    s_lshl_b32 s31, s{W}, 1
    s_add_u32 s30, s30, s31
    s_lshl_b32 s31, s30, 4
    s_add_u32 s31, s31, s{C}
    s_mul_i32 s31, s31, 4608
    s_add_u32 s32, s31, {16*4608}
    v_and_b32 v3, 15, v{VL}
    v_lshrrev_b32 v{VB0b}, 4, v{VL}
    v_lshrrev_b32 v{VB1b}, 1, v3
    v_xor_b32 v{VB0b}, v{VB0b}, v{VB1b}
    v_lshlrev_b32 v{VB0b}, 4, v{VB0b}
    v_lshl_add_u32 v{VB0b}, v3, 7, v{VB0b}
    s_lshl_b32 s34, s{W}, 12
    s_add_u32 s34, s34, 18432
    v_add_u32 v{VB0b}, s34, v{VB0b}
    v_xor_b32 v{VB1b}, 64, v{VB0b}
    v_lshlrev_b32 v{VAb}, 4, v{VL}
    v_add_u32 v{VA}, {2*SLOT}, v{VAb}
    v_add_u32 v{VB0}, {2*SLOT}, v{VB0b}
    v_add_u32 v{VB1}, {2*SLOT}, v{VB1b}
    s_lshl_b32 s34, s30, 4
    v_add_u32 v3, s34, v3
    v_lshlrev_b32 v3, 1, v3
    v_mov_b32 v{VC2}, {fbits(C2)}
    s_waitcnt lgkmcnt(0)
    global_load_ushort v{BS[0]}, v3, s[8:9]
    global_load_ushort v{BS[1]}, v3, s[8:9] offset:32
    s_mov_b32 s34, 0
    s_setprio {o.get('prio', 2)}
    s_lshl_b32 s28, s{P}, 1
    s_lshr_b32 s10, s{W}, 1
    s_add_u32 s28, s28, s10
    s_lshl_b32 s28, s28, 4
    s_add_u32 s28, s28, s{C}
    s_lshl_b32 s28, s28, 1
    s_and_b32 s10, s{W}, 1
    s_add_u32 s28, s28, s10
    s_lshl_b32 s28, s28, 2
    s_add_u32 s28, s28, {FL_H}
    """)
    g3 = Gemm3(k, o)
    g3.pre()
    def reads(F, half, st):
        sl = st % 4; hi = sl >> 1; off = (sl & 1) * SLOT
        vb = [[VB0b, VB1b], [VB0, VB1]][hi][half]; va = [VAb, VA][hi]
        r = [f"ds_read_b128 v[{F+4*tb}:{F+4*tb+3}], v{vb} offset:{off + tb*2048}" for tb in range(2)]
        r += [f"ds_read_b128 v[{F+8+4*ft}:{F+8+4*ft+3}], v{va} offset:{off + (ft*2+half)*1024}" for ft in range(9)]
        return r
    def mfmas(F, first=False):
        return [f"v_mfma_f32_16x16x32_bf16 v[{ACC+(ft*2+tb)*4}:{ACC+(ft*2+tb)*4+3}], v[{F+8+4*ft}:{F+8+4*ft+3}], v[{F+4*tb}:{F+4*tb+3}], " + ("0" if first else f"v[{ACC+(ft*2+tb)*4}:{ACC+(ft*2+tb)*4+3}]")
                for ft in range(o.get('nft', 9)) for tb in range(2)]
    adv = [f"s_add_u32 s34, s34, {SLOT}\ns_cmp_ge_u32 s34, {SLOT*NS}\ns_cselect_b32 s34, 0, s34",
           f"v_add_u32 v{VA}, s34, v{VAb}", f"v_add_u32 v{VB0}, s34, v{VB0b}", f"v_add_u32 v{VB1}, s34, v{VB1b}"]
    def gpair(n):
        if n >= 36: return []
        a = ZR + 2 * n; t = GT[2 * (n % 3)]; u = GT[2 * (n % 3) + 1]
        return [f"v_mul_f32 v{t}, v{a}, v{a}", f"v_mul_f32 v{u}, v{a+1}, v{a+1}",
                f"v_fmaak_f32 v{t}, v{VC2}, v{t}, {fbits(C1)}", f"v_fmaak_f32 v{u}, v{VC2}, v{u}, {fbits(C1)}",
                f"v_mul_f32 v{t}, v{t}, v{a}", f"v_mul_f32 v{u}, v{u}, v{a+1}",
                f"v_exp_f32 v{t}, v{t}", f"v_exp_f32 v{u}, v{u}",
                f"v_add_f32 v{t}, 1.0, v{t}", f"v_add_f32 v{u}, 1.0, v{u}",
                f"v_rcp_f32 v{t}, v{t}", f"v_rcp_f32 v{u}, v{u}",
                f"v_mul_f32 v{a}, v{a}, v{t}", f"v_mul_f32 v{a+1}, v{a+1}, v{u}",
                f"v_cvt_pk_bf16_f32 v{a}, v{a}, v{a+1}"]
    def weave(mf, rd, fill):
        out = []; fi = 0
        for i, x in enumerate(mf):
            out.append(x)
            if i < len(rd): out.append(rd[i])
            if fi < len(fill) and i >= 2: out.append(fill[fi]); fi += 1
        return out + rd[len(mf):] + fill[fi:]
    NU = o.get('NU', 20)
    gb = o.get('gb', 0)
    allf = [x for n_ in range(36 - gb) for x in gpair(n_)]
    nh = 2 * NU; per_ = -(-len(allf) // nh)
    fl = [allf[i * per_:(i + 1) * per_] for i in range(nh)]
    def weave(mf, rd, fill):
        out = []; fi = 0; n_ = len(mf)
        for i, x in enumerate(mf):
            out.append(x)
            if i < len(rd): out.append(rd[i])
            want = (i + 1) * len(fill) // n_ if o.get('even', 1) else (i - 1 if i >= 2 else 0)
            while fi < min(want, len(fill)): out.append(fill[fi]); fi += 1
        return out + rd[len(mf):] + fill[fi:]
    k("s_barrier")
    k.stamp(11)
    bp = o.get('bp', 18)
    def stage2(st, f0, f1, extra=(), tail=()):
        k("\n".join(weave(mfmas(FY), reads(FX, 0, st), f0)))
        k("s_waitcnt lgkmcnt(0)")
        w = weave(mfmas(FX), reads(FY, 1, st) + list(extra), f1)
        idx = [i for i, x in enumerate(w) if x.startswith("v_mfma")]
        cut = len(w) if bp >= 18 else idx[bp]
        k("\n".join(w[:cut] + list(tail) + ["s_waitcnt lgkmcnt(0)", "s_barrier"] + w[cut:]))
    k("\n".join(reads(FX, 0, 0) + fl[0]))
    k("s_waitcnt lgkmcnt(0)")
    k("\n".join(weave(mfmas(FX, True), reads(FY, 1, 0), fl[1])))
    zf = f"v_mov_b32 v238, 0\nv_mov_b32 v254, s{NON}\ns_waitcnt vmcnt(2)\ns_mov_b64 exec, 1\nbuffer_store_dword v254, v238, s[{FLS}:{FLS+3}], s48 offen sc1\ns_mov_b64 exec, -1"
    if o.get('zfp', 0) == 0: k(zf); k.stamp(9)
    k("s_waitcnt lgkmcnt(0)\ns_barrier")
    assert NU % 4 == 0
    for st in range(1, NU):
        tail = [zf] if (st == 1 and o.get('zfp', 0) == 1) else []
        if st == 1 and gb:
            for n0 in range(36 - gb, 36, 3):
                g3_ = [gpair(n_) for n_ in range(n0, min(36, n0 + 3))]
                for pos in range(15): tail += [g_[pos] for g_ in g3_]
        stage2(st, fl[2 * st], fl[2 * st + 1], tail=tail)
    if o.get('p2'): k.stamp(10)
    k(f"s_mov_b32 s35, {NU}\nfz_cloop:")
    for u in range(4):
        stage2(u, [], [], extra=(["s_add_u32 s35, s35, 4", "s_cmp_lt_u32 s35, 28"] if u == 3 else []))
    k("s_cbranch_scc1 fz_cloop")
    for u in range(4):
        stage2(u, [], [], extra=([f"buffer_load_dword v238, v237, s[{FLS}:{FLS+3}], 0 offen sc1"] if u == 0 else []))
    k("\n".join(mfmas(FY)))
    k.stamp(12)
    k.srd(12, 4, FRAG9, add=WS_H)
    g3.wcheck()
    VBS = 232
    k("s_setprio 3")
    k(f"v_lshlrev_b32 v{VBS}, 16, v{BS[0]}\nv_lshlrev_b32 v{VBS+2}, 16, v{BS[1]}\nv_mov_b32 v{VBS+1}, v{VBS}\nv_mov_b32 v{VBS+3}, v{VBS+2}")
    for tb in range(2):
        b = VBS + 2 * tb
        for q in range(5):
            nt = 2 if q < 4 else 1
            oo = 144 + (tb * 5 + q) % 2 * 4
            for t in range(nt):
                a = ACC + ((2 * q + t) * 2 + tb) * 4
                for hh in range(2):
                    z = ZR + ((2 * q + t) * 2 + tb) * 4 + 2 * hh; u = 236 + 2 * ((2 * t + hh) % 3)
                    k(f"""
                    v_pk_add_f32 v[{a+2*hh}:{a+2*hh+1}], v[{a+2*hh}:{a+2*hh+1}], v[{b}:{b+1}]
                    v_lshlrev_b32 v{u}, 16, v{z}
                    v_and_b32 v{u+1}, 0xffff0000, v{z}
                    v_pk_mul_f32 v[{a+2*hh}:{a+2*hh+1}], v[{a+2*hh}:{a+2*hh+1}], v[{u}:{u+1}]
                    v_cvt_pk_bf16_f32 v{oo+t*2+hh}, v{a+2*hh}, v{a+2*hh+1}
                    """)
            if q < 4: k(f"buffer_store_dwordx4 v[{oo}:{oo+3}], v242, s[12:15], s{31+tb} offen offset:{q*1024} sc1")
            else: k(f"s_add_u32 s33, s{31+tb}, 4096\nbuffer_store_dwordx2 v[{oo}:{oo+1}], v243, s[12:15], s33 offen sc1")
    if o.get('p3'): k.stamp(2)
    k(f"v_mov_b32 v0, 0\nv_mov_b32 v1, s{NON}\ns_waitcnt vmcnt(0)\ns_mov_b64 exec, 1\nbuffer_store_dword v1, v0, s[{FLS}:{FLS+3}], s28 offen sc1\ns_mov_b64 exec, -1")
    k.stamp(13)
    k(f"s_setprio {o.get('prio4', 1)}")
    g3.wregs()
    g3.main()
    k("fz_loader:\ns_setprio 0")
    for j in range(16): k(f"v_mov_b32 v{198+j}, 0")
    def issue(n, kstep, sc, chk=False, j0=0):
        if chk:
            L = k.label("pc"); D = k.label("pd")
            k(f"""
            {L}:
            s_lshr_b32 s33, s40, 10
            s_and_b32 s33, s33, 60
            s_lshr_b64 s[48:49], s[46:47], s33
            s_and_b32 s48, s48, 15
            s_cbranch_scc0 {D}
            s_add_u32 s62, s62, 1
            s_cmp_ge_u32 s62, {SPIN}
            s_cbranch_scc1 {D}
            buffer_load_dword v200, v199, s[{FLS}:{FLS+3}], s30 offen sc1
            s_waitcnt vmcnt(0)
            v_cmp_ne_u32 s[46:47], s{NON}, v200
            s_branch {L}
            {D}:
            """)
        for j in range(0 if o.get('nodma2') else n):
            k((f"s_add_u32 m0, s41, {(j+j0)*1024}\n" if j + j0 else "s_mov_b32 m0, s41\n") + f"buffer_load_dwordx4 v{VL_(j)}, s[12:15], s40 offen {sc}lds")
        advk(k, kstep)
    VL_ = lambda j: 112 + j
    def ring(tag, n, kstep, sc, first):
        k(f"s_setprio {o.get('prioR', 3)}")
        wst_setup(k, o, 214)
        if o.get('l4', 1):
            k(f"s_mov_b32 s35, {first}\nfz_h{tag}:\ns_waitcnt vmcnt({2*n})\ns_barrier")
            issue(n, kstep, sc, tag == "A")
            k(f"s_add_u32 s35, s35, 1\ns_cmp_lt_u32 s35, 5\ns_cbranch_scc1 fz_h{tag}\ns_waitcnt vmcnt({2*n})\ns_barrier")
            n2 = n; n = n // 2
            issue(n, kstep, sc, tag == "A")
            k(f"s_waitcnt vmcnt({n2 + n})\ns_barrier")
            issue(n, kstep, sc, tag == "A")
            first = 7
        k(f"s_mov_b32 s35, {first}\nfz_l{tag}:\ns_waitcnt vmcnt({2*n})\ns_barrier")
        issue(n, kstep, sc, tag == "A")
        fv = 214
        k(f"s_cmp_eq_u32 s35, 24\ns_cbranch_scc0 fz_m{tag}\nbuffer_load_dwordx2 v[{fv}:{fv+1}], v{fv+2}, s[{FLS}:{FLS+3}], s52 offen sc1\nfz_m{tag}:")
        k(f"s_add_u32 s35, s35, 1\ns_cmp_lt_u32 s35, {NST-3}\ns_cbranch_scc1 fz_l{tag}")
        wst_check(k, o, fv=214)
        if tag == "A":
            k(f"v_mov_b32 v60, {RDY}\nv_mov_b32 v61, 0\nds_write_b32 v60, v61 offset:8\nds_write_b32 v60, v61 offset:16\ns_min_u32 s58, s58, 1000")
            ft_load(k)
            wst(k, 3); k(f"s_waitcnt vmcnt({2*n + 22})\ns_barrier")
            wst(k, 0); k(f"s_waitcnt vmcnt({n + 43})\ns_barrier\ns_waitcnt vmcnt(43) lgkmcnt(0)\ns_barrier")
        else:
            k(f"s_waitcnt vmcnt({2*n})\ns_barrier\ns_waitcnt vmcnt({n})\ns_barrier")
            wst(k, 1); wst(k, 2); k("s_waitcnt vmcnt(42)\ns_barrier")
        k("s_waitcnt vmcnt(0)\ns_barrier")
    k(f"s_cmp_ge_u32 s58, 576\ns_cbranch_scc1 fz_nk0")
    k(f"s_mov_b32 s54, {fbits(L2E_HI)}\ns_mov_b32 s55, {fbits(I2P_HI)}")
    for i in range(40): k(f"v_mov_b32 v{i}, 0")
    k("\n".join(kgen_dt()))
    if o.get('t3', 0): k(f"s_cmp_eq_u32 s{W}, 4\ns_cbranch_scc1 fz_nk0")
    kh = kgen_half(); c0 = next(i for i, x in enumerate(kh) if x.startswith('ds_')); c1 = len(kh) * o.get('k1', 50) // 100
    k("s_mov_b32 s53, 0\nfz_kg:")
    k("\n".join(kh[:c0]))
    k("s_cmp_lg_u32 s53, 0\ns_cbranch_scc1 fz_kgb\ns_barrier\nfz_kgb:")
    k("\n".join(kh[c0:c1]))
    k("s_cmp_lg_u32 s53, 0\ns_cbranch_scc1 fz_kgc\ns_barrier\nfz_kgc:")
    k("\n".join(kh[c1:]))
    k("s_cmp_eq_u32 s53, 1\ns_cbranch_scc1 fz_kg2\ns_cmp_eq_u32 s53, 0\ns_cbranch_scc1 fz_nk\ns_mov_b32 s53, 1\ns_branch fz_kg\nfz_nk0:\ns_barrier\ns_barrier\nfz_nk:")
    k.stamp(9)
    k(f"s_mov_b32 s43, 0\ns_mov_b32 s42, -1\ns_cmp_lg_u32 s{W}, 4\ns_cbranch_scc1 fz_idle")
    k.srd(12, 4, FRAG9, add=WS_Z2)
    k(f"s_lshl_b32 s45, s{P}, 12\ns_mov_b32 s40, s45\ns_mul_i32 s31, s{C}, {9*65536}\nv_lshlrev_b32 v198, 4, v{VL}\nv_add_u32 v198, s31, v198\ns_mov_b32 s44, 0\ns_mov_b32 s41, 0")
    for j in range(18): k(f"v_add_u32 v{VL_(j)}, {(j >> 1)*65536 + (j & 1)*1024}, v198")
    k(f"s_lshl_b32 s30, s{C}, 8\ns_add_u32 s30, s30, {FL_2}\nv_lshlrev_b32 v199, 2, v{VL}\ns_mov_b64 s[46:47], -1\ns_mov_b32 s62, 0")
    advk(k, 2048); advk(k, 2048)
    k.stamp(10)
    issue(18, 2048, "sc1 ", True)
    issue(18, 2048, "sc1 ", True); issue(18, 2048, "sc1 ", True)
    k.stamp(11)
    ring("A", 18, 2048, "sc1 ", 2)
    k("s_branch fz_p34")
    k("fz_ld5:\ns_setprio 0")
    VL_ = lambda j: 220 + j
    for _ in range(2): issue(16, 128, "")
    k.stamp(11)
    ring("B", 16, 128, "", 0)
    mode = o.get('cv', 1)
    if mode == 0: k("s_branch fz_fin")
    else:
        k(f"s_lshl_b32 s58, s2, 1\ns_mov_b32 s59, {CONV0}\ns_mov_b32 s57, {RDY}\ns_cmp_ge_u32 s2, 64\ns_cbranch_scc1 fz_help")
        if o.get('h3', 1): k(f"s_add_u32 s58, s2, 512\ns_mov_b32 s59, {CONV0 + 2*REG}\ns_mov_b32 s57, {RDY + 8}\ns_branch fz_help")
        else: k("s_branch fz_fin")
    k("fz_idle:")
    k(f"v_mov_b32 v44, {RDY}\nv_mov_b32 v45, 0\nds_write_b32 v44, v45\nds_write_b32 v44, v45 offset:4")
    regs = list(range(KG['WAD'], KG['WAD'] + 16)) + list(range(KG['RW'], KG['RW'] + 4)) + list(range(KG['RS'], KG['RS'] + 10))
    nch = o.get('nch', 0)
    if nch:
        for r in regs: k(f"v_add_u32 v{r}, {139264 - KTAB}, v{r}")
        k("s_barrier")
        for ch in split(kgen_half(), nch):
            k("s_barrier"); k("\n".join(ch))
        for _ in range(30 - nch): k("s_barrier")
    elif o.get('l4', 1):
        k(f"""
        s_load_dwordx2 s[6:7], s[0:1], {ARG['w_sp']}
        s_load_dwordx2 s[8:9], s[0:1], {ARG['w_out']}
        s_lshl_b32 s50, s56, 8
        s_add_u32 s50, s50, s2
        s_add_u32 s51, s2, 384
        s_cmp_ge_u32 s2, 128
        s_cselect_b32 s51, s51, 999
        s_cmp_eq_u32 s56, 0
        s_cselect_b32 s51, s51, 999
        s_lshl_b32 s52, s56, 13
        s_add_u32 s52, s52, {KTAB}
        s_mov_b32 s63, {KTAB + 16384}
        s_mov_b32 s38, {FL_BYTES}
        s_mov_b32 s39, {FL_BYTES}
        s_waitcnt lgkmcnt(0)
        """)
        k.srd(24, 8, WOBYTES)
        k.srd(28, 4, WOBYTES, add=WS_WO)
        k.srd(12, 6, 2048 * 4096)
        side_issue(k, o, 50, 52)
        k("s_cmp_ge_u32 s51, 640\ns_cbranch_scc1 fz_ns2"); side_issue(k, o, 51, 63); k("fz_ns2:")
        k("s_barrier\ns_barrier\ns_waitcnt vmcnt(0)")
        side_run(k, o, 50, 52, 38); side_run(k, o, 51, 63, 39)
        k(f"s_setprio {o.get('prioR', 3)}\ns_cmp_eq_u32 s{W}, 7\ns_cbranch_scc1 fz_h7")
        for tag, n, kstep, sc in (("6", 9, 2048, "sc1 "), ("7", 8, 128, "")):
            VL_ = lambda j: 202 + j
            if tag == "6":
                k.srd(12, 4, FRAG9, add=WS_Z2)
                k(f"s_lshl_b32 s45, s{P}, 12\ns_mul_i32 s31, s{C}, {9*65536}\nv_lshlrev_b32 v198, 4, v{VL}\nv_add_u32 v198, s31, v198\ns_mov_b32 s44, 0")
                for j in range(9): k(f"v_add_u32 v{VL_(j)}, {((j+9) >> 1)*65536 + ((j+9) & 1)*1024}, v198")
                k(f"s_lshl_b32 s30, s{C}, 8\ns_add_u32 s30, s30, {FL_2}\nv_lshlrev_b32 v199, 2, v{VL}\ns_mov_b64 s[46:47], -1\ns_mov_b32 s62, 0")
            else:
                k(f"""
                fz_h7:
                v_lshrrev_b32 v44, 3, v{VL}
                v_and_b32 v45, 7, v{VL}
                v_lshrrev_b32 v46, 4, v{VL}
                v_xor_b32 v45, v45, v46
                v_and_b32 v46, 1, v45
                v_lshlrev_b32 v46, 1, v46
                v_bfe_u32 v47, v45, 1, 1
                v_and_b32 v45, 4, v45
                v_or_b32 v45, v45, v46
                v_or_b32 v45, v45, v47
                v_lshlrev_b32 v45, 4, v45
                v_lshl_add_u32 v45, v44, 12, v45
                s_lshl_b32 s31, s{P}, 19
                v_add_u32 v44, s31, v45
                v_xor_b32 v45, 64, v44
                s_lshl_b32 s45, s{P}, 8
                s_mov_b32 s44, 18432
                """)
                for j in range(8): k(f"v_add_u32 v{VL_(j)}, {(j+8)*32768}, v{44 + (j & 1)}")
            k(f"s_mov_b32 s40, s45\ns_mov_b32 s41, s44\ns_mov_b32 s35, 0\nfz_a{tag}:")
            advk(k, kstep)
            k(f"s_add_u32 s35, s35, 1\ns_cmp_lt_u32 s35, 8\ns_cbranch_scc1 fz_a{tag}")
            k("s_barrier")
            k(f"s_mov_b32 s35, 5\nfz_r{tag}:\ns_waitcnt vmcnt({2*n})\ns_barrier")
            issue(n, kstep, sc, tag == "6", j0=n)
            k(f"s_cmp_eq_u32 s35, 8\ns_cbranch_scc0 fz_f{tag}\nv_mov_b32 v44, 0\nv_mov_b32 v45, s{NON}\ns_mov_b64 exec, 1\nbuffer_store_dword v45, v44, s[{FLS}:{FLS+3}], s38 offen sc1\nbuffer_store_dword v45, v44, s[{FLS}:{FLS+3}], s39 offen sc1\ns_mov_b64 exec, -1\nfz_f{tag}:")
            k(f"s_add_u32 s35, s35, 1\ns_cmp_lt_u32 s35, 29\ns_cbranch_scc1 fz_r{tag}")
            k(f"s_waitcnt vmcnt({2*n})\ns_barrier\ns_waitcnt vmcnt({n})\ns_barrier\ns_waitcnt vmcnt(0)")
            if tag == "6": k("s_branch fz_h9")
        k("fz_h9:")
    else:
        k(f"s_mov_b32 s35, 0\nfz_idl:\ns_barrier\ns_add_u32 s35, s35, 1\ns_cmp_lt_u32 s35, 31\ns_cbranch_scc1 fz_idl")
    ft_load(k)
    k("s_barrier\ns_barrier")
    k.stamp(12)
    k(f"s_lshl_b32 s57, s56, 2\ns_add_u32 s57, s57, {RDY}")
    k(f"s_mov_b32 s3, 0\ns_cmp_ge_u32 s2, 64\ns_cbranch_scc1 fz_k2\ns_mov_b32 s3, 1\nfz_k2:")
    k(f"s_setprio {o.get('prio3', 3)}\ns_mul_i32 s59, s56, {REG}\ns_add_u32 s59, s59, {CONV0}")
    u_load(k)
    if nch: k(f"s_cmp_lg_u32 s{W}, 4\ns_cbranch_scc1 fz_kg2")
    k(f"s_lshl_b32 s33, s56, 13\ns_add_u32 s33, s33, {KTAB - 4608}\ns_sub_u32 s33, s59, s33")
    for r in regs: k(f"v_add_u32 v{r}, s33, v{r}")
    if o.get('t3', 0): k(f"s_mov_b32 s53, 2\ns_cmp_eq_u32 s{W}, 4\ns_cbranch_scc1 fz_kg")
    k("s_mov_b32 s53, 1\ns_branch fz_kg\nfz_kg2:")
    k.stamp(8)
    conv_build(k, o)
    k.stamp(13)
    if mode:
        k("s_cmp_eq_u32 s3, 1\ns_cbranch_scc1 fz_full")
        conv_run(k, o, 0)
        k.stamp(14)
        k("s_branch fz_fin\nfz_full:")
    conv_run(k, o, 2)
    k.stamp(14)
    k("s_branch fz_fin")
    k(f"fz_p34:\ns_cmp_lt_u32 s58, 576\ns_cbranch_scc1 fz_own3")
    if mode:
        k(f"s_lshl_b32 s58, s2, 1\ns_add_u32 s58, s58, 1\ns_mov_b32 s59, {CONV0 + REG}\ns_mov_b32 s57, {RDY + 4}")
        k(f"""
        fz_help:
        s_mov_b32 s3, 0
        s_setprio 0
        v_mov_b32 v20, s57
        s_mov_b32 s62, 0
        fz_hw:
        ds_read_b32 v21, v20
        s_add_u32 s62, s62, 1
        s_waitcnt lgkmcnt(0)
        v_readfirstlane_b32 s33, v21
        s_cmp_eq_u32 s33, 1
        s_cbranch_scc1 fz_runb
        {"s_sleep %d" % o['hs'] if o.get('hs') else ""}
        s_cmp_lt_u32 s62, {SPIN*16}
        s_cbranch_scc1 fz_hw
        fz_runb:
        s_setprio {o.get('prio3', 3)}
        """)
        k.stamp(13)
        conv_run(k, o, 1)
        k.stamp(14)
    k("s_branch fz_fin\nfz_own3:")
    k(f"s_mov_b32 s57, {RDY + 8}\ns_mov_b32 s3, {0 if o.get('h3', 1) else 1}\ns_branch fz_k2")

def wst_setup(k, o, fv):
    g3map(k, 50, 51)
    k.srd(24, 4, WOBYTES, add=WS_WO)
    k(f"s_lshl_b32 s52, s51, 9\ns_add_u32 s52, s52, {FL_W}\ns_mul_i32 s63, s51, {16*20736}\nv_lshlrev_b32 v{fv+2}, 3, v{VL}\nv_lshlrev_b32 v{fv+3}, 4, v{VL}\nv_mov_b32 v{fv}, 0\nv_mov_b32 v{fv+1}, 0")
    k.wfv = fv
def wst_check(k, o, fv):
    L = k.label("w4"); D = k.label("w4d")
    k(f"""
    s_mov_b32 s62, 0
    {L}:
    v_cmp_ne_u32 vcc, s{NON}, v{fv}
    s_and_b32 vcc_lo, vcc_lo, 0x77777777
    s_and_b32 vcc_hi, vcc_hi, 0x77777777
    v_cmp_ne_u32 s[60:61], s{NON}, v{fv+1}
    s_and_b32 s60, s60, 0x33333333
    s_and_b32 s61, s61, 0x33333333
    s_or_b64 vcc, vcc, s[60:61]
    s_cbranch_scc0 {D}
    s_add_u32 s62, s62, 1
    s_cmp_ge_u32 s62, {SPIN}
    s_cbranch_scc1 {D}
    buffer_load_dwordx2 v[{fv}:{fv+1}], v{fv+2}, s[{FLS}:{FLS+3}], s52 offen sc1
    s_waitcnt vmcnt(0)
    s_branch {L}
    {D}:
    """)
def wst(k, w):
    fv = k.wfv
    k(f"s_add_u32 s48, s{C}, {w + 4}\ns_and_b32 s48, s48, 15\ns_mul_i32 s48, s48, 20736\ns_add_u32 s48, s48, s63")
    for i in range(21):
        if i == 20: k(xm(0xffff))
        k(f"s_mov_b32 m0, {WQ[w] + i*1024}\nbuffer_load_dwordx4 v{fv+3}, s[24:27], s48 offen sc1 lds\ns_add_u32 s48, s48, 1024")
    k("s_mov_b64 exec, -1")

def gen_fused(prof=False, **o):
    OPT.update(o); o['WFL'] = WFL
    k = Kern(NAME + "_kernel", 256, 512, 163840)
    k.prof = prof; k.allreal = bool(o.get('real', 0))
    if o.get('p0'):
        seen = set(); st0 = k.stamp
        def st(i, real=False):
            if i in (5, 7, 8, 9):
                key = (i, len([1 for l in k.lines if l.startswith(('fz_l1W:', 'fz_c1:'))]))
                if key in seen or any(l.startswith('fz_cons:') for l in k.lines): return
                seen.add(key)
            st0(i, real)
        k.stamp = st
    k.stamp(0, True); k.stamp(1)
    if o.get('dbgt'): k("s_memrealtime s[64:65]")
    phase0(k, o); phase2(k, o)
    k("fz_fin:")
    if o.get('dbgt'):
        k(f"""
        s_waitcnt vmcnt(0)
        s_memrealtime s[66:67]
        s_load_dwordx2 s[68:69], s[0:1], {ARG['dbg']}
        s_waitcnt lgkmcnt(0)
        s_cmp_ge_u32 s2, 8
        s_cbranch_scc1 fz_end
        s_cmp_lg_u32 s22, 0
        s_cbranch_scc1 fz_end
        s_lshl_b32 s70, s2, 3
        v_mov_b32 v0, s70
        v_mov_b32 v2, s64
        v_mov_b32 v3, s66
        s_mov_b64 exec, 1
        global_store_dwordx2 v0, v[2:3], s[68:69]
        """)
    if prof:
        k("s_waitcnt vmcnt(0)"); k.stamp(15, True)
        k.prof_dump(0, 4, W, 16)
    k("fz_end:")
    return k

def emit_single(k, path):
    from gen import header
    s = header() + f"; @launch kernel={k.name} grid=({k.grid},1,1) block=({k.block},1,1) lds={k.lds}\n"
    s += '.amdgcn_target "amdgcn-amd-amdhsa--gfx950"\n.text\n' + k.text() + '.section .rodata,"a"\n' + k.desc()
    open(path, "w").write(s)

if __name__ == "__main__":
    opts = {a.split("=")[0]: int(a.split("=")[1]) for a in sys.argv[2:] if "=" in a}
    emit_single(gen_fused(prof="prof" in sys.argv, **opts), sys.argv[1])
```

```python
import sys; sys.path.insert(0, "dev")
from cm24 import *
SLOT = 34816; NS = 4
XTL = 104448; RPL = 114688
Z1 = 160
WOFF = 16384


ROWA = 139264
COLP = ROWA + 1024
WPRIV = COLP + 2 * 768
XTS = WPRIV + 1280
assert XTS + 4 * 5120 <= 163840
KTAB = 139264
CNT = WPRIV + 1024
WFL = 163000
RPK = XTS
WS_RS = WS_ST + 0x90000
MAPS = {
 0: f"""s_and_b32 s{P}, s30, 1
    s_lshl_b32 s{P}, s{P}, 3
    s_lshr_b32 s32, s31, 2
    s_add_u32 s{P}, s{P}, s32
    s_lshr_b32 s{C}, s30, 1
    s_lshl_b32 s{C}, s{C}, 2
    s_and_b32 s32, s31, 3
    s_add_u32 s{C}, s{C}, s32""",
 1: f"""s_lshr_b32 s{P}, s30, 1
    s_lshl_b32 s{P}, s{P}, 2
    s_lshr_b32 s32, s31, 3
    s_add_u32 s{P}, s{P}, s32
    s_and_b32 s{C}, s30, 1
    s_lshl_b32 s{C}, s{C}, 3
    s_and_b32 s32, s31, 7
    s_add_u32 s{C}, s{C}, s32""",
 2: f"""s_and_b32 s{P}, s30, 1
    s_lshl_b32 s{P}, s{P}, 3
    s_and_b32 s32, s31, 7
    s_add_u32 s{P}, s{P}, s32
    s_lshr_b32 s{C}, s30, 1
    s_lshl_b32 s{C}, s{C}, 2
    s_lshr_b32 s32, s31, 3
    s_add_u32 s{C}, s{C}, s32""",
}
def phase0(k, o):
    k(f"""
    s_load_dwordx2 s[6:7], s[0:1], {ARG['x']}
    s_load_dwordx2 s[8:9], s[0:1], {ARG['w_in']}
    s_load_dwordx2 s[4:5], s[0:1], {ARG['ws']}
    s_getpc_b64 s[28:29]
    fz_pc:
    s_cmp_ge_u32 s2, 256
    s_cbranch_scc1 fz_end
    v_lshrrev_b32 v1, 6, v0
    v_and_b32 v{VL}, 63, v0
    v_readfirstlane_b32 s{W}, v1
    s_and_b32 s30, s2, 7
    s_lshr_b32 s31, s2, 3
    v_lshrrev_b32 v1, 4, v0
    v_lshl_add_u32 v1, s31, 5, v1
    v_lshlrev_b32 v1, 7, v1
    v_min_u32 v1, fz_end-fz_pc, v1
    {xm(0x0001000100010001)}
    global_load_dword v254, v1, s[28:29]
    s_mov_b64 exec, -1
    {MAPS[o.get('map', 0)]}
    s_lshl_b32 s63, s2, 3
    s_add_u32 s63, s63, s{W}
    s_mul_i32 s31, s63, 1152
    v_lshlrev_b32 v2, 4, v{VL}
    v_mov_b32 v3, {OOB}
    v_cmp_gt_u32 vcc, 36, v{VL}
    v_cndmask_b32 v2, v3, v2, vcc
    s_waitcnt lgkmcnt(0)
    """)
    k.srd(12, 6, XBYTES)
    k(f"""
    buffer_load_dwordx4 v[8:11], v2, s[12:15], s31 offen
    buffer_load_dwordx4 v[12:15], v2, s[12:15], s31 offen offset:576
    s_add_u32 s10, s4, {WS_FL}
    s_addc_u32 s11, s5, 0
    s_load_dword s{NON}, s[10:11], 0
    s_cmp_lt_u32 s{W}, 4
    s_cbranch_scc1 fz_c0
    s_cmp_lt_u32 s{W}, 6
    s_cbranch_scc1 fz_w0
    """)
    LX = p1_loader(k, o, "X"); next(LX)
    k("s_mov_b32 s3, 2\ns_branch fz_ln\nfz_w0:")
    LW = p1_loader(k, o, "W"); next(LW)
    k("s_mov_b32 s3, 1\ns_branch fz_ln\nfz_c0:")
    CC = p1_consumer(k, o); next(CC)
    k("s_mov_b32 s3, 0\nfz_ln:")
    ln1(k, o)
    k(f"s_cmp_eq_u32 s3, 0\ns_cbranch_scc1 fz_c1\ns_cmp_eq_u32 s3, 1\ns_cbranch_scc1 fz_l1W")
    next(LX, None)
    k("fz_l1W:")
    next(LW, None)
    k("fz_c1:")
    next(CC, None)

def ln1(k, o):
    X = 16; S = 112
    k.srd(FLS, 4, FL_BYTES, add=WS_FL)
    k(f"v_cmp_gt_u32 vcc, 36, v{VL}")
    for i in range(8): k(f"v_lshlrev_b32 v{X+2*i}, 16, v{8+i}\nv_and_b32 v{X+2*i+1}, 0xffff0000, v{8+i}")
    k(f"v_pk_add_f32 v[{S}:{S+1}], v[{X}:{X+1}], v[{X+2}:{X+3}]\nv_pk_add_f32 v[{S+2}:{S+3}], v[{X+4}:{X+5}], v[{X+6}:{X+7}]")
    for i in range(4, 8): k(f"v_pk_add_f32 v[{S+2*(i&1)}:{S+2*(i&1)+1}], v[{S+2*(i&1)}:{S+2*(i&1)+1}], v[{X+2*i}:{X+2*i+1}]")
    k(f"v_pk_add_f32 v[{S}:{S+1}], v[{S}:{S+1}], v[{S+2}:{S+3}]\nv_add_f32 v{S}, v{S}, v{S+1}")
    dpp_sum16(k, [S]); xsum_rows(k, S, S + 1)
    k(f"v_mul_f32 v{S}, {1.0/576!r}, v{S}\nv_cndmask_b32 v{S+6}, 0, v{S}, vcc")
    for i in range(8):
        t = 32 + 2 * i
        k(f"v_pk_add_f32 v[{t}:{t+1}], v[{X+2*i}:{X+2*i+1}], v[{S+6}:{S+7}] op_sel_hi:[1,0] neg_lo:[0,1] neg_hi:[0,1]")
    for i in range(8):
        t = 32 + 2 * i; q = S + 2 + 2 * (i & 1)
        if i < 2: k(f"v_pk_mul_f32 v[{q}:{q+1}], v[{t}:{t+1}], v[{t}:{t+1}]")
        else: k(f"v_pk_fma_f32 v[{q}:{q+1}], v[{t}:{t+1}], v[{t}:{t+1}], v[{q}:{q+1}]")
    k(f"v_pk_add_f32 v[{S+2}:{S+3}], v[{S+2}:{S+3}], v[{S+4}:{S+5}]\nv_add_f32 v{S+2}, v{S+2}, v{S+3}")
    dpp_sum16(k, [S + 2]); xsum_rows(k, S + 2, S + 3)
    k(f"v_mul_f32 v{S+2}, {1.0/576!r}, v{S+2}")
    k.srd(36, 4, XBYTES, add=WS_XN)
    k(f"s_waitcnt lgkmcnt(0)\ns_mul_i32 s{NON}, s{NON}, 0x9E3779B1\ns_add_u32 s{NON}, s{NON}, 0x7F4A7C15\ns_mul_i32 s31, s63, 1152")
    ln_finish(k, S, S + 2)
    k(f"v_mul_f32 v{S}, -v{S}, v{S+2}")
    for i in range(8): k(f"v_pk_fma_f32 v[{X+2*i}:{X+2*i+1}], v[{X+2*i}:{X+2*i+1}], v[{S+2}:{S+3}], v[{S}:{S+1}] op_sel_hi:[1,0,0]")
    for i in range(8): k(f"v_cvt_pk_bf16_f32 v{8+i}, v{X+2*i}, v{X+2*i+1}")
    k(f"""
    buffer_store_dwordx4 v[8:11], v2, s[36:39], s31 offen sc1
    buffer_store_dwordx4 v[12:15], v2, s[36:39], s31 offen offset:576 sc1
    v_mov_b32 v{S+1}, s{NON}
    v_mov_b32 v{S+3}, s{NON}
    s_lshl_b32 s63, s63, 4
    """)

def rowgran(k, srd, vz):
    k(f"v_mov_b32 v{vz}, 0\ns_mov_b64 exec, 1\nbuffer_store_dwordx4 v[112:115], v{vz}, s[{srd}:{srd+3}], s63 offen sc1\ns_mov_b64 exec, -1")

def get_nonce(k):
    k(f"s_add_u32 s10, s4, {WS_FL}\ns_addc_u32 s11, s5, 0\ns_load_dword s{NON}, s[10:11], 0")
    k.srd(FLS, 4, FL_BYTES, add=WS_FL)
def fin_nonce(k):
    k(f"s_waitcnt lgkmcnt(0)\ns_mul_i32 s{NON}, s{NON}, 0x9E3779B1\ns_add_u32 s{NON}, s{NON}, 0x7F4A7C15")

def p1_addr(k, VX0b, VX1b, VWb, tq_s):
    k(f"""
    v_and_b32 v3, 15, v{VL}
    v_lshrrev_b32 v4, 4, v{VL}
    v_lshrrev_b32 v5, 1, v3
    v_xor_b32 v5, v5, v4
    v_lshlrev_b32 v5, 4, v5
    v_lshl_add_u32 v5, v3, 7, v5
    s_lshl_b32 s32, s{tq_s}, 12
    v_add_u32 v{VX0b}, s32, v5
    v_xor_b32 v{VX1b}, 64, v{VX0b}
    v_bfe_u32 v5, v{VL}, 2, 2
    v_and_b32 v6, 1, v4
    v_lshl_add_u32 v5, v6, 2, v5
    v_lshrrev_b32 v6, 1, v4
    v_lshl_add_u32 v5, v6, 4, v5
    v_mul_u32_u24 v5, 288, v5
    v_and_b32 v6, 3, v{VL}
    v_lshl_add_u32 v5, v6, 3, v5
    v_add_u32 v{VWb}, {WOFF}, v5
    """)

def p1_loader(k, o, typ):
    VD = 200; n = 8 if typ == "X" else 9
    k(f"s_sub_u32 s57, s{W}, 4      ; lw\ns_setprio {o.get('prioL', 3)}")
    if typ == "X":
        k(f"""
        v_lshrrev_b32 v3, 3, v{VL}
        v_and_b32 v4, 7, v{VL}
        v_lshrrev_b32 v5, 4, v{VL}
        v_xor_b32 v4, v4, v5
        v_mul_u32_u24 v3, 1152, v3
        v_lshl_add_u32 v3, v4, 4, v3
        v_xor_b32 v4, 64, v3
        s_sub_u32 s31, s{W}, 6
        s_lshl_b32 s30, s{P}, 7
        s_lshl_b32 s32, s31, 6
        s_add_u32 s30, s30, s32
        s_mul_i32 s30, s30, 1152
        s_lshl_b32 s44, s31, 13
        """)
        k("s_mov_b32 s40, 0")
        for j in range(8):
            k(f"v_add_u32 v{VD+j}, s30, v{3 + (j & 1)}\ns_add_u32 s30, s30, {8*1152}\ns_add_u32 m0, s44, {j*1024}\nbuffer_load_dwordx4 v{VD+j}, s[12:15], s40 offen lds")
        kstep, k0 = 128, 0
    else:
        k(f"s_mul_i32 s32, s{C}, 288\ns_mov_b32 s33, 3641\ns_mul_i32 s31, s57, {9*64}\ns_mul_i32 s44, s57, {9*1024}\ns_add_u32 s44, s44, {WOFF}\nv_add_u32 v1, s31, v{VL}")
        k("s_mov_b32 s40, 4608")
        k.srd(12, 8, 576 * 9216)
        for j in range(9):
            k(f"""
            v_add_u32 v3, {64*j}, v1
            v_mul_lo_u32 v4, v3, s33
            v_lshrrev_b32 v4, 16, v4
            v_mul_u32_u24 v5, 18, v4
            v_sub_u32 v5, v3, v5
            v_and_b32 v6, 0x33, v4
            v_bfe_u32 v7, v4, 2, 1
            v_lshl_or_b32 v6, v7, 3, v6
            v_bfe_u32 v7, v4, 3, 1
            v_lshl_or_b32 v6, v7, 2, v6
            v_mul_u32_u24 v6, 9216, v6
            v_lshl_add_u32 v6, v5, 4, v6
            v_add_u32 v{VD+j}, s32, v6
            s_add_u32 m0, s44, {j*1024}
            buffer_load_dwordx4 v{VD+j}, s[12:15], s40 offen lds
            """)
        kstep = 64 * 9216
    k("s_mov_b32 s41, s44\ns_mov_b32 s43, 0")
    tch = 0
    TV = 209
    def issue(touch=True):
        L = []
        for j in range(8 if typ == 'X' else 9):
            L.append((f"s_add_u32 m0, s41, {j*1024}\n" if j else "s_mov_b32 m0, s41\n") + f"buffer_load_dwordx4 v{VD+j}, s[12:15], s40 offen {'sc1 ' if typ == 'X' else ''}lds")
        if tch and touch: L.append(f"s_cmp_lt_u32 s49, s51\ns_cselect_b32 s52, s49, {OOB}\nbuffer_load_dword v254, v{TV}, s[28:31], s52 offen\ns_add_u32 s49, s49, s50")
        L.append(f"s_add_u32 s40, s40, {kstep}\ns_add_u32 s41, s41, {SLOT}\ns_cmp_ge_u32 s41, {SLOT*NS}\ns_cselect_b32 s41, s44, s41")
        L.append(f"s_add_u32 s43, s43, 1\ns_cmp_eq_u32 s43, 9\ns_cselect_b32 s40, 0, s40")
        return L
    k("\n".join(issue(False)[n:]))
    k("\n".join(issue(False)))
    if o.get('p0'): k.stamp(5)
    pe = o.get('pe', 0)
    pb = o.get('pb', 2)
    for _ in range(pb - 2): k("\n".join(issue(False)))
    k(f"s_waitcnt vmcnt({pb*n})")
    yield
    for _ in range(pe): k("\n".join(issue(False)))
    if typ == "X": k(f"s_load_dwordx2 s[46:47], s[0:1], {ARG['w_sp']}\ns_load_dwordx2 s[54:55], s[0:1], {ARG['w_out']}")
    n0 = n; n = n + tch
    VX0, VX1, VW, VX0b, VX1b, VWb = 210, 211, 212, 213, 214, 215
    p1_addr(k, VX0b, VX1b, VWb, 57)
    CA = 44
    WF = 56
    ON = 108
    T = 116
    for i in range(4): k(f"v_mov_b32 v{ON+i}, 0x3f803f80")
    for i in range(12): k(f"v_mov_b32 v{CA+i}, 0")
    k(f"s_lshl_b32 s36, s57, 5\nv_add_u32 v{VWb}, s36, v{VWb}\nv_mov_b32 v{VW}, v{VWb}\ns_mov_b32 s34, 0\ns_mov_b32 s35, 0")
    k.srd(24, 4, 2048 * 16, add=WS_RS)
    k(f"s_lshl_b32 s36, s{P}, 7\ns_and_b32 s37, s57, 1\ns_lshl_b32 s37, s37, 6\ns_add_u32 s36, s36, s37\ns_lshl_b32 s36, s36, 4\nv_lshlrev_b32 v{T+8}, 4, v{VL}")
    k(f"""
    s_sub_u32 s56, 7, s{W}
    s_lshr_b32 s58, s56, 1
    s_xor_b32 s56, s56, s58
    s_lshl_b32 s58, s2, 1
    s_add_u32 s58, s58, s56
    s_add_u32 s59, s2, 512
    s_cmp_eq_u32 s56, 2
    s_cselect_b32 s58, s59, s58
    s_cmp_eq_u32 s56, 3
    s_cselect_b32 s58, 1000, s58
    s_lshl_b32 s59, s56, 13
    s_add_u32 s59, s59, {KTAB}
    """)
    adv = f"s_add_u32 s34, s34, {SLOT}\ns_cmp_ge_u32 s34, {SLOT*NS}\ns_cselect_b32 s34, 0, s34\nv_add_u32 v{VW}, s34, v{VWb}"
    nt = 3 if typ == "W" else 2
    smem = [0]
    def stage(z2, do_issue, wait, fill=None, twice=False):
        k(f"s_waitcnt vmcnt({wait}){' lgkmcnt(0)' if z2 else ''}\ns_barrier")
        if not z2 and o.get('spat') == 20:
            for _ in range(o.get('nsm', 11)):
                if smem[0] < 64: k(f"s_load_dword s45, s[38:39], {smem[0]*128}"); smem[0] += 1
        rd_ = []; mf = []
        if z2:
            for hf in range(2):
                for t in range(nt):
                    f = WF + (hf * 3 + t) * 4
                    for rd in range(2): rd_.append(f"ds_read_b64_tr_b16 v[{f+2*rd}:{f+2*rd+1}], v{VW} offset:{hf*32*288 + rd*8*288 + t*128}")
                    mf.append(f"v_mfma_f32_16x16x32_bf16 v[{CA+4*t}:{CA+4*t+3}], v[{ON}:{ON+3}], v[{f}:{f+3}], v[{CA+4*t}:{CA+4*t+3}]")
        dm = issue() if do_issue else []
        if twice: dm = dm + issue()
        if z2:
            k("\n".join(rd_ + dm[:2]))
            k("s_waitcnt lgkmcnt(0)")
            k("\n".join(front(dm[2:], mf)))
            k(adv)
        else: k("\n".join(dm))
        if fill: k("\n".join(fill))
        k("s_add_u32 s35, s35, 1")
    def gran_check(vd, va, so, full):
        L = k.label("rp"); D = k.label("rd")
        k(f"""
        s_mov_b32 s62, 0
        {"" if full else xm(0xffffffff)}
        {L}:
        v_cmp_ne_u32 vcc, s{NON}, v{vd+1}
        v_cmp_ne_u32 s[60:61], s{NON}, v{vd+3}
        s_or_b64 vcc, vcc, s[60:61]
        s_cbranch_vccz {D}
        s_add_u32 s62, s62, 1
        s_cmp_ge_u32 s62, {SPIN}
        s_cbranch_scc1 {D}
        buffer_load_dwordx4 v[{vd}:{vd+3}], v{va}, s[24:27], s{so} offen sc1
        s_waitcnt vmcnt(0)
        s_branch {L}
        {D}:
        """)
    if o.get('p0'):
        k.stamp(7); k(f"s_waitcnt vmcnt({n0 + 2})"); k.stamp(8)
    tot_ = pb + pe
    stage(True, tot_ < 4, (tot_ - 1) * n0 + 2, twice=(tot_ == 2))
    k(f"fz_l1{typ}a:")
    stage(True, True, 2 * n0)
    L = k.label("gr"); k(f"s_cmp_eq_u32 s35, 2\ns_cbranch_scc0 {L}"); rowgran(k, 24, T); k(f"{L}:")
    tp = o.get('tp', 6)
    if typ == "X" and tp > 5:
        L = k.label("rg")
        k(f"s_cmp_eq_u32 s35, 5\ns_cbranch_scc0 {L}\nbuffer_load_dwordx4 v[{T+4}:{T+7}], v{T+8}, s[24:27], s36 offen sc1\n{L}:")
    k(f"s_cmp_lt_u32 s35, 6\ns_cbranch_scc1 fz_l1{typ}a")
    def z1touch():
        k.srd(28, 8, 576 * 9216)
        k(f"""
        s_mul_i32 s33, s2, {3*9216}
        s_cmp_lt_u32 s2, 192
        s_cselect_b32 s33, s33, {OOB}
        s_sub_u32 s37, s{W}, 6
        s_mul_i32 s37, s37, 54
        v_add_u32 v{T+2}, s37, v{VL}
        v_mul_u32_u24 v{T+3}, 57, v{T+2}
        v_lshrrev_b32 v{T+3}, 11, v{T+3}
        v_mul_u32_u24 v{T+3}, {9216 - 36*128}, v{T+3}
        v_lshl_add_u32 v{T+2}, v{T+2}, 7, v{T+3}
        {xm((1 << 54) - 1)}
        buffer_load_dword v254, v{T+2}, s[28:31], s33 offen
        s_mov_b64 exec, -1
        """)
    def sptouch():
        k.srd(28, 46, 2048 * 4096)
        k(f"s_lshl_b32 s33, s2, 15\ns_sub_u32 s37, s{W}, 6\ns_lshl_b32 s37, s37, 10\ns_add_u32 s33, s33, s37\nv_lshrrev_b32 v{T+2}, 3, v{VL}\nv_lshlrev_b32 v{T+2}, 12, v{T+2}\nv_and_b32 v{T+3}, 7, v{VL}\nv_lshl_add_u32 v{T+2}, v{T+3}, 7, v{T+2}")
        for i in range(2): k(f"buffer_load_dword v254, v{T+2}, s[28:31], s33 offen offset:{i*2048}")
    def xswitch(w):
        k(f"s_waitcnt vmcnt({w})")
        gran_check(T + 4, T + 8, 36, True)
        k.srd(12, 4, XBYTES, add=WS_XN)
        k(f"""
        v_lshlrev_b32 v{T}, 2, v{VL}
        s_sub_u32 s33, s{W}, 6
        s_lshl_b32 s33, s33, 8
        s_add_u32 s33, s33, {ROWA}
        v_add_u32 v{T}, s33, v{T}
        ds_write_b32 v{T}, v{T+4}
        ds_write_b32 v{T}, v{T+6} offset:512
        """)
    X_ = typ == "X"
    if tp == 5:
        if X_: k(f"buffer_load_dwordx4 v[{T+4}:{T+7}], v{T+8}, s[24:27], s36 offen sc1"); z1touch(); sptouch()
        stage(True, False, 2 * n + 4 * X_); stage(True, False, n + 4 * X_)
        if X_: xswitch(3)
        stage(True, False, 3 * X_); left = 4
    else:
        if X_: z1touch(); xswitch(n + 1)
        stage(True, True, 2 * n + X_)
        if tp == 6:
            if X_: sptouch()
            stage(True, False, 2 * n + 3 * X_); stage(True, False, n + 3 * X_); left = 3
        else:
            stage(True, True, 2 * n + X_)
            if X_: sptouch()
            stage(True, False, 2 * n + 3 * X_); left = 2
    k(f"s_lshl_b32 s33, s57, 6\ns_add_u32 s33, s33, {COLP}\nv_lshlrev_b32 v{T}, 2, v{VL}\nv_add_u32 v{T}, s33, v{T}\n{xm(0xffff)}")
    for t in range(nt): k(f"ds_write_b32 v{T}, v{CA+4*t} offset:{t*256}")
    k("s_mov_b64 exec, -1\ns_waitcnt lgkmcnt(0)\ns_barrier")
    k.stamp(3)
    for _ in range(left): k("\n".join(issue()))
    tx = 2 * X_ if tp > 5 else 0
    ex = 0
    if typ == "X":
        pass
    else:
        k.srd(24, 4, XBYTES, add=WS_XN)
        k(f"""
        s_lshl_b32 s36, s{P}, 1
        s_lshr_b32 s33, s{C}, 3
        s_add_u32 s36, s36, s33          ; tp
        s_and_b32 s37, s{C}, 7           ; e
        s_lshl_b32 s33, s36, 1
        s_add_u32 s33, s33, s57
        s_mul_i32 s33, s33, {32*1152}
        s_mul_i32 s38, s37, 144
        s_add_u32 s33, s33, s38
        s_mov_b32 s38, {(1 << 16) // 9 + 1}
        s_mul_i32 s39, s57, 5120
        s_add_u32 s39, s39, {XTS}
        """)
        for i in range(5):
            k(f"""
            v_add_u32 v3, {64*i}, v{VL}
            v_mul_lo_u32 v4, v3, s38
            v_lshrrev_b32 v4, 16, v4
            v_mul_u32_u24 v5, 9, v4
            v_sub_u32 v5, v3, v5
            v_mul_u32_u24 v4, 1152, v4
            v_lshl_add_u32 v4, v5, 4, v4
            s_add_u32 m0, s39, {i*1024}
            buffer_load_dwordx4 v4, s[24:27], s33 offen sc1 lds
            """)
        k.srd(24, 4, XBYTES, add=WS_XT)
        k(f"""
        v_bfe_u32 v3, v{VL}, 2, 2
        v_lshrrev_b32 v4, 4, v{VL}
        v_lshl_add_u32 v3, v4, 3, v3     ; row = 8g + r
        v_mul_u32_u24 v3, 144, v3
        v_and_b32 v5, 3, v{VL}
        v_lshl_add_u32 v3, v5, 3, v3
        v_add_u32 v3, s39, v3
        v_and_b32 v5, 15, v{VL}
        v_lshlrev_b32 v5, 12, v5
        v_lshl_add_u32 v5, v4, 4, v5     ; d*4096 + g*16
        s_mul_i32 s39, s37, {72*4096}
        s_lshl_b32 s38, s36, 7
        s_add_u32 s39, s39, s38
        s_lshl_b32 s38, s57, 6
        s_add_u32 s39, s39, s38
        s_lshl_b32 s37, s37, 5
        s_add_u32 s36, s36, s37
        s_lshl_b32 s36, s36, 1
        s_add_u32 s36, s36, s57
        s_lshl_b32 s36, s36, 2
        s_add_u32 s36, s36, {FL_T}
        """)
        ex = 5
        xt2 = [f"s_waitcnt vmcnt({n})"]
        for dt in range(5):
            for rd in range(2): xt2.append(f"ds_read_b64_tr_b16 v[{56+4*dt+2*rd}:{57+4*dt+2*rd}], v3 offset:{4*rd*144 + dt*32}")
        xt2.append("s_waitcnt lgkmcnt(0)")
        for dt in range(5):
            if dt == 4: xt2.append(xm(0x00ff00ff00ff00ff))
            xt2.append(f"buffer_store_dwordx4 v[{56+4*dt}:{59+4*dt}], v5, s[24:27], s39 offen sc1\ns_add_u32 s39, s39, 65536")
        xt2.append("s_mov_b64 exec, -1")
    if o.get('spat') == 20:
        k(f"s_load_dwordx2 s[38:39], s[0:1], {ARG['w_sp']}\ns_lshl_b32 s33, s2, 2\ns_add_u32 s33, s33, s57\ns_lshl_b32 s33, s33, 13\ns_waitcnt lgkmcnt(0)\ns_add_u32 s38, s38, s33\ns_addc_u32 s39, s39, 0")
        for _ in range(o.get('nsm0', 12)): k(f"s_load_dword s45, s[38:39], {smem[0]*128}"); smem[0] += 1
    ka = split(kgen_addr(k, o), 4)
    pub = [f"""s_add_u32 s28, s4, {WS_ST}
    s_addc_u32 s29, s5, 0
    s_mov_b32 s30, {16*16*2048}
    s_mov_b32 s31, 0x20000
    v_and_b32 v{T}, 31, v{VL}
    v_lshlrev_b32 v{T+1}, 2, v{T}
    s_lshl_b32 s33, s57, 8
    s_add_u32 s33, s33, {WPRIV}
    v_add_u32 v{T+1}, s33, v{T+1}
    ds_read_b32 v{T+4}, v{T+1}
    ds_read_b32 v{T+6}, v{T+1} offset:128
    v_mov_b32 v{T+5}, s{NON}
    v_mov_b32 v{T+7}, s{NON}
    s_lshl_b32 s33, s{P}, 4
    s_add_u32 s33, s33, s{C}
    s_lshl_b32 s33, s33, 11
    s_lshl_b32 s53, s57, 9
    s_add_u32 s33, s33, s53
    v_lshlrev_b32 v{T}, 4, v{T}
    s_waitcnt lgkmcnt(0)
    {xm(0xffffffff)}
    buffer_store_dwordx4 v[{T+4}:{T+7}], v{T}, s[28:31], s33 offen sc1
    s_mov_b64 exec, -1"""]
    stage(False, False, 3 * n + tx + ex, pub + ka[0])
    if typ == "X":
        for i in range(3): stage(False, True, 2 * n + ex + (tx + 1 if (i == 0 and tp == 7) else 0), ka[1 + i])
    else:
        stage(False, True, 2 * n + ex, xt2 + ka[1])
        for i in range(2): stage(False, True, 2 * n, ka[2 + i])
    stage(False, True, 2 * n + tch)
    if typ == "W":
        L = k.label("xf")
        k(f"v_mov_b32 v{T}, 0\nv_mov_b32 v{T+1}, s{NON}\ns_mov_b64 exec, 1\nbuffer_store_dword v{T+1}, v{T}, s[{FLS}:{FLS+3}], s36 offen sc1\ns_mov_b64 exec, -1\n{L}:")
    stage(False, True, 2 * n + tch)
    e2 = 0
    if typ == "X":
        k.srd(28, 54, WOBYTES)
        k(f"s_mul_i32 s33, s2, {81*128}\ns_sub_u32 s37, s{W}, 6\ns_mul_i32 s37, s37, {41*128}\ns_add_u32 s33, s33, s37\nv_lshlrev_b32 v{T+2}, 7, v{VL}\n{xm((1 << 41) - 1)}\nbuffer_load_dword v254, v{T+2}, s[28:31], s33 offen\ns_mov_b64 exec, -1")
        e2 = 1
    kgen_setup(k, o)
    stage(False, False, 2 * n + tch + 14 + e2)
    Q = 56
    k.srd(24, 4, 16 * 16 * 2048, add=WS_ST)
    k(f"""
    v_and_b32 v{T}, 31, v{VL}
    v_lshlrev_b32 v{T+1}, 2, v{T}
    v_lshlrev_b32 v{T}, 4, v{T}
    v_lshrrev_b32 v{T+2}, 5, v{VL}
    v_lshl_add_u32 v{T}, v{T+2}, 14, v{T}
    s_lshl_b32 s52, s{P}, 15
    s_lshl_b32 s53, s57, 9
    s_add_u32 s52, s52, s53
    s_lshl_b32 s33, s57, 7
    s_add_u32 s33, s33, {ROWA}
    v_add_u32 v{T+1}, s33, v{T+1}
    s_mov_b32 s62, 0
    """)
    def sweep():
        for c2 in range(8): k(f"s_add_u32 s53, s52, {c2*2048}\nbuffer_load_dwordx4 v[{Q+4*c2}:{Q+3+4*c2}], v{T}, s[24:27], s53 offen sc1")
    sweep()
    stage(False, False, n + tch + 14 + 8 + e2)
    if typ == "W":
        b_setup(k)
    stage(False, False, 0)
    L = k.label("sp"); D = k.label("spd")
    k(f"{L}:\nv_xor_b32 v{T+5}, s{NON}, v{Q+1}")
    for c2 in range(8):
        for hh in range(2):
            if c2 == 0 and hh == 0: continue
            k(f"v_xor_b32 v{T+6+(c2+hh)%2}, s{NON}, v{Q+1+4*c2+2*hh}\nv_or_b32 v{T+5}, v{T+5}, v{T+6+(c2+hh)%2}")
    k(f"v_cmp_ne_u32 vcc, 0, v{T+5}\ns_cbranch_vccz {D}\ns_add_u32 s62, s62, 1\ns_cmp_ge_u32 s62, {SPIN}\ns_cbranch_scc1 {D}")
    sweep()
    k(f"s_waitcnt vmcnt(0)\ns_branch {L}\n{D}:")
    for c2 in range(1, 8): k(f"v_add_f32 v{Q}, v{Q}, v{Q+4*c2}\nv_add_f32 v{Q+2}, v{Q+2}, v{Q+2+4*c2}")
    m, v = Q, Q + 2
    k(f"""
    v_mov_b32 v{Q+1}, v{m}
    v_mov_b32 v{Q+3}, v{v}
    v_permlane32_swap_b32 v{m}, v{Q+1}
    v_permlane32_swap_b32 v{v}, v{Q+3}
    v_add_f32 v{m}, v{m}, v{Q+1}
    v_add_f32 v{v}, v{v}, v{Q+3}
    v_mul_f32 v{m}, {1.0/2304!r}, v{m}
    v_mul_f32 v{v}, {1.0/2304!r}, v{v}
    v_fma_f32 v{v}, -v{m}, v{m}, v{v}
    v_max_f32 v{v}, 0, v{v}
    """)
    ln_finish(k, m, v)
    k(f"v_mul_f32 v{m}, -v{m}, v{v}\nds_write_b32 v{T+1}, v{m}\nds_write_b32 v{T+1}, v{v} offset:512")
    if typ == "W":
        L = k.label("b0"); k(f"s_cmp_lg_u32 s{W}, 5\ns_cbranch_scc1 {L}")
        for j in range(16): k(f"s_mov_b32 m0, {18432 + j*1024}\nbuffer_load_dwordx4 v{220+j}, s[12:15], s40 offen lds")
        advk(k, 128)
        k(f"s_waitcnt lgkmcnt(0)\ns_barrier\ns_branch fz_ld5\n{L}:")
    k("s_waitcnt lgkmcnt(0)\ns_barrier")
    k.stamp(6)
    k("s_branch fz_loader")

def p1_consumer(k, o):
    A2, A1 = 0, 72
    FX, FY = 144, 188
    VX0, VX1, VW, VX0b, VX1b, VWb = 232, 233, 234, 235, 236, 237
    NMR, RR = 238, 240
    VC1, VONE = 242, 244
    V16 = 246; VPG, VPR = 247, 248
    k(f"s_lshl_b32 s30, s2, 2\ns_add_u32 s30, s30, s{W}")
    p1_addr(k, VX0b, VX1b, VWb, W)
    k(f"""
    v_mov_b32 v{VX0}, v{VX0b}
    v_mov_b32 v{VX1}, v{VX1b}
    v_mov_b32 v{VW}, v{VWb}
    s_mov_b32 s34, 0
    s_mov_b32 s56, {fbits(C2)}
    s_mov_b32 s57, {fbits(C2)}
    v_mov_b32 v{VC1}, {fbits(C1)}
    v_mov_b32 v{VC1+1}, {fbits(C1)}
    v_mov_b32 v{VONE}, 1.0
    v_mov_b32 v{VONE+1}, 1.0
    v_lshlrev_b32 v{V16}, 4, v{VL}
    s_lshl_b32 s33, s{W}, 8
    s_add_u32 s33, s33, {WPRIV}
    v_lshrrev_b32 v3, 4, v{VL}
    v_lshlrev_b32 v3, 4, v3
    v_add_u32 v{VPG}, s33, v3
    v_and_b32 v3, 31, v{VL}
    v_lshlrev_b32 v3, 2, v3
    v_add_u32 v{VPR}, s33, v3
    s_setprio {o.get('prio1', 2)}
    """)
    if o.get('touch', 1):
        k(f"""
        v_mul_u32_u24 v3, 43, v{VL}
        v_lshrrev_b32 v3, 8, v3
        v_mul_u32_u24 v4, 6, v3
        v_sub_u32 v4, v{VL}, v4
        s_lshl_b32 s31, s30, 1
        v_add_u32 v3, s31, v3
        v_mul_u32_u24 v3, 1152, v3
        v_lshl_add_u32 v3, v4, 7, v3
        s_mul_i32 s31, s30, 14
        v_add_u32 v7, s31, v{VL}
        v_min_u32 v7, 13823, v7
        s_mov_b32 s32, 29128
        v_mul_lo_u32 v4, v7, s32
        v_lshrrev_b32 v4, 20, v4
        v_mul_u32_u24 v5, 36, v4
        v_sub_u32 v5, v7, v5
        v_mul_u32_u24 v4, 9216, v4
        v_lshl_add_u32 v4, v5, 7, v4
        v_add_u32 v4, {192*9216 + 4608}, v4
        {xm(0xfff)}
        global_load_dword v254, v3, s[6:7] offset:384
        {xm((1 << 14) - 1)}
        global_load_dword v254, v4, s[8:9]
        s_mov_b64 exec, -1
        """)

    if o.get('p0'): k.stamp(7)
    k(f"s_waitcnt vmcnt({2 if o.get('touch', 1) else 0})")
    if o.get('p0'): k.stamp(8)
    yield
    k.srd(36, 4, 2048 * 16, add=WS_RS)
    k("s_waitcnt lgkmcnt(0)")
    def reads(F, half):
        vx = VX0 if half == 0 else VX1
        r = [f"ds_read_b128 v[{F+4*tb}:{F+4*tb+3}], v{vx} offset:{tb*2048}" for tb in range(2)]
        if o.get('nord1') == 1: return r
        if o.get('nord1') == 2: return [f"ds_read_b128 v[{F+8+4*i}:{F+8+4*i+3}], v{V16} offset:{i*1024}" for i in range(9)] + r
        for i in range(9):
            for rd in range(2):
                b = F + 8 + 4 * i + 2 * rd
                r.append(f"ds_read_b64_tr_b16 v[{b}:{b+1}], v{VW} offset:{half*32*288 + rd*8*288 + i*32}")
        return r
    def mfmas(F, z2, first=False):
        out = []; ACC = A2 if z2 else A1
        for i in range(9):
            for tb in range(2):
                a = ACC + (i * 2 + tb) * 4
                wf = f"v[{F+8+4*i}:{F+8+4*i+3}]"; xf = f"v[{F+4*tb}:{F+4*tb+3}]"
                A, B = (xf, wf) if z2 else (wf, xf)
                out.append(f"v_mfma_f32_16x16x32_bf16 v[{a}:{a+3}], {A}, {B}, {'0' if first else 'v[%d:%d]' % (a, a+3)}")
        return out
    adv = [f"s_add_u32 s34, s34, {SLOT}\ns_cmp_ge_u32 s34, {SLOT*NS}\ns_cselect_b32 s34, 0, s34",
           f"v_add_u32 v{VX0}, s34, v{VX0b}\nv_add_u32 v{VX1}, s34, v{VX1b}\nv_add_u32 v{VW}, s34, v{VWb}"]
    def gemm(z2):
        name = f"fz_g1{'a' if z2 else 'b'}"
        if o.get('p0') and z2: k.stamp(9)
        k("s_barrier")
        k.stamp(2 if z2 else 5)
        k("\n".join(reads(FX, 0)))
        k("s_waitcnt lgkmcnt(0)")
        k("\n".join(front2(mfmas(FX, z2, True), reads(FY, 1) + adv, o.get('per', 2))))
        k(f"s_mov_b32 s35, 1\ns_waitcnt lgkmcnt(0)\n{name}:\ns_barrier")
        k("\n".join(front2(mfmas(FY, z2), reads(FX, 0), o.get('per', 2))))
        k("s_waitcnt lgkmcnt(0)")
        k("\n".join(front2(mfmas(FX, z2), reads(FY, 1) + adv + ["s_add_u32 s35, s35, 1"], o.get('per', 2))))
        if z2:
            k("s_cmp_eq_u32 s35, 2\ns_cbranch_scc0 fz_nrg\ns_waitcnt vmcnt(0)"); rowgran(k, 36, 249); k("fz_nrg:")
            if o.get('spat', 9) < 9:
                k(f"s_cmp_eq_u32 s35, {o['spat']}\ns_cbranch_scc0 fz_nsp\nglobal_load_dword v254, v250, s[24:25]\nfz_nsp:")
        k(f"s_cmp_lt_u32 s35, 9\ns_waitcnt lgkmcnt(0)\ns_cbranch_scc1 {name}")
        k("\n".join(mfmas(FY, z2)))
    gemm(True)
    k.stamp(3)
    SU, SQ = FX, FX + 8
    CP = FX + 16
    T = 196
    PS, PQ = 212, 220
    k(f"""
    v_and_b32 v{T}, 15, v{VL}
    v_lshlrev_b32 v{T}, 2, v{T}
    v_add_u32 v{T+1}, {COLP}, v{T}
    s_lshl_b32 s33, s{W}, 7
    s_add_u32 s33, s33, {ROWA}
    v_add_u32 v{T}, s33, v{T}
    v_lshrrev_b32 v{T+2}, 4, v{VL}
    v_lshlrev_b32 v{T+2}, 4, v{T+2}
    v_add_u32 v{T+2}, s33, v{T+2}
    s_barrier
    ds_read_b128 v[{SU}:{SU+3}], v{T+2}
    ds_read_b128 v[{SU+4}:{SU+7}], v{T+2} offset:64
    ds_read_b128 v[{SQ}:{SQ+3}], v{T+2} offset:512
    ds_read_b128 v[{SQ+4}:{SQ+7}], v{T+2} offset:576
    """)
    for i in range(9): k(f"ds_read_b32 v{CP+4*i}, v{T+1} offset:{i*64}")
    k("s_waitcnt lgkmcnt(0)")
    for i in range(9):
        pairs = [A2 + (i * 2) * 4, A2 + (i * 2) * 4 + 2, A2 + (i * 2 + 1) * 4, A2 + (i * 2 + 1) * 4 + 2]
        cs = CP + 4 * i
        for n, a in enumerate(pairs): k(f"v_pk_mul_f32 v[{T+2*n}:{T+2*n+1}], v[{SU+2*n}:{SU+2*n+1}], v[{cs}:{cs+1}] op_sel_hi:[1,0]")
        for n, a in enumerate(pairs): k(f"v_pk_fma_f32 v[{a}:{a+1}], v[{a}:{a+1}], v[{SQ+2*n}:{SQ+2*n+1}], v[{T+2*n}:{T+2*n+1}]")
        gelu_group(k, pairs, T, 56, VC1, VONE)
        for n, a in enumerate(pairs):
            if i == 0: k(f"v_pk_mul_f32 v[{PQ+2*n}:{PQ+2*n+1}], v[{a}:{a+1}], v[{a}:{a+1}]\nv_mov_b32 v{PS+2*n}, v{a}\nv_mov_b32 v{PS+2*n+1}, v{a+1}")
            else: k(f"v_pk_fma_f32 v[{PQ+2*n}:{PQ+2*n+1}], v[{a}:{a+1}], v[{a}:{a+1}], v[{PQ+2*n}:{PQ+2*n+1}]\nv_pk_add_f32 v[{PS+2*n}:{PS+2*n+1}], v[{PS+2*n}:{PS+2*n+1}], v[{a}:{a+1}]")
    dpp_sum16(k, list(range(PS, PS + 16)))
    k(f"""
    {xm(0x0001000100010001)}
    ds_write_b128 v{VPG}, v[{PS}:{PS+3}]
    ds_write_b128 v{VPG}, v[{PS+4}:{PS+7}] offset:64
    ds_write_b128 v{VPG}, v[{PQ}:{PQ+3}] offset:128
    ds_write_b128 v{VPG}, v[{PQ+4}:{PQ+7}] offset:192
    s_mov_b64 exec, -1
    s_waitcnt lgkmcnt(0)
    """)
    k.stamp(4)
    gemm(False)
    k.stamp(6)
    T = 196
    SU, SQ = 148, 156
    k(f"""
    v_lshrrev_b32 v249, 4, v{VL}
    v_lshlrev_b32 v249, 4, v249
    s_lshl_b32 s33, s{W}, 7
    s_add_u32 s33, s33, {ROWA}
    v_add_u32 v249, s33, v249
    """)
    k.srd(36, 4, FRAG9, add=WS_Z2)
    k(f"""
    s_mul_i32 s32, s{C}, {9*64}
    s_lshl_b32 s33, s{P}, 2
    s_add_u32 s33, s33, s{W}         ; kb
    s_add_u32 s32, s32, s33
    s_lshl_b32 s32, s32, 10
    s_lshl_b32 s34, s{C}, 6
    s_add_u32 s34, s34, s33
    s_lshl_b32 s34, s34, 2
    s_add_u32 s34, s34, {FL_2}
    s_lshr_b32 s33, s{W}, 1
    s_mul_i32 s33, s33, {SLOT}
    s_and_b32 s53, s{W}, 1
    s_lshl_b32 s53, s53, 10
    s_add_u32 s33, s33, s53
    v_add_u32 v250, s33, v{V16}
    s_barrier
    ds_read_b128 v[{SU}:{SU+3}], v249
    ds_read_b128 v[{SU+4}:{SU+7}], v249 offset:64
    ds_read_b128 v[{SQ}:{SQ+3}], v249 offset:512
    ds_read_b128 v[{SQ+4}:{SQ+7}], v249 offset:576
    s_waitcnt lgkmcnt(0)
    """)
    k.stamp(7)
    for i in range(9):
        oo = 164 + (i % 4) * 4
        for sb in range(2):
            a = A2 + (i * 2 + sb) * 4
            for hh in range(2):
                k(f"v_pk_fma_f32 v[{a+2*hh}:{a+2*hh+1}], v[{a+2*hh}:{a+2*hh+1}], v[{SQ+4*sb+2*hh}:{SQ+4*sb+2*hh+1}], v[{SU+4*sb+2*hh}:{SU+4*sb+2*hh+1}]")
            for hh in range(2): k(f"v_cvt_pk_bf16_f32 v{oo+2*sb+hh}, v{a+2*hh}, v{a+2*hh+1}")
        k(f"v_permlane16_swap_b32 v{oo}, v{oo+2}\nv_permlane16_swap_b32 v{oo+1}, v{oo+3}")
        k(f"buffer_store_dwordx4 v[{oo}:{oo+3}], v{V16}, s[36:39], s32 offen sc1\ns_add_u32 s32, s32, 65536")
        k(f"ds_write_b128 v250, v[{oo}:{oo+3}] offset:{i*2048}")
    k.stamp(8)
    k("s_mov_b32 s48, s34\ns_branch fz_cons")

def side_issue(k, o, sb, st):
    k(f"""
    s_mul_i32 s36, s{sb}, 52429
    s_lshr_b32 s36, s36, 18
    s_mul_i32 s37, s36, 5
    s_sub_u32 s37, s{sb}, s37        ; q
    s_lshr_b32 s33, s36, 4
    s_and_b32 s35, s36, 15
    s_mul_i32 s35, s35, 144
    s_lshl_b32 s37, s37, 5
    s_add_u32 s35, s35, s37
    s_mul_i32 s35, s35, 1152
    s_mul_i32 s33, s33, 144
    s_add_u32 s35, s35, s33
    s_cmp_lt_u32 s{sb}, 640
    s_cselect_b32 s35, s35, {OOB}
    s_mov_b32 s33, {(1 << 16) // 9 + 1}
    """)
    for i in range(5):
        k(f"""
        v_add_u32 v44, {64*i}, v{VL}
        v_mul_lo_u32 v45, v44, s33
        v_lshrrev_b32 v45, 16, v45
        v_mul_u32_u24 v46, 9, v45
        v_sub_u32 v46, v44, v46
        v_mul_u32_u24 v45, 1152, v45
        v_lshl_add_u32 v45, v46, 4, v45
        s_add_u32 m0, s{st}, {i*1024}
        buffer_load_dwordx4 v45, s[24:27], s35 offen lds
        """)

def side_run(k, o, sb, st, fl):
    E = k.label("sr"); L2 = k.label("sr"); L3 = k.label("sr")
    k(f"""
    s_cmp_ge_u32 s{sb}, 640
    s_cbranch_scc1 {E}
    v_bfe_u32 v47, v{VL}, 2, 2
    v_and_b32 v48, 3, v{VL}
    v_lshrrev_b32 v51, 4, v{VL}
    v_lshl_add_u32 v47, v51, 2, v47
    v_mul_u32_u24 v47, 144, v47
    v_lshl_add_u32 v47, v48, 3, v47
    v_add_u32 v47, s{st}, v47
    """)
    for dt in range(5):
        k(f"ds_read_b64_tr_b16 v[{54+4*dt}:{55+4*dt}], v47 offset:{dt*32}")
        k(f"ds_read_b64_tr_b16 v[{56+4*dt}:{57+4*dt}], v47 offset:{dt*32 + 16*144}")
    k(f"""
    v_lshlrev_b32 v52, 4, v{VL}
    v_lshlrev_b32 v53, 3, v{VL}
    v_and_b32 v78, 7, v{VL}
    v_lshl_add_u32 v78, v51, 3, v78
    v_lshlrev_b32 v79, 4, v78
    v_lshlrev_b32 v78, 3, v78
    s_mul_i32 s36, s{sb}, 52429
    s_lshr_b32 s36, s36, 18
    s_mul_i32 s37, s36, 5
    s_sub_u32 s37, s{sb}, s37
    s_mul_i32 s33, s36, 20736
    s_mul_i32 s35, s37, 4608
    s_add_u32 s33, s33, s35
    s_add_u32 s35, s33, 4096
    s_lshl_b32 s{fl}, s36, 3
    s_add_u32 s{fl}, s{fl}, s37
    s_lshl_b32 s{fl}, s{fl}, 2
    s_add_u32 s{fl}, s{fl}, {FL_W}
    s_cmp_eq_u32 s37, 4
    s_waitcnt lgkmcnt(0)
    s_cbranch_scc1 {L2}
    """)
    for dt in range(4): k(f"buffer_store_dwordx4 v[{54+4*dt}:{57+4*dt}], v52, s[28:31], s33 offen offset:{dt*1024} sc1")
    k(xm(0x00ff00ff00ff00ff))
    k(f"buffer_store_dwordx4 v[70:73], v79, s[28:31], s35 offen sc1\ns_branch {L3}\n{L2}:")
    for dt in range(4): k(f"buffer_store_dwordx2 v[{54+4*dt}:{55+4*dt}], v53, s[28:31], s33 offen offset:{dt*512} sc1")
    k(xm(0x00ff00ff00ff00ff))
    k(f"buffer_store_dwordx2 v[70:71], v78, s[28:31], s33 offen offset:2048 sc1\n{L3}:\ns_mov_b64 exec, -1\n{E}:")

def b_setup(k):
    k(f"""
    s_load_dwordx2 s[6:7], s[0:1], {ARG['w_sp']}
    v_lshrrev_b32 v3, 3, v{VL}
    v_and_b32 v4, 7, v{VL}
    v_lshrrev_b32 v5, 4, v{VL}
    v_xor_b32 v4, v4, v5
    v_and_b32 v5, 1, v4
    v_lshlrev_b32 v5, 1, v5
    v_bfe_u32 v6, v4, 1, 1
    v_and_b32 v4, 4, v4
    v_or_b32 v4, v4, v5
    v_or_b32 v4, v4, v6
    v_lshlrev_b32 v4, 4, v4
    v_lshl_add_u32 v4, v3, 12, v4
    s_lshl_b32 s33, s{P}, 19
    v_add_u32 v4, s33, v4
    v_xor_b32 v5, 64, v4
    s_lshl_b32 s45, s{P}, 8
    s_mov_b32 s40, s45
    s_mov_b32 s44, 18432
    s_mov_b32 s41, 18432
    s_mov_b32 s43, 0
    s_mov_b32 s42, -1
    """)
    for j in range(16): k(f"v_add_u32 v{220+j}, {j*32768}, v{4 + (j & 1)}")
    k("s_waitcnt lgkmcnt(0)")
    k.srd(12, 6, 2048 * 4096)

def advk(k, kstep):
    k(f"""
    s_add_u32 s40, s40, {kstep}
    s_add_u32 s43, s43, 1
    s_cmp_eq_u32 s43, 2
    s_cselect_b32 s40, 0, s40
    s_cselect_b32 s42, s45, s42
    s_cmp_eq_u32 s40, s42
    s_cselect_b32 s33, {2*kstep}, 0
    s_add_u32 s40, s40, s33
    s_add_u32 s41, s41, {SLOT}
    s_cmp_ge_u32 s41, {SLOT*NS}
    s_cselect_b32 s41, s44, s41
    """)

def phase2(k, o):
    NST = 32
    k("fz_cons:")
    k.stamp(10)
    ACC = 0; ZR = 72; FX = 144; FY = 188
    VA, VB0, VB1, VAb, VB0b, VB1b = 232, 233, 234, 235, 236, 239
    GT = [240, 241, 246, 247, 248, 249]; VC2 = 252; BS = [253, 251]
    k(f"""
    s_load_dwordx2 s[8:9], s[0:1], {ARG['b_sp']}
    s_lshl_b32 s30, s{P}, 3
    s_lshl_b32 s31, s{W}, 1
    s_add_u32 s30, s30, s31
    s_lshl_b32 s31, s30, 4
    s_add_u32 s31, s31, s{C}
    s_mul_i32 s31, s31, 4608
    s_add_u32 s32, s31, {16*4608}
    v_and_b32 v3, 15, v{VL}
    v_lshrrev_b32 v{VB0b}, 4, v{VL}
    v_lshrrev_b32 v{VB1b}, 1, v3
    v_xor_b32 v{VB0b}, v{VB0b}, v{VB1b}
    v_lshlrev_b32 v{VB0b}, 4, v{VB0b}
    v_lshl_add_u32 v{VB0b}, v3, 7, v{VB0b}
    s_lshl_b32 s34, s{W}, 12
    s_add_u32 s34, s34, 18432
    v_add_u32 v{VB0b}, s34, v{VB0b}
    v_xor_b32 v{VB1b}, 64, v{VB0b}
    v_lshlrev_b32 v{VAb}, 4, v{VL}
    v_add_u32 v{VA}, {2*SLOT}, v{VAb}
    v_add_u32 v{VB0}, {2*SLOT}, v{VB0b}
    v_add_u32 v{VB1}, {2*SLOT}, v{VB1b}
    s_lshl_b32 s34, s30, 4
    v_add_u32 v3, s34, v3
    v_lshlrev_b32 v3, 1, v3
    v_mov_b32 v{VC2}, {fbits(C2)}
    s_waitcnt lgkmcnt(0)
    global_load_ushort v{BS[0]}, v3, s[8:9]
    global_load_ushort v{BS[1]}, v3, s[8:9] offset:32
    s_mov_b32 s34, 0
    s_setprio {o.get('prio', 2)}
    s_lshl_b32 s28, s{P}, 1
    s_lshr_b32 s10, s{W}, 1
    s_add_u32 s28, s28, s10
    s_lshl_b32 s28, s28, 4
    s_add_u32 s28, s28, s{C}
    s_lshl_b32 s28, s28, 1
    s_and_b32 s10, s{W}, 1
    s_add_u32 s28, s28, s10
    s_lshl_b32 s28, s28, 2
    s_add_u32 s28, s28, {FL_H}
    """)
    g3 = Gemm3(k, o)
    g3.pre()
    def reads(F, half, st):
        sl = st % 4; hi = sl >> 1; off = (sl & 1) * SLOT
        vb = [[VB0b, VB1b], [VB0, VB1]][hi][half]; va = [VAb, VA][hi]
        r = [f"ds_read_b128 v[{F+4*tb}:{F+4*tb+3}], v{vb} offset:{off + tb*2048}" for tb in range(2)]
        r += [f"ds_read_b128 v[{F+8+4*ft}:{F+8+4*ft+3}], v{va} offset:{off + (ft*2+half)*1024}" for ft in range(9)]
        return r
    def mfmas(F, first=False):
        return [f"v_mfma_f32_16x16x32_bf16 v[{ACC+(ft*2+tb)*4}:{ACC+(ft*2+tb)*4+3}], v[{F+8+4*ft}:{F+8+4*ft+3}], v[{F+4*tb}:{F+4*tb+3}], " + ("0" if first else f"v[{ACC+(ft*2+tb)*4}:{ACC+(ft*2+tb)*4+3}]")
                for ft in range(o.get('nft', 9)) for tb in range(2)]
    adv = [f"s_add_u32 s34, s34, {SLOT}\ns_cmp_ge_u32 s34, {SLOT*NS}\ns_cselect_b32 s34, 0, s34",
           f"v_add_u32 v{VA}, s34, v{VAb}", f"v_add_u32 v{VB0}, s34, v{VB0b}", f"v_add_u32 v{VB1}, s34, v{VB1b}"]
    def gpair(n):
        if n >= 36: return []
        a = ZR + 2 * n; t = GT[2 * (n % 3)]; u = GT[2 * (n % 3) + 1]
        return [f"v_mul_f32 v{t}, v{a}, v{a}", f"v_mul_f32 v{u}, v{a+1}, v{a+1}",
                f"v_fmaak_f32 v{t}, v{VC2}, v{t}, {fbits(C1)}", f"v_fmaak_f32 v{u}, v{VC2}, v{u}, {fbits(C1)}",
                f"v_mul_f32 v{t}, v{t}, v{a}", f"v_mul_f32 v{u}, v{u}, v{a+1}",
                f"v_exp_f32 v{t}, v{t}", f"v_exp_f32 v{u}, v{u}",
                f"v_add_f32 v{t}, 1.0, v{t}", f"v_add_f32 v{u}, 1.0, v{u}",
                f"v_rcp_f32 v{t}, v{t}", f"v_rcp_f32 v{u}, v{u}",
                f"v_mul_f32 v{a}, v{a}, v{t}", f"v_mul_f32 v{a+1}, v{a+1}, v{u}",
                f"v_cvt_pk_bf16_f32 v{a}, v{a}, v{a+1}"]
    def weave(mf, rd, fill):
        out = []; fi = 0
        for i, x in enumerate(mf):
            out.append(x)
            if i < len(rd): out.append(rd[i])
            if fi < len(fill) and i >= 2: out.append(fill[fi]); fi += 1
        return out + rd[len(mf):] + fill[fi:]
    NU = o.get('NU', 20)
    gb = o.get('gb', 0)
    allf = [x for n_ in range(36 - gb) for x in gpair(n_)]
    nh = 2 * NU; per_ = -(-len(allf) // nh)
    fl = [allf[i * per_:(i + 1) * per_] for i in range(nh)]
    def weave(mf, rd, fill):
        out = []; fi = 0; n_ = len(mf)
        for i, x in enumerate(mf):
            out.append(x)
            if i < len(rd): out.append(rd[i])
            want = (i + 1) * len(fill) // n_ if o.get('even', 1) else (i - 1 if i >= 2 else 0)
            while fi < min(want, len(fill)): out.append(fill[fi]); fi += 1
        return out + rd[len(mf):] + fill[fi:]
    k("s_barrier")
    k.stamp(11)
    bp = o.get('bp', 18)
    def stage2(st, f0, f1, extra=(), tail=()):
        k("\n".join(weave(mfmas(FY), reads(FX, 0, st), f0)))
        k("s_waitcnt lgkmcnt(0)")
        w = weave(mfmas(FX), reads(FY, 1, st) + list(extra), f1)
        idx = [i for i, x in enumerate(w) if x.startswith("v_mfma")]
        cut = len(w) if bp >= 18 else idx[bp]
        k("\n".join(w[:cut] + list(tail) + ["s_waitcnt lgkmcnt(0)", "s_barrier"] + w[cut:]))
    k("\n".join(reads(FX, 0, 0) + fl[0]))
    k("s_waitcnt lgkmcnt(0)")
    k("\n".join(weave(mfmas(FX, True), reads(FY, 1, 0), fl[1])))
    zf = f"v_mov_b32 v238, 0\nv_mov_b32 v254, s{NON}\ns_waitcnt vmcnt(2)\ns_mov_b64 exec, 1\nbuffer_store_dword v254, v238, s[{FLS}:{FLS+3}], s48 offen sc1\ns_mov_b64 exec, -1"
    if o.get('zfp', 0) == 0: k(zf); k.stamp(9)
    k("s_waitcnt lgkmcnt(0)\ns_barrier")
    assert NU % 4 == 0
    for st in range(1, NU):
        tail = [zf] if (st == 1 and o.get('zfp', 0) == 1) else []
        if st == 1 and gb:
            for n0 in range(36 - gb, 36, 3):
                g3_ = [gpair(n_) for n_ in range(n0, min(36, n0 + 3))]
                for pos in range(15): tail += [g_[pos] for g_ in g3_]
        stage2(st, fl[2 * st], fl[2 * st + 1], tail=tail)
    if o.get('p2'): k.stamp(10)
    k(f"s_mov_b32 s35, {NU}\nfz_cloop:")
    for u in range(4):
        stage2(u, [], [], extra=(["s_add_u32 s35, s35, 4", "s_cmp_lt_u32 s35, 28"] if u == 3 else []))
    k("s_cbranch_scc1 fz_cloop")
    for u in range(4):
        stage2(u, [], [], extra=([f"buffer_load_dword v238, v237, s[{FLS}:{FLS+3}], 0 offen sc1"] if u == 0 else []))
    k("\n".join(mfmas(FY)))
    k.stamp(12)
    k.srd(12, 4, FRAG9, add=WS_H)
    g3.wcheck()
    VBS = 232
    k("s_setprio 3")
    k(f"v_lshlrev_b32 v{VBS}, 16, v{BS[0]}\nv_lshlrev_b32 v{VBS+2}, 16, v{BS[1]}\nv_mov_b32 v{VBS+1}, v{VBS}\nv_mov_b32 v{VBS+3}, v{VBS+2}")
    for tb in range(2):
        b = VBS + 2 * tb
        for q in range(5):
            nt = 2 if q < 4 else 1
            oo = 144 + (tb * 5 + q) % 2 * 4
            for t in range(nt):
                a = ACC + ((2 * q + t) * 2 + tb) * 4
                for hh in range(2):
                    z = ZR + ((2 * q + t) * 2 + tb) * 4 + 2 * hh; u = 236 + 2 * ((2 * t + hh) % 3)
                    k(f"""
                    v_pk_add_f32 v[{a+2*hh}:{a+2*hh+1}], v[{a+2*hh}:{a+2*hh+1}], v[{b}:{b+1}]
                    v_lshlrev_b32 v{u}, 16, v{z}
                    v_and_b32 v{u+1}, 0xffff0000, v{z}
                    v_pk_mul_f32 v[{a+2*hh}:{a+2*hh+1}], v[{a+2*hh}:{a+2*hh+1}], v[{u}:{u+1}]
                    v_cvt_pk_bf16_f32 v{oo+t*2+hh}, v{a+2*hh}, v{a+2*hh+1}
                    """)
            if q < 4: k(f"buffer_store_dwordx4 v[{oo}:{oo+3}], v242, s[12:15], s{31+tb} offen offset:{q*1024} sc1")
            else: k(f"s_add_u32 s33, s{31+tb}, 4096\nbuffer_store_dwordx2 v[{oo}:{oo+1}], v243, s[12:15], s33 offen sc1")
    if o.get('p3'): k.stamp(2)
    k(f"v_mov_b32 v0, 0\nv_mov_b32 v1, s{NON}\ns_waitcnt vmcnt(0)\ns_mov_b64 exec, 1\nbuffer_store_dword v1, v0, s[{FLS}:{FLS+3}], s28 offen sc1\ns_mov_b64 exec, -1")
    k.stamp(13)
    k(f"s_setprio {o.get('prio4', 1)}")
    g3.wregs()
    g3.main()
    k("fz_loader:\ns_setprio 0")
    for j in range(16): k(f"v_mov_b32 v{198+j}, 0")
    def issue(n, kstep, sc, chk=False, j0=0):
        if chk:
            L = k.label("pc"); D = k.label("pd")
            k(f"""
            {L}:
            s_lshr_b32 s33, s40, 10
            s_and_b32 s33, s33, 60
            s_lshr_b64 s[48:49], s[46:47], s33
            s_and_b32 s48, s48, 15
            s_cbranch_scc0 {D}
            s_add_u32 s62, s62, 1
            s_cmp_ge_u32 s62, {SPIN}
            s_cbranch_scc1 {D}
            buffer_load_dword v200, v199, s[{FLS}:{FLS+3}], s30 offen sc1
            s_waitcnt vmcnt(0)
            v_cmp_ne_u32 s[46:47], s{NON}, v200
            s_branch {L}
            {D}:
            """)
        for j in range(0 if o.get('nodma2') else n):
            k((f"s_add_u32 m0, s41, {(j+j0)*1024}\n" if j + j0 else "s_mov_b32 m0, s41\n") + f"buffer_load_dwordx4 v{VL_(j)}, s[12:15], s40 offen {sc}lds")
        advk(k, kstep)
    VL_ = lambda j: 112 + j
    def ring(tag, n, kstep, sc, first):
        k(f"s_setprio {o.get('prioR', 3)}")
        wst_setup(k, o, 214)
        if o.get('l4', 1):
            k(f"s_mov_b32 s35, {first}\nfz_h{tag}:\ns_waitcnt vmcnt({2*n})\ns_barrier")
            issue(n, kstep, sc, tag == "A")
            k(f"s_add_u32 s35, s35, 1\ns_cmp_lt_u32 s35, 5\ns_cbranch_scc1 fz_h{tag}\ns_waitcnt vmcnt({2*n})\ns_barrier")
            n2 = n; n = n // 2
            issue(n, kstep, sc, tag == "A")
            k(f"s_waitcnt vmcnt({n2 + n})\ns_barrier")
            issue(n, kstep, sc, tag == "A")
            first = 7
        k(f"s_mov_b32 s35, {first}\nfz_l{tag}:\ns_waitcnt vmcnt({2*n})\ns_barrier")
        issue(n, kstep, sc, tag == "A")
        fv = 214
        k(f"s_cmp_eq_u32 s35, 24\ns_cbranch_scc0 fz_m{tag}\nbuffer_load_dwordx2 v[{fv}:{fv+1}], v{fv+2}, s[{FLS}:{FLS+3}], s52 offen sc1\nfz_m{tag}:")
        k(f"s_add_u32 s35, s35, 1\ns_cmp_lt_u32 s35, {NST-3}\ns_cbranch_scc1 fz_l{tag}")
        wst_check(k, o, fv=214)
        if tag == "A":
            k(f"v_mov_b32 v60, {RDY}\nv_mov_b32 v61, 0\nds_write_b32 v60, v61 offset:8\nds_write_b32 v60, v61 offset:16\ns_min_u32 s58, s58, 1000")
            ft_load(k)
            wst(k, 3); k(f"s_waitcnt vmcnt({2*n + 22})\ns_barrier")
            wst(k, 0); k(f"s_waitcnt vmcnt({n + 43})\ns_barrier\ns_waitcnt vmcnt(43) lgkmcnt(0)\ns_barrier")
        else:
            k(f"s_waitcnt vmcnt({2*n})\ns_barrier\ns_waitcnt vmcnt({n})\ns_barrier")
            wst(k, 1); wst(k, 2); k("s_waitcnt vmcnt(42)\ns_barrier")
        k("s_waitcnt vmcnt(0)\ns_barrier")
    if o.get('nossm', 0) & 2: k("s_branch fz_nk0")
    k(f"s_cmp_ge_u32 s58, 576\ns_cbranch_scc1 fz_nk0")
    k(f"s_mov_b32 s54, {fbits(L2E_HI)}\ns_mov_b32 s55, {fbits(I2P_HI)}")
    for i in range(40): k(f"v_mov_b32 v{i}, 0")
    k("\n".join(kgen_dt()))
    if o.get('t3', 0): k(f"s_cmp_eq_u32 s{W}, 4\ns_cbranch_scc1 fz_nk0")
    kh = kgen_half(); c0 = next(i for i, x in enumerate(kh) if x.startswith('ds_')); c1 = len(kh) * o.get('k1', 50) // 100
    k("s_mov_b32 s53, 0\nfz_kg:")
    k("\n".join(kh[:c0]))
    k("s_cmp_lg_u32 s53, 0\ns_cbranch_scc1 fz_kgb\ns_barrier\nfz_kgb:")
    k("\n".join(kh[c0:c1]))
    k("s_cmp_lg_u32 s53, 0\ns_cbranch_scc1 fz_kgc\ns_barrier\nfz_kgc:")
    k("\n".join(kh[c1:]))
    k("s_cmp_eq_u32 s53, 1\ns_cbranch_scc1 fz_kg2\ns_cmp_eq_u32 s53, 0\ns_cbranch_scc1 fz_nk\ns_mov_b32 s53, 1\ns_branch fz_kg\nfz_nk0:\ns_barrier\ns_barrier\nfz_nk:")
    k.stamp(9)
    k(f"s_mov_b32 s43, 0\ns_mov_b32 s42, -1\ns_cmp_lg_u32 s{W}, 4\ns_cbranch_scc1 fz_idle")
    k.srd(12, 4, FRAG9, add=WS_Z2)
    k(f"s_lshl_b32 s45, s{P}, 12\ns_mov_b32 s40, s45\ns_mul_i32 s31, s{C}, {9*65536}\nv_lshlrev_b32 v198, 4, v{VL}\nv_add_u32 v198, s31, v198\ns_mov_b32 s44, 0\ns_mov_b32 s41, 0")
    for j in range(18): k(f"v_add_u32 v{VL_(j)}, {(j >> 1)*65536 + (j & 1)*1024}, v198")
    k(f"s_lshl_b32 s30, s{C}, 8\ns_add_u32 s30, s30, {FL_2}\nv_lshlrev_b32 v199, 2, v{VL}\ns_mov_b64 s[46:47], -1\ns_mov_b32 s62, 0")
    advk(k, 2048); advk(k, 2048)
    k.stamp(10)
    issue(18, 2048, "sc1 ", True)
    issue(18, 2048, "sc1 ", True); issue(18, 2048, "sc1 ", True)
    k.stamp(11)
    ring("A", 18, 2048, "sc1 ", 2)
    k("s_branch fz_p34")
    k("fz_ld5:\ns_setprio 0")
    VL_ = lambda j: 220 + j
    for _ in range(2): issue(16, 128, "")
    k.stamp(11)
    ring("B", 16, 128, "", 0)
    mode = o.get('cv', 1)
    if mode == 0: k("s_branch fz_fin")
    else:
        k(f"s_lshl_b32 s58, s2, 1\ns_mov_b32 s59, {CONV0}\ns_mov_b32 s57, {RDY}\ns_cmp_ge_u32 s2, 64\ns_cbranch_scc1 fz_help")
        if o.get('h3', 1): k(f"s_add_u32 s58, s2, 512\ns_mov_b32 s59, {CONV0 + 2*REG}\ns_mov_b32 s57, {RDY + 8}\ns_branch fz_help")
        else: k("s_branch fz_fin")
    k("fz_idle:")
    k(f"v_mov_b32 v44, {RDY}\nv_mov_b32 v45, 0\nds_write_b32 v44, v45\nds_write_b32 v44, v45 offset:4")
    regs = list(range(KG['WAD'], KG['WAD'] + 16)) + list(range(KG['RW'], KG['RW'] + 4)) + list(range(KG['RS'], KG['RS'] + 10))
    nch = o.get('nch', 0)
    if nch:
        for r in regs: k(f"v_add_u32 v{r}, {139264 - KTAB}, v{r}")
        k("s_barrier")
        for ch in split(kgen_half(), nch):
            k("s_barrier"); k("\n".join(ch))
        for _ in range(30 - nch): k("s_barrier")
    elif o.get('l4', 1):
        k(f"""
        s_load_dwordx2 s[6:7], s[0:1], {ARG['w_sp']}
        s_load_dwordx2 s[8:9], s[0:1], {ARG['w_out']}
        s_lshl_b32 s50, s56, 8
        s_add_u32 s50, s50, s2
        s_add_u32 s51, s2, 384
        s_cmp_ge_u32 s2, 128
        s_cselect_b32 s51, s51, 999
        s_cmp_eq_u32 s56, 0
        s_cselect_b32 s51, s51, 999
        s_lshl_b32 s52, s56, 13
        s_add_u32 s52, s52, {KTAB}
        s_mov_b32 s63, {KTAB + 16384}
        s_mov_b32 s38, {FL_BYTES}
        s_mov_b32 s39, {FL_BYTES}
        s_waitcnt lgkmcnt(0)
        """)
        k.srd(24, 8, WOBYTES)
        k.srd(28, 4, WOBYTES, add=WS_WO)
        k.srd(12, 6, 2048 * 4096)
        side_issue(k, o, 50, 52)
        k("s_cmp_ge_u32 s51, 640\ns_cbranch_scc1 fz_ns2"); side_issue(k, o, 51, 63); k("fz_ns2:")
        k("s_barrier\ns_barrier\ns_waitcnt vmcnt(0)")
        side_run(k, o, 50, 52, 38); side_run(k, o, 51, 63, 39)
        k(f"s_setprio {o.get('prioR', 3)}\ns_cmp_eq_u32 s{W}, 7\ns_cbranch_scc1 fz_h7")
        for tag, n, kstep, sc in (("6", 9, 2048, "sc1 "), ("7", 8, 128, "")):
            VL_ = lambda j: 202 + j
            if tag == "6":
                k.srd(12, 4, FRAG9, add=WS_Z2)
                k(f"s_lshl_b32 s45, s{P}, 12\ns_mul_i32 s31, s{C}, {9*65536}\nv_lshlrev_b32 v198, 4, v{VL}\nv_add_u32 v198, s31, v198\ns_mov_b32 s44, 0")
                for j in range(9): k(f"v_add_u32 v{VL_(j)}, {((j+9) >> 1)*65536 + ((j+9) & 1)*1024}, v198")
                k(f"s_lshl_b32 s30, s{C}, 8\ns_add_u32 s30, s30, {FL_2}\nv_lshlrev_b32 v199, 2, v{VL}\ns_mov_b64 s[46:47], -1\ns_mov_b32 s62, 0")
            else:
                k(f"""
                fz_h7:
                v_lshrrev_b32 v44, 3, v{VL}
                v_and_b32 v45, 7, v{VL}
                v_lshrrev_b32 v46, 4, v{VL}
                v_xor_b32 v45, v45, v46
                v_and_b32 v46, 1, v45
                v_lshlrev_b32 v46, 1, v46
                v_bfe_u32 v47, v45, 1, 1
                v_and_b32 v45, 4, v45
                v_or_b32 v45, v45, v46
                v_or_b32 v45, v45, v47
                v_lshlrev_b32 v45, 4, v45
                v_lshl_add_u32 v45, v44, 12, v45
                s_lshl_b32 s31, s{P}, 19
                v_add_u32 v44, s31, v45
                v_xor_b32 v45, 64, v44
                s_lshl_b32 s45, s{P}, 8
                s_mov_b32 s44, 18432
                """)
                for j in range(8): k(f"v_add_u32 v{VL_(j)}, {(j+8)*32768}, v{44 + (j & 1)}")
            k(f"s_mov_b32 s40, s45\ns_mov_b32 s41, s44\ns_mov_b32 s35, 0\nfz_a{tag}:")
            advk(k, kstep)
            k(f"s_add_u32 s35, s35, 1\ns_cmp_lt_u32 s35, 8\ns_cbranch_scc1 fz_a{tag}")
            k("s_barrier")
            k(f"s_mov_b32 s35, 5\nfz_r{tag}:\ns_waitcnt vmcnt({2*n})\ns_barrier")
            issue(n, kstep, sc, tag == "6", j0=n)
            k(f"s_cmp_eq_u32 s35, 8\ns_cbranch_scc0 fz_f{tag}\nv_mov_b32 v44, 0\nv_mov_b32 v45, s{NON}\ns_mov_b64 exec, 1\nbuffer_store_dword v45, v44, s[{FLS}:{FLS+3}], s38 offen sc1\nbuffer_store_dword v45, v44, s[{FLS}:{FLS+3}], s39 offen sc1\ns_mov_b64 exec, -1\nfz_f{tag}:")
            k(f"s_add_u32 s35, s35, 1\ns_cmp_lt_u32 s35, 29\ns_cbranch_scc1 fz_r{tag}")
            k(f"s_waitcnt vmcnt({2*n})\ns_barrier\ns_waitcnt vmcnt({n})\ns_barrier\ns_waitcnt vmcnt(0)")
            if tag == "6": k("s_branch fz_h9")
        k("fz_h9:")
    else:
        k(f"s_mov_b32 s35, 0\nfz_idl:\ns_barrier\ns_add_u32 s35, s35, 1\ns_cmp_lt_u32 s35, 31\ns_cbranch_scc1 fz_idl")
    ft_load(k)
    k("s_barrier\ns_barrier")
    k.stamp(12)
    k(f"s_lshl_b32 s57, s56, 2\ns_add_u32 s57, s57, {RDY}")
    k(f"s_mov_b32 s3, 0\ns_cmp_ge_u32 s2, 64\ns_cbranch_scc1 fz_k2\ns_mov_b32 s3, 1\nfz_k2:")
    k(f"s_setprio {o.get('prio3', 3)}\ns_mul_i32 s59, s56, {REG}\ns_add_u32 s59, s59, {CONV0}")
    if o.get('nossm', 0) & 1:
        k(f"s_lshl_b32 s31, s58, 3\ns_add_u32 s31, s31, {FL_Y}\nv_mov_b32 v34, 0\nv_mov_b32 v36, s{NON}\nv_mov_b32 v37, s{NON}\ns_mov_b64 exec, 1\nbuffer_store_dwordx2 v[36:37], v34, s[{FLS}:{FLS+3}], s31 offen sc1\ns_branch fz_fin")
    u_load(k)
    if nch: k(f"s_cmp_lg_u32 s{W}, 4\ns_cbranch_scc1 fz_kg2")
    k(f"s_lshl_b32 s33, s56, 13\ns_add_u32 s33, s33, {KTAB - 4608}\ns_sub_u32 s33, s59, s33")
    for r in regs: k(f"v_add_u32 v{r}, s33, v{r}")
    if o.get('t3', 0): k(f"s_mov_b32 s53, 2\ns_cmp_eq_u32 s{W}, 4\ns_cbranch_scc1 fz_kg")
    k("s_mov_b32 s53, 1\ns_branch fz_kg\nfz_kg2:")
    k.stamp(8)
    conv_build(k, o)
    k.stamp(13)
    if mode:
        k("s_cmp_eq_u32 s3, 1\ns_cbranch_scc1 fz_full")
        conv_run(k, o, 0)
        k.stamp(14)
        k("s_branch fz_fin\nfz_full:")
    conv_run(k, o, 2)
    k.stamp(14)
    k("s_branch fz_fin")
    k(f"fz_p34:\ns_cmp_lt_u32 s58, 576\ns_cbranch_scc1 fz_own3")
    if mode:
        k(f"s_lshl_b32 s58, s2, 1\ns_add_u32 s58, s58, 1\ns_mov_b32 s59, {CONV0 + REG}\ns_mov_b32 s57, {RDY + 4}")
        k(f"""
        fz_help:
        {"s_branch fz_fin" if o.get('nossm', 0) & 1 else ""}
        s_mov_b32 s3, 0
        s_setprio {o.get('prio3', 3)}
        v_mov_b32 v20, s57
        s_mov_b32 s62, 0
        fz_hw:
        ds_read_b32 v21, v20
        s_add_u32 s62, s62, 1
        s_waitcnt lgkmcnt(0)
        v_readfirstlane_b32 s33, v21
        s_cmp_eq_u32 s33, 1
        s_cbranch_scc1 fz_runb
        s_cmp_lt_u32 s62, {SPIN*16}
        s_cbranch_scc1 fz_hw
        fz_runb:
        """)
        k.stamp(13)
        conv_run(k, o, 1)
        k.stamp(14)
    k("s_branch fz_fin\nfz_own3:")
    k(f"s_mov_b32 s57, {RDY + 8}\ns_mov_b32 s3, {0 if o.get('h3', 1) else 1}\ns_branch fz_k2")

def wst_setup(k, o, fv):
    g3map(k, 50, 51)
    k.srd(24, 4, WOBYTES, add=WS_WO)
    k(f"s_lshl_b32 s52, s51, 9\ns_add_u32 s52, s52, {FL_W}\ns_mul_i32 s63, s51, {16*20736}\nv_lshlrev_b32 v{fv+2}, 3, v{VL}\nv_lshlrev_b32 v{fv+3}, 4, v{VL}\nv_mov_b32 v{fv}, 0\nv_mov_b32 v{fv+1}, 0")
    k.wfv = fv
def wst_check(k, o, fv):
    L = k.label("w4"); D = k.label("w4d")
    k(f"""
    s_mov_b32 s62, 0
    {L}:
    v_cmp_ne_u32 vcc, s{NON}, v{fv}
    s_and_b32 vcc_lo, vcc_lo, 0x77777777
    s_and_b32 vcc_hi, vcc_hi, 0x77777777
    v_cmp_ne_u32 s[60:61], s{NON}, v{fv+1}
    s_and_b32 s60, s60, 0x33333333
    s_and_b32 s61, s61, 0x33333333
    s_or_b64 vcc, vcc, s[60:61]
    s_cbranch_scc0 {D}
    s_add_u32 s62, s62, 1
    s_cmp_ge_u32 s62, {SPIN}
    s_cbranch_scc1 {D}
    buffer_load_dwordx2 v[{fv}:{fv+1}], v{fv+2}, s[{FLS}:{FLS+3}], s52 offen sc1
    s_waitcnt vmcnt(0)
    s_branch {L}
    {D}:
    """)
def wst(k, w):
    fv = k.wfv
    k(f"s_add_u32 s48, s{C}, {w + 4}\ns_and_b32 s48, s48, 15\ns_mul_i32 s48, s48, 20736\ns_add_u32 s48, s48, s63")
    for i in range(21):
        if i == 20: k(xm(0xffff))
        k(f"s_mov_b32 m0, {WQ[w] + i*1024}\nbuffer_load_dwordx4 v{fv+3}, s[24:27], s48 offen sc1 lds\ns_add_u32 s48, s48, 1024")
    k("s_mov_b64 exec, -1")

def gen_fused(prof=False, **o):
    OPT.update(o); o['WFL'] = WFL
    k = Kern(NAME + "_kernel", 256, 512, 163840)
    k.prof = prof; k.allreal = bool(o.get('real', 0))
    if o.get('p0'):
        seen = set(); st0 = k.stamp
        def st(i, real=False):
            if i in (5, 7, 8, 9):
                key = (i, len([1 for l in k.lines if l.startswith(('fz_l1W:', 'fz_c1:'))]))
                if key in seen or any(l.startswith('fz_cons:') for l in k.lines): return
                seen.add(key)
            st0(i, real)
        k.stamp = st
    k.stamp(0, True); k.stamp(1)
    if o.get('dbgt'): k("s_memrealtime s[64:65]")
    phase0(k, o); phase2(k, o)
    k("fz_fin:")
    if o.get('dbgt'):
        k(f"""
        s_waitcnt vmcnt(0)
        s_memrealtime s[66:67]
        s_load_dwordx2 s[68:69], s[0:1], {ARG['dbg']}
        s_waitcnt lgkmcnt(0)
        s_cmp_ge_u32 s2, 8
        s_cbranch_scc1 fz_end
        s_cmp_lg_u32 s22, 0
        s_cbranch_scc1 fz_end
        s_lshl_b32 s70, s2, 3
        v_mov_b32 v0, s70
        v_mov_b32 v2, s64
        v_mov_b32 v3, s66
        s_mov_b64 exec, 1
        global_store_dwordx2 v0, v[2:3], s[68:69]
        """)
    if prof:
        k("s_waitcnt vmcnt(0)"); k.stamp(15, True)
        k.prof_dump(0, 4, W, 16)
    k("fz_end:")
    return k

def emit_single(k, path):
    from gen import header
    s = header() + f"; @launch kernel={k.name} grid=({k.grid},1,1) block=({k.block},1,1) lds={k.lds}\n"
    s += '.amdgcn_target "amdgcn-amd-amdhsa--gfx950"\n.text\n' + k.text() + '.section .rodata,"a"\n' + k.desc()
    open(path, "w").write(s)

if __name__ == "__main__":
    opts = {a.split("=")[0]: int(a.split("=")[1]) for a in sys.argv[2:] if "=" in a}
    emit_single(gen_fused(prof="prof" in sys.argv, **opts), sys.argv[1])
```
